```python
import torch

def _softmax(x, axis=-1):
    return torch.softmax(x, dim=axis)
def _gelu(x):
    return torch.nn.functional.gelu(x, approximate="tanh")
def _silu(x):
    return torch.nn.functional.silu(x)
def _sigmoid(x):
    return torch.sigmoid(x)
def _layernorm(x, axis=-1, eps=1e-5):
    m = x.mean(dim=axis, keepdim=True)
    v = x.var(dim=axis, keepdim=True, unbiased=False)
    return (x - m) / torch.sqrt(v + eps)
def _scatter_add(tgt, idx, src, axis=0):
    return tgt.clone().index_add_(axis, idx, src)
def _segment_sum(src, seg, n):
    out = torch.zeros((n,) + src.shape[1:], dtype=src.dtype)
    return out.index_add_(0, seg, src)
def _pad(x, pw):
    flat = tuple(v for pair in reversed(pw) for v in pair)
    return torch.nn.functional.pad(x, flat)

kernel_name = 'parallel_sum__mha_block_cached__mixer_token_mlp__decode'

def setup_inputs():

    _w = (lambda a: (lambda t: t.to(torch.bfloat16) if t.is_floating_point() else t)(torch.as_tensor(a)))
    def _A_setup():
        B, Sq, D = 8, 1, 512
        H, Sk, Dh = 32, 4096, 128
        return {
            "x": _w((lambda *s: torch.randn(*s, dtype=torch.bfloat16) * 0.05)(B, Sq, D)),
            "k_cache": _w((lambda *s: torch.randn(*s, dtype=torch.bfloat16) * 3.2)(B, H, Sk, Dh)),
            "v_cache": _w((lambda *s: torch.randn(*s, dtype=torch.bfloat16) * 0.8)(B, H, Sk, Dh)),
            "wq": _w((lambda *s: torch.randn(*s, dtype=torch.bfloat16) * 3.2)(D, H * Dh) * (D ** -0.5)),
            "wo": _w((lambda *s: torch.randn(*s, dtype=torch.bfloat16) * 0.8)(H * Dh, D) * ((H * Dh) ** -0.5)),
        }
    _A_in = _A_setup()

    def _B_setup():
        B, S, D, F = 8, 1, 512, 1792
        return {
            "x": _w((lambda *s: torch.randn(*s, dtype=torch.bfloat16) * 0.05)(B, S, D)),
            "w1": _w((lambda *s: torch.randn(*s, dtype=torch.bfloat16) * 3.2)(S, F) * (S ** -0.5)),
            "b1": _w((lambda *s: torch.randn(*s, dtype=torch.bfloat16) * 3.2)(F) * 0.02),
            "w2": _w((lambda *s: torch.randn(*s, dtype=torch.bfloat16) * 0.8)(F, S) * (F ** -0.5)),
            "b2": _w((lambda *s: torch.randn(*s, dtype=torch.bfloat16) * 0.8)(S) * 0.02),
        }
    _B_in = _B_setup()

    return {
        "A_x": _A_in["x"],
        "A_k_cache": _A_in["k_cache"],
        "A_v_cache": _A_in["v_cache"],
        "A_wq": _A_in["wq"],
        "A_wo": _A_in["wo"],
        "B_x": _B_in["x"],
        "B_w1": _B_in["w1"],
        "B_b1": _B_in["b1"],
        "B_w2": _B_in["w2"],
        "B_b2": _B_in["b2"],
    }

def reference(A_x, A_k_cache, A_v_cache, A_wq, A_wo, B_x, B_w1, B_b1, B_w2, B_b2):
    def _A_ref(x, k_cache, v_cache, wq, wo):
        B, Sq, D = x.shape
        H, Dh = 32, 128
        q = (lambda x, *d: x.permute(*d))((x @ wq).reshape(B, Sq, H, Dh), 0, 2, 1, 3)
        scores = torch.einsum("bhqd,bhkd->bhqk", q, k_cache) * (Dh ** -0.5)
        p = _softmax(scores, axis=-1)
        o = torch.einsum("bhqk,bhkd->bhqd", p, v_cache)
        return (lambda x, *d: x.permute(*d))(o, 0, 2, 1, 3).reshape(B, Sq, H * Dh) @ wo

    def _B_ref(x, w1, b1, w2, b2):
        B, S, D = x.shape
        h = _layernorm(x, axis=-1)
        u = torch.einsum("bsd,sf->bdf", h, w1) + b1
        u = _gelu(u)
        y = torch.einsum("bdf,fs->bds", u, w2) + b2
        return (lambda x, *d: x.permute(*d))(y, 0, 2, 1)

    x = A_x
    xn = _layernorm(x, axis=-1)
    return x + _A_ref(xn, A_k_cache, A_v_cache, A_wq, A_wo) + _B_ref(xn, B_w1, B_b1, B_w2, B_b2)
```

```python
import sys, struct, math

NAME = "parallel_sum__mha_block_cached__mixer_token_mlp__decode"

def f2u(x):
    return struct.unpack("<I", struct.pack("<f", x))[0]

class Asm:
    def __init__(self):
        self.lines = []
    def __call__(self, s):
        for l in s.split("\n"):
            self.lines.append("    " + l.strip() if l.strip() and not l.strip().endswith(":") else l.strip())
    def c(self, s):
        self.lines.append("    ; " + s)
    def text(self):
        return "\n".join(self.lines) + "\n"

def gen(opts):
    NT = opts.get("nt", "nt")
    INTERLEAVE = opts.get("interleave", 0)
    STAMP = opts.get("stamp", 0)
    KFIRST = opts.get("kfirst", 4)
    a = Asm()
    FULL = "row_mask:0xf bank_mask:0xf"

    sB, sH, sW = "s30", "s31", "s32"
    sOff, sIt = "s33", "s34"
    R = "s[36:39]"
    sM1, sD1, sM2, sD2 = "s40", "s41", "s42", "s43"
    sT0, sT1, sT2, sT3 = "s44", "s45", "s46", "s47"
    mB1, mB0 = "s[48:49]", "s[50:51]"
    sHI = "s52"
    sStride = (16*1024 if INTERLEAVE else 1024)
    sWaveStride = (1024 if INTERLEAVE else 64*1024)
    WS2 = "s[56:59]"

    vL, vOff = "v0", "v1"
    RING = 64
    WREG = 32
    def slot(j): return f"v[{RING+4*j}:{RING+4*j+3}]"
    def wslot(j): return f"v[{WREG+4*j}:{WREG+4*j+3}]"

    L_QP = 0
    L_ML = 9216
    L_BP = 9472
    L_FLAG = 10496
    L_Y = 10752
    LDS_BYTES = L_Y + 32768

    def stamp(i):
        if STAMP:
            a(f"s_memrealtime s[{60+2*i}:{61+2*i}]")

    def kload(j, pol=NT):
        a(f"buffer_load_dwordx4 {slot(j)}, {vOff}, {R}, {sOff} offen {pol}")
        a(f"s_add_u32 {sOff}, {sOff}, {sStride}")

    def wave_reduce(op, v, sdst):
        for ctl in ["quad_perm:[1,0,3,2] "+FULL, "quad_perm:[2,3,0,1] "+FULL, "row_half_mirror "+FULL, "row_mirror "+FULL,
                    "row_bcast:15 row_mask:0xa bank_mask:0xf", "row_bcast:31 row_mask:0xc bank_mask:0xf"]:
            a("s_nop 1")
            a(f"{op}_dpp {v}, {v}, {v} {ctl}")
        a("s_nop 1")
        a(f"v_readlane_b32 {sdst}, {v}, 63")

    def row_allreduce(op, regs):
        for ctl in ["quad_perm:[1,0,3,2]", "quad_perm:[2,3,0,1]", "row_half_mirror", "row_mirror"]:
            if len(regs) < 3: a(f"s_nop {2-len(regs)}")
            for v in regs:
                a(f"{op}_dpp {v}, {v}, {v} {ctl} {FULL}")

    def round_bf16(v):
        a(f"v_cvt_pk_bf16_f32 {v}, {v}, {v}")
        a(f"v_and_b32 {v}, {sHI}, {v}")

    a(f"{NAME}_kernel:")
    a("s_cmp_ge_u32 s2, 256")
    a("s_cbranch_scc1 L_end")
    a("s_load_dwordx16 s[4:19], s[0:1], 0")
    a("s_load_dwordx8 s[20:27], s[0:1], 64")
    a("s_load_dwordx2 s[28:29], s[0:1], 96")
    stamp(0)
    a(f"v_lshrrev_b32 v2, 6, v0")
    a(f"v_and_b32 {vL}, 63, v0")
    a(f"v_readfirstlane_b32 {sW}, v2")
    a(f"s_lshr_b32 {sB}, s2, 5")
    a(f"s_and_b32 {sH}, s2, 31")
    a(f"s_mov_b32 {sHI}, 0xffff0000")
    a(f"s_mov_b32 s38, 0x100000")
    a(f"s_mov_b32 s39, 0x20000")
    a(f"s_mov_b32 s59, 0x20000")
    a(f"s_mul_i32 {sT0}, {sW}, {sWaveStride}")
    a(f"v_lshlrev_b32 {vOff}, 4, {vL}")
    a(f"v_add_u32 {vOff}, {sT0}, {vOff}")
    a(f"s_lshl_b32 {sT0}, s2, 20")
    a(f"s_lshr_b32 {sT1}, s2, 12")
    a(f"s_mov_b32 {sOff}, 0")
    a(f"v_lshrrev_b32 v2, 4, {vL}")
    a(f"v_and_b32 v3, 15, {vL}")
    a("s_waitcnt lgkmcnt(0)")
    a(f"s_add_u32 s6, s6, {sT0}")
    a(f"s_addc_u32 s7, s7, {sT1}")
    a(f"s_add_u32 s8, s8, {sT0}")
    a(f"s_addc_u32 s9, s9, {sT1}")
    a(f"s_mov_b32 s36, s6")
    a(f"s_mov_b32 s37, s7")
    for j in range(KFIRST): kload(j)
    a(f"s_lshl_b32 {sT0}, {sB}, 10")
    a(f"s_add_u32 s4, s4, {sT0}")
    a(f"s_addc_u32 s5, s5, 0")
    a(f"v_lshlrev_b32 v8, 4, {vL}")
    a(f"global_load_dwordx4 v[4:7], v8, s[4:5]")
    a(f"s_lshl_b32 {sT0}, {sH}, 5")
    a(f"v_lshl_add_u32 v9, v3, 1, {sT0}")
    a(f"global_load_ushort v8, v9, s[4:5]")
    a(f"s_mul_i32 {sT0}, {sW}, 224")
    a(f"v_mul_u32_u24 v9, 56, v2")
    a(f"v_lshl_add_u32 v9, v3, 2, v9")
    a(f"v_add_u32 v9, {sT0}, v9")
    a(f"v_cmp_lt_u32 vcc, 13, v3")
    a(f"v_mov_b32 v10, 0x10000")
    a(f"s_mov_b32 s58, 3584")
    a(f"v_cndmask_b32 v9, v9, v10, vcc")
    a(f"s_mov_b32 s56, s16")
    a(f"s_mov_b32 s57, s17")
    a(f"buffer_load_dword v10, v9, {WS2}, 0 offen")
    a(f"s_mov_b32 s56, s18")
    a(f"s_mov_b32 s57, s19")
    a(f"buffer_load_dword v11, v9, {WS2}, 0 offen")
    a(f"s_mov_b32 s56, s20")
    a(f"s_mov_b32 s57, s21")
    a(f"buffer_load_dword v12, v9, {WS2}, 0 offen")
    a(f"s_lshl_b32 {sT0}, {sW}, 18")
    a(f"s_lshl_b32 {sT1}, {sH}, 8")
    a(f"s_add_u32 {sT0}, {sT0}, {sT1}")
    a(f"s_add_u32 s10, s10, {sT0}")
    a(f"s_addc_u32 s11, s11, 0")
    a(f"v_lshlrev_b32 v9, 16, v2")
    a(f"v_lshl_add_u32 v9, v3, 4, v9")
    for j in range(8):
        a(f"global_load_dwordx4 {wslot(j)}, v9, s[10:11]")
        if j < 7:
            a(f"s_add_u32 s10, s10, 8192")
            a(f"s_addc_u32 s11, s11, 0")
    for j in range(KFIRST, 16): kload(j)
    after_x = 4 + 8 + (16-KFIRST)
    a(f"v_and_b32 v9, 2, {vL}")
    a(f"v_cmp_ne_u32 {mB1}, 0, v9")
    a(f"v_and_b32 v9, 1, {vL}")
    a(f"v_cmp_ne_u32 {mB0}, 0, v9")
    a(f"s_load_dword s53, s[22:23], 0")
    a(f"s_waitcnt vmcnt({after_x})")
    stamp(1)

    X = [f"v{16+i}" for i in range(8)]
    def unpack(src4):
        for i in range(4):
            a(f"v_lshlrev_b32 {X[2*i]}, 16, v{src4+i}")
            a(f"v_and_b32 {X[2*i+1]}, {sHI}, v{src4+i}")
    def ln(sM, sD, write):
        a(f"v_add_f32 v24, {X[0]}, {X[1]}")
        for i in range(2, 8): a(f"v_add_f32 v24, v24, {X[i]}")
        wave_reduce("v_add_f32", "v24", sT0)
        a("s_nop 1")
        a(f"v_mov_b32 v25, {sT0}")
        a(f"v_mul_f32 v25, {hex(f2u(1.0/512))}, v25")
        a(f"v_sub_f32 v26, {X[0]}, v25")
        a(f"v_mul_f32 v24, v26, v26")
        for i in range(1, 8):
            a(f"v_sub_f32 v26, {X[i]}, v25")
            a(f"v_fmac_f32 v24, v26, v26")
        wave_reduce("v_add_f32", "v24", sT0)
        round_bf16("v25")
        a(f"v_mov_b32 v24, {sT0}")
        a(f"v_mul_f32 v24, {hex(f2u(1.0/512))}, v24")
        round_bf16("v24")
        a(f"v_add_f32 v24, {hex(f2u(1e-5))}, v24")
        round_bf16("v24")
        a(f"v_sqrt_f32 v24, v24")
        a("s_nop 0")
        round_bf16("v24")
        a(f"v_rcp_f32 v24, v24")
        a(f"v_readfirstlane_b32 {sM}, v25")
        a(f"v_readfirstlane_b32 {sD}, v24")
        if write:
            for i in range(8): a(f"v_sub_f32 {X[i]}, {X[i]}, v25")
            for i in range(4): a(f"v_cvt_pk_bf16_f32 v{4+i}, {X[2*i]}, {X[2*i+1]}")
            unpack(4)
            for i in range(8): a(f"v_mul_f32 {X[i]}, {X[i]}, v24")
            for i in range(4): a(f"v_cvt_pk_bf16_f32 v{4+i}, {X[2*i]}, {X[2*i+1]}")
            unpack(4)
    unpack(4)
    ln(sM1, sD1, True)
    ln(sM2, sD2, False)
    a(f"s_lshl_b32 {sT0}, {sW}, 4")
    a(f"v_lshl_add_u32 v9, v2, 2, {sT0}")
    for i in range(4): a(f"ds_bpermute_b32 v{4+i}, v9, v{4+i}")

    a(f"s_waitcnt vmcnt({8 + 16 - KFIRST})")
    a(f"v_lshlrev_b32 v8, 16, v8")
    a(f"v_subrev_f32 v8, {sM1}, v8"); round_bf16("v8")
    a(f"v_mul_f32 v8, {sD1}, v8"); round_bf16("v8")
    a(f"v_subrev_f32 v8, {sM2}, v8"); round_bf16("v8")
    a(f"v_mul_f32 v8, {sD2}, v8"); round_bf16("v8")
    a(f"v_lshlrev_b32 v13, 16, v10")
    a(f"v_and_b32 v10, {sHI}, v10")
    a(f"v_lshlrev_b32 v14, 16, v11")
    a(f"v_and_b32 v11, {sHI}, v11")
    kb = math.sqrt(2.0/math.pi); l2e = 1.0/math.log(2.0)
    a(f"v_mov_b32 v22, {hex(f2u(-2*kb*l2e))}")
    a(f"s_mov_b32 {sT1}, {hex(f2u(-2*kb*l2e*0.044715))}")
    a(f"v_mov_b32 v15, 0")
    a(f"s_mov_b32 {sIt}, 14")
    BC = "row_newbcast:0 " + FULL
    a("L_mix:")
    a(f"v_mul_f32_dpp v16, v13, v8 {BC}")
    a(f"v_mul_f32_dpp v17, v10, v8 {BC}")
    a(f"v_cvt_pk_bf16_f32 v17, v16, v17")
    a(f"v_lshlrev_b32 v16, 16, v17")
    a(f"v_and_b32 v17, {sHI}, v17")
    a(f"v_add_f32_dpp v16, v14, v16 {BC}")
    a(f"v_add_f32_dpp v17, v11, v17 {BC}")
    a(f"v_cvt_pk_bf16_f32 v17, v16, v17")
    a(f"v_lshlrev_b32 v16, 16, v17")
    a(f"v_and_b32 v17, {sHI}, v17")
    a(f"v_mul_f32 v18, v16, v16")
    a(f"v_mul_f32 v19, v17, v17")
    a(f"v_fma_f32 v18, v18, {sT1}, v22")
    a(f"v_fma_f32 v19, v19, {sT1}, v22")
    a(f"v_mul_f32 v18, v18, v16")
    a(f"v_mul_f32 v19, v19, v17")
    a(f"v_exp_f32 v18, v18")
    a(f"v_exp_f32 v19, v19")
    a(f"v_mov_b32_dpp v13, v13 row_ror:15 {FULL}")
    a(f"v_add_f32 v18, 1.0, v18")
    a(f"v_add_f32 v19, 1.0, v19")
    a(f"v_rcp_f32 v18, v18")
    a(f"v_rcp_f32 v19, v19")
    a(f"v_mov_b32_dpp v10, v10 row_ror:15 {FULL}")
    a(f"v_mul_f32 v18, v18, v16")
    a(f"v_mul_f32 v19, v19, v17")
    a(f"v_cvt_pk_bf16_f32 v18, v18, v19")
    a(f"v_mov_b32_dpp v14, v14 row_ror:15 {FULL}")
    a(f"v_mov_b32_dpp v11, v11 row_ror:15 {FULL}")
    a(f"v_dot2c_f32_bf16_dpp v15, v12, v18 {BC}")
    a(f"v_mov_b32_dpp v12, v12 row_ror:15 {FULL}")
    a(f"s_sub_u32 {sIt}, {sIt}, 1")
    a(f"s_cmp_lg_u32 {sIt}, 0")
    a(f"s_cbranch_scc1 L_mix")
    a(f"v_mov_b32 v16, v15")
    a("s_nop 1")
    a(f"v_permlane32_swap_b32 v15, v16")
    a(f"v_add_f32 v15, v15, v16")
    a(f"v_mov_b32 v16, v15")
    a("s_nop 1")
    a(f"v_permlane16_swap_b32 v15, v16")
    a(f"v_add_f32 v15, v15, v16")
    a(f"s_lshl_b32 {sT0}, {sW}, 6")
    a(f"v_lshl_add_u32 v16, v3, 2, {sT0}")
    a(f"ds_write_b32 v16, v15 offset:{L_BP}")

    a(f"s_waitcnt vmcnt({16 - KFIRST}) lgkmcnt(0)")
    stamp(2)
    ACC = [f"v{16+i}" for i in range(8)]
    for i in range(8): a(f"v_mov_b32 {ACC[i]}, 0")
    for j in range(8):
        src = f"v{4 + j//2}"
        if j % 2 == 0:
            a(f"v_and_b32 v8, 0xffff, {src}")
            a(f"v_lshlrev_b32 v9, 16, {src}")
        else:
            a(f"v_lshrrev_b32 v8, 16, {src}")
            a(f"v_and_b32 v9, {sHI}, {src}")
        for i in range(4):
            a(f"v_dot2c_f32_bf16 {ACC[2*i]}, v8, v{WREG+4*j+i}")
            a(f"v_dot2c_f32_bf16 {ACC[2*i+1]}, v9, v{WREG+4*j+i}")
    a(f"s_lshl_b32 {sT0}, {sH}, 17")
    a(f"s_lshl_b32 {sT1}, {sW}, 13")
    a(f"s_add_u32 {sT0}, {sT0}, {sT1}")
    a(f"s_add_u32 {sT0}, {sT0}, 4096")
    a(f"s_add_u32 s12, s12, {sT0}")
    a(f"s_addc_u32 s13, s13, 0")
    a(f"v_lshlrev_b32 v8, 4, {vL}")
    for j in range(8):
        a(f"global_load_dwordx4 {wslot(j)}, v8, s[12:13] offset:{1024*j-4096}")

    def rows_reduce8(dst_stride, base):
        for i in range(4): a(f"v_permlane32_swap_b32 {ACC[i]}, {ACC[i+4]}")
        for i in range(4): a(f"v_add_f32 {ACC[i]}, {ACC[i]}, {ACC[i+4]}")
        a("s_nop 0")
        for i in range(2): a(f"v_permlane16_swap_b32 {ACC[i]}, {ACC[i+2]}")
        for i in range(2): a(f"v_add_f32 {ACC[i]}, {ACC[i]}, {ACC[i+2]}")
        a(f"s_mul_i32 {sT0}, {sW}, {dst_stride}")
        a(f"v_lshlrev_b32 v8, 5, v3")
        a(f"v_lshl_add_u32 v8, v2, 3, v8")
        a(f"v_add_u32 v8, {sT0}, v8")
        a(f"ds_write_b64 v8, v[16:17] offset:{base}")
    rows_reduce8(512, L_QP)
    a("s_waitcnt lgkmcnt(0)")
    a("s_barrier")
    a(f"v_lshlrev_b32 v8, 3, {vL}")
    for half in range(2):
        for w in range(8):
            a(f"ds_read_b64 v[{16+2*w}:{17+2*w}], v8 offset:{L_QP + 512*(8*half+w)}")
        a("s_waitcnt lgkmcnt(0)")
        if half == 0:
            a("v_add_f32 v10, v16, v18")
            a("v_add_f32 v11, v17, v19")
        else:
            for w in range(2):
                a(f"v_add_f32 v10, v10, v{16+2*w}")
                a(f"v_add_f32 v11, v11, v{17+2*w}")
        for w in range(2, 8):
            a(f"v_add_f32 v10, v10, v{16+2*w}")
            a(f"v_add_f32 v11, v11, v{17+2*w}")
    a("v_cvt_pk_bf16_f32 v10, v10, v11")
    a(f"v_lshlrev_b32 v8, 4, v3")
    for i in range(4):
        a(f"ds_bpermute_b32 v{4+i}, v8, v10 offset:{4*i}")
    a(f"v_lshlrev_b32 v8, 2, {vL}")
    for i in range(4):
        a(f"ds_read_b32 v{16+i}, v8 offset:{L_BP + 256*i}")
    a("s_waitcnt lgkmcnt(0)")
    a("v_add_f32 v16, v16, v17")
    a("v_add_f32 v18, v18, v19")
    a("v_add_f32 v16, v16, v18")
    a(f"v_mov_b32 v17, v16")
    a("s_nop 1")
    a(f"v_permlane32_swap_b32 v16, v17")
    a(f"v_add_f32 v16, v16, v17")
    a(f"v_mov_b32 v17, v16")
    a("s_nop 1")
    a(f"v_permlane16_swap_b32 v16, v17")
    a(f"v_add_f32 v16, v16, v17")
    round_bf16("v16")
    a(f"s_lshl_b32 s53, s53, 16")
    a(f"v_add_f32 v16, s53, v16")
    round_bf16("v16")
    a(f"s_lshl_b32 {sT0}, s2, 6")
    a(f"s_add_u32 {sT0}, {sT0}, 0x80000")
    a(f"s_add_u32 s56, s28, {sT0}")
    a(f"s_addc_u32 s57, s29, 0")
    a(f"s_cmp_eq_u32 {sW}, 0")
    a(f"s_cselect_b32 s58, 64, 0")
    a(f"buffer_store_dword v16, v8, {WS2}, 0 offen sc1")
    stamp(3)

    P = [f"v{16+i}" for i in range(16)]
    S = [f"v{8+i}" for i in range(4)]
    a(f"s_mov_b32 {sIt}, 0")
    a(f"s_mov_b32 {sT3}, {hex(f2u(128 ** -0.5))}")
    a("L_k:")
    a(f"s_cmp_eq_u32 {sIt}, 3")
    a(f"s_cselect_b32 s36, s8, s6")
    a(f"s_cselect_b32 s37, s9, s7")
    a(f"s_cselect_b32 {sOff}, 0, {sOff}")
    for j in range(16):
        a("s_waitcnt vmcnt(15)")
        b = RING + 4*j
        a(f"v_dot2_f32_bf16 {P[j]}, v{b}, v4, 0")
        for i in range(1, 4):
            a(f"v_dot2_f32_bf16 {P[j]}, v{b+i}, v{4+i}, {P[j]}")
        kload(j)
    a(f"v_mov_b32 {S[0]}, {S[1]}")
    for i in range(8):
        a(f"v_add_f32_dpp {P[i]}, {P[i]}, {P[i]} row_mirror row_mask:0xf bank_mask:0x3")
        a(f"v_add_f32_dpp {P[i]}, {P[i+8]}, {P[i+8]} row_mirror row_mask:0xf bank_mask:0xc")
    for i in range(4):
        a(f"v_add_f32_dpp {P[i]}, {P[i]}, {P[i]} row_half_mirror row_mask:0xf bank_mask:0x5")
        a(f"v_add_f32_dpp {P[i]}, {P[i+4]}, {P[i+4]} row_half_mirror row_mask:0xf bank_mask:0xa")
    a(f"v_mov_b32 {S[1]}, {S[2]}")
    for i in range(4):
        a(f"v_add_f32_dpp {P[i]}, {P[i]}, {P[i]} quad_perm:[2,3,0,1] {FULL}")
    a(f"v_cndmask_b32 {P[0]}, {P[0]}, {P[2]}, {mB1}")
    a(f"v_cndmask_b32 {P[1]}, {P[1]}, {P[3]}, {mB1}")
    a(f"v_mov_b32 {S[2]}, {S[3]}")
    a(f"s_add_u32 {sIt}, {sIt}, 1")
    a(f"v_add_f32_dpp {P[0]}, {P[0]}, {P[0]} quad_perm:[1,0,3,2] {FULL}")
    a(f"v_add_f32_dpp {P[1]}, {P[1]}, {P[1]} quad_perm:[1,0,3,2] {FULL}")
    a(f"v_cndmask_b32 {S[3]}, {P[0]}, {P[1]}, {mB0}")
    round_bf16(S[3])
    a(f"v_mul_f32 {S[3]}, {sT3}, {S[3]}")
    round_bf16(S[3])
    a(f"s_cmp_lt_u32 {sIt}, 4")
    a(f"s_cbranch_scc1 L_k")
    stamp(4)

    a(f"s_mov_b32 {sT3}, {hex(f2u(l2e))}")
    a(f"v_max3_f32 v16, {S[0]}, {S[1]}, {S[2]}")
    a(f"v_max_f32 v16, v16, {S[3]}")
    wave_reduce("v_max_f32", "v16", sT0)
    a("s_nop 1")
    for i in range(4): a(f"v_subrev_f32 v{16+i}, {sT0}, {S[i]}")
    for i in range(4): a(f"v_mul_f32 v{16+i}, {sT3}, v{16+i}")
    for i in range(4): a(f"v_exp_f32 v{16+i}, v{16+i}")
    a("s_nop 0")
    a("v_add_f32 v16, v16, v17")
    a("v_add_f32 v18, v18, v19")
    a("v_add_f32 v16, v16, v18")
    wave_reduce("v_add_f32", "v16", sT1)
    a(f"s_lshl_b32 {sT2}, {sW}, 3")
    a(f"v_mov_b32 v16, {sT0}")
    a(f"v_mov_b32 v17, {sT1}")
    a(f"v_mov_b32 v18, {sT2}")
    a(f"ds_write_b64 v18, v[16:17] offset:{L_ML}")
    a("s_waitcnt lgkmcnt(0)")
    a("s_barrier")
    a(f"v_lshlrev_b32 v18, 3, v3")
    a(f"ds_read_b64 v[16:17], v18 offset:{L_ML}")
    a("s_waitcnt lgkmcnt(0)")
    a("v_mov_b32 v18, v16")
    row_allreduce("v_max_f32", ["v18"])
    a("v_sub_f32 v16, v16, v18")
    a(f"v_mul_f32 v16, {sT3}, v16")
    a("v_exp_f32 v16, v16")
    for i in range(4): a(f"v_sub_f32 {S[i]}, {S[i]}, v18")
    a("v_mul_f32 v16, v16, v17")
    for i in range(4): a(f"v_mul_f32 {S[i]}, {sT3}, {S[i]}")
    row_allreduce("v_add_f32", ["v16"])
    for i in range(4): a(f"v_exp_f32 {S[i]}, {S[i]}")
    a("v_rcp_f32 v16, v16")
    a("s_nop 0")
    for i in range(4): a(f"v_mul_f32 {S[i]}, {S[i]}, v16")
    for i in range(4): a(f"v_cvt_pk_bf16_f32 {S[i]}, {S[i]}, {S[i]}")
    PL = [f"v{12+i}" for i in range(4)]
    for i in range(4): a(f"v_lshrrev_b32 {PL[i]}, 16, {S[i]}")
    for i in range(4): a(f"v_and_b32 {S[i]}, {sHI}, {S[i]}")
    for i in range(8): a(f"v_mov_b32 {ACC[i]}, 0")
    a(f"s_mov_b32 {sT0}, 0x05040100")
    a(f"s_mov_b32 {sT1}, 0x07060302")
    a("s_waitcnt vmcnt(16)")
    for p in range(4):
        for i in range(4):
            r0 = WREG + 8*p + i; r1 = WREG + 8*p + 4 + i
            a(f"v_perm_b32 v24, v{r1}, v{r0}, {sT0}")
            a(f"v_perm_b32 v{r1}, v{r1}, v{r0}, {sT1}")
            a(f"v_mov_b32 v{r0}, v24")

    a(f"s_mov_b32 {sIt}, 0")
    a("L_v:")
    a(f"s_cmp_eq_u32 {sIt}, 3")
    a(f"s_cselect_b32 s38, 0, s38")
    for j in range(16):
        a("s_waitcnt vmcnt(15)")
        b = RING + 4*j
        for i in range(4):
            a(f"v_dot2c_f32_bf16_dpp {ACC[2*i]}, {PL[0]}, v{b+i} row_newbcast:{j} {FULL}")
            a(f"v_dot2c_f32_bf16_dpp {ACC[2*i+1]}, {S[0]}, v{b+i} row_newbcast:{j} {FULL}")
        kload(j)
    for i in range(3):
        a(f"v_mov_b32 {S[i]}, {S[i+1]}")
        a(f"v_mov_b32 {PL[i]}, {PL[i+1]}")
    a(f"s_add_u32 {sIt}, {sIt}, 1")
    a(f"s_cmp_lt_u32 {sIt}, 4")
    a(f"s_cbranch_scc1 L_v")
    stamp(5)

    rows_reduce8(520, L_QP)
    a("s_waitcnt lgkmcnt(0)")
    a("s_barrier")
    a(f"s_lshl_b32 {sT0}, {sW}, 5")
    a(f"v_mul_u32_u24 v8, 520, v3")
    a(f"v_lshl_add_u32 v8, v2, 3, v8")
    a(f"v_add_u32 v8, {sT0}, v8")
    a(f"ds_read_b64 v[24:25], v8 offset:{L_QP}")
    for i in range(8): a(f"v_mov_b32 {ACC[i]}, 0")
    a("s_waitcnt lgkmcnt(0)")
    row_allreduce("v_add_f32", ["v24", "v25"])
    a("v_cvt_pk_bf16_f32 v24, v24, v25")
    a("s_nop 0")
    for p, s in enumerate([sT0, sT1, sT2, sT3]): a(f"v_readlane_b32 {s}, v24, {16*p}")
    for p, s in enumerate([sT0, sT1, sT2, sT3]):
        for i in range(4):
            a(f"v_dot2c_f32_bf16 {ACC[2*i]}, {s}, v{WREG+8*p+i}")
            a(f"v_dot2c_f32_bf16 {ACC[2*i+1]}, {s}, v{WREG+8*p+4+i}")
    a(f"s_lshl_b32 {sT0}, {sW}, 11")
    a(f"v_lshl_add_u32 v8, {vL}, 5, {sT0}")
    a("s_nop 1")
    a(f"ds_write_b128 v8, v[16:19] offset:{L_Y}")
    a(f"ds_write_b128 v8, v[20:23] offset:{L_Y+16}")
    a(f"v_lshrrev_b32 v9, 5, {vL}")
    a(f"v_and_b32 v10, 31, {vL}")
    a(f"s_lshl_b32 {sT0}, {sW}, 7")
    a(f"v_lshl_add_u32 v10, v10, 2, {sT0}")
    a(f"v_lshl_add_u32 v9, v9, 14, v10")
    a("s_waitcnt lgkmcnt(0)")
    a("s_barrier")
    for i in range(8): a(f"ds_read_b32 v{16+i}, v9 offset:{L_Y + 2048*i}")
    a(f"s_lshl_b32 {sT0}, s2, 11")
    a(f"s_add_u32 s56, s28, {sT0}")
    a(f"s_addc_u32 s57, s29, 0")
    a(f"s_mov_b32 s58, 2048")
    a("s_waitcnt lgkmcnt(0)")
    for i in range(4): a(f"v_add_f32 v{16+i}, v{16+i}, v{20+i}")
    a("v_add_f32 v16, v16, v18")
    a("v_add_f32 v17, v17, v19")
    a("v_add_f32 v16, v16, v17")
    a(f"v_mov_b32 v17, v16")
    a("s_nop 1")
    a(f"v_permlane32_swap_b32 v16, v17")
    a(f"v_add_f32 v16, v16, v17")
    a(f"buffer_store_dword v16, v9, {WS2}, 0 offen sc1")
    a("s_waitcnt vmcnt(0)")
    a("s_barrier")
    stamp(6)
    a(f"s_cmp_lg_u32 {sW}, 0")
    a(f"s_cbranch_scc1 L_wait")
    a(f"s_lshl_b32 {sT0}, {sB}, 2")
    a(f"v_mov_b32 v16, {sT0}")
    a(f"v_mov_b32 v17, 1")
    a(f"s_mov_b64 exec, 1")
    a(f"global_atomic_add v18, v16, v17, s[26:27] sc0 sc1")
    a(f"v_mov_b32 v16, 0")
    a("s_waitcnt vmcnt(0)")
    a(f"ds_write_b32 v16, v18 offset:{L_FLAG}")
    a(f"s_mov_b64 exec, -1")
    a("s_waitcnt lgkmcnt(0)")
    a("L_wait:")
    a("s_barrier")
    a(f"v_mov_b32 v16, 0")
    a(f"ds_read_b32 v18, v16 offset:{L_FLAG}")
    a("s_waitcnt lgkmcnt(0)")
    a(f"v_readfirstlane_b32 {sT0}, v18")
    stamp(7)
    a(f"s_cmp_lg_u32 {sT0}, 31")
    a(f"s_cbranch_scc1 L_fin")
    a(f"s_lshl_b32 {sT0}, {sB}, 16")
    a(f"s_add_u32 s56, s28, {sT0}")
    a(f"s_addc_u32 s57, s29, 0")
    a(f"s_mov_b32 s58, 65536")
    a(f"v_lshrrev_b32 v8, 3, {vL}")
    a(f"v_and_b32 v9, 7, {vL}")
    a(f"s_lshl_b32 {sT0}, {sW}, 7")
    a(f"v_lshl_add_u32 v10, v9, 4, {sT0}")
    a(f"v_lshl_add_u32 v10, v8, 13, v10")
    a(f"s_movk_i32 {sT1}, 4096")
    a(f"buffer_load_dwordx4 v[16:19], v10, {WS2}, 0 offen sc1")
    a(f"buffer_load_dwordx4 v[20:23], v10, {WS2}, 0 offen offset:2048 sc1")
    a(f"buffer_load_dwordx4 v[24:27], v10, {WS2}, {sT1} offen sc1")
    a(f"buffer_load_dwordx4 v[28:31], v10, {WS2}, {sT1} offen offset:2048 sc1")
    a(f"v_lshrrev_b32 v11, 5, {vL}")
    a(f"v_lshlrev_b32 v11, 1, v11")
    a(f"v_and_b32 v12, 1, v2")
    a(f"v_add_u32 v11, v11, v12")
    a(f"v_lshl_add_u32 v11, v9, 2, v11")
    a(f"s_lshl_b32 {sT0}, {sW}, 5")
    a(f"v_add_u32 v11, {sT0}, v11")
    a(f"v_lshlrev_b32 v12, 1, v11")
    a(f"global_load_ushort v13, v12, s[4:5]")
    a(f"s_lshl_b32 {sT0}, {sB}, 11")
    a(f"s_add_u32 {sT0}, {sT0}, 0x80000")
    a(f"v_lshl_add_u32 v11, v11, 2, {sT0}")
    a(f"global_load_dword v14, v11, s[28:29] sc1")
    a("s_waitcnt vmcnt(2)")
    for i in range(4): a(f"v_add_f32 v{16+i}, v{16+i}, v{20+i}")
    for i in range(4): a(f"v_add_f32 v{24+i}, v{24+i}, v{28+i}")
    for i in range(4): a(f"v_add_f32 v{16+i}, v{16+i}, v{24+i}")
    a("s_nop 0")
    a("v_permlane32_swap_b32 v16, v18")
    a("v_permlane32_swap_b32 v17, v19")
    a("v_add_f32 v16, v16, v18")
    a("v_add_f32 v17, v17, v19")
    a("s_nop 1")
    a("v_permlane16_swap_b32 v16, v17")
    a("v_add_f32 v16, v16, v17")
    a("s_nop 1")
    a(f"v_add_f32_dpp v16, v16, v16 row_ror:8 {FULL}")
    round_bf16("v16")
    a("s_waitcnt vmcnt(0)")
    a("v_lshlrev_b32 v13, 16, v13")
    a("v_add_f32 v16, v13, v16")
    round_bf16("v16")
    a("v_add_f32 v16, v16, v14")
    a("v_cvt_pk_bf16_f32 v16, v16, v16")
    a(f"s_lshl_b32 {sT0}, {sB}, 10")
    a(f"v_add_u32 v12, {sT0}, v12")
    a(f"global_store_short v12, v16, s[24:25]")
    a("L_fin:")
    if STAMP:
        stamp(8)
        a("s_waitcnt lgkmcnt(0)")
        a(f"s_lshl_b32 {sT0}, s2, 4")
        a(f"s_add_u32 {sT0}, {sT0}, {sW}")
        a(f"s_lshl_b32 {sT0}, {sT0}, 7")
        a(f"s_add_u32 {sT0}, {sT0}, 0x100000")
        a(f"v_mov_b32 v16, 0")
        for i in range(18):
            a(f"v_writelane_b32 v16, s{60+i}, {i}")
        a(f"s_getreg_b32 {sT1}, hwreg(HW_REG_XCC_ID)")
        a(f"s_getreg_b32 {sT2}, hwreg(HW_REG_HW_ID)")
        a(f"v_writelane_b32 v16, {sT1}, 18")
        a(f"v_writelane_b32 v16, {sT2}, 19")
        a(f"v_lshl_add_u32 v17, {vL}, 2, {sT0}")
        a(f"s_mov_b64 exec, 0xffffffff")
        a(f"global_store_dword v17, v16, s[28:29]")
    a("L_end:")
    a("s_endpgm")

    head = open("cdna_kernels/%s.s.ref" % NAME).read().split("; Override launch")[0]
    out = head
    out += f"; @launch grid=(256,1,1) block=(1024,1,1) lds={LDS_BYTES}\n"
    out += '.amdgcn_target "amdgcn-amd-amdhsa--gfx950"\n.text\n'
    out += f".globl {NAME}_kernel\n.p2align 8\n.type {NAME}_kernel,@function\n"
    out += a.text()
    out += f""".section .rodata,"a"
.p2align 6
.amdhsa_kernel {NAME}_kernel
  .amdhsa_next_free_vgpr 128
  .amdhsa_next_free_sgpr 80
  .amdhsa_accum_offset 128
  .amdhsa_group_segment_fixed_size 0
  .amdhsa_kernarg_size 104
  .amdhsa_user_sgpr_count 2
  .amdhsa_user_sgpr_kernarg_segment_ptr 1
  .amdhsa_system_sgpr_workgroup_id_x 1
  .amdhsa_float_denorm_mode_32 3
.end_amdhsa_kernel
"""
    return out

if __name__ == "__main__":
    opts = {}
    outp = sys.argv[1]
    for kv in sys.argv[2:]:
        k, v = kv.split("=")
        opts[k] = int(v) if v.lstrip("-").isdigit() else v.replace("+", " ")
    open(outp, "w").write(gen(opts))
```

```python
import sys, struct, math

NAME = "parallel_sum__mha_block_cached__mixer_token_mlp__decode"

def f2u(x):
    return struct.unpack("<I", struct.pack("<f", x))[0]

class Asm:
    def __init__(self):
        self.lines = []
    def __call__(self, s):
        for l in s.split("\n"):
            self.lines.append("    " + l.strip() if l.strip() and not l.strip().endswith(":") else l.strip())
    def c(self, s):
        self.lines.append("    ; " + s)
    def text(self):
        return "\n".join(self.lines) + "\n"

def gen(opts):
    NT = opts.get("nt", "nt")
    INTERLEAVE = opts.get("interleave", 0)
    STAMP = opts.get("stamp", 0)
    KFIRST = opts.get("kfirst", 4)
    a = Asm()
    FULL = "row_mask:0xf bank_mask:0xf"

    sB, sH, sW = "s30", "s31", "s32"
    sOff, sIt = "s33", "s34"
    R = "s[36:39]"
    sM1, sD1, sM2, sD2 = "s40", "s41", "s42", "s43"
    sT0, sT1, sT2, sT3 = "s44", "s45", "s46", "s47"
    mB1, mB0 = "s[48:49]", "s[50:51]"
    sHI = "s52"
    sStride = (16*1024 if INTERLEAVE else 1024)
    sWaveStride = (1024 if INTERLEAVE else 64*1024)
    WS2 = "s[56:59]"

    vL, vOff = "v0", "v1"
    RING = 64
    WREG = 32
    def slot(j): return f"v[{RING+4*j}:{RING+4*j+3}]"
    def wslot(j): return f"v[{WREG+4*j}:{WREG+4*j+3}]"

    L_QP = 0
    L_ML = 9216
    L_BP = 9472
    L_FLAG = 10496
    L_Y = 10752
    LDS_BYTES = L_Y + 32768

    def stamp(i):
        if STAMP:
            a(f"s_memrealtime s[{60+2*i}:{61+2*i}]")

    def kload(j, pol=NT):
        a(f"buffer_load_dwordx4 {slot(j)}, {vOff}, {R}, {sOff} offen {pol}")
        a(f"s_add_u32 {sOff}, {sOff}, {sStride}")

    def wave_reduce(op, v, sdst):
        for ctl in ["quad_perm:[1,0,3,2] "+FULL, "quad_perm:[2,3,0,1] "+FULL, "row_half_mirror "+FULL, "row_mirror "+FULL,
                    "row_bcast:15 row_mask:0xa bank_mask:0xf", "row_bcast:31 row_mask:0xc bank_mask:0xf"]:
            a("s_nop 1")
            a(f"{op}_dpp {v}, {v}, {v} {ctl}")
        a("s_nop 1")
        a(f"v_readlane_b32 {sdst}, {v}, 63")

    def row_allreduce(op, regs):
        for ctl in ["quad_perm:[1,0,3,2]", "quad_perm:[2,3,0,1]", "row_half_mirror", "row_mirror"]:
            if len(regs) < 3: a(f"s_nop {2-len(regs)}")
            for v in regs:
                a(f"{op}_dpp {v}, {v}, {v} {ctl} {FULL}")

    def round_bf16(v):
        a(f"v_cvt_pk_bf16_f32 {v}, {v}, {v}")
        a(f"v_and_b32 {v}, {sHI}, {v}")

    a(f"{NAME}_kernel:")
    a("s_cmp_ge_u32 s2, 256")
    a("s_cbranch_scc1 L_end")
    a("s_load_dwordx16 s[4:19], s[0:1], 0")
    a("s_load_dwordx8 s[20:27], s[0:1], 64")
    a("s_load_dwordx2 s[28:29], s[0:1], 96")
    stamp(0)
    a(f"v_lshrrev_b32 v2, 6, v0")
    a(f"v_and_b32 {vL}, 63, v0")
    a(f"v_readfirstlane_b32 {sW}, v2")
    a(f"s_lshr_b32 {sB}, s2, 5")
    a(f"s_and_b32 {sH}, s2, 31")
    a(f"s_mov_b32 {sHI}, 0xffff0000")
    a(f"s_mov_b32 s38, 0x100000")
    a(f"s_mov_b32 s39, 0x20000")
    a(f"s_mov_b32 s59, 0x20000")
    a(f"s_mul_i32 {sT0}, {sW}, {sWaveStride}")
    a(f"v_lshlrev_b32 {vOff}, 4, {vL}")
    a(f"v_add_u32 {vOff}, {sT0}, {vOff}")
    a(f"s_lshl_b32 {sT0}, s2, 20")
    a(f"s_lshr_b32 {sT1}, s2, 12")
    a(f"s_mov_b32 {sOff}, 0")
    a(f"v_lshrrev_b32 v2, 4, {vL}")
    a(f"v_and_b32 v3, 15, {vL}")
    a("s_waitcnt lgkmcnt(0)")
    a(f"s_add_u32 s6, s6, {sT0}")
    a(f"s_addc_u32 s7, s7, {sT1}")
    a(f"s_add_u32 s8, s8, {sT0}")
    a(f"s_addc_u32 s9, s9, {sT1}")
    a(f"s_mov_b32 s36, s6")
    a(f"s_mov_b32 s37, s7")
    for j in range(KFIRST): kload(j)
    a(f"s_lshl_b32 {sT0}, {sB}, 10")
    a(f"s_add_u32 s4, s4, {sT0}")
    a(f"s_addc_u32 s5, s5, 0")
    a(f"v_lshlrev_b32 v8, 4, {vL}")
    a(f"global_load_dwordx4 v[4:7], v8, s[4:5]")
    a(f"s_lshl_b32 {sT0}, {sH}, 5")
    a(f"v_lshl_add_u32 v9, v3, 1, {sT0}")
    a(f"global_load_ushort v8, v9, s[4:5]")
    a(f"s_mul_i32 {sT0}, {sW}, 224")
    a(f"v_mul_u32_u24 v9, 56, v2")
    a(f"v_lshl_add_u32 v9, v3, 2, v9")
    a(f"v_add_u32 v9, {sT0}, v9")
    a(f"v_cmp_lt_u32 vcc, 13, v3")
    a(f"v_mov_b32 v10, 0x10000")
    a(f"s_mov_b32 s58, 3584")
    a(f"v_cndmask_b32 v9, v9, v10, vcc")
    a(f"s_mov_b32 s56, s16")
    a(f"s_mov_b32 s57, s17")
    a(f"buffer_load_dword v10, v9, {WS2}, 0 offen")
    a(f"s_mov_b32 s56, s18")
    a(f"s_mov_b32 s57, s19")
    a(f"buffer_load_dword v11, v9, {WS2}, 0 offen")
    a(f"s_mov_b32 s56, s20")
    a(f"s_mov_b32 s57, s21")
    a(f"buffer_load_dword v12, v9, {WS2}, 0 offen")
    a(f"s_lshl_b32 {sT0}, {sW}, 18")
    a(f"s_lshl_b32 {sT1}, {sH}, 8")
    a(f"s_add_u32 {sT0}, {sT0}, {sT1}")
    a(f"s_add_u32 s10, s10, {sT0}")
    a(f"s_addc_u32 s11, s11, 0")
    a(f"v_lshlrev_b32 v9, 16, v2")
    a(f"v_lshl_add_u32 v9, v3, 4, v9")
    for j in range(8):
        a(f"global_load_dwordx4 {wslot(j)}, v9, s[10:11]")
        if j < 7:
            a(f"s_add_u32 s10, s10, 8192")
            a(f"s_addc_u32 s11, s11, 0")
    for j in range(KFIRST, 16): kload(j)
    after_x = 4 + 8 + (16-KFIRST)
    a(f"v_and_b32 v9, 2, {vL}")
    a(f"v_cmp_ne_u32 {mB1}, 0, v9")
    a(f"v_and_b32 v9, 1, {vL}")
    a(f"v_cmp_ne_u32 {mB0}, 0, v9")
    a(f"s_load_dword s53, s[22:23], 0")
    a(f"s_waitcnt vmcnt({after_x})")
    stamp(1)

    X = [f"v{16+i}" for i in range(8)]
    def unpack(src4):
        for i in range(4):
            a(f"v_lshlrev_b32 {X[2*i]}, 16, v{src4+i}")
            a(f"v_and_b32 {X[2*i+1]}, {sHI}, v{src4+i}")
    def ln(sM, sD, write):
        a(f"v_add_f32 v24, {X[0]}, {X[1]}")
        for i in range(2, 8): a(f"v_add_f32 v24, v24, {X[i]}")
        wave_reduce("v_add_f32", "v24", sT0)
        a("s_nop 1")
        a(f"v_mov_b32 v25, {sT0}")
        a(f"v_mul_f32 v25, {hex(f2u(1.0/512))}, v25")
        a(f"v_sub_f32 v26, {X[0]}, v25")
        a(f"v_mul_f32 v24, v26, v26")
        for i in range(1, 8):
            a(f"v_sub_f32 v26, {X[i]}, v25")
            a(f"v_fmac_f32 v24, v26, v26")
        wave_reduce("v_add_f32", "v24", sT0)
        round_bf16("v25")
        a(f"v_mov_b32 v24, {sT0}")
        a(f"v_mul_f32 v24, {hex(f2u(1.0/512))}, v24")
        round_bf16("v24")
        a(f"v_add_f32 v24, {hex(f2u(1e-5))}, v24")
        round_bf16("v24")
        a(f"v_sqrt_f32 v24, v24")
        a("s_nop 0")
        round_bf16("v24")
        a(f"v_rcp_f32 v24, v24")
        a(f"v_readfirstlane_b32 {sM}, v25")
        a(f"v_readfirstlane_b32 {sD}, v24")
        if write:
            for i in range(8): a(f"v_sub_f32 {X[i]}, {X[i]}, v25")
            for i in range(4): a(f"v_cvt_pk_bf16_f32 v{4+i}, {X[2*i]}, {X[2*i+1]}")
            unpack(4)
            for i in range(8): a(f"v_mul_f32 {X[i]}, {X[i]}, v24")
            for i in range(4): a(f"v_cvt_pk_bf16_f32 v{4+i}, {X[2*i]}, {X[2*i+1]}")
            unpack(4)
    unpack(4)
    ln(sM1, sD1, True)
    ln(sM2, sD2, False)
    a(f"s_lshl_b32 {sT0}, {sW}, 4")
    a(f"v_lshl_add_u32 v9, v2, 2, {sT0}")
    for i in range(4): a(f"ds_bpermute_b32 v{4+i}, v9, v{4+i}")

    a(f"s_waitcnt vmcnt({8 + 16 - KFIRST})")
    a(f"v_lshlrev_b32 v8, 16, v8")
    a(f"v_subrev_f32 v8, {sM1}, v8"); round_bf16("v8")
    a(f"v_mul_f32 v8, {sD1}, v8"); round_bf16("v8")
    a(f"v_subrev_f32 v8, {sM2}, v8"); round_bf16("v8")
    a(f"v_mul_f32 v8, {sD2}, v8"); round_bf16("v8")
    a(f"v_lshlrev_b32 v13, 16, v10")
    a(f"v_and_b32 v10, {sHI}, v10")
    a(f"v_lshlrev_b32 v14, 16, v11")
    a(f"v_and_b32 v11, {sHI}, v11")
    kb = math.sqrt(2.0/math.pi); l2e = 1.0/math.log(2.0)
    a(f"v_mov_b32 v22, {hex(f2u(-2*kb*l2e))}")
    a(f"s_mov_b32 {sT1}, {hex(f2u(-2*kb*l2e*0.044715))}")
    a(f"v_mov_b32 v15, 0")
    a(f"s_mov_b32 {sIt}, 14")
    BC = "row_newbcast:0 " + FULL
    a("L_mix:")
    a(f"v_mul_f32_dpp v16, v13, v8 {BC}")
    a(f"v_mul_f32_dpp v17, v10, v8 {BC}")
    a(f"v_cvt_pk_bf16_f32 v17, v16, v17")
    a(f"v_lshlrev_b32 v16, 16, v17")
    a(f"v_and_b32 v17, {sHI}, v17")
    a(f"v_add_f32_dpp v16, v14, v16 {BC}")
    a(f"v_add_f32_dpp v17, v11, v17 {BC}")
    a(f"v_cvt_pk_bf16_f32 v17, v16, v17")
    a(f"v_lshlrev_b32 v16, 16, v17")
    a(f"v_and_b32 v17, {sHI}, v17")
    a(f"v_mul_f32 v18, v16, v16")
    a(f"v_mul_f32 v19, v17, v17")
    a(f"v_fma_f32 v18, v18, {sT1}, v22")
    a(f"v_fma_f32 v19, v19, {sT1}, v22")
    a(f"v_mul_f32 v18, v18, v16")
    a(f"v_mul_f32 v19, v19, v17")
    a(f"v_exp_f32 v18, v18")
    a(f"v_exp_f32 v19, v19")
    a(f"v_mov_b32_dpp v13, v13 row_ror:15 {FULL}")
    a(f"v_add_f32 v18, 1.0, v18")
    a(f"v_add_f32 v19, 1.0, v19")
    a(f"v_rcp_f32 v18, v18")
    a(f"v_rcp_f32 v19, v19")
    a(f"v_mov_b32_dpp v10, v10 row_ror:15 {FULL}")
    a(f"v_mul_f32 v18, v18, v16")
    a(f"v_mul_f32 v19, v19, v17")
    a(f"v_cvt_pk_bf16_f32 v18, v18, v19")
    a(f"v_mov_b32_dpp v14, v14 row_ror:15 {FULL}")
    a(f"v_mov_b32_dpp v11, v11 row_ror:15 {FULL}")
    a(f"v_dot2c_f32_bf16_dpp v15, v12, v18 {BC}")
    a(f"v_mov_b32_dpp v12, v12 row_ror:15 {FULL}")
    a(f"s_sub_u32 {sIt}, {sIt}, 1")
    a(f"s_cmp_lg_u32 {sIt}, 0")
    a(f"s_cbranch_scc1 L_mix")
    a(f"v_mov_b32 v16, v15")
    a("s_nop 1")
    a(f"v_permlane32_swap_b32 v15, v16")
    a(f"v_add_f32 v15, v15, v16")
    a(f"v_mov_b32 v16, v15")
    a("s_nop 1")
    a(f"v_permlane16_swap_b32 v15, v16")
    a(f"v_add_f32 v15, v15, v16")
    a(f"s_lshl_b32 {sT0}, {sW}, 6")
    a(f"v_lshl_add_u32 v16, v3, 2, {sT0}")
    a(f"ds_write_b32 v16, v15 offset:{L_BP}")

    a(f"s_waitcnt vmcnt({16 - KFIRST}) lgkmcnt(0)")
    stamp(2)
    ACC = [f"v{16+i}" for i in range(8)]
    for i in range(8): a(f"v_mov_b32 {ACC[i]}, 0")
    for j in range(8):
        src = f"v{4 + j//2}"
        if j % 2 == 0:
            a(f"v_and_b32 v8, 0xffff, {src}")
            a(f"v_lshlrev_b32 v9, 16, {src}")
        else:
            a(f"v_lshrrev_b32 v8, 16, {src}")
            a(f"v_and_b32 v9, {sHI}, {src}")
        for i in range(4):
            a(f"v_dot2c_f32_bf16 {ACC[2*i]}, v8, v{WREG+4*j+i}")
            a(f"v_dot2c_f32_bf16 {ACC[2*i+1]}, v9, v{WREG+4*j+i}")
    a(f"s_lshl_b32 {sT0}, {sH}, 17")
    a(f"s_lshl_b32 {sT1}, {sW}, 13")
    a(f"s_add_u32 {sT0}, {sT0}, {sT1}")
    a(f"s_add_u32 {sT0}, {sT0}, 4096")
    a(f"s_add_u32 s12, s12, {sT0}")
    a(f"s_addc_u32 s13, s13, 0")
    a(f"v_lshlrev_b32 v8, 4, {vL}")
    for j in range(8):
        a(f"global_load_dwordx4 {wslot(j)}, v8, s[12:13] offset:{1024*j-4096}")

    def rows_reduce8(dst_stride, base):
        for i in range(4): a(f"v_permlane32_swap_b32 {ACC[i]}, {ACC[i+4]}")
        for i in range(4): a(f"v_add_f32 {ACC[i]}, {ACC[i]}, {ACC[i+4]}")
        a("s_nop 0")
        for i in range(2): a(f"v_permlane16_swap_b32 {ACC[i]}, {ACC[i+2]}")
        for i in range(2): a(f"v_add_f32 {ACC[i]}, {ACC[i]}, {ACC[i+2]}")
        a(f"s_mul_i32 {sT0}, {sW}, {dst_stride}")
        a(f"v_lshlrev_b32 v8, 5, v3")
        a(f"v_lshl_add_u32 v8, v2, 3, v8")
        a(f"v_add_u32 v8, {sT0}, v8")
        a(f"ds_write_b64 v8, v[16:17] offset:{base}")
    rows_reduce8(512, L_QP)
    a("s_waitcnt lgkmcnt(0)")
    a("s_barrier")
    a(f"v_lshlrev_b32 v8, 3, {vL}")
    for half in range(2):
        for w in range(8):
            a(f"ds_read_b64 v[{16+2*w}:{17+2*w}], v8 offset:{L_QP + 512*(8*half+w)}")
        a("s_waitcnt lgkmcnt(0)")
        if half == 0:
            a("v_add_f32 v10, v16, v18")
            a("v_add_f32 v11, v17, v19")
        else:
            for w in range(2):
                a(f"v_add_f32 v10, v10, v{16+2*w}")
                a(f"v_add_f32 v11, v11, v{17+2*w}")
        for w in range(2, 8):
            a(f"v_add_f32 v10, v10, v{16+2*w}")
            a(f"v_add_f32 v11, v11, v{17+2*w}")
    a("v_cvt_pk_bf16_f32 v10, v10, v11")
    a(f"v_lshlrev_b32 v8, 4, v3")
    for i in range(4):
        a(f"ds_bpermute_b32 v{4+i}, v8, v10 offset:{4*i}")
    a(f"v_lshlrev_b32 v8, 2, {vL}")
    for i in range(4):
        a(f"ds_read_b32 v{16+i}, v8 offset:{L_BP + 256*i}")
    a("s_waitcnt lgkmcnt(0)")
    a("v_add_f32 v16, v16, v17")
    a("v_add_f32 v18, v18, v19")
    a("v_add_f32 v16, v16, v18")
    a(f"v_mov_b32 v17, v16")
    a("s_nop 1")
    a(f"v_permlane32_swap_b32 v16, v17")
    a(f"v_add_f32 v16, v16, v17")
    a(f"v_mov_b32 v17, v16")
    a("s_nop 1")
    a(f"v_permlane16_swap_b32 v16, v17")
    a(f"v_add_f32 v16, v16, v17")
    round_bf16("v16")
    a(f"s_lshl_b32 s53, s53, 16")
    a(f"v_add_f32 v16, s53, v16")
    round_bf16("v16")
    a(f"s_lshl_b32 {sT0}, s2, 6")
    a(f"s_add_u32 {sT0}, {sT0}, 0x80000")
    a(f"s_add_u32 s56, s28, {sT0}")
    a(f"s_addc_u32 s57, s29, 0")
    a(f"s_cmp_eq_u32 {sW}, 0")
    a(f"s_cselect_b32 s58, 64, 0")
    a(f"buffer_store_dword v16, v8, {WS2}, 0 offen sc1")
    stamp(3)

    P = [f"v{16+i}" for i in range(16)]
    S = [f"v{8+i}" for i in range(4)]
    a(f"s_mov_b32 {sIt}, 0")
    a(f"s_mov_b32 {sT3}, {hex(f2u(128 ** -0.5))}")
    a("L_k:")
    a(f"s_cmp_eq_u32 {sIt}, 3")
    a(f"s_cselect_b32 s36, s8, s6")
    a(f"s_cselect_b32 s37, s9, s7")
    a(f"s_cselect_b32 {sOff}, 0, {sOff}")
    for j in range(16):
        a("s_waitcnt vmcnt(15)")
        b = RING + 4*j
        a(f"v_dot2_f32_bf16 {P[j]}, v{b}, v4, 0")
        for i in range(1, 4):
            a(f"v_dot2_f32_bf16 {P[j]}, v{b+i}, v{4+i}, {P[j]}")
        kload(j)
    a(f"v_mov_b32 {S[0]}, {S[1]}")
    for i in range(8):
        a(f"v_add_f32_dpp {P[i]}, {P[i]}, {P[i]} row_mirror row_mask:0xf bank_mask:0x3")
        a(f"v_add_f32_dpp {P[i]}, {P[i+8]}, {P[i+8]} row_mirror row_mask:0xf bank_mask:0xc")
    for i in range(4):
        a(f"v_add_f32_dpp {P[i]}, {P[i]}, {P[i]} row_half_mirror row_mask:0xf bank_mask:0x5")
        a(f"v_add_f32_dpp {P[i]}, {P[i+4]}, {P[i+4]} row_half_mirror row_mask:0xf bank_mask:0xa")
    a(f"v_mov_b32 {S[1]}, {S[2]}")
    for i in range(4):
        a(f"v_add_f32_dpp {P[i]}, {P[i]}, {P[i]} quad_perm:[2,3,0,1] {FULL}")
    a(f"v_cndmask_b32 {P[0]}, {P[0]}, {P[2]}, {mB1}")
    a(f"v_cndmask_b32 {P[1]}, {P[1]}, {P[3]}, {mB1}")
    a(f"v_mov_b32 {S[2]}, {S[3]}")
    a(f"s_add_u32 {sIt}, {sIt}, 1")
    a(f"v_add_f32_dpp {P[0]}, {P[0]}, {P[0]} quad_perm:[1,0,3,2] {FULL}")
    a(f"v_add_f32_dpp {P[1]}, {P[1]}, {P[1]} quad_perm:[1,0,3,2] {FULL}")
    a(f"v_cndmask_b32 {S[3]}, {P[0]}, {P[1]}, {mB0}")
    round_bf16(S[3])
    a(f"v_mul_f32 {S[3]}, {sT3}, {S[3]}")
    round_bf16(S[3])
    a(f"s_cmp_lt_u32 {sIt}, 4")
    a(f"s_cbranch_scc1 L_k")
    stamp(4)

    a(f"s_mov_b32 {sT3}, {hex(f2u(l2e))}")
    a(f"v_max3_f32 v16, {S[0]}, {S[1]}, {S[2]}")
    a(f"v_max_f32 v16, v16, {S[3]}")
    wave_reduce("v_max_f32", "v16", sT0)
    a("s_nop 1")
    for i in range(4): a(f"v_subrev_f32 v{16+i}, {sT0}, {S[i]}")
    for i in range(4): a(f"v_mul_f32 v{16+i}, {sT3}, v{16+i}")
    for i in range(4): a(f"v_exp_f32 v{16+i}, v{16+i}")
    a("s_nop 0")
    a("v_add_f32 v16, v16, v17")
    a("v_add_f32 v18, v18, v19")
    a("v_add_f32 v16, v16, v18")
    wave_reduce("v_add_f32", "v16", sT1)
    a(f"s_lshl_b32 {sT2}, {sW}, 3")
    a(f"v_mov_b32 v16, {sT0}")
    a(f"v_mov_b32 v17, {sT1}")
    a(f"v_mov_b32 v18, {sT2}")
    a(f"ds_write_b64 v18, v[16:17] offset:{L_ML}")
    a("s_waitcnt lgkmcnt(0)")
    a("s_barrier")
    a(f"v_lshlrev_b32 v18, 3, v3")
    a(f"ds_read_b64 v[16:17], v18 offset:{L_ML}")
    a("s_waitcnt lgkmcnt(0)")
    a("v_mov_b32 v18, v16")
    row_allreduce("v_max_f32", ["v18"])
    a("v_sub_f32 v16, v16, v18")
    a(f"v_mul_f32 v16, {sT3}, v16")
    a("v_exp_f32 v16, v16")
    for i in range(4): a(f"v_sub_f32 {S[i]}, {S[i]}, v18")
    a("v_mul_f32 v16, v16, v17")
    for i in range(4): a(f"v_mul_f32 {S[i]}, {sT3}, {S[i]}")
    row_allreduce("v_add_f32", ["v16"])
    for i in range(4): a(f"v_exp_f32 {S[i]}, {S[i]}")
    a("v_rcp_f32 v16, v16")
    a("s_nop 0")
    for i in range(4): a(f"v_mul_f32 {S[i]}, {S[i]}, v16")
    for i in range(4): a(f"v_cvt_pk_bf16_f32 {S[i]}, {S[i]}, {S[i]}")
    PL = [f"v{12+i}" for i in range(4)]
    for i in range(4): a(f"v_lshrrev_b32 {PL[i]}, 16, {S[i]}")
    for i in range(4): a(f"v_and_b32 {S[i]}, {sHI}, {S[i]}")
    for i in range(8): a(f"v_mov_b32 {ACC[i]}, 0")
    a(f"s_mov_b32 {sT0}, 0x05040100")
    a(f"s_mov_b32 {sT1}, 0x07060302")
    a("s_waitcnt vmcnt(16)")
    for p in range(4):
        for i in range(4):
            r0 = WREG + 8*p + i; r1 = WREG + 8*p + 4 + i
            a(f"v_perm_b32 v24, v{r1}, v{r0}, {sT0}")
            a(f"v_perm_b32 v{r1}, v{r1}, v{r0}, {sT1}")
            a(f"v_mov_b32 v{r0}, v24")

    a(f"s_mov_b32 {sIt}, 0")
    a("L_v:")
    a(f"s_cmp_eq_u32 {sIt}, 3")
    a(f"s_cselect_b32 s38, 0, s38")
    for j in range(16):
        a("s_waitcnt vmcnt(15)")
        b = RING + 4*j
        for i in range(4):
            a(f"v_dot2c_f32_bf16_dpp {ACC[2*i]}, {PL[0]}, v{b+i} row_newbcast:{j} {FULL}")
            a(f"v_dot2c_f32_bf16_dpp {ACC[2*i+1]}, {S[0]}, v{b+i} row_newbcast:{j} {FULL}")
        kload(j)
    for i in range(3):
        a(f"v_mov_b32 {S[i]}, {S[i+1]}")
        a(f"v_mov_b32 {PL[i]}, {PL[i+1]}")
    a(f"s_add_u32 {sIt}, {sIt}, 1")
    a(f"s_cmp_lt_u32 {sIt}, 4")
    a(f"s_cbranch_scc1 L_v")
    stamp(5)

    rows_reduce8(520, L_QP)
    a("s_waitcnt lgkmcnt(0)")
    a("s_barrier")
    a(f"s_lshl_b32 {sT0}, {sW}, 5")
    a(f"v_mul_u32_u24 v8, 520, v3")
    a(f"v_lshl_add_u32 v8, v2, 3, v8")
    a(f"v_add_u32 v8, {sT0}, v8")
    a(f"ds_read_b64 v[24:25], v8 offset:{L_QP}")
    for i in range(8): a(f"v_mov_b32 {ACC[i]}, 0")
    a("s_waitcnt lgkmcnt(0)")
    row_allreduce("v_add_f32", ["v24", "v25"])
    a("v_cvt_pk_bf16_f32 v24, v24, v25")
    a("s_nop 0")
    for p, s in enumerate([sT0, sT1, sT2, sT3]): a(f"v_readlane_b32 {s}, v24, {16*p}")
    for p, s in enumerate([sT0, sT1, sT2, sT3]):
        for i in range(4):
            a(f"v_dot2c_f32_bf16 {ACC[2*i]}, {s}, v{WREG+8*p+i}")
            a(f"v_dot2c_f32_bf16 {ACC[2*i+1]}, {s}, v{WREG+8*p+4+i}")
    a(f"s_lshl_b32 {sT0}, {sW}, 11")
    a(f"v_lshl_add_u32 v8, {vL}, 5, {sT0}")
    a("s_nop 1")
    a(f"ds_write_b128 v8, v[16:19] offset:{L_Y}")
    a(f"ds_write_b128 v8, v[20:23] offset:{L_Y+16}")
    a(f"v_lshrrev_b32 v9, 5, {vL}")
    a(f"v_and_b32 v10, 31, {vL}")
    a(f"s_lshl_b32 {sT0}, {sW}, 7")
    a(f"v_lshl_add_u32 v10, v10, 2, {sT0}")
    a(f"v_lshl_add_u32 v9, v9, 14, v10")
    a("s_waitcnt lgkmcnt(0)")
    a("s_barrier")
    for i in range(8): a(f"ds_read_b32 v{16+i}, v9 offset:{L_Y + 2048*i}")
    a(f"s_lshl_b32 {sT0}, s2, 11")
    a(f"s_add_u32 s56, s28, {sT0}")
    a(f"s_addc_u32 s57, s29, 0")
    a(f"s_mov_b32 s58, 2048")
    a("s_waitcnt lgkmcnt(0)")
    for i in range(4): a(f"v_add_f32 v{16+i}, v{16+i}, v{20+i}")
    a("v_add_f32 v16, v16, v18")
    a("v_add_f32 v17, v17, v19")
    a("v_add_f32 v16, v16, v17")
    a(f"v_mov_b32 v17, v16")
    a("s_nop 1")
    a(f"v_permlane32_swap_b32 v16, v17")
    a(f"v_add_f32 v16, v16, v17")
    a(f"buffer_store_dword v16, v9, {WS2}, 0 offen sc1")
    a("s_waitcnt vmcnt(0)")
    a("s_barrier")
    stamp(6)
    a(f"s_cmp_lg_u32 {sW}, 0")
    a(f"s_cbranch_scc1 L_wait")
    a(f"s_lshl_b32 {sT0}, {sB}, 2")
    a(f"v_mov_b32 v16, {sT0}")
    a(f"v_mov_b32 v17, 1")
    a(f"s_mov_b64 exec, 1")
    a(f"global_atomic_add v18, v16, v17, s[26:27] sc0 sc1")
    a(f"v_mov_b32 v16, 0")
    a("s_waitcnt vmcnt(0)")
    a(f"ds_write_b32 v16, v18 offset:{L_FLAG}")
    a(f"s_mov_b64 exec, -1")
    a("s_waitcnt lgkmcnt(0)")
    a("L_wait:")
    a("s_barrier")
    a(f"v_mov_b32 v16, 0")
    a(f"ds_read_b32 v18, v16 offset:{L_FLAG}")
    a("s_waitcnt lgkmcnt(0)")
    a(f"v_readfirstlane_b32 {sT0}, v18")
    stamp(7)
    a(f"s_cmp_lg_u32 {sT0}, 31")
    a(f"s_cbranch_scc1 L_fin")
    a(f"s_lshl_b32 {sT0}, {sB}, 16")
    a(f"s_add_u32 s56, s28, {sT0}")
    a(f"s_addc_u32 s57, s29, 0")
    a(f"s_mov_b32 s58, 65536")
    a(f"v_lshrrev_b32 v8, 3, {vL}")
    a(f"v_and_b32 v9, 7, {vL}")
    a(f"s_lshl_b32 {sT0}, {sW}, 7")
    a(f"v_lshl_add_u32 v10, v9, 4, {sT0}")
    a(f"v_lshl_add_u32 v10, v8, 13, v10")
    a(f"s_movk_i32 {sT1}, 4096")
    a(f"buffer_load_dwordx4 v[16:19], v10, {WS2}, 0 offen sc1")
    a(f"buffer_load_dwordx4 v[20:23], v10, {WS2}, 0 offen offset:2048 sc1")
    a(f"buffer_load_dwordx4 v[24:27], v10, {WS2}, {sT1} offen sc1")
    a(f"buffer_load_dwordx4 v[28:31], v10, {WS2}, {sT1} offen offset:2048 sc1")
    a(f"v_lshrrev_b32 v11, 5, {vL}")
    a(f"v_lshlrev_b32 v11, 1, v11")
    a(f"v_and_b32 v12, 1, v2")
    a(f"v_add_u32 v11, v11, v12")
    a(f"v_lshl_add_u32 v11, v9, 2, v11")
    a(f"s_lshl_b32 {sT0}, {sW}, 5")
    a(f"v_add_u32 v11, {sT0}, v11")
    a(f"v_lshlrev_b32 v12, 1, v11")
    a(f"global_load_ushort v13, v12, s[4:5]")
    a(f"s_lshl_b32 {sT0}, {sB}, 11")
    a(f"s_add_u32 {sT0}, {sT0}, 0x80000")
    a(f"v_lshl_add_u32 v11, v11, 2, {sT0}")
    a(f"global_load_dword v14, v11, s[28:29] sc1")
    a("s_waitcnt vmcnt(2)")
    for i in range(4): a(f"v_add_f32 v{16+i}, v{16+i}, v{20+i}")
    for i in range(4): a(f"v_add_f32 v{24+i}, v{24+i}, v{28+i}")
    for i in range(4): a(f"v_add_f32 v{16+i}, v{16+i}, v{24+i}")
    a("s_nop 0")
    a("v_permlane32_swap_b32 v16, v18")
    a("v_permlane32_swap_b32 v17, v19")
    a("v_add_f32 v16, v16, v18")
    a("v_add_f32 v17, v17, v19")
    a("s_nop 1")
    a("v_permlane16_swap_b32 v16, v17")
    a("v_add_f32 v16, v16, v17")
    a("s_nop 1")
    a(f"v_add_f32_dpp v16, v16, v16 row_ror:8 {FULL}")
    round_bf16("v16")
    a("s_waitcnt vmcnt(0)")
    a("v_lshlrev_b32 v13, 16, v13")
    a("v_add_f32 v16, v13, v16")
    round_bf16("v16")
    a("v_add_f32 v16, v16, v14")
    a("v_cvt_pk_bf16_f32 v16, v16, v16")
    a(f"s_lshl_b32 {sT0}, {sB}, 10")
    a(f"v_add_u32 v12, {sT0}, v12")
    a(f"global_store_short v12, v16, s[24:25]")
    a("L_fin:")
    stamp(8)
    if STAMP == 1:
        a("s_waitcnt lgkmcnt(0)")
        a(f"s_lshl_b32 {sT0}, s2, 4")
        a(f"s_add_u32 {sT0}, {sT0}, {sW}")
        a(f"s_lshl_b32 {sT0}, {sT0}, 7")
        a(f"s_add_u32 {sT0}, {sT0}, 0x100000")
        a(f"v_mov_b32 v16, 0")
        for i in range(18):
            a(f"v_writelane_b32 v16, s{60+i}, {i}")
        a(f"s_getreg_b32 {sT1}, hwreg(HW_REG_XCC_ID)")
        a(f"s_getreg_b32 {sT2}, hwreg(HW_REG_HW_ID)")
        a(f"v_writelane_b32 v16, {sT1}, 18")
        a(f"v_writelane_b32 v16, {sT2}, 19")
        a(f"v_lshl_add_u32 v17, {vL}, 2, {sT0}")
        a(f"s_mov_b64 exec, 0xffffffff")
        a(f"global_store_dword v17, v16, s[28:29]")
    if STAMP == 2:
        a("s_waitcnt lgkmcnt(0)")
        a(f"v_mov_b32 v16, 0")
        for i in range(8):
            a(f"v_writelane_b32 v16, s{60+2*(i+1)}, {i+1}")
        a(f"s_not_b32 {sT1}, s60")
        a(f"v_writelane_b32 v16, {sT1}, 1")
        a(f"v_lshlrev_b32 v17, 2, {vL}")
        a(f"s_mov_b64 exec, 0x1fe")
        a(f"global_atomic_umax v17, v16, s[26:27] offset:28 sc1")
    a("L_end:")
    a("s_endpgm")

    head = open("cdna_kernels/%s.s.ref" % NAME).read().split("; Override launch")[0]
    out = head
    out += f"; @launch grid=(256,1,1) block=(1024,1,1) lds={LDS_BYTES}\n"
    out += '.amdgcn_target "amdgcn-amd-amdhsa--gfx950"\n.text\n'
    out += f".globl {NAME}_kernel\n.p2align 8\n.type {NAME}_kernel,@function\n"
    out += a.text()
    out += f""".section .rodata,"a"
.p2align 6
.amdhsa_kernel {NAME}_kernel
  .amdhsa_next_free_vgpr 128
  .amdhsa_next_free_sgpr 80
  .amdhsa_accum_offset 128
  .amdhsa_group_segment_fixed_size 0
  .amdhsa_kernarg_size 104
  .amdhsa_user_sgpr_count 2
  .amdhsa_user_sgpr_kernarg_segment_ptr 1
  .amdhsa_system_sgpr_workgroup_id_x 1
  .amdhsa_float_denorm_mode_32 3
.end_amdhsa_kernel
"""
    return out

if __name__ == "__main__":
    opts = {}
    outp = sys.argv[1]
    for kv in sys.argv[2:]:
        k, v = kv.split("=")
        opts[k] = int(v) if v.lstrip("-").isdigit() else v.replace("+", " ")
    open(outp, "w").write(gen(opts))
```

```python
import sys, struct, math
NAME = "parallel_sum__mha_block_cached__mixer_token_mlp__decode"
def f2u(x): return struct.unpack("<I", struct.pack("<f", x))[0]
class Asm:
    def __init__(self): self.lines = []
    def __call__(self, s):
        s = s.strip()
        self.lines.append(s if s.endswith(":") else "    " + s)
    def c(self, s): self.lines.append("    ; " + s)
    def text(self): return "\n".join(self.lines) + "\n"

def gen(o):
    D = o.get("d", 20)
    STAMP = o.get("stamp", 0)
    ROT = o.get("rot", 1)
    BOUND = o.get("bound", 1)
    WOR = o.get("wor", 6)
    WQP = o.get("wqp", 0)
    SLEEP = o.get("sleep", 0)
    a = Asm()
    FULL = "row_mask:0xf bank_mask:0xf"
    l2e = 1.0 / math.log(2.0)
    sB, sH, sW = "s30", "s31", "s32"
    sOff, sR, sG = "s33", "s34", "s35"
    R = "s[36:39]"
    sM1, sD1, sM2, sD2 = "s40", "s41", "s42", "s43"
    sT = [f"s{44+i}" for i in range(8)]
    sHI, sB2, sSpin, sK = "s52", "s53", "s54", "s55"
    W2 = "s[56:59]"
    sL2E, sC1 = "s14", "s15"
    L_SC = 131072
    L_QP = L_SC + 16384
    L_XN = L_QP + 4352
    L_BP = L_XN + 1024
    L_FL = L_BP + 512
    LDS_BYTES = L_FL + 128
    L_Y = 0
    vL, vRow, vCol, vF = "v0", "v1", "v2", "v3"
    WREG = 64
    QF = 48
    DT = 32
    ACC = [f"v{24+i}" for i in range(8)]
    def wslot(j): return f"v[{WREG+4*j}:{WREG+4*j+3}]"
    nlab = [0]
    def lab(p):
        nlab[0] += 1; return f"L_{p}{nlab[0]}"
    def stamp(i):
        if STAMP: a(f"s_memrealtime s[{60+2*i}:{61+2*i}]")
    def wave_reduce(op, v, sdst):
        for ctl in ["quad_perm:[1,0,3,2] "+FULL, "quad_perm:[2,3,0,1] "+FULL, "row_half_mirror "+FULL, "row_mirror "+FULL,
                    "row_bcast:15 row_mask:0xa bank_mask:0xf", "row_bcast:31 row_mask:0xc bank_mask:0xf"]:
            a("s_nop 1"); a(f"{op}_dpp {v}, {v}, {v} {ctl}")
        a("s_nop 1"); a(f"v_readlane_b32 {sdst}, {v}, 63")
    def allreduce(op, regs, steps):
        for ctl in ["quad_perm:[1,0,3,2]", "quad_perm:[2,3,0,1]", "row_half_mirror", "row_mirror"][:steps]:
            if len(regs) < 3: a(f"s_nop {2-len(regs)}")
            for v in regs: a(f"{op}_dpp {v}, {v}, {v} {ctl} {FULL}")
    def rbf(v):
        a(f"v_cvt_pk_bf16_f32 {v}, {v}, {v}"); a(f"v_and_b32 {v}, {sHI}, {v}")
    def spin(off, cmp, val, tmpv, tmps):
        l0, l1 = lab("sp"), lab("go")
        a(f"{l0}:")
        a(f"ds_read_b32 {tmpv}, {vF} offset:{off}")
        a("s_waitcnt lgkmcnt(0)")
        a(f"v_readfirstlane_b32 {tmps}, {tmpv}")
        a(f"{cmp} {tmps}, {val}")
        if BOUND or SLEEP:
            a(f"s_cbranch_scc1 {l1}")
            if SLEEP: a(f"s_sleep {SLEEP}")
            if BOUND:
                a(f"s_sub_u32 {sSpin}, {sSpin}, 1")
                a(f"s_cbranch_scc1 L_end")
            a(f"s_branch {l0}")
            a(f"{l1}:")
        else:
            a(f"s_cbranch_scc0 {l0}")
    def rows_sum(v, t):
        a(f"v_mov_b32 {t}, {v}"); a("s_nop 1"); a(f"v_permlane32_swap_b32 {v}, {t}"); a(f"v_add_f32 {v}, {v}, {t}")
        a(f"v_mov_b32 {t}, {v}"); a("s_nop 1"); a(f"v_permlane16_swap_b32 {v}, {t}"); a(f"v_add_f32 {v}, {v}, {t}")
    def rows_reduce8(vaddr):
        for i in range(4): a(f"v_permlane32_swap_b32 {ACC[i]}, {ACC[i+4]}")
        for i in range(4): a(f"v_add_f32 {ACC[i]}, {ACC[i]}, {ACC[i+4]}")
        a("s_nop 0")
        for i in range(2): a(f"v_permlane16_swap_b32 {ACC[i]}, {ACC[i+2]}")
        for i in range(2): a(f"v_add_f32 {ACC[i]}, {ACC[i]}, {ACC[i+2]}")
        a(f"ds_write_b64 {vaddr}, v[24:25]")

    a(f"{NAME}_kernel:")
    a("s_cmp_ge_u32 s2, 256")
    a("s_cbranch_scc1 L_end")
    a("s_load_dwordx16 s[4:19], s[0:1], 0")
    a("s_load_dwordx8 s[20:27], s[0:1], 64")
    a("s_load_dwordx2 s[28:29], s[0:1], 96")
    stamp(0)
    a(f"v_lshrrev_b32 v4, 6, v0")
    a(f"v_and_b32 {vL}, 63, v0")
    a(f"v_readfirstlane_b32 {sW}, v4")
    a(f"v_mov_b32 {vF}, {L_FL}")
    a(f"v_lshrrev_b32 {vRow}, 4, {vL}")
    a(f"v_and_b32 {vCol}, 15, {vL}")
    a(f"v_lshl_add_u32 v4, {vCol}, 2, {vF}")
    a(f"v_mov_b32 v5, 0")
    a(f"ds_write_b32 v4, v5")
    a(f"s_mov_b32 s39, 0x20000")
    a(f"s_mov_b32 {sSpin}, 0x100000")
    a(f"s_lshl_b32 {sT[0]}, s2, 20")
    a(f"s_sub_u32 {sW}, {sW}, 1")
    a("s_waitcnt lgkmcnt(0)")
    a("s_barrier")
    a(f"s_cmp_lg_u32 {sW}, -1")
    a("s_cbranch_scc1 L_cons")

    a("s_setprio 3")
    a(f"s_add_u32 s36, s6, {sT[0]}")
    a(f"s_addc_u32 s37, s7, 0")
    a(f"s_mov_b32 s38, 0x100000")
    for j in range(4):
        a(f"v_xor_b32 v{4+j}, {vCol}, {vRow}")
        if j: a(f"v_xor_b32 v{4+j}, {4*j}, v{4+j}")
        a(f"v_lshlrev_b32 v{4+j}, 4, v{4+j}")
        a(f"v_lshl_add_u32 v{4+j}, {vRow}, 8, v{4+j}")
    a(f"s_add_u32 s8, s8, {sT[0]}")
    a(f"s_addc_u32 s9, s9, 0")
    js = (D - 1) % 4
    a(f"v_mov_b32 v8, {(js - D - 3)//4}")
    a(f"v_and_b32 v9, 7, {vL}")
    a(f"v_lshl_add_u32 v9, v9, 2, {vF}")
    a(f"v_mov_b32 v10, 0")
    a(f"v_mov_b32 v11, -3")
    a(f"s_mov_b32 {sOff}, 0")
    a(f"s_mov_b32 {sR}, 0")
    a(f"s_mov_b32 m0, 0")
    a("L_ld:")
    a("s_waitcnt lgkmcnt(0)")
    a(f"v_cmp_lt_i32 vcc, v10, v11")
    a(f"s_cbranch_vccnz L_ldslow")
    a("L_ldgo:")
    for g in range(8):
        for j in range(4):
            a(f"s_waitcnt vmcnt({D-1})")
            if j == js:
                a("v_add_u32 v8, 1, v8")
                a(f"ds_write_b32 {vF}, v8")
            a(f"buffer_load_dwordx4 v{4+j}, {R}, {sOff} offen offset:{1024*j} nt lds")
        a(f"s_add_u32 {sOff}, {sOff}, 4096")
        a(f"s_add_u32 m0, m0, 4096")
        if g == 5: a(f"ds_read_b32 v10, v9 offset:32")
    a(f"s_and_b32 m0, m0, 0x1ffff")
    a(f"v_add_u32 v11, 1, v11")
    a(f"s_add_u32 {sR}, {sR}, 1")
    a(f"s_cmp_lg_u32 {sR}, 32")
    a(f"s_cbranch_scc1 L_ldnv")
    a(f"s_mov_b32 s36, s8")
    a(f"s_mov_b32 s37, s9")
    a(f"s_mov_b32 {sOff}, 0")
    for j in range(4): a(f"v_lshlrev_b32 v{4+j}, 4, {vL}")
    stamp(4)
    a("L_ldnv:")
    a(f"s_cmp_lg_u32 {sR}, 64")
    a(f"s_cbranch_scc1 L_ld")
    pub = (2044 + js - D - 3)//4 + 1
    while pub < 512:
        pub += 1
        a(f"s_waitcnt vmcnt({2048 - 4*pub})")
        a("v_add_u32 v8, 1, v8")
        a(f"ds_write_b32 {vF}, v8")
    stamp(5)
    if STAMP:
        for i in (1,2,3,6,7): a(f"s_mov_b64 s[{60+2*i}:{61+2*i}], 0")
        a("s_branch L_fin")
    a("s_endpgm")
    a("L_ldslow:")
    a(f"ds_read_b32 v10, v9 offset:32")
    if BOUND:
        a(f"s_sub_u32 {sSpin}, {sSpin}, 1")
        a(f"s_cbranch_scc1 L_end")
    a("s_branch L_ld")

    a("L_cons:")
    a(f"s_lshr_b32 {sB}, s2, 5")
    a(f"s_and_b32 {sH}, s2, 31")
    a(f"s_mov_b32 {sHI}, 0xffff0000")
    a(f"s_mov_b32 s59, 0x20000")
    a(f"s_lshl_b32 {sT[0]}, {sB}, 10")
    a(f"s_add_u32 s4, s4, {sT[0]}")
    a(f"s_addc_u32 s5, s5, 0")
    a(f"v_lshlrev_b32 v8, 4, {vL}")
    a(f"global_load_dwordx4 v[4:7], v8, s[4:5]")
    a(f"s_lshl_b32 {sT[0]}, {sW}, 19")
    a(f"s_lshl_b32 {sT[1]}, {sH}, 8")
    a(f"s_add_u32 {sT[0]}, {sT[0]}, {sT[1]}")
    a(f"s_add_u32 s36, s10, {sT[0]}")
    a(f"s_addc_u32 s37, s11, 0")
    a(f"s_mov_b32 s38, 0x80000")
    a(f"v_lshlrev_b32 v9, 17, {vRow}")
    a(f"v_lshl_add_u32 v9, {vCol}, 4, v9")
    if ROT: a(f"s_lshl_b32 {sT[2]}, {sB}, 14")
    else: a(f"s_mov_b32 {sT[2]}, 0")
    def wqload(j):
        a(f"s_xor_b32 {sT[3]}, {sT[2]}, {j*8192}")
        a(f"buffer_load_dwordx4 {wslot(j)}, v9, {R}, {sT[3]} offen")
    NQ0 = WQP if WQP else 16
    for j in range(NQ0): wqload(j)
    a(f"s_load_dword {sB2}, s[22:23], 0")
    a(f"s_waitcnt vmcnt({NQ0})")
    stamp(1)
    X = [f"v{16+i}" for i in range(8)]
    def unpack(src4):
        for i in range(4):
            a(f"v_lshlrev_b32 {X[2*i]}, 16, v{src4+i}")
            a(f"v_and_b32 {X[2*i+1]}, {sHI}, v{src4+i}")
    def ln(sM, sD, write):
        a(f"v_add_f32 v24, {X[0]}, {X[1]}")
        for i in range(2, 8): a(f"v_add_f32 v24, v24, {X[i]}")
        wave_reduce("v_add_f32", "v24", sT[0])
        a("s_nop 1")
        a(f"v_mov_b32 v25, {sT[0]}")
        a(f"v_mul_f32 v25, {hex(f2u(1.0/512))}, v25")
        a(f"v_sub_f32 v26, {X[0]}, v25")
        a(f"v_mul_f32 v24, v26, v26")
        for i in range(1, 8):
            a(f"v_sub_f32 v26, {X[i]}, v25")
            a(f"v_fmac_f32 v24, v26, v26")
        wave_reduce("v_add_f32", "v24", sT[0])
        rbf("v25")
        a(f"v_mov_b32 v24, {sT[0]}")
        a(f"v_mul_f32 v24, {hex(f2u(1.0/512))}, v24")
        rbf("v24")
        a(f"v_add_f32 v24, {hex(f2u(1e-5))}, v24")
        rbf("v24")
        a(f"v_sqrt_f32 v24, v24")
        a("s_nop 0")
        rbf("v24")
        a(f"v_rcp_f32 v24, v24")
        a(f"v_readfirstlane_b32 {sM}, v25")
        a(f"v_readfirstlane_b32 {sD}, v24")
        if write:
            for i in range(8): a(f"v_sub_f32 {X[i]}, {X[i]}, v25")
            for i in range(4): a(f"v_cvt_pk_bf16_f32 v{4+i}, {X[2*i]}, {X[2*i+1]}")
            unpack(4)
            for i in range(8): a(f"v_mul_f32 {X[i]}, {X[i]}, v24")
            for i in range(4): a(f"v_cvt_pk_bf16_f32 v{4+i}, {X[2*i]}, {X[2*i+1]}")
    unpack(4)
    ln(sM1, sD1, True)
    a(f"v_add_u32 v8, {L_XN}, v8")
    a(f"ds_write_b128 v8, v[4:7]")
    a(f"s_lshl_b32 {sT[0]}, {sW}, 7")
    if ROT:
        a(f"s_lshl_b32 {sT[1]}, {sB}, 2")
        a(f"s_add_u32 {sT[0]}, {sT[0]}, {sT[1]}")
    a(f"s_add_u32 {sT[0]}, {sT[0]}, {L_XN}")
    a(f"v_lshl_add_u32 v8, {vRow}, 5, {sT[0]}")
    assert L_XN % 32 == 0
    for i in range(8):
        if i:
            a(f"v_xor_b32 v10, {4*i}, v8")
            a(f"ds_read_b32 v{DT+i}, v10")
        else:
            a(f"ds_read_b32 v{DT+i}, v8")
    for i in range(8): a(f"v_mov_b32 {ACC[i]}, 0")
    a("s_waitcnt lgkmcnt(0)")
    for j in range(16):
        src = f"v{DT + j//2}"
        if j % 2 == 0:
            a(f"v_and_b32 v10, 0xffff, {src}"); a(f"v_lshlrev_b32 v11, 16, {src}")
        else:
            a(f"v_lshrrev_b32 v10, 16, {src}"); a(f"v_and_b32 v11, {sHI}, {src}")
        issued = min(16, NQ0 + j)
        a(f"s_waitcnt vmcnt({issued - j - 1})")
        if NQ0 + j < 16: wqload(NQ0 + j)
        for i in range(4):
            a(f"v_dot2c_f32_bf16 {ACC[2*i]}, v10, v{WREG+4*j+i}")
            a(f"v_dot2c_f32_bf16 {ACC[2*i+1]}, v11, v{WREG+4*j+i}")
    stamp(2)
    vPA = "v23"
    a(f"s_mul_i32 {sT[0]}, {sW}, 528")
    a(f"s_add_u32 {sT[0]}, {sT[0]}, {L_QP}")
    a(f"v_lshl_add_u32 v15, {vCol}, 5, {sT[0]}")
    a(f"v_lshl_add_u32 v15, {vRow}, 3, v15")
    rows_reduce8("v15")
    a(f"v_mov_b32 v10, 1")
    a("s_waitcnt lgkmcnt(0)")
    a(f"s_mov_b64 exec, 1")
    a(f"ds_add_u32 {vF}, v10 offset:4")
    a(f"s_mov_b64 exec, -1")
    a(f"s_lshl_b32 {sT[0]}, {sH}, 5")
    a(f"v_lshl_add_u32 v9, {vCol}, 1, {sT[0]}")
    a(f"global_load_ushort v8, v9, s[4:5]")
    a(f"s_mul_i32 {sT[0]}, {sW}, 448")
    a(f"v_mul_u32_u24 v9, 112, {vRow}")
    a(f"v_lshl_add_u32 v9, {vCol}, 2, v9")
    a(f"v_add_u32 v9, {sT[0]}, v9")
    a(f"v_cmp_lt_u32 vcc, 13, {vCol}")
    a(f"v_mov_b32 v10, 0x10000")
    a(f"s_mov_b32 s58, 3584")
    a(f"v_cndmask_b32 v9, v9, v10, vcc")
    MX = 128
    for k, p in enumerate([16, 18, 20]):
        a(f"s_mov_b32 s56, s{p}"); a(f"s_mov_b32 s57, s{p+1}")
        for s_ in range(2):
            a(f"buffer_load_dword v{MX + 5*s_ + (1,3,4)[k]}, v9, {W2}, 0 offen offset:{56*s_}")
    unpack(4)
    ln(sM2, sD2, False)
    spin(4, "s_cmp_ge_u32", 8, "v10", sT[0])
    a(f"v_lshlrev_b32 v10, 3, {vL}")
    a(f"v_add_u32 v10, {L_QP}, v10")
    for w in range(8): a(f"ds_read_b64 v[{DT+2*w}:{DT+2*w+1}], v10 offset:{528*w}")
    a("s_waitcnt lgkmcnt(0)")
    for st in (8, 4, 2):
        for i in range(st): a(f"v_add_f32 v{DT+i}, v{DT+i}, v{DT+st+i}")
    a(f"v_cvt_pk_bf16_f32 v{DT}, v{DT}, v{DT+1}")
    a(f"v_lshlrev_b32 v10, 2, {vL}")
    a(f"v_add_u32 v10, {L_XN}, v10")
    a(f"ds_write_b32 v10, v{DT}")
    a(f"v_lshlrev_b32 v10, 4, {vRow}")
    a(f"v_add_u32 v10, {L_XN}, v10")
    for t in range(4): a(f"ds_read_b128 v[{QF+4*t}:{QF+4*t+3}], v10 offset:{64*t}")
    vH, vMA, vC0 = "v138", "v139", "v140"
    a("s_waitcnt vmcnt(0)")
    a(f"v_lshlrev_b32 {vH}, 16, v8")
    a(f"v_subrev_f32 {vH}, {sM1}, {vH}"); rbf(vH)
    a(f"v_mul_f32 {vH}, {sD1}, {vH}"); rbf(vH)
    a(f"v_subrev_f32 {vH}, {sM2}, {vH}"); rbf(vH)
    a(f"v_mul_f32 {vH}, {sD2}, {vH}"); rbf(vH)
    for s_ in range(2):
        b = MX + 5*s_
        a(f"v_lshlrev_b32 v{b}, 16, v{b+1}"); a(f"v_and_b32 v{b+1}, {sHI}, v{b+1}")
        a(f"v_lshlrev_b32 v{b+2}, 16, v{b+3}"); a(f"v_and_b32 v{b+3}, {sHI}, v{b+3}")
    kb = math.sqrt(2.0/math.pi)
    a(f"v_mov_b32 {vC0}, {hex(f2u(-2*kb*l2e))}")
    a(f"s_mov_b32 {sC1}, {hex(f2u(-2*kb*l2e*0.044715))}")
    a(f"v_mov_b32 {vMA}, 0")
    a(f"s_mov_b32 {sL2E}, {hex(f2u(l2e))}")
    a(f"s_mov_b32 {sK}, {hex(f2u(128 ** -0.5))}")
    vKA, vSA, vDA, vM, vLs, vDn = "v4", "v5", "v6", "v7", "v8", "v9"
    a(f"v_xor_b32 {vKA}, {vRow}, {vCol}")
    a(f"v_lshlrev_b32 {vKA}, 4, {vKA}")
    a(f"v_lshl_add_u32 {vKA}, {vCol}, 8, {vKA}")
    a(f"s_lshl_b32 {sT[0]}, {sW}, 12")
    a(f"v_add_u32 {vKA}, {sT[0]}, {vKA}")
    a(f"s_lshl_b32 {sT[0]}, {sW}, 6")
    a(f"s_add_u32 {sT[0]}, {sT[0]}, {L_SC}")
    a(f"v_lshl_add_u32 {vSA}, {vCol}, 2, {sT[0]}")
    a(f"s_lshl_b32 {sT[0]}, {sW}, 2")
    a(f"v_add_u32 {vDA}, {sT[0]}, {vF}")
    a(f"v_mov_b32 {vM}, 0xff7fffff")
    a(f"v_mov_b32 {vLs}, 0")
    a(f"v_mov_b32 {vDn}, 0")
    a(f"s_mov_b32 {sG}, {sW}")
    a(f"s_mov_b32 {sR}, 0")
    a(f"s_lshl_b32 {sT[0]}, {sH}, 17")
    a(f"s_lshl_b32 {sT[1]}, {sW}, 14")
    a(f"s_add_u32 {sT[0]}, {sT[0]}, {sT[1]}")
    a(f"s_add_u32 s36, s12, {sT[0]}")
    a(f"s_addc_u32 s37, s13, 0")
    a(f"s_mov_b32 s38, 16384")
    a(f"s_add_u32 {sOff}, {sW}, {WOR}")
    stamp(3)
    a("L_k:")
    for t in range(1, 4): a(f"v_xor_b32 v{10+t}, {64*t}, {vKA}")
    spin(0, "s_cmp_gt_i32", sG, "v10", sT[0])
    a(f"ds_read_b128 v[{DT}:{DT+3}], {vKA}")
    for t in range(1, 4): a(f"ds_read_b128 v[{DT+4*t}:{DT+4*t+3}], v{10+t}")
    a(f"v_add_u32 {vDn}, 1, {vDn}")
    a(f"v_add_u32 {vKA}, 0x8000, {vKA}")
    a(f"v_and_b32 {vKA}, 0x1ffff, {vKA}")
    for t in range(4):
        a(f"s_waitcnt lgkmcnt({3-t})")
        a(f"v_mfma_f32_16x16x32_bf16 v[16:19], v[{QF+4*t}:{QF+4*t+3}], v[{DT+4*t}:{DT+4*t+3}], {'0' if t == 0 else 'v[16:19]'}")
    a(f"ds_write_b32 {vDA}, {vDn} offset:32")
    a(f"s_add_u32 {sG}, {sG}, 8")
    a(f"s_nop 5")
    rbf("v16")
    a(f"v_mul_f32 v16, {sK}, v16")
    rbf("v16")
    a(f"ds_write_b32 {vSA}, v16")
    a(f"v_max_f32 v17, {vM}, v16")
    a(f"v_sub_f32 v18, {vM}, v17")
    a(f"v_sub_f32 v16, v16, v17")
    a(f"v_mul_f32 v18, {sL2E}, v18")
    a(f"v_mul_f32 v16, {sL2E}, v16")
    a(f"v_exp_f32 v18, v18")
    a(f"v_exp_f32 v16, v16")
    a(f"v_mov_b32 {vM}, v17")
    a(f"v_add_u32 {vSA}, 512, {vSA}")
    a(f"v_fma_f32 {vLs}, {vLs}, v18, v16")
    a(f"s_cmp_lg_u32 {sR}, {sOff}")
    a(f"s_cbranch_scc1 L_nowo")
    a(f"v_lshlrev_b32 v10, 4, {vL}")
    for j in range(16):
        if j % 4 == 0: a(f"s_movk_i32 {sT[1]}, {1024*j}")
        a(f"buffer_load_dwordx4 {wslot(j)}, v10, {R}, {sT[1]} offen offset:{1024*(j%4)}")
    a("L_nowo:")
    a(f"s_cmp_lt_u32 {sR}, 16")
    a(f"s_cbranch_scc1 L_nomix")
    BC = "row_newbcast:0 " + FULL
    for s_ in range(2):
        b = MX + 5*s_
        a(f"v_mul_f32_dpp v16, v{b}, {vH} {BC}")
        a(f"v_mul_f32_dpp v17, v{b+1}, {vH} {BC}")
        a(f"v_cvt_pk_bf16_f32 v17, v16, v17")
        a(f"v_lshlrev_b32 v16, 16, v17"); a(f"v_and_b32 v17, {sHI}, v17")
        a(f"v_add_f32_dpp v16, v{b+2}, v16 {BC}")
        a(f"v_add_f32_dpp v17, v{b+3}, v17 {BC}")
        a(f"v_cvt_pk_bf16_f32 v17, v16, v17")
        a(f"v_lshlrev_b32 v16, 16, v17"); a(f"v_and_b32 v17, {sHI}, v17")
        a(f"v_mul_f32 v18, v16, v16"); a(f"v_mul_f32 v19, v17, v17")
        a(f"v_fma_f32 v18, v18, {sC1}, {vC0}"); a(f"v_fma_f32 v19, v19, {sC1}, {vC0}")
        a(f"v_mul_f32 v18, v18, v16"); a(f"v_mul_f32 v19, v19, v17")
        a(f"v_exp_f32 v18, v18"); a(f"v_exp_f32 v19, v19")
        a(f"v_mov_b32_dpp v{b}, v{b} row_ror:15 {FULL}")
        a(f"v_add_f32 v18, 1.0, v18"); a(f"v_add_f32 v19, 1.0, v19")
        a(f"v_rcp_f32 v18, v18"); a(f"v_rcp_f32 v19, v19")
        a(f"v_mov_b32_dpp v{b+1}, v{b+1} row_ror:15 {FULL}")
        a(f"v_mul_f32 v18, v18, v16"); a(f"v_mul_f32 v19, v19, v17")
        a(f"v_cvt_pk_bf16_f32 v18, v18, v19")
        a(f"v_mov_b32_dpp v{b+2}, v{b+2} row_ror:15 {FULL}")
        a(f"v_mov_b32_dpp v{b+3}, v{b+3} row_ror:15 {FULL}")
        a(f"v_dot2c_f32_bf16_dpp {vMA}, v{b+4}, v18 {BC}")
        a(f"v_mov_b32_dpp v{b+4}, v{b+4} row_ror:15 {FULL}")
    a("L_nomix:")
    a(f"s_add_u32 {sR}, {sR}, 1")
    a(f"s_cmp_lt_u32 {sR}, 32")
    a(f"s_cbranch_scc1 L_k")
    if STAMP: pass
    a(f"v_mov_b32 v16, {vM}")
    allreduce("v_max_f32", ["v16"], 4)
    a(f"v_sub_f32 v17, {vM}, v16")
    a(f"v_mul_f32 v17, {sL2E}, v17")
    a(f"v_exp_f32 v17, v17")
    a(f"s_lshl_b32 {sT[0]}, {sW}, 3")
    a(f"v_add_u32 v18, {sT[0]}, {vF}")
    a(f"v_mul_f32 v17, v17, {vLs}")
    allreduce("v_add_f32", ["v17"], 4)
    a(f"ds_write_b64 v18, v[16:17] offset:64")
    rows_sum(vMA, "v19")
    a(f"s_lshl_b32 {sT[0]}, {sW}, 6")
    a(f"s_add_u32 {sT[0]}, {sT[0]}, {L_BP}")
    a(f"v_lshl_add_u32 v19, {vCol}, 2, {sT[0]}")
    a(f"ds_write_b32 v19, {vMA}")
    a(f"v_mov_b32 v10, 1")
    a("s_waitcnt lgkmcnt(0)")
    a(f"s_mov_b64 exec, 1")
    a(f"ds_add_u32 {vF}, v10 offset:8")
    a(f"s_mov_b64 exec, -1")
    a(f"s_mov_b32 {sT[0]}, 0x05040100")
    a(f"s_mov_b32 {sT[1]}, 0x07060302")
    a("s_waitcnt vmcnt(0)")
    for p in range(8):
        for i in range(4):
            r0 = WREG + 8*p + i; r1 = r0 + 4
            a(f"v_perm_b32 v16, v{r1}, v{r0}, {sT[0]}")
            a(f"v_perm_b32 v{r1}, v{r1}, v{r0}, {sT[1]}")
            a(f"v_mov_b32 v{r0}, v16")
    spin(8, "s_cmp_ge_u32", 8, "v10", sT[0])
    a(f"v_and_b32 v18, 7, {vL}")
    a(f"v_lshl_add_u32 v18, v18, 3, {vF}")
    a(f"ds_read_b64 v[16:17], v18 offset:64")
    a(f"v_lshlrev_b32 v19, 2, {vL}")
    a(f"v_add_u32 v18, {L_BP}, v19")
    a(f"ds_read_b32 v20, v18")
    a(f"ds_read_b32 v21, v18 offset:256")
    a("s_waitcnt lgkmcnt(0)")
    a(f"v_mov_b32 {vM}, v16")
    allreduce("v_max_f32", [vM], 3)
    a(f"v_sub_f32 v16, v16, {vM}")
    a(f"v_mul_f32 v16, {sL2E}, v16")
    a(f"v_exp_f32 v16, v16")
    a(f"v_add_f32 v20, v20, v21")
    a(f"v_mul_f32 {vLs}, v16, v17")
    allreduce("v_add_f32", [vLs], 3)
    a(f"v_rcp_f32 {vLs}, {vLs}")
    rows_sum("v20", "v21")
    rbf("v20")
    a(f"s_lshl_b32 {sB2}, {sB2}, 16")
    a(f"v_add_f32 v20, {sB2}, v20")
    rbf("v20")
    a(f"s_lshl_b32 {sT[0]}, s2, 6")
    a(f"s_add_u32 {sT[0]}, {sT[0]}, 0x80000")
    a(f"s_add_u32 s56, s28, {sT[0]}")
    a(f"s_addc_u32 s57, s29, 0")
    a(f"s_cmp_eq_u32 {sW}, 0")
    a(f"s_cselect_b32 s58, 64, 0")
    a(f"buffer_store_dword v20, v19, {W2}, 0 offen sc1")
    a(f"s_lshl_b32 {sT[0]}, {sW}, 12")
    a(f"v_lshl_add_u32 {vKA}, {vL}, 4, {sT[0]}")
    a(f"v_and_b32 {vSA}, 3, {vL}")
    a(f"v_lshl_add_u32 {vSA}, {vSA}, 2, {vRow}")
    a(f"s_lshl_b32 {sT[0]}, {sW}, 6")
    a(f"s_add_u32 {sT[0]}, {sT[0]}, {L_SC}")
    a(f"v_lshl_add_u32 {vSA}, {vSA}, 2, {sT[0]}")
    for i in range(8): a(f"v_mov_b32 {ACC[i]}, 0")
    a(f"s_mov_b32 {sR}, 0")
    stamp(4)
    a("L_v:")
    a(f"ds_read_b32 v16, {vSA}")
    a(f"v_add_u32 {vSA}, 512, {vSA}")
    a(f"v_add_u32 {vDn}, 1, {vDn}")
    a("s_waitcnt lgkmcnt(0)")
    a(f"v_sub_f32 v16, v16, {vM}")
    a(f"v_mul_f32 v16, {sL2E}, v16")
    a(f"v_exp_f32 v16, v16")
    a(f"s_add_u32 {sR}, {sR}, 1")
    a(f"v_mul_f32 v16, v16, {vLs}")
    a(f"v_cvt_pk_bf16_f32 v16, v16, v16")
    a(f"v_lshrrev_b32 v17, 16, v16")
    a(f"v_and_b32 v16, {sHI}, v16")
    spin(0, "s_cmp_gt_i32", sG, "v10", sT[0])
    for t in range(4): a(f"ds_read_b128 v[{DT+4*t}:{DT+4*t+3}], {vKA} offset:{1024*t}")
    a(f"v_add_u32 {vKA}, 0x8000, {vKA}")
    a(f"v_and_b32 {vKA}, 0x1ffff, {vKA}")
    a(f"s_add_u32 {sG}, {sG}, 8")
    for j in range(4):
        a(f"s_waitcnt lgkmcnt({3-j})")
        if j == 3: a(f"ds_write_b32 {vDA}, {vDn} offset:32")
        for i in range(4):
            a(f"v_dot2c_f32_bf16_dpp {ACC[2*i]}, v17, v{DT+4*j+i} quad_perm:[{j},{j},{j},{j}] {FULL}")
            a(f"v_dot2c_f32_bf16_dpp {ACC[2*i+1]}, v16, v{DT+4*j+i} quad_perm:[{j},{j},{j},{j}] {FULL}")
    a(f"s_cmp_lt_u32 {sR}, 32")
    a(f"s_cbranch_scc1 L_v")
    stamp(5)
    a("s_nop 0")
    rows_reduce8("v15")
    a(f"v_and_b32 v10, 7, {vL}")
    a(f"v_mul_u32_u24 v10, 528, v10")
    a(f"v_and_b32 v11, 0x38, {vL}")
    a(f"s_lshl_b32 {sT[0]}, {sW}, 6")
    a(f"s_add_u32 {sT[0]}, {sT[0]}, {L_QP}")
    a(f"v_add3_u32 v10, v10, v11, {sT[0]}")
    a("s_waitcnt lgkmcnt(0)")
    a("s_barrier")
    a(f"ds_read_b64 v[16:17], v10")
    for i in range(8): a(f"v_mov_b32 {ACC[i]}, 0")
    a("s_waitcnt lgkmcnt(0)")
    allreduce("v_add_f32", ["v16", "v17"], 3)
    a("v_cvt_pk_bf16_f32 v16, v16, v17")
    a("s_nop 0")
    for p in range(8): a(f"v_readlane_b32 {sT[p]}, v16, {8*p}")
    for p in range(8):
        for i in range(4):
            a(f"v_dot2c_f32_bf16 {ACC[2*i]}, {sT[p]}, v{WREG+8*p+i}")
            a(f"v_dot2c_f32_bf16 {ACC[2*i+1]}, {sT[p]}, v{WREG+8*p+4+i}")
    a(f"s_lshl_b32 {sT[0]}, {sW}, 11")
    a(f"v_lshl_add_u32 v10, {vL}, 5, {sT[0]}")
    a(f"s_lshl_b32 {sT[0]}, {sW}, 8")
    a(f"v_lshl_add_u32 v11, {vL}, 2, {sT[0]}")
    a(f"ds_write_b128 v10, v[24:27] offset:{L_Y}")
    a(f"ds_write_b128 v10, v[28:31] offset:{L_Y+16}")
    a(f"s_lshl_b32 {sT[0]}, s2, 11")
    a(f"s_add_u32 s56, s28, {sT[0]}")
    a(f"s_addc_u32 s57, s29, 0")
    a(f"s_mov_b32 s58, 2048")
    a("s_waitcnt lgkmcnt(0)")
    a("s_barrier")
    for i in range(8): a(f"ds_read_b32 v{16+i}, v11 offset:{L_Y + 2048*i}")
    a("s_waitcnt lgkmcnt(0)")
    for st in (4, 2, 1):
        for i in range(st): a(f"v_add_f32 v{16+i}, v{16+i}, v{16+st+i}")
    a(f"buffer_store_dword v16, v11, {W2}, 0 offen sc1")
    a("s_waitcnt vmcnt(0)")
    a("s_barrier")
    stamp(6)
    a(f"s_cmp_lg_u32 {sW}, 0")
    a(f"s_cbranch_scc1 L_wait")
    a(f"s_lshl_b32 {sT[0]}, {sB}, 2")
    a(f"v_mov_b32 v16, {sT[0]}")
    a(f"v_mov_b32 v17, 1")
    a(f"s_mov_b64 exec, 1")
    a(f"global_atomic_add v18, v16, v17, s[26:27] sc0 sc1")
    a("s_waitcnt vmcnt(0)")
    a(f"ds_write_b32 {vF}, v18 offset:12")
    a(f"s_mov_b64 exec, -1")
    a("s_waitcnt lgkmcnt(0)")
    a("L_wait:")
    a("s_barrier")
    a(f"ds_read_b32 v18, {vF} offset:12")
    a("s_waitcnt lgkmcnt(0)")
    a(f"v_readfirstlane_b32 {sT[0]}, v18")
    stamp(7)
    a(f"s_cmp_lg_u32 {sT[0]}, 31")
    a(f"s_cbranch_scc1 L_fin")
    a(f"s_lshl_b32 {sT[0]}, {sB}, 16")
    a(f"s_add_u32 s56, s28, {sT[0]}")
    a(f"s_addc_u32 s57, s29, 0")
    a(f"s_mov_b32 s58, 65536")
    a(f"s_lshl_b32 {sT[0]}, {sW}, 8")
    a(f"v_lshl_add_u32 v10, {vCol}, 4, {sT[0]}")
    a(f"v_lshl_add_u32 v10, {vRow}, 14, v10")
    for i in range(8):
        if i % 2 == 0: a(f"s_movk_i32 {sT[1]}, {2048*i}")
        a(f"buffer_load_dwordx4 v[{32+4*i}:{35+4*i}], v10, {W2}, {sT[1]} offen offset:{2048*(i%2)} sc1")
    a(f"s_lshl_b32 {sT[0]}, {sW}, 6")
    a(f"v_lshl_add_u32 v11, {vCol}, 2, {vRow}")
    a(f"v_add_u32 v11, {sT[0]}, v11")
    a(f"v_lshlrev_b32 v12, 1, v11")
    a(f"global_load_ushort v13, v12, s[4:5]")
    a(f"s_lshl_b32 {sT[0]}, {sB}, 11")
    a(f"s_add_u32 {sT[0]}, {sT[0]}, 0x80000")
    a(f"v_lshl_add_u32 v11, v11, 2, {sT[0]}")
    a(f"global_load_dword v14, v11, s[28:29] sc1")
    a("s_waitcnt vmcnt(2)")
    for st in (16, 8, 4):
        for i in range(st): a(f"v_add_f32 v{32+i}, v{32+i}, v{32+st+i}")
    a("s_nop 0")
    a("v_permlane32_swap_b32 v32, v34")
    a("v_permlane32_swap_b32 v33, v35")
    a("v_add_f32 v32, v32, v34")
    a("v_add_f32 v33, v33, v35")
    a("s_nop 1")
    a("v_permlane16_swap_b32 v32, v33")
    a("v_add_f32 v16, v32, v33")
    rbf("v16")
    a("s_waitcnt vmcnt(0)")
    a("v_lshlrev_b32 v13, 16, v13")
    a("v_add_f32 v16, v13, v16")
    rbf("v16")
    a("v_add_f32 v16, v16, v14")
    a("v_cvt_pk_bf16_f32 v16, v16, v16")
    a(f"s_lshl_b32 {sT[0]}, {sB}, 10")
    a(f"v_add_u32 v12, {sT[0]}, v12")
    a(f"global_store_short v12, v16, s[24:25]")
    a("L_fin:")
    stamp(8)
    if STAMP == 1:
        a("s_waitcnt lgkmcnt(0)")
        a(f"s_mul_i32 {sT[0]}, s2, 9")
        a(f"s_add_u32 {sT[0]}, {sT[0]}, {sW}")
        a(f"s_add_u32 {sT[0]}, {sT[0]}, 1")
        a(f"s_lshl_b32 {sT[0]}, {sT[0]}, 7")
        a(f"s_add_u32 {sT[0]}, {sT[0]}, 0x100000")
        a(f"v_mov_b32 v16, 0")
        for i in range(18): a(f"v_writelane_b32 v16, s{60+i}, {i}")
        a(f"s_getreg_b32 {sT[1]}, hwreg(HW_REG_XCC_ID)")
        a(f"s_getreg_b32 {sT[2]}, hwreg(HW_REG_HW_ID)")
        a(f"v_writelane_b32 v16, {sT[1]}, 18")
        a(f"v_writelane_b32 v16, {sT[2]}, 19")
        a(f"v_writelane_b32 v16, {sSpin}, 20")
        a(f"v_lshl_add_u32 v17, {vL}, 2, {sT[0]}")
        a(f"s_mov_b64 exec, 0xffffffff")
        a(f"global_store_dword v17, v16, s[28:29]")
    a("L_end:")
    a("s_endpgm")

    head = open("cdna_kernels/%s.s.ref" % NAME).read().split("; Override launch")[0]
    out = head + f"; @launch grid=(256,1,1) block=(576,1,1) lds={LDS_BYTES}\n"
    out += '.amdgcn_target "amdgcn-amd-amdhsa--gfx950"\n.text\n'
    out += f".globl {NAME}_kernel\n.p2align 8\n.type {NAME}_kernel,@function\n" + a.text()
    out += f""".section .rodata,"a"
.p2align 6
.amdhsa_kernel {NAME}_kernel
  .amdhsa_next_free_vgpr 144
  .amdhsa_next_free_sgpr 80
  .amdhsa_accum_offset 144
  .amdhsa_group_segment_fixed_size 0
  .amdhsa_kernarg_size 104
  .amdhsa_user_sgpr_count 2
  .amdhsa_user_sgpr_kernarg_segment_ptr 1
  .amdhsa_system_sgpr_workgroup_id_x 1
  .amdhsa_float_denorm_mode_32 3
.end_amdhsa_kernel
"""
    return out
if __name__ == "__main__":
    opts = {}
    for kv in sys.argv[2:]:
        k, v = kv.split("=")
        try: opts[k] = int(v, 0)
        except ValueError: opts[k] = v.replace("+", " ")
    open(sys.argv[1], "w").write(gen(opts))
```

```python
import sys, struct, math
NAME = "parallel_sum__mha_block_cached__mixer_token_mlp__decode"
def f2u(x): return struct.unpack("<I", struct.pack("<f", x))[0]
class Asm:
    def __init__(self): self.lines = []
    def __call__(self, s):
        s = s.strip()
        self.lines.append(s if s.endswith(":") else "    " + s)
    def c(self, s): self.lines.append("    ; " + s)
    def text(self): return "\n".join(self.lines) + "\n"

def gen(o):
    D = o.get("d", 20)
    STAMP = o.get("stamp", 0)
    ROT = o.get("rot", 1)
    BOUND = o.get("bound", 1)
    WOR = o.get("wor", 6)
    WQP = o.get("wqp", 0)
    SLEEP = o.get("sleep", 0)
    a = Asm()
    FULL = "row_mask:0xf bank_mask:0xf"
    l2e = 1.0 / math.log(2.0)
    sB, sH, sW = "s30", "s31", "s32"
    sOff, sR, sG = "s33", "s34", "s35"
    R = "s[36:39]"
    sM1, sD1, sM2, sD2 = "s40", "s41", "s42", "s43"
    sT = [f"s{44+i}" for i in range(8)]
    sHI, sB2, sSpin, sK = "s52", "s53", "s54", "s55"
    W2 = "s[56:59]"
    sL2E, sC1 = "s14", "s15"
    L_SC = 131072
    L_QP = L_SC + 16384
    L_XN = L_QP + 4352
    L_BP = L_XN + 1024
    L_FL = L_BP + 512
    LDS_BYTES = L_FL + 128
    L_Y = 0
    vL, vRow, vCol, vF = "v0", "v1", "v2", "v3"
    WREG = 64
    QF = 48
    DT = 32
    ACC = [f"v{24+i}" for i in range(8)]
    def wslot(j): return f"v[{WREG+4*j}:{WREG+4*j+3}]"
    nlab = [0]
    def lab(p):
        nlab[0] += 1; return f"L_{p}{nlab[0]}"
    def stamp(i):
        if STAMP: a(f"s_memrealtime s[{60+2*i}:{61+2*i}]")
    def wave_reduce(op, v, sdst):
        for ctl in ["quad_perm:[1,0,3,2] "+FULL, "quad_perm:[2,3,0,1] "+FULL, "row_half_mirror "+FULL, "row_mirror "+FULL,
                    "row_bcast:15 row_mask:0xa bank_mask:0xf", "row_bcast:31 row_mask:0xc bank_mask:0xf"]:
            a("s_nop 1"); a(f"{op}_dpp {v}, {v}, {v} {ctl}")
        a("s_nop 1"); a(f"v_readlane_b32 {sdst}, {v}, 63")
    def allreduce(op, regs, steps):
        for ctl in ["quad_perm:[1,0,3,2]", "quad_perm:[2,3,0,1]", "row_half_mirror", "row_mirror"][:steps]:
            if len(regs) < 3: a(f"s_nop {2-len(regs)}")
            for v in regs: a(f"{op}_dpp {v}, {v}, {v} {ctl} {FULL}")
    def rbf(v):
        a(f"v_cvt_pk_bf16_f32 {v}, {v}, {v}"); a(f"v_and_b32 {v}, {sHI}, {v}")
    def spin(off, cmp, val, tmpv, tmps):
        l0, l1 = lab("sp"), lab("go")
        a(f"{l0}:")
        a(f"ds_read_b32 {tmpv}, {vF} offset:{off}")
        a("s_waitcnt lgkmcnt(0)")
        a(f"v_readfirstlane_b32 {tmps}, {tmpv}")
        a(f"{cmp} {tmps}, {val}")
        if BOUND or SLEEP:
            a(f"s_cbranch_scc1 {l1}")
            if SLEEP: a(f"s_sleep {SLEEP}")
            if BOUND:
                a(f"s_sub_u32 {sSpin}, {sSpin}, 1")
                a(f"s_cbranch_scc1 L_end")
            a(f"s_branch {l0}")
            a(f"{l1}:")
        else:
            a(f"s_cbranch_scc0 {l0}")
    def rows_sum(v, t):
        a(f"v_mov_b32 {t}, {v}"); a("s_nop 1"); a(f"v_permlane32_swap_b32 {v}, {t}"); a(f"v_add_f32 {v}, {v}, {t}")
        a(f"v_mov_b32 {t}, {v}"); a("s_nop 1"); a(f"v_permlane16_swap_b32 {v}, {t}"); a(f"v_add_f32 {v}, {v}, {t}")
    def rows_reduce8(vaddr):
        for i in range(4): a(f"v_permlane32_swap_b32 {ACC[i]}, {ACC[i+4]}")
        for i in range(4): a(f"v_add_f32 {ACC[i]}, {ACC[i]}, {ACC[i+4]}")
        a("s_nop 0")
        for i in range(2): a(f"v_permlane16_swap_b32 {ACC[i]}, {ACC[i+2]}")
        for i in range(2): a(f"v_add_f32 {ACC[i]}, {ACC[i]}, {ACC[i+2]}")
        a(f"ds_write_b64 {vaddr}, v[24:25]")

    a(f"{NAME}_kernel:")
    a("s_cmp_ge_u32 s2, 256")
    a("s_cbranch_scc1 L_end")
    a("s_load_dwordx16 s[4:19], s[0:1], 0")
    a("s_load_dwordx8 s[20:27], s[0:1], 64")
    a("s_load_dwordx2 s[28:29], s[0:1], 96")
    stamp(0)
    a(f"v_lshrrev_b32 v4, 6, v0")
    a(f"v_and_b32 {vL}, 63, v0")
    a(f"v_readfirstlane_b32 {sW}, v4")
    a(f"v_mov_b32 {vF}, {L_FL}")
    a(f"v_lshrrev_b32 {vRow}, 4, {vL}")
    a(f"v_and_b32 {vCol}, 15, {vL}")
    a(f"v_lshl_add_u32 v4, {vCol}, 2, {vF}")
    a(f"v_mov_b32 v5, 0")
    a(f"ds_write_b32 v4, v5")
    a(f"s_mov_b32 s39, 0x20000")
    a(f"s_mov_b32 {sSpin}, 0x100000")
    a(f"s_lshl_b32 {sT[0]}, s2, 20")
    a(f"s_sub_u32 {sW}, {sW}, 1")
    a("s_waitcnt lgkmcnt(0)")
    a("s_barrier")
    a(f"s_cmp_lg_u32 {sW}, -1")
    a("s_cbranch_scc1 L_cons")

    a("s_setprio 3")
    a(f"s_add_u32 s36, s6, {sT[0]}")
    a(f"s_addc_u32 s37, s7, 0")
    a(f"s_mov_b32 s38, 0x100000")
    for j in range(4):
        a(f"v_xor_b32 v{4+j}, {vCol}, {vRow}")
        if j: a(f"v_xor_b32 v{4+j}, {4*j}, v{4+j}")
        a(f"v_lshlrev_b32 v{4+j}, 4, v{4+j}")
        a(f"v_lshl_add_u32 v{4+j}, {vRow}, 8, v{4+j}")
    a(f"s_add_u32 s8, s8, {sT[0]}")
    a(f"s_addc_u32 s9, s9, 0")
    js = (D - 1) % 4
    a(f"v_mov_b32 v8, {(js - D - 3)//4}")
    a(f"v_and_b32 v9, 7, {vL}")
    a(f"v_lshl_add_u32 v9, v9, 2, {vF}")
    a(f"v_mov_b32 v10, 0")
    a(f"v_mov_b32 v11, -3")
    a(f"s_mov_b32 {sOff}, 0")
    a(f"s_mov_b32 {sR}, 0")
    a(f"s_mov_b32 m0, 0")
    a("L_ld:")
    a("s_waitcnt lgkmcnt(0)")
    a(f"v_cmp_lt_i32 vcc, v10, v11")
    a(f"s_cbranch_vccnz L_ldslow")
    a("L_ldgo:")
    for g in range(8):
        for j in range(4):
            a(f"s_waitcnt vmcnt({D-1})")
            if j == js:
                a("v_add_u32 v8, 1, v8")
                a(f"ds_write_b32 {vF}, v8")
            a(f"buffer_load_dwordx4 v{4+j}, {R}, {sOff} offen offset:{1024*j} nt lds")
        a(f"s_add_u32 {sOff}, {sOff}, 4096")
        a(f"s_add_u32 m0, m0, 4096")
        if g == 5: a(f"ds_read_b32 v10, v9 offset:32")
    a(f"s_and_b32 m0, m0, 0x1ffff")
    a(f"v_add_u32 v11, 1, v11")
    a(f"s_add_u32 {sR}, {sR}, 1")
    a(f"s_cmp_lg_u32 {sR}, 32")
    a(f"s_cbranch_scc1 L_ldnv")
    a(f"s_mov_b32 s36, s8")
    a(f"s_mov_b32 s37, s9")
    a(f"s_mov_b32 {sOff}, 0")
    for j in range(4): a(f"v_lshlrev_b32 v{4+j}, 4, {vL}")
    stamp(4)
    a("L_ldnv:")
    a(f"s_cmp_lg_u32 {sR}, 64")
    a(f"s_cbranch_scc1 L_ld")
    pub = (2044 + js - D - 3)//4 + 1
    while pub < 512:
        pub += 1
        a(f"s_waitcnt vmcnt({2048 - 4*pub})")
        a("v_add_u32 v8, 1, v8")
        a(f"ds_write_b32 {vF}, v8")
    stamp(5)
    if STAMP:
        for i in (1,2,3,6,7): a(f"s_mov_b64 s[{60+2*i}:{61+2*i}], 0")
        a("s_branch L_fin")
    a("s_endpgm")
    a("L_ldslow:")
    a(f"ds_read_b32 v10, v9 offset:32")
    if BOUND:
        a(f"s_sub_u32 {sSpin}, {sSpin}, 1")
        a(f"s_cbranch_scc1 L_end")
    a("s_branch L_ld")

    a("L_cons:")
    a(f"s_lshr_b32 {sB}, s2, 5")
    a(f"s_and_b32 {sH}, s2, 31")
    a(f"s_mov_b32 {sHI}, 0xffff0000")
    a(f"s_mov_b32 s59, 0x20000")
    a(f"s_lshl_b32 {sT[0]}, {sB}, 10")
    a(f"s_add_u32 s4, s4, {sT[0]}")
    a(f"s_addc_u32 s5, s5, 0")
    a(f"v_lshlrev_b32 v8, 4, {vL}")
    a(f"global_load_dwordx4 v[4:7], v8, s[4:5]")
    a(f"s_lshl_b32 {sT[0]}, {sW}, 19")
    a(f"s_lshl_b32 {sT[1]}, {sH}, 8")
    a(f"s_add_u32 {sT[0]}, {sT[0]}, {sT[1]}")
    a(f"s_add_u32 s36, s10, {sT[0]}")
    a(f"s_addc_u32 s37, s11, 0")
    a(f"s_mov_b32 s38, 0x80000")
    a(f"v_lshlrev_b32 v9, 17, {vRow}")
    a(f"v_lshl_add_u32 v9, {vCol}, 4, v9")
    if ROT: a(f"s_lshl_b32 {sT[2]}, {sB}, 14")
    else: a(f"s_mov_b32 {sT[2]}, 0")
    def wqload(j):
        a(f"s_xor_b32 {sT[3]}, {sT[2]}, {j*8192}")
        a(f"buffer_load_dwordx4 {wslot(j)}, v9, {R}, {sT[3]} offen")
    NQ0 = WQP if WQP else 16
    for j in range(NQ0): wqload(j)
    a(f"s_load_dword {sB2}, s[22:23], 0")
    a(f"s_waitcnt vmcnt({NQ0})")
    stamp(1)
    X = [f"v{16+i}" for i in range(8)]
    def unpack(src4):
        for i in range(4):
            a(f"v_lshlrev_b32 {X[2*i]}, 16, v{src4+i}")
            a(f"v_and_b32 {X[2*i+1]}, {sHI}, v{src4+i}")
    def ln(sM, sD, write):
        a(f"v_add_f32 v24, {X[0]}, {X[1]}")
        for i in range(2, 8): a(f"v_add_f32 v24, v24, {X[i]}")
        wave_reduce("v_add_f32", "v24", sT[0])
        a("s_nop 1")
        a(f"v_mov_b32 v25, {sT[0]}")
        a(f"v_mul_f32 v25, {hex(f2u(1.0/512))}, v25")
        a(f"v_sub_f32 v26, {X[0]}, v25")
        a(f"v_mul_f32 v24, v26, v26")
        for i in range(1, 8):
            a(f"v_sub_f32 v26, {X[i]}, v25")
            a(f"v_fmac_f32 v24, v26, v26")
        wave_reduce("v_add_f32", "v24", sT[0])
        rbf("v25")
        a(f"v_mov_b32 v24, {sT[0]}")
        a(f"v_mul_f32 v24, {hex(f2u(1.0/512))}, v24")
        rbf("v24")
        a(f"v_add_f32 v24, {hex(f2u(1e-5))}, v24")
        rbf("v24")
        a(f"v_sqrt_f32 v24, v24")
        a("s_nop 0")
        rbf("v24")
        a(f"v_rcp_f32 v24, v24")
        a(f"v_readfirstlane_b32 {sM}, v25")
        a(f"v_readfirstlane_b32 {sD}, v24")
        if write:
            for i in range(8): a(f"v_sub_f32 {X[i]}, {X[i]}, v25")
            for i in range(4): a(f"v_cvt_pk_bf16_f32 v{4+i}, {X[2*i]}, {X[2*i+1]}")
            unpack(4)
            for i in range(8): a(f"v_mul_f32 {X[i]}, {X[i]}, v24")
            for i in range(4): a(f"v_cvt_pk_bf16_f32 v{4+i}, {X[2*i]}, {X[2*i+1]}")
    unpack(4)
    ln(sM1, sD1, True)
    a(f"v_add_u32 v8, {L_XN}, v8")
    a(f"ds_write_b128 v8, v[4:7]")
    a(f"s_lshl_b32 {sT[0]}, {sW}, 7")
    if ROT:
        a(f"s_lshl_b32 {sT[1]}, {sB}, 2")
        a(f"s_add_u32 {sT[0]}, {sT[0]}, {sT[1]}")
    a(f"s_add_u32 {sT[0]}, {sT[0]}, {L_XN}")
    a(f"v_lshl_add_u32 v8, {vRow}, 5, {sT[0]}")
    assert L_XN % 32 == 0
    for i in range(8):
        if i:
            a(f"v_xor_b32 v10, {4*i}, v8")
            a(f"ds_read_b32 v{DT+i}, v10")
        else:
            a(f"ds_read_b32 v{DT+i}, v8")
    for i in range(8): a(f"v_mov_b32 {ACC[i]}, 0")
    a("s_waitcnt lgkmcnt(0)")
    for j in range(16):
        src = f"v{DT + j//2}"
        if j % 2 == 0:
            a(f"v_and_b32 v10, 0xffff, {src}"); a(f"v_lshlrev_b32 v11, 16, {src}")
        else:
            a(f"v_lshrrev_b32 v10, 16, {src}"); a(f"v_and_b32 v11, {sHI}, {src}")
        issued = min(16, NQ0 + j)
        a(f"s_waitcnt vmcnt({issued - j - 1})")
        if NQ0 + j < 16: wqload(NQ0 + j)
        for i in range(4):
            a(f"v_dot2c_f32_bf16 {ACC[2*i]}, v10, v{WREG+4*j+i}")
            a(f"v_dot2c_f32_bf16 {ACC[2*i+1]}, v11, v{WREG+4*j+i}")
    stamp(2)
    vPA = "v23"
    a(f"s_mul_i32 {sT[0]}, {sW}, 528")
    a(f"s_add_u32 {sT[0]}, {sT[0]}, {L_QP}")
    a(f"v_lshl_add_u32 v15, {vCol}, 5, {sT[0]}")
    a(f"v_lshl_add_u32 v15, {vRow}, 3, v15")
    rows_reduce8("v15")
    a(f"v_mov_b32 v10, 1")
    a("s_waitcnt lgkmcnt(0)")
    a(f"s_mov_b64 exec, 1")
    a(f"ds_add_u32 {vF}, v10 offset:4")
    a(f"s_mov_b64 exec, -1")
    a(f"s_lshl_b32 {sT[0]}, {sH}, 5")
    a(f"v_lshl_add_u32 v9, {vCol}, 1, {sT[0]}")
    a(f"global_load_ushort v8, v9, s[4:5]")
    a(f"s_mul_i32 {sT[0]}, {sW}, 448")
    a(f"v_mul_u32_u24 v9, 112, {vRow}")
    a(f"v_lshl_add_u32 v9, {vCol}, 2, v9")
    a(f"v_add_u32 v9, {sT[0]}, v9")
    a(f"v_cmp_lt_u32 vcc, 13, {vCol}")
    a(f"v_mov_b32 v10, 0x10000")
    a(f"s_mov_b32 s58, 3584")
    a(f"v_cndmask_b32 v9, v9, v10, vcc")
    MX = 128
    for k, p in enumerate([16, 18, 20]):
        a(f"s_mov_b32 s56, s{p}"); a(f"s_mov_b32 s57, s{p+1}")
        for s_ in range(2):
            a(f"buffer_load_dword v{MX + 5*s_ + (1,3,4)[k]}, v9, {W2}, 0 offen offset:{56*s_}")
    unpack(4)
    ln(sM2, sD2, False)
    spin(4, "s_cmp_ge_u32", 8, "v10", sT[0])
    a(f"v_lshlrev_b32 v10, 3, {vL}")
    a(f"v_add_u32 v10, {L_QP}, v10")
    for w in range(8): a(f"ds_read_b64 v[{DT+2*w}:{DT+2*w+1}], v10 offset:{528*w}")
    a("s_waitcnt lgkmcnt(0)")
    for st in (8, 4, 2):
        for i in range(st): a(f"v_add_f32 v{DT+i}, v{DT+i}, v{DT+st+i}")
    a(f"v_cvt_pk_bf16_f32 v{DT}, v{DT}, v{DT+1}")
    a(f"v_lshlrev_b32 v10, 2, {vL}")
    a(f"v_add_u32 v10, {L_XN}, v10")
    a(f"ds_write_b32 v10, v{DT}")
    a(f"v_lshlrev_b32 v10, 4, {vRow}")
    a(f"v_add_u32 v10, {L_XN}, v10")
    for t in range(4): a(f"ds_read_b128 v[{QF+4*t}:{QF+4*t+3}], v10 offset:{64*t}")
    vH, vMA, vC0 = "v138", "v139", "v140"
    a("s_waitcnt vmcnt(0)")
    a(f"v_lshlrev_b32 {vH}, 16, v8")
    a(f"v_subrev_f32 {vH}, {sM1}, {vH}"); rbf(vH)
    a(f"v_mul_f32 {vH}, {sD1}, {vH}"); rbf(vH)
    a(f"v_subrev_f32 {vH}, {sM2}, {vH}"); rbf(vH)
    a(f"v_mul_f32 {vH}, {sD2}, {vH}"); rbf(vH)
    for s_ in range(2):
        b = MX + 5*s_
        a(f"v_lshlrev_b32 v{b}, 16, v{b+1}"); a(f"v_and_b32 v{b+1}, {sHI}, v{b+1}")
        a(f"v_lshlrev_b32 v{b+2}, 16, v{b+3}"); a(f"v_and_b32 v{b+3}, {sHI}, v{b+3}")
    kb = math.sqrt(2.0/math.pi)
    a(f"v_mov_b32 {vC0}, {hex(f2u(-2*kb*l2e))}")
    a(f"s_mov_b32 {sC1}, {hex(f2u(-2*kb*l2e*0.044715))}")
    a(f"v_mov_b32 {vMA}, 0")
    a(f"s_mov_b32 {sL2E}, {hex(f2u(l2e))}")
    a(f"s_mov_b32 {sK}, {hex(f2u(128 ** -0.5))}")
    vKA, vSA, vDA, vM, vLs, vDn = "v4", "v5", "v6", "v7", "v8", "v9"
    a(f"v_xor_b32 {vKA}, {vRow}, {vCol}")
    a(f"v_lshlrev_b32 {vKA}, 4, {vKA}")
    a(f"v_lshl_add_u32 {vKA}, {vCol}, 8, {vKA}")
    a(f"s_lshl_b32 {sT[0]}, {sW}, 12")
    a(f"v_add_u32 {vKA}, {sT[0]}, {vKA}")
    a(f"s_lshl_b32 {sT[0]}, {sW}, 6")
    a(f"s_add_u32 {sT[0]}, {sT[0]}, {L_SC}")
    a(f"v_lshl_add_u32 {vSA}, {vCol}, 2, {sT[0]}")
    a(f"s_lshl_b32 {sT[0]}, {sW}, 2")
    a(f"v_add_u32 {vDA}, {sT[0]}, {vF}")
    a(f"v_mov_b32 {vM}, 0xff7fffff")
    a(f"v_mov_b32 {vLs}, 0")
    a(f"v_mov_b32 {vDn}, 0")
    a(f"s_mov_b32 {sG}, {sW}")
    a(f"s_mov_b32 {sR}, 0")
    a(f"s_lshl_b32 {sT[0]}, {sH}, 17")
    a(f"s_lshl_b32 {sT[1]}, {sW}, 14")
    a(f"s_add_u32 {sT[0]}, {sT[0]}, {sT[1]}")
    a(f"s_add_u32 s36, s12, {sT[0]}")
    a(f"s_addc_u32 s37, s13, 0")
    a(f"s_mov_b32 s38, 16384")
    a(f"s_add_u32 {sOff}, {sW}, {WOR}")
    stamp(3)
    a("L_k:")
    for t in range(1, 4): a(f"v_xor_b32 v{10+t}, {64*t}, {vKA}")
    spin(0, "s_cmp_gt_i32", sG, "v10", sT[0])
    a(f"ds_read_b128 v[{DT}:{DT+3}], {vKA}")
    for t in range(1, 4): a(f"ds_read_b128 v[{DT+4*t}:{DT+4*t+3}], v{10+t}")
    a(f"v_add_u32 {vDn}, 1, {vDn}")
    a(f"v_add_u32 {vKA}, 0x8000, {vKA}")
    a(f"v_and_b32 {vKA}, 0x1ffff, {vKA}")
    for t in range(4):
        a(f"s_waitcnt lgkmcnt({3-t})")
        a(f"v_mfma_f32_16x16x32_bf16 v[16:19], v[{QF+4*t}:{QF+4*t+3}], v[{DT+4*t}:{DT+4*t+3}], {'0' if t == 0 else 'v[16:19]'}")
    a(f"ds_write_b32 {vDA}, {vDn} offset:32")
    a(f"s_add_u32 {sG}, {sG}, 8")
    a(f"s_nop 5")
    rbf("v16")
    a(f"v_mul_f32 v16, {sK}, v16")
    rbf("v16")
    a(f"ds_write_b32 {vSA}, v16")
    a(f"v_max_f32 v17, {vM}, v16")
    a(f"v_sub_f32 v18, {vM}, v17")
    a(f"v_sub_f32 v16, v16, v17")
    a(f"v_mul_f32 v18, {sL2E}, v18")
    a(f"v_mul_f32 v16, {sL2E}, v16")
    a(f"v_exp_f32 v18, v18")
    a(f"v_exp_f32 v16, v16")
    a(f"v_mov_b32 {vM}, v17")
    a(f"v_add_u32 {vSA}, 512, {vSA}")
    a(f"v_fma_f32 {vLs}, {vLs}, v18, v16")
    a(f"s_cmp_lg_u32 {sR}, {sOff}")
    a(f"s_cbranch_scc1 L_nowo")
    a(f"v_lshlrev_b32 v10, 4, {vL}")
    for j in range(16):
        if j % 4 == 0: a(f"s_movk_i32 {sT[1]}, {1024*j}")
        a(f"buffer_load_dwordx4 {wslot(j)}, v10, {R}, {sT[1]} offen offset:{1024*(j%4)}")
    a("L_nowo:")
    a(f"s_cmp_lt_u32 {sR}, 16")
    a(f"s_cbranch_scc1 L_nomix")
    BC = "row_newbcast:0 " + FULL
    for s_ in range(2):
        b = MX + 5*s_
        a(f"v_mul_f32_dpp v16, v{b}, {vH} {BC}")
        a(f"v_mul_f32_dpp v17, v{b+1}, {vH} {BC}")
        a(f"v_cvt_pk_bf16_f32 v17, v16, v17")
        a(f"v_lshlrev_b32 v16, 16, v17"); a(f"v_and_b32 v17, {sHI}, v17")
        a(f"v_add_f32_dpp v16, v{b+2}, v16 {BC}")
        a(f"v_add_f32_dpp v17, v{b+3}, v17 {BC}")
        a(f"v_cvt_pk_bf16_f32 v17, v16, v17")
        a(f"v_lshlrev_b32 v16, 16, v17"); a(f"v_and_b32 v17, {sHI}, v17")
        a(f"v_mul_f32 v18, v16, v16"); a(f"v_mul_f32 v19, v17, v17")
        a(f"v_fma_f32 v18, v18, {sC1}, {vC0}"); a(f"v_fma_f32 v19, v19, {sC1}, {vC0}")
        a(f"v_mul_f32 v18, v18, v16"); a(f"v_mul_f32 v19, v19, v17")
        a(f"v_exp_f32 v18, v18"); a(f"v_exp_f32 v19, v19")
        a(f"v_mov_b32_dpp v{b}, v{b} row_ror:15 {FULL}")
        a(f"v_add_f32 v18, 1.0, v18"); a(f"v_add_f32 v19, 1.0, v19")
        a(f"v_rcp_f32 v18, v18"); a(f"v_rcp_f32 v19, v19")
        a(f"v_mov_b32_dpp v{b+1}, v{b+1} row_ror:15 {FULL}")
        a(f"v_mul_f32 v18, v18, v16"); a(f"v_mul_f32 v19, v19, v17")
        a(f"v_cvt_pk_bf16_f32 v18, v18, v19")
        a(f"v_mov_b32_dpp v{b+2}, v{b+2} row_ror:15 {FULL}")
        a(f"v_mov_b32_dpp v{b+3}, v{b+3} row_ror:15 {FULL}")
        a(f"v_dot2c_f32_bf16_dpp {vMA}, v{b+4}, v18 {BC}")
        a(f"v_mov_b32_dpp v{b+4}, v{b+4} row_ror:15 {FULL}")
    a("L_nomix:")
    a(f"s_add_u32 {sR}, {sR}, 1")
    a(f"s_cmp_lt_u32 {sR}, 32")
    a(f"s_cbranch_scc1 L_k")
    if STAMP: pass
    a(f"v_mov_b32 v16, {vM}")
    allreduce("v_max_f32", ["v16"], 4)
    a(f"v_sub_f32 v17, {vM}, v16")
    a(f"v_mul_f32 v17, {sL2E}, v17")
    a(f"v_exp_f32 v17, v17")
    a(f"s_lshl_b32 {sT[0]}, {sW}, 3")
    a(f"v_add_u32 v18, {sT[0]}, {vF}")
    a(f"v_mul_f32 v17, v17, {vLs}")
    allreduce("v_add_f32", ["v17"], 4)
    a(f"ds_write_b64 v18, v[16:17] offset:64")
    rows_sum(vMA, "v19")
    a(f"s_lshl_b32 {sT[0]}, {sW}, 6")
    a(f"s_add_u32 {sT[0]}, {sT[0]}, {L_BP}")
    a(f"v_lshl_add_u32 v19, {vCol}, 2, {sT[0]}")
    a(f"ds_write_b32 v19, {vMA}")
    a(f"v_mov_b32 v10, 1")
    a("s_waitcnt lgkmcnt(0)")
    a(f"s_mov_b64 exec, 1")
    a(f"ds_add_u32 {vF}, v10 offset:8")
    a(f"s_mov_b64 exec, -1")
    a(f"s_mov_b32 {sT[0]}, 0x05040100")
    a(f"s_mov_b32 {sT[1]}, 0x07060302")
    a("s_waitcnt vmcnt(0)")
    for p in range(8):
        for i in range(4):
            r0 = WREG + 8*p + i; r1 = r0 + 4
            a(f"v_perm_b32 v16, v{r1}, v{r0}, {sT[0]}")
            a(f"v_perm_b32 v{r1}, v{r1}, v{r0}, {sT[1]}")
            a(f"v_mov_b32 v{r0}, v16")
    spin(8, "s_cmp_ge_u32", 8, "v10", sT[0])
    a(f"v_and_b32 v18, 7, {vL}")
    a(f"v_lshl_add_u32 v18, v18, 3, {vF}")
    a(f"ds_read_b64 v[16:17], v18 offset:64")
    a(f"v_lshlrev_b32 v19, 2, {vL}")
    a(f"v_add_u32 v18, {L_BP}, v19")
    a(f"ds_read_b32 v20, v18")
    a(f"ds_read_b32 v21, v18 offset:256")
    a("s_waitcnt lgkmcnt(0)")
    a(f"v_mov_b32 {vM}, v16")
    allreduce("v_max_f32", [vM], 3)
    a(f"v_sub_f32 v16, v16, {vM}")
    a(f"v_mul_f32 v16, {sL2E}, v16")
    a(f"v_exp_f32 v16, v16")
    a(f"v_add_f32 v20, v20, v21")
    a(f"v_mul_f32 {vLs}, v16, v17")
    allreduce("v_add_f32", [vLs], 3)
    a(f"v_rcp_f32 {vLs}, {vLs}")
    rows_sum("v20", "v21")
    rbf("v20")
    a(f"s_lshl_b32 {sB2}, {sB2}, 16")
    a(f"v_add_f32 v20, {sB2}, v20")
    rbf("v20")
    a(f"s_lshl_b32 {sT[0]}, s2, 6")
    a(f"s_add_u32 {sT[0]}, {sT[0]}, 0x80000")
    a(f"s_add_u32 s56, s28, {sT[0]}")
    a(f"s_addc_u32 s57, s29, 0")
    a(f"s_cmp_eq_u32 {sW}, 0")
    a(f"s_cselect_b32 s58, 64, 0")
    a(f"buffer_store_dword v20, v19, {W2}, 0 offen sc1")
    a(f"s_lshl_b32 {sT[0]}, {sW}, 12")
    a(f"v_lshl_add_u32 {vKA}, {vL}, 4, {sT[0]}")
    a(f"v_and_b32 {vSA}, 3, {vL}")
    a(f"v_lshl_add_u32 {vSA}, {vSA}, 2, {vRow}")
    a(f"s_lshl_b32 {sT[0]}, {sW}, 6")
    a(f"s_add_u32 {sT[0]}, {sT[0]}, {L_SC}")
    a(f"v_lshl_add_u32 {vSA}, {vSA}, 2, {sT[0]}")
    for i in range(8): a(f"v_mov_b32 {ACC[i]}, 0")
    a(f"s_mov_b32 {sR}, 0")
    stamp(4)
    a("L_v:")
    a(f"ds_read_b32 v16, {vSA}")
    a(f"v_add_u32 {vSA}, 512, {vSA}")
    a(f"v_add_u32 {vDn}, 1, {vDn}")
    a("s_waitcnt lgkmcnt(0)")
    a(f"v_sub_f32 v16, v16, {vM}")
    a(f"v_mul_f32 v16, {sL2E}, v16")
    a(f"v_exp_f32 v16, v16")
    a(f"s_add_u32 {sR}, {sR}, 1")
    a(f"v_mul_f32 v16, v16, {vLs}")
    a(f"v_cvt_pk_bf16_f32 v16, v16, v16")
    a(f"v_lshrrev_b32 v17, 16, v16")
    a(f"v_and_b32 v16, {sHI}, v16")
    spin(0, "s_cmp_gt_i32", sG, "v10", sT[0])
    for t in range(4): a(f"ds_read_b128 v[{DT+4*t}:{DT+4*t+3}], {vKA} offset:{1024*t}")
    a(f"v_add_u32 {vKA}, 0x8000, {vKA}")
    a(f"v_and_b32 {vKA}, 0x1ffff, {vKA}")
    a(f"s_add_u32 {sG}, {sG}, 8")
    for j in range(4):
        a(f"s_waitcnt lgkmcnt({3-j})")
        if j == 3: a(f"ds_write_b32 {vDA}, {vDn} offset:32")
        for i in range(4):
            a(f"v_dot2c_f32_bf16_dpp {ACC[2*i]}, v17, v{DT+4*j+i} quad_perm:[{j},{j},{j},{j}] {FULL}")
            a(f"v_dot2c_f32_bf16_dpp {ACC[2*i+1]}, v16, v{DT+4*j+i} quad_perm:[{j},{j},{j},{j}] {FULL}")
    a(f"s_cmp_lt_u32 {sR}, 32")
    a(f"s_cbranch_scc1 L_v")
    stamp(5)
    a("s_nop 0")
    rows_reduce8("v15")
    a(f"v_and_b32 v10, 7, {vL}")
    a(f"v_mul_u32_u24 v10, 528, v10")
    a(f"v_and_b32 v11, 0x38, {vL}")
    a(f"s_lshl_b32 {sT[0]}, {sW}, 6")
    a(f"s_add_u32 {sT[0]}, {sT[0]}, {L_QP}")
    a(f"v_add3_u32 v10, v10, v11, {sT[0]}")
    a("s_waitcnt lgkmcnt(0)")
    a("s_barrier")
    a(f"ds_read_b64 v[16:17], v10")
    for i in range(8): a(f"v_mov_b32 {ACC[i]}, 0")
    a("s_waitcnt lgkmcnt(0)")
    allreduce("v_add_f32", ["v16", "v17"], 3)
    a("v_cvt_pk_bf16_f32 v16, v16, v17")
    a("s_nop 0")
    for p in range(8): a(f"v_readlane_b32 {sT[p]}, v16, {8*p}")
    for p in range(8):
        for i in range(4):
            a(f"v_dot2c_f32_bf16 {ACC[2*i]}, {sT[p]}, v{WREG+8*p+i}")
            a(f"v_dot2c_f32_bf16 {ACC[2*i+1]}, {sT[p]}, v{WREG+8*p+4+i}")
    a(f"s_lshl_b32 {sT[0]}, {sW}, 11")
    a(f"v_lshl_add_u32 v10, {vL}, 5, {sT[0]}")
    a(f"s_lshl_b32 {sT[0]}, {sW}, 8")
    a(f"v_lshl_add_u32 v11, {vL}, 2, {sT[0]}")
    a(f"ds_write_b128 v10, v[24:27] offset:{L_Y}")
    a(f"ds_write_b128 v10, v[28:31] offset:{L_Y+16}")
    a(f"s_lshl_b32 {sT[0]}, s2, 11")
    a(f"s_add_u32 s56, s28, {sT[0]}")
    a(f"s_addc_u32 s57, s29, 0")
    a(f"s_mov_b32 s58, 2048")
    a("s_waitcnt lgkmcnt(0)")
    a("s_barrier")
    for i in range(8): a(f"ds_read_b32 v{16+i}, v11 offset:{L_Y + 2048*i}")
    a("s_waitcnt lgkmcnt(0)")
    for st in (4, 2, 1):
        for i in range(st): a(f"v_add_f32 v{16+i}, v{16+i}, v{16+st+i}")
    a(f"buffer_store_dword v16, v11, {W2}, 0 offen sc1")
    a("s_waitcnt vmcnt(0)")
    a("s_barrier")
    stamp(6)
    a(f"s_cmp_lg_u32 {sW}, 0")
    a(f"s_cbranch_scc1 L_wait")
    a(f"s_lshl_b32 {sT[0]}, {sB}, 2")
    a(f"v_mov_b32 v16, {sT[0]}")
    a(f"v_mov_b32 v17, 1")
    a(f"s_mov_b64 exec, 1")
    a(f"global_atomic_add v18, v16, v17, s[26:27] sc0 sc1")
    a("s_waitcnt vmcnt(0)")
    a(f"ds_write_b32 {vF}, v18 offset:12")
    a(f"s_mov_b64 exec, -1")
    a("s_waitcnt lgkmcnt(0)")
    a("L_wait:")
    a("s_barrier")
    a(f"ds_read_b32 v18, {vF} offset:12")
    a("s_waitcnt lgkmcnt(0)")
    a(f"v_readfirstlane_b32 {sT[0]}, v18")
    stamp(7)
    a(f"s_cmp_lg_u32 {sT[0]}, 31")
    a(f"s_cbranch_scc1 L_fin")
    a(f"s_lshl_b32 {sT[0]}, {sB}, 16")
    a(f"s_add_u32 s56, s28, {sT[0]}")
    a(f"s_addc_u32 s57, s29, 0")
    a(f"s_mov_b32 s58, 65536")
    a(f"s_lshl_b32 {sT[0]}, {sW}, 8")
    a(f"v_lshl_add_u32 v10, {vCol}, 4, {sT[0]}")
    a(f"v_lshl_add_u32 v10, {vRow}, 14, v10")
    for i in range(8):
        if i % 2 == 0: a(f"s_movk_i32 {sT[1]}, {2048*i}")
        a(f"buffer_load_dwordx4 v[{32+4*i}:{35+4*i}], v10, {W2}, {sT[1]} offen offset:{2048*(i%2)} sc1")
    a(f"s_lshl_b32 {sT[0]}, {sW}, 6")
    a(f"v_lshl_add_u32 v11, {vCol}, 2, {vRow}")
    a(f"v_add_u32 v11, {sT[0]}, v11")
    a(f"v_lshlrev_b32 v12, 1, v11")
    a(f"global_load_ushort v13, v12, s[4:5]")
    a(f"s_lshl_b32 {sT[0]}, {sB}, 11")
    a(f"s_add_u32 {sT[0]}, {sT[0]}, 0x80000")
    a(f"v_lshl_add_u32 v11, v11, 2, {sT[0]}")
    a(f"global_load_dword v14, v11, s[28:29] sc1")
    a("s_waitcnt vmcnt(2)")
    for st in (16, 8, 4):
        for i in range(st): a(f"v_add_f32 v{32+i}, v{32+i}, v{32+st+i}")
    a("s_nop 0")
    a("v_permlane32_swap_b32 v32, v34")
    a("v_permlane32_swap_b32 v33, v35")
    a("v_add_f32 v32, v32, v34")
    a("v_add_f32 v33, v33, v35")
    a("s_nop 1")
    a("v_permlane16_swap_b32 v32, v33")
    a("v_add_f32 v16, v32, v33")
    rbf("v16")
    a("s_waitcnt vmcnt(0)")
    a("v_lshlrev_b32 v13, 16, v13")
    a("v_add_f32 v16, v13, v16")
    rbf("v16")
    a("v_add_f32 v16, v16, v14")
    a("v_cvt_pk_bf16_f32 v16, v16, v16")
    a(f"s_lshl_b32 {sT[0]}, {sB}, 10")
    a(f"v_add_u32 v12, {sT[0]}, v12")
    a(f"global_store_short v12, v16, s[24:25]")
    a("L_fin:")
    stamp(8)
    if STAMP == 1:
        a("s_waitcnt lgkmcnt(0)")
        a(f"s_mul_i32 {sT[0]}, s2, 9")
        a(f"s_add_u32 {sT[0]}, {sT[0]}, {sW}")
        a(f"s_add_u32 {sT[0]}, {sT[0]}, 1")
        a(f"s_lshl_b32 {sT[0]}, {sT[0]}, 7")
        a(f"s_add_u32 {sT[0]}, {sT[0]}, 0x100000")
        a(f"v_mov_b32 v16, 0")
        for i in range(18): a(f"v_writelane_b32 v16, s{60+i}, {i}")
        a(f"s_getreg_b32 {sT[1]}, hwreg(HW_REG_XCC_ID)")
        a(f"s_getreg_b32 {sT[2]}, hwreg(HW_REG_HW_ID)")
        a(f"v_writelane_b32 v16, {sT[1]}, 18")
        a(f"v_writelane_b32 v16, {sT[2]}, 19")
        a(f"v_writelane_b32 v16, {sSpin}, 20")
        a(f"v_lshl_add_u32 v17, {vL}, 2, {sT[0]}")
        a(f"s_mov_b64 exec, 0xffffffff")
        a(f"global_store_dword v17, v16, s[28:29]")
    if STAMP == 2:
        a("s_waitcnt lgkmcnt(0)")
        a(f"s_cmp_gt_i32 {sW}, 0")
        a("s_cbranch_scc1 L_end")
        a(f"v_mov_b32 v16, 0")
        a(f"s_not_b32 {sT[1]}, s60")
        a(f"v_writelane_b32 v16, {sT[1]}, 0")
        for i in range(6): a(f"v_writelane_b32 v16, s{66+2*i}, {i+1}")
        a(f"s_not_b32 {sT[1]}, s70")
        a(f"v_writelane_b32 v16, {sT[1]}, 7")
        a(f"v_lshlrev_b32 v17, 2, {vL}")
        a(f"s_mov_b64 exec, 0xff")
        a(f"global_atomic_umax v17, v16, s[26:27] offset:32 sc1")
    a("L_end:")
    a("s_endpgm")

    head = open("cdna_kernels/%s.s.ref" % NAME).read().split("; Override launch")[0]
    out = head + f"; @launch grid=(256,1,1) block=(576,1,1) lds={LDS_BYTES}\n"
    out += '.amdgcn_target "amdgcn-amd-amdhsa--gfx950"\n.text\n'
    out += f".globl {NAME}_kernel\n.p2align 8\n.type {NAME}_kernel,@function\n" + a.text()
    out += f""".section .rodata,"a"
.p2align 6
.amdhsa_kernel {NAME}_kernel
  .amdhsa_next_free_vgpr 144
  .amdhsa_next_free_sgpr 80
  .amdhsa_accum_offset 144
  .amdhsa_group_segment_fixed_size 0
  .amdhsa_kernarg_size 104
  .amdhsa_user_sgpr_count 2
  .amdhsa_user_sgpr_kernarg_segment_ptr 1
  .amdhsa_system_sgpr_workgroup_id_x 1
  .amdhsa_float_denorm_mode_32 3
.end_amdhsa_kernel
"""
    return out
if __name__ == "__main__":
    opts = {}
    for kv in sys.argv[2:]:
        k, v = kv.split("=")
        try: opts[k] = int(v, 0)
        except ValueError: opts[k] = v.replace("+", " ")
    open(sys.argv[1], "w").write(gen(opts))
```

```python
import sys, struct, math
NAME = "parallel_sum__mha_block_cached__mixer_token_mlp__decode"
def f2u(x): return struct.unpack("<I", struct.pack("<f", x))[0]
class Asm:
    def __init__(self): self.lines = []
    def __call__(self, s):
        s = s.strip()
        self.lines.append(s if s.endswith(":") else "    " + s)
    def c(self, s): self.lines.append("    ; " + s)
    def text(self): return "\n".join(self.lines) + "\n"

def gen(o):
    D = o.get("d", 20)
    STAMP = o.get("stamp", 0)
    ROT = o.get("rot", 1)
    BOUND = o.get("bound", 1)
    WOR = o.get("wor", 6)
    WQP = o.get("wqp", 0)
    SLEEP = o.get("sleep", 0)
    a = Asm()
    FULL = "row_mask:0xf bank_mask:0xf"
    l2e = 1.0 / math.log(2.0)
    sB, sH, sW = "s30", "s31", "s32"
    sOff, sR, sG = "s33", "s34", "s35"
    R = "s[36:39]"
    sM1, sD1, sM2, sD2 = "s40", "s41", "s42", "s43"
    sT = [f"s{44+i}" for i in range(8)]
    sHI, sB2, sSpin, sK = "s52", "s53", "s54", "s55"
    W2 = "s[56:59]"
    sL2E, sC1 = "s14", "s15"
    L_SC = 131072
    L_QP = L_SC + 16384
    L_XN = L_QP + 4352
    L_BP = L_XN + 1024
    L_FL = L_BP + 512
    LDS_BYTES = L_FL + 128
    L_Y = 0
    vL, vRow, vCol, vF = "v0", "v1", "v2", "v3"
    WREG = 64
    QF = 48
    DT = 32
    ACC = [f"v{24+i}" for i in range(8)]
    def wslot(j): return f"v[{WREG+4*j}:{WREG+4*j+3}]"
    nlab = [0]
    def lab(p):
        nlab[0] += 1; return f"L_{p}{nlab[0]}"
    def stamp(i):
        if STAMP in (1, 2) or (STAMP == 3 and i == 0): a(f"s_memrealtime s[{60+2*i}:{61+2*i}]")
    def wave_reduce(op, v, sdst):
        for ctl in ["quad_perm:[1,0,3,2] "+FULL, "quad_perm:[2,3,0,1] "+FULL, "row_half_mirror "+FULL, "row_mirror "+FULL,
                    "row_bcast:15 row_mask:0xa bank_mask:0xf", "row_bcast:31 row_mask:0xc bank_mask:0xf"]:
            a("s_nop 1"); a(f"{op}_dpp {v}, {v}, {v} {ctl}")
        a("s_nop 1"); a(f"v_readlane_b32 {sdst}, {v}, 63")
    def allreduce(op, regs, steps):
        for ctl in ["quad_perm:[1,0,3,2]", "quad_perm:[2,3,0,1]", "row_half_mirror", "row_mirror"][:steps]:
            if len(regs) < 3: a(f"s_nop {2-len(regs)}")
            for v in regs: a(f"{op}_dpp {v}, {v}, {v} {ctl} {FULL}")
    def rbf(v):
        a(f"v_cvt_pk_bf16_f32 {v}, {v}, {v}"); a(f"v_and_b32 {v}, {sHI}, {v}")
    def spin(off, cmp, val, tmpv, tmps):
        l0, l1 = lab("sp"), lab("go")
        a(f"{l0}:")
        a(f"ds_read_b32 {tmpv}, {vF} offset:{off}")
        a("s_waitcnt lgkmcnt(0)")
        a(f"v_readfirstlane_b32 {tmps}, {tmpv}")
        a(f"{cmp} {tmps}, {val}")
        if BOUND or SLEEP:
            a(f"s_cbranch_scc1 {l1}")
            if SLEEP: a(f"s_sleep {SLEEP}")
            if BOUND:
                a(f"s_sub_u32 {sSpin}, {sSpin}, 1")
                a(f"s_cbranch_scc1 L_end")
            a(f"s_branch {l0}")
            a(f"{l1}:")
        else:
            a(f"s_cbranch_scc0 {l0}")
    def rows_sum(v, t):
        a(f"v_mov_b32 {t}, {v}"); a("s_nop 1"); a(f"v_permlane32_swap_b32 {v}, {t}"); a(f"v_add_f32 {v}, {v}, {t}")
        a(f"v_mov_b32 {t}, {v}"); a("s_nop 1"); a(f"v_permlane16_swap_b32 {v}, {t}"); a(f"v_add_f32 {v}, {v}, {t}")
    def rows_reduce8(vaddr):
        for i in range(4): a(f"v_permlane32_swap_b32 {ACC[i]}, {ACC[i+4]}")
        for i in range(4): a(f"v_add_f32 {ACC[i]}, {ACC[i]}, {ACC[i+4]}")
        a("s_nop 0")
        for i in range(2): a(f"v_permlane16_swap_b32 {ACC[i]}, {ACC[i+2]}")
        for i in range(2): a(f"v_add_f32 {ACC[i]}, {ACC[i]}, {ACC[i+2]}")
        a(f"ds_write_b64 {vaddr}, v[24:25]")

    a(f"{NAME}_kernel:")
    a("s_cmp_ge_u32 s2, 256")
    a("s_cbranch_scc1 L_end")
    a("s_load_dwordx16 s[4:19], s[0:1], 0")
    a("s_load_dwordx8 s[20:27], s[0:1], 64")
    a("s_load_dwordx2 s[28:29], s[0:1], 96")
    stamp(0)
    a(f"v_lshrrev_b32 v4, 6, v0")
    a(f"v_and_b32 {vL}, 63, v0")
    a(f"v_readfirstlane_b32 {sW}, v4")
    a(f"v_mov_b32 {vF}, {L_FL}")
    a(f"v_lshrrev_b32 {vRow}, 4, {vL}")
    a(f"v_and_b32 {vCol}, 15, {vL}")
    a(f"v_lshl_add_u32 v4, {vCol}, 2, {vF}")
    a(f"v_mov_b32 v5, 0")
    a(f"ds_write_b32 v4, v5")
    a(f"s_mov_b32 s39, 0x20000")
    a(f"s_mov_b32 {sSpin}, 0x100000")
    a(f"s_lshl_b32 {sT[0]}, s2, 20")
    a(f"s_sub_u32 {sW}, {sW}, 1")
    a("s_waitcnt lgkmcnt(0)")
    a("s_barrier")
    a(f"s_cmp_lg_u32 {sW}, -1")
    a("s_cbranch_scc1 L_cons")

    a("s_setprio 3")
    a(f"s_add_u32 s36, s6, {sT[0]}")
    a(f"s_addc_u32 s37, s7, 0")
    a(f"s_mov_b32 s38, 0x100000")
    for j in range(4):
        a(f"v_xor_b32 v{4+j}, {vCol}, {vRow}")
        if j: a(f"v_xor_b32 v{4+j}, {4*j}, v{4+j}")
        a(f"v_lshlrev_b32 v{4+j}, 4, v{4+j}")
        a(f"v_lshl_add_u32 v{4+j}, {vRow}, 8, v{4+j}")
    a(f"s_add_u32 s8, s8, {sT[0]}")
    a(f"s_addc_u32 s9, s9, 0")
    js = (D - 1) % 4
    a(f"v_mov_b32 v8, {(js - D - 3)//4}")
    a(f"v_and_b32 v9, 7, {vL}")
    a(f"v_lshl_add_u32 v9, v9, 2, {vF}")
    a(f"v_mov_b32 v10, 0")
    a(f"v_mov_b32 v11, -3")
    a(f"s_mov_b32 {sOff}, 0")
    a(f"s_mov_b32 {sR}, 0")
    a(f"s_mov_b32 m0, 0")
    a("L_ld:")
    a("s_waitcnt lgkmcnt(0)")
    a(f"v_cmp_lt_i32 vcc, v10, v11")
    a(f"s_cbranch_vccnz L_ldslow")
    a("L_ldgo:")
    for g in range(8):
        for j in range(4):
            a(f"s_waitcnt vmcnt({D-1})")
            if j == js:
                a("v_add_u32 v8, 1, v8")
                a(f"ds_write_b32 {vF}, v8")
            a(f"buffer_load_dwordx4 v{4+j}, {R}, {sOff} offen offset:{1024*j} nt lds")
        a(f"s_add_u32 {sOff}, {sOff}, 4096")
        a(f"s_add_u32 m0, m0, 4096")
        if g == 5: a(f"ds_read_b32 v10, v9 offset:32")
    a(f"s_and_b32 m0, m0, 0x1ffff")
    a(f"v_add_u32 v11, 1, v11")
    a(f"s_add_u32 {sR}, {sR}, 1")
    if STAMP == 3:
        for k, rr in enumerate(o.get("marks", "2,4,8,16,32,48").split(",")):
            a(f"s_cmp_lg_u32 {sR}, {rr}")
            a(f"s_cbranch_scc1 L_mk{k}")
            a(f"s_memrealtime s[{62+2*k}:{63+2*k}]")
            a(f"L_mk{k}:")
    a(f"s_cmp_lg_u32 {sR}, 32")
    a(f"s_cbranch_scc1 L_ldnv")
    a(f"s_mov_b32 s36, s8")
    a(f"s_mov_b32 s37, s9")
    a(f"s_mov_b32 {sOff}, 0")
    for j in range(4): a(f"v_lshlrev_b32 v{4+j}, 4, {vL}")
    stamp(4)
    a("L_ldnv:")
    a(f"s_cmp_lg_u32 {sR}, 64")
    a(f"s_cbranch_scc1 L_ld")
    pub = (2044 + js - D - 3)//4 + 1
    while pub < 512:
        pub += 1
        a(f"s_waitcnt vmcnt({2048 - 4*pub})")
        a("v_add_u32 v8, 1, v8")
        a(f"ds_write_b32 {vF}, v8")
    stamp(5)
    if STAMP == 3:
        a(f"s_memrealtime s[74:75]")
        a("s_waitcnt lgkmcnt(0)")
        a(f"s_cmp_lg_u32 s2, {o.get('swg', 5)}")
        a("s_cbranch_scc1 L_end")
        for i in range(8): a(f"v_writelane_b32 v16, s{60+2*i}, {i}")
        a(f"v_subrev_u32 v16, s60, v16")
        a(f"v_lshlrev_b32 v17, 2, {vL}")
        a(f"s_mov_b64 exec, 0xff")
        a(f"global_store_dword v17, v16, s[26:27] offset:32")
    elif STAMP:
        for i in (1,2,3,6,7): a(f"s_mov_b64 s[{60+2*i}:{61+2*i}], 0")
        a("s_branch L_fin")
    a("s_endpgm")
    a("L_ldslow:")
    a(f"ds_read_b32 v10, v9 offset:32")
    if BOUND:
        a(f"s_sub_u32 {sSpin}, {sSpin}, 1")
        a(f"s_cbranch_scc1 L_end")
    a("s_branch L_ld")

    a("L_cons:")
    a(f"s_lshr_b32 {sB}, s2, 5")
    a(f"s_and_b32 {sH}, s2, 31")
    a(f"s_mov_b32 {sHI}, 0xffff0000")
    a(f"s_mov_b32 s59, 0x20000")
    a(f"s_lshl_b32 {sT[0]}, {sB}, 10")
    a(f"s_add_u32 s4, s4, {sT[0]}")
    a(f"s_addc_u32 s5, s5, 0")
    a(f"v_lshlrev_b32 v8, 4, {vL}")
    a(f"global_load_dwordx4 v[4:7], v8, s[4:5]")
    a(f"s_lshl_b32 {sT[0]}, {sW}, 19")
    a(f"s_lshl_b32 {sT[1]}, {sH}, 8")
    a(f"s_add_u32 {sT[0]}, {sT[0]}, {sT[1]}")
    a(f"s_add_u32 s36, s10, {sT[0]}")
    a(f"s_addc_u32 s37, s11, 0")
    a(f"s_mov_b32 s38, 0x80000")
    a(f"v_lshlrev_b32 v9, 17, {vRow}")
    a(f"v_lshl_add_u32 v9, {vCol}, 4, v9")
    if ROT: a(f"s_lshl_b32 {sT[2]}, {sB}, 14")
    else: a(f"s_mov_b32 {sT[2]}, 0")
    def wqload(j):
        a(f"s_xor_b32 {sT[3]}, {sT[2]}, {j*8192}")
        a(f"buffer_load_dwordx4 {wslot(j)}, v9, {R}, {sT[3]} offen")
    NQ0 = WQP if WQP else 16
    for j in range(NQ0): wqload(j)
    a(f"s_load_dword {sB2}, s[22:23], 0")
    a(f"s_waitcnt vmcnt({NQ0})")
    stamp(1)
    X = [f"v{16+i}" for i in range(8)]
    def unpack(src4):
        for i in range(4):
            a(f"v_lshlrev_b32 {X[2*i]}, 16, v{src4+i}")
            a(f"v_and_b32 {X[2*i+1]}, {sHI}, v{src4+i}")
    def ln(sM, sD, write):
        a(f"v_add_f32 v24, {X[0]}, {X[1]}")
        for i in range(2, 8): a(f"v_add_f32 v24, v24, {X[i]}")
        wave_reduce("v_add_f32", "v24", sT[0])
        a("s_nop 1")
        a(f"v_mov_b32 v25, {sT[0]}")
        a(f"v_mul_f32 v25, {hex(f2u(1.0/512))}, v25")
        a(f"v_sub_f32 v26, {X[0]}, v25")
        a(f"v_mul_f32 v24, v26, v26")
        for i in range(1, 8):
            a(f"v_sub_f32 v26, {X[i]}, v25")
            a(f"v_fmac_f32 v24, v26, v26")
        wave_reduce("v_add_f32", "v24", sT[0])
        rbf("v25")
        a(f"v_mov_b32 v24, {sT[0]}")
        a(f"v_mul_f32 v24, {hex(f2u(1.0/512))}, v24")
        rbf("v24")
        a(f"v_add_f32 v24, {hex(f2u(1e-5))}, v24")
        rbf("v24")
        a(f"v_sqrt_f32 v24, v24")
        a("s_nop 0")
        rbf("v24")
        a(f"v_rcp_f32 v24, v24")
        a(f"v_readfirstlane_b32 {sM}, v25")
        a(f"v_readfirstlane_b32 {sD}, v24")
        if write:
            for i in range(8): a(f"v_sub_f32 {X[i]}, {X[i]}, v25")
            for i in range(4): a(f"v_cvt_pk_bf16_f32 v{4+i}, {X[2*i]}, {X[2*i+1]}")
            unpack(4)
            for i in range(8): a(f"v_mul_f32 {X[i]}, {X[i]}, v24")
            for i in range(4): a(f"v_cvt_pk_bf16_f32 v{4+i}, {X[2*i]}, {X[2*i+1]}")
    unpack(4)
    ln(sM1, sD1, True)
    a(f"v_add_u32 v8, {L_XN}, v8")
    a(f"ds_write_b128 v8, v[4:7]")
    a(f"s_lshl_b32 {sT[0]}, {sW}, 7")
    if ROT:
        a(f"s_lshl_b32 {sT[1]}, {sB}, 2")
        a(f"s_add_u32 {sT[0]}, {sT[0]}, {sT[1]}")
    a(f"s_add_u32 {sT[0]}, {sT[0]}, {L_XN}")
    a(f"v_lshl_add_u32 v8, {vRow}, 5, {sT[0]}")
    assert L_XN % 32 == 0
    for i in range(8):
        if i:
            a(f"v_xor_b32 v10, {4*i}, v8")
            a(f"ds_read_b32 v{DT+i}, v10")
        else:
            a(f"ds_read_b32 v{DT+i}, v8")
    for i in range(8): a(f"v_mov_b32 {ACC[i]}, 0")
    a("s_waitcnt lgkmcnt(0)")
    for j in range(16):
        src = f"v{DT + j//2}"
        if j % 2 == 0:
            a(f"v_and_b32 v10, 0xffff, {src}"); a(f"v_lshlrev_b32 v11, 16, {src}")
        else:
            a(f"v_lshrrev_b32 v10, 16, {src}"); a(f"v_and_b32 v11, {sHI}, {src}")
        issued = min(16, NQ0 + j)
        a(f"s_waitcnt vmcnt({issued - j - 1})")
        if NQ0 + j < 16: wqload(NQ0 + j)
        for i in range(4):
            a(f"v_dot2c_f32_bf16 {ACC[2*i]}, v10, v{WREG+4*j+i}")
            a(f"v_dot2c_f32_bf16 {ACC[2*i+1]}, v11, v{WREG+4*j+i}")
    stamp(2)
    vPA = "v23"
    a(f"s_mul_i32 {sT[0]}, {sW}, 528")
    a(f"s_add_u32 {sT[0]}, {sT[0]}, {L_QP}")
    a(f"v_lshl_add_u32 v15, {vCol}, 5, {sT[0]}")
    a(f"v_lshl_add_u32 v15, {vRow}, 3, v15")
    rows_reduce8("v15")
    a(f"v_mov_b32 v10, 1")
    a("s_waitcnt lgkmcnt(0)")
    a(f"s_mov_b64 exec, 1")
    a(f"ds_add_u32 {vF}, v10 offset:4")
    a(f"s_mov_b64 exec, -1")
    a(f"s_lshl_b32 {sT[0]}, {sH}, 5")
    a(f"v_lshl_add_u32 v9, {vCol}, 1, {sT[0]}")
    a(f"global_load_ushort v8, v9, s[4:5]")
    a(f"s_mul_i32 {sT[0]}, {sW}, 448")
    a(f"v_mul_u32_u24 v9, 112, {vRow}")
    a(f"v_lshl_add_u32 v9, {vCol}, 2, v9")
    a(f"v_add_u32 v9, {sT[0]}, v9")
    a(f"v_cmp_lt_u32 vcc, 13, {vCol}")
    a(f"v_mov_b32 v10, 0x10000")
    a(f"s_mov_b32 s58, 3584")
    a(f"v_cndmask_b32 v9, v9, v10, vcc")
    MX = 128
    for k, p in enumerate([16, 18, 20]):
        a(f"s_mov_b32 s56, s{p}"); a(f"s_mov_b32 s57, s{p+1}")
        for s_ in range(2):
            a(f"buffer_load_dword v{MX + 5*s_ + (1,3,4)[k]}, v9, {W2}, 0 offen offset:{56*s_}")
    unpack(4)
    ln(sM2, sD2, False)
    spin(4, "s_cmp_ge_u32", 8, "v10", sT[0])
    a(f"v_lshlrev_b32 v10, 3, {vL}")
    a(f"v_add_u32 v10, {L_QP}, v10")
    for w in range(8): a(f"ds_read_b64 v[{DT+2*w}:{DT+2*w+1}], v10 offset:{528*w}")
    a("s_waitcnt lgkmcnt(0)")
    for st in (8, 4, 2):
        for i in range(st): a(f"v_add_f32 v{DT+i}, v{DT+i}, v{DT+st+i}")
    a(f"v_cvt_pk_bf16_f32 v{DT}, v{DT}, v{DT+1}")
    a(f"v_lshlrev_b32 v10, 2, {vL}")
    a(f"v_add_u32 v10, {L_XN}, v10")
    a(f"ds_write_b32 v10, v{DT}")
    a(f"v_lshlrev_b32 v10, 4, {vRow}")
    a(f"v_add_u32 v10, {L_XN}, v10")
    for t in range(4): a(f"ds_read_b128 v[{QF+4*t}:{QF+4*t+3}], v10 offset:{64*t}")
    vH, vMA, vC0 = "v138", "v139", "v140"
    a("s_waitcnt vmcnt(0)")
    a(f"v_lshlrev_b32 {vH}, 16, v8")
    a(f"v_subrev_f32 {vH}, {sM1}, {vH}"); rbf(vH)
    a(f"v_mul_f32 {vH}, {sD1}, {vH}"); rbf(vH)
    a(f"v_subrev_f32 {vH}, {sM2}, {vH}"); rbf(vH)
    a(f"v_mul_f32 {vH}, {sD2}, {vH}"); rbf(vH)
    for s_ in range(2):
        b = MX + 5*s_
        a(f"v_lshlrev_b32 v{b}, 16, v{b+1}"); a(f"v_and_b32 v{b+1}, {sHI}, v{b+1}")
        a(f"v_lshlrev_b32 v{b+2}, 16, v{b+3}"); a(f"v_and_b32 v{b+3}, {sHI}, v{b+3}")
    kb = math.sqrt(2.0/math.pi)
    a(f"v_mov_b32 {vC0}, {hex(f2u(-2*kb*l2e))}")
    a(f"s_mov_b32 {sC1}, {hex(f2u(-2*kb*l2e*0.044715))}")
    a(f"v_mov_b32 {vMA}, 0")
    a(f"s_mov_b32 {sL2E}, {hex(f2u(l2e))}")
    a(f"s_mov_b32 {sK}, {hex(f2u(128 ** -0.5))}")
    vKA, vSA, vDA, vM, vLs, vDn = "v4", "v5", "v6", "v7", "v8", "v9"
    a(f"v_xor_b32 {vKA}, {vRow}, {vCol}")
    a(f"v_lshlrev_b32 {vKA}, 4, {vKA}")
    a(f"v_lshl_add_u32 {vKA}, {vCol}, 8, {vKA}")
    a(f"s_lshl_b32 {sT[0]}, {sW}, 12")
    a(f"v_add_u32 {vKA}, {sT[0]}, {vKA}")
    a(f"s_lshl_b32 {sT[0]}, {sW}, 6")
    a(f"s_add_u32 {sT[0]}, {sT[0]}, {L_SC}")
    a(f"v_lshl_add_u32 {vSA}, {vCol}, 2, {sT[0]}")
    a(f"s_lshl_b32 {sT[0]}, {sW}, 2")
    a(f"v_add_u32 {vDA}, {sT[0]}, {vF}")
    a(f"v_mov_b32 {vM}, 0xff7fffff")
    a(f"v_mov_b32 {vLs}, 0")
    a(f"v_mov_b32 {vDn}, 0")
    a(f"s_mov_b32 {sG}, {sW}")
    a(f"s_mov_b32 {sR}, 0")
    a(f"s_lshl_b32 {sT[0]}, {sH}, 17")
    a(f"s_lshl_b32 {sT[1]}, {sW}, 14")
    a(f"s_add_u32 {sT[0]}, {sT[0]}, {sT[1]}")
    a(f"s_add_u32 s36, s12, {sT[0]}")
    a(f"s_addc_u32 s37, s13, 0")
    a(f"s_mov_b32 s38, 16384")
    a(f"s_add_u32 {sOff}, {sW}, {WOR}")
    stamp(3)
    a("L_k:")
    for t in range(1, 4): a(f"v_xor_b32 v{10+t}, {64*t}, {vKA}")
    spin(0, "s_cmp_gt_i32", sG, "v10", sT[0])
    a(f"ds_read_b128 v[{DT}:{DT+3}], {vKA}")
    for t in range(1, 4): a(f"ds_read_b128 v[{DT+4*t}:{DT+4*t+3}], v{10+t}")
    a(f"v_add_u32 {vDn}, 1, {vDn}")
    a(f"v_add_u32 {vKA}, 0x8000, {vKA}")
    a(f"v_and_b32 {vKA}, 0x1ffff, {vKA}")
    for t in range(4):
        a(f"s_waitcnt lgkmcnt({3-t})")
        a(f"v_mfma_f32_16x16x32_bf16 v[16:19], v[{QF+4*t}:{QF+4*t+3}], v[{DT+4*t}:{DT+4*t+3}], {'0' if t == 0 else 'v[16:19]'}")
    a(f"ds_write_b32 {vDA}, {vDn} offset:32")
    a(f"s_add_u32 {sG}, {sG}, 8")
    a(f"s_nop 5")
    rbf("v16")
    a(f"v_mul_f32 v16, {sK}, v16")
    rbf("v16")
    a(f"ds_write_b32 {vSA}, v16")
    a(f"v_max_f32 v17, {vM}, v16")
    a(f"v_sub_f32 v18, {vM}, v17")
    a(f"v_sub_f32 v16, v16, v17")
    a(f"v_mul_f32 v18, {sL2E}, v18")
    a(f"v_mul_f32 v16, {sL2E}, v16")
    a(f"v_exp_f32 v18, v18")
    a(f"v_exp_f32 v16, v16")
    a(f"v_mov_b32 {vM}, v17")
    a(f"v_add_u32 {vSA}, 512, {vSA}")
    a(f"v_fma_f32 {vLs}, {vLs}, v18, v16")
    a(f"s_cmp_lg_u32 {sR}, {sOff}")
    a(f"s_cbranch_scc1 L_nowo")
    a(f"v_lshlrev_b32 v10, 4, {vL}")
    for j in range(16):
        if j % 4 == 0: a(f"s_movk_i32 {sT[1]}, {1024*j}")
        a(f"buffer_load_dwordx4 {wslot(j)}, v10, {R}, {sT[1]} offen offset:{1024*(j%4)}")
    a("L_nowo:")
    a(f"s_cmp_lt_u32 {sR}, 16")
    a(f"s_cbranch_scc1 L_nomix")
    BC = "row_newbcast:0 " + FULL
    for s_ in range(2):
        b = MX + 5*s_
        a(f"v_mul_f32_dpp v16, v{b}, {vH} {BC}")
        a(f"v_mul_f32_dpp v17, v{b+1}, {vH} {BC}")
        a(f"v_cvt_pk_bf16_f32 v17, v16, v17")
        a(f"v_lshlrev_b32 v16, 16, v17"); a(f"v_and_b32 v17, {sHI}, v17")
        a(f"v_add_f32_dpp v16, v{b+2}, v16 {BC}")
        a(f"v_add_f32_dpp v17, v{b+3}, v17 {BC}")
        a(f"v_cvt_pk_bf16_f32 v17, v16, v17")
        a(f"v_lshlrev_b32 v16, 16, v17"); a(f"v_and_b32 v17, {sHI}, v17")
        a(f"v_mul_f32 v18, v16, v16"); a(f"v_mul_f32 v19, v17, v17")
        a(f"v_fma_f32 v18, v18, {sC1}, {vC0}"); a(f"v_fma_f32 v19, v19, {sC1}, {vC0}")
        a(f"v_mul_f32 v18, v18, v16"); a(f"v_mul_f32 v19, v19, v17")
        a(f"v_exp_f32 v18, v18"); a(f"v_exp_f32 v19, v19")
        a(f"v_mov_b32_dpp v{b}, v{b} row_ror:15 {FULL}")
        a(f"v_add_f32 v18, 1.0, v18"); a(f"v_add_f32 v19, 1.0, v19")
        a(f"v_rcp_f32 v18, v18"); a(f"v_rcp_f32 v19, v19")
        a(f"v_mov_b32_dpp v{b+1}, v{b+1} row_ror:15 {FULL}")
        a(f"v_mul_f32 v18, v18, v16"); a(f"v_mul_f32 v19, v19, v17")
        a(f"v_cvt_pk_bf16_f32 v18, v18, v19")
        a(f"v_mov_b32_dpp v{b+2}, v{b+2} row_ror:15 {FULL}")
        a(f"v_mov_b32_dpp v{b+3}, v{b+3} row_ror:15 {FULL}")
        a(f"v_dot2c_f32_bf16_dpp {vMA}, v{b+4}, v18 {BC}")
        a(f"v_mov_b32_dpp v{b+4}, v{b+4} row_ror:15 {FULL}")
    a("L_nomix:")
    a(f"s_add_u32 {sR}, {sR}, 1")
    a(f"s_cmp_lt_u32 {sR}, 32")
    a(f"s_cbranch_scc1 L_k")
    if STAMP: pass
    a(f"v_mov_b32 v16, {vM}")
    allreduce("v_max_f32", ["v16"], 4)
    a(f"v_sub_f32 v17, {vM}, v16")
    a(f"v_mul_f32 v17, {sL2E}, v17")
    a(f"v_exp_f32 v17, v17")
    a(f"s_lshl_b32 {sT[0]}, {sW}, 3")
    a(f"v_add_u32 v18, {sT[0]}, {vF}")
    a(f"v_mul_f32 v17, v17, {vLs}")
    allreduce("v_add_f32", ["v17"], 4)
    a(f"ds_write_b64 v18, v[16:17] offset:64")
    rows_sum(vMA, "v19")
    a(f"s_lshl_b32 {sT[0]}, {sW}, 6")
    a(f"s_add_u32 {sT[0]}, {sT[0]}, {L_BP}")
    a(f"v_lshl_add_u32 v19, {vCol}, 2, {sT[0]}")
    a(f"ds_write_b32 v19, {vMA}")
    a(f"v_mov_b32 v10, 1")
    a("s_waitcnt lgkmcnt(0)")
    a(f"s_mov_b64 exec, 1")
    a(f"ds_add_u32 {vF}, v10 offset:8")
    a(f"s_mov_b64 exec, -1")
    a(f"s_mov_b32 {sT[0]}, 0x05040100")
    a(f"s_mov_b32 {sT[1]}, 0x07060302")
    a("s_waitcnt vmcnt(0)")
    for p in range(8):
        for i in range(4):
            r0 = WREG + 8*p + i; r1 = r0 + 4
            a(f"v_perm_b32 v16, v{r1}, v{r0}, {sT[0]}")
            a(f"v_perm_b32 v{r1}, v{r1}, v{r0}, {sT[1]}")
            a(f"v_mov_b32 v{r0}, v16")
    spin(8, "s_cmp_ge_u32", 8, "v10", sT[0])
    a(f"v_and_b32 v18, 7, {vL}")
    a(f"v_lshl_add_u32 v18, v18, 3, {vF}")
    a(f"ds_read_b64 v[16:17], v18 offset:64")
    a(f"v_lshlrev_b32 v19, 2, {vL}")
    a(f"v_add_u32 v18, {L_BP}, v19")
    a(f"ds_read_b32 v20, v18")
    a(f"ds_read_b32 v21, v18 offset:256")
    a("s_waitcnt lgkmcnt(0)")
    a(f"v_mov_b32 {vM}, v16")
    allreduce("v_max_f32", [vM], 3)
    a(f"v_sub_f32 v16, v16, {vM}")
    a(f"v_mul_f32 v16, {sL2E}, v16")
    a(f"v_exp_f32 v16, v16")
    a(f"v_add_f32 v20, v20, v21")
    a(f"v_mul_f32 {vLs}, v16, v17")
    allreduce("v_add_f32", [vLs], 3)
    a(f"v_rcp_f32 {vLs}, {vLs}")
    rows_sum("v20", "v21")
    rbf("v20")
    a(f"s_lshl_b32 {sB2}, {sB2}, 16")
    a(f"v_add_f32 v20, {sB2}, v20")
    rbf("v20")
    a(f"s_lshl_b32 {sT[0]}, s2, 6")
    a(f"s_add_u32 {sT[0]}, {sT[0]}, 0x80000")
    a(f"s_add_u32 s56, s28, {sT[0]}")
    a(f"s_addc_u32 s57, s29, 0")
    a(f"s_cmp_eq_u32 {sW}, 0")
    a(f"s_cselect_b32 s58, 64, 0")
    a(f"buffer_store_dword v20, v19, {W2}, 0 offen sc1")
    a(f"s_lshl_b32 {sT[0]}, {sW}, 12")
    a(f"v_lshl_add_u32 {vKA}, {vL}, 4, {sT[0]}")
    a(f"v_and_b32 {vSA}, 3, {vL}")
    a(f"v_lshl_add_u32 {vSA}, {vSA}, 2, {vRow}")
    a(f"s_lshl_b32 {sT[0]}, {sW}, 6")
    a(f"s_add_u32 {sT[0]}, {sT[0]}, {L_SC}")
    a(f"v_lshl_add_u32 {vSA}, {vSA}, 2, {sT[0]}")
    for i in range(8): a(f"v_mov_b32 {ACC[i]}, 0")
    a(f"s_mov_b32 {sR}, 0")
    stamp(4)
    a("L_v:")
    a(f"ds_read_b32 v16, {vSA}")
    a(f"v_add_u32 {vSA}, 512, {vSA}")
    a(f"v_add_u32 {vDn}, 1, {vDn}")
    a("s_waitcnt lgkmcnt(0)")
    a(f"v_sub_f32 v16, v16, {vM}")
    a(f"v_mul_f32 v16, {sL2E}, v16")
    a(f"v_exp_f32 v16, v16")
    a(f"s_add_u32 {sR}, {sR}, 1")
    a(f"v_mul_f32 v16, v16, {vLs}")
    a(f"v_cvt_pk_bf16_f32 v16, v16, v16")
    a(f"v_lshrrev_b32 v17, 16, v16")
    a(f"v_and_b32 v16, {sHI}, v16")
    spin(0, "s_cmp_gt_i32", sG, "v10", sT[0])
    for t in range(4): a(f"ds_read_b128 v[{DT+4*t}:{DT+4*t+3}], {vKA} offset:{1024*t}")
    a(f"v_add_u32 {vKA}, 0x8000, {vKA}")
    a(f"v_and_b32 {vKA}, 0x1ffff, {vKA}")
    a(f"s_add_u32 {sG}, {sG}, 8")
    for j in range(4):
        a(f"s_waitcnt lgkmcnt({3-j})")
        if j == 3: a(f"ds_write_b32 {vDA}, {vDn} offset:32")
        for i in range(4):
            a(f"v_dot2c_f32_bf16_dpp {ACC[2*i]}, v17, v{DT+4*j+i} quad_perm:[{j},{j},{j},{j}] {FULL}")
            a(f"v_dot2c_f32_bf16_dpp {ACC[2*i+1]}, v16, v{DT+4*j+i} quad_perm:[{j},{j},{j},{j}] {FULL}")
    a(f"s_cmp_lt_u32 {sR}, 32")
    a(f"s_cbranch_scc1 L_v")
    stamp(5)
    a("s_nop 0")
    rows_reduce8("v15")
    a(f"v_and_b32 v10, 7, {vL}")
    a(f"v_mul_u32_u24 v10, 528, v10")
    a(f"v_and_b32 v11, 0x38, {vL}")
    a(f"s_lshl_b32 {sT[0]}, {sW}, 6")
    a(f"s_add_u32 {sT[0]}, {sT[0]}, {L_QP}")
    a(f"v_add3_u32 v10, v10, v11, {sT[0]}")
    a("s_waitcnt lgkmcnt(0)")
    a("s_barrier")
    a(f"ds_read_b64 v[16:17], v10")
    for i in range(8): a(f"v_mov_b32 {ACC[i]}, 0")
    a("s_waitcnt lgkmcnt(0)")
    allreduce("v_add_f32", ["v16", "v17"], 3)
    a("v_cvt_pk_bf16_f32 v16, v16, v17")
    a("s_nop 0")
    for p in range(8): a(f"v_readlane_b32 {sT[p]}, v16, {8*p}")
    for p in range(8):
        for i in range(4):
            a(f"v_dot2c_f32_bf16 {ACC[2*i]}, {sT[p]}, v{WREG+8*p+i}")
            a(f"v_dot2c_f32_bf16 {ACC[2*i+1]}, {sT[p]}, v{WREG+8*p+4+i}")
    a(f"s_lshl_b32 {sT[0]}, {sW}, 11")
    a(f"v_lshl_add_u32 v10, {vL}, 5, {sT[0]}")
    a(f"s_lshl_b32 {sT[0]}, {sW}, 8")
    a(f"v_lshl_add_u32 v11, {vL}, 2, {sT[0]}")
    a(f"ds_write_b128 v10, v[24:27] offset:{L_Y}")
    a(f"ds_write_b128 v10, v[28:31] offset:{L_Y+16}")
    a(f"s_lshl_b32 {sT[0]}, s2, 11")
    a(f"s_add_u32 s56, s28, {sT[0]}")
    a(f"s_addc_u32 s57, s29, 0")
    a(f"s_mov_b32 s58, 2048")
    a("s_waitcnt lgkmcnt(0)")
    a("s_barrier")
    for i in range(8): a(f"ds_read_b32 v{16+i}, v11 offset:{L_Y + 2048*i}")
    a("s_waitcnt lgkmcnt(0)")
    for st in (4, 2, 1):
        for i in range(st): a(f"v_add_f32 v{16+i}, v{16+i}, v{16+st+i}")
    a(f"buffer_store_dword v16, v11, {W2}, 0 offen sc1")
    a("s_waitcnt vmcnt(0)")
    a("s_barrier")
    stamp(6)
    a(f"s_cmp_lg_u32 {sW}, 0")
    a(f"s_cbranch_scc1 L_wait")
    a(f"s_lshl_b32 {sT[0]}, {sB}, 2")
    a(f"v_mov_b32 v16, {sT[0]}")
    a(f"v_mov_b32 v17, 1")
    a(f"s_mov_b64 exec, 1")
    a(f"global_atomic_add v18, v16, v17, s[26:27] sc0 sc1")
    a("s_waitcnt vmcnt(0)")
    a(f"ds_write_b32 {vF}, v18 offset:12")
    a(f"s_mov_b64 exec, -1")
    a("s_waitcnt lgkmcnt(0)")
    a("L_wait:")
    a("s_barrier")
    a(f"ds_read_b32 v18, {vF} offset:12")
    a("s_waitcnt lgkmcnt(0)")
    a(f"v_readfirstlane_b32 {sT[0]}, v18")
    stamp(7)
    a(f"s_cmp_lg_u32 {sT[0]}, 31")
    a(f"s_cbranch_scc1 L_fin")
    a(f"s_lshl_b32 {sT[0]}, {sB}, 16")
    a(f"s_add_u32 s56, s28, {sT[0]}")
    a(f"s_addc_u32 s57, s29, 0")
    a(f"s_mov_b32 s58, 65536")
    a(f"s_lshl_b32 {sT[0]}, {sW}, 8")
    a(f"v_lshl_add_u32 v10, {vCol}, 4, {sT[0]}")
    a(f"v_lshl_add_u32 v10, {vRow}, 14, v10")
    for i in range(8):
        if i % 2 == 0: a(f"s_movk_i32 {sT[1]}, {2048*i}")
        a(f"buffer_load_dwordx4 v[{32+4*i}:{35+4*i}], v10, {W2}, {sT[1]} offen offset:{2048*(i%2)} sc1")
    a(f"s_lshl_b32 {sT[0]}, {sW}, 6")
    a(f"v_lshl_add_u32 v11, {vCol}, 2, {vRow}")
    a(f"v_add_u32 v11, {sT[0]}, v11")
    a(f"v_lshlrev_b32 v12, 1, v11")
    a(f"global_load_ushort v13, v12, s[4:5]")
    a(f"s_lshl_b32 {sT[0]}, {sB}, 11")
    a(f"s_add_u32 {sT[0]}, {sT[0]}, 0x80000")
    a(f"v_lshl_add_u32 v11, v11, 2, {sT[0]}")
    a(f"global_load_dword v14, v11, s[28:29] sc1")
    a("s_waitcnt vmcnt(2)")
    for st in (16, 8, 4):
        for i in range(st): a(f"v_add_f32 v{32+i}, v{32+i}, v{32+st+i}")
    a("s_nop 0")
    a("v_permlane32_swap_b32 v32, v34")
    a("v_permlane32_swap_b32 v33, v35")
    a("v_add_f32 v32, v32, v34")
    a("v_add_f32 v33, v33, v35")
    a("s_nop 1")
    a("v_permlane16_swap_b32 v32, v33")
    a("v_add_f32 v16, v32, v33")
    rbf("v16")
    a("s_waitcnt vmcnt(0)")
    a("v_lshlrev_b32 v13, 16, v13")
    a("v_add_f32 v16, v13, v16")
    rbf("v16")
    a("v_add_f32 v16, v16, v14")
    a("v_cvt_pk_bf16_f32 v16, v16, v16")
    a(f"s_lshl_b32 {sT[0]}, {sB}, 10")
    a(f"v_add_u32 v12, {sT[0]}, v12")
    a(f"global_store_short v12, v16, s[24:25]")
    a("L_fin:")
    stamp(8)
    if STAMP == 1:
        a("s_waitcnt lgkmcnt(0)")
        a(f"s_mul_i32 {sT[0]}, s2, 9")
        a(f"s_add_u32 {sT[0]}, {sT[0]}, {sW}")
        a(f"s_add_u32 {sT[0]}, {sT[0]}, 1")
        a(f"s_lshl_b32 {sT[0]}, {sT[0]}, 7")
        a(f"s_add_u32 {sT[0]}, {sT[0]}, 0x100000")
        a(f"v_mov_b32 v16, 0")
        for i in range(18): a(f"v_writelane_b32 v16, s{60+i}, {i}")
        a(f"s_getreg_b32 {sT[1]}, hwreg(HW_REG_XCC_ID)")
        a(f"s_getreg_b32 {sT[2]}, hwreg(HW_REG_HW_ID)")
        a(f"v_writelane_b32 v16, {sT[1]}, 18")
        a(f"v_writelane_b32 v16, {sT[2]}, 19")
        a(f"v_writelane_b32 v16, {sSpin}, 20")
        a(f"v_lshl_add_u32 v17, {vL}, 2, {sT[0]}")
        a(f"s_mov_b64 exec, 0xffffffff")
        a(f"global_store_dword v17, v16, s[28:29]")
    if STAMP == 2:
        a("s_waitcnt lgkmcnt(0)")
        a(f"s_cmp_gt_i32 {sW}, 0")
        a("s_cbranch_scc1 L_end")
        a(f"v_mov_b32 v16, 0")
        a(f"s_not_b32 {sT[1]}, s60")
        a(f"v_writelane_b32 v16, {sT[1]}, 0")
        for i in range(6): a(f"v_writelane_b32 v16, s{66+2*i}, {i+1}")
        a(f"s_not_b32 {sT[1]}, s70")
        a(f"v_writelane_b32 v16, {sT[1]}, 7")
        a(f"v_lshlrev_b32 v17, 2, {vL}")
        a(f"s_mov_b64 exec, 0xff")
        a(f"global_atomic_umax v17, v16, s[26:27] offset:32 sc1")
    a("L_end:")
    a("s_endpgm")

    head = open("cdna_kernels/%s.s.ref" % NAME).read().split("; Override launch")[0]
    out = head + f"; @launch grid=(256,1,1) block=(576,1,1) lds={LDS_BYTES}\n"
    out += '.amdgcn_target "amdgcn-amd-amdhsa--gfx950"\n.text\n'
    out += f".globl {NAME}_kernel\n.p2align 8\n.type {NAME}_kernel,@function\n" + a.text()
    out += f""".section .rodata,"a"
.p2align 6
.amdhsa_kernel {NAME}_kernel
  .amdhsa_next_free_vgpr 144
  .amdhsa_next_free_sgpr 80
  .amdhsa_accum_offset 144
  .amdhsa_group_segment_fixed_size 0
  .amdhsa_kernarg_size 104
  .amdhsa_user_sgpr_count 2
  .amdhsa_user_sgpr_kernarg_segment_ptr 1
  .amdhsa_system_sgpr_workgroup_id_x 1
  .amdhsa_float_denorm_mode_32 3
.end_amdhsa_kernel
"""
    return out
if __name__ == "__main__":
    opts = {}
    for kv in sys.argv[2:]:
        k, v = kv.split("=")
        try: opts[k] = int(v, 0)
        except ValueError: opts[k] = v.replace("+", " ")
    open(sys.argv[1], "w").write(gen(opts))
```

```python
import sys, struct, math
NAME = "parallel_sum__mha_block_cached__mixer_token_mlp__decode"
def f2u(x): return struct.unpack("<I", struct.pack("<f", x))[0]
class Asm:
    def __init__(self): self.lines = []
    def __call__(self, s):
        s = s.strip()
        self.lines.append(s if s.endswith(":") else "    " + s)
    def c(self, s): self.lines.append("    ; " + s)
    def text(self): return "\n".join(self.lines) + "\n"

def gen(o):
    D = o.get("d", 20)
    STAMP = o.get("stamp", 0)
    ROT = o.get("rot", 1)
    BOUND = o.get("bound", 1)
    WOR = o.get("wor", 6)
    WQP = o.get("wqp", 0)
    SLEEP = o.get("sleep", 0)
    WP = o.get("wp", "nt")
    WOS = o.get("wos", 1)
    a = Asm()
    FULL = "row_mask:0xf bank_mask:0xf"
    l2e = 1.0 / math.log(2.0)
    sB, sH, sW = "s30", "s31", "s32"
    sOff, sR, sG = "s33", "s34", "s35"
    R = "s[36:39]"
    sM1, sD1, sM2, sD2 = "s40", "s41", "s42", "s43"
    sT = [f"s{44+i}" for i in range(8)]
    sHI, sB2, sSpin, sK = "s52", "s53", "s54", "s55"
    W2 = "s[56:59]"
    sL2E, sC1 = "s14", "s15"
    L_SC = 131072
    L_QP = L_SC + 16384
    L_XN = L_QP + 4352
    L_BP = L_XN + 1024
    L_FL = L_BP + 512
    LDS_BYTES = L_FL + 128
    L_Y = 0
    vL, vRow, vCol, vF = "v0", "v1", "v2", "v3"
    WREG = 64
    QF = 48
    DT = 32
    ACC = [f"v{24+i}" for i in range(8)]
    def wslot(j): return f"v[{WREG+4*j}:{WREG+4*j+3}]"
    nlab = [0]
    def lab(p):
        nlab[0] += 1; return f"L_{p}{nlab[0]}"
    def stamp(i):
        if STAMP in (1, 2) or (STAMP == 3 and i == 0): a(f"s_memrealtime s[{60+2*i}:{61+2*i}]")
    def wave_reduce(op, v, sdst):
        for ctl in ["quad_perm:[1,0,3,2] "+FULL, "quad_perm:[2,3,0,1] "+FULL, "row_half_mirror "+FULL, "row_mirror "+FULL,
                    "row_bcast:15 row_mask:0xa bank_mask:0xf", "row_bcast:31 row_mask:0xc bank_mask:0xf"]:
            a("s_nop 1"); a(f"{op}_dpp {v}, {v}, {v} {ctl}")
        a("s_nop 1"); a(f"v_readlane_b32 {sdst}, {v}, 63")
    def allreduce(op, regs, steps):
        for ctl in ["quad_perm:[1,0,3,2]", "quad_perm:[2,3,0,1]", "row_half_mirror", "row_mirror"][:steps]:
            if len(regs) < 3: a(f"s_nop {2-len(regs)}")
            for v in regs: a(f"{op}_dpp {v}, {v}, {v} {ctl} {FULL}")
    def rbf(v):
        a(f"v_cvt_pk_bf16_f32 {v}, {v}, {v}"); a(f"v_and_b32 {v}, {sHI}, {v}")
    def spin(off, cmp, val, tmpv, tmps):
        l0, l1 = lab("sp"), lab("go")
        a(f"{l0}:")
        a(f"ds_read_b32 {tmpv}, {vF} offset:{off}")
        a("s_waitcnt lgkmcnt(0)")
        a(f"v_readfirstlane_b32 {tmps}, {tmpv}")
        a(f"{cmp} {tmps}, {val}")
        if BOUND or SLEEP:
            a(f"s_cbranch_scc1 {l1}")
            if SLEEP: a(f"s_sleep {SLEEP}")
            if BOUND:
                a(f"s_sub_u32 {sSpin}, {sSpin}, 1")
                a(f"s_cbranch_scc1 L_end")
            a(f"s_branch {l0}")
            a(f"{l1}:")
        else:
            a(f"s_cbranch_scc0 {l0}")
    def rows_sum(v, t):
        a(f"v_mov_b32 {t}, {v}"); a("s_nop 1"); a(f"v_permlane32_swap_b32 {v}, {t}"); a(f"v_add_f32 {v}, {v}, {t}")
        a(f"v_mov_b32 {t}, {v}"); a("s_nop 1"); a(f"v_permlane16_swap_b32 {v}, {t}"); a(f"v_add_f32 {v}, {v}, {t}")
    def rows_reduce8(vaddr):
        for i in range(4): a(f"v_permlane32_swap_b32 {ACC[i]}, {ACC[i+4]}")
        for i in range(4): a(f"v_add_f32 {ACC[i]}, {ACC[i]}, {ACC[i+4]}")
        a("s_nop 0")
        for i in range(2): a(f"v_permlane16_swap_b32 {ACC[i]}, {ACC[i+2]}")
        for i in range(2): a(f"v_add_f32 {ACC[i]}, {ACC[i]}, {ACC[i+2]}")
        a(f"ds_write_b64 {vaddr}, v[24:25]")

    a(f"{NAME}_kernel:")
    a("s_cmp_ge_u32 s2, 256")
    a("s_cbranch_scc1 L_end")
    a("s_load_dwordx16 s[4:19], s[0:1], 0")
    a("s_load_dwordx8 s[20:27], s[0:1], 64")
    a("s_load_dwordx2 s[28:29], s[0:1], 96")
    stamp(0)
    a(f"v_lshrrev_b32 v4, 6, v0")
    a(f"v_and_b32 {vL}, 63, v0")
    a(f"v_readfirstlane_b32 {sW}, v4")
    a(f"v_mov_b32 {vF}, {L_FL}")
    a(f"v_lshrrev_b32 {vRow}, 4, {vL}")
    a(f"v_and_b32 {vCol}, 15, {vL}")
    a(f"v_lshl_add_u32 v4, {vCol}, 2, {vF}")
    a(f"v_mov_b32 v5, 0")
    a(f"ds_write_b32 v4, v5")
    a(f"s_mov_b32 s39, 0x20000")
    a(f"s_mov_b32 {sSpin}, 0x100000")
    a(f"s_lshl_b32 {sT[0]}, s2, 20")
    a(f"s_sub_u32 {sW}, {sW}, 1")
    a("s_waitcnt lgkmcnt(0)")
    a("s_barrier")
    a(f"s_cmp_lg_u32 {sW}, -1")
    a("s_cbranch_scc1 L_cons")

    a("s_setprio 3")
    a(f"s_add_u32 s36, s6, {sT[0]}")
    a(f"s_addc_u32 s37, s7, 0")
    a(f"s_mov_b32 s38, 0x100000")
    for j in range(4):
        a(f"v_xor_b32 v{4+j}, {vCol}, {vRow}")
        if j: a(f"v_xor_b32 v{4+j}, {4*j}, v{4+j}")
        a(f"v_lshlrev_b32 v{4+j}, 4, v{4+j}")
        a(f"v_lshl_add_u32 v{4+j}, {vRow}, 8, v{4+j}")
    a(f"s_add_u32 s8, s8, {sT[0]}")
    a(f"s_addc_u32 s9, s9, 0")
    js = (D - 1) % 4
    a(f"v_mov_b32 v8, {(js - D - 3)//4}")
    a(f"v_and_b32 v9, 7, {vL}")
    a(f"v_lshl_add_u32 v9, v9, 2, {vF}")
    a(f"v_mov_b32 v10, 0")
    a(f"v_mov_b32 v11, -3")
    a(f"s_mov_b32 {sOff}, 0")
    a(f"s_mov_b32 {sR}, 0")
    a(f"s_mov_b32 m0, 0")
    a("L_ld:")
    a("s_waitcnt lgkmcnt(0)")
    a(f"v_cmp_lt_i32 vcc, v10, v11")
    a(f"s_cbranch_vccnz L_ldslow")
    a("L_ldgo:")
    for g in range(8):
        for j in range(4):
            a(f"s_waitcnt vmcnt({D-1})")
            if j == js:
                a("v_add_u32 v8, 1, v8")
                a(f"ds_write_b32 {vF}, v8")
            a(f"buffer_load_dwordx4 v{4+j}, {R}, {sOff} offen offset:{1024*j} nt lds")
        a(f"s_add_u32 {sOff}, {sOff}, 4096")
        a(f"s_add_u32 m0, m0, 4096")
        if g == 5: a(f"ds_read_b32 v10, v9 offset:32")
    a(f"s_and_b32 m0, m0, 0x1ffff")
    a(f"v_add_u32 v11, 1, v11")
    a(f"s_add_u32 {sR}, {sR}, 1")
    if STAMP == 3:
        for k, rr in enumerate(o.get("marks", "2,4,8,16,32,48").split(",")):
            a(f"s_cmp_lg_u32 {sR}, {rr}")
            a(f"s_cbranch_scc1 L_mk{k}")
            a(f"s_memrealtime s[{62+2*k}:{63+2*k}]")
            a(f"L_mk{k}:")
    a(f"s_cmp_lg_u32 {sR}, 32")
    a(f"s_cbranch_scc1 L_ldnv")
    a(f"s_mov_b32 s36, s8")
    a(f"s_mov_b32 s37, s9")
    a(f"s_mov_b32 {sOff}, 0")
    for j in range(4): a(f"v_lshlrev_b32 v{4+j}, 4, {vL}")
    stamp(4)
    a("L_ldnv:")
    a(f"s_cmp_lg_u32 {sR}, 64")
    a(f"s_cbranch_scc1 L_ld")
    pub = (2044 + js - D - 3)//4 + 1
    while pub < 512:
        pub += 1
        a(f"s_waitcnt vmcnt({2048 - 4*pub})")
        a("v_add_u32 v8, 1, v8")
        a(f"ds_write_b32 {vF}, v8")
    stamp(5)
    if STAMP == 3:
        a(f"s_memrealtime s[74:75]")
        a("s_waitcnt lgkmcnt(0)")
        a(f"s_cmp_lg_u32 s2, {o.get('swg', 5)}")
        a("s_cbranch_scc1 L_end")
        for i in range(8): a(f"v_writelane_b32 v16, s{60+2*i}, {i}")
        a(f"v_subrev_u32 v16, s60, v16")
        a(f"v_lshlrev_b32 v17, 2, {vL}")
        a(f"s_mov_b64 exec, 0xff")
        a(f"global_store_dword v17, v16, s[26:27] offset:32")
    elif STAMP:
        for i in (1,2,3,6,7): a(f"s_mov_b64 s[{60+2*i}:{61+2*i}], 0")
        a("s_branch L_fin")
    a("s_endpgm")
    a("L_ldslow:")
    a(f"ds_read_b32 v10, v9 offset:32")
    if BOUND:
        a(f"s_sub_u32 {sSpin}, {sSpin}, 1")
        a(f"s_cbranch_scc1 L_end")
    a("s_branch L_ld")

    a("L_cons:")
    a(f"s_lshr_b32 {sB}, s2, 5")
    a(f"s_and_b32 {sH}, s2, 31")
    a(f"s_mov_b32 {sHI}, 0xffff0000")
    a(f"s_mov_b32 s59, 0x20000")
    a(f"s_lshl_b32 {sT[0]}, {sB}, 10")
    a(f"s_add_u32 s4, s4, {sT[0]}")
    a(f"s_addc_u32 s5, s5, 0")
    a(f"v_lshlrev_b32 v8, 4, {vL}")
    a(f"global_load_dwordx4 v[4:7], v8, s[4:5] {WP}")
    a(f"s_lshl_b32 {sT[0]}, {sW}, 19")
    a(f"s_lshl_b32 {sT[1]}, {sH}, 8")
    a(f"s_add_u32 {sT[0]}, {sT[0]}, {sT[1]}")
    a(f"s_add_u32 s36, s10, {sT[0]}")
    a(f"s_addc_u32 s37, s11, 0")
    a(f"s_mov_b32 s38, 0x80000")
    a(f"v_lshlrev_b32 v9, 17, {vRow}")
    a(f"v_lshl_add_u32 v9, {vCol}, 4, v9")
    if ROT: a(f"s_lshl_b32 {sT[2]}, {sB}, 14")
    else: a(f"s_mov_b32 {sT[2]}, 0")
    def wqload(j):
        a(f"s_xor_b32 {sT[3]}, {sT[2]}, {j*8192}")
        a(f"buffer_load_dwordx4 {wslot(j)}, v9, {R}, {sT[3]} offen {WP}")
    NQ0 = WQP if WQP else 16
    for j in range(NQ0): wqload(j)
    a(f"s_load_dword {sB2}, s[22:23], 0")
    a(f"s_waitcnt vmcnt({NQ0})")
    stamp(1)
    X = [f"v{16+i}" for i in range(8)]
    def unpack(src4):
        for i in range(4):
            a(f"v_lshlrev_b32 {X[2*i]}, 16, v{src4+i}")
            a(f"v_and_b32 {X[2*i+1]}, {sHI}, v{src4+i}")
    def ln(sM, sD, write):
        a(f"v_add_f32 v24, {X[0]}, {X[1]}")
        for i in range(2, 8): a(f"v_add_f32 v24, v24, {X[i]}")
        wave_reduce("v_add_f32", "v24", sT[0])
        a("s_nop 1")
        a(f"v_mov_b32 v25, {sT[0]}")
        a(f"v_mul_f32 v25, {hex(f2u(1.0/512))}, v25")
        a(f"v_sub_f32 v26, {X[0]}, v25")
        a(f"v_mul_f32 v24, v26, v26")
        for i in range(1, 8):
            a(f"v_sub_f32 v26, {X[i]}, v25")
            a(f"v_fmac_f32 v24, v26, v26")
        wave_reduce("v_add_f32", "v24", sT[0])
        rbf("v25")
        a(f"v_mov_b32 v24, {sT[0]}")
        a(f"v_mul_f32 v24, {hex(f2u(1.0/512))}, v24")
        rbf("v24")
        a(f"v_add_f32 v24, {hex(f2u(1e-5))}, v24")
        rbf("v24")
        a(f"v_sqrt_f32 v24, v24")
        a("s_nop 0")
        rbf("v24")
        a(f"v_rcp_f32 v24, v24")
        a(f"v_readfirstlane_b32 {sM}, v25")
        a(f"v_readfirstlane_b32 {sD}, v24")
        if write:
            for i in range(8): a(f"v_sub_f32 {X[i]}, {X[i]}, v25")
            for i in range(4): a(f"v_cvt_pk_bf16_f32 v{4+i}, {X[2*i]}, {X[2*i+1]}")
            unpack(4)
            for i in range(8): a(f"v_mul_f32 {X[i]}, {X[i]}, v24")
            for i in range(4): a(f"v_cvt_pk_bf16_f32 v{4+i}, {X[2*i]}, {X[2*i+1]}")
    unpack(4)
    ln(sM1, sD1, True)
    a(f"v_add_u32 v8, {L_XN}, v8")
    a(f"ds_write_b128 v8, v[4:7]")
    a(f"s_lshl_b32 {sT[0]}, {sW}, 7")
    if ROT:
        a(f"s_lshl_b32 {sT[1]}, {sB}, 2")
        a(f"s_add_u32 {sT[0]}, {sT[0]}, {sT[1]}")
    a(f"s_add_u32 {sT[0]}, {sT[0]}, {L_XN}")
    a(f"v_lshl_add_u32 v8, {vRow}, 5, {sT[0]}")
    assert L_XN % 32 == 0
    for i in range(8):
        if i:
            a(f"v_xor_b32 v10, {4*i}, v8")
            a(f"ds_read_b32 v{DT+i}, v10")
        else:
            a(f"ds_read_b32 v{DT+i}, v8")
    for i in range(8): a(f"v_mov_b32 {ACC[i]}, 0")
    a("s_waitcnt lgkmcnt(0)")
    for j in range(16):
        src = f"v{DT + j//2}"
        if j % 2 == 0:
            a(f"v_and_b32 v10, 0xffff, {src}"); a(f"v_lshlrev_b32 v11, 16, {src}")
        else:
            a(f"v_lshrrev_b32 v10, 16, {src}"); a(f"v_and_b32 v11, {sHI}, {src}")
        issued = min(16, NQ0 + j)
        a(f"s_waitcnt vmcnt({issued - j - 1})")
        if NQ0 + j < 16: wqload(NQ0 + j)
        for i in range(4):
            a(f"v_dot2c_f32_bf16 {ACC[2*i]}, v10, v{WREG+4*j+i}")
            a(f"v_dot2c_f32_bf16 {ACC[2*i+1]}, v11, v{WREG+4*j+i}")
    stamp(2)
    vPA = "v23"
    a(f"s_mul_i32 {sT[0]}, {sW}, 528")
    a(f"s_add_u32 {sT[0]}, {sT[0]}, {L_QP}")
    a(f"v_lshl_add_u32 v15, {vCol}, 5, {sT[0]}")
    a(f"v_lshl_add_u32 v15, {vRow}, 3, v15")
    rows_reduce8("v15")
    a(f"v_mov_b32 v10, 1")
    a("s_waitcnt lgkmcnt(0)")
    a(f"s_mov_b64 exec, 1")
    a(f"ds_add_u32 {vF}, v10 offset:4")
    a(f"s_mov_b64 exec, -1")
    a(f"s_lshl_b32 {sT[0]}, {sH}, 5")
    a(f"v_lshl_add_u32 v9, {vCol}, 1, {sT[0]}")
    a(f"global_load_ushort v8, v9, s[4:5] {WP}")
    a(f"s_mul_i32 {sT[0]}, {sW}, 448")
    a(f"v_mul_u32_u24 v9, 112, {vRow}")
    a(f"v_lshl_add_u32 v9, {vCol}, 2, v9")
    a(f"v_add_u32 v9, {sT[0]}, v9")
    a(f"v_cmp_lt_u32 vcc, 13, {vCol}")
    a(f"v_mov_b32 v10, 0x10000")
    a(f"s_mov_b32 s58, 3584")
    a(f"v_cndmask_b32 v9, v9, v10, vcc")
    MX = 128
    for k, p in enumerate([16, 18, 20]):
        a(f"s_mov_b32 s56, s{p}"); a(f"s_mov_b32 s57, s{p+1}")
        for s_ in range(2):
            a(f"buffer_load_dword v{MX + 5*s_ + (1,3,4)[k]}, v9, {W2}, 0 offen offset:{56*s_} {WP}")
    unpack(4)
    ln(sM2, sD2, False)
    spin(4, "s_cmp_ge_u32", 8, "v10", sT[0])
    a(f"v_lshlrev_b32 v10, 3, {vL}")
    a(f"v_add_u32 v10, {L_QP}, v10")
    for w in range(8): a(f"ds_read_b64 v[{DT+2*w}:{DT+2*w+1}], v10 offset:{528*w}")
    a("s_waitcnt lgkmcnt(0)")
    for st in (8, 4, 2):
        for i in range(st): a(f"v_add_f32 v{DT+i}, v{DT+i}, v{DT+st+i}")
    a(f"v_cvt_pk_bf16_f32 v{DT}, v{DT}, v{DT+1}")
    a(f"v_lshlrev_b32 v10, 2, {vL}")
    a(f"v_add_u32 v10, {L_XN}, v10")
    a(f"ds_write_b32 v10, v{DT}")
    a(f"v_lshlrev_b32 v10, 4, {vRow}")
    a(f"v_add_u32 v10, {L_XN}, v10")
    for t in range(4): a(f"ds_read_b128 v[{QF+4*t}:{QF+4*t+3}], v10 offset:{64*t}")
    vH, vMA, vC0 = "v138", "v139", "v140"
    a("s_waitcnt vmcnt(0)")
    a(f"v_lshlrev_b32 {vH}, 16, v8")
    a(f"v_subrev_f32 {vH}, {sM1}, {vH}"); rbf(vH)
    a(f"v_mul_f32 {vH}, {sD1}, {vH}"); rbf(vH)
    a(f"v_subrev_f32 {vH}, {sM2}, {vH}"); rbf(vH)
    a(f"v_mul_f32 {vH}, {sD2}, {vH}"); rbf(vH)
    for s_ in range(2):
        b = MX + 5*s_
        a(f"v_lshlrev_b32 v{b}, 16, v{b+1}"); a(f"v_and_b32 v{b+1}, {sHI}, v{b+1}")
        a(f"v_lshlrev_b32 v{b+2}, 16, v{b+3}"); a(f"v_and_b32 v{b+3}, {sHI}, v{b+3}")
    kb = math.sqrt(2.0/math.pi)
    a(f"v_mov_b32 {vC0}, {hex(f2u(-2*kb*l2e))}")
    a(f"s_mov_b32 {sC1}, {hex(f2u(-2*kb*l2e*0.044715))}")
    a(f"v_mov_b32 {vMA}, 0")
    a(f"s_mov_b32 {sL2E}, {hex(f2u(l2e))}")
    a(f"s_mov_b32 {sK}, {hex(f2u(128 ** -0.5))}")
    vKA, vSA, vDA, vM, vLs, vDn = "v4", "v5", "v6", "v7", "v8", "v9"
    a(f"v_xor_b32 {vKA}, {vRow}, {vCol}")
    a(f"v_lshlrev_b32 {vKA}, 4, {vKA}")
    a(f"v_lshl_add_u32 {vKA}, {vCol}, 8, {vKA}")
    a(f"s_lshl_b32 {sT[0]}, {sW}, 12")
    a(f"v_add_u32 {vKA}, {sT[0]}, {vKA}")
    a(f"s_lshl_b32 {sT[0]}, {sW}, 6")
    a(f"s_add_u32 {sT[0]}, {sT[0]}, {L_SC}")
    a(f"v_lshl_add_u32 {vSA}, {vCol}, 2, {sT[0]}")
    a(f"s_lshl_b32 {sT[0]}, {sW}, 2")
    a(f"v_add_u32 {vDA}, {sT[0]}, {vF}")
    a(f"v_mov_b32 {vM}, 0xff7fffff")
    a(f"v_mov_b32 {vLs}, 0")
    a(f"v_mov_b32 {vDn}, 0")
    a(f"s_mov_b32 {sG}, {sW}")
    a(f"s_mov_b32 {sR}, 0")
    a(f"s_lshl_b32 {sT[0]}, {sH}, 17")
    a(f"s_lshl_b32 {sT[1]}, {sW}, 14")
    a(f"s_add_u32 {sT[0]}, {sT[0]}, {sT[1]}")
    a(f"s_add_u32 s36, s12, {sT[0]}")
    a(f"s_addc_u32 s37, s13, 0")
    a(f"s_mov_b32 s38, 16384")
    a(f"s_mul_i32 {sOff}, {sW}, {WOS}")
    a(f"s_add_u32 {sOff}, {sOff}, {WOR}")
    stamp(3)
    a("L_k:")
    for t in range(1, 4): a(f"v_xor_b32 v{10+t}, {64*t}, {vKA}")
    spin(0, "s_cmp_gt_i32", sG, "v10", sT[0])
    a(f"ds_read_b128 v[{DT}:{DT+3}], {vKA}")
    for t in range(1, 4): a(f"ds_read_b128 v[{DT+4*t}:{DT+4*t+3}], v{10+t}")
    a(f"v_add_u32 {vDn}, 1, {vDn}")
    a(f"v_add_u32 {vKA}, 0x8000, {vKA}")
    a(f"v_and_b32 {vKA}, 0x1ffff, {vKA}")
    for t in range(4):
        a(f"s_waitcnt lgkmcnt({3-t})")
        a(f"v_mfma_f32_16x16x32_bf16 v[16:19], v[{QF+4*t}:{QF+4*t+3}], v[{DT+4*t}:{DT+4*t+3}], {'0' if t == 0 else 'v[16:19]'}")
    a(f"ds_write_b32 {vDA}, {vDn} offset:32")
    a(f"s_add_u32 {sG}, {sG}, 8")
    a(f"s_nop 5")
    rbf("v16")
    a(f"v_mul_f32 v16, {sK}, v16")
    rbf("v16")
    a(f"ds_write_b32 {vSA}, v16")
    a(f"v_max_f32 v17, {vM}, v16")
    a(f"v_sub_f32 v18, {vM}, v17")
    a(f"v_sub_f32 v16, v16, v17")
    a(f"v_mul_f32 v18, {sL2E}, v18")
    a(f"v_mul_f32 v16, {sL2E}, v16")
    a(f"v_exp_f32 v18, v18")
    a(f"v_exp_f32 v16, v16")
    a(f"v_mov_b32 {vM}, v17")
    a(f"v_add_u32 {vSA}, 512, {vSA}")
    a(f"v_fma_f32 {vLs}, {vLs}, v18, v16")
    a(f"s_cmp_lg_u32 {sR}, {sOff}")
    a(f"s_cbranch_scc1 L_nowo")
    a(f"v_lshlrev_b32 v10, 4, {vL}")
    for j in range(16):
        if j % 4 == 0: a(f"s_movk_i32 {sT[1]}, {1024*j}")
        a(f"buffer_load_dwordx4 {wslot(j)}, v10, {R}, {sT[1]} offen offset:{1024*(j%4)} {WP}")
    a("L_nowo:")
    a(f"s_cmp_lt_u32 {sR}, 16")
    a(f"s_cbranch_scc1 L_nomix")
    BC = "row_newbcast:0 " + FULL
    for s_ in range(2):
        b = MX + 5*s_
        a(f"v_mul_f32_dpp v16, v{b}, {vH} {BC}")
        a(f"v_mul_f32_dpp v17, v{b+1}, {vH} {BC}")
        a(f"v_cvt_pk_bf16_f32 v17, v16, v17")
        a(f"v_lshlrev_b32 v16, 16, v17"); a(f"v_and_b32 v17, {sHI}, v17")
        a(f"v_add_f32_dpp v16, v{b+2}, v16 {BC}")
        a(f"v_add_f32_dpp v17, v{b+3}, v17 {BC}")
        a(f"v_cvt_pk_bf16_f32 v17, v16, v17")
        a(f"v_lshlrev_b32 v16, 16, v17"); a(f"v_and_b32 v17, {sHI}, v17")
        a(f"v_mul_f32 v18, v16, v16"); a(f"v_mul_f32 v19, v17, v17")
        a(f"v_fma_f32 v18, v18, {sC1}, {vC0}"); a(f"v_fma_f32 v19, v19, {sC1}, {vC0}")
        a(f"v_mul_f32 v18, v18, v16"); a(f"v_mul_f32 v19, v19, v17")
        a(f"v_exp_f32 v18, v18"); a(f"v_exp_f32 v19, v19")
        a(f"v_mov_b32_dpp v{b}, v{b} row_ror:15 {FULL}")
        a(f"v_add_f32 v18, 1.0, v18"); a(f"v_add_f32 v19, 1.0, v19")
        a(f"v_rcp_f32 v18, v18"); a(f"v_rcp_f32 v19, v19")
        a(f"v_mov_b32_dpp v{b+1}, v{b+1} row_ror:15 {FULL}")
        a(f"v_mul_f32 v18, v18, v16"); a(f"v_mul_f32 v19, v19, v17")
        a(f"v_cvt_pk_bf16_f32 v18, v18, v19")
        a(f"v_mov_b32_dpp v{b+2}, v{b+2} row_ror:15 {FULL}")
        a(f"v_mov_b32_dpp v{b+3}, v{b+3} row_ror:15 {FULL}")
        a(f"v_dot2c_f32_bf16_dpp {vMA}, v{b+4}, v18 {BC}")
        a(f"v_mov_b32_dpp v{b+4}, v{b+4} row_ror:15 {FULL}")
    a("L_nomix:")
    a(f"s_add_u32 {sR}, {sR}, 1")
    a(f"s_cmp_lt_u32 {sR}, 32")
    a(f"s_cbranch_scc1 L_k")
    if STAMP: pass
    a(f"v_mov_b32 v16, {vM}")
    allreduce("v_max_f32", ["v16"], 4)
    a(f"v_sub_f32 v17, {vM}, v16")
    a(f"v_mul_f32 v17, {sL2E}, v17")
    a(f"v_exp_f32 v17, v17")
    a(f"s_lshl_b32 {sT[0]}, {sW}, 3")
    a(f"v_add_u32 v18, {sT[0]}, {vF}")
    a(f"v_mul_f32 v17, v17, {vLs}")
    allreduce("v_add_f32", ["v17"], 4)
    a(f"ds_write_b64 v18, v[16:17] offset:64")
    rows_sum(vMA, "v19")
    a(f"s_lshl_b32 {sT[0]}, {sW}, 6")
    a(f"s_add_u32 {sT[0]}, {sT[0]}, {L_BP}")
    a(f"v_lshl_add_u32 v19, {vCol}, 2, {sT[0]}")
    a(f"ds_write_b32 v19, {vMA}")
    a(f"v_mov_b32 v10, 1")
    a("s_waitcnt lgkmcnt(0)")
    a(f"s_mov_b64 exec, 1")
    a(f"ds_add_u32 {vF}, v10 offset:8")
    a(f"s_mov_b64 exec, -1")
    a(f"s_mov_b32 {sT[0]}, 0x05040100")
    a(f"s_mov_b32 {sT[1]}, 0x07060302")
    a("s_waitcnt vmcnt(0)")
    for p in range(8):
        for i in range(4):
            r0 = WREG + 8*p + i; r1 = r0 + 4
            a(f"v_perm_b32 v16, v{r1}, v{r0}, {sT[0]}")
            a(f"v_perm_b32 v{r1}, v{r1}, v{r0}, {sT[1]}")
            a(f"v_mov_b32 v{r0}, v16")
    spin(8, "s_cmp_ge_u32", 8, "v10", sT[0])
    a(f"v_and_b32 v18, 7, {vL}")
    a(f"v_lshl_add_u32 v18, v18, 3, {vF}")
    a(f"ds_read_b64 v[16:17], v18 offset:64")
    a(f"v_lshlrev_b32 v19, 2, {vL}")
    a(f"v_add_u32 v18, {L_BP}, v19")
    a(f"ds_read_b32 v20, v18")
    a(f"ds_read_b32 v21, v18 offset:256")
    a("s_waitcnt lgkmcnt(0)")
    a(f"v_mov_b32 {vM}, v16")
    allreduce("v_max_f32", [vM], 3)
    a(f"v_sub_f32 v16, v16, {vM}")
    a(f"v_mul_f32 v16, {sL2E}, v16")
    a(f"v_exp_f32 v16, v16")
    a(f"v_add_f32 v20, v20, v21")
    a(f"v_mul_f32 {vLs}, v16, v17")
    allreduce("v_add_f32", [vLs], 3)
    a(f"v_rcp_f32 {vLs}, {vLs}")
    rows_sum("v20", "v21")
    rbf("v20")
    a(f"s_lshl_b32 {sB2}, {sB2}, 16")
    a(f"v_add_f32 v20, {sB2}, v20")
    rbf("v20")
    a(f"s_lshl_b32 {sT[0]}, s2, 6")
    a(f"s_add_u32 {sT[0]}, {sT[0]}, 0x80000")
    a(f"s_add_u32 s56, s28, {sT[0]}")
    a(f"s_addc_u32 s57, s29, 0")
    a(f"s_cmp_eq_u32 {sW}, 0")
    a(f"s_cselect_b32 s58, 64, 0")
    a(f"buffer_store_dword v20, v19, {W2}, 0 offen sc1")
    a(f"s_lshl_b32 {sT[0]}, {sW}, 12")
    a(f"v_lshl_add_u32 {vKA}, {vL}, 4, {sT[0]}")
    a(f"v_and_b32 {vSA}, 3, {vL}")
    a(f"v_lshl_add_u32 {vSA}, {vSA}, 2, {vRow}")
    a(f"s_lshl_b32 {sT[0]}, {sW}, 6")
    a(f"s_add_u32 {sT[0]}, {sT[0]}, {L_SC}")
    a(f"v_lshl_add_u32 {vSA}, {vSA}, 2, {sT[0]}")
    for i in range(8): a(f"v_mov_b32 {ACC[i]}, 0")
    a(f"s_mov_b32 {sR}, 0")
    stamp(4)
    a("L_v:")
    a(f"ds_read_b32 v16, {vSA}")
    a(f"v_add_u32 {vSA}, 512, {vSA}")
    a(f"v_add_u32 {vDn}, 1, {vDn}")
    a("s_waitcnt lgkmcnt(0)")
    a(f"v_sub_f32 v16, v16, {vM}")
    a(f"v_mul_f32 v16, {sL2E}, v16")
    a(f"v_exp_f32 v16, v16")
    a(f"s_add_u32 {sR}, {sR}, 1")
    a(f"v_mul_f32 v16, v16, {vLs}")
    a(f"v_cvt_pk_bf16_f32 v16, v16, v16")
    a(f"v_lshrrev_b32 v17, 16, v16")
    a(f"v_and_b32 v16, {sHI}, v16")
    spin(0, "s_cmp_gt_i32", sG, "v10", sT[0])
    for t in range(4): a(f"ds_read_b128 v[{DT+4*t}:{DT+4*t+3}], {vKA} offset:{1024*t}")
    a(f"v_add_u32 {vKA}, 0x8000, {vKA}")
    a(f"v_and_b32 {vKA}, 0x1ffff, {vKA}")
    a(f"s_add_u32 {sG}, {sG}, 8")
    for j in range(4):
        a(f"s_waitcnt lgkmcnt({3-j})")
        if j == 3: a(f"ds_write_b32 {vDA}, {vDn} offset:32")
        for i in range(4):
            a(f"v_dot2c_f32_bf16_dpp {ACC[2*i]}, v17, v{DT+4*j+i} quad_perm:[{j},{j},{j},{j}] {FULL}")
            a(f"v_dot2c_f32_bf16_dpp {ACC[2*i+1]}, v16, v{DT+4*j+i} quad_perm:[{j},{j},{j},{j}] {FULL}")
    a(f"s_cmp_lt_u32 {sR}, 32")
    a(f"s_cbranch_scc1 L_v")
    stamp(5)
    a("s_nop 0")
    rows_reduce8("v15")
    a(f"v_and_b32 v10, 7, {vL}")
    a(f"v_mul_u32_u24 v10, 528, v10")
    a(f"v_and_b32 v11, 0x38, {vL}")
    a(f"s_lshl_b32 {sT[0]}, {sW}, 6")
    a(f"s_add_u32 {sT[0]}, {sT[0]}, {L_QP}")
    a(f"v_add3_u32 v10, v10, v11, {sT[0]}")
    a("s_waitcnt lgkmcnt(0)")
    a("s_barrier")
    a(f"ds_read_b64 v[16:17], v10")
    for i in range(8): a(f"v_mov_b32 {ACC[i]}, 0")
    a("s_waitcnt lgkmcnt(0)")
    allreduce("v_add_f32", ["v16", "v17"], 3)
    a("v_cvt_pk_bf16_f32 v16, v16, v17")
    a("s_nop 0")
    for p in range(8): a(f"v_readlane_b32 {sT[p]}, v16, {8*p}")
    for p in range(8):
        for i in range(4):
            a(f"v_dot2c_f32_bf16 {ACC[2*i]}, {sT[p]}, v{WREG+8*p+i}")
            a(f"v_dot2c_f32_bf16 {ACC[2*i+1]}, {sT[p]}, v{WREG+8*p+4+i}")
    a(f"s_lshl_b32 {sT[0]}, {sW}, 11")
    a(f"v_lshl_add_u32 v10, {vL}, 5, {sT[0]}")
    a(f"s_lshl_b32 {sT[0]}, {sW}, 8")
    a(f"v_lshl_add_u32 v11, {vL}, 2, {sT[0]}")
    a(f"ds_write_b128 v10, v[24:27] offset:{L_Y}")
    a(f"ds_write_b128 v10, v[28:31] offset:{L_Y+16}")
    a(f"s_lshl_b32 {sT[0]}, s2, 11")
    a(f"s_add_u32 s56, s28, {sT[0]}")
    a(f"s_addc_u32 s57, s29, 0")
    a(f"s_mov_b32 s58, 2048")
    a("s_waitcnt lgkmcnt(0)")
    a("s_barrier")
    for i in range(8): a(f"ds_read_b32 v{16+i}, v11 offset:{L_Y + 2048*i}")
    a("s_waitcnt lgkmcnt(0)")
    for st in (4, 2, 1):
        for i in range(st): a(f"v_add_f32 v{16+i}, v{16+i}, v{16+st+i}")
    a(f"buffer_store_dword v16, v11, {W2}, 0 offen sc1")
    a("s_waitcnt vmcnt(0)")
    a("s_barrier")
    stamp(6)
    a(f"s_cmp_lg_u32 {sW}, 0")
    a(f"s_cbranch_scc1 L_wait")
    a(f"s_lshl_b32 {sT[0]}, {sB}, 2")
    a(f"v_mov_b32 v16, {sT[0]}")
    a(f"v_mov_b32 v17, 1")
    a(f"s_mov_b64 exec, 1")
    a(f"global_atomic_add v18, v16, v17, s[26:27] sc0 sc1")
    a("s_waitcnt vmcnt(0)")
    a(f"ds_write_b32 {vF}, v18 offset:12")
    a(f"s_mov_b64 exec, -1")
    a("s_waitcnt lgkmcnt(0)")
    a("L_wait:")
    a("s_barrier")
    a(f"ds_read_b32 v18, {vF} offset:12")
    a("s_waitcnt lgkmcnt(0)")
    a(f"v_readfirstlane_b32 {sT[0]}, v18")
    stamp(7)
    a(f"s_cmp_lg_u32 {sT[0]}, 31")
    a(f"s_cbranch_scc1 L_fin")
    a(f"s_lshl_b32 {sT[0]}, {sB}, 16")
    a(f"s_add_u32 s56, s28, {sT[0]}")
    a(f"s_addc_u32 s57, s29, 0")
    a(f"s_mov_b32 s58, 65536")
    a(f"s_lshl_b32 {sT[0]}, {sW}, 8")
    a(f"v_lshl_add_u32 v10, {vCol}, 4, {sT[0]}")
    a(f"v_lshl_add_u32 v10, {vRow}, 14, v10")
    for i in range(8):
        if i % 2 == 0: a(f"s_movk_i32 {sT[1]}, {2048*i}")
        a(f"buffer_load_dwordx4 v[{32+4*i}:{35+4*i}], v10, {W2}, {sT[1]} offen offset:{2048*(i%2)} sc1")
    a(f"s_lshl_b32 {sT[0]}, {sW}, 6")
    a(f"v_lshl_add_u32 v11, {vCol}, 2, {vRow}")
    a(f"v_add_u32 v11, {sT[0]}, v11")
    a(f"v_lshlrev_b32 v12, 1, v11")
    a(f"global_load_ushort v13, v12, s[4:5]")
    a(f"s_lshl_b32 {sT[0]}, {sB}, 11")
    a(f"s_add_u32 {sT[0]}, {sT[0]}, 0x80000")
    a(f"v_lshl_add_u32 v11, v11, 2, {sT[0]}")
    a(f"global_load_dword v14, v11, s[28:29] sc1")
    a("s_waitcnt vmcnt(2)")
    for st in (16, 8, 4):
        for i in range(st): a(f"v_add_f32 v{32+i}, v{32+i}, v{32+st+i}")
    a("s_nop 0")
    a("v_permlane32_swap_b32 v32, v34")
    a("v_permlane32_swap_b32 v33, v35")
    a("v_add_f32 v32, v32, v34")
    a("v_add_f32 v33, v33, v35")
    a("s_nop 1")
    a("v_permlane16_swap_b32 v32, v33")
    a("v_add_f32 v16, v32, v33")
    rbf("v16")
    a("s_waitcnt vmcnt(0)")
    a("v_lshlrev_b32 v13, 16, v13")
    a("v_add_f32 v16, v13, v16")
    rbf("v16")
    a("v_add_f32 v16, v16, v14")
    a("v_cvt_pk_bf16_f32 v16, v16, v16")
    a(f"s_lshl_b32 {sT[0]}, {sB}, 10")
    a(f"v_add_u32 v12, {sT[0]}, v12")
    a(f"global_store_short v12, v16, s[24:25]")
    a("L_fin:")
    stamp(8)
    if STAMP == 1:
        a("s_waitcnt lgkmcnt(0)")
        a(f"s_mul_i32 {sT[0]}, s2, 9")
        a(f"s_add_u32 {sT[0]}, {sT[0]}, {sW}")
        a(f"s_add_u32 {sT[0]}, {sT[0]}, 1")
        a(f"s_lshl_b32 {sT[0]}, {sT[0]}, 7")
        a(f"s_add_u32 {sT[0]}, {sT[0]}, 0x100000")
        a(f"v_mov_b32 v16, 0")
        for i in range(18): a(f"v_writelane_b32 v16, s{60+i}, {i}")
        a(f"s_getreg_b32 {sT[1]}, hwreg(HW_REG_XCC_ID)")
        a(f"s_getreg_b32 {sT[2]}, hwreg(HW_REG_HW_ID)")
        a(f"v_writelane_b32 v16, {sT[1]}, 18")
        a(f"v_writelane_b32 v16, {sT[2]}, 19")
        a(f"v_writelane_b32 v16, {sSpin}, 20")
        a(f"v_lshl_add_u32 v17, {vL}, 2, {sT[0]}")
        a(f"s_mov_b64 exec, 0xffffffff")
        a(f"global_store_dword v17, v16, s[28:29]")
    if STAMP == 2:
        a("s_waitcnt lgkmcnt(0)")
        a(f"s_cmp_gt_i32 {sW}, 0")
        a("s_cbranch_scc1 L_end")
        a(f"v_mov_b32 v16, 0")
        a(f"s_not_b32 {sT[1]}, s60")
        a(f"v_writelane_b32 v16, {sT[1]}, 0")
        for i in range(6): a(f"v_writelane_b32 v16, s{66+2*i}, {i+1}")
        a(f"s_not_b32 {sT[1]}, s70")
        a(f"v_writelane_b32 v16, {sT[1]}, 7")
        a(f"v_lshlrev_b32 v17, 2, {vL}")
        a(f"s_mov_b64 exec, 0xff")
        a(f"global_atomic_umax v17, v16, s[26:27] offset:32 sc1")
    a("L_end:")
    a("s_endpgm")

    head = open("cdna_kernels/%s.s.ref" % NAME).read().split("; Override launch")[0]
    out = head + f"; @launch grid=(256,1,1) block=(576,1,1) lds={LDS_BYTES}\n"
    out += '.amdgcn_target "amdgcn-amd-amdhsa--gfx950"\n.text\n'
    out += f".globl {NAME}_kernel\n.p2align 8\n.type {NAME}_kernel,@function\n" + a.text()
    out += f""".section .rodata,"a"
.p2align 6
.amdhsa_kernel {NAME}_kernel
  .amdhsa_next_free_vgpr 144
  .amdhsa_next_free_sgpr 80
  .amdhsa_accum_offset 144
  .amdhsa_group_segment_fixed_size 0
  .amdhsa_kernarg_size 104
  .amdhsa_user_sgpr_count 2
  .amdhsa_user_sgpr_kernarg_segment_ptr 1
  .amdhsa_system_sgpr_workgroup_id_x 1
  .amdhsa_float_denorm_mode_32 3
.end_amdhsa_kernel
"""
    return out
if __name__ == "__main__":
    opts = {}
    for kv in sys.argv[2:]:
        k, v = kv.split("=")
        try: opts[k] = int(v, 0)
        except ValueError: opts[k] = v.replace("+", " ")
    open(sys.argv[1], "w").write(gen(opts))
```

```python
import sys, struct, math
NAME = "parallel_sum__mha_block_cached__mixer_token_mlp__decode"
def f2u(x): return struct.unpack("<I", struct.pack("<f", x))[0]
class Asm:
    def __init__(self): self.lines = []
    def __call__(self, s):
        s = s.strip()
        self.lines.append(s if s.endswith(":") else "    " + s)
    def c(self, s): self.lines.append("    ; " + s)
    def text(self): return "\n".join(self.lines) + "\n"

def gen(o):
    D = o.get("d", 20)
    STAMP = o.get("stamp", 0)
    ROT = o.get("rot", 1)
    BOUND = o.get("bound", 1)
    WOR = o.get("wor", 6)
    WQP = o.get("wqp", 0)
    SLEEP = o.get("sleep", 0)
    WP = o.get("wp", "nt")
    WOS = o.get("wos", 1)
    a = Asm()
    FULL = "row_mask:0xf bank_mask:0xf"
    l2e = 1.0 / math.log(2.0)
    sB, sH, sW = "s30", "s31", "s32"
    sOff, sR, sG = "s33", "s34", "s35"
    R = "s[36:39]"
    sM1, sD1, sM2, sD2 = "s40", "s41", "s42", "s43"
    sT = [f"s{44+i}" for i in range(8)]
    sHI, sB2, sSpin, sK = "s52", "s53", "s54", "s55"
    W2 = "s[56:59]"
    sL2E, sC1 = "s14", "s15"
    L_SC = 131072
    L_QP = L_SC + 16384
    L_XN = L_QP + 4352
    L_BP = L_XN + 1024
    L_FL = L_BP + 512
    LDS_BYTES = L_FL + 128
    L_Y = 0
    vL, vRow, vCol, vF = "v0", "v1", "v2", "v3"
    WREG = 64
    QF = 48
    DT = 32
    ACC = [f"v{24+i}" for i in range(8)]
    def wslot(j): return f"v[{WREG+4*j}:{WREG+4*j+3}]"
    nlab = [0]
    def lab(p):
        nlab[0] += 1; return f"L_{p}{nlab[0]}"
    def stamp(i):
        if STAMP in (1, 2) or (STAMP == 3 and i == 0): a(f"s_memrealtime s[{60+2*i}:{61+2*i}]")
    def wave_reduce(op, v, sdst):
        for ctl in ["quad_perm:[1,0,3,2] "+FULL, "quad_perm:[2,3,0,1] "+FULL, "row_half_mirror "+FULL, "row_mirror "+FULL,
                    "row_bcast:15 row_mask:0xa bank_mask:0xf", "row_bcast:31 row_mask:0xc bank_mask:0xf"]:
            a("s_nop 1"); a(f"{op}_dpp {v}, {v}, {v} {ctl}")
        a("s_nop 1"); a(f"v_readlane_b32 {sdst}, {v}, 63")
    def allreduce(op, regs, steps):
        for ctl in ["quad_perm:[1,0,3,2]", "quad_perm:[2,3,0,1]", "row_half_mirror", "row_mirror"][:steps]:
            if len(regs) < 3: a(f"s_nop {2-len(regs)}")
            for v in regs: a(f"{op}_dpp {v}, {v}, {v} {ctl} {FULL}")
    def rbf(v):
        a(f"v_cvt_pk_bf16_f32 {v}, {v}, {v}"); a(f"v_and_b32 {v}, {sHI}, {v}")
    def spin(off, cmp, val, tmpv, tmps):
        l0, l1 = lab("sp"), lab("go")
        a(f"{l0}:")
        a(f"ds_read_b32 {tmpv}, {vF} offset:{off}")
        a("s_waitcnt lgkmcnt(0)")
        a(f"v_readfirstlane_b32 {tmps}, {tmpv}")
        a(f"{cmp} {tmps}, {val}")
        if BOUND or SLEEP:
            a(f"s_cbranch_scc1 {l1}")
            if SLEEP: a(f"s_sleep {SLEEP}")
            if BOUND:
                a(f"s_sub_u32 {sSpin}, {sSpin}, 1")
                a(f"s_cbranch_scc1 L_end")
            a(f"s_branch {l0}")
            a(f"{l1}:")
        else:
            a(f"s_cbranch_scc0 {l0}")
    def rows_sum(v, t):
        a(f"v_mov_b32 {t}, {v}"); a("s_nop 1"); a(f"v_permlane32_swap_b32 {v}, {t}"); a(f"v_add_f32 {v}, {v}, {t}")
        a(f"v_mov_b32 {t}, {v}"); a("s_nop 1"); a(f"v_permlane16_swap_b32 {v}, {t}"); a(f"v_add_f32 {v}, {v}, {t}")
    def rows_reduce8(vaddr):
        for i in range(4): a(f"v_permlane32_swap_b32 {ACC[i]}, {ACC[i+4]}")
        for i in range(4): a(f"v_add_f32 {ACC[i]}, {ACC[i]}, {ACC[i+4]}")
        a("s_nop 0")
        for i in range(2): a(f"v_permlane16_swap_b32 {ACC[i]}, {ACC[i+2]}")
        for i in range(2): a(f"v_add_f32 {ACC[i]}, {ACC[i]}, {ACC[i+2]}")
        a(f"ds_write_b64 {vaddr}, v[24:25]")

    a(f"{NAME}_kernel:")
    a("s_cmp_ge_u32 s2, 256")
    a("s_cbranch_scc1 L_end")
    a("s_load_dwordx16 s[4:19], s[0:1], 0")
    a("s_load_dwordx8 s[20:27], s[0:1], 64")
    a("s_load_dwordx2 s[28:29], s[0:1], 96")
    stamp(0)
    a(f"v_lshrrev_b32 v4, 6, v0")
    a(f"v_and_b32 {vL}, 63, v0")
    a(f"v_readfirstlane_b32 {sW}, v4")
    a(f"v_mov_b32 {vF}, {L_FL}")
    a(f"v_lshrrev_b32 {vRow}, 4, {vL}")
    a(f"v_and_b32 {vCol}, 15, {vL}")
    a(f"v_lshl_add_u32 v4, {vCol}, 2, {vF}")
    a(f"v_mov_b32 v5, 0")
    a(f"ds_write_b32 v4, v5")
    a(f"s_mov_b32 s39, 0x20000")
    a(f"s_mov_b32 {sSpin}, 0x100000")
    a(f"s_lshl_b32 {sT[0]}, s2, 20")
    a(f"s_sub_u32 {sW}, {sW}, 1")
    a("s_waitcnt lgkmcnt(0)")
    a("s_barrier")
    a(f"s_cmp_lg_u32 {sW}, -1")
    a("s_cbranch_scc1 L_cons")

    a("s_setprio 3")
    a(f"s_add_u32 s36, s6, {sT[0]}")
    a(f"s_addc_u32 s37, s7, 0")
    a(f"s_mov_b32 s38, 0x100000")
    for j in range(4):
        a(f"v_xor_b32 v{4+j}, {vCol}, {vRow}")
        if j: a(f"v_xor_b32 v{4+j}, {4*j}, v{4+j}")
        a(f"v_lshlrev_b32 v{4+j}, 4, v{4+j}")
        a(f"v_lshl_add_u32 v{4+j}, {vRow}, 8, v{4+j}")
    a(f"s_add_u32 s8, s8, {sT[0]}")
    a(f"s_addc_u32 s9, s9, 0")
    js = (D - 1) % 4
    a(f"v_mov_b32 v8, {(js - D - 3)//4}")
    a(f"v_and_b32 v9, 7, {vL}")
    a(f"v_lshl_add_u32 v9, v9, 2, {vF}")
    a(f"v_mov_b32 v10, 0")
    a(f"v_mov_b32 v11, -3")
    a(f"s_mov_b32 {sOff}, 0")
    a(f"s_mov_b32 {sR}, 0")
    a(f"s_mov_b32 m0, 0")
    a("L_ld:")
    a("s_waitcnt lgkmcnt(0)")
    a(f"v_cmp_lt_i32 vcc, v10, v11")
    a(f"s_cbranch_vccnz L_ldslow")
    a("L_ldgo:")
    for g in range(8):
        for j in range(4):
            a(f"s_waitcnt vmcnt({D-1})")
            if j == js:
                a("v_add_u32 v8, 1, v8")
                a(f"ds_write_b32 {vF}, v8")
            a(f"buffer_load_dwordx4 v{4+j}, {R}, {sOff} offen offset:{1024*j} nt lds")
        a(f"s_add_u32 {sOff}, {sOff}, 4096")
        a(f"s_add_u32 m0, m0, 4096")
        if g == 5: a(f"ds_read_b32 v10, v9 offset:32")
    a(f"s_and_b32 m0, m0, 0x1ffff")
    a(f"v_add_u32 v11, 1, v11")
    a(f"s_add_u32 {sR}, {sR}, 1")
    if STAMP == 3:
        for k, rr in enumerate(o.get("marks", "2,4,8,16,32,48").split(",")):
            a(f"s_cmp_lg_u32 {sR}, {rr}")
            a(f"s_cbranch_scc1 L_mk{k}")
            a(f"s_memrealtime s[{62+2*k}:{63+2*k}]")
            a(f"L_mk{k}:")
    a(f"s_cmp_lg_u32 {sR}, 32")
    a(f"s_cbranch_scc1 L_ldnv")
    a(f"s_mov_b32 s36, s8")
    a(f"s_mov_b32 s37, s9")
    a(f"s_mov_b32 {sOff}, 0")
    for j in range(4): a(f"v_lshlrev_b32 v{4+j}, 4, {vL}")
    stamp(4)
    a("L_ldnv:")
    a(f"s_cmp_lg_u32 {sR}, 64")
    a(f"s_cbranch_scc1 L_ld")
    pub = (2044 + js - D - 3)//4 + 1
    while pub < 512:
        pub += 1
        a(f"s_waitcnt vmcnt({2048 - 4*pub})")
        a("v_add_u32 v8, 1, v8")
        a(f"ds_write_b32 {vF}, v8")
    stamp(5)
    if STAMP == 3:
        a(f"s_memrealtime s[74:75]")
        a("s_waitcnt lgkmcnt(0)")
        a(f"s_cmp_lg_u32 s2, {o.get('swg', 5)}")
        a("s_cbranch_scc1 L_end")
        for i in range(8): a(f"v_writelane_b32 v16, s{60+2*i}, {i}")
        a(f"v_subrev_u32 v16, s60, v16")
        a(f"v_lshlrev_b32 v17, 2, {vL}")
        a(f"s_mov_b64 exec, 0xff")
        a(f"global_store_dword v17, v16, s[26:27] offset:32")
    elif STAMP:
        for i in (1,2,3,6,7): a(f"s_mov_b64 s[{60+2*i}:{61+2*i}], 0")
        a("s_branch L_fin")
    a("s_endpgm")
    a("L_ldslow:")
    a(f"ds_read_b32 v10, v9 offset:32")
    if BOUND:
        a(f"s_sub_u32 {sSpin}, {sSpin}, 1")
        a(f"s_cbranch_scc1 L_end")
    a("s_branch L_ld")

    a("L_cons:")
    a(f"s_lshr_b32 {sB}, s2, 5")
    a(f"s_and_b32 {sH}, s2, 31")
    a(f"s_mov_b32 {sHI}, 0xffff0000")
    a(f"s_mov_b32 s59, 0x20000")
    a(f"s_lshl_b32 {sT[0]}, {sB}, 10")
    a(f"s_add_u32 s4, s4, {sT[0]}")
    a(f"s_addc_u32 s5, s5, 0")
    a(f"v_lshlrev_b32 v8, 4, {vL}")
    a(f"global_load_dwordx4 v[4:7], v8, s[4:5] {WP}")
    a(f"s_lshl_b32 {sT[0]}, {sW}, 19")
    a(f"s_lshl_b32 {sT[1]}, {sH}, 8")
    a(f"s_add_u32 {sT[0]}, {sT[0]}, {sT[1]}")
    a(f"s_add_u32 s36, s10, {sT[0]}")
    a(f"s_addc_u32 s37, s11, 0")
    a(f"s_mov_b32 s38, 0x80000")
    a(f"v_lshlrev_b32 v9, 17, {vRow}")
    a(f"v_lshl_add_u32 v9, {vCol}, 4, v9")
    if ROT: a(f"s_lshl_b32 {sT[2]}, {sB}, 14")
    else: a(f"s_mov_b32 {sT[2]}, 0")
    def wqload(j):
        a(f"s_xor_b32 {sT[3]}, {sT[2]}, {j*8192}")
        a(f"buffer_load_dwordx4 {wslot(j)}, v9, {R}, {sT[3]} offen {WP}")
    NQ0 = WQP if WQP else 16
    for j in range(NQ0): wqload(j)
    a(f"s_load_dword {sB2}, s[22:23], 0")
    a(f"s_waitcnt vmcnt({NQ0})")
    stamp(1)
    X = [f"v{16+i}" for i in range(8)]
    def unpack(src4):
        for i in range(4):
            a(f"v_lshlrev_b32 {X[2*i]}, 16, v{src4+i}")
            a(f"v_and_b32 {X[2*i+1]}, {sHI}, v{src4+i}")
    def ln(sM, sD, write):
        a(f"v_add_f32 v24, {X[0]}, {X[1]}")
        for i in range(2, 8): a(f"v_add_f32 v24, v24, {X[i]}")
        wave_reduce("v_add_f32", "v24", sT[0])
        a("s_nop 1")
        a(f"v_mov_b32 v25, {sT[0]}")
        a(f"v_mul_f32 v25, {hex(f2u(1.0/512))}, v25")
        a(f"v_sub_f32 v26, {X[0]}, v25")
        a(f"v_mul_f32 v24, v26, v26")
        for i in range(1, 8):
            a(f"v_sub_f32 v26, {X[i]}, v25")
            a(f"v_fmac_f32 v24, v26, v26")
        wave_reduce("v_add_f32", "v24", sT[0])
        rbf("v25")
        a(f"v_mov_b32 v24, {sT[0]}")
        a(f"v_mul_f32 v24, {hex(f2u(1.0/512))}, v24")
        rbf("v24")
        a(f"v_add_f32 v24, {hex(f2u(1e-5))}, v24")
        rbf("v24")
        a(f"v_sqrt_f32 v24, v24")
        a("s_nop 0")
        rbf("v24")
        a(f"v_rcp_f32 v24, v24")
        a(f"v_readfirstlane_b32 {sM}, v25")
        a(f"v_readfirstlane_b32 {sD}, v24")
        if write:
            for i in range(8): a(f"v_sub_f32 {X[i]}, {X[i]}, v25")
            for i in range(4): a(f"v_cvt_pk_bf16_f32 v{4+i}, {X[2*i]}, {X[2*i+1]}")
            unpack(4)
            for i in range(8): a(f"v_mul_f32 {X[i]}, {X[i]}, v24")
            for i in range(4): a(f"v_cvt_pk_bf16_f32 v{4+i}, {X[2*i]}, {X[2*i+1]}")
    unpack(4)
    ln(sM1, sD1, True)
    a(f"v_add_u32 v8, {L_XN}, v8")
    a(f"ds_write_b128 v8, v[4:7]")
    a(f"s_lshl_b32 {sT[0]}, {sW}, 7")
    if ROT:
        a(f"s_lshl_b32 {sT[1]}, {sB}, 2")
        a(f"s_add_u32 {sT[0]}, {sT[0]}, {sT[1]}")
    a(f"s_add_u32 {sT[0]}, {sT[0]}, {L_XN}")
    a(f"v_lshl_add_u32 v8, {vRow}, 5, {sT[0]}")
    assert L_XN % 32 == 0
    for i in range(8):
        if i:
            a(f"v_xor_b32 v10, {4*i}, v8")
            a(f"ds_read_b32 v{DT+i}, v10")
        else:
            a(f"ds_read_b32 v{DT+i}, v8")
    for i in range(8): a(f"v_mov_b32 {ACC[i]}, 0")
    a("s_waitcnt lgkmcnt(0)")
    for j in range(16):
        src = f"v{DT + j//2}"
        if j % 2 == 0:
            a(f"v_and_b32 v10, 0xffff, {src}"); a(f"v_lshlrev_b32 v11, 16, {src}")
        else:
            a(f"v_lshrrev_b32 v10, 16, {src}"); a(f"v_and_b32 v11, {sHI}, {src}")
        issued = min(16, NQ0 + j)
        a(f"s_waitcnt vmcnt({issued - j - 1})")
        if NQ0 + j < 16: wqload(NQ0 + j)
        for i in range(4):
            a(f"v_dot2c_f32_bf16 {ACC[2*i]}, v10, v{WREG+4*j+i}")
            a(f"v_dot2c_f32_bf16 {ACC[2*i+1]}, v11, v{WREG+4*j+i}")
    stamp(2)
    vPA = "v23"
    a(f"s_mul_i32 {sT[0]}, {sW}, 528")
    a(f"s_add_u32 {sT[0]}, {sT[0]}, {L_QP}")
    a(f"v_lshl_add_u32 v15, {vCol}, 5, {sT[0]}")
    a(f"v_lshl_add_u32 v15, {vRow}, 3, v15")
    rows_reduce8("v15")
    a(f"v_mov_b32 v10, 1")
    a("s_waitcnt lgkmcnt(0)")
    a(f"s_mov_b64 exec, 1")
    a(f"ds_add_u32 {vF}, v10 offset:4")
    a(f"s_mov_b64 exec, -1")
    a(f"s_lshl_b32 {sT[0]}, {sH}, 5")
    a(f"v_lshl_add_u32 v9, {vCol}, 1, {sT[0]}")
    a(f"global_load_ushort v8, v9, s[4:5] {WP}")
    a(f"s_mul_i32 {sT[0]}, {sW}, 448")
    a(f"v_mul_u32_u24 v9, 112, {vRow}")
    a(f"v_lshl_add_u32 v9, {vCol}, 2, v9")
    a(f"v_add_u32 v9, {sT[0]}, v9")
    a(f"v_cmp_lt_u32 vcc, 13, {vCol}")
    a(f"v_mov_b32 v10, 0x10000")
    a(f"s_mov_b32 s58, 3584")
    a(f"v_cndmask_b32 v9, v9, v10, vcc")
    MX = 128
    for k, p in enumerate([16, 18, 20]):
        a(f"s_mov_b32 s56, s{p}"); a(f"s_mov_b32 s57, s{p+1}")
        for s_ in range(2):
            a(f"buffer_load_dword v{MX + 5*s_ + (1,3,4)[k]}, v9, {W2}, 0 offen offset:{56*s_} {WP}")
    unpack(4)
    ln(sM2, sD2, False)
    spin(4, "s_cmp_ge_u32", 8, "v10", sT[0])
    a(f"v_lshlrev_b32 v10, 3, {vL}")
    a(f"v_add_u32 v10, {L_QP}, v10")
    for w in range(8): a(f"ds_read_b64 v[{DT+2*w}:{DT+2*w+1}], v10 offset:{528*w}")
    a("s_waitcnt lgkmcnt(0)")
    for st in (8, 4, 2):
        for i in range(st): a(f"v_add_f32 v{DT+i}, v{DT+i}, v{DT+st+i}")
    a(f"v_cvt_pk_bf16_f32 v{DT}, v{DT}, v{DT+1}")
    a(f"v_lshlrev_b32 v10, 2, {vL}")
    a(f"v_add_u32 v10, {L_XN}, v10")
    a(f"ds_write_b32 v10, v{DT}")
    a(f"v_lshlrev_b32 v10, 4, {vRow}")
    a(f"v_add_u32 v10, {L_XN}, v10")
    for t in range(4): a(f"ds_read_b128 v[{QF+4*t}:{QF+4*t+3}], v10 offset:{64*t}")
    vH, vMA, vC0 = "v138", "v139", "v140"
    a("s_waitcnt vmcnt(0)")
    a(f"v_lshlrev_b32 {vH}, 16, v8")
    a(f"v_subrev_f32 {vH}, {sM1}, {vH}"); rbf(vH)
    a(f"v_mul_f32 {vH}, {sD1}, {vH}"); rbf(vH)
    a(f"v_subrev_f32 {vH}, {sM2}, {vH}"); rbf(vH)
    a(f"v_mul_f32 {vH}, {sD2}, {vH}"); rbf(vH)
    for s_ in range(2):
        b = MX + 5*s_
        a(f"v_lshlrev_b32 v{b}, 16, v{b+1}"); a(f"v_and_b32 v{b+1}, {sHI}, v{b+1}")
        a(f"v_lshlrev_b32 v{b+2}, 16, v{b+3}"); a(f"v_and_b32 v{b+3}, {sHI}, v{b+3}")
    kb = math.sqrt(2.0/math.pi)
    a(f"v_mov_b32 {vC0}, {hex(f2u(-2*kb*l2e))}")
    a(f"s_mov_b32 {sC1}, {hex(f2u(-2*kb*l2e*0.044715))}")
    a(f"v_mov_b32 {vMA}, 0")
    a(f"s_mov_b32 {sL2E}, {hex(f2u(l2e))}")
    a(f"s_mov_b32 {sK}, {hex(f2u(128 ** -0.5))}")
    vKA, vSA, vDA, vM, vLs, vDn = "v4", "v5", "v6", "v7", "v8", "v9"
    a(f"v_xor_b32 {vKA}, {vRow}, {vCol}")
    a(f"v_lshlrev_b32 {vKA}, 4, {vKA}")
    a(f"v_lshl_add_u32 {vKA}, {vCol}, 8, {vKA}")
    a(f"s_lshl_b32 {sT[0]}, {sW}, 12")
    a(f"v_add_u32 {vKA}, {sT[0]}, {vKA}")
    a(f"s_lshl_b32 {sT[0]}, {sW}, 6")
    a(f"s_add_u32 {sT[0]}, {sT[0]}, {L_SC}")
    a(f"v_lshl_add_u32 {vSA}, {vCol}, 2, {sT[0]}")
    a(f"s_lshl_b32 {sT[0]}, {sW}, 2")
    a(f"v_add_u32 {vDA}, {sT[0]}, {vF}")
    a(f"v_mov_b32 {vM}, 0xff7fffff")
    a(f"v_mov_b32 {vLs}, 0")
    a(f"v_mov_b32 {vDn}, 0")
    a(f"s_mov_b32 {sG}, {sW}")
    a(f"s_mov_b32 {sR}, 0")
    a(f"s_lshl_b32 {sT[0]}, {sH}, 17")
    a(f"s_lshl_b32 {sT[1]}, {sW}, 14")
    a(f"s_add_u32 {sT[0]}, {sT[0]}, {sT[1]}")
    a(f"s_add_u32 s36, s12, {sT[0]}")
    a(f"s_addc_u32 s37, s13, 0")
    a(f"s_mov_b32 s38, 16384")
    a(f"s_mul_i32 {sOff}, {sW}, {WOS}")
    a(f"s_add_u32 {sOff}, {sOff}, {WOR}")
    stamp(3)
    a("L_k:")
    for t in range(1, 4): a(f"v_xor_b32 v{10+t}, {64*t}, {vKA}")
    spin(0, "s_cmp_gt_i32", sG, "v10", sT[0])
    a(f"ds_read_b128 v[{DT}:{DT+3}], {vKA}")
    for t in range(1, 4): a(f"ds_read_b128 v[{DT+4*t}:{DT+4*t+3}], v{10+t}")
    a(f"v_add_u32 {vDn}, 1, {vDn}")
    a(f"v_add_u32 {vKA}, 0x8000, {vKA}")
    a(f"v_and_b32 {vKA}, 0x1ffff, {vKA}")
    for t in range(4):
        a(f"s_waitcnt lgkmcnt({3-t})")
        a(f"v_mfma_f32_16x16x32_bf16 v[16:19], v[{QF+4*t}:{QF+4*t+3}], v[{DT+4*t}:{DT+4*t+3}], {'0' if t == 0 else 'v[16:19]'}")
    a(f"ds_write_b32 {vDA}, {vDn} offset:32")
    a(f"s_add_u32 {sG}, {sG}, 8")
    a(f"s_nop 5")
    rbf("v16")
    a(f"v_mul_f32 v16, {sK}, v16")
    rbf("v16")
    a(f"ds_write_b32 {vSA}, v16")
    a(f"v_max_f32 v17, {vM}, v16")
    a(f"v_sub_f32 v18, {vM}, v17")
    a(f"v_sub_f32 v16, v16, v17")
    a(f"v_mul_f32 v18, {sL2E}, v18")
    a(f"v_mul_f32 v16, {sL2E}, v16")
    a(f"v_exp_f32 v18, v18")
    a(f"v_exp_f32 v16, v16")
    a(f"v_mov_b32 {vM}, v17")
    a(f"v_add_u32 {vSA}, 512, {vSA}")
    a(f"v_fma_f32 {vLs}, {vLs}, v18, v16")
    a(f"s_cmp_lg_u32 {sR}, {sOff}")
    a(f"s_cbranch_scc1 L_nowo")
    a(f"v_lshlrev_b32 v10, 4, {vL}")
    for j in range(16):
        if j % 4 == 0: a(f"s_movk_i32 {sT[1]}, {1024*j}")
        a(f"buffer_load_dwordx4 {wslot(j)}, v10, {R}, {sT[1]} offen offset:{1024*(j%4)} {WP}")
    a("L_nowo:")
    a(f"s_cmp_lt_u32 {sR}, 16")
    a(f"s_cbranch_scc1 L_nomix")
    BC = "row_newbcast:0 " + FULL
    for s_ in range(2):
        b = MX + 5*s_
        a(f"v_mul_f32_dpp v16, v{b}, {vH} {BC}")
        a(f"v_mul_f32_dpp v17, v{b+1}, {vH} {BC}")
        a(f"v_cvt_pk_bf16_f32 v17, v16, v17")
        a(f"v_lshlrev_b32 v16, 16, v17"); a(f"v_and_b32 v17, {sHI}, v17")
        a(f"v_add_f32_dpp v16, v{b+2}, v16 {BC}")
        a(f"v_add_f32_dpp v17, v{b+3}, v17 {BC}")
        a(f"v_cvt_pk_bf16_f32 v17, v16, v17")
        a(f"v_lshlrev_b32 v16, 16, v17"); a(f"v_and_b32 v17, {sHI}, v17")
        a(f"v_mul_f32 v18, v16, v16"); a(f"v_mul_f32 v19, v17, v17")
        a(f"v_fma_f32 v18, v18, {sC1}, {vC0}"); a(f"v_fma_f32 v19, v19, {sC1}, {vC0}")
        a(f"v_mul_f32 v18, v18, v16"); a(f"v_mul_f32 v19, v19, v17")
        a(f"v_exp_f32 v18, v18"); a(f"v_exp_f32 v19, v19")
        a(f"v_mov_b32_dpp v{b}, v{b} row_ror:15 {FULL}")
        a(f"v_add_f32 v18, 1.0, v18"); a(f"v_add_f32 v19, 1.0, v19")
        a(f"v_rcp_f32 v18, v18"); a(f"v_rcp_f32 v19, v19")
        a(f"v_mov_b32_dpp v{b+1}, v{b+1} row_ror:15 {FULL}")
        a(f"v_mul_f32 v18, v18, v16"); a(f"v_mul_f32 v19, v19, v17")
        a(f"v_cvt_pk_bf16_f32 v18, v18, v19")
        a(f"v_mov_b32_dpp v{b+2}, v{b+2} row_ror:15 {FULL}")
        a(f"v_mov_b32_dpp v{b+3}, v{b+3} row_ror:15 {FULL}")
        a(f"v_dot2c_f32_bf16_dpp {vMA}, v{b+4}, v18 {BC}")
        a(f"v_mov_b32_dpp v{b+4}, v{b+4} row_ror:15 {FULL}")
    a("L_nomix:")
    a(f"s_add_u32 {sR}, {sR}, 1")
    a(f"s_cmp_lt_u32 {sR}, 32")
    a(f"s_cbranch_scc1 L_k")
    if STAMP: pass
    a(f"v_mov_b32 v16, {vM}")
    allreduce("v_max_f32", ["v16"], 4)
    a(f"v_sub_f32 v17, {vM}, v16")
    a(f"v_mul_f32 v17, {sL2E}, v17")
    a(f"v_exp_f32 v17, v17")
    a(f"s_lshl_b32 {sT[0]}, {sW}, 3")
    a(f"v_add_u32 v18, {sT[0]}, {vF}")
    a(f"v_mul_f32 v17, v17, {vLs}")
    allreduce("v_add_f32", ["v17"], 4)
    a(f"ds_write_b64 v18, v[16:17] offset:64")
    rows_sum(vMA, "v19")
    a(f"s_lshl_b32 {sT[0]}, {sW}, 6")
    a(f"s_add_u32 {sT[0]}, {sT[0]}, {L_BP}")
    a(f"v_lshl_add_u32 v19, {vCol}, 2, {sT[0]}")
    a(f"ds_write_b32 v19, {vMA}")
    a(f"v_mov_b32 v10, 1")
    a("s_waitcnt lgkmcnt(0)")
    a(f"s_mov_b64 exec, 1")
    a(f"ds_add_u32 {vF}, v10 offset:8")
    a(f"s_mov_b64 exec, -1")
    a(f"s_mov_b32 {sT[0]}, 0x05040100")
    a(f"s_mov_b32 {sT[1]}, 0x07060302")
    a("s_waitcnt vmcnt(0)")
    for p in range(8):
        for i in range(4):
            r0 = WREG + 8*p + i; r1 = r0 + 4
            a(f"v_perm_b32 v16, v{r1}, v{r0}, {sT[0]}")
            a(f"v_perm_b32 v{r1}, v{r1}, v{r0}, {sT[1]}")
            a(f"v_mov_b32 v{r0}, v16")
    spin(8, "s_cmp_ge_u32", 8, "v10", sT[0])
    a(f"v_and_b32 v18, 7, {vL}")
    a(f"v_lshl_add_u32 v18, v18, 3, {vF}")
    a(f"ds_read_b64 v[16:17], v18 offset:64")
    a(f"v_lshlrev_b32 v19, 2, {vL}")
    a(f"v_add_u32 v18, {L_BP}, v19")
    a(f"ds_read_b32 v20, v18")
    a(f"ds_read_b32 v21, v18 offset:256")
    a("s_waitcnt lgkmcnt(0)")
    a(f"v_mov_b32 {vM}, v16")
    allreduce("v_max_f32", [vM], 3)
    a(f"v_sub_f32 v16, v16, {vM}")
    a(f"v_mul_f32 v16, {sL2E}, v16")
    a(f"v_exp_f32 v16, v16")
    a(f"v_add_f32 v20, v20, v21")
    a(f"v_mul_f32 {vLs}, v16, v17")
    allreduce("v_add_f32", [vLs], 3)
    a(f"v_rcp_f32 {vLs}, {vLs}")
    rows_sum("v20", "v21")
    rbf("v20")
    a(f"s_lshl_b32 {sB2}, {sB2}, 16")
    a(f"v_add_f32 v20, {sB2}, v20")
    rbf("v20")
    a(f"s_lshl_b32 {sT[0]}, s2, 6")
    a(f"s_add_u32 {sT[0]}, {sT[0]}, 0x80000")
    a(f"s_add_u32 s56, s28, {sT[0]}")
    a(f"s_addc_u32 s57, s29, 0")
    a(f"s_cmp_eq_u32 {sW}, 0")
    a(f"s_cselect_b32 s58, 64, 0")
    a(f"buffer_store_dword v20, v19, {W2}, 0 offen sc1")
    a(f"s_lshl_b32 {sT[0]}, {sW}, 12")
    a(f"v_lshl_add_u32 {vKA}, {vL}, 4, {sT[0]}")
    a(f"v_and_b32 {vSA}, 3, {vL}")
    a(f"v_lshl_add_u32 {vSA}, {vSA}, 2, {vRow}")
    a(f"s_lshl_b32 {sT[0]}, {sW}, 6")
    a(f"s_add_u32 {sT[0]}, {sT[0]}, {L_SC}")
    a(f"v_lshl_add_u32 {vSA}, {vSA}, 2, {sT[0]}")
    for i in range(8): a(f"v_mov_b32 {ACC[i]}, 0")
    a(f"s_mov_b32 {sR}, 0")
    stamp(4)
    a("L_v:")
    a(f"ds_read_b32 v16, {vSA}")
    a(f"v_add_u32 {vSA}, 512, {vSA}")
    a(f"v_add_u32 {vDn}, 1, {vDn}")
    a("s_waitcnt lgkmcnt(0)")
    a(f"v_sub_f32 v16, v16, {vM}")
    a(f"v_mul_f32 v16, {sL2E}, v16")
    a(f"v_exp_f32 v16, v16")
    a(f"s_add_u32 {sR}, {sR}, 1")
    a(f"v_mul_f32 v16, v16, {vLs}")
    a(f"v_cvt_pk_bf16_f32 v16, v16, v16")
    a(f"v_lshrrev_b32 v17, 16, v16")
    a(f"v_and_b32 v16, {sHI}, v16")
    spin(0, "s_cmp_gt_i32", sG, "v10", sT[0])
    for t in range(4): a(f"ds_read_b128 v[{DT+4*t}:{DT+4*t+3}], {vKA} offset:{1024*t}")
    a(f"v_add_u32 {vKA}, 0x8000, {vKA}")
    a(f"v_and_b32 {vKA}, 0x1ffff, {vKA}")
    a(f"s_add_u32 {sG}, {sG}, 8")
    for j in range(4):
        a(f"s_waitcnt lgkmcnt({3-j})")
        if j == 3: a(f"ds_write_b32 {vDA}, {vDn} offset:32")
        for i in range(4):
            a(f"v_dot2c_f32_bf16_dpp {ACC[2*i]}, v17, v{DT+4*j+i} quad_perm:[{j},{j},{j},{j}] {FULL}")
            a(f"v_dot2c_f32_bf16_dpp {ACC[2*i+1]}, v16, v{DT+4*j+i} quad_perm:[{j},{j},{j},{j}] {FULL}")
    a(f"s_cmp_lt_u32 {sR}, 32")
    a(f"s_cbranch_scc1 L_v")
    stamp(5)
    a("s_nop 0")
    rows_reduce8("v15")
    a(f"v_and_b32 v10, 7, {vL}")
    a(f"v_mul_u32_u24 v10, 528, v10")
    a(f"v_and_b32 v11, 0x38, {vL}")
    a(f"s_lshl_b32 {sT[0]}, {sW}, 6")
    a(f"s_add_u32 {sT[0]}, {sT[0]}, {L_QP}")
    a(f"v_add3_u32 v10, v10, v11, {sT[0]}")
    a("s_waitcnt lgkmcnt(0)")
    a("s_barrier")
    a(f"ds_read_b64 v[16:17], v10")
    for i in range(8): a(f"v_mov_b32 {ACC[i]}, 0")
    a("s_waitcnt lgkmcnt(0)")
    allreduce("v_add_f32", ["v16", "v17"], 3)
    a("v_cvt_pk_bf16_f32 v16, v16, v17")
    a("s_nop 0")
    for p in range(8): a(f"v_readlane_b32 {sT[p]}, v16, {8*p}")
    for p in range(8):
        for i in range(4):
            a(f"v_dot2c_f32_bf16 {ACC[2*i]}, {sT[p]}, v{WREG+8*p+i}")
            a(f"v_dot2c_f32_bf16 {ACC[2*i+1]}, {sT[p]}, v{WREG+8*p+4+i}")
    a(f"s_lshl_b32 {sT[0]}, {sW}, 11")
    a(f"v_lshl_add_u32 v10, {vL}, 5, {sT[0]}")
    a(f"s_lshl_b32 {sT[0]}, {sW}, 8")
    a(f"v_lshl_add_u32 v11, {vL}, 2, {sT[0]}")
    a(f"ds_write_b128 v10, v[24:27] offset:{L_Y}")
    a(f"ds_write_b128 v10, v[28:31] offset:{L_Y+16}")
    a(f"s_lshl_b32 {sT[0]}, s2, 11")
    a(f"s_add_u32 s56, s28, {sT[0]}")
    a(f"s_addc_u32 s57, s29, 0")
    a(f"s_mov_b32 s58, 2048")
    a("s_waitcnt lgkmcnt(0)")
    a("s_barrier")
    for i in range(8): a(f"ds_read_b32 v{16+i}, v11 offset:{L_Y + 2048*i}")
    a("s_waitcnt lgkmcnt(0)")
    for st in (4, 2, 1):
        for i in range(st): a(f"v_add_f32 v{16+i}, v{16+i}, v{16+st+i}")
    a(f"buffer_store_dword v16, v11, {W2}, 0 offen sc1")
    a("s_waitcnt vmcnt(0)")
    a("s_barrier")
    stamp(6)
    a(f"s_cmp_lg_u32 {sW}, 0")
    a(f"s_cbranch_scc1 L_wait")
    a(f"s_lshl_b32 {sT[0]}, {sB}, 2")
    a(f"v_mov_b32 v16, {sT[0]}")
    a(f"v_mov_b32 v17, 1")
    a(f"s_mov_b64 exec, 1")
    a(f"global_atomic_add v18, v16, v17, s[26:27] sc0 sc1")
    a("s_waitcnt vmcnt(0)")
    a(f"ds_write_b32 {vF}, v18 offset:12")
    a(f"s_mov_b64 exec, -1")
    a("s_waitcnt lgkmcnt(0)")
    a("L_wait:")
    a("s_barrier")
    a(f"ds_read_b32 v18, {vF} offset:12")
    a("s_waitcnt lgkmcnt(0)")
    a(f"v_readfirstlane_b32 {sT[0]}, v18")
    stamp(7)
    a(f"s_cmp_lg_u32 {sT[0]}, 31")
    a(f"s_cbranch_scc1 L_fin")
    a(f"s_lshl_b32 {sT[0]}, {sB}, 16")
    a(f"s_add_u32 s56, s28, {sT[0]}")
    a(f"s_addc_u32 s57, s29, 0")
    a(f"s_mov_b32 s58, 65536")
    a(f"s_lshl_b32 {sT[0]}, {sW}, 8")
    a(f"v_lshl_add_u32 v10, {vCol}, 4, {sT[0]}")
    a(f"v_lshl_add_u32 v10, {vRow}, 14, v10")
    for i in range(8):
        if i % 2 == 0: a(f"s_movk_i32 {sT[1]}, {2048*i}")
        a(f"buffer_load_dwordx4 v[{32+4*i}:{35+4*i}], v10, {W2}, {sT[1]} offen offset:{2048*(i%2)} sc1")
    a(f"s_lshl_b32 {sT[0]}, {sW}, 6")
    a(f"v_lshl_add_u32 v11, {vCol}, 2, {vRow}")
    a(f"v_add_u32 v11, {sT[0]}, v11")
    a(f"v_lshlrev_b32 v12, 1, v11")
    a(f"global_load_ushort v13, v12, s[4:5]")
    a(f"s_lshl_b32 {sT[0]}, {sB}, 11")
    a(f"s_add_u32 {sT[0]}, {sT[0]}, 0x80000")
    a(f"v_lshl_add_u32 v11, v11, 2, {sT[0]}")
    a(f"global_load_dword v14, v11, s[28:29] sc1")
    a("s_waitcnt vmcnt(2)")
    for st in (16, 8, 4):
        for i in range(st): a(f"v_add_f32 v{32+i}, v{32+i}, v{32+st+i}")
    a("s_nop 0")
    a("v_permlane32_swap_b32 v32, v34")
    a("v_permlane32_swap_b32 v33, v35")
    a("v_add_f32 v32, v32, v34")
    a("v_add_f32 v33, v33, v35")
    a("s_nop 1")
    a("v_permlane16_swap_b32 v32, v33")
    a("v_add_f32 v16, v32, v33")
    rbf("v16")
    a("s_waitcnt vmcnt(0)")
    a("v_lshlrev_b32 v13, 16, v13")
    a("v_add_f32 v16, v13, v16")
    rbf("v16")
    a("v_add_f32 v16, v16, v14")
    a("v_cvt_pk_bf16_f32 v16, v16, v16")
    a(f"s_lshl_b32 {sT[0]}, {sB}, 10")
    a(f"v_add_u32 v12, {sT[0]}, v12")
    a(f"global_store_short v12, v16, s[24:25]")
    a("L_fin:")
    if o.get("pin", 0):
        a("L_pin:")
        a("s_memrealtime s[62:63]")
        a("s_waitcnt lgkmcnt(0)")
        a("s_sub_u32 s62, s62, s60")
        a(f"s_cmp_lt_u32 s62, {o['pin']}")
        a("s_cbranch_scc1 L_pin")
    stamp(8)
    if STAMP == 1:
        a("s_waitcnt lgkmcnt(0)")
        a(f"s_mul_i32 {sT[0]}, s2, 9")
        a(f"s_add_u32 {sT[0]}, {sT[0]}, {sW}")
        a(f"s_add_u32 {sT[0]}, {sT[0]}, 1")
        a(f"s_lshl_b32 {sT[0]}, {sT[0]}, 7")
        a(f"s_add_u32 {sT[0]}, {sT[0]}, 0x100000")
        a(f"v_mov_b32 v16, 0")
        for i in range(18): a(f"v_writelane_b32 v16, s{60+i}, {i}")
        a(f"s_getreg_b32 {sT[1]}, hwreg(HW_REG_XCC_ID)")
        a(f"s_getreg_b32 {sT[2]}, hwreg(HW_REG_HW_ID)")
        a(f"v_writelane_b32 v16, {sT[1]}, 18")
        a(f"v_writelane_b32 v16, {sT[2]}, 19")
        a(f"v_writelane_b32 v16, {sSpin}, 20")
        a(f"v_lshl_add_u32 v17, {vL}, 2, {sT[0]}")
        a(f"s_mov_b64 exec, 0xffffffff")
        a(f"global_store_dword v17, v16, s[28:29]")
    if STAMP == 2:
        a("s_waitcnt lgkmcnt(0)")
        a(f"s_cmp_gt_i32 {sW}, 0")
        a("s_cbranch_scc1 L_end")
        a(f"v_mov_b32 v16, 0")
        a(f"s_not_b32 {sT[1]}, s60")
        a(f"v_writelane_b32 v16, {sT[1]}, 0")
        for i in range(6): a(f"v_writelane_b32 v16, s{66+2*i}, {i+1}")
        a(f"s_not_b32 {sT[1]}, s70")
        a(f"v_writelane_b32 v16, {sT[1]}, 7")
        a(f"v_lshlrev_b32 v17, 2, {vL}")
        a(f"s_mov_b64 exec, 0xff")
        a(f"global_atomic_umax v17, v16, s[26:27] offset:32 sc1")
    a("L_end:")
    a("s_endpgm")

    head = open("cdna_kernels/%s.s.ref" % NAME).read().split("; Override launch")[0]
    out = head + f"; @launch grid=(256,1,1) block=(576,1,1) lds={LDS_BYTES}\n"
    out += '.amdgcn_target "amdgcn-amd-amdhsa--gfx950"\n.text\n'
    out += f".globl {NAME}_kernel\n.p2align 8\n.type {NAME}_kernel,@function\n" + a.text()
    out += f""".section .rodata,"a"
.p2align 6
.amdhsa_kernel {NAME}_kernel
  .amdhsa_next_free_vgpr 144
  .amdhsa_next_free_sgpr 80
  .amdhsa_accum_offset 144
  .amdhsa_group_segment_fixed_size 0
  .amdhsa_kernarg_size 104
  .amdhsa_user_sgpr_count 2
  .amdhsa_user_sgpr_kernarg_segment_ptr 1
  .amdhsa_system_sgpr_workgroup_id_x 1
  .amdhsa_float_denorm_mode_32 3
.end_amdhsa_kernel
"""
    return out
if __name__ == "__main__":
    opts = {}
    for kv in sys.argv[2:]:
        k, v = kv.split("=")
        try: opts[k] = int(v, 0)
        except ValueError: opts[k] = v.replace("+", " ")
    open(sys.argv[1], "w").write(gen(opts))
```

```python
import sys, struct, math
NAME = "parallel_sum__mha_block_cached__mixer_token_mlp__decode"
def f2u(x): return struct.unpack("<I", struct.pack("<f", x))[0]
class Asm:
    def __init__(self): self.lines = []
    def __call__(self, s):
        s = s.strip()
        self.lines.append(s if s.endswith(":") else "    " + s)
    def c(self, s): self.lines.append("    ; " + s)
    def text(self): return "\n".join(self.lines) + "\n"

def gen(o):
    D = o.get("d", 20)
    STAMP = o.get("stamp", 0)
    ROT = o.get("rot", 1)
    BOUND = o.get("bound", 1)
    WOR = o.get("wor", 6)
    WQP = o.get("wqp", 0)
    SLEEP = o.get("sleep", 0)
    WP = o.get("wp", "")
    WOS = o.get("wos", 1)
    TAIL = o.get("tail", 3)
    WOP = o.get("wop", WP)
    SPF = o.get("spf", 0)
    WOT = o.get("wot", 1)
    WOM = o.get("wom", 3); WOD = o.get("wod", 2)
    assert WOR + 7 * WOS < 15 and WOR + 15 * WOM // WOD < 32
    sE = "s3"
    a = Asm()
    FULL = "row_mask:0xf bank_mask:0xf"
    l2e = 1.0 / math.log(2.0)
    sB, sH, sW = "s30", "s31", "s32"
    sOff, sR, sG = "s33", "s34", "s35"
    R = "s[36:39]"
    sM1, sD1, sM2, sD2 = "s40", "s41", "s42", "s43"
    sT = [f"s{44+i}" for i in range(8)]
    sHI, sB2, sSpin, sK = "s52", "s53", "s54", "s55"
    W2 = "s[56:59]"
    sL2E, sC1 = "s14", "s15"
    L_SC = 131072
    L_QP = L_SC + 16384
    L_XN = L_QP + 4352
    L_BP = L_XN + 1024
    L_FL = L_BP + 512
    LDS_BYTES = L_FL + 128
    L_Y = 0
    vL, vRow, vCol, vF = "v0", "v1", "v2", "v3"
    WREG = 64
    QF = 48
    DT = 32
    ACC = [f"v{24+i}" for i in range(8)]
    def wslot(j): return f"v[{WREG+4*j}:{WREG+4*j+3}]"
    nlab = [0]
    def lab(p):
        nlab[0] += 1; return f"L_{p}{nlab[0]}"
    TS = o.get("ts", 0)
    def tstamp(i):
        if TS: a(f"s_memrealtime s[{60+2*i}:{61+2*i}]")
    def stamp(i):
        if STAMP in (1, 2) or (STAMP == 3 and i == 0): a(f"s_memrealtime s[{60+2*i}:{61+2*i}]")
    def wave_reduce(op, v, sdst):
        for ctl in ["quad_perm:[1,0,3,2] "+FULL, "quad_perm:[2,3,0,1] "+FULL, "row_half_mirror "+FULL, "row_mirror "+FULL,
                    "row_bcast:15 row_mask:0xa bank_mask:0xf", "row_bcast:31 row_mask:0xc bank_mask:0xf"]:
            a("s_nop 1"); a(f"{op}_dpp {v}, {v}, {v} {ctl}")
        a("s_nop 1"); a(f"v_readlane_b32 {sdst}, {v}, 63")
    def allreduce(op, regs, steps):
        for ctl in ["quad_perm:[1,0,3,2]", "quad_perm:[2,3,0,1]", "row_half_mirror", "row_mirror"][:steps]:
            if len(regs) < 3: a(f"s_nop {2-len(regs)}")
            for v in regs: a(f"{op}_dpp {v}, {v}, {v} {ctl} {FULL}")
    def rbf(v):
        a(f"v_cvt_pk_bf16_f32 {v}, {v}, {v}"); a(f"v_and_b32 {v}, {sHI}, {v}")
    def spin(off, cmp, val, tmpv, tmps):
        l0, l1 = lab("sp"), lab("go")
        a(f"{l0}:")
        a(f"ds_read_b32 {tmpv}, {vF} offset:{off}")
        a("s_waitcnt lgkmcnt(0)")
        a(f"v_readfirstlane_b32 {tmps}, {tmpv}")
        a(f"{cmp} {tmps}, {val}")
        if BOUND or SLEEP:
            a(f"s_cbranch_scc1 {l1}")
            if SLEEP: a(f"s_sleep {SLEEP}")
            if BOUND:
                a(f"s_sub_u32 {sSpin}, {sSpin}, 1")
                a(f"s_cbranch_scc1 L_end")
            a(f"s_branch {l0}")
            a(f"{l1}:")
        else:
            a(f"s_cbranch_scc0 {l0}")
    def rows_sum(v, t):
        a(f"v_mov_b32 {t}, {v}"); a("s_nop 1"); a(f"v_permlane32_swap_b32 {v}, {t}"); a(f"v_add_f32 {v}, {v}, {t}")
        a(f"v_mov_b32 {t}, {v}"); a("s_nop 1"); a(f"v_permlane16_swap_b32 {v}, {t}"); a(f"v_add_f32 {v}, {v}, {t}")
    def rows_reduce8(vaddr):
        for i in range(4): a(f"v_permlane32_swap_b32 {ACC[i]}, {ACC[i+4]}")
        for i in range(4): a(f"v_add_f32 {ACC[i]}, {ACC[i]}, {ACC[i+4]}")
        a("s_nop 0")
        for i in range(2): a(f"v_permlane16_swap_b32 {ACC[i]}, {ACC[i+2]}")
        for i in range(2): a(f"v_add_f32 {ACC[i]}, {ACC[i]}, {ACC[i+2]}")
        a(f"ds_write_b64 {vaddr}, v[24:25]")

    def probe(tag):
        PR = o.get("probe", 0)
        if not PR: return
        PP = o.get("pp", 4)
        a(f"s_and_b32 {sT[1]}, {sR}, {PP-1}")
        a(f"s_or_b32 {sT[1]}, {sT[1]}, {sW}")
        a(f"s_cbranch_scc1 L_np{tag}")
        a(f"v_mov_b32 v147, 1")
        if PR in (1, 2):
            a(f"v_mov_b32 v146, 0x200000")
            a(f"s_mov_b64 exec, 1")
            a(f"global_atomic_add v148, v146, v147, s[28:29] sc0 {'sc1' if PR == 1 else ''}")
            a(f"s_mov_b64 exec, -1")
        elif PR == 3:
            a(f"s_add_u32 {sT[1]}, s2, 0x200000")
            a(f"v_mov_b32 v146, {sT[1]}")
            a(f"s_mov_b64 exec, 1")
            a(f"global_store_byte v146, v147, s[28:29] sc1")
            a(f"s_mov_b64 exec, -1")
            a(f"v_lshlrev_b32 v146, 2, {vL}")
            a(f"v_add_u32 v146, 0x200000, v146")
            a(f"global_load_dword v148, v146, s[28:29] sc1")
        elif PR == 4:
            a(f"s_lshl_b32 {sT[1]}, s2, 8")
            a(f"s_add_u32 {sT[1]}, {sT[1]}, 0x200000")
            a(f"v_mov_b32 v146, {sT[1]}")
            a(f"s_mov_b64 exec, 1")
            a(f"global_store_dword v146, v147, s[28:29] sc1")
            a(f"s_mov_b64 exec, {hex((1 << o.get('np', 16)) - 1)}")
            a(f"v_mul_u32_u24 v146, {256 * 17}, {vL}")
            a(f"v_add_u32 v146, {sT[1]}, v146")
            a(f"v_and_b32 v146, 0x20ffff, v146")
            a(f"global_load_dword v148, v146, s[28:29] sc1")
            a(f"s_mov_b64 exec, -1")
        elif PR == 5:
            a(f"s_lshl_b32 {sT[1]}, {sB}, 12")
            a(f"s_add_u32 {sT[1]}, {sT[1]}, 0x200000")
            a(f"v_mov_b32 v146, {sT[1]}")
            a(f"s_mov_b64 exec, 1")
            a(f"global_atomic_add v148, v146, v147, s[28:29] sc0 sc1")
            a(f"s_mov_b64 exec, -1")
        elif PR in (6, 7):
            if PR == 6: a(f"s_mov_b32 {sT[1]}, 0x200000")
            else:
                a(f"s_lshl_b32 {sT[1]}, {sB}, 12")
                a(f"s_add_u32 {sT[1]}, {sT[1]}, 0x200000")
            a(f"s_mov_b32 {sT[2]}, 1")
            a(f"s_atomic_add {sT[2]}, s[28:29], {sT[1]} glc")
            a("s_waitcnt lgkmcnt(0)")
        a(f"L_np{tag}:")
    a(f"{NAME}_kernel:")
    a("s_cmp_ge_u32 s2, 256")
    a("s_cbranch_scc1 L_end")
    a("s_load_dwordx16 s[4:19], s[0:1], 0")
    a("s_load_dwordx8 s[20:27], s[0:1], 64")
    a("s_load_dwordx2 s[28:29], s[0:1], 96")
    stamp(0)
    if o.get("map", 0) == 1:
        a("s_and_b32 s3, s2, 7")
        a("s_lshl_b32 s3, s3, 2")
        a("s_bfe_u32 s44, s2, 0x20003")
        a("s_or_b32 s3, s3, s44")
        a("s_and_b32 s2, s2, 0xe0")
        a("s_or_b32 s2, s2, s3")
    a(f"v_lshrrev_b32 v4, 6, v0")
    a(f"v_and_b32 {vL}, 63, v0")
    a(f"v_readfirstlane_b32 {sW}, v4")
    a(f"v_mov_b32 {vF}, {L_FL}")
    a(f"v_lshrrev_b32 {vRow}, 4, {vL}")
    a(f"v_and_b32 {vCol}, 15, {vL}")
    a(f"v_lshl_add_u32 v4, {vCol}, 2, {vF}")
    a(f"v_mov_b32 v5, 0")
    a(f"ds_write_b32 v4, v5")
    a(f"s_mov_b32 s39, 0x20000")
    a(f"s_mov_b32 {sSpin}, 0x100000")
    a(f"s_lshl_b32 {sT[0]}, s2, 20")
    a(f"s_sub_u32 {sW}, {sW}, 1")
    a(f"s_cmp_lg_u32 {sW}, -1")
    a("s_cbranch_scc1 L_cons")

    a("s_setprio 3")
    a(f"s_mov_b32 s38, 0x100000")
    for j in range(4):
        a(f"v_xor_b32 v{4+j}, {vCol}, {vRow}")
        if j: a(f"v_xor_b32 v{4+j}, {4*j}, v{4+j}")
        a(f"v_lshlrev_b32 v{4+j}, 4, v{4+j}")
        a(f"v_lshl_add_u32 v{4+j}, {vRow}, 8, v{4+j}")
    a("s_waitcnt lgkmcnt(0)")
    a(f"s_add_u32 s36, s6, {sT[0]}")
    a(f"s_addc_u32 s37, s7, 0")
    js = (D - 1) % 4
    RS = o.get("rs", 1); DS = o.get("ds", D)
    a(f"s_mov_b32 {sOff}, 0")
    a(f"s_mov_b32 m0, 0")
    pubd = 0
    for i in range(32 * RS):
        if i == min(DS, o.get("bar", 64)): a("s_barrier")
        if i >= DS:
            a(f"s_waitcnt vmcnt({DS-1})")
            n = (i - DS + 1) // 4
            if n > pubd:
                pubd = n
                a(f"v_mov_b32 v8, {n}")
                a(f"ds_write_b32 {vF}, v8")
        elif i % 4 == 0: a("s_nop 0")
        a(f"buffer_load_dwordx4 v{4+i%4}, {R}, {sOff} offen offset:{1024*(i%4)} nt lds")
        if i % 4 == 3:
            a(f"s_add_u32 {sOff}, {sOff}, 4096")
            a(f"s_add_u32 m0, m0, 4096")
    assert 1 <= RS <= 3 and DS < 32 * RS
    a(f"s_add_u32 s8, s8, {sT[0]}")
    a(f"s_addc_u32 s9, s9, 0")
    a(f"v_mov_b32 v8, {(32*RS + js - D - 3)//4}")
    a(f"v_and_b32 v9, 7, {vL}")
    a(f"v_lshl_add_u32 v9, v9, 2, {vF}")
    a(f"v_mov_b32 v10, 0")
    a(f"v_mov_b32 v11, {RS-3}")
    a(f"s_mov_b32 {sR}, {RS}")
    FB = o.get("fb", 0); sMask = "s40"
    if FB:
        a(f"v_mov_b32 v13, 0x200000")
        a(f"s_bitcmp1_b32 s2, 3")
        a(f"s_cselect_b32 {sMask}, {o.get('m1', 0)}, {o.get('m0', 0)}")
    a("L_ld:")
    a("s_waitcnt lgkmcnt(0)")
    a(f"v_cmp_lt_i32 vcc, v10, v11")
    a(f"s_cbranch_vccnz L_ldslow")
    a("L_ldgo:")
    for g in range(8):
        if FB:
            a(f"s_bitcmp1_b32 {sMask}, {g}")
            a(f"s_cbranch_scc0 L_nd{g}")
            a(f"buffer_load_dword v12, v13, {R}, 0 offen")
            a(f"L_nd{g}:")
        for j in range(4):
            a(f"s_waitcnt vmcnt({D-1})")
            if j == js:
                a("v_add_u32 v8, 1, v8")
                a(f"ds_write_b32 {vF}, v8")
            a(f"buffer_load_dwordx4 v{4+j}, {R}, {sOff} offen offset:{1024*j} nt lds")
        a(f"s_add_u32 {sOff}, {sOff}, 4096")
        a(f"s_add_u32 m0, m0, 4096")
        if g == 5: a(f"ds_read_b32 v10, v9 offset:32")
    a(f"s_and_b32 m0, m0, 0x1ffff")
    a(f"v_add_u32 v11, 1, v11")
    a(f"s_add_u32 {sR}, {sR}, 1")
    if STAMP == 1:
        for k, rr in zip((1,2,3,6,7), str(o.get("marks", "2,4,6,8,16")).split(",")):
            a(f"s_cmp_lg_u32 {sR}, {rr}")
            a(f"s_cbranch_scc1 L_mk{k}")
            a(f"s_memrealtime s[{60+2*k}:{61+2*k}]")
            a(f"L_mk{k}:")
    if STAMP == 3:
        for k, rr in enumerate(o.get("marks", "2,4,8,16,32,48").split(",")):
            a(f"s_cmp_lg_u32 {sR}, {rr}")
            a(f"s_cbranch_scc1 L_mk{k}")
            a(f"s_memrealtime s[{62+2*k}:{63+2*k}]")
            a(f"L_mk{k}:")
    a(f"s_cmp_lg_u32 {sR}, 32")
    a(f"s_cbranch_scc1 L_ldnv")
    a(f"s_mov_b32 s36, s8")
    a(f"s_mov_b32 s37, s9")
    a(f"s_mov_b32 {sOff}, 0")
    for j in range(4): a(f"v_lshlrev_b32 v{4+j}, 4, {vL}")
    stamp(4)
    a("L_ldnv:")
    if FB:
        a(f"s_cmp_eq_u32 {sR}, 63")
        a(f"s_cselect_b32 {sMask}, 0, {sMask}")
    a(f"s_cmp_lg_u32 {sR}, 64")
    a(f"s_cbranch_scc1 L_ld")
    pub = (2044 + js - D - 3)//4 + 1
    while pub < 512:
        pub += 1
        a(f"s_waitcnt vmcnt({2048 - 4*pub})")
        a("v_add_u32 v8, 1, v8")
        a(f"ds_write_b32 {vF}, v8")
    stamp(5)
    if STAMP == 3:
        a(f"s_memrealtime s[74:75]")
        a("s_waitcnt lgkmcnt(0)")
        a(f"s_cmp_lg_u32 s2, {o.get('swg', 5)}")
        a("s_cbranch_scc1 L_end")
        for i in range(8): a(f"v_writelane_b32 v16, s{60+2*i}, {i}")
        a(f"v_subrev_u32 v16, s60, v16")
        a(f"v_lshlrev_b32 v17, 2, {vL}")
        a(f"s_mov_b64 exec, 0xff")
        a(f"global_store_dword v17, v16, s[26:27] offset:32")
    elif STAMP:
        if STAMP == 2:
            for i in (1,2,3,6,7): a(f"s_mov_b64 s[{60+2*i}:{61+2*i}], 0")
        a("s_branch L_fin")
    a("s_endpgm")
    a("L_ldslow:")
    a(f"ds_read_b32 v10, v9 offset:32")
    if BOUND:
        a(f"s_sub_u32 {sSpin}, {sSpin}, 1")
        a(f"s_cbranch_scc1 L_end")
    a("s_branch L_ld")

    a("L_cons:")
    a(f"s_lshr_b32 {sB}, s2, 5")
    a(f"s_and_b32 {sH}, s2, 31")
    a(f"s_mov_b32 {sHI}, 0xffff0000")
    a(f"s_mov_b32 s59, 0x20000")
    a(f"s_lshl_b32 {sT[0]}, {sB}, 10")
    a(f"v_lshlrev_b32 v8, 4, {vL}")
    a("s_waitcnt lgkmcnt(0)")
    a(f"s_add_u32 s4, s4, {sT[0]}")
    a(f"s_addc_u32 s5, s5, 0")
    a(f"global_load_dwordx4 v[4:7], v8, s[4:5] {WP}")
    if o.get("ipf", 1):
        a(f"s_getpc_b64 s[46:47]")
        a("L_pc:")
        a(f"s_lshl_b32 {sT[0]}, {sW}, 10")
        a(f"v_add_u32 v9, {sT[0]}, v8")
        a(f"v_min_u32 v9, L_end-L_pc-12, v9")
        a(f"global_load_dwordx4 v[16:19], v9, s[46:47]")
    a("s_barrier")
    a(f"s_lshl_b32 {sT[0]}, {sW}, 19")
    a(f"s_lshl_b32 {sT[1]}, {sH}, 8")
    a(f"s_add_u32 {sT[0]}, {sT[0]}, {sT[1]}")
    a(f"s_add_u32 s36, s10, {sT[0]}")
    a(f"s_addc_u32 s37, s11, 0")
    a(f"s_mov_b32 s38, {o.get('wqn', 0x80000)}")
    a(f"v_lshlrev_b32 v9, 17, {vRow}")
    a(f"v_lshl_add_u32 v9, {vCol}, 4, v9")
    if ROT: a(f"s_lshl_b32 {sT[2]}, {sB}, 14")
    else: a(f"s_mov_b32 {sT[2]}, 0")
    def wqload(j):
        a(f"s_xor_b32 {sT[3]}, {sT[2]}, {j*8192}")
        a(f"buffer_load_dwordx4 {wslot(j)}, v9, {R}, {sT[3]} offen {WP}")
    NQ0 = WQP if WQP else 16
    for j in range(NQ0): wqload(j)
    a(f"s_waitcnt vmcnt({NQ0})")
    stamp(1)
    ln_start = len(a.lines)
    X = [f"v{16+i}" for i in range(8)]
    def unpack(src4):
        for i in range(4):
            a(f"v_lshlrev_b32 {X[2*i]}, 16, v{src4+i}")
            a(f"v_and_b32 {X[2*i+1]}, {sHI}, v{src4+i}")
    def ln(sM, sD, write):
        a(f"v_add_f32 v24, {X[0]}, {X[1]}")
        for i in range(2, 8): a(f"v_add_f32 v24, v24, {X[i]}")
        wave_reduce("v_add_f32", "v24", sT[0])
        a("s_nop 1")
        a(f"v_mov_b32 v25, {sT[0]}")
        a(f"v_mul_f32 v25, {hex(f2u(1.0/512))}, v25")
        a(f"v_sub_f32 v26, {X[0]}, v25")
        a(f"v_mul_f32 v24, v26, v26")
        for i in range(1, 8):
            a(f"v_sub_f32 v26, {X[i]}, v25")
            a(f"v_fmac_f32 v24, v26, v26")
        wave_reduce("v_add_f32", "v24", sT[0])
        rbf("v25")
        a(f"v_mov_b32 v24, {sT[0]}")
        a(f"v_mul_f32 v24, {hex(f2u(1.0/512))}, v24")
        rbf("v24")
        a(f"v_add_f32 v24, {hex(f2u(1e-5))}, v24")
        rbf("v24")
        a(f"v_sqrt_f32 v24, v24")
        a("s_nop 0")
        rbf("v24")
        a(f"v_rcp_f32 v24, v24")
        a(f"v_readfirstlane_b32 {sM}, v25")
        a(f"v_readfirstlane_b32 {sD}, v24")
        if write:
            for i in range(8): a(f"v_sub_f32 {X[i]}, {X[i]}, v25")
            for i in range(4): a(f"v_cvt_pk_bf16_f32 v{4+i}, {X[2*i]}, {X[2*i+1]}")
            unpack(4)
            for i in range(8): a(f"v_mul_f32 {X[i]}, {X[i]}, v24")
            for i in range(4): a(f"v_cvt_pk_bf16_f32 v{4+i}, {X[2*i]}, {X[2*i+1]}")
    unpack(4)
    ln(sM1, sD1, True)
    a(f"v_add_u32 v8, {L_XN}, v8")
    a(f"ds_write_b128 v8, v[4:7]")
    a(f"s_lshl_b32 {sT[0]}, {sW}, 7")
    if ROT:
        a(f"s_lshl_b32 {sT[1]}, {sB}, 2")
        a(f"s_add_u32 {sT[0]}, {sT[0]}, {sT[1]}")
    a(f"s_add_u32 {sT[0]}, {sT[0]}, {L_XN}")
    a(f"v_lshl_add_u32 v8, {vRow}, 5, {sT[0]}")
    assert L_XN % 32 == 0
    for i in range(8):
        if i:
            a(f"v_xor_b32 v10, {4*i}, v8")
            a(f"ds_read_b32 v{DT+i}, v10")
        else:
            a(f"ds_read_b32 v{DT+i}, v8")
    for i in range(8): a(f"v_mov_b32 {ACC[i]}, 0")
    if WQP:
        body = a.lines[ln_start:]; del a.lines[ln_start:]
        nins = 16 - NQ0
        LNF = o.get("lnf", 100)
        inl = nins * LNF // 100
        pts = [int((k + 0.5) * len(body) / inl) for k in range(inl)] if inl else []
        k = 0
        for idx, line in enumerate(body):
            while k < inl and pts[k] == idx:
                a(f"s_waitcnt vmcnt({NQ0-1})"); wqload(NQ0 + k); k += 1
            a.lines.append(line)
        while k < nins:
            a(f"s_waitcnt vmcnt({NQ0-1})"); wqload(NQ0 + k); k += 1
    a("s_waitcnt lgkmcnt(0)")
    for j in range(16):
        src = f"v{DT + j//2}"
        if j % 2 == 0:
            a(f"v_and_b32 v10, 0xffff, {src}"); a(f"v_lshlrev_b32 v11, 16, {src}")
        else:
            a(f"v_lshrrev_b32 v10, 16, {src}"); a(f"v_and_b32 v11, {sHI}, {src}")
        if 15 - j < NQ0: a(f"s_waitcnt vmcnt({15 - j})")
        for i in range(4):
            a(f"v_dot2c_f32_bf16 {ACC[2*i]}, v10, v{WREG+4*j+i}")
            a(f"v_dot2c_f32_bf16 {ACC[2*i+1]}, v11, v{WREG+4*j+i}")
    stamp(2)
    vPA = "v23"
    a(f"s_mul_i32 {sT[0]}, {sW}, 528")
    a(f"s_add_u32 {sT[0]}, {sT[0]}, {L_QP}")
    a(f"v_lshl_add_u32 v15, {vCol}, 5, {sT[0]}")
    a(f"v_lshl_add_u32 v15, {vRow}, 3, v15")
    rows_reduce8("v15")
    a(f"v_mov_b32 v10, 1")
    a("s_waitcnt lgkmcnt(0)")
    a(f"s_mov_b64 exec, 1")
    a(f"ds_add_u32 {vF}, v10 offset:4")
    a(f"s_mov_b64 exec, -1")
    MX = 128
    for i in range(4): a(f"v_mov_b32 v{141+i}, v{4+i}")
    spin(4, "s_cmp_ge_u32", 8, "v10", sT[0])
    a(f"v_lshlrev_b32 v10, 3, {vL}")
    a(f"v_add_u32 v10, {L_QP}, v10")
    for w in range(8): a(f"ds_read_b64 v[{DT+2*w}:{DT+2*w+1}], v10 offset:{528*w}")
    a("s_waitcnt lgkmcnt(0)")
    for st in (8, 4, 2):
        for i in range(st): a(f"v_add_f32 v{DT+i}, v{DT+i}, v{DT+st+i}")
    a(f"v_cvt_pk_bf16_f32 v{DT}, v{DT}, v{DT+1}")
    a(f"v_lshlrev_b32 v10, 2, {vL}")
    a(f"v_add_u32 v10, {L_XN}, v10")
    a(f"ds_write_b32 v10, v{DT}")
    a(f"v_lshlrev_b32 v10, 4, {vRow}")
    a(f"v_add_u32 v10, {L_XN}, v10")
    for t in range(4): a(f"ds_read_b128 v[{QF+4*t}:{QF+4*t+3}], v10 offset:{64*t}")
    vH, vMA, vC0 = "v138", "v139", "v140"
    a(f"s_mov_b32 {sL2E}, {hex(f2u(l2e))}")
    a(f"s_mov_b32 {sK}, {hex(f2u(128 ** -0.5))}")
    vKA, vSA, vDA, vM, vLs, vDn = "v4", "v5", "v6", "v7", "v8", "v9"
    a(f"v_xor_b32 {vKA}, {vRow}, {vCol}")
    a(f"v_lshlrev_b32 {vKA}, 4, {vKA}")
    a(f"v_lshl_add_u32 {vKA}, {vCol}, 8, {vKA}")
    a(f"s_lshl_b32 {sT[0]}, {sW}, 12")
    a(f"v_add_u32 {vKA}, {sT[0]}, {vKA}")
    a(f"s_lshl_b32 {sT[0]}, {sW}, 6")
    a(f"s_add_u32 {sT[0]}, {sT[0]}, {L_SC}")
    a(f"v_lshl_add_u32 {vSA}, {vCol}, 2, {sT[0]}")
    a(f"s_lshl_b32 {sT[0]}, {sW}, 2")
    a(f"v_add_u32 {vDA}, {sT[0]}, {vF}")
    a(f"v_mov_b32 {vM}, 0xff7fffff")
    a(f"v_mov_b32 {vLs}, 0")
    a(f"v_mov_b32 {vDn}, 0")
    a(f"s_mov_b32 {sG}, {sW}")
    a(f"s_mov_b32 {sR}, 0")
    a(f"s_lshl_b32 {sT[0]}, {sH}, 17")
    a(f"s_lshl_b32 {sT[1]}, {sW}, 14")
    a(f"s_add_u32 {sT[0]}, {sT[0]}, {sT[1]}")
    a(f"s_add_u32 s36, s12, {sT[0]}")
    a(f"s_addc_u32 s37, s13, 0")
    a(f"s_mov_b32 s38, {o.get('won', 16384)}")
    a(f"s_mul_i32 {sOff}, {sW}, {WOS}")
    a(f"s_add_u32 {sOff}, {sOff}, {WOR}")
    stamp(3)
    a("L_k:")
    for t in range(1, 4): a(f"v_xor_b32 v{10+t}, {64*t}, {vKA}")
    spin(0, "s_cmp_gt_i32", sG, "v10", sT[0])
    a(f"ds_read_b128 v[{DT}:{DT+3}], {vKA}")
    for t in range(1, 4): a(f"ds_read_b128 v[{DT+4*t}:{DT+4*t+3}], v{10+t}")
    a(f"v_add_u32 {vDn}, 1, {vDn}")
    a(f"v_add_u32 {vKA}, 0x8000, {vKA}")
    a(f"v_and_b32 {vKA}, 0x1ffff, {vKA}")
    for t in range(4):
        a(f"s_waitcnt lgkmcnt({3-t})")
        a(f"v_mfma_f32_16x16x32_bf16 v[16:19], v[{QF+4*t}:{QF+4*t+3}], v[{DT+4*t}:{DT+4*t+3}], {'0' if t == 0 else 'v[16:19]'}")
    a(f"ds_write_b32 {vDA}, {vDn} offset:32")
    a(f"s_add_u32 {sG}, {sG}, 8")
    a(f"s_nop 5")
    rbf("v16")
    a(f"v_mul_f32 v16, {sK}, v16")
    rbf("v16")
    a(f"ds_write_b32 {vSA}, v16")
    a(f"v_max_f32 v17, {vM}, v16")
    a(f"v_sub_f32 v18, {vM}, v17")
    a(f"v_sub_f32 v16, v16, v17")
    a(f"v_mul_f32 v18, {sL2E}, v18")
    a(f"v_mul_f32 v16, {sL2E}, v16")
    a(f"v_exp_f32 v18, v18")
    a(f"v_exp_f32 v16, v16")
    a(f"v_mov_b32 {vM}, v17")
    a(f"v_add_u32 {vSA}, 512, {vSA}")
    a(f"v_fma_f32 {vLs}, {vLs}, v18, v16")
    a(f"v_lshlrev_b32 v10, 4, {vL}")
    if WOT:
        rounds = {}
        for j in range(16): rounds.setdefault(WOR + j * WOM // WOD, []).append(j)
        if SPF:
            for j in range(16): rounds.setdefault(WOR + j * WOM // WOD - SPF, []).append(-1 - j)
        for rr, js_ in sorted(rounds.items()):
            a(f"s_cmp_lg_u32 {sR}, {rr}")
            a(f"s_cbranch_scc1 L_wo{rr}")
            for j in js_:
                if j < 0:
                    jj = -1 - j
                    a(f"s_lshl_b32 {sT[1]}, {sB}, 7")
                    a(f"s_add_u32 {sT[1]}, {sT[1]}, {1024*jj}")
                    a(f"s_load_dword {sT[2]}, s[36:37], {sT[1]}")
                    a(f"s_add_u32 {sT[1]}, {sT[1]}, 64")
                    a(f"s_load_dword {sT[3]}, s[36:37], {sT[1]}")
                    continue
                a(f"s_movk_i32 {sT[1]}, {1024*j}")
                a(f"buffer_load_dwordx4 {wslot(j)}, v10, {R}, {sT[1]} offen {WOP}")
            a(f"L_wo{rr}:")
    a(f"s_cmp_lg_u32 {sR}, {sOff}")
    a(f"s_cbranch_scc1 L_nowo")
    if not WOT:
        for j in range(16):
            if j % 4 == 0: a(f"s_movk_i32 {sT[1]}, {1024*j}")
            a(f"buffer_load_dwordx4 {wslot(j)}, v10, {R}, {sT[1]} offen offset:{1024*(j%4)} {WP}")
    a(f"s_lshl_b32 {sT[0]}, {sH}, 5")
    a(f"v_lshl_add_u32 v11, {vCol}, 1, {sT[0]}")
    a(f"global_load_ushort v138, v11, s[4:5] {WP}")
    a(f"s_mul_i32 {sT[0]}, {sW}, 448")
    a(f"v_mul_u32_u24 v11, 112, {vRow}")
    a(f"v_lshl_add_u32 v11, {vCol}, 2, v11")
    a(f"v_add_u32 v11, {sT[0]}, v11")
    a(f"v_cmp_lt_u32 vcc, 13, {vCol}")
    a(f"v_mov_b32 v12, 0x10000")
    a(f"s_mov_b32 s58, 3584")
    a(f"v_cndmask_b32 v11, v11, v12, vcc")
    for k, p in enumerate([16, 18, 20]):
        a(f"s_mov_b32 s56, s{p}"); a(f"s_mov_b32 s57, s{p+1}")
        for s_ in range(2):
            a(f"buffer_load_dword v{MX + 5*s_ + (1,3,4)[k]}, v11, {W2}, 0 offen offset:{56*s_} {WP}")
    a(f"s_load_dword {sB2}, s[22:23], 0")
    if TAIL == 3:
        a(f"s_lshl_b32 {sT[0]}, {sB}, 8")
        a(f"s_add_u32 {sT[0]}, {sT[0]}, 0x180000")
        a(f"s_load_dword {sE}, s[28:29], {sT[0]}")
    a("L_nowo:")
    a(f"s_cmp_lg_u32 {sR}, 15")
    a(f"s_cbranch_scc1 L_noms")
    unpack(141)
    ln(sM2, sD2, False)
    a("s_waitcnt vmcnt(0)")
    a(f"v_lshlrev_b32 {vH}, 16, v138")
    a(f"v_mov_b32 v145, {vH}")
    a(f"v_subrev_f32 {vH}, {sM1}, {vH}"); rbf(vH)
    a(f"v_mul_f32 {vH}, {sD1}, {vH}"); rbf(vH)
    a(f"v_subrev_f32 {vH}, {sM2}, {vH}"); rbf(vH)
    a(f"v_mul_f32 {vH}, {sD2}, {vH}"); rbf(vH)
    for s_ in range(2):
        b = MX + 5*s_
        a(f"v_lshlrev_b32 v{b}, 16, v{b+1}"); a(f"v_and_b32 v{b+1}, {sHI}, v{b+1}")
        a(f"v_lshlrev_b32 v{b+2}, 16, v{b+3}"); a(f"v_and_b32 v{b+3}, {sHI}, v{b+3}")
    kb = math.sqrt(2.0/math.pi)
    a(f"v_mov_b32 {vC0}, {hex(f2u(-2*kb*l2e))}")
    a(f"s_mov_b32 {sC1}, {hex(f2u(-2*kb*l2e*0.044715))}")
    a(f"v_mov_b32 {vMA}, 0")
    a("L_noms:")
    a(f"s_cmp_lt_u32 {sR}, 16")
    a(f"s_cbranch_scc1 L_nomix")
    BC = "row_newbcast:0 " + FULL
    for s_ in range(2):
        b = MX + 5*s_
        a(f"v_mul_f32_dpp v16, v{b}, {vH} {BC}")
        a(f"v_mul_f32_dpp v17, v{b+1}, {vH} {BC}")
        a(f"v_cvt_pk_bf16_f32 v17, v16, v17")
        a(f"v_lshlrev_b32 v16, 16, v17"); a(f"v_and_b32 v17, {sHI}, v17")
        a(f"v_add_f32_dpp v16, v{b+2}, v16 {BC}")
        a(f"v_add_f32_dpp v17, v{b+3}, v17 {BC}")
        a(f"v_cvt_pk_bf16_f32 v17, v16, v17")
        a(f"v_lshlrev_b32 v16, 16, v17"); a(f"v_and_b32 v17, {sHI}, v17")
        a(f"v_mul_f32 v18, v16, v16"); a(f"v_mul_f32 v19, v17, v17")
        a(f"v_fma_f32 v18, v18, {sC1}, {vC0}"); a(f"v_fma_f32 v19, v19, {sC1}, {vC0}")
        a(f"v_mul_f32 v18, v18, v16"); a(f"v_mul_f32 v19, v19, v17")
        a(f"v_exp_f32 v18, v18"); a(f"v_exp_f32 v19, v19")
        a(f"v_mov_b32_dpp v{b}, v{b} row_ror:15 {FULL}")
        a(f"v_add_f32 v18, 1.0, v18"); a(f"v_add_f32 v19, 1.0, v19")
        a(f"v_rcp_f32 v18, v18"); a(f"v_rcp_f32 v19, v19")
        a(f"v_mov_b32_dpp v{b+1}, v{b+1} row_ror:15 {FULL}")
        a(f"v_mul_f32 v18, v18, v16"); a(f"v_mul_f32 v19, v19, v17")
        a(f"v_cvt_pk_bf16_f32 v18, v18, v19")
        a(f"v_mov_b32_dpp v{b+2}, v{b+2} row_ror:15 {FULL}")
        a(f"v_mov_b32_dpp v{b+3}, v{b+3} row_ror:15 {FULL}")
        a(f"v_dot2c_f32_bf16_dpp {vMA}, v{b+4}, v18 {BC}")
        a(f"v_mov_b32_dpp v{b+4}, v{b+4} row_ror:15 {FULL}")
    a("L_nomix:")
    probe("k")
    a(f"s_add_u32 {sR}, {sR}, 1")
    a(f"s_cmp_lt_u32 {sR}, 32")
    a(f"s_cbranch_scc1 L_k")
    if STAMP: pass
    a(f"v_mov_b32 v16, {vM}")
    allreduce("v_max_f32", ["v16"], 4)
    a(f"v_sub_f32 v17, {vM}, v16")
    a(f"v_mul_f32 v17, {sL2E}, v17")
    a(f"v_exp_f32 v17, v17")
    a(f"s_lshl_b32 {sT[0]}, {sW}, 3")
    a(f"v_add_u32 v18, {sT[0]}, {vF}")
    a(f"v_mul_f32 v17, v17, {vLs}")
    allreduce("v_add_f32", ["v17"], 4)
    a(f"ds_write_b64 v18, v[16:17] offset:64")
    rows_sum(vMA, "v19")
    a(f"s_lshl_b32 {sT[0]}, {sW}, 6")
    a(f"s_add_u32 {sT[0]}, {sT[0]}, {L_BP}")
    a(f"v_lshl_add_u32 v19, {vCol}, 2, {sT[0]}")
    a(f"ds_write_b32 v19, {vMA}")
    a(f"v_mov_b32 v10, 1")
    a("s_waitcnt lgkmcnt(0)")
    a(f"s_mov_b64 exec, 1")
    a(f"ds_add_u32 {vF}, v10 offset:8")
    a(f"s_mov_b64 exec, -1")
    a(f"s_mov_b32 {sT[0]}, 0x05040100")
    a(f"s_mov_b32 {sT[1]}, 0x07060302")
    a("s_waitcnt vmcnt(0)")
    for p in range(8):
        for i in range(4):
            r0 = WREG + 8*p + i; r1 = r0 + 4
            a(f"v_perm_b32 v16, v{r1}, v{r0}, {sT[0]}")
            a(f"v_perm_b32 v{r1}, v{r1}, v{r0}, {sT[1]}")
            a(f"v_mov_b32 v{r0}, v16")
    spin(8, "s_cmp_ge_u32", 8, "v10", sT[0])
    a(f"v_and_b32 v18, 7, {vL}")
    a(f"v_lshl_add_u32 v18, v18, 3, {vF}")
    a(f"ds_read_b64 v[16:17], v18 offset:64")
    a(f"v_lshlrev_b32 v19, 2, {vL}")
    a(f"v_add_u32 v18, {L_BP}, v19")
    a(f"ds_read_b32 v20, v18")
    a(f"ds_read_b32 v21, v18 offset:256")
    a("s_waitcnt lgkmcnt(0)")
    a(f"v_mov_b32 {vM}, v16")
    allreduce("v_max_f32", [vM], 3)
    a(f"v_sub_f32 v16, v16, {vM}")
    a(f"v_mul_f32 v16, {sL2E}, v16")
    a(f"v_exp_f32 v16, v16")
    a(f"v_add_f32 v20, v20, v21")
    a(f"v_mul_f32 {vLs}, v16, v17")
    allreduce("v_add_f32", [vLs], 3)
    a(f"v_rcp_f32 {vLs}, {vLs}")
    rows_sum("v20", "v21")
    rbf("v20")
    a(f"s_lshl_b32 {sB2}, {sB2}, 16")
    a(f"v_add_f32 v20, {sB2}, v20")
    rbf("v20")
    if TAIL == 3:
        a(f"v_and_b32 v21, 7, {vL}")
        a(f"v_lshrrev_b32 v22, 5, {vL}")
        a(f"v_lshl_add_u32 v21, v21, 1, v22")
        a(f"v_lshlrev_b32 v22, 2, v21")
        a(f"ds_bpermute_b32 v146, v22, v20")
        a(f"ds_bpermute_b32 v145, v22, v145")
        a(f"s_lshl_b32 {sT[0]}, s2, 5")
        a(f"v_lshl_add_u32 v147, v21, 1, {sT[0]}")
        a(f"s_add_u32 {sE}, {sE}, 1")
    else:
        a(f"s_lshl_b32 {sT[0]}, s2, 6")
        a(f"s_add_u32 {sT[0]}, {sT[0]}, 0x80000")
        a(f"s_add_u32 s56, s28, {sT[0]}")
        a(f"s_addc_u32 s57, s29, 0")
        a(f"s_cmp_eq_u32 {sW}, 0")
        a(f"s_cselect_b32 s58, 64, 0")
        a(f"buffer_store_dword v20, v19, {W2}, 0 offen sc1")
    a(f"s_lshl_b32 {sT[0]}, {sW}, 12")
    a(f"v_lshl_add_u32 {vKA}, {vL}, 4, {sT[0]}")
    a(f"v_and_b32 {vSA}, 3, {vL}")
    a(f"v_lshl_add_u32 {vSA}, {vSA}, 2, {vRow}")
    a(f"s_lshl_b32 {sT[0]}, {sW}, 6")
    a(f"s_add_u32 {sT[0]}, {sT[0]}, {L_SC}")
    a(f"v_lshl_add_u32 {vSA}, {vSA}, 2, {sT[0]}")
    for i in range(8): a(f"v_mov_b32 {ACC[i]}, 0")
    a(f"s_mov_b32 {sR}, 0")
    stamp(4)
    a("L_v:")
    a(f"ds_read_b32 v16, {vSA}")
    a(f"v_add_u32 {vSA}, 512, {vSA}")
    a(f"v_add_u32 {vDn}, 1, {vDn}")
    a("s_waitcnt lgkmcnt(0)")
    a(f"v_sub_f32 v16, v16, {vM}")
    a(f"v_mul_f32 v16, {sL2E}, v16")
    a(f"v_exp_f32 v16, v16")
    a(f"s_add_u32 {sR}, {sR}, 1")
    a(f"v_mul_f32 v16, v16, {vLs}")
    a(f"v_cvt_pk_bf16_f32 v16, v16, v16")
    a(f"v_lshrrev_b32 v17, 16, v16")
    a(f"v_and_b32 v16, {sHI}, v16")
    spin(0, "s_cmp_gt_i32", sG, "v10", sT[0])
    for t in range(4): a(f"ds_read_b128 v[{DT+4*t}:{DT+4*t+3}], {vKA} offset:{1024*t}")
    a(f"v_add_u32 {vKA}, 0x8000, {vKA}")
    a(f"v_and_b32 {vKA}, 0x1ffff, {vKA}")
    a(f"s_add_u32 {sG}, {sG}, 8")
    for j in range(4):
        a(f"s_waitcnt lgkmcnt({3-j})")
        if j == 3: a(f"ds_write_b32 {vDA}, {vDn} offset:32")
        for i in range(4):
            a(f"v_dot2c_f32_bf16_dpp {ACC[2*i]}, v17, v{DT+4*j+i} quad_perm:[{j},{j},{j},{j}] {FULL}")
            a(f"v_dot2c_f32_bf16_dpp {ACC[2*i+1]}, v16, v{DT+4*j+i} quad_perm:[{j},{j},{j},{j}] {FULL}")
    probe("v")
    a(f"s_cmp_lt_u32 {sR}, 32")
    a(f"s_cbranch_scc1 L_v")
    stamp(5)
    if o.get("notail", 0) == 1:
        stamp(6); stamp(7)
        a("s_branch L_fin")
    a("s_nop 0")
    rows_reduce8("v15")
    a(f"v_and_b32 v10, 7, {vL}")
    a(f"v_mul_u32_u24 v10, 528, v10")
    a(f"v_and_b32 v11, 0x38, {vL}")
    a(f"s_lshl_b32 {sT[0]}, {sW}, 6")
    a(f"s_add_u32 {sT[0]}, {sT[0]}, {L_QP}")
    a(f"v_add3_u32 v10, v10, v11, {sT[0]}")
    a("s_waitcnt lgkmcnt(0)")
    a("s_barrier")
    tstamp(1)
    a(f"ds_read_b64 v[16:17], v10")
    for i in range(8): a(f"v_mov_b32 {ACC[i]}, 0")
    a("s_waitcnt lgkmcnt(0)")
    allreduce("v_add_f32", ["v16", "v17"], 3)
    a("v_cvt_pk_bf16_f32 v16, v16, v17")
    a("s_nop 0")
    for p in range(8): a(f"v_readlane_b32 {sT[p]}, v16, {8*p}")
    for p in range(8):
        for i in range(4):
            a(f"v_dot2c_f32_bf16 {ACC[2*i]}, {sT[p]}, v{WREG+8*p+i}")
            a(f"v_dot2c_f32_bf16 {ACC[2*i+1]}, {sT[p]}, v{WREG+8*p+4+i}")
    a(f"s_lshl_b32 {sT[0]}, {sW}, 11")
    a(f"v_lshl_add_u32 v10, {vL}, 5, {sT[0]}")
    a(f"s_lshl_b32 {sT[0]}, {sW}, 8")
    a(f"v_lshl_add_u32 v11, {vL}, 2, {sT[0]}")
    a(f"ds_write_b128 v10, v[24:27] offset:{L_Y}")
    a(f"ds_write_b128 v10, v[28:31] offset:{L_Y+16}")
    if TAIL == 3:
        a(f"s_lshl_b32 {sT[0]}, {sB}, 17")
        a(f"s_add_u32 s56, s28, {sT[0]}")
        a(f"s_addc_u32 s57, s29, 0")
        a(f"s_mov_b32 s58, 0x20000")
        a(f"s_lshl_b32 {sT[0]}, {sW}, 14")
        a(f"s_lshl_b32 {sT[1]}, {sH}, 7")
        a(f"s_add_u32 {sT[0]}, {sT[0]}, {sT[1]}")
        a(f"v_lshl_add_u32 v12, {vRow}, 12, {sT[0]}")
        a(f"v_lshl_add_u32 v12, {vCol}, 3, v12")
        a("s_waitcnt lgkmcnt(0)")
        a("s_barrier")
        tstamp(2)
        for i in range(8): a(f"ds_read_b32 v{16+i}, v11 offset:{L_Y + 2048*i}")
        a(f"s_lshl_b32 {sT[0]}, {sH}, 12")
        a(f"v_lshl_add_u32 v13, {vL}, 4, {sT[0]}")
        a("s_waitcnt lgkmcnt(0)")
        for st in (4, 2, 1):
            for i in range(st): a(f"v_add_f32 v{16+i}, v{16+i}, v{16+st+i}")
        a(f"v_mov_b32 v17, {sE}")
        a(f"buffer_store_dwordx2 v[16:17], v12, {W2}, 0 offen sc1")
        tstamp(3)
        stamp(6); stamp(7); tstamp(4)
        a(f"s_cmp_lg_u32 {sW}, 0")
        a(f"s_cbranch_scc1 L_fin")
        a("L_poll:")
        for i in range(4): a(f"buffer_load_dwordx4 v[{32+4*i}:{35+4*i}], v13, {W2}, 0 offen offset:{1024*i} sc1")
        a(f"s_mov_b64 s[44:45], exec")
        if BOUND:
            a(f"s_sub_u32 {sSpin}, {sSpin}, 16")
            a(f"s_cbranch_scc1 L_end")
        if o.get("psl", 0): a(f"s_sleep {o['psl']}")
        a("s_waitcnt vmcnt(0)")
        for i in range(8): a(f"v_cmpx_eq_u32 vcc, v17, v{33+2*i}")
        a(f"s_andn2_b64 exec, s[44:45], exec")
        a(f"s_cbranch_execnz L_poll")
        a(f"s_mov_b64 exec, -1")
        tstamp(4)
        for st in (8, 4):
            for i in range(0, st, 2): a(f"v_add_f32 v{32+i}, v{32+i}, v{32+st+i}")
        a("s_nop 1")
        a("v_permlane32_swap_b32 v32, v34")
        a("v_add_f32 v32, v32, v34")
        a("v_mov_b32 v33, v32"); a("s_nop 1")
        a("v_permlane16_swap_b32 v32, v33")
        a("v_add_f32 v32, v32, v33")
        a("s_nop 1")
        a(f"v_add_f32_dpp v32, v32, v32 row_ror:8 {FULL}")
        rbf("v32")
        a("v_add_f32 v32, v145, v32")
        rbf("v32")
        a("v_add_f32 v32, v32, v146")
        a("v_cvt_pk_bf16_f32 v32, v32, v32")
        a("s_mov_b32 exec_lo, 0xff")
        a("s_mov_b32 exec_hi, 0xff")
        a(f"global_store_short v147, v32, s[24:25]")
        a(f"s_cmp_lg_u32 {sH}, 0")
        a(f"s_cbranch_scc1 L_nob")
        a(f"s_lshl_b32 {sT[0]}, {sB}, 8")
        a(f"s_add_u32 {sT[0]}, {sT[0]}, 0x180000")
        a(f"v_mov_b32 v16, {sT[0]}")
        a(f"s_mov_b64 exec, 1")
        a(f"global_store_dword v16, v17, s[28:29]")
        a("L_nob:")
        a(f"s_mov_b64 exec, -1")
    else:
        a(f"s_lshl_b32 {sT[0]}, s2, 11")
        a(f"s_add_u32 s56, s28, {sT[0]}")
        a(f"s_addc_u32 s57, s29, 0")
        a(f"s_mov_b32 s58, 2048")
        a("s_waitcnt lgkmcnt(0)")
        a("s_barrier")
        tstamp(2)
        for i in range(8): a(f"ds_read_b32 v{16+i}, v11 offset:{L_Y + 2048*i}")
        a("s_waitcnt lgkmcnt(0)")
        for st in (4, 2, 1):
            for i in range(st): a(f"v_add_f32 v{16+i}, v{16+i}, v{16+st+i}")
        a(f"buffer_store_dword v16, v11, {W2}, 0 offen sc1")
        tstamp(3)
        a("s_waitcnt vmcnt(0)")
        a("s_barrier")
        stamp(6)
        if o.get("notail", 0) == 2:
            stamp(7)
            a("s_branch L_fin")
        a(f"s_cmp_lg_u32 {sW}, 0")
        a(f"s_cbranch_scc1 L_wait")
        a(f"s_lshl_b32 {sT[0]}, {sB}, 2")
        a(f"v_mov_b32 v16, {sT[0]}")
        a(f"v_mov_b32 v17, 1")
        a(f"s_mov_b64 exec, 1")
        a(f"global_atomic_add v18, v16, v17, s[26:27] sc0 sc1")
        a("s_waitcnt vmcnt(0)")
        a(f"ds_write_b32 {vF}, v18 offset:12")
        a(f"s_mov_b64 exec, -1")
        a("s_waitcnt lgkmcnt(0)")
        a("L_wait:")
        a("s_barrier")
        a(f"ds_read_b32 v18, {vF} offset:12")
        a("s_waitcnt lgkmcnt(0)")
        a(f"v_readfirstlane_b32 {sT[0]}, v18")
        stamp(7)
        a(f"s_cmp_lg_u32 {sT[0]}, 31")
        a(f"s_cbranch_scc1 L_fin")
        a(f"s_lshl_b32 {sT[0]}, {sB}, 16")
        a(f"s_add_u32 s56, s28, {sT[0]}")
        a(f"s_addc_u32 s57, s29, 0")
        a(f"s_mov_b32 s58, 65536")
        a(f"s_lshl_b32 {sT[0]}, {sW}, 8")
        a(f"v_lshl_add_u32 v10, {vCol}, 4, {sT[0]}")
        a(f"v_lshl_add_u32 v10, {vRow}, 14, v10")
        for i in range(8):
            if i % 2 == 0: a(f"s_movk_i32 {sT[1]}, {2048*i}")
            a(f"buffer_load_dwordx4 v[{32+4*i}:{35+4*i}], v10, {W2}, {sT[1]} offen offset:{2048*(i%2)} sc1")
        a(f"s_lshl_b32 {sT[0]}, {sW}, 6")
        a(f"v_lshl_add_u32 v11, {vCol}, 2, {vRow}")
        a(f"v_add_u32 v11, {sT[0]}, v11")
        a(f"v_lshlrev_b32 v12, 1, v11")
        a(f"global_load_ushort v13, v12, s[4:5]")
        a(f"s_lshl_b32 {sT[0]}, {sB}, 11")
        a(f"s_add_u32 {sT[0]}, {sT[0]}, 0x80000")
        a(f"v_lshl_add_u32 v11, v11, 2, {sT[0]}")
        a(f"global_load_dword v14, v11, s[28:29] sc1")
        a("s_waitcnt vmcnt(2)")
        tstamp(4)
        for st in (16, 8, 4):
            for i in range(st): a(f"v_add_f32 v{32+i}, v{32+i}, v{32+st+i}")
        a("s_nop 0")
        a("v_permlane32_swap_b32 v32, v34")
        a("v_permlane32_swap_b32 v33, v35")
        a("v_add_f32 v32, v32, v34")
        a("v_add_f32 v33, v33, v35")
        a("s_nop 1")
        a("v_permlane16_swap_b32 v32, v33")
        a("v_add_f32 v16, v32, v33")
        rbf("v16")
        a("s_waitcnt vmcnt(0)")
        a("v_lshlrev_b32 v13, 16, v13")
        a("v_add_f32 v16, v13, v16")
        rbf("v16")
        a("v_add_f32 v16, v16, v14")
        a("v_cvt_pk_bf16_f32 v16, v16, v16")
        a(f"s_lshl_b32 {sT[0]}, {sB}, 10")
        a(f"v_add_u32 v12, {sT[0]}, v12")
        a(f"global_store_short v12, v16, s[24:25]")
    a("L_fin:")
    if o.get("pin", 0):
        a("L_pin:")
        a("s_memrealtime s[62:63]")
        a("s_waitcnt lgkmcnt(0)")
        a("s_sub_u32 s62, s62, s60")
        a(f"s_cmp_lt_u32 s62, {o['pin']}")
        a("s_cbranch_scc1 L_pin")
    stamp(8)
    if STAMP == 1:
        a("s_waitcnt lgkmcnt(0)")
        a(f"s_mul_i32 {sT[0]}, s2, 9")
        a(f"s_add_u32 {sT[0]}, {sT[0]}, {sW}")
        a(f"s_add_u32 {sT[0]}, {sT[0]}, 1")
        a(f"s_lshl_b32 {sT[0]}, {sT[0]}, 7")
        a(f"s_add_u32 {sT[0]}, {sT[0]}, 0x100000")
        a(f"v_mov_b32 v16, 0")
        for i in range(18): a(f"v_writelane_b32 v16, s{60+i}, {i}")
        a(f"s_getreg_b32 {sT[1]}, hwreg(HW_REG_XCC_ID)")
        a(f"s_getreg_b32 {sT[2]}, hwreg(HW_REG_HW_ID)")
        a(f"v_writelane_b32 v16, {sT[1]}, 18")
        a(f"v_writelane_b32 v16, {sT[2]}, 19")
        a(f"v_writelane_b32 v16, {sSpin}, 20")
        a(f"v_lshl_add_u32 v17, {vL}, 2, {sT[0]}")
        a(f"s_mov_b64 exec, 0xffffffff")
        a(f"global_store_dword v17, v16, s[28:29]")
    if STAMP == 2:
        a("s_waitcnt lgkmcnt(0)")
        a(f"s_cmp_gt_i32 {sW}, 0")
        a("s_cbranch_scc1 L_end")
        a(f"v_mov_b32 v16, 0")
        a(f"s_not_b32 {sT[1]}, s60")
        a(f"v_writelane_b32 v16, {sT[1]}, 0")
        for i in range(6): a(f"v_writelane_b32 v16, s{66+2*i}, {i+1}")
        a(f"s_not_b32 {sT[1]}, s70")
        a(f"v_writelane_b32 v16, {sT[1]}, 7")
        a(f"v_lshlrev_b32 v17, 2, {vL}")
        a(f"s_mov_b64 exec, 0xff")
        a(f"global_atomic_umax v17, v16, s[26:27] offset:32 sc1")
    a("L_end:")
    a("s_endpgm")

    head = open("cdna_kernels/%s.s.ref" % NAME).read().split("; Override launch")[0]
    out = head + f"; @launch grid=(256,1,1) block=(576,1,1) lds={LDS_BYTES}\n"
    out += '.amdgcn_target "amdgcn-amd-amdhsa--gfx950"\n.text\n'
    out += f".globl {NAME}_kernel\n.p2align 8\n.type {NAME}_kernel,@function\n" + a.text()
    out += f""".section .rodata,"a"
.p2align 6
.amdhsa_kernel {NAME}_kernel
  .amdhsa_next_free_vgpr 152
  .amdhsa_next_free_sgpr 80
  .amdhsa_accum_offset 152
  .amdhsa_group_segment_fixed_size 0
  .amdhsa_kernarg_size 104
  .amdhsa_user_sgpr_count 2
  .amdhsa_user_sgpr_kernarg_segment_ptr 1
  .amdhsa_system_sgpr_workgroup_id_x 1
  .amdhsa_float_denorm_mode_32 3
.end_amdhsa_kernel
"""
    return out
if __name__ == "__main__":
    opts = {}
    for kv in sys.argv[2:]:
        k, v = kv.split("=")
        try: opts[k] = int(v, 0)
        except ValueError: opts[k] = v.replace("+", " ")
    open(sys.argv[1], "w").write(gen(opts))
```

```python
import sys, struct, math
NAME = "parallel_sum__mha_block_cached__mixer_token_mlp__decode"
def f2u(x): return struct.unpack("<I", struct.pack("<f", x))[0]
class Asm:
    def __init__(self): self.lines = []
    def __call__(self, s):
        s = s.strip()
        self.lines.append(s if s.endswith(":") else "    " + s)
    def c(self, s): self.lines.append("    ; " + s)
    def text(self): return "\n".join(self.lines) + "\n"

def gen(o):
    D = o.get("d", 20)
    STAMP = o.get("stamp", 0)
    ROT = o.get("rot", 0)
    BOUND = o.get("bound", 1)
    WOR = o.get("wor", 6)
    WQP = o.get("wqp", 0)
    SLEEP = o.get("sleep", 0)
    WP = o.get("wp", "")
    WOS = o.get("wos", 1)
    TAIL = o.get("tail", 3)
    WOP = o.get("wop", "nt")
    SPF = o.get("spf", 0)
    WOT = o.get("wot", 1)
    WOM = o.get("wom", 3); WOD = o.get("wod", 2)
    assert WOR + 7 * WOS < 15 and WOR + 15 * WOM // WOD < 32
    sE = "s3"
    FB = o.get("fb", 0)
    FP = o.get("fp", 8)
    FS = o.get("fs", 2)
    FG0 = o.get("fg0", 40)
    FDL = o.get("fdl", 2)
    FK0 = o.get("fk0", 4)
    FR = o.get("frep", 64)
    FLEAD = o.get("flead", 0)
    sTg = "s78"
    a = Asm()
    FULL = "row_mask:0xf bank_mask:0xf"
    l2e = 1.0 / math.log(2.0)
    sB, sH, sW = "s30", "s31", "s32"
    sOff, sR, sG = "s33", "s34", "s35"
    R = "s[36:39]"
    sM1, sD1, sM2, sD2 = "s40", "s41", "s42", "s43"
    sT = [f"s{44+i}" for i in range(8)]
    sHI, sB2, sSpin, sK = "s52", "s53", "s54", "s55"
    W2 = "s[56:59]"
    sL2E, sC1 = "s14", "s15"
    L_SC = 131072
    L_QP = L_SC + 16384
    L_XN = L_QP + 4352
    L_BP = L_XN + 1024
    L_FL = L_BP + 512
    LDS_BYTES = L_FL + 256
    L_Y = 0
    vL, vRow, vCol, vF = "v0", "v1", "v2", "v3"
    WREG = 64
    QF = 48
    DT = 32
    ACC = [f"v{24+i}" for i in range(8)]
    def wslot(j): return f"v[{WREG+4*j}:{WREG+4*j+3}]"
    nlab = [0]
    def lab(p):
        nlab[0] += 1; return f"L_{p}{nlab[0]}"
    TS = o.get("ts", 0)
    def tstamp(i):
        if TS: a(f"s_memrealtime s[{60+2*i}:{61+2*i}]")
    def stamp(i):
        if STAMP in (1, 2) or (STAMP == 3 and i == 0): a(f"s_memrealtime s[{60+2*i}:{61+2*i}]")
    def wave_reduce(op, v, sdst):
        for ctl in ["quad_perm:[1,0,3,2] "+FULL, "quad_perm:[2,3,0,1] "+FULL, "row_half_mirror "+FULL, "row_mirror "+FULL,
                    "row_bcast:15 row_mask:0xa bank_mask:0xf", "row_bcast:31 row_mask:0xc bank_mask:0xf"]:
            a("s_nop 1"); a(f"{op}_dpp {v}, {v}, {v} {ctl}")
        a("s_nop 1"); a(f"v_readlane_b32 {sdst}, {v}, 63")
    def allreduce(op, regs, steps):
        for ctl in ["quad_perm:[1,0,3,2]", "quad_perm:[2,3,0,1]", "row_half_mirror", "row_mirror"][:steps]:
            if len(regs) < 3: a(f"s_nop {2-len(regs)}")
            for v in regs: a(f"{op}_dpp {v}, {v}, {v} {ctl} {FULL}")
    def rbf(v):
        a(f"v_cvt_pk_bf16_f32 {v}, {v}, {v}"); a(f"v_and_b32 {v}, {sHI}, {v}")
    def spin(off, cmp, val, tmpv, tmps):
        l0, l1 = lab("sp"), lab("go")
        a(f"{l0}:")
        a(f"ds_read_b32 {tmpv}, {vF} offset:{off}")
        a("s_waitcnt lgkmcnt(0)")
        a(f"v_readfirstlane_b32 {tmps}, {tmpv}")
        a(f"{cmp} {tmps}, {val}")
        if BOUND or SLEEP:
            a(f"s_cbranch_scc1 {l1}")
            if SLEEP: a(f"s_sleep {SLEEP}")
            if BOUND:
                a(f"s_sub_u32 {sSpin}, {sSpin}, 1")
                a(f"s_cbranch_scc1 L_end")
            a(f"s_branch {l0}")
            a(f"{l1}:")
        else:
            a(f"s_cbranch_scc0 {l0}")
    def rows_sum(v, t):
        a(f"v_mov_b32 {t}, {v}"); a("s_nop 1"); a(f"v_permlane32_swap_b32 {v}, {t}"); a(f"v_add_f32 {v}, {v}, {t}")
        a(f"v_mov_b32 {t}, {v}"); a("s_nop 1"); a(f"v_permlane16_swap_b32 {v}, {t}"); a(f"v_add_f32 {v}, {v}, {t}")
    def rows_reduce8(vaddr):
        for i in range(4): a(f"v_permlane32_swap_b32 {ACC[i]}, {ACC[i+4]}")
        for i in range(4): a(f"v_add_f32 {ACC[i]}, {ACC[i]}, {ACC[i+4]}")
        a("s_nop 0")
        for i in range(2): a(f"v_permlane16_swap_b32 {ACC[i]}, {ACC[i+2]}")
        for i in range(2): a(f"v_add_f32 {ACC[i]}, {ACC[i]}, {ACC[i+2]}")
        a(f"ds_write_b64 {vaddr}, v[24:25]")

    def probe(tag):
        PR = o.get("probe", 0)
        if not PR: return
        PP = o.get("pp", 4)
        a(f"s_and_b32 {sT[1]}, {sR}, {PP-1}")
        a(f"s_or_b32 {sT[1]}, {sT[1]}, {sW}")
        a(f"s_cbranch_scc1 L_np{tag}")
        a(f"v_mov_b32 v150, 1")
        if PR in (1, 2):
            a(f"v_mov_b32 v149, 0x200000")
            a(f"s_mov_b64 exec, 1")
            a(f"global_atomic_add v151, v149, v150, s[28:29] sc0 {'sc1' if PR == 1 else ''}")
            a(f"s_mov_b64 exec, -1")
        elif PR == 3:
            a(f"s_add_u32 {sT[1]}, s2, 0x200000")
            a(f"v_mov_b32 v149, {sT[1]}")
            a(f"s_mov_b64 exec, 1")
            a(f"global_store_byte v149, v150, s[28:29] sc1")
            a(f"s_mov_b64 exec, -1")
            a(f"v_lshlrev_b32 v149, 2, {vL}")
            a(f"v_add_u32 v149, 0x200000, v149")
            a(f"global_load_dword v151, v149, s[28:29] sc1")
        elif PR == 4:
            a(f"s_lshl_b32 {sT[1]}, s2, 8")
            a(f"s_add_u32 {sT[1]}, {sT[1]}, 0x200000")
            a(f"v_mov_b32 v149, {sT[1]}")
            a(f"s_mov_b64 exec, 1")
            a(f"global_store_dword v149, v150, s[28:29] sc1")
            a(f"s_mov_b64 exec, {hex((1 << o.get('np', 16)) - 1)}")
            a(f"v_mul_u32_u24 v149, {256 * 17}, {vL}")
            a(f"v_add_u32 v149, {sT[1]}, v149")
            a(f"v_and_b32 v149, 0x20ffff, v149")
            a(f"global_load_dword v151, v149, s[28:29] sc1")
            a(f"s_mov_b64 exec, -1")
        elif PR == 5:
            a(f"s_lshl_b32 {sT[1]}, {sB}, 12")
            a(f"s_add_u32 {sT[1]}, {sT[1]}, 0x200000")
            a(f"v_mov_b32 v149, {sT[1]}")
            a(f"s_mov_b64 exec, 1")
            a(f"global_atomic_add v151, v149, v150, s[28:29] sc0 sc1")
            a(f"s_mov_b64 exec, -1")
        elif PR in (6, 7):
            if PR == 6: a(f"s_mov_b32 {sT[1]}, 0x200000")
            else:
                a(f"s_lshl_b32 {sT[1]}, {sB}, 12")
                a(f"s_add_u32 {sT[1]}, {sT[1]}, 0x200000")
            a(f"s_mov_b32 {sT[2]}, 1")
            a(f"s_atomic_add {sT[2]}, s[28:29], {sT[1]} glc")
            a("s_waitcnt lgkmcnt(0)")
        elif PR == 8:
            a(f"s_lshr_b32 {sT[1]}, s2, {o.get('gs', 3)}")
            a(f"s_mul_i32 {sT[1]}, {sT[1]}, {o.get('ls', 4352)}")
            if o.get("fr", 1):
                a(f"s_lshl_b32 {sT[2]}, {sG}, 18")
                a(f"s_add_u32 {sT[1]}, {sT[1]}, {sT[2]}")
            a(f"s_add_u32 {sT[1]}, {sT[1]}, 0x200000")
            a(f"s_mov_b32 {sT[2]}, 1")
            if o.get("ld", 0): a(f"s_load_dword {sT[2]}, s[28:29], {sT[1]} glc")
            else: a(f"s_atomic_add {sT[2]}, s[28:29], {sT[1]} glc")
            a("s_waitcnt lgkmcnt(0)")
        a(f"L_np{tag}:")
    def ctl(tag):
        if FB != 2: return
        a(f"s_sub_u32 {sT[1]}, {sG}, {FG0 + 8}")
        a(f"s_cbranch_scc1 L_nc{tag}")
        a(f"s_and_b32 {sT[2]}, {sT[1]}, {8*FP - 1}")
        a(f"s_lshr_b32 {sT[1]}, {sT[1]}, {(8*FP).bit_length() - 1}")
        a(f"s_cmp_ge_u32 {sG}, {o.get('fend', 480)}")
        a(f"s_cbranch_scc1 L_nc{tag}")
        a(f"s_mul_i32 {sT[3]}, {sT[1]}, {FR * 4352}")
        a(f"s_add_u32 {sT[3]}, {sT[3]}, 0x200000")
        a(f"s_cmp_eq_u32 s2, {FLEAD}")
        a(f"s_cbranch_scc1 L_cl{tag}")
        a(f"s_and_b32 {sT[2]}, {sT[2]}, {hex(0xffffffff ^ (7 * FS))}")
        a(f"s_cbranch_scc1 L_nc{tag}")
        a(f"s_and_b32 {sT[2]}, s2, {FR - 1}")
        a(f"s_mul_i32 {sT[2]}, {sT[2]}, 4352")
        a(f"s_add_u32 {sT[3]}, {sT[3]}, {sT[2]}")
        a(f"s_load_dword {sT[2]}, s[28:29], {sT[3]} glc")
        a(f"s_lshl_b32 {sT[1]}, {sT[1]}, 2")
        a(f"v_add_u32 v10, {sT[1]}, {vF}")
        a(f"s_waitcnt lgkmcnt(0)")
        a(f"s_cmp_eq_u32 {sT[2]}, {sTg}")
        a(f"s_cbranch_scc0 L_nc{tag}")
        a(f"v_mov_b32 v11, 1")
        a(f"s_mov_b64 exec, 1")
        a(f"ds_add_u32 v10, v11 offset:132")
        a(f"s_mov_b64 exec, -1")
        a(f"s_branch L_nc{tag}")
        a(f"L_cl{tag}:")
        a(f"s_cmp_eq_u32 {sT[2]}, {4*FS - FDL}")
        a(f"s_cbranch_scc0 L_nc{tag}")
        a(f"v_mul_u32_u24 v10, 4352, {vL}")
        a(f"v_add_u32 v10, {sT[3]}, v10")
        a(f"v_mov_b32 v11, {sTg}")
        if FR < 64: a(f"s_mov_b64 exec, {hex((1 << FR) - 1)}")
        a(f"global_store_dword v10, v11, s[28:29] sc1")
        if FR < 64: a(f"s_mov_b64 exec, -1")
        a(f"L_nc{tag}:")
    a(f"{NAME}_kernel:")
    a("s_cmpk_ge_u32 s2, 256")
    a("s_cbranch_scc1 L_end")
    a("s_load_dwordx16 s[4:19], s[0:1], 0")
    a("s_load_dwordx8 s[20:27], s[0:1], 64")
    a("s_load_dwordx2 s[28:29], s[0:1], 96")
    stamp(0)
    if o.get("map", 0) == 1:
        a("s_and_b32 s3, s2, 7")
        a("s_lshl_b32 s3, s3, 2")
        a("s_bfe_u32 s44, s2, 0x20003")
        a("s_or_b32 s3, s3, s44")
        a("s_and_b32 s2, s2, 0xe0")
        a("s_or_b32 s2, s2, s3")
    a(f"v_lshrrev_b32 v4, 6, v0")
    a(f"v_and_b32 {vL}, 63, v0")
    a(f"v_readfirstlane_b32 {sW}, v4")
    a(f"v_mov_b32 {vF}, {L_FL}")
    a(f"v_lshl_add_u32 v9, {vL}, 2, {vF}")
    a(f"v_mov_b32 v10, 0")
    a(f"ds_write_b32 v9, v10")
    a(f"v_lshrrev_b32 {vRow}, 4, {vL}")
    a(f"v_and_b32 {vCol}, 15, {vL}")
    a(f"s_mov_b32 s39, 0x20000")
    a(f"s_mov_b32 s38, 0x100000")
    a(f"s_lshl_b32 {sT[0]}, s2, 20")
    a(f"v_xor_b32 v4, {vCol}, {vRow}")
    a(f"v_lshlrev_b32 v4, 4, v4")
    a(f"v_lshl_add_u32 v4, {vRow}, 8, v4")
    a(f"v_xor_b32 v5, 64, v4")
    a(f"v_xor_b32 v6, 0x80, v4")
    a(f"v_xor_b32 v7, 64, v6")
    js = (D - 1) % 4
    sMask = "s40"
    RS = o.get("rs", 3); DS = o.get("ds", 36); jss = (DS - 1) % 4
    a(f"v_mov_b32 v8, {(jss - DS - 3)//4 if RS else (js - D - 3)//4}")
    a(f"s_mov_b32 {sOff}, 0")
    a(f"s_mov_b32 m0, 0")
    a(f"s_movk_i32 {sMask}, 0x100")
    a(f"s_mov_b32 {sR}, 0")
    a(f"s_sub_u32 {sW}, {sW}, 1")
    a("s_waitcnt lgkmcnt(0)")
    a("s_barrier")
    a("s_cbranch_scc0 L_cons")

    a("s_setprio 3")
    if o.get("ss", 0): a("s_memrealtime s[62:63]")
    a(f"s_add_u32 s36, s6, {sT[0]}")
    a(f"s_addc_u32 s37, s7, 0")
    if RS:
        a("L_ls:")
        for j in range(4):
            a(f"s_waitcnt vmcnt({DS-1})")
            if j == jss:
                a("v_add_u32 v8, 1, v8")
                a(f"ds_write_b32 {vF}, v8")
            a(f"buffer_load_dwordx4 v{4+j}, {R}, {sOff} offen offset:{1024*j} nt lds")
        a(f"s_addk_i32 {sOff}, 4096")
        a(f"s_and_b32 m0, {sOff}, 0x1ffff")
        a(f"s_cmp_lg_u32 {sOff}, {RS*32768}")
        a(f"s_cbranch_scc1 L_ls")
        a(f"v_mov_b32 v8, {(32*RS + js - D - 3)//4}")
        a(f"s_branch L_ld0")
    a("L_ld:")
    if FB:
        a(f"s_bitcmp1_b32 {sMask}, 0")
        a(f"s_cbranch_scc0 L_nd")
        a(f"buffer_load_dword v12, v4, {R}, s38 offen")
        a(f"L_nd:")
    for j in range(4):
        a(f"s_waitcnt vmcnt({D-1})")
        if j == js:
            a("v_add_u32 v8, 1, v8")
            a(f"ds_write_b32 {vF}, v8")
        a(f"buffer_load_dwordx4 v{4+j}, {R}, {sOff} offen offset:{1024*j} nt lds")
    a(f"s_addk_i32 {sOff}, 4096")
    a(f"s_and_b32 m0, {sOff}, 0x1ffff")
    a(f"s_lshr_b32 {sMask}, {sMask}, 1")
    a(f"s_cmp_lg_u32 {sMask}, 1")
    a(f"s_cbranch_scc1 L_ld")
    if RS: a(f"s_branch L_ld1")
    else:
        a(f"s_cmp_lg_u32 {sR}, 0")
        a(f"s_cbranch_scc1 L_ld1")
    a("L_ld0:")
    if RS: a(f"s_mov_b32 {sR}, {RS-1}")
    a(f"s_add_u32 s8, s8, {sT[0]}")
    a(f"s_addc_u32 s9, s9, 0")
    a(f"s_mov_b32 {sSpin}, 0x100000")
    a(f"v_and_b32 v9, 7, {vL}")
    a(f"v_lshl_add_u32 v9, v9, 2, {vF}")
    a(f"v_mov_b32 v11, {max(RS-1, 0) - 3}")
    if STAMP == 1: a("s_mov_b32 s79, 0")
    if FB == 2:
        a(f"v_mov_b32 v14, {FK0}")
        a(f"ds_write_b32 {vF}, v14 offset:128")
        a(f"v_mov_b32 v15, {vF}")
        a(f"s_cmp_eq_u32 s2, {FLEAD}")
        a(f"s_cselect_b32 s41, 0, 4")
        tab = [0xff, 0x7f, 0x77, 0x75, 0x55, 0x51, 0x11, 0x10]
        a(f"s_mov_b32 s46, {hex(sum(tab[i] << (8*i) for i in range(4)))}")
        a(f"s_mov_b32 s47, {hex(sum(tab[4+i] << (8*i) for i in range(4)))}")
    a("L_ld1:")
    a(f"s_add_u32 {sR}, {sR}, 1")
    a(f"v_add_u32 v11, 1, v11")
    if STAMP == 1:
        for k, rr in zip((1,2,3,6,7), str(o.get("marks", "2,4,6,8,16")).split(",")):
            a(f"s_cmp_lg_u32 {sR}, {rr}")
            a(f"s_cbranch_scc1 L_mk{k}")
            a(f"s_memrealtime s[{60+2*k}:{61+2*k}]")
            a(f"L_mk{k}:")
    a(f"s_cmp_lg_u32 {sR}, 32")
    a(f"s_cbranch_scc1 L_ldnv")
    a(f"s_mov_b32 s36, s8")
    a(f"s_mov_b32 s37, s9")
    a(f"s_mov_b32 {sOff}, 0")
    for j in range(4): a(f"v_lshlrev_b32 v{4+j}, 4, {vL}")
    stamp(4)
    a("L_ldnv:")
    a(f"s_cmp_eq_u32 {sR}, 64")
    a(f"s_cbranch_scc1 L_drain")
    a("L_ldck:")
    a("s_waitcnt lgkmcnt(0)")
    a(f"v_cmp_lt_i32 vcc, v10, v11")
    a(f"s_cbranch_vccnz L_ldslow")
    a(f"s_mov_b32 {sMask}, 0x100")
    if FB == 2:
        a(f"v_readfirstlane_b32 s42, v14")
        if STAMP == 1:
            a(f"s_add_u32 s79, s79, 8"); a(f"s_sub_u32 s79, s79, s42")
        a(f"s_lshl_b32 s42, s42, 3")
        a(f"s_lshr_b64 s[48:49], s[46:47], s42")
        a(f"s_and_b32 s48, s48, 0xff")
        a(f"s_cmp_lt_u32 {sR}, 63")
        a(f"s_cselect_b32 s48, s48, 0")
        a(f"s_cmp_lt_u32 s42, 64")
        a(f"s_cselect_b32 s48, s48, 0")
        a(f"s_or_b32 {sMask}, {sMask}, s48")
        RA = (FG0 + 8*FS + D//4 + 8 + 7) // 8
        a(f"s_and_b32 s42, {sR}, {FP-1}")
        a(f"s_cmp_eq_u32 s42, {RA % FP}")
        a(f"s_cselect_b32 s42, s41, 0")
        if RA >= FP:
            a(f"s_cmp_ge_u32 {sR}, {RA}")
            a(f"s_cselect_b32 s42, s42, 0")
        a(f"v_add_u32 v15, s42, v15")
        a(f"ds_read_b32 v14, v15 offset:128")
    a(f"ds_read_b32 v10, v9 offset:32")
    a(f"s_branch L_ld")
    a("L_drain:")
    pub = (2044 + js - D - 3)//4 + 1
    while pub < 512:
        pub += 1
        a(f"s_waitcnt vmcnt({2048 - 4*pub})")
        a("v_add_u32 v8, 1, v8")
        a(f"ds_write_b32 {vF}, v8")
    stamp(5)
    if STAMP == 3:
        a(f"s_memrealtime s[74:75]")
        a("s_waitcnt lgkmcnt(0)")
        a(f"s_cmp_lg_u32 s2, {o.get('swg', 5)}")
        a("s_cbranch_scc1 L_end")
        for i in range(8): a(f"v_writelane_b32 v16, s{60+2*i}, {i}")
        a(f"v_subrev_u32 v16, s60, v16")
        a(f"v_lshlrev_b32 v17, 2, {vL}")
        a(f"s_mov_b64 exec, 0xff")
        a(f"global_store_dword v17, v16, s[26:27] offset:32")
    elif STAMP:
        if STAMP == 2:
            for i in (1,2,3,6,7): a(f"s_mov_b64 s[{60+2*i}:{61+2*i}], 0")
        a("s_branch L_fin")
    a("s_endpgm")
    a("L_ldslow:")
    a(f"ds_read_b32 v10, v9 offset:32")
    if BOUND:
        a(f"s_sub_u32 {sSpin}, {sSpin}, 1")
        a(f"s_cbranch_scc1 L_end")
    a("s_branch L_ldck")

    a("L_cons:")
    a(f"s_lshr_b32 {sB}, s2, 5")
    a(f"s_and_b32 {sH}, s2, 31")
    a(f"s_mov_b32 {sHI}, 0xffff0000")
    a(f"s_mov_b32 s59, 0x20000")
    a(f"s_lshl_b32 {sT[0]}, {sB}, 10")
    a(f"v_lshlrev_b32 v8, 4, {vL}")
    a(f"s_mov_b32 {sSpin}, 0x100000")
    a(f"s_add_u32 s4, s4, {sT[0]}")
    a(f"s_addc_u32 s5, s5, 0")
    a(f"global_load_dwordx4 v[4:7], v8, s[4:5] {WP}")
    if o.get("ipf", 0):
        a(f"s_getpc_b64 s[46:47]")
        a("L_pc:")
        a(f"s_lshl_b32 {sT[0]}, {sW}, 10")
        a(f"v_add_u32 v9, {sT[0]}, v8")
        a(f"v_min_u32 v9, L_end-L_pc-12, v9")
        a(f"global_load_dwordx4 v[16:19], v9, s[46:47]")
    a(f"s_lshl_b32 {sT[0]}, {sW}, 19")
    a(f"s_lshl_b32 {sT[1]}, {sH}, 8")
    a(f"s_add_u32 {sT[0]}, {sT[0]}, {sT[1]}")
    a(f"s_add_u32 s36, s10, {sT[0]}")
    a(f"s_addc_u32 s37, s11, 0")
    a(f"s_mov_b32 s38, {o.get('wqn', 0x80000)}")
    a(f"v_lshlrev_b32 v9, 17, {vRow}")
    a(f"v_lshl_add_u32 v9, {vCol}, 4, v9")
    if ROT: a(f"s_lshl_b32 {sT[2]}, {sB}, 14")
    else: a(f"s_mov_b32 {sT[2]}, 0")
    def wqload(j):
        a(f"s_xor_b32 {sT[3]}, {sT[2]}, {j*8192}")
        a(f"buffer_load_dwordx4 {wslot(j)}, v9, {R}, {sT[3]} offen {o.get('wqpol', 'nt')}")
    WQS = o.get("wqs", 6); PRE = o.get("pre", 1)
    NQ0 = WQP if WQP else (WQS if WQS else 16)
    if FB == 2:
        a(f"s_mov_b32 {sT[4]}, 0x180000")
        a(f"s_load_dword {sTg}, s[28:29], {sT[4]}")
    for j in range(NQ0): wqload(j)
    a(f"s_waitcnt vmcnt({NQ0})")
    stamp(1)
    ln_start = len(a.lines)
    X = [f"v{16+i}" for i in range(8)]
    def unpack(src4):
        for i in range(4):
            a(f"v_lshlrev_b32 {X[2*i]}, 16, v{src4+i}")
            a(f"v_and_b32 {X[2*i+1]}, {sHI}, v{src4+i}")
    def ln(sM, sD, write):
        a(f"v_add_f32 v24, {X[0]}, {X[1]}")
        for i in range(2, 8): a(f"v_add_f32 v24, v24, {X[i]}")
        wave_reduce("v_add_f32", "v24", sT[0])
        a("s_nop 1")
        a(f"v_mov_b32 v25, {sT[0]}")
        a(f"v_mul_f32 v25, {hex(f2u(1.0/512))}, v25")
        a(f"v_sub_f32 v26, {X[0]}, v25")
        a(f"v_mul_f32 v24, v26, v26")
        for i in range(1, 8):
            a(f"v_sub_f32 v26, {X[i]}, v25")
            a(f"v_fmac_f32 v24, v26, v26")
        wave_reduce("v_add_f32", "v24", sT[0])
        rbf("v25")
        a(f"v_mov_b32 v24, {sT[0]}")
        a(f"v_mul_f32 v24, {hex(f2u(1.0/512))}, v24")
        rbf("v24")
        a(f"v_add_f32 v24, {hex(f2u(1e-5))}, v24")
        rbf("v24")
        a(f"v_sqrt_f32 v24, v24")
        a("s_nop 0")
        rbf("v24")
        a(f"v_rcp_f32 v24, v24")
        a(f"v_readfirstlane_b32 {sM}, v25")
        a(f"v_readfirstlane_b32 {sD}, v24")
        if write:
            for i in range(8): a(f"v_sub_f32 {X[i]}, {X[i]}, v25")
            for i in range(4): a(f"v_cvt_pk_bf16_f32 v{4+i}, {X[2*i]}, {X[2*i+1]}")
            unpack(4)
            for i in range(8): a(f"v_mul_f32 {X[i]}, {X[i]}, v24")
            for i in range(4): a(f"v_cvt_pk_bf16_f32 v{4+i}, {X[2*i]}, {X[2*i+1]}")
    unpack(4)
    ln(sM1, sD1, True)
    a(f"v_add_u32 v8, {L_XN}, v8")
    a(f"ds_write_b128 v8, v[4:7]")
    a(f"s_lshl_b32 {sT[0]}, {sW}, 7")
    if ROT:
        a(f"s_lshl_b32 {sT[1]}, {sB}, 2")
        a(f"s_add_u32 {sT[0]}, {sT[0]}, {sT[1]}")
    a(f"s_add_u32 {sT[0]}, {sT[0]}, {L_XN}")
    a(f"v_lshl_add_u32 v8, {vRow}, 5, {sT[0]}")
    assert L_XN % 32 == 0
    for i in range(8):
        if i:
            a(f"v_xor_b32 v10, {4*i}, v8")
            a(f"ds_read_b32 v{QF+i}, v10")
        else:
            a(f"ds_read_b32 v{QF+i}, v8")
    for i in range(8): a(f"v_mov_b32 {ACC[i]}, 0")
    if WQP:
        body = a.lines[ln_start:]; del a.lines[ln_start:]
        nins = 16 - NQ0
        LNF = o.get("lnf", 100)
        inl = nins * LNF // 100
        pts = [int((k + 0.5) * len(body) / inl) for k in range(inl)] if inl else []
        k = 0
        for idx, line in enumerate(body):
            while k < inl and pts[k] == idx:
                a(f"s_waitcnt vmcnt({NQ0-1})"); wqload(NQ0 + k); k += 1
            a.lines.append(line)
        while k < nins:
            a(f"s_waitcnt vmcnt({NQ0-1})"); wqload(NQ0 + k); k += 1
    if WQS:
        for j in range(WQS, 16): wqload(j)
        NQ0 = 16
    if PRE:
        a(f"v_xor_b32 v12, {vRow}, {vCol}")
        a(f"v_lshlrev_b32 v12, 4, v12")
        a(f"v_lshl_add_u32 v12, {vCol}, 8, v12")
        a(f"s_lshl_b32 {sT[0]}, {sW}, 12")
        a(f"v_add_u32 v12, {sT[0]}, v12")
        for t in range(1, 4): a(f"v_xor_b32 v{19+t}, {64*t}, v12")
        spin(0, "s_cmp_gt_i32", sW, "v10", sT[0])
        a(f"ds_read_b128 v[{DT}:{DT+3}], v12")
        for t in range(1, 4): a(f"ds_read_b128 v[{DT+4*t}:{DT+4*t+3}], v{19+t}")
        a(f"s_lshl_b32 {sT[0]}, {sW}, 2")
        a(f"v_add_u32 v13, {sT[0]}, {vF}")
        a(f"v_mov_b32 v14, 1")
    a("s_waitcnt lgkmcnt(0)")
    if PRE: a(f"ds_write_b32 v13, v14 offset:32")
    for j in range(16):
        src = f"v{QF + j//2}"
        if j % 2 == 0:
            a(f"v_and_b32 v10, 0xffff, {src}"); a(f"v_lshlrev_b32 v11, 16, {src}")
        else:
            a(f"v_lshrrev_b32 v10, 16, {src}"); a(f"v_and_b32 v11, {sHI}, {src}")
        if 15 - j < NQ0: a(f"s_waitcnt vmcnt({15 - j})")
        for i in range(4):
            a(f"v_dot2c_f32_bf16 {ACC[2*i]}, v10, v{WREG+4*j+i}")
            a(f"v_dot2c_f32_bf16 {ACC[2*i+1]}, v11, v{WREG+4*j+i}")
    stamp(2)
    vPA = "v23"
    a(f"s_mul_i32 {sT[0]}, {sW}, 528")
    a(f"s_add_u32 {sT[0]}, {sT[0]}, {L_QP}")
    a(f"v_lshl_add_u32 v15, {vCol}, 5, {sT[0]}")
    a(f"v_lshl_add_u32 v15, {vRow}, 3, v15")
    rows_reduce8("v15")
    a(f"v_mov_b32 v10, 1")
    a("s_waitcnt lgkmcnt(0)")
    a(f"s_mov_b64 exec, 1")
    a(f"ds_add_u32 {vF}, v10 offset:4")
    a(f"s_mov_b64 exec, -1")
    MX = 128
    for i in range(4): a(f"v_mov_b32 v{141+i}, v{4+i}")
    spin(4, "s_cmp_ge_u32", 8, "v10", sT[0])
    a(f"v_lshlrev_b32 v10, 3, {vL}")
    a(f"v_add_u32 v10, {L_QP}, v10")
    for w in range(8): a(f"ds_read_b64 v[{WREG+2*w}:{WREG+2*w+1}], v10 offset:{528*w}")
    a("s_waitcnt lgkmcnt(0)")
    for st in (8, 4, 2):
        for i in range(st): a(f"v_add_f32 v{WREG+i}, v{WREG+i}, v{WREG+st+i}")
    a(f"v_cvt_pk_bf16_f32 v{WREG}, v{WREG}, v{WREG+1}")
    a(f"v_lshlrev_b32 v10, 2, {vL}")
    a(f"v_add_u32 v10, {L_XN}, v10")
    a(f"ds_write_b32 v10, v{WREG}")
    a(f"v_lshlrev_b32 v10, 4, {vRow}")
    a(f"v_add_u32 v10, {L_XN}, v10")
    for t in range(4): a(f"ds_read_b128 v[{QF+4*t}:{QF+4*t+3}], v10 offset:{64*t}")
    vH, vMA, vC0 = "v138", "v139", "v140"
    a(f"s_mov_b32 {sL2E}, {hex(f2u(l2e))}")
    a(f"s_mov_b32 {sK}, {hex(f2u(128 ** -0.5))}")
    vKA, vSA, vDA, vM, vLs, vDn = "v4", "v5", "v6", "v7", "v8", "v9"
    a(f"v_xor_b32 {vKA}, {vRow}, {vCol}")
    a(f"v_lshlrev_b32 {vKA}, 4, {vKA}")
    a(f"v_lshl_add_u32 {vKA}, {vCol}, 8, {vKA}")
    a(f"s_lshl_b32 {sT[0]}, {sW}, 12")
    a(f"v_add_u32 {vKA}, {sT[0]}, {vKA}")
    a(f"s_lshl_b32 {sT[0]}, {sW}, 6")
    a(f"s_add_u32 {sT[0]}, {sT[0]}, {L_SC}")
    a(f"v_lshl_add_u32 {vSA}, {vCol}, 2, {sT[0]}")
    a(f"s_lshl_b32 {sT[0]}, {sW}, 2")
    a(f"v_add_u32 {vDA}, {sT[0]}, {vF}")
    a(f"v_mov_b32 {vM}, 0xff7fffff")
    a(f"v_mov_b32 {vLs}, 0")
    a(f"v_mov_b32 {vDn}, 0")
    a(f"s_mov_b32 {sG}, {sW}")
    a(f"s_mov_b32 {sR}, 0")
    a(f"s_lshl_b32 {sT[0]}, {sH}, 17")
    a(f"s_lshl_b32 {sT[1]}, {sW}, 14")
    a(f"s_add_u32 {sT[0]}, {sT[0]}, {sT[1]}")
    a(f"s_add_u32 s36, s12, {sT[0]}")
    a(f"s_addc_u32 s37, s13, 0")
    a(f"s_mov_b32 s38, {o.get('won', 16384)}")
    a(f"s_mul_i32 {sOff}, {sW}, {WOS}")
    a(f"s_add_u32 {sOff}, {sOff}, {WOR}")
    if FB == 2:
        a(f"s_add_u32 {sTg}, {sTg}, 1")
    stamp(3)
    if PRE:
        a("s_waitcnt lgkmcnt(0)")
        a("s_branch L_kmid")
    a("L_k:")
    for t in range(1, 4): a(f"v_xor_b32 v{10+t}, {64*t}, {vKA}")
    spin(0, "s_cmp_gt_i32", sG, "v10", sT[0])
    a(f"ds_read_b128 v[{DT}:{DT+3}], {vKA}")
    for t in range(1, 4): a(f"ds_read_b128 v[{DT+4*t}:{DT+4*t+3}], v{10+t}")
    a("L_kmid:")
    a(f"v_add_u32 {vDn}, 1, {vDn}")
    a(f"v_add_u32 {vKA}, 0x8000, {vKA}")
    a(f"v_and_b32 {vKA}, 0x1ffff, {vKA}")
    for t in range(4):
        a(f"s_waitcnt lgkmcnt({3-t})")
        a(f"v_mfma_f32_16x16x32_bf16 v[16:19], v[{QF+4*t}:{QF+4*t+3}], v[{DT+4*t}:{DT+4*t+3}], {'0' if t == 0 else 'v[16:19]'}")
    a(f"ds_write_b32 {vDA}, {vDn} offset:32")
    a(f"s_add_u32 {sG}, {sG}, 8")
    a(f"s_nop 5")
    rbf("v16")
    a(f"v_mul_f32 v16, {sK}, v16")
    rbf("v16")
    a(f"ds_write_b32 {vSA}, v16")
    a(f"v_max_f32 v17, {vM}, v16")
    a(f"v_sub_f32 v18, {vM}, v17")
    a(f"v_sub_f32 v16, v16, v17")
    a(f"v_mul_f32 v18, {sL2E}, v18")
    a(f"v_mul_f32 v16, {sL2E}, v16")
    a(f"v_exp_f32 v18, v18")
    a(f"v_exp_f32 v16, v16")
    a(f"v_mov_b32 {vM}, v17")
    a(f"v_add_u32 {vSA}, 512, {vSA}")
    a(f"v_fma_f32 {vLs}, {vLs}, v18, v16")
    ctl("k")
    a(f"v_lshlrev_b32 v10, 4, {vL}")
    if WOT:
        rounds = {}
        for j in range(16): rounds.setdefault(WOR + j * WOM // WOD, []).append(j)
        if SPF:
            for j in range(16): rounds.setdefault(WOR + j * WOM // WOD - SPF, []).append(-1 - j)
        for rr, js_ in sorted(rounds.items()):
            a(f"s_cmp_lg_u32 {sR}, {rr}")
            a(f"s_cbranch_scc1 L_wo{rr}")
            for j in js_:
                if j < 0:
                    jj = -1 - j
                    a(f"s_lshl_b32 {sT[1]}, {sB}, 7")
                    a(f"s_add_u32 {sT[1]}, {sT[1]}, {1024*jj}")
                    a(f"s_load_dword {sT[2]}, s[36:37], {sT[1]}")
                    a(f"s_add_u32 {sT[1]}, {sT[1]}, 64")
                    a(f"s_load_dword {sT[3]}, s[36:37], {sT[1]}")
                    continue
                a(f"s_movk_i32 {sT[1]}, {1024*j}")
                a(f"buffer_load_dwordx4 {wslot(j)}, v10, {R}, {sT[1]} offen {WOP}")
            a(f"L_wo{rr}:")
    a(f"s_cmp_lg_u32 {sR}, {sOff}")
    a(f"s_cbranch_scc1 L_nowo")
    if not WOT:
        for j in range(16):
            if j % 4 == 0: a(f"s_movk_i32 {sT[1]}, {1024*j}")
            a(f"buffer_load_dwordx4 {wslot(j)}, v10, {R}, {sT[1]} offen offset:{1024*(j%4)} {WP}")
    a(f"s_lshl_b32 {sT[0]}, {sH}, 5")
    a(f"v_lshl_add_u32 v11, {vCol}, 1, {sT[0]}")
    a(f"global_load_ushort v138, v11, s[4:5] {WP}")
    a(f"s_mul_i32 {sT[0]}, {sW}, 448")
    a(f"v_mul_u32_u24 v11, 112, {vRow}")
    a(f"v_lshl_add_u32 v11, {vCol}, 2, v11")
    a(f"v_add_u32 v11, {sT[0]}, v11")
    a(f"v_cmp_lt_u32 vcc, 13, {vCol}")
    a(f"v_mov_b32 v12, 0x10000")
    a(f"s_mov_b32 s58, 3584")
    a(f"v_cndmask_b32 v11, v11, v12, vcc")
    for k, p in enumerate([16, 18, 20]):
        a(f"s_mov_b32 s56, s{p}"); a(f"s_mov_b32 s57, s{p+1}")
        for s_ in range(2):
            a(f"buffer_load_dword v{MX + 5*s_ + (1,3,4)[k]}, v11, {W2}, 0 offen offset:{56*s_} {WP}")
    a(f"s_load_dword {sB2}, s[22:23], 0")
    if TAIL == 3:
        a(f"s_lshl_b32 {sT[0]}, {sB}, 8")
        a(f"s_add_u32 {sT[0]}, {sT[0]}, 0x180000")
        a(f"s_load_dword {sE}, s[28:29], {sT[0]}")
    a("L_nowo:")
    a(f"s_cmp_lg_u32 {sR}, 15")
    a(f"s_cbranch_scc1 L_noms")
    unpack(141)
    ln(sM2, sD2, False)
    a("s_waitcnt vmcnt(0)")
    a(f"v_lshlrev_b32 {vH}, 16, v138")
    a(f"v_mov_b32 v145, {vH}")
    a(f"v_subrev_f32 {vH}, {sM1}, {vH}"); rbf(vH)
    a(f"v_mul_f32 {vH}, {sD1}, {vH}"); rbf(vH)
    a(f"v_subrev_f32 {vH}, {sM2}, {vH}"); rbf(vH)
    a(f"v_mul_f32 {vH}, {sD2}, {vH}"); rbf(vH)
    for s_ in range(2):
        b = MX + 5*s_
        a(f"v_lshlrev_b32 v{b}, 16, v{b+1}"); a(f"v_and_b32 v{b+1}, {sHI}, v{b+1}")
        a(f"v_lshlrev_b32 v{b+2}, 16, v{b+3}"); a(f"v_and_b32 v{b+3}, {sHI}, v{b+3}")
    kb = math.sqrt(2.0/math.pi)
    a(f"v_mov_b32 {vC0}, {hex(f2u(-2*kb*l2e))}")
    a(f"s_mov_b32 {sC1}, {hex(f2u(-2*kb*l2e*0.044715))}")
    a(f"v_mov_b32 {vMA}, 0")
    a("L_noms:")
    a(f"s_cmp_lt_u32 {sR}, 16")
    a(f"s_cbranch_scc1 L_nomix")
    BC = "row_newbcast:0 " + FULL
    for s_ in range(2):
        b = MX + 5*s_
        a(f"v_mul_f32_dpp v16, v{b}, {vH} {BC}")
        a(f"v_mul_f32_dpp v17, v{b+1}, {vH} {BC}")
        a(f"v_cvt_pk_bf16_f32 v17, v16, v17")
        a(f"v_lshlrev_b32 v16, 16, v17"); a(f"v_and_b32 v17, {sHI}, v17")
        a(f"v_add_f32_dpp v16, v{b+2}, v16 {BC}")
        a(f"v_add_f32_dpp v17, v{b+3}, v17 {BC}")
        a(f"v_cvt_pk_bf16_f32 v17, v16, v17")
        a(f"v_lshlrev_b32 v16, 16, v17"); a(f"v_and_b32 v17, {sHI}, v17")
        a(f"v_mul_f32 v18, v16, v16"); a(f"v_mul_f32 v19, v17, v17")
        a(f"v_fma_f32 v18, v18, {sC1}, {vC0}"); a(f"v_fma_f32 v19, v19, {sC1}, {vC0}")
        a(f"v_mul_f32 v18, v18, v16"); a(f"v_mul_f32 v19, v19, v17")
        a(f"v_exp_f32 v18, v18"); a(f"v_exp_f32 v19, v19")
        a(f"v_mov_b32_dpp v{b}, v{b} row_ror:15 {FULL}")
        a(f"v_add_f32 v18, 1.0, v18"); a(f"v_add_f32 v19, 1.0, v19")
        a(f"v_rcp_f32 v18, v18"); a(f"v_rcp_f32 v19, v19")
        a(f"v_mov_b32_dpp v{b+1}, v{b+1} row_ror:15 {FULL}")
        a(f"v_mul_f32 v18, v18, v16"); a(f"v_mul_f32 v19, v19, v17")
        a(f"v_cvt_pk_bf16_f32 v18, v18, v19")
        a(f"v_mov_b32_dpp v{b+2}, v{b+2} row_ror:15 {FULL}")
        a(f"v_mov_b32_dpp v{b+3}, v{b+3} row_ror:15 {FULL}")
        a(f"v_dot2c_f32_bf16_dpp {vMA}, v{b+4}, v18 {BC}")
        a(f"v_mov_b32_dpp v{b+4}, v{b+4} row_ror:15 {FULL}")
    a("L_nomix:")
    probe("k")
    a(f"s_add_u32 {sR}, {sR}, 1")
    a(f"s_cmp_lt_u32 {sR}, 32")
    a(f"s_cbranch_scc1 L_k")
    if STAMP: pass
    a(f"v_mov_b32 v16, {vM}")
    allreduce("v_max_f32", ["v16"], 4)
    a(f"v_sub_f32 v17, {vM}, v16")
    a(f"v_mul_f32 v17, {sL2E}, v17")
    a(f"v_exp_f32 v17, v17")
    a(f"s_lshl_b32 {sT[0]}, {sW}, 3")
    a(f"v_add_u32 v18, {sT[0]}, {vF}")
    a(f"v_mul_f32 v17, v17, {vLs}")
    allreduce("v_add_f32", ["v17"], 4)
    a(f"ds_write_b64 v18, v[16:17] offset:64")
    rows_sum(vMA, "v19")
    a(f"s_lshl_b32 {sT[0]}, {sW}, 6")
    a(f"s_add_u32 {sT[0]}, {sT[0]}, {L_BP}")
    a(f"v_lshl_add_u32 v19, {vCol}, 2, {sT[0]}")
    a(f"ds_write_b32 v19, {vMA}")
    a(f"v_mov_b32 v10, 1")
    a("s_waitcnt lgkmcnt(0)")
    a(f"s_mov_b64 exec, 1")
    a(f"ds_add_u32 {vF}, v10 offset:8")
    a(f"s_mov_b64 exec, -1")
    a(f"s_mov_b32 {sT[0]}, 0x05040100")
    a(f"s_mov_b32 {sT[1]}, 0x07060302")
    a("s_waitcnt vmcnt(0)")
    for p in range(8):
        for i in range(4):
            r0 = WREG + 8*p + i; r1 = r0 + 4
            a(f"v_perm_b32 v16, v{r1}, v{r0}, {sT[0]}")
            a(f"v_perm_b32 v{r1}, v{r1}, v{r0}, {sT[1]}")
            a(f"v_mov_b32 v{r0}, v16")
    spin(8, "s_cmp_ge_u32", 8, "v10", sT[0])
    a(f"v_and_b32 v18, 7, {vL}")
    a(f"v_lshl_add_u32 v18, v18, 3, {vF}")
    a(f"ds_read_b64 v[16:17], v18 offset:64")
    a(f"v_lshlrev_b32 v19, 2, {vL}")
    a(f"v_add_u32 v18, {L_BP}, v19")
    a(f"ds_read_b32 v20, v18")
    a(f"ds_read_b32 v21, v18 offset:256")
    a("s_waitcnt lgkmcnt(0)")
    a(f"v_mov_b32 {vM}, v16")
    allreduce("v_max_f32", [vM], 3)
    a(f"v_sub_f32 v16, v16, {vM}")
    a(f"v_mul_f32 v16, {sL2E}, v16")
    a(f"v_exp_f32 v16, v16")
    a(f"v_add_f32 v20, v20, v21")
    a(f"v_mul_f32 {vLs}, v16, v17")
    allreduce("v_add_f32", [vLs], 3)
    a(f"v_rcp_f32 {vLs}, {vLs}")
    rows_sum("v20", "v21")
    rbf("v20")
    a(f"s_lshl_b32 {sB2}, {sB2}, 16")
    a(f"v_add_f32 v20, {sB2}, v20")
    rbf("v20")
    if TAIL == 3:
        a(f"v_and_b32 v21, 7, {vL}")
        a(f"v_lshrrev_b32 v22, 5, {vL}")
        a(f"v_lshl_add_u32 v21, v21, 1, v22")
        a(f"v_lshlrev_b32 v22, 2, v21")
        a(f"ds_bpermute_b32 v146, v22, v20")
        a(f"ds_bpermute_b32 v145, v22, v145")
        a(f"s_lshl_b32 {sT[0]}, s2, 5")
        a(f"v_lshl_add_u32 v147, v21, 1, {sT[0]}")
        a(f"s_add_u32 {sE}, {sE}, 1")
    else:
        a(f"s_lshl_b32 {sT[0]}, s2, 6")
        a(f"s_add_u32 {sT[0]}, {sT[0]}, 0x80000")
        a(f"s_add_u32 s56, s28, {sT[0]}")
        a(f"s_addc_u32 s57, s29, 0")
        a(f"s_cmp_eq_u32 {sW}, 0")
        a(f"s_cselect_b32 s58, 64, 0")
        a(f"buffer_store_dword v20, v19, {W2}, 0 offen sc1")
    a(f"s_lshl_b32 {sT[0]}, {sW}, 12")
    a(f"v_lshl_add_u32 {vKA}, {vL}, 4, {sT[0]}")
    a(f"v_and_b32 {vSA}, 3, {vL}")
    a(f"v_lshl_add_u32 {vSA}, {vSA}, 2, {vRow}")
    a(f"s_lshl_b32 {sT[0]}, {sW}, 6")
    a(f"s_add_u32 {sT[0]}, {sT[0]}, {L_SC}")
    a(f"v_lshl_add_u32 {vSA}, {vSA}, 2, {sT[0]}")
    for i in range(8): a(f"v_mov_b32 {ACC[i]}, 0")
    a(f"s_mov_b32 {sR}, 0")
    stamp(4)
    a("L_v:")
    a(f"ds_read_b32 v16, {vSA}")
    a(f"v_add_u32 {vSA}, 512, {vSA}")
    a(f"v_add_u32 {vDn}, 1, {vDn}")
    a("s_waitcnt lgkmcnt(0)")
    a(f"v_sub_f32 v16, v16, {vM}")
    a(f"v_mul_f32 v16, {sL2E}, v16")
    a(f"v_exp_f32 v16, v16")
    a(f"s_add_u32 {sR}, {sR}, 1")
    a(f"v_mul_f32 v16, v16, {vLs}")
    a(f"v_cvt_pk_bf16_f32 v16, v16, v16")
    a(f"v_lshrrev_b32 v17, 16, v16")
    a(f"v_and_b32 v16, {sHI}, v16")
    spin(0, "s_cmp_gt_i32", sG, "v10", sT[0])
    for t in range(4): a(f"ds_read_b128 v[{DT+4*t}:{DT+4*t+3}], {vKA} offset:{1024*t}")
    a(f"v_add_u32 {vKA}, 0x8000, {vKA}")
    a(f"v_and_b32 {vKA}, 0x1ffff, {vKA}")
    a(f"s_add_u32 {sG}, {sG}, 8")
    for j in range(4):
        a(f"s_waitcnt lgkmcnt({3-j})")
        if j == 3: a(f"ds_write_b32 {vDA}, {vDn} offset:32")
        for i in range(4):
            a(f"v_dot2c_f32_bf16_dpp {ACC[2*i]}, v17, v{DT+4*j+i} quad_perm:[{j},{j},{j},{j}] {FULL}")
            a(f"v_dot2c_f32_bf16_dpp {ACC[2*i+1]}, v16, v{DT+4*j+i} quad_perm:[{j},{j},{j},{j}] {FULL}")
    probe("v")
    ctl("v")
    a(f"s_cmp_lt_u32 {sR}, 32")
    a(f"s_cbranch_scc1 L_v")
    stamp(5)
    if o.get("notail", 0) == 1:
        stamp(6); stamp(7)
        a("s_branch L_fin")
    a("s_nop 0")
    rows_reduce8("v15")
    a(f"v_and_b32 v10, 7, {vL}")
    a(f"v_mul_u32_u24 v10, 528, v10")
    a(f"v_and_b32 v11, 0x38, {vL}")
    a(f"s_lshl_b32 {sT[0]}, {sW}, 6")
    a(f"s_add_u32 {sT[0]}, {sT[0]}, {L_QP}")
    a(f"v_add3_u32 v10, v10, v11, {sT[0]}")
    a("s_waitcnt lgkmcnt(0)")
    a("s_barrier")
    tstamp(1)
    a(f"ds_read_b64 v[16:17], v10")
    for i in range(8): a(f"v_mov_b32 {ACC[i]}, 0")
    a("s_waitcnt lgkmcnt(0)")
    allreduce("v_add_f32", ["v16", "v17"], 3)
    a("v_cvt_pk_bf16_f32 v16, v16, v17")
    a("s_nop 0")
    for p in range(8): a(f"v_readlane_b32 {sT[p]}, v16, {8*p}")
    for p in range(8):
        for i in range(4):
            a(f"v_dot2c_f32_bf16 {ACC[2*i]}, {sT[p]}, v{WREG+8*p+i}")
            a(f"v_dot2c_f32_bf16 {ACC[2*i+1]}, {sT[p]}, v{WREG+8*p+4+i}")
    a(f"s_lshl_b32 {sT[0]}, {sW}, 11")
    a(f"v_lshl_add_u32 v10, {vL}, 5, {sT[0]}")
    a(f"s_lshl_b32 {sT[0]}, {sW}, 8")
    a(f"v_lshl_add_u32 v11, {vL}, 2, {sT[0]}")
    a(f"ds_write_b128 v10, v[24:27] offset:{L_Y}")
    a(f"ds_write_b128 v10, v[28:31] offset:{L_Y+16}")
    if TAIL == 3:
        a(f"s_lshl_b32 {sT[0]}, {sB}, 17")
        a(f"s_add_u32 s56, s28, {sT[0]}")
        a(f"s_addc_u32 s57, s29, 0")
        a(f"s_mov_b32 s58, 0x20000")
        a(f"s_lshl_b32 {sT[0]}, {sW}, 14")
        a(f"s_lshl_b32 {sT[1]}, {sH}, 7")
        a(f"s_add_u32 {sT[0]}, {sT[0]}, {sT[1]}")
        if o.get("st4", 1):
            a(f"v_bfe_u32 v13, {vL}, 3, 2")
            a(f"v_lshl_add_u32 v12, v13, 12, {sT[0]}")
            a(f"v_and_b32 v13, 7, {vL}")
            a(f"v_lshl_add_u32 v12, v13, 4, v12")
            a(f"v_lshrrev_b32 v13, 5, {vL}")
            a(f"v_lshl_add_u32 v12, v13, 17, v12")
            a(f"v_and_b32 v11, 31, {vL}")
            a(f"s_lshl_b32 {sT[0]}, {sW}, 8")
            a(f"v_lshl_add_u32 v11, v11, 3, {sT[0]}")
            a(f"v_lshl_add_u32 v11, v13, 13, v11")
            a("s_waitcnt lgkmcnt(0)")
            a("s_barrier")
            tstamp(2)
            for i in range(4): a(f"ds_read_b64 v[{16+2*i}:{17+2*i}], v11 offset:{L_Y + 2048*i}")
            a(f"s_lshl_b32 {sT[0]}, {sH}, 12")
            a(f"v_lshl_add_u32 v13, {vL}, 4, {sT[0]}")
            a("s_waitcnt lgkmcnt(0)")
            for i in range(4): a(f"v_add_f32 v{16+i}, v{16+i}, v{20+i}")
            a("v_add_f32 v20, v16, v18")
            a("v_add_f32 v21, v17, v19")
            a("v_add_f32 v22, v16, v18")
            a("v_add_f32 v23, v17, v19")
            a(f"v_mov_b32 v17, {sE}")
            a("v_permlane32_swap_b32 v20, v22")
            a("v_permlane32_swap_b32 v21, v23")
            a(f"v_mov_b32 v19, {sE}")
            a("v_add_f32 v16, v20, v22")
            a("v_add_f32 v18, v21, v23")
            a(f"buffer_store_dwordx4 v[16:19], v12, {W2}, 0 offen {o.get('stp', 'sc1')}")
        else:
            a(f"v_lshl_add_u32 v12, {vRow}, 12, {sT[0]}")
            a(f"v_lshl_add_u32 v12, {vCol}, 3, v12")
            a("s_waitcnt lgkmcnt(0)")
            a("s_barrier")
            tstamp(2)
            for i in range(8): a(f"ds_read_b32 v{16+i}, v11 offset:{L_Y + 2048*i}")
            a(f"s_lshl_b32 {sT[0]}, {sH}, 12")
            a(f"v_lshl_add_u32 v13, {vL}, 4, {sT[0]}")
            a("s_waitcnt lgkmcnt(0)")
            for st in (4, 2, 1):
                for i in range(st): a(f"v_add_f32 v{16+i}, v{16+i}, v{16+st+i}")
            a(f"v_mov_b32 v17, {sE}")
            a(f"buffer_store_dwordx2 v[16:17], v12, {W2}, 0 offen sc1")
        tstamp(3)
        stamp(6); stamp(7); tstamp(4)
        a(f"s_cmp_lg_u32 {sW}, 0")
        a(f"s_cbranch_scc1 L_fin")
        if STAMP == 1: a("s_mov_b32 s79, 0")
        a("L_poll:")
        if STAMP == 1: a("s_add_u32 s79, s79, 1")
        for i in range(4): a(f"buffer_load_dwordx4 v[{32+4*i}:{35+4*i}], v13, {W2}, 0 offen offset:{1024*i} {o.get('plp', 'sc1')}")
        a(f"s_mov_b64 s[44:45], exec")
        if BOUND:
            a(f"s_sub_u32 {sSpin}, {sSpin}, 16")
            a(f"s_cbranch_scc1 L_end")
        if o.get("psl", 0): a(f"s_sleep {o['psl']}")
        a("s_waitcnt vmcnt(0)")
        for i in range(8): a(f"v_cmpx_eq_u32 vcc, v17, v{33+2*i}")
        a(f"s_andn2_b64 exec, s[44:45], exec")
        a(f"s_cbranch_execnz L_poll")
        a(f"s_mov_b64 exec, -1")
        tstamp(4)
        for st in (8, 4):
            for i in range(0, st, 2): a(f"v_add_f32 v{32+i}, v{32+i}, v{32+st+i}")
        a("s_nop 1")
        a("v_permlane32_swap_b32 v32, v34")
        a("v_add_f32 v32, v32, v34")
        a("v_mov_b32 v33, v32"); a("s_nop 1")
        a("v_permlane16_swap_b32 v32, v33")
        a("v_add_f32 v32, v32, v33")
        a("s_nop 1")
        a(f"v_add_f32_dpp v32, v32, v32 row_ror:8 {FULL}")
        rbf("v32")
        a("v_add_f32 v32, v145, v32")
        rbf("v32")
        a("v_add_f32 v32, v32, v146")
        a("v_cvt_pk_bf16_f32 v32, v32, v32")
        a("s_mov_b32 exec_lo, 0xff")
        a("s_mov_b32 exec_hi, 0xff")
        a(f"global_store_short v147, v32, s[24:25]")
        a(f"s_cmp_lg_u32 {sH}, 0")
        a(f"s_cbranch_scc1 L_nob")
        a(f"s_lshl_b32 {sT[0]}, {sB}, 8")
        a(f"s_add_u32 {sT[0]}, {sT[0]}, 0x180000")
        a(f"v_mov_b32 v16, {sT[0]}")
        a(f"s_mov_b64 exec, 1")
        a(f"global_store_dword v16, v17, s[28:29]")
        a("L_nob:")
        a(f"s_mov_b64 exec, -1")
    else:
        a(f"s_lshl_b32 {sT[0]}, s2, 11")
        a(f"s_add_u32 s56, s28, {sT[0]}")
        a(f"s_addc_u32 s57, s29, 0")
        a(f"s_mov_b32 s58, 2048")
        a("s_waitcnt lgkmcnt(0)")
        a("s_barrier")
        tstamp(2)
        for i in range(8): a(f"ds_read_b32 v{16+i}, v11 offset:{L_Y + 2048*i}")
        a("s_waitcnt lgkmcnt(0)")
        for st in (4, 2, 1):
            for i in range(st): a(f"v_add_f32 v{16+i}, v{16+i}, v{16+st+i}")
        a(f"buffer_store_dword v16, v11, {W2}, 0 offen sc1")
        tstamp(3)
        a("s_waitcnt vmcnt(0)")
        a("s_barrier")
        stamp(6)
        if o.get("notail", 0) == 2:
            stamp(7)
            a("s_branch L_fin")
        a(f"s_cmp_lg_u32 {sW}, 0")
        a(f"s_cbranch_scc1 L_wait")
        a(f"s_lshl_b32 {sT[0]}, {sB}, 2")
        a(f"v_mov_b32 v16, {sT[0]}")
        a(f"v_mov_b32 v17, 1")
        a(f"s_mov_b64 exec, 1")
        a(f"global_atomic_add v18, v16, v17, s[26:27] sc0 sc1")
        a("s_waitcnt vmcnt(0)")
        a(f"ds_write_b32 {vF}, v18 offset:12")
        a(f"s_mov_b64 exec, -1")
        a("s_waitcnt lgkmcnt(0)")
        a("L_wait:")
        a("s_barrier")
        a(f"ds_read_b32 v18, {vF} offset:12")
        a("s_waitcnt lgkmcnt(0)")
        a(f"v_readfirstlane_b32 {sT[0]}, v18")
        stamp(7)
        a(f"s_cmp_lg_u32 {sT[0]}, 31")
        a(f"s_cbranch_scc1 L_fin")
        a(f"s_lshl_b32 {sT[0]}, {sB}, 16")
        a(f"s_add_u32 s56, s28, {sT[0]}")
        a(f"s_addc_u32 s57, s29, 0")
        a(f"s_mov_b32 s58, 65536")
        a(f"s_lshl_b32 {sT[0]}, {sW}, 8")
        a(f"v_lshl_add_u32 v10, {vCol}, 4, {sT[0]}")
        a(f"v_lshl_add_u32 v10, {vRow}, 14, v10")
        for i in range(8):
            if i % 2 == 0: a(f"s_movk_i32 {sT[1]}, {2048*i}")
            a(f"buffer_load_dwordx4 v[{32+4*i}:{35+4*i}], v10, {W2}, {sT[1]} offen offset:{2048*(i%2)} sc1")
        a(f"s_lshl_b32 {sT[0]}, {sW}, 6")
        a(f"v_lshl_add_u32 v11, {vCol}, 2, {vRow}")
        a(f"v_add_u32 v11, {sT[0]}, v11")
        a(f"v_lshlrev_b32 v12, 1, v11")
        a(f"global_load_ushort v13, v12, s[4:5]")
        a(f"s_lshl_b32 {sT[0]}, {sB}, 11")
        a(f"s_add_u32 {sT[0]}, {sT[0]}, 0x80000")
        a(f"v_lshl_add_u32 v11, v11, 2, {sT[0]}")
        a(f"global_load_dword v14, v11, s[28:29] sc1")
        a("s_waitcnt vmcnt(2)")
        tstamp(4)
        for st in (16, 8, 4):
            for i in range(st): a(f"v_add_f32 v{32+i}, v{32+i}, v{32+st+i}")
        a("s_nop 0")
        a("v_permlane32_swap_b32 v32, v34")
        a("v_permlane32_swap_b32 v33, v35")
        a("v_add_f32 v32, v32, v34")
        a("v_add_f32 v33, v33, v35")
        a("s_nop 1")
        a("v_permlane16_swap_b32 v32, v33")
        a("v_add_f32 v16, v32, v33")
        rbf("v16")
        a("s_waitcnt vmcnt(0)")
        a("v_lshlrev_b32 v13, 16, v13")
        a("v_add_f32 v16, v13, v16")
        rbf("v16")
        a("v_add_f32 v16, v16, v14")
        a("v_cvt_pk_bf16_f32 v16, v16, v16")
        a(f"s_lshl_b32 {sT[0]}, {sB}, 10")
        a(f"v_add_u32 v12, {sT[0]}, v12")
        a(f"global_store_short v12, v16, s[24:25]")
    a("L_fin:")
    if o.get("pin", 0):
        a("L_pin:")
        a("s_memrealtime s[62:63]")
        a("s_waitcnt lgkmcnt(0)")
        a("s_sub_u32 s62, s62, s60")
        a(f"s_cmp_lt_u32 s62, {o['pin']}")
        a("s_cbranch_scc1 L_pin")
    stamp(8)
    if STAMP == 1:
        a("s_waitcnt lgkmcnt(0)")
        a(f"s_mul_i32 {sT[0]}, s2, 9")
        a(f"s_add_u32 {sT[0]}, {sT[0]}, {sW}")
        a(f"s_add_u32 {sT[0]}, {sT[0]}, 1")
        a(f"s_lshl_b32 {sT[0]}, {sT[0]}, 7")
        a(f"s_add_u32 {sT[0]}, {sT[0]}, 0x100000")
        a(f"v_mov_b32 v16, 0")
        for i in range(18): a(f"v_writelane_b32 v16, s{60+i}, {i}")
        a(f"s_getreg_b32 {sT[1]}, hwreg(HW_REG_XCC_ID)")
        a(f"s_getreg_b32 {sT[2]}, hwreg(HW_REG_HW_ID)")
        a(f"v_writelane_b32 v16, {sT[1]}, 18")
        a(f"v_writelane_b32 v16, {sT[2]}, 19")
        a(f"v_writelane_b32 v16, {sSpin}, 20")
        a(f"v_writelane_b32 v16, s79, 21")
        a(f"v_lshl_add_u32 v17, {vL}, 2, {sT[0]}")
        a(f"s_mov_b64 exec, 0xffffffff")
        a(f"global_store_dword v17, v16, s[28:29]")
    if STAMP == 2:
        a("s_waitcnt lgkmcnt(0)")
        a(f"s_cmp_gt_i32 {sW}, 0")
        a("s_cbranch_scc1 L_end")
        a(f"v_mov_b32 v16, 0")
        a(f"s_not_b32 {sT[1]}, s60")
        a(f"v_writelane_b32 v16, {sT[1]}, 0")
        for i in range(6): a(f"v_writelane_b32 v16, s{66+2*i}, {i+1}")
        a(f"s_not_b32 {sT[1]}, s70")
        a(f"v_writelane_b32 v16, {sT[1]}, 7")
        a(f"v_lshlrev_b32 v17, 2, {vL}")
        a(f"s_mov_b64 exec, 0xff")
        a(f"global_atomic_umax v17, v16, s[26:27] offset:32 sc1")
    a("L_end:")
    a("s_endpgm")

    head = open("cdna_kernels/%s.s.ref" % NAME).read().split("; Override launch")[0]
    out = head + f"; @launch grid=(256,1,1) block=(576,1,1) lds={LDS_BYTES}\n"
    out += '.amdgcn_target "amdgcn-amd-amdhsa--gfx950"\n.text\n'
    out += f".globl {NAME}_kernel\n.p2align 8\n.type {NAME}_kernel,@function\n" + a.text()
    out += f""".section .rodata,"a"
.p2align 6
.amdhsa_kernel {NAME}_kernel
  .amdhsa_next_free_vgpr 152
  .amdhsa_next_free_sgpr 80
  .amdhsa_accum_offset 152
  .amdhsa_group_segment_fixed_size 0
  .amdhsa_kernarg_size 104
  .amdhsa_user_sgpr_count 2
  .amdhsa_user_sgpr_kernarg_segment_ptr 1
  .amdhsa_system_sgpr_workgroup_id_x 1
  .amdhsa_float_denorm_mode_32 3
.end_amdhsa_kernel
"""
    return out
if __name__ == "__main__":
    opts = {}
    for kv in sys.argv[2:]:
        k, v = kv.split("=")
        try: opts[k] = int(v, 0)
        except ValueError: opts[k] = v.replace("+", " ")
    open(sys.argv[1], "w").write(gen(opts))
```

```python
import sys, struct, math
NAME = "parallel_sum__mha_block_cached__mixer_token_mlp__decode"
def f2u(x): return struct.unpack("<I", struct.pack("<f", x))[0]
class Asm:
    def __init__(self): self.lines = []
    def __call__(self, s):
        s = s.strip()
        self.lines.append(s if s.endswith(":") else "    " + s)
    def c(self, s): self.lines.append("    ; " + s)
    def text(self): return "\n".join(self.lines) + "\n"

def gen(o):
    D = o.get("d", 20)
    STAMP = o.get("stamp", 0)
    ROT = o.get("rot", 0)
    BOUND = o.get("bound", 1)
    WOR = o.get("wor", 6)
    WQP = o.get("wqp", 0)
    SLEEP = o.get("sleep", 0)
    WP = o.get("wp", "")
    WOS = o.get("wos", 1)
    TAIL = o.get("tail", 3)
    WOP = o.get("wop", "nt")
    SPF = o.get("spf", 0)
    WOT = o.get("wot", 1)
    WOM = o.get("wom", 3); WOD = o.get("wod", 2)
    assert WOR + 7 * WOS < 15 and WOR + 15 * WOM // WOD < 32
    sE = "s3"
    FB = o.get("fb", 0)
    FP = o.get("fp", 8)
    FS = o.get("fs", 2)
    FG0 = o.get("fg0", 40)
    FDL = o.get("fdl", 2)
    FK0 = o.get("fk0", 4)
    FR = o.get("frep", 64)
    FLEAD = o.get("flead", 0)
    sTg = "s78"
    a = Asm()
    FULL = "row_mask:0xf bank_mask:0xf"
    l2e = 1.0 / math.log(2.0)
    sB, sH, sW = "s30", "s31", "s32"
    sOff, sR, sG = "s33", "s34", "s35"
    R = "s[36:39]"
    sM1, sD1, sM2, sD2 = "s40", "s41", "s42", "s43"
    sT = [f"s{44+i}" for i in range(8)]
    sHI, sB2, sSpin, sK = "s52", "s53", "s54", "s55"
    W2 = "s[56:59]"
    sL2E, sC1 = "s14", "s15"
    L_SC = 131072
    L_QP = L_SC + 16384
    L_XN = L_QP + 4352
    L_BP = L_XN + 1024
    L_FL = L_BP + 512
    LDS_BYTES = L_FL + 256
    L_Y = 0
    vL, vRow, vCol, vF = "v0", "v1", "v2", "v3"
    WREG = 64
    QF = 48
    DT = 32
    ACC = [f"v{24+i}" for i in range(8)]
    def wslot(j): return f"v[{WREG+4*j}:{WREG+4*j+3}]"
    nlab = [0]
    def lab(p):
        nlab[0] += 1; return f"L_{p}{nlab[0]}"
    TS = o.get("ts", 0)
    def tstamp(i):
        if TS: a(f"s_memrealtime s[{60+2*i}:{61+2*i}]")
    def stamp(i):
        if STAMP in (1, 2) or (STAMP in (3, 4) and i == 0): a(f"s_memrealtime s[{60+2*i}:{61+2*i}]")
    def wave_reduce(op, v, sdst):
        for ctl in ["quad_perm:[1,0,3,2] "+FULL, "quad_perm:[2,3,0,1] "+FULL, "row_half_mirror "+FULL, "row_mirror "+FULL,
                    "row_bcast:15 row_mask:0xa bank_mask:0xf", "row_bcast:31 row_mask:0xc bank_mask:0xf"]:
            a("s_nop 1"); a(f"{op}_dpp {v}, {v}, {v} {ctl}")
        a("s_nop 1"); a(f"v_readlane_b32 {sdst}, {v}, 63")
    def allreduce(op, regs, steps):
        for ctl in ["quad_perm:[1,0,3,2]", "quad_perm:[2,3,0,1]", "row_half_mirror", "row_mirror"][:steps]:
            if len(regs) < 3: a(f"s_nop {2-len(regs)}")
            for v in regs: a(f"{op}_dpp {v}, {v}, {v} {ctl} {FULL}")
    def rbf(v):
        a(f"v_cvt_pk_bf16_f32 {v}, {v}, {v}"); a(f"v_and_b32 {v}, {sHI}, {v}")
    def spin(off, cmp, val, tmpv, tmps):
        l0, l1 = lab("sp"), lab("go")
        a(f"{l0}:")
        a(f"ds_read_b32 {tmpv}, {vF} offset:{off}")
        a("s_waitcnt lgkmcnt(0)")
        a(f"v_readfirstlane_b32 {tmps}, {tmpv}")
        a(f"{cmp} {tmps}, {val}")
        if BOUND or SLEEP:
            a(f"s_cbranch_scc1 {l1}")
            if SLEEP: a(f"s_sleep {SLEEP}")
            if BOUND:
                a(f"s_sub_u32 {sSpin}, {sSpin}, 1")
                a(f"s_cbranch_scc1 L_end")
            a(f"s_branch {l0}")
            a(f"{l1}:")
        else:
            a(f"s_cbranch_scc0 {l0}")
    def rows_sum(v, t):
        a(f"v_mov_b32 {t}, {v}"); a("s_nop 1"); a(f"v_permlane32_swap_b32 {v}, {t}"); a(f"v_add_f32 {v}, {v}, {t}")
        a(f"v_mov_b32 {t}, {v}"); a("s_nop 1"); a(f"v_permlane16_swap_b32 {v}, {t}"); a(f"v_add_f32 {v}, {v}, {t}")
    def rows_reduce8(vaddr):
        for i in range(4): a(f"v_permlane32_swap_b32 {ACC[i]}, {ACC[i+4]}")
        for i in range(4): a(f"v_add_f32 {ACC[i]}, {ACC[i]}, {ACC[i+4]}")
        a("s_nop 0")
        for i in range(2): a(f"v_permlane16_swap_b32 {ACC[i]}, {ACC[i+2]}")
        for i in range(2): a(f"v_add_f32 {ACC[i]}, {ACC[i]}, {ACC[i+2]}")
        a(f"ds_write_b64 {vaddr}, v[24:25]")

    def probe(tag):
        PR = o.get("probe", 0)
        if not PR: return
        PP = o.get("pp", 4)
        a(f"s_and_b32 {sT[1]}, {sR}, {PP-1}")
        a(f"s_or_b32 {sT[1]}, {sT[1]}, {sW}")
        a(f"s_cbranch_scc1 L_np{tag}")
        a(f"v_mov_b32 v150, 1")
        if PR in (1, 2):
            a(f"v_mov_b32 v149, 0x200000")
            a(f"s_mov_b64 exec, 1")
            a(f"global_atomic_add v151, v149, v150, s[28:29] sc0 {'sc1' if PR == 1 else ''}")
            a(f"s_mov_b64 exec, -1")
        elif PR == 3:
            a(f"s_add_u32 {sT[1]}, s2, 0x200000")
            a(f"v_mov_b32 v149, {sT[1]}")
            a(f"s_mov_b64 exec, 1")
            a(f"global_store_byte v149, v150, s[28:29] sc1")
            a(f"s_mov_b64 exec, -1")
            a(f"v_lshlrev_b32 v149, 2, {vL}")
            a(f"v_add_u32 v149, 0x200000, v149")
            a(f"global_load_dword v151, v149, s[28:29] sc1")
        elif PR == 4:
            a(f"s_lshl_b32 {sT[1]}, s2, 8")
            a(f"s_add_u32 {sT[1]}, {sT[1]}, 0x200000")
            a(f"v_mov_b32 v149, {sT[1]}")
            a(f"s_mov_b64 exec, 1")
            a(f"global_store_dword v149, v150, s[28:29] sc1")
            a(f"s_mov_b64 exec, {hex((1 << o.get('np', 16)) - 1)}")
            a(f"v_mul_u32_u24 v149, {256 * 17}, {vL}")
            a(f"v_add_u32 v149, {sT[1]}, v149")
            a(f"v_and_b32 v149, 0x20ffff, v149")
            a(f"global_load_dword v151, v149, s[28:29] sc1")
            a(f"s_mov_b64 exec, -1")
        elif PR == 5:
            a(f"s_lshl_b32 {sT[1]}, {sB}, 12")
            a(f"s_add_u32 {sT[1]}, {sT[1]}, 0x200000")
            a(f"v_mov_b32 v149, {sT[1]}")
            a(f"s_mov_b64 exec, 1")
            a(f"global_atomic_add v151, v149, v150, s[28:29] sc0 sc1")
            a(f"s_mov_b64 exec, -1")
        elif PR in (6, 7):
            if PR == 6: a(f"s_mov_b32 {sT[1]}, 0x200000")
            else:
                a(f"s_lshl_b32 {sT[1]}, {sB}, 12")
                a(f"s_add_u32 {sT[1]}, {sT[1]}, 0x200000")
            a(f"s_mov_b32 {sT[2]}, 1")
            a(f"s_atomic_add {sT[2]}, s[28:29], {sT[1]} glc")
            a("s_waitcnt lgkmcnt(0)")
        elif PR == 8:
            a(f"s_lshr_b32 {sT[1]}, s2, {o.get('gs', 3)}")
            a(f"s_mul_i32 {sT[1]}, {sT[1]}, {o.get('ls', 4352)}")
            if o.get("fr", 1):
                a(f"s_lshl_b32 {sT[2]}, {sG}, 18")
                a(f"s_add_u32 {sT[1]}, {sT[1]}, {sT[2]}")
            a(f"s_add_u32 {sT[1]}, {sT[1]}, 0x200000")
            a(f"s_mov_b32 {sT[2]}, 1")
            if o.get("ld", 0): a(f"s_load_dword {sT[2]}, s[28:29], {sT[1]} glc")
            else: a(f"s_atomic_add {sT[2]}, s[28:29], {sT[1]} glc")
            a("s_waitcnt lgkmcnt(0)")
        a(f"L_np{tag}:")
    def ctl(tag):
        if FB != 2: return
        a(f"s_sub_u32 {sT[1]}, {sG}, {FG0 + 8}")
        a(f"s_cbranch_scc1 L_nc{tag}")
        a(f"s_and_b32 {sT[2]}, {sT[1]}, {8*FP - 1}")
        a(f"s_lshr_b32 {sT[1]}, {sT[1]}, {(8*FP).bit_length() - 1}")
        a(f"s_cmp_ge_u32 {sG}, {o.get('fend', 480)}")
        a(f"s_cbranch_scc1 L_nc{tag}")
        a(f"s_mul_i32 {sT[3]}, {sT[1]}, {FR * 4352}")
        a(f"s_add_u32 {sT[3]}, {sT[3]}, 0x200000")
        a(f"s_cmp_eq_u32 s2, {FLEAD}")
        a(f"s_cbranch_scc1 L_cl{tag}")
        a(f"s_and_b32 {sT[2]}, {sT[2]}, {hex(0xffffffff ^ (7 * FS))}")
        a(f"s_cbranch_scc1 L_nc{tag}")
        a(f"s_and_b32 {sT[2]}, s2, {FR - 1}")
        a(f"s_mul_i32 {sT[2]}, {sT[2]}, 4352")
        a(f"s_add_u32 {sT[3]}, {sT[3]}, {sT[2]}")
        a(f"s_load_dword {sT[2]}, s[28:29], {sT[3]} glc")
        a(f"s_lshl_b32 {sT[1]}, {sT[1]}, 2")
        a(f"v_add_u32 v10, {sT[1]}, {vF}")
        a(f"s_waitcnt lgkmcnt(0)")
        a(f"s_cmp_eq_u32 {sT[2]}, {sTg}")
        a(f"s_cbranch_scc0 L_nc{tag}")
        a(f"v_mov_b32 v11, 1")
        a(f"s_mov_b64 exec, 1")
        a(f"ds_add_u32 v10, v11 offset:132")
        a(f"s_mov_b64 exec, -1")
        a(f"s_branch L_nc{tag}")
        a(f"L_cl{tag}:")
        a(f"s_cmp_eq_u32 {sT[2]}, {4*FS - FDL}")
        a(f"s_cbranch_scc0 L_nc{tag}")
        a(f"v_mul_u32_u24 v10, 4352, {vL}")
        a(f"v_add_u32 v10, {sT[3]}, v10")
        a(f"v_mov_b32 v11, {sTg}")
        if FR < 64: a(f"s_mov_b64 exec, {hex((1 << FR) - 1)}")
        a(f"global_store_dword v10, v11, s[28:29] sc1")
        if FR < 64: a(f"s_mov_b64 exec, -1")
        a(f"L_nc{tag}:")
    a(f"{NAME}_kernel:")
    a("s_cmpk_ge_u32 s2, 256")
    a("s_cbranch_scc1 L_end")
    a("s_load_dwordx16 s[4:19], s[0:1], 0")
    a("s_load_dwordx8 s[20:27], s[0:1], 64")
    a("s_load_dwordx2 s[28:29], s[0:1], 96")
    stamp(0)
    if o.get("map", 0) == 1:
        a("s_and_b32 s3, s2, 7")
        a("s_lshl_b32 s3, s3, 2")
        a("s_bfe_u32 s44, s2, 0x20003")
        a("s_or_b32 s3, s3, s44")
        a("s_and_b32 s2, s2, 0xe0")
        a("s_or_b32 s2, s2, s3")
    a(f"v_lshrrev_b32 v4, 6, v0")
    a(f"v_and_b32 {vL}, 63, v0")
    a(f"v_readfirstlane_b32 {sW}, v4")
    a(f"v_mov_b32 {vF}, {L_FL}")
    a(f"v_lshl_add_u32 v9, {vL}, 2, {vF}")
    a(f"v_mov_b32 v10, 0")
    a(f"ds_write_b32 v9, v10")
    a(f"v_lshrrev_b32 {vRow}, 4, {vL}")
    a(f"v_and_b32 {vCol}, 15, {vL}")
    a(f"s_mov_b32 s39, 0x20000")
    a(f"s_mov_b32 s38, 0x100000")
    a(f"s_lshl_b32 {sT[0]}, s2, 20")
    a(f"v_xor_b32 v4, {vCol}, {vRow}")
    a(f"v_lshlrev_b32 v4, 4, v4")
    a(f"v_lshl_add_u32 v4, {vRow}, 8, v4")
    a(f"v_xor_b32 v5, 64, v4")
    a(f"v_xor_b32 v6, 0x80, v4")
    a(f"v_xor_b32 v7, 64, v6")
    js = (D - 1) % 4
    sMask = "s40"
    RS = o.get("rs", 3); DS = o.get("ds", 36); jss = (DS - 1) % 4
    a(f"v_mov_b32 v8, {(jss - DS - 3)//4 if RS else (js - D - 3)//4}")
    a(f"s_mov_b32 {sOff}, 0")
    a(f"s_mov_b32 m0, 0")
    a(f"s_movk_i32 {sMask}, 0x100")
    a(f"s_mov_b32 {sR}, 0")
    a(f"s_sub_u32 {sW}, {sW}, 1")
    a("s_waitcnt lgkmcnt(0)")
    a("s_barrier")
    a("s_cbranch_scc0 L_cons")

    a("s_setprio 3")
    if o.get("ss", 0): a("s_memrealtime s[62:63]")
    a(f"s_add_u32 s36, s6, {sT[0]}")
    a(f"s_addc_u32 s37, s7, 0")
    if RS:
        a("L_ls:")
        for j in range(4):
            a(f"s_waitcnt vmcnt({DS-1})")
            if j == jss:
                a("v_add_u32 v8, 1, v8")
                a(f"ds_write_b32 {vF}, v8")
            a(f"buffer_load_dwordx4 v{4+j}, {R}, {sOff} offen offset:{1024*j} nt lds")
        a(f"s_addk_i32 {sOff}, 4096")
        a(f"s_and_b32 m0, {sOff}, 0x1ffff")
        a(f"s_cmp_lg_u32 {sOff}, {RS*32768}")
        a(f"s_cbranch_scc1 L_ls")
        a(f"v_mov_b32 v8, {(32*RS + js - D - 3)//4}")
        a(f"s_branch L_ld0")
    a("L_ld:")
    if FB:
        a(f"s_bitcmp1_b32 {sMask}, 0")
        a(f"s_cbranch_scc0 L_nd")
        a(f"buffer_load_dword v12, v4, {R}, s38 offen")
        a(f"L_nd:")
    for j in range(4):
        a(f"s_waitcnt vmcnt({D-1})")
        if j == js:
            a("v_add_u32 v8, 1, v8")
            a(f"ds_write_b32 {vF}, v8")
        a(f"buffer_load_dwordx4 v{4+j}, {R}, {sOff} offen offset:{1024*j} nt lds")
    a(f"s_addk_i32 {sOff}, 4096")
    a(f"s_and_b32 m0, {sOff}, 0x1ffff")
    a(f"s_lshr_b32 {sMask}, {sMask}, 1")
    a(f"s_cmp_lg_u32 {sMask}, 1")
    a(f"s_cbranch_scc1 L_ld")
    if RS: a(f"s_branch L_ld1")
    else:
        a(f"s_cmp_lg_u32 {sR}, 0")
        a(f"s_cbranch_scc1 L_ld1")
    a("L_ld0:")
    if RS: a(f"s_mov_b32 {sR}, {RS-1}")
    a(f"s_add_u32 s8, s8, {sT[0]}")
    a(f"s_addc_u32 s9, s9, 0")
    a(f"s_mov_b32 {sSpin}, 0x100000")
    a(f"v_and_b32 v9, 7, {vL}")
    a(f"v_lshl_add_u32 v9, v9, 2, {vF}")
    a(f"v_mov_b32 v11, {max(RS-1, 0) - 3}")
    if STAMP == 1: a("s_mov_b32 s79, 0")
    if FB == 2:
        a(f"v_mov_b32 v14, {FK0}")
        a(f"ds_write_b32 {vF}, v14 offset:128")
        a(f"v_mov_b32 v15, {vF}")
        a(f"s_cmp_eq_u32 s2, {FLEAD}")
        a(f"s_cselect_b32 s41, 0, 4")
        tab = [0xff, 0x7f, 0x77, 0x75, 0x55, 0x51, 0x11, 0x10]
        a(f"s_mov_b32 s46, {hex(sum(tab[i] << (8*i) for i in range(4)))}")
        a(f"s_mov_b32 s47, {hex(sum(tab[4+i] << (8*i) for i in range(4)))}")
    a("L_ld1:")
    a(f"s_add_u32 {sR}, {sR}, 1")
    a(f"v_add_u32 v11, 1, v11")
    if STAMP == 1:
        for k, rr in zip((1,2,3,6,7), str(o.get("marks", "2,4,6,8,16")).split(",")):
            a(f"s_cmp_lg_u32 {sR}, {rr}")
            a(f"s_cbranch_scc1 L_mk{k}")
            a(f"s_memrealtime s[{60+2*k}:{61+2*k}]")
            a(f"L_mk{k}:")
    if STAMP == 4:
        for k, rr in ((1, o.get("m0", 99)), (2, o["m1"])):
            a(f"s_cmp_lg_u32 {sR}, {rr}")
            a(f"s_cbranch_scc1 L_mk{k}")
            a(f"s_memrealtime s[{60+2*k}:{61+2*k}]")
            a(f"L_mk{k}:")
    a(f"s_cmp_lg_u32 {sR}, 32")
    a(f"s_cbranch_scc1 L_ldnv")
    a(f"s_mov_b32 s36, s8")
    a(f"s_mov_b32 s37, s9")
    a(f"s_mov_b32 {sOff}, 0")
    for j in range(4): a(f"v_lshlrev_b32 v{4+j}, 4, {vL}")
    stamp(4)
    a("L_ldnv:")
    a(f"s_cmp_eq_u32 {sR}, 64")
    a(f"s_cbranch_scc1 L_drain")
    a("L_ldck:")
    a("s_waitcnt lgkmcnt(0)")
    a(f"v_cmp_lt_i32 vcc, v10, v11")
    a(f"s_cbranch_vccnz L_ldslow")
    a(f"s_mov_b32 {sMask}, 0x100")
    if FB == 2:
        a(f"v_readfirstlane_b32 s42, v14")
        if STAMP == 1:
            a(f"s_add_u32 s79, s79, 8"); a(f"s_sub_u32 s79, s79, s42")
        a(f"s_lshl_b32 s42, s42, 3")
        a(f"s_lshr_b64 s[48:49], s[46:47], s42")
        a(f"s_and_b32 s48, s48, 0xff")
        a(f"s_cmp_lt_u32 {sR}, 63")
        a(f"s_cselect_b32 s48, s48, 0")
        a(f"s_cmp_lt_u32 s42, 64")
        a(f"s_cselect_b32 s48, s48, 0")
        a(f"s_or_b32 {sMask}, {sMask}, s48")
        RA = (FG0 + 8*FS + D//4 + 8 + 7) // 8
        a(f"s_and_b32 s42, {sR}, {FP-1}")
        a(f"s_cmp_eq_u32 s42, {RA % FP}")
        a(f"s_cselect_b32 s42, s41, 0")
        if RA >= FP:
            a(f"s_cmp_ge_u32 {sR}, {RA}")
            a(f"s_cselect_b32 s42, s42, 0")
        a(f"v_add_u32 v15, s42, v15")
        a(f"ds_read_b32 v14, v15 offset:128")
    a(f"ds_read_b32 v10, v9 offset:32")
    a(f"s_branch L_ld")
    a("L_drain:")
    pub = (2044 + js - D - 3)//4 + 1
    while pub < 512:
        pub += 1
        a(f"s_waitcnt vmcnt({2048 - 4*pub})")
        a("v_add_u32 v8, 1, v8")
        a(f"ds_write_b32 {vF}, v8")
    stamp(5)
    if STAMP == 4:
        a("s_barrier"); a("s_barrier")
        a("s_waitcnt lgkmcnt(0)")
        if "swg" in o:
            a(f"s_cmp_lg_u32 s2, {o['swg']}")
            a("s_cbranch_scc1 L_end")
        a(f"s_sub_u32 s64, s64, {'s62' if 'm0' in o else 's60'}")
        a(f"s_sub_u32 s64, s64, {o.get('sub', 0)}")
        if o.get("neg", 0): a("s_sub_u32 s64, 0, s64")
        a(f"s_mul_i32 s64, s64, {o.get('amp', 10)}")
        a(f"s_add_u32 s64, s64, 10000")
        a(f"s_min_u32 s64, s64, 100000")
        a("L_pin2:")
        a("s_memrealtime s[66:67]")
        a("s_waitcnt lgkmcnt(0)")
        a("s_sub_u32 s66, s66, s60")
        a(f"s_cmp_lt_u32 s66, s64")
        a("s_cbranch_scc1 L_pin2")
    elif STAMP == 3:
        a(f"s_memrealtime s[74:75]")
        a("s_waitcnt lgkmcnt(0)")
        a(f"s_cmp_lg_u32 s2, {o.get('swg', 5)}")
        a("s_cbranch_scc1 L_end")
        for i in range(8): a(f"v_writelane_b32 v16, s{60+2*i}, {i}")
        a(f"v_subrev_u32 v16, s60, v16")
        a(f"v_lshlrev_b32 v17, 2, {vL}")
        a(f"s_mov_b64 exec, 0xff")
        a(f"global_store_dword v17, v16, s[26:27] offset:32")
    elif STAMP:
        if STAMP == 2:
            for i in (1,2,3,6,7): a(f"s_mov_b64 s[{60+2*i}:{61+2*i}], 0")
        a("s_branch L_fin")
    a("s_endpgm")
    a("L_ldslow:")
    a(f"ds_read_b32 v10, v9 offset:32")
    if BOUND:
        a(f"s_sub_u32 {sSpin}, {sSpin}, 1")
        a(f"s_cbranch_scc1 L_end")
    a("s_branch L_ldck")

    a("L_cons:")
    a(f"s_lshr_b32 {sB}, s2, 5")
    a(f"s_and_b32 {sH}, s2, 31")
    a(f"s_mov_b32 {sHI}, 0xffff0000")
    a(f"s_mov_b32 s59, 0x20000")
    a(f"s_lshl_b32 {sT[0]}, {sB}, 10")
    a(f"v_lshlrev_b32 v8, 4, {vL}")
    a(f"s_mov_b32 {sSpin}, 0x100000")
    a(f"s_add_u32 s4, s4, {sT[0]}")
    a(f"s_addc_u32 s5, s5, 0")
    a(f"global_load_dwordx4 v[4:7], v8, s[4:5] {WP}")
    if o.get("ipf", 0):
        a(f"s_getpc_b64 s[46:47]")
        a("L_pc:")
        a(f"s_lshl_b32 {sT[0]}, {sW}, 10")
        a(f"v_add_u32 v9, {sT[0]}, v8")
        a(f"v_min_u32 v9, L_end-L_pc-12, v9")
        a(f"global_load_dwordx4 v[16:19], v9, s[46:47]")
    a(f"s_lshl_b32 {sT[0]}, {sW}, 19")
    a(f"s_lshl_b32 {sT[1]}, {sH}, 8")
    a(f"s_add_u32 {sT[0]}, {sT[0]}, {sT[1]}")
    a(f"s_add_u32 s36, s10, {sT[0]}")
    a(f"s_addc_u32 s37, s11, 0")
    a(f"s_mov_b32 s38, {o.get('wqn', 0x80000)}")
    a(f"v_lshlrev_b32 v9, 17, {vRow}")
    a(f"v_lshl_add_u32 v9, {vCol}, 4, v9")
    if ROT: a(f"s_lshl_b32 {sT[2]}, {sB}, 14")
    else: a(f"s_mov_b32 {sT[2]}, 0")
    def wqload(j):
        a(f"s_xor_b32 {sT[3]}, {sT[2]}, {j*8192}")
        a(f"buffer_load_dwordx4 {wslot(j)}, v9, {R}, {sT[3]} offen {o.get('wqpol', 'nt')}")
    WQS = o.get("wqs", 6); PRE = o.get("pre", 1)
    NQ0 = WQP if WQP else (WQS if WQS else 16)
    if FB == 2:
        a(f"s_mov_b32 {sT[4]}, 0x180000")
        a(f"s_load_dword {sTg}, s[28:29], {sT[4]}")
    for j in range(NQ0): wqload(j)
    a(f"s_waitcnt vmcnt({NQ0})")
    stamp(1)
    ln_start = len(a.lines)
    X = [f"v{16+i}" for i in range(8)]
    def unpack(src4):
        for i in range(4):
            a(f"v_lshlrev_b32 {X[2*i]}, 16, v{src4+i}")
            a(f"v_and_b32 {X[2*i+1]}, {sHI}, v{src4+i}")
    def ln(sM, sD, write):
        a(f"v_add_f32 v24, {X[0]}, {X[1]}")
        for i in range(2, 8): a(f"v_add_f32 v24, v24, {X[i]}")
        wave_reduce("v_add_f32", "v24", sT[0])
        a("s_nop 1")
        a(f"v_mov_b32 v25, {sT[0]}")
        a(f"v_mul_f32 v25, {hex(f2u(1.0/512))}, v25")
        a(f"v_sub_f32 v26, {X[0]}, v25")
        a(f"v_mul_f32 v24, v26, v26")
        for i in range(1, 8):
            a(f"v_sub_f32 v26, {X[i]}, v25")
            a(f"v_fmac_f32 v24, v26, v26")
        wave_reduce("v_add_f32", "v24", sT[0])
        rbf("v25")
        a(f"v_mov_b32 v24, {sT[0]}")
        a(f"v_mul_f32 v24, {hex(f2u(1.0/512))}, v24")
        rbf("v24")
        a(f"v_add_f32 v24, {hex(f2u(1e-5))}, v24")
        rbf("v24")
        a(f"v_sqrt_f32 v24, v24")
        a("s_nop 0")
        rbf("v24")
        a(f"v_rcp_f32 v24, v24")
        a(f"v_readfirstlane_b32 {sM}, v25")
        a(f"v_readfirstlane_b32 {sD}, v24")
        if write:
            for i in range(8): a(f"v_sub_f32 {X[i]}, {X[i]}, v25")
            for i in range(4): a(f"v_cvt_pk_bf16_f32 v{4+i}, {X[2*i]}, {X[2*i+1]}")
            unpack(4)
            for i in range(8): a(f"v_mul_f32 {X[i]}, {X[i]}, v24")
            for i in range(4): a(f"v_cvt_pk_bf16_f32 v{4+i}, {X[2*i]}, {X[2*i+1]}")
    unpack(4)
    ln(sM1, sD1, True)
    a(f"v_add_u32 v8, {L_XN}, v8")
    a(f"ds_write_b128 v8, v[4:7]")
    a(f"s_lshl_b32 {sT[0]}, {sW}, 7")
    if ROT:
        a(f"s_lshl_b32 {sT[1]}, {sB}, 2")
        a(f"s_add_u32 {sT[0]}, {sT[0]}, {sT[1]}")
    a(f"s_add_u32 {sT[0]}, {sT[0]}, {L_XN}")
    a(f"v_lshl_add_u32 v8, {vRow}, 5, {sT[0]}")
    assert L_XN % 32 == 0
    for i in range(8):
        if i:
            a(f"v_xor_b32 v10, {4*i}, v8")
            a(f"ds_read_b32 v{QF+i}, v10")
        else:
            a(f"ds_read_b32 v{QF+i}, v8")
    for i in range(8): a(f"v_mov_b32 {ACC[i]}, 0")
    if WQP:
        body = a.lines[ln_start:]; del a.lines[ln_start:]
        nins = 16 - NQ0
        LNF = o.get("lnf", 100)
        inl = nins * LNF // 100
        pts = [int((k + 0.5) * len(body) / inl) for k in range(inl)] if inl else []
        k = 0
        for idx, line in enumerate(body):
            while k < inl and pts[k] == idx:
                a(f"s_waitcnt vmcnt({NQ0-1})"); wqload(NQ0 + k); k += 1
            a.lines.append(line)
        while k < nins:
            a(f"s_waitcnt vmcnt({NQ0-1})"); wqload(NQ0 + k); k += 1
    if WQS:
        for j in range(WQS, 16): wqload(j)
        NQ0 = 16
    if PRE:
        a(f"v_xor_b32 v12, {vRow}, {vCol}")
        a(f"v_lshlrev_b32 v12, 4, v12")
        a(f"v_lshl_add_u32 v12, {vCol}, 8, v12")
        a(f"s_lshl_b32 {sT[0]}, {sW}, 12")
        a(f"v_add_u32 v12, {sT[0]}, v12")
        for t in range(1, 4): a(f"v_xor_b32 v{19+t}, {64*t}, v12")
        spin(0, "s_cmp_gt_i32", sW, "v10", sT[0])
        a(f"ds_read_b128 v[{DT}:{DT+3}], v12")
        for t in range(1, 4): a(f"ds_read_b128 v[{DT+4*t}:{DT+4*t+3}], v{19+t}")
        a(f"s_lshl_b32 {sT[0]}, {sW}, 2")
        a(f"v_add_u32 v13, {sT[0]}, {vF}")
        a(f"v_mov_b32 v14, 1")
    a("s_waitcnt lgkmcnt(0)")
    if PRE: a(f"ds_write_b32 v13, v14 offset:32")
    for j in range(16):
        src = f"v{QF + j//2}"
        if j % 2 == 0:
            a(f"v_and_b32 v10, 0xffff, {src}"); a(f"v_lshlrev_b32 v11, 16, {src}")
        else:
            a(f"v_lshrrev_b32 v10, 16, {src}"); a(f"v_and_b32 v11, {sHI}, {src}")
        if 15 - j < NQ0: a(f"s_waitcnt vmcnt({15 - j})")
        for i in range(4):
            a(f"v_dot2c_f32_bf16 {ACC[2*i]}, v10, v{WREG+4*j+i}")
            a(f"v_dot2c_f32_bf16 {ACC[2*i+1]}, v11, v{WREG+4*j+i}")
    stamp(2)
    vPA = "v23"
    a(f"s_mul_i32 {sT[0]}, {sW}, 528")
    a(f"s_add_u32 {sT[0]}, {sT[0]}, {L_QP}")
    a(f"v_lshl_add_u32 v15, {vCol}, 5, {sT[0]}")
    a(f"v_lshl_add_u32 v15, {vRow}, 3, v15")
    rows_reduce8("v15")
    a(f"v_mov_b32 v10, 1")
    a("s_waitcnt lgkmcnt(0)")
    a(f"s_mov_b64 exec, 1")
    a(f"ds_add_u32 {vF}, v10 offset:4")
    a(f"s_mov_b64 exec, -1")
    MX = 128
    for i in range(4): a(f"v_mov_b32 v{141+i}, v{4+i}")
    spin(4, "s_cmp_ge_u32", 8, "v10", sT[0])
    a(f"v_lshlrev_b32 v10, 3, {vL}")
    a(f"v_add_u32 v10, {L_QP}, v10")
    for w in range(8): a(f"ds_read_b64 v[{WREG+2*w}:{WREG+2*w+1}], v10 offset:{528*w}")
    a("s_waitcnt lgkmcnt(0)")
    for st in (8, 4, 2):
        for i in range(st): a(f"v_add_f32 v{WREG+i}, v{WREG+i}, v{WREG+st+i}")
    a(f"v_cvt_pk_bf16_f32 v{WREG}, v{WREG}, v{WREG+1}")
    a(f"v_lshlrev_b32 v10, 2, {vL}")
    a(f"v_add_u32 v10, {L_XN}, v10")
    a(f"ds_write_b32 v10, v{WREG}")
    a(f"v_lshlrev_b32 v10, 4, {vRow}")
    a(f"v_add_u32 v10, {L_XN}, v10")
    for t in range(4): a(f"ds_read_b128 v[{QF+4*t}:{QF+4*t+3}], v10 offset:{64*t}")
    vH, vMA, vC0 = "v138", "v139", "v140"
    a(f"s_mov_b32 {sL2E}, {hex(f2u(l2e))}")
    a(f"s_mov_b32 {sK}, {hex(f2u(128 ** -0.5))}")
    vKA, vSA, vDA, vM, vLs, vDn = "v4", "v5", "v6", "v7", "v8", "v9"
    a(f"v_xor_b32 {vKA}, {vRow}, {vCol}")
    a(f"v_lshlrev_b32 {vKA}, 4, {vKA}")
    a(f"v_lshl_add_u32 {vKA}, {vCol}, 8, {vKA}")
    a(f"s_lshl_b32 {sT[0]}, {sW}, 12")
    a(f"v_add_u32 {vKA}, {sT[0]}, {vKA}")
    a(f"s_lshl_b32 {sT[0]}, {sW}, 6")
    a(f"s_add_u32 {sT[0]}, {sT[0]}, {L_SC}")
    a(f"v_lshl_add_u32 {vSA}, {vCol}, 2, {sT[0]}")
    a(f"s_lshl_b32 {sT[0]}, {sW}, 2")
    a(f"v_add_u32 {vDA}, {sT[0]}, {vF}")
    a(f"v_mov_b32 {vM}, 0xff7fffff")
    a(f"v_mov_b32 {vLs}, 0")
    a(f"v_mov_b32 {vDn}, 0")
    a(f"s_mov_b32 {sG}, {sW}")
    a(f"s_mov_b32 {sR}, 0")
    a(f"s_lshl_b32 {sT[0]}, {sH}, 17")
    a(f"s_lshl_b32 {sT[1]}, {sW}, 14")
    a(f"s_add_u32 {sT[0]}, {sT[0]}, {sT[1]}")
    a(f"s_add_u32 s36, s12, {sT[0]}")
    a(f"s_addc_u32 s37, s13, 0")
    a(f"s_mov_b32 s38, {o.get('won', 16384)}")
    a(f"s_mul_i32 {sOff}, {sW}, {WOS}")
    a(f"s_add_u32 {sOff}, {sOff}, {WOR}")
    if FB == 2:
        a(f"s_add_u32 {sTg}, {sTg}, 1")
    stamp(3)
    if PRE:
        a("s_waitcnt lgkmcnt(0)")
        a("s_branch L_kmid")
    a("L_k:")
    for t in range(1, 4): a(f"v_xor_b32 v{10+t}, {64*t}, {vKA}")
    spin(0, "s_cmp_gt_i32", sG, "v10", sT[0])
    a(f"ds_read_b128 v[{DT}:{DT+3}], {vKA}")
    for t in range(1, 4): a(f"ds_read_b128 v[{DT+4*t}:{DT+4*t+3}], v{10+t}")
    a("L_kmid:")
    a(f"v_add_u32 {vDn}, 1, {vDn}")
    a(f"v_add_u32 {vKA}, 0x8000, {vKA}")
    a(f"v_and_b32 {vKA}, 0x1ffff, {vKA}")
    for t in range(4):
        a(f"s_waitcnt lgkmcnt({3-t})")
        a(f"v_mfma_f32_16x16x32_bf16 v[16:19], v[{QF+4*t}:{QF+4*t+3}], v[{DT+4*t}:{DT+4*t+3}], {'0' if t == 0 else 'v[16:19]'}")
    a(f"ds_write_b32 {vDA}, {vDn} offset:32")
    a(f"s_add_u32 {sG}, {sG}, 8")
    a(f"s_nop 5")
    rbf("v16")
    a(f"v_mul_f32 v16, {sK}, v16")
    rbf("v16")
    a(f"ds_write_b32 {vSA}, v16")
    a(f"v_max_f32 v17, {vM}, v16")
    a(f"v_sub_f32 v18, {vM}, v17")
    a(f"v_sub_f32 v16, v16, v17")
    a(f"v_mul_f32 v18, {sL2E}, v18")
    a(f"v_mul_f32 v16, {sL2E}, v16")
    a(f"v_exp_f32 v18, v18")
    a(f"v_exp_f32 v16, v16")
    a(f"v_mov_b32 {vM}, v17")
    a(f"v_add_u32 {vSA}, 512, {vSA}")
    a(f"v_fma_f32 {vLs}, {vLs}, v18, v16")
    ctl("k")
    a(f"v_lshlrev_b32 v10, 4, {vL}")
    if WOT:
        rounds = {}
        for j in range(16): rounds.setdefault(WOR + j * WOM // WOD, []).append(j)
        if SPF:
            for j in range(16): rounds.setdefault(WOR + j * WOM // WOD - SPF, []).append(-1 - j)
        for rr, js_ in sorted(rounds.items()):
            a(f"s_cmp_lg_u32 {sR}, {rr}")
            a(f"s_cbranch_scc1 L_wo{rr}")
            for j in js_:
                if j < 0:
                    jj = -1 - j
                    a(f"s_lshl_b32 {sT[1]}, {sB}, 7")
                    a(f"s_add_u32 {sT[1]}, {sT[1]}, {1024*jj}")
                    a(f"s_load_dword {sT[2]}, s[36:37], {sT[1]}")
                    a(f"s_add_u32 {sT[1]}, {sT[1]}, 64")
                    a(f"s_load_dword {sT[3]}, s[36:37], {sT[1]}")
                    continue
                a(f"s_movk_i32 {sT[1]}, {1024*j}")
                a(f"buffer_load_dwordx4 {wslot(j)}, v10, {R}, {sT[1]} offen {WOP}")
            a(f"L_wo{rr}:")
    a(f"s_cmp_lg_u32 {sR}, {sOff}")
    a(f"s_cbranch_scc1 L_nowo")
    if not WOT:
        for j in range(16):
            if j % 4 == 0: a(f"s_movk_i32 {sT[1]}, {1024*j}")
            a(f"buffer_load_dwordx4 {wslot(j)}, v10, {R}, {sT[1]} offen offset:{1024*(j%4)} {WP}")
    a(f"s_lshl_b32 {sT[0]}, {sH}, 5")
    a(f"v_lshl_add_u32 v11, {vCol}, 1, {sT[0]}")
    a(f"global_load_ushort v138, v11, s[4:5] {WP}")
    a(f"s_mul_i32 {sT[0]}, {sW}, 448")
    a(f"v_mul_u32_u24 v11, 112, {vRow}")
    a(f"v_lshl_add_u32 v11, {vCol}, 2, v11")
    a(f"v_add_u32 v11, {sT[0]}, v11")
    a(f"v_cmp_lt_u32 vcc, 13, {vCol}")
    a(f"v_mov_b32 v12, 0x10000")
    a(f"s_mov_b32 s58, 3584")
    a(f"v_cndmask_b32 v11, v11, v12, vcc")
    for k, p in enumerate([16, 18, 20]):
        a(f"s_mov_b32 s56, s{p}"); a(f"s_mov_b32 s57, s{p+1}")
        for s_ in range(2):
            a(f"buffer_load_dword v{MX + 5*s_ + (1,3,4)[k]}, v11, {W2}, 0 offen offset:{56*s_} {WP}")
    a(f"s_load_dword {sB2}, s[22:23], 0")
    if TAIL == 3:
        a(f"s_lshl_b32 {sT[0]}, {sB}, 8")
        a(f"s_add_u32 {sT[0]}, {sT[0]}, 0x180000")
        a(f"s_load_dword {sE}, s[28:29], {sT[0]}")
    a("L_nowo:")
    a(f"s_cmp_lg_u32 {sR}, 15")
    a(f"s_cbranch_scc1 L_noms")
    unpack(141)
    ln(sM2, sD2, False)
    a("s_waitcnt vmcnt(0)")
    a(f"v_lshlrev_b32 {vH}, 16, v138")
    a(f"v_mov_b32 v145, {vH}")
    a(f"v_subrev_f32 {vH}, {sM1}, {vH}"); rbf(vH)
    a(f"v_mul_f32 {vH}, {sD1}, {vH}"); rbf(vH)
    a(f"v_subrev_f32 {vH}, {sM2}, {vH}"); rbf(vH)
    a(f"v_mul_f32 {vH}, {sD2}, {vH}"); rbf(vH)
    for s_ in range(2):
        b = MX + 5*s_
        a(f"v_lshlrev_b32 v{b}, 16, v{b+1}"); a(f"v_and_b32 v{b+1}, {sHI}, v{b+1}")
        a(f"v_lshlrev_b32 v{b+2}, 16, v{b+3}"); a(f"v_and_b32 v{b+3}, {sHI}, v{b+3}")
    kb = math.sqrt(2.0/math.pi)
    a(f"v_mov_b32 {vC0}, {hex(f2u(-2*kb*l2e))}")
    a(f"s_mov_b32 {sC1}, {hex(f2u(-2*kb*l2e*0.044715))}")
    a(f"v_mov_b32 {vMA}, 0")
    a("L_noms:")
    a(f"s_cmp_lt_u32 {sR}, 16")
    a(f"s_cbranch_scc1 L_nomix")
    BC = "row_newbcast:0 " + FULL
    for s_ in range(2):
        b = MX + 5*s_
        a(f"v_mul_f32_dpp v16, v{b}, {vH} {BC}")
        a(f"v_mul_f32_dpp v17, v{b+1}, {vH} {BC}")
        a(f"v_cvt_pk_bf16_f32 v17, v16, v17")
        a(f"v_lshlrev_b32 v16, 16, v17"); a(f"v_and_b32 v17, {sHI}, v17")
        a(f"v_add_f32_dpp v16, v{b+2}, v16 {BC}")
        a(f"v_add_f32_dpp v17, v{b+3}, v17 {BC}")
        a(f"v_cvt_pk_bf16_f32 v17, v16, v17")
        a(f"v_lshlrev_b32 v16, 16, v17"); a(f"v_and_b32 v17, {sHI}, v17")
        a(f"v_mul_f32 v18, v16, v16"); a(f"v_mul_f32 v19, v17, v17")
        a(f"v_fma_f32 v18, v18, {sC1}, {vC0}"); a(f"v_fma_f32 v19, v19, {sC1}, {vC0}")
        a(f"v_mul_f32 v18, v18, v16"); a(f"v_mul_f32 v19, v19, v17")
        a(f"v_exp_f32 v18, v18"); a(f"v_exp_f32 v19, v19")
        a(f"v_mov_b32_dpp v{b}, v{b} row_ror:15 {FULL}")
        a(f"v_add_f32 v18, 1.0, v18"); a(f"v_add_f32 v19, 1.0, v19")
        a(f"v_rcp_f32 v18, v18"); a(f"v_rcp_f32 v19, v19")
        a(f"v_mov_b32_dpp v{b+1}, v{b+1} row_ror:15 {FULL}")
        a(f"v_mul_f32 v18, v18, v16"); a(f"v_mul_f32 v19, v19, v17")
        a(f"v_cvt_pk_bf16_f32 v18, v18, v19")
        a(f"v_mov_b32_dpp v{b+2}, v{b+2} row_ror:15 {FULL}")
        a(f"v_mov_b32_dpp v{b+3}, v{b+3} row_ror:15 {FULL}")
        a(f"v_dot2c_f32_bf16_dpp {vMA}, v{b+4}, v18 {BC}")
        a(f"v_mov_b32_dpp v{b+4}, v{b+4} row_ror:15 {FULL}")
    a("L_nomix:")
    probe("k")
    a(f"s_add_u32 {sR}, {sR}, 1")
    a(f"s_cmp_lt_u32 {sR}, 32")
    a(f"s_cbranch_scc1 L_k")
    if STAMP: pass
    a(f"v_mov_b32 v16, {vM}")
    allreduce("v_max_f32", ["v16"], 4)
    a(f"v_sub_f32 v17, {vM}, v16")
    a(f"v_mul_f32 v17, {sL2E}, v17")
    a(f"v_exp_f32 v17, v17")
    a(f"s_lshl_b32 {sT[0]}, {sW}, 3")
    a(f"v_add_u32 v18, {sT[0]}, {vF}")
    a(f"v_mul_f32 v17, v17, {vLs}")
    allreduce("v_add_f32", ["v17"], 4)
    a(f"ds_write_b64 v18, v[16:17] offset:64")
    rows_sum(vMA, "v19")
    a(f"s_lshl_b32 {sT[0]}, {sW}, 6")
    a(f"s_add_u32 {sT[0]}, {sT[0]}, {L_BP}")
    a(f"v_lshl_add_u32 v19, {vCol}, 2, {sT[0]}")
    a(f"ds_write_b32 v19, {vMA}")
    a(f"v_mov_b32 v10, 1")
    a("s_waitcnt lgkmcnt(0)")
    a(f"s_mov_b64 exec, 1")
    a(f"ds_add_u32 {vF}, v10 offset:8")
    a(f"s_mov_b64 exec, -1")
    a(f"s_mov_b32 {sT[0]}, 0x05040100")
    a(f"s_mov_b32 {sT[1]}, 0x07060302")
    a("s_waitcnt vmcnt(0)")
    for p in range(8):
        for i in range(4):
            r0 = WREG + 8*p + i; r1 = r0 + 4
            a(f"v_perm_b32 v16, v{r1}, v{r0}, {sT[0]}")
            a(f"v_perm_b32 v{r1}, v{r1}, v{r0}, {sT[1]}")
            a(f"v_mov_b32 v{r0}, v16")
    spin(8, "s_cmp_ge_u32", 8, "v10", sT[0])
    a(f"v_and_b32 v18, 7, {vL}")
    a(f"v_lshl_add_u32 v18, v18, 3, {vF}")
    a(f"ds_read_b64 v[16:17], v18 offset:64")
    a(f"v_lshlrev_b32 v19, 2, {vL}")
    a(f"v_add_u32 v18, {L_BP}, v19")
    a(f"ds_read_b32 v20, v18")
    a(f"ds_read_b32 v21, v18 offset:256")
    a("s_waitcnt lgkmcnt(0)")
    a(f"v_mov_b32 {vM}, v16")
    allreduce("v_max_f32", [vM], 3)
    a(f"v_sub_f32 v16, v16, {vM}")
    a(f"v_mul_f32 v16, {sL2E}, v16")
    a(f"v_exp_f32 v16, v16")
    a(f"v_add_f32 v20, v20, v21")
    a(f"v_mul_f32 {vLs}, v16, v17")
    allreduce("v_add_f32", [vLs], 3)
    a(f"v_rcp_f32 {vLs}, {vLs}")
    rows_sum("v20", "v21")
    rbf("v20")
    a(f"s_lshl_b32 {sB2}, {sB2}, 16")
    a(f"v_add_f32 v20, {sB2}, v20")
    rbf("v20")
    if TAIL == 3:
        a(f"v_and_b32 v21, 7, {vL}")
        a(f"v_lshrrev_b32 v22, 5, {vL}")
        a(f"v_lshl_add_u32 v21, v21, 1, v22")
        a(f"v_lshlrev_b32 v22, 2, v21")
        a(f"ds_bpermute_b32 v146, v22, v20")
        a(f"ds_bpermute_b32 v145, v22, v145")
        a(f"s_lshl_b32 {sT[0]}, s2, 5")
        a(f"v_lshl_add_u32 v147, v21, 1, {sT[0]}")
        a(f"s_add_u32 {sE}, {sE}, 1")
    else:
        a(f"s_lshl_b32 {sT[0]}, s2, 6")
        a(f"s_add_u32 {sT[0]}, {sT[0]}, 0x80000")
        a(f"s_add_u32 s56, s28, {sT[0]}")
        a(f"s_addc_u32 s57, s29, 0")
        a(f"s_cmp_eq_u32 {sW}, 0")
        a(f"s_cselect_b32 s58, 64, 0")
        a(f"buffer_store_dword v20, v19, {W2}, 0 offen sc1")
    a(f"s_lshl_b32 {sT[0]}, {sW}, 12")
    a(f"v_lshl_add_u32 {vKA}, {vL}, 4, {sT[0]}")
    a(f"v_and_b32 {vSA}, 3, {vL}")
    a(f"v_lshl_add_u32 {vSA}, {vSA}, 2, {vRow}")
    a(f"s_lshl_b32 {sT[0]}, {sW}, 6")
    a(f"s_add_u32 {sT[0]}, {sT[0]}, {L_SC}")
    a(f"v_lshl_add_u32 {vSA}, {vSA}, 2, {sT[0]}")
    for i in range(8): a(f"v_mov_b32 {ACC[i]}, 0")
    a(f"s_mov_b32 {sR}, 0")
    stamp(4)
    a("L_v:")
    a(f"ds_read_b32 v16, {vSA}")
    a(f"v_add_u32 {vSA}, 512, {vSA}")
    a(f"v_add_u32 {vDn}, 1, {vDn}")
    a("s_waitcnt lgkmcnt(0)")
    a(f"v_sub_f32 v16, v16, {vM}")
    a(f"v_mul_f32 v16, {sL2E}, v16")
    a(f"v_exp_f32 v16, v16")
    a(f"s_add_u32 {sR}, {sR}, 1")
    a(f"v_mul_f32 v16, v16, {vLs}")
    a(f"v_cvt_pk_bf16_f32 v16, v16, v16")
    a(f"v_lshrrev_b32 v17, 16, v16")
    a(f"v_and_b32 v16, {sHI}, v16")
    spin(0, "s_cmp_gt_i32", sG, "v10", sT[0])
    for t in range(4): a(f"ds_read_b128 v[{DT+4*t}:{DT+4*t+3}], {vKA} offset:{1024*t}")
    a(f"v_add_u32 {vKA}, 0x8000, {vKA}")
    a(f"v_and_b32 {vKA}, 0x1ffff, {vKA}")
    a(f"s_add_u32 {sG}, {sG}, 8")
    for j in range(4):
        a(f"s_waitcnt lgkmcnt({3-j})")
        if j == 3: a(f"ds_write_b32 {vDA}, {vDn} offset:32")
        for i in range(4):
            a(f"v_dot2c_f32_bf16_dpp {ACC[2*i]}, v17, v{DT+4*j+i} quad_perm:[{j},{j},{j},{j}] {FULL}")
            a(f"v_dot2c_f32_bf16_dpp {ACC[2*i+1]}, v16, v{DT+4*j+i} quad_perm:[{j},{j},{j},{j}] {FULL}")
    probe("v")
    ctl("v")
    a(f"s_cmp_lt_u32 {sR}, 32")
    a(f"s_cbranch_scc1 L_v")
    stamp(5)
    if o.get("notail", 0) == 1:
        stamp(6); stamp(7)
        a("s_branch L_fin")
    a("s_nop 0")
    rows_reduce8("v15")
    a(f"v_and_b32 v10, 7, {vL}")
    a(f"v_mul_u32_u24 v10, 528, v10")
    a(f"v_and_b32 v11, 0x38, {vL}")
    a(f"s_lshl_b32 {sT[0]}, {sW}, 6")
    a(f"s_add_u32 {sT[0]}, {sT[0]}, {L_QP}")
    a(f"v_add3_u32 v10, v10, v11, {sT[0]}")
    a("s_waitcnt lgkmcnt(0)")
    a("s_barrier")
    tstamp(1)
    a(f"ds_read_b64 v[16:17], v10")
    for i in range(8): a(f"v_mov_b32 {ACC[i]}, 0")
    a("s_waitcnt lgkmcnt(0)")
    allreduce("v_add_f32", ["v16", "v17"], 3)
    a("v_cvt_pk_bf16_f32 v16, v16, v17")
    a("s_nop 0")
    for p in range(8): a(f"v_readlane_b32 {sT[p]}, v16, {8*p}")
    for p in range(8):
        for i in range(4):
            a(f"v_dot2c_f32_bf16 {ACC[2*i]}, {sT[p]}, v{WREG+8*p+i}")
            a(f"v_dot2c_f32_bf16 {ACC[2*i+1]}, {sT[p]}, v{WREG+8*p+4+i}")
    a(f"s_lshl_b32 {sT[0]}, {sW}, 11")
    a(f"v_lshl_add_u32 v10, {vL}, 5, {sT[0]}")
    a(f"s_lshl_b32 {sT[0]}, {sW}, 8")
    a(f"v_lshl_add_u32 v11, {vL}, 2, {sT[0]}")
    a(f"ds_write_b128 v10, v[24:27] offset:{L_Y}")
    a(f"ds_write_b128 v10, v[28:31] offset:{L_Y+16}")
    if TAIL == 3:
        a(f"s_lshl_b32 {sT[0]}, {sB}, 17")
        a(f"s_add_u32 s56, s28, {sT[0]}")
        a(f"s_addc_u32 s57, s29, 0")
        a(f"s_mov_b32 s58, 0x20000")
        a(f"s_lshl_b32 {sT[0]}, {sW}, 14")
        a(f"s_lshl_b32 {sT[1]}, {sH}, 7")
        a(f"s_add_u32 {sT[0]}, {sT[0]}, {sT[1]}")
        if o.get("st4", 1):
            a(f"v_bfe_u32 v13, {vL}, 3, 2")
            a(f"v_lshl_add_u32 v12, v13, 12, {sT[0]}")
            a(f"v_and_b32 v13, 7, {vL}")
            a(f"v_lshl_add_u32 v12, v13, 4, v12")
            a(f"v_lshrrev_b32 v13, 5, {vL}")
            a(f"v_lshl_add_u32 v12, v13, 17, v12")
            a(f"v_and_b32 v11, 31, {vL}")
            a(f"s_lshl_b32 {sT[0]}, {sW}, 8")
            a(f"v_lshl_add_u32 v11, v11, 3, {sT[0]}")
            a(f"v_lshl_add_u32 v11, v13, 13, v11")
            a("s_waitcnt lgkmcnt(0)")
            a("s_barrier")
            tstamp(2)
            for i in range(4): a(f"ds_read_b64 v[{16+2*i}:{17+2*i}], v11 offset:{L_Y + 2048*i}")
            a(f"s_lshl_b32 {sT[0]}, {sH}, 12")
            a(f"v_lshl_add_u32 v13, {vL}, 4, {sT[0]}")
            a("s_waitcnt lgkmcnt(0)")
            for i in range(4): a(f"v_add_f32 v{16+i}, v{16+i}, v{20+i}")
            a("v_add_f32 v20, v16, v18")
            a("v_add_f32 v21, v17, v19")
            a("v_add_f32 v22, v16, v18")
            a("v_add_f32 v23, v17, v19")
            a(f"v_mov_b32 v17, {sE}")
            a("v_permlane32_swap_b32 v20, v22")
            a("v_permlane32_swap_b32 v21, v23")
            a(f"v_mov_b32 v19, {sE}")
            a("v_add_f32 v16, v20, v22")
            a("v_add_f32 v18, v21, v23")
            a(f"buffer_store_dwordx4 v[16:19], v12, {W2}, 0 offen {o.get('stp', 'sc1')}")
        else:
            a(f"v_lshl_add_u32 v12, {vRow}, 12, {sT[0]}")
            a(f"v_lshl_add_u32 v12, {vCol}, 3, v12")
            a("s_waitcnt lgkmcnt(0)")
            a("s_barrier")
            tstamp(2)
            for i in range(8): a(f"ds_read_b32 v{16+i}, v11 offset:{L_Y + 2048*i}")
            a(f"s_lshl_b32 {sT[0]}, {sH}, 12")
            a(f"v_lshl_add_u32 v13, {vL}, 4, {sT[0]}")
            a("s_waitcnt lgkmcnt(0)")
            for st in (4, 2, 1):
                for i in range(st): a(f"v_add_f32 v{16+i}, v{16+i}, v{16+st+i}")
            a(f"v_mov_b32 v17, {sE}")
            a(f"buffer_store_dwordx2 v[16:17], v12, {W2}, 0 offen sc1")
        tstamp(3)
        stamp(6); stamp(7); tstamp(4)
        a(f"s_cmp_lg_u32 {sW}, 0")
        a(f"s_cbranch_scc1 L_fin")
        if STAMP == 1: a("s_mov_b32 s79, 0")
        a("L_poll:")
        if STAMP == 1: a("s_add_u32 s79, s79, 1")
        for i in range(4): a(f"buffer_load_dwordx4 v[{32+4*i}:{35+4*i}], v13, {W2}, 0 offen offset:{1024*i} {o.get('plp', 'sc1')}")
        a(f"s_mov_b64 s[44:45], exec")
        if BOUND:
            a(f"s_sub_u32 {sSpin}, {sSpin}, 16")
            a(f"s_cbranch_scc1 L_end")
        if o.get("psl", 0): a(f"s_sleep {o['psl']}")
        a("s_waitcnt vmcnt(0)")
        for i in range(8): a(f"v_cmpx_eq_u32 vcc, v17, v{33+2*i}")
        a(f"s_andn2_b64 exec, s[44:45], exec")
        a(f"s_cbranch_execnz L_poll")
        a(f"s_mov_b64 exec, -1")
        tstamp(4)
        for st in (8, 4):
            for i in range(0, st, 2): a(f"v_add_f32 v{32+i}, v{32+i}, v{32+st+i}")
        a("s_nop 1")
        a("v_permlane32_swap_b32 v32, v34")
        a("v_add_f32 v32, v32, v34")
        a("v_mov_b32 v33, v32"); a("s_nop 1")
        a("v_permlane16_swap_b32 v32, v33")
        a("v_add_f32 v32, v32, v33")
        a("s_nop 1")
        a(f"v_add_f32_dpp v32, v32, v32 row_ror:8 {FULL}")
        rbf("v32")
        a("v_add_f32 v32, v145, v32")
        rbf("v32")
        a("v_add_f32 v32, v32, v146")
        a("v_cvt_pk_bf16_f32 v32, v32, v32")
        a("s_mov_b32 exec_lo, 0xff")
        a("s_mov_b32 exec_hi, 0xff")
        a(f"global_store_short v147, v32, s[24:25]")
        a(f"s_cmp_lg_u32 {sH}, 0")
        a(f"s_cbranch_scc1 L_nob")
        a(f"s_lshl_b32 {sT[0]}, {sB}, 8")
        a(f"s_add_u32 {sT[0]}, {sT[0]}, 0x180000")
        a(f"v_mov_b32 v16, {sT[0]}")
        a(f"s_mov_b64 exec, 1")
        a(f"global_store_dword v16, v17, s[28:29]")
        a("L_nob:")
        a(f"s_mov_b64 exec, -1")
    else:
        a(f"s_lshl_b32 {sT[0]}, s2, 11")
        a(f"s_add_u32 s56, s28, {sT[0]}")
        a(f"s_addc_u32 s57, s29, 0")
        a(f"s_mov_b32 s58, 2048")
        a("s_waitcnt lgkmcnt(0)")
        a("s_barrier")
        tstamp(2)
        for i in range(8): a(f"ds_read_b32 v{16+i}, v11 offset:{L_Y + 2048*i}")
        a("s_waitcnt lgkmcnt(0)")
        for st in (4, 2, 1):
            for i in range(st): a(f"v_add_f32 v{16+i}, v{16+i}, v{16+st+i}")
        a(f"buffer_store_dword v16, v11, {W2}, 0 offen sc1")
        tstamp(3)
        a("s_waitcnt vmcnt(0)")
        a("s_barrier")
        stamp(6)
        if o.get("notail", 0) == 2:
            stamp(7)
            a("s_branch L_fin")
        a(f"s_cmp_lg_u32 {sW}, 0")
        a(f"s_cbranch_scc1 L_wait")
        a(f"s_lshl_b32 {sT[0]}, {sB}, 2")
        a(f"v_mov_b32 v16, {sT[0]}")
        a(f"v_mov_b32 v17, 1")
        a(f"s_mov_b64 exec, 1")
        a(f"global_atomic_add v18, v16, v17, s[26:27] sc0 sc1")
        a("s_waitcnt vmcnt(0)")
        a(f"ds_write_b32 {vF}, v18 offset:12")
        a(f"s_mov_b64 exec, -1")
        a("s_waitcnt lgkmcnt(0)")
        a("L_wait:")
        a("s_barrier")
        a(f"ds_read_b32 v18, {vF} offset:12")
        a("s_waitcnt lgkmcnt(0)")
        a(f"v_readfirstlane_b32 {sT[0]}, v18")
        stamp(7)
        a(f"s_cmp_lg_u32 {sT[0]}, 31")
        a(f"s_cbranch_scc1 L_fin")
        a(f"s_lshl_b32 {sT[0]}, {sB}, 16")
        a(f"s_add_u32 s56, s28, {sT[0]}")
        a(f"s_addc_u32 s57, s29, 0")
        a(f"s_mov_b32 s58, 65536")
        a(f"s_lshl_b32 {sT[0]}, {sW}, 8")
        a(f"v_lshl_add_u32 v10, {vCol}, 4, {sT[0]}")
        a(f"v_lshl_add_u32 v10, {vRow}, 14, v10")
        for i in range(8):
            if i % 2 == 0: a(f"s_movk_i32 {sT[1]}, {2048*i}")
            a(f"buffer_load_dwordx4 v[{32+4*i}:{35+4*i}], v10, {W2}, {sT[1]} offen offset:{2048*(i%2)} sc1")
        a(f"s_lshl_b32 {sT[0]}, {sW}, 6")
        a(f"v_lshl_add_u32 v11, {vCol}, 2, {vRow}")
        a(f"v_add_u32 v11, {sT[0]}, v11")
        a(f"v_lshlrev_b32 v12, 1, v11")
        a(f"global_load_ushort v13, v12, s[4:5]")
        a(f"s_lshl_b32 {sT[0]}, {sB}, 11")
        a(f"s_add_u32 {sT[0]}, {sT[0]}, 0x80000")
        a(f"v_lshl_add_u32 v11, v11, 2, {sT[0]}")
        a(f"global_load_dword v14, v11, s[28:29] sc1")
        a("s_waitcnt vmcnt(2)")
        tstamp(4)
        for st in (16, 8, 4):
            for i in range(st): a(f"v_add_f32 v{32+i}, v{32+i}, v{32+st+i}")
        a("s_nop 0")
        a("v_permlane32_swap_b32 v32, v34")
        a("v_permlane32_swap_b32 v33, v35")
        a("v_add_f32 v32, v32, v34")
        a("v_add_f32 v33, v33, v35")
        a("s_nop 1")
        a("v_permlane16_swap_b32 v32, v33")
        a("v_add_f32 v16, v32, v33")
        rbf("v16")
        a("s_waitcnt vmcnt(0)")
        a("v_lshlrev_b32 v13, 16, v13")
        a("v_add_f32 v16, v13, v16")
        rbf("v16")
        a("v_add_f32 v16, v16, v14")
        a("v_cvt_pk_bf16_f32 v16, v16, v16")
        a(f"s_lshl_b32 {sT[0]}, {sB}, 10")
        a(f"v_add_u32 v12, {sT[0]}, v12")
        a(f"global_store_short v12, v16, s[24:25]")
    a("L_fin:")
    if o.get("pin", 0):
        a("L_pin:")
        a("s_memrealtime s[62:63]")
        a("s_waitcnt lgkmcnt(0)")
        a("s_sub_u32 s62, s62, s60")
        a(f"s_cmp_lt_u32 s62, {o['pin']}")
        a("s_cbranch_scc1 L_pin")
    stamp(8)
    if STAMP == 1:
        a("s_waitcnt lgkmcnt(0)")
        a(f"s_mul_i32 {sT[0]}, s2, 9")
        a(f"s_add_u32 {sT[0]}, {sT[0]}, {sW}")
        a(f"s_add_u32 {sT[0]}, {sT[0]}, 1")
        a(f"s_lshl_b32 {sT[0]}, {sT[0]}, 7")
        a(f"s_add_u32 {sT[0]}, {sT[0]}, 0x100000")
        a(f"v_mov_b32 v16, 0")
        for i in range(18): a(f"v_writelane_b32 v16, s{60+i}, {i}")
        a(f"s_getreg_b32 {sT[1]}, hwreg(HW_REG_XCC_ID)")
        a(f"s_getreg_b32 {sT[2]}, hwreg(HW_REG_HW_ID)")
        a(f"v_writelane_b32 v16, {sT[1]}, 18")
        a(f"v_writelane_b32 v16, {sT[2]}, 19")
        a(f"v_writelane_b32 v16, {sSpin}, 20")
        a(f"v_writelane_b32 v16, s79, 21")
        a(f"v_lshl_add_u32 v17, {vL}, 2, {sT[0]}")
        a(f"s_mov_b64 exec, 0xffffffff")
        a(f"global_store_dword v17, v16, s[28:29]")
    if STAMP == 2:
        a("s_waitcnt lgkmcnt(0)")
        a(f"s_cmp_gt_i32 {sW}, 0")
        a("s_cbranch_scc1 L_end")
        a(f"v_mov_b32 v16, 0")
        a(f"s_not_b32 {sT[1]}, s60")
        a(f"v_writelane_b32 v16, {sT[1]}, 0")
        for i in range(6): a(f"v_writelane_b32 v16, s{66+2*i}, {i+1}")
        a(f"s_not_b32 {sT[1]}, s70")
        a(f"v_writelane_b32 v16, {sT[1]}, 7")
        a(f"v_lshlrev_b32 v17, 2, {vL}")
        a(f"s_mov_b64 exec, 0xff")
        a(f"global_atomic_umax v17, v16, s[26:27] offset:32 sc1")
    a("L_end:")
    a("s_endpgm")

    head = open("cdna_kernels/%s.s.ref" % NAME).read().split("; Override launch")[0]
    out = head + f"; @launch grid=(256,1,1) block=(576,1,1) lds={LDS_BYTES}\n"
    out += '.amdgcn_target "amdgcn-amd-amdhsa--gfx950"\n.text\n'
    out += f".globl {NAME}_kernel\n.p2align 8\n.type {NAME}_kernel,@function\n" + a.text()
    out += f""".section .rodata,"a"
.p2align 6
.amdhsa_kernel {NAME}_kernel
  .amdhsa_next_free_vgpr 152
  .amdhsa_next_free_sgpr 80
  .amdhsa_accum_offset 152
  .amdhsa_group_segment_fixed_size 0
  .amdhsa_kernarg_size 104
  .amdhsa_user_sgpr_count 2
  .amdhsa_user_sgpr_kernarg_segment_ptr 1
  .amdhsa_system_sgpr_workgroup_id_x 1
  .amdhsa_float_denorm_mode_32 3
.end_amdhsa_kernel
"""
    return out
if __name__ == "__main__":
    opts = {}
    for kv in sys.argv[2:]:
        k, v = kv.split("=")
        try: opts[k] = int(v, 0)
        except ValueError: opts[k] = v.replace("+", " ")
    open(sys.argv[1], "w").write(gen(opts))
```

```python
import sys, struct, math
NAME = "parallel_sum__mha_block_cached__mixer_token_mlp__decode"
def f2u(x): return struct.unpack("<I", struct.pack("<f", x))[0]
class Asm:
    def __init__(self): self.lines = []
    def __call__(self, s):
        s = s.strip()
        self.lines.append(s if s.endswith(":") else "    " + s)
    def c(self, s): self.lines.append("    ; " + s)
    def text(self): return "\n".join(self.lines) + "\n"

def gen(o):
    D = o.get("d", 20)
    STAMP = o.get("stamp", 0)
    ROT = o.get("rot", 0)
    BOUND = o.get("bound", 1)
    WOR = o.get("wor", 6)
    WQP = o.get("wqp", 0)
    SLEEP = o.get("sleep", 0)
    WP = o.get("wp", "")
    WOS = o.get("wos", 1)
    TAIL = o.get("tail", 3)
    WOP = o.get("wop", "nt")
    SPF = o.get("spf", 0)
    WOT = o.get("wot", 1)
    WOM = o.get("wom", 3); WOD = o.get("wod", 2)
    assert WOR + 7 * WOS < 15 and WOR + 15 * WOM // WOD < 32
    sE = "s3"
    FB = o.get("fb", 0)
    FP = o.get("fp", 8)
    FS = o.get("fs", 2)
    FG0 = o.get("fg0", 40)
    FDL = o.get("fdl", 2)
    FK0 = o.get("fk0", 4)
    FR = o.get("frep", 64)
    FLEAD = o.get("flead", 0)
    sTg = "s78"
    a = Asm()
    FULL = "row_mask:0xf bank_mask:0xf"
    l2e = 1.0 / math.log(2.0)
    sB, sH, sW = "s30", "s31", "s32"
    sOff, sR, sG = "s33", "s34", "s35"
    R = "s[36:39]"
    sM1, sD1, sM2, sD2 = "s40", "s41", "s42", "s43"
    sT = [f"s{44+i}" for i in range(8)]
    sHI, sB2, sSpin, sK = "s52", "s53", "s54", "s55"
    W2 = "s[56:59]"
    sL2E, sC1 = "s14", "s15"
    L_SC = 131072
    L_QP = L_SC + 16384
    L_XN = L_QP + 4352
    L_BP = L_XN + 1024
    L_FL = L_BP + 512
    LDS_BYTES = L_FL + 256
    L_Y = 0
    vL, vRow, vCol, vF = "v0", "v1", "v2", "v3"
    WREG = 64
    QF = 48
    DT = 32
    ACC = [f"v{24+i}" for i in range(8)]
    def wslot(j): return f"v[{WREG+4*j}:{WREG+4*j+3}]"
    nlab = [0]
    def lab(p):
        nlab[0] += 1; return f"L_{p}{nlab[0]}"
    TS = o.get("ts", 0)
    def tstamp(i):
        if TS: a(f"s_memrealtime s[{60+2*i}:{61+2*i}]")
    def stamp(i):
        if STAMP in (1, 2) or (STAMP in (3, 4) and i == 0): a(f"s_memrealtime s[{60+2*i}:{61+2*i}]")
    def wave_reduce(op, v, sdst):
        for ctl in ["quad_perm:[1,0,3,2] "+FULL, "quad_perm:[2,3,0,1] "+FULL, "row_half_mirror "+FULL, "row_mirror "+FULL,
                    "row_bcast:15 row_mask:0xa bank_mask:0xf", "row_bcast:31 row_mask:0xc bank_mask:0xf"]:
            a("s_nop 1"); a(f"{op}_dpp {v}, {v}, {v} {ctl}")
        a("s_nop 1"); a(f"v_readlane_b32 {sdst}, {v}, 63")
    def allreduce(op, regs, steps):
        for ctl in ["quad_perm:[1,0,3,2]", "quad_perm:[2,3,0,1]", "row_half_mirror", "row_mirror"][:steps]:
            if len(regs) < 3: a(f"s_nop {2-len(regs)}")
            for v in regs: a(f"{op}_dpp {v}, {v}, {v} {ctl} {FULL}")
    def rbf(v):
        a(f"v_cvt_pk_bf16_f32 {v}, {v}, {v}"); a(f"v_and_b32 {v}, {sHI}, {v}")
    def spin(off, cmp, val, tmpv, tmps):
        l0, l1 = lab("sp"), lab("go")
        a(f"{l0}:")
        a(f"ds_read_b32 {tmpv}, {vF} offset:{off}")
        a("s_waitcnt lgkmcnt(0)")
        a(f"v_readfirstlane_b32 {tmps}, {tmpv}")
        a(f"{cmp} {tmps}, {val}")
        if BOUND or SLEEP:
            a(f"s_cbranch_scc1 {l1}")
            if SLEEP: a(f"s_sleep {SLEEP}")
            if BOUND:
                a(f"s_sub_u32 {sSpin}, {sSpin}, 1")
                a(f"s_cbranch_scc1 L_end")
            a(f"s_branch {l0}")
            a(f"{l1}:")
        else:
            a(f"s_cbranch_scc0 {l0}")
    def rows_sum(v, t):
        a(f"v_mov_b32 {t}, {v}"); a("s_nop 1"); a(f"v_permlane32_swap_b32 {v}, {t}"); a(f"v_add_f32 {v}, {v}, {t}")
        a(f"v_mov_b32 {t}, {v}"); a("s_nop 1"); a(f"v_permlane16_swap_b32 {v}, {t}"); a(f"v_add_f32 {v}, {v}, {t}")
    def rows_reduce8(vaddr):
        for i in range(4): a(f"v_permlane32_swap_b32 {ACC[i]}, {ACC[i+4]}")
        for i in range(4): a(f"v_add_f32 {ACC[i]}, {ACC[i]}, {ACC[i+4]}")
        a("s_nop 0")
        for i in range(2): a(f"v_permlane16_swap_b32 {ACC[i]}, {ACC[i+2]}")
        for i in range(2): a(f"v_add_f32 {ACC[i]}, {ACC[i]}, {ACC[i+2]}")
        a(f"ds_write_b64 {vaddr}, v[24:25]")

    def probe(tag):
        PR = o.get("probe", 0)
        if not PR: return
        PP = o.get("pp", 4)
        a(f"s_and_b32 {sT[1]}, {sR}, {PP-1}")
        a(f"s_or_b32 {sT[1]}, {sT[1]}, {sW}")
        a(f"s_cbranch_scc1 L_np{tag}")
        a(f"v_mov_b32 v150, 1")
        if PR in (1, 2):
            a(f"v_mov_b32 v149, 0x200000")
            a(f"s_mov_b64 exec, 1")
            a(f"global_atomic_add v151, v149, v150, s[28:29] sc0 {'sc1' if PR == 1 else ''}")
            a(f"s_mov_b64 exec, -1")
        elif PR == 3:
            a(f"s_add_u32 {sT[1]}, s2, 0x200000")
            a(f"v_mov_b32 v149, {sT[1]}")
            a(f"s_mov_b64 exec, 1")
            a(f"global_store_byte v149, v150, s[28:29] sc1")
            a(f"s_mov_b64 exec, -1")
            a(f"v_lshlrev_b32 v149, 2, {vL}")
            a(f"v_add_u32 v149, 0x200000, v149")
            a(f"global_load_dword v151, v149, s[28:29] sc1")
        elif PR == 4:
            a(f"s_lshl_b32 {sT[1]}, s2, 8")
            a(f"s_add_u32 {sT[1]}, {sT[1]}, 0x200000")
            a(f"v_mov_b32 v149, {sT[1]}")
            a(f"s_mov_b64 exec, 1")
            a(f"global_store_dword v149, v150, s[28:29] sc1")
            a(f"s_mov_b64 exec, {hex((1 << o.get('np', 16)) - 1)}")
            a(f"v_mul_u32_u24 v149, {256 * 17}, {vL}")
            a(f"v_add_u32 v149, {sT[1]}, v149")
            a(f"v_and_b32 v149, 0x20ffff, v149")
            a(f"global_load_dword v151, v149, s[28:29] sc1")
            a(f"s_mov_b64 exec, -1")
        elif PR == 5:
            a(f"s_lshl_b32 {sT[1]}, {sB}, 12")
            a(f"s_add_u32 {sT[1]}, {sT[1]}, 0x200000")
            a(f"v_mov_b32 v149, {sT[1]}")
            a(f"s_mov_b64 exec, 1")
            a(f"global_atomic_add v151, v149, v150, s[28:29] sc0 sc1")
            a(f"s_mov_b64 exec, -1")
        elif PR in (6, 7):
            if PR == 6: a(f"s_mov_b32 {sT[1]}, 0x200000")
            else:
                a(f"s_lshl_b32 {sT[1]}, {sB}, 12")
                a(f"s_add_u32 {sT[1]}, {sT[1]}, 0x200000")
            a(f"s_mov_b32 {sT[2]}, 1")
            a(f"s_atomic_add {sT[2]}, s[28:29], {sT[1]} glc")
            a("s_waitcnt lgkmcnt(0)")
        elif PR == 8:
            a(f"s_lshr_b32 {sT[1]}, s2, {o.get('gs', 3)}")
            a(f"s_mul_i32 {sT[1]}, {sT[1]}, {o.get('ls', 4352)}")
            if o.get("fr", 1):
                a(f"s_lshl_b32 {sT[2]}, {sG}, 18")
                a(f"s_add_u32 {sT[1]}, {sT[1]}, {sT[2]}")
            a(f"s_add_u32 {sT[1]}, {sT[1]}, 0x200000")
            a(f"s_mov_b32 {sT[2]}, 1")
            if o.get("ld", 0): a(f"s_load_dword {sT[2]}, s[28:29], {sT[1]} glc")
            else: a(f"s_atomic_add {sT[2]}, s[28:29], {sT[1]} glc")
            a("s_waitcnt lgkmcnt(0)")
        a(f"L_np{tag}:")
    def ctl(tag):
        if FB != 2: return
        a(f"s_sub_u32 {sT[1]}, {sG}, {FG0 + 8}")
        a(f"s_cbranch_scc1 L_nc{tag}")
        a(f"s_and_b32 {sT[2]}, {sT[1]}, {8*FP - 1}")
        a(f"s_lshr_b32 {sT[1]}, {sT[1]}, {(8*FP).bit_length() - 1}")
        a(f"s_cmp_ge_u32 {sG}, {o.get('fend', 480)}")
        a(f"s_cbranch_scc1 L_nc{tag}")
        a(f"s_mul_i32 {sT[3]}, {sT[1]}, {FR * 4352}")
        a(f"s_add_u32 {sT[3]}, {sT[3]}, 0x200000")
        a(f"s_cmp_eq_u32 s2, {FLEAD}")
        a(f"s_cbranch_scc1 L_cl{tag}")
        a(f"s_and_b32 {sT[2]}, {sT[2]}, {hex(0xffffffff ^ (7 * FS))}")
        a(f"s_cbranch_scc1 L_nc{tag}")
        a(f"s_and_b32 {sT[2]}, s2, {FR - 1}")
        a(f"s_mul_i32 {sT[2]}, {sT[2]}, 4352")
        a(f"s_add_u32 {sT[3]}, {sT[3]}, {sT[2]}")
        a(f"s_load_dword {sT[2]}, s[28:29], {sT[3]} glc")
        a(f"s_lshl_b32 {sT[1]}, {sT[1]}, 2")
        a(f"v_add_u32 v10, {sT[1]}, {vF}")
        a(f"s_waitcnt lgkmcnt(0)")
        a(f"s_cmp_eq_u32 {sT[2]}, {sTg}")
        a(f"s_cbranch_scc0 L_nc{tag}")
        a(f"v_mov_b32 v11, 1")
        a(f"s_mov_b64 exec, 1")
        a(f"ds_add_u32 v10, v11 offset:132")
        a(f"s_mov_b64 exec, -1")
        a(f"s_branch L_nc{tag}")
        a(f"L_cl{tag}:")
        a(f"s_cmp_eq_u32 {sT[2]}, {4*FS - FDL}")
        a(f"s_cbranch_scc0 L_nc{tag}")
        a(f"v_mul_u32_u24 v10, 4352, {vL}")
        a(f"v_add_u32 v10, {sT[3]}, v10")
        a(f"v_mov_b32 v11, {sTg}")
        if FR < 64: a(f"s_mov_b64 exec, {hex((1 << FR) - 1)}")
        a(f"global_store_dword v10, v11, s[28:29] sc1")
        if FR < 64: a(f"s_mov_b64 exec, -1")
        a(f"L_nc{tag}:")
    a(f"{NAME}_kernel:")
    a("s_cmpk_ge_u32 s2, 256")
    a("s_cbranch_scc1 L_end")
    a("s_load_dwordx16 s[4:19], s[0:1], 0")
    a("s_load_dwordx8 s[20:27], s[0:1], 64")
    a("s_load_dwordx2 s[28:29], s[0:1], 96")
    stamp(0)
    if o.get("map", 0) == 1:
        a("s_and_b32 s3, s2, 7")
        a("s_lshl_b32 s3, s3, 2")
        a("s_bfe_u32 s44, s2, 0x20003")
        a("s_or_b32 s3, s3, s44")
        a("s_and_b32 s2, s2, 0xe0")
        a("s_or_b32 s2, s2, s3")
    a(f"v_lshrrev_b32 v4, 6, v0")
    a(f"v_and_b32 {vL}, 63, v0")
    a(f"v_readfirstlane_b32 {sW}, v4")
    a(f"v_mov_b32 {vF}, {L_FL}")
    a(f"v_lshl_add_u32 v9, {vL}, 2, {vF}")
    a(f"v_mov_b32 v10, 0")
    a(f"ds_write_b32 v9, v10")
    a(f"v_lshrrev_b32 {vRow}, 4, {vL}")
    a(f"v_and_b32 {vCol}, 15, {vL}")
    a(f"s_mov_b32 s39, 0x20000")
    a(f"s_mov_b32 s38, 0x100000")
    a(f"s_lshl_b32 {sT[0]}, s2, 20")
    a(f"v_xor_b32 v4, {vCol}, {vRow}")
    a(f"v_lshlrev_b32 v4, 4, v4")
    a(f"v_lshl_add_u32 v4, {vRow}, 8, v4")
    a(f"v_xor_b32 v5, 64, v4")
    a(f"v_xor_b32 v6, 0x80, v4")
    a(f"v_xor_b32 v7, 64, v6")
    js = (D - 1) % 4
    sMask = "s40"
    RS = o.get("rs", 3); DS = o.get("ds", 36); jss = (DS - 1) % 4
    a(f"v_mov_b32 v8, {(jss - DS - 3)//4 if RS else (js - D - 3)//4}")
    a(f"s_mov_b32 {sOff}, 0")
    a(f"s_mov_b32 m0, 0")
    a(f"s_movk_i32 {sMask}, 0x100")
    a(f"s_mov_b32 {sR}, 0")
    a(f"s_sub_u32 {sW}, {sW}, 1")
    a("s_waitcnt lgkmcnt(0)")
    a("s_barrier")
    a("s_cbranch_scc0 L_cons")

    a("s_setprio 3")
    if o.get("ss", 0): a("s_memrealtime s[62:63]")
    a(f"s_add_u32 s36, s6, {sT[0]}")
    a(f"s_addc_u32 s37, s7, 0")
    if o.get("skew", 0):
        a(f"s_and_b32 s70, s2, {o.get('skm', 0)}")
        a(f"s_cmp_lg_u32 s70, {o.get('skv', 0)}")
        a("s_cbranch_scc1 L_nsk")
        a("s_mov_b32 s70, s60")
        a("s_atomic_umax s70, s[26:27], 0")
        a("L_nsk:")
        a("s_not_b32 s71, s60")
        a("s_atomic_umax s71, s[26:27], 4")
    if RS:
        a("L_ls:")
        for j in range(4):
            a(f"s_waitcnt vmcnt({DS-1})")
            if j == jss:
                a("v_add_u32 v8, 1, v8")
                a(f"ds_write_b32 {vF}, v8")
            a(f"buffer_load_dwordx4 v{4+j}, {R}, {sOff} offen offset:{1024*j} nt lds")
        a(f"s_addk_i32 {sOff}, 4096")
        a(f"s_and_b32 m0, {sOff}, 0x1ffff")
        a(f"s_cmp_lg_u32 {sOff}, {RS*32768}")
        a(f"s_cbranch_scc1 L_ls")
        a(f"v_mov_b32 v8, {(32*RS + js - D - 3)//4}")
        a(f"s_branch L_ld0")
    a("L_ld:")
    if FB:
        a(f"s_bitcmp1_b32 {sMask}, 0")
        a(f"s_cbranch_scc0 L_nd")
        a(f"buffer_load_dword v12, v4, {R}, s38 offen")
        a(f"L_nd:")
    for j in range(4):
        a(f"s_waitcnt vmcnt({D-1})")
        if j == js:
            a("v_add_u32 v8, 1, v8")
            a(f"ds_write_b32 {vF}, v8")
        a(f"buffer_load_dwordx4 v{4+j}, {R}, {sOff} offen offset:{1024*j} nt lds")
    a(f"s_addk_i32 {sOff}, 4096")
    a(f"s_and_b32 m0, {sOff}, 0x1ffff")
    a(f"s_lshr_b32 {sMask}, {sMask}, 1")
    a(f"s_cmp_lg_u32 {sMask}, 1")
    a(f"s_cbranch_scc1 L_ld")
    if RS: a(f"s_branch L_ld1")
    else:
        a(f"s_cmp_lg_u32 {sR}, 0")
        a(f"s_cbranch_scc1 L_ld1")
    a("L_ld0:")
    if RS: a(f"s_mov_b32 {sR}, {RS-1}")
    a(f"s_add_u32 s8, s8, {sT[0]}")
    a(f"s_addc_u32 s9, s9, 0")
    a(f"s_mov_b32 {sSpin}, 0x100000")
    a(f"v_and_b32 v9, 7, {vL}")
    a(f"v_lshl_add_u32 v9, v9, 2, {vF}")
    a(f"v_mov_b32 v11, {max(RS-1, 0) - 3}")
    if STAMP == 1: a("s_mov_b32 s79, 0")
    if FB == 2:
        a(f"v_mov_b32 v14, {FK0}")
        a(f"ds_write_b32 {vF}, v14 offset:128")
        a(f"v_mov_b32 v15, {vF}")
        a(f"s_cmp_eq_u32 s2, {FLEAD}")
        a(f"s_cselect_b32 s41, 0, 4")
        tab = [0xff, 0x7f, 0x77, 0x75, 0x55, 0x51, 0x11, 0x10]
        a(f"s_mov_b32 s46, {hex(sum(tab[i] << (8*i) for i in range(4)))}")
        a(f"s_mov_b32 s47, {hex(sum(tab[4+i] << (8*i) for i in range(4)))}")
    a("L_ld1:")
    a(f"s_add_u32 {sR}, {sR}, 1")
    a(f"v_add_u32 v11, 1, v11")
    if STAMP == 1:
        for k, rr in zip((1,2,3,6,7), str(o.get("marks", "2,4,6,8,16")).split(",")):
            a(f"s_cmp_lg_u32 {sR}, {rr}")
            a(f"s_cbranch_scc1 L_mk{k}")
            a(f"s_memrealtime s[{60+2*k}:{61+2*k}]")
            a(f"L_mk{k}:")
    if STAMP == 4:
        for k, rr in ((1, o.get("m0", 99)), (2, o["m1"])):
            a(f"s_cmp_lg_u32 {sR}, {rr}")
            a(f"s_cbranch_scc1 L_mk{k}")
            a(f"s_memrealtime s[{60+2*k}:{61+2*k}]")
            a(f"L_mk{k}:")
    a(f"s_cmp_lg_u32 {sR}, 32")
    a(f"s_cbranch_scc1 L_ldnv")
    a(f"s_mov_b32 s36, s8")
    a(f"s_mov_b32 s37, s9")
    a(f"s_mov_b32 {sOff}, 0")
    for j in range(4): a(f"v_lshlrev_b32 v{4+j}, 4, {vL}")
    stamp(4)
    a("L_ldnv:")
    a(f"s_cmp_eq_u32 {sR}, 64")
    a(f"s_cbranch_scc1 L_drain")
    a("L_ldck:")
    a("s_waitcnt lgkmcnt(0)")
    a(f"v_cmp_lt_i32 vcc, v10, v11")
    a(f"s_cbranch_vccnz L_ldslow")
    a(f"s_mov_b32 {sMask}, 0x100")
    if FB == 2:
        a(f"v_readfirstlane_b32 s42, v14")
        if STAMP == 1:
            a(f"s_add_u32 s79, s79, 8"); a(f"s_sub_u32 s79, s79, s42")
        a(f"s_lshl_b32 s42, s42, 3")
        a(f"s_lshr_b64 s[48:49], s[46:47], s42")
        a(f"s_and_b32 s48, s48, 0xff")
        a(f"s_cmp_lt_u32 {sR}, 63")
        a(f"s_cselect_b32 s48, s48, 0")
        a(f"s_cmp_lt_u32 s42, 64")
        a(f"s_cselect_b32 s48, s48, 0")
        a(f"s_or_b32 {sMask}, {sMask}, s48")
        RA = (FG0 + 8*FS + D//4 + 8 + 7) // 8
        a(f"s_and_b32 s42, {sR}, {FP-1}")
        a(f"s_cmp_eq_u32 s42, {RA % FP}")
        a(f"s_cselect_b32 s42, s41, 0")
        if RA >= FP:
            a(f"s_cmp_ge_u32 {sR}, {RA}")
            a(f"s_cselect_b32 s42, s42, 0")
        a(f"v_add_u32 v15, s42, v15")
        a(f"ds_read_b32 v14, v15 offset:128")
    a(f"ds_read_b32 v10, v9 offset:32")
    a(f"s_branch L_ld")
    a("L_drain:")
    pub = (2044 + js - D - 3)//4 + 1
    while pub < 512:
        pub += 1
        a(f"s_waitcnt vmcnt({2048 - 4*pub})")
        a("v_add_u32 v8, 1, v8")
        a(f"ds_write_b32 {vF}, v8")
    stamp(5)
    if STAMP == 4:
        a("s_barrier"); a("s_barrier")
        a("s_waitcnt lgkmcnt(0)")
        if "swg" in o:
            a(f"s_cmp_lg_u32 s2, {o['swg']}")
            a("s_cbranch_scc1 L_end")
        if o.get("skew", 0):
            a("s_load_dwordx2 s[64:65], s[26:27], 0 glc")
            a("s_waitcnt lgkmcnt(0)")
            a("s_not_b32 s65, s65")
            a("s_sub_u32 s64, s64, s65")
        else:
            a(f"s_sub_u32 s64, s64, {'s62' if 'm0' in o else 's60'}")
        a(f"s_sub_u32 s64, s64, {o.get('sub', 0)}")
        if o.get("neg", 0): a("s_sub_u32 s64, 0, s64")
        a(f"s_mul_i32 s64, s64, {o.get('amp', 10)}")
        a(f"s_add_u32 s64, s64, 10000")
        a(f"s_min_u32 s64, s64, 100000")
        a("L_pin2:")
        a("s_memrealtime s[66:67]")
        a("s_waitcnt lgkmcnt(0)")
        a("s_sub_u32 s66, s66, s60")
        a(f"s_cmp_lt_u32 s66, s64")
        a("s_cbranch_scc1 L_pin2")
    elif STAMP == 3:
        a(f"s_memrealtime s[74:75]")
        a("s_waitcnt lgkmcnt(0)")
        a(f"s_cmp_lg_u32 s2, {o.get('swg', 5)}")
        a("s_cbranch_scc1 L_end")
        for i in range(8): a(f"v_writelane_b32 v16, s{60+2*i}, {i}")
        a(f"v_subrev_u32 v16, s60, v16")
        a(f"v_lshlrev_b32 v17, 2, {vL}")
        a(f"s_mov_b64 exec, 0xff")
        a(f"global_store_dword v17, v16, s[26:27] offset:32")
    elif STAMP:
        if STAMP == 2:
            for i in (1,2,3,6,7): a(f"s_mov_b64 s[{60+2*i}:{61+2*i}], 0")
        a("s_branch L_fin")
    a("s_endpgm")
    a("L_ldslow:")
    a(f"ds_read_b32 v10, v9 offset:32")
    if BOUND:
        a(f"s_sub_u32 {sSpin}, {sSpin}, 1")
        a(f"s_cbranch_scc1 L_end")
    a("s_branch L_ldck")

    a("L_cons:")
    a(f"s_lshr_b32 {sB}, s2, 5")
    a(f"s_and_b32 {sH}, s2, 31")
    a(f"s_mov_b32 {sHI}, 0xffff0000")
    a(f"s_mov_b32 s59, 0x20000")
    a(f"s_lshl_b32 {sT[0]}, {sB}, 10")
    a(f"v_lshlrev_b32 v8, 4, {vL}")
    a(f"s_mov_b32 {sSpin}, 0x100000")
    a(f"s_add_u32 s4, s4, {sT[0]}")
    a(f"s_addc_u32 s5, s5, 0")
    a(f"global_load_dwordx4 v[4:7], v8, s[4:5] {WP}")
    if o.get("ipf", 0):
        a(f"s_getpc_b64 s[46:47]")
        a("L_pc:")
        a(f"s_lshl_b32 {sT[0]}, {sW}, 10")
        a(f"v_add_u32 v9, {sT[0]}, v8")
        a(f"v_min_u32 v9, L_end-L_pc-12, v9")
        a(f"global_load_dwordx4 v[16:19], v9, s[46:47]")
    a(f"s_lshl_b32 {sT[0]}, {sW}, 19")
    a(f"s_lshl_b32 {sT[1]}, {sH}, 8")
    a(f"s_add_u32 {sT[0]}, {sT[0]}, {sT[1]}")
    a(f"s_add_u32 s36, s10, {sT[0]}")
    a(f"s_addc_u32 s37, s11, 0")
    a(f"s_mov_b32 s38, {o.get('wqn', 0x80000)}")
    a(f"v_lshlrev_b32 v9, 17, {vRow}")
    a(f"v_lshl_add_u32 v9, {vCol}, 4, v9")
    if ROT: a(f"s_lshl_b32 {sT[2]}, {sB}, 14")
    else: a(f"s_mov_b32 {sT[2]}, 0")
    def wqload(j):
        a(f"s_xor_b32 {sT[3]}, {sT[2]}, {j*8192}")
        a(f"buffer_load_dwordx4 {wslot(j)}, v9, {R}, {sT[3]} offen {o.get('wqpol', 'nt')}")
    WQS = o.get("wqs", 6); PRE = o.get("pre", 1)
    NQ0 = WQP if WQP else (WQS if WQS else 16)
    if FB == 2:
        a(f"s_mov_b32 {sT[4]}, 0x180000")
        a(f"s_load_dword {sTg}, s[28:29], {sT[4]}")
    for j in range(NQ0): wqload(j)
    a(f"s_waitcnt vmcnt({NQ0})")
    stamp(1)
    ln_start = len(a.lines)
    X = [f"v{16+i}" for i in range(8)]
    def unpack(src4):
        for i in range(4):
            a(f"v_lshlrev_b32 {X[2*i]}, 16, v{src4+i}")
            a(f"v_and_b32 {X[2*i+1]}, {sHI}, v{src4+i}")
    def ln(sM, sD, write):
        a(f"v_add_f32 v24, {X[0]}, {X[1]}")
        for i in range(2, 8): a(f"v_add_f32 v24, v24, {X[i]}")
        wave_reduce("v_add_f32", "v24", sT[0])
        a("s_nop 1")
        a(f"v_mov_b32 v25, {sT[0]}")
        a(f"v_mul_f32 v25, {hex(f2u(1.0/512))}, v25")
        a(f"v_sub_f32 v26, {X[0]}, v25")
        a(f"v_mul_f32 v24, v26, v26")
        for i in range(1, 8):
            a(f"v_sub_f32 v26, {X[i]}, v25")
            a(f"v_fmac_f32 v24, v26, v26")
        wave_reduce("v_add_f32", "v24", sT[0])
        rbf("v25")
        a(f"v_mov_b32 v24, {sT[0]}")
        a(f"v_mul_f32 v24, {hex(f2u(1.0/512))}, v24")
        rbf("v24")
        a(f"v_add_f32 v24, {hex(f2u(1e-5))}, v24")
        rbf("v24")
        a(f"v_sqrt_f32 v24, v24")
        a("s_nop 0")
        rbf("v24")
        a(f"v_rcp_f32 v24, v24")
        a(f"v_readfirstlane_b32 {sM}, v25")
        a(f"v_readfirstlane_b32 {sD}, v24")
        if write:
            for i in range(8): a(f"v_sub_f32 {X[i]}, {X[i]}, v25")
            for i in range(4): a(f"v_cvt_pk_bf16_f32 v{4+i}, {X[2*i]}, {X[2*i+1]}")
            unpack(4)
            for i in range(8): a(f"v_mul_f32 {X[i]}, {X[i]}, v24")
            for i in range(4): a(f"v_cvt_pk_bf16_f32 v{4+i}, {X[2*i]}, {X[2*i+1]}")
    unpack(4)
    ln(sM1, sD1, True)
    a(f"v_add_u32 v8, {L_XN}, v8")
    a(f"ds_write_b128 v8, v[4:7]")
    a(f"s_lshl_b32 {sT[0]}, {sW}, 7")
    if ROT:
        a(f"s_lshl_b32 {sT[1]}, {sB}, 2")
        a(f"s_add_u32 {sT[0]}, {sT[0]}, {sT[1]}")
    a(f"s_add_u32 {sT[0]}, {sT[0]}, {L_XN}")
    a(f"v_lshl_add_u32 v8, {vRow}, 5, {sT[0]}")
    assert L_XN % 32 == 0
    for i in range(8):
        if i:
            a(f"v_xor_b32 v10, {4*i}, v8")
            a(f"ds_read_b32 v{QF+i}, v10")
        else:
            a(f"ds_read_b32 v{QF+i}, v8")
    for i in range(8): a(f"v_mov_b32 {ACC[i]}, 0")
    if WQP:
        body = a.lines[ln_start:]; del a.lines[ln_start:]
        nins = 16 - NQ0
        LNF = o.get("lnf", 100)
        inl = nins * LNF // 100
        pts = [int((k + 0.5) * len(body) / inl) for k in range(inl)] if inl else []
        k = 0
        for idx, line in enumerate(body):
            while k < inl and pts[k] == idx:
                a(f"s_waitcnt vmcnt({NQ0-1})"); wqload(NQ0 + k); k += 1
            a.lines.append(line)
        while k < nins:
            a(f"s_waitcnt vmcnt({NQ0-1})"); wqload(NQ0 + k); k += 1
    if WQS:
        for j in range(WQS, 16): wqload(j)
        NQ0 = 16
    if PRE:
        a(f"v_xor_b32 v12, {vRow}, {vCol}")
        a(f"v_lshlrev_b32 v12, 4, v12")
        a(f"v_lshl_add_u32 v12, {vCol}, 8, v12")
        a(f"s_lshl_b32 {sT[0]}, {sW}, 12")
        a(f"v_add_u32 v12, {sT[0]}, v12")
        for t in range(1, 4): a(f"v_xor_b32 v{19+t}, {64*t}, v12")
        spin(0, "s_cmp_gt_i32", sW, "v10", sT[0])
        a(f"ds_read_b128 v[{DT}:{DT+3}], v12")
        for t in range(1, 4): a(f"ds_read_b128 v[{DT+4*t}:{DT+4*t+3}], v{19+t}")
        a(f"s_lshl_b32 {sT[0]}, {sW}, 2")
        a(f"v_add_u32 v13, {sT[0]}, {vF}")
        a(f"v_mov_b32 v14, 1")
    a("s_waitcnt lgkmcnt(0)")
    if PRE: a(f"ds_write_b32 v13, v14 offset:32")
    for j in range(16):
        src = f"v{QF + j//2}"
        if j % 2 == 0:
            a(f"v_and_b32 v10, 0xffff, {src}"); a(f"v_lshlrev_b32 v11, 16, {src}")
        else:
            a(f"v_lshrrev_b32 v10, 16, {src}"); a(f"v_and_b32 v11, {sHI}, {src}")
        if 15 - j < NQ0: a(f"s_waitcnt vmcnt({15 - j})")
        for i in range(4):
            a(f"v_dot2c_f32_bf16 {ACC[2*i]}, v10, v{WREG+4*j+i}")
            a(f"v_dot2c_f32_bf16 {ACC[2*i+1]}, v11, v{WREG+4*j+i}")
    stamp(2)
    vPA = "v23"
    a(f"s_mul_i32 {sT[0]}, {sW}, 528")
    a(f"s_add_u32 {sT[0]}, {sT[0]}, {L_QP}")
    a(f"v_lshl_add_u32 v15, {vCol}, 5, {sT[0]}")
    a(f"v_lshl_add_u32 v15, {vRow}, 3, v15")
    rows_reduce8("v15")
    a(f"v_mov_b32 v10, 1")
    a("s_waitcnt lgkmcnt(0)")
    a(f"s_mov_b64 exec, 1")
    a(f"ds_add_u32 {vF}, v10 offset:4")
    a(f"s_mov_b64 exec, -1")
    MX = 128
    for i in range(4): a(f"v_mov_b32 v{141+i}, v{4+i}")
    spin(4, "s_cmp_ge_u32", 8, "v10", sT[0])
    a(f"v_lshlrev_b32 v10, 3, {vL}")
    a(f"v_add_u32 v10, {L_QP}, v10")
    for w in range(8): a(f"ds_read_b64 v[{WREG+2*w}:{WREG+2*w+1}], v10 offset:{528*w}")
    a("s_waitcnt lgkmcnt(0)")
    for st in (8, 4, 2):
        for i in range(st): a(f"v_add_f32 v{WREG+i}, v{WREG+i}, v{WREG+st+i}")
    a(f"v_cvt_pk_bf16_f32 v{WREG}, v{WREG}, v{WREG+1}")
    a(f"v_lshlrev_b32 v10, 2, {vL}")
    a(f"v_add_u32 v10, {L_XN}, v10")
    a(f"ds_write_b32 v10, v{WREG}")
    a(f"v_lshlrev_b32 v10, 4, {vRow}")
    a(f"v_add_u32 v10, {L_XN}, v10")
    for t in range(4): a(f"ds_read_b128 v[{QF+4*t}:{QF+4*t+3}], v10 offset:{64*t}")
    vH, vMA, vC0 = "v138", "v139", "v140"
    a(f"s_mov_b32 {sL2E}, {hex(f2u(l2e))}")
    a(f"s_mov_b32 {sK}, {hex(f2u(128 ** -0.5))}")
    vKA, vSA, vDA, vM, vLs, vDn = "v4", "v5", "v6", "v7", "v8", "v9"
    a(f"v_xor_b32 {vKA}, {vRow}, {vCol}")
    a(f"v_lshlrev_b32 {vKA}, 4, {vKA}")
    a(f"v_lshl_add_u32 {vKA}, {vCol}, 8, {vKA}")
    a(f"s_lshl_b32 {sT[0]}, {sW}, 12")
    a(f"v_add_u32 {vKA}, {sT[0]}, {vKA}")
    a(f"s_lshl_b32 {sT[0]}, {sW}, 6")
    a(f"s_add_u32 {sT[0]}, {sT[0]}, {L_SC}")
    a(f"v_lshl_add_u32 {vSA}, {vCol}, 2, {sT[0]}")
    a(f"s_lshl_b32 {sT[0]}, {sW}, 2")
    a(f"v_add_u32 {vDA}, {sT[0]}, {vF}")
    a(f"v_mov_b32 {vM}, 0xff7fffff")
    a(f"v_mov_b32 {vLs}, 0")
    a(f"v_mov_b32 {vDn}, 0")
    a(f"s_mov_b32 {sG}, {sW}")
    a(f"s_mov_b32 {sR}, 0")
    a(f"s_lshl_b32 {sT[0]}, {sH}, 17")
    a(f"s_lshl_b32 {sT[1]}, {sW}, 14")
    a(f"s_add_u32 {sT[0]}, {sT[0]}, {sT[1]}")
    a(f"s_add_u32 s36, s12, {sT[0]}")
    a(f"s_addc_u32 s37, s13, 0")
    a(f"s_mov_b32 s38, {o.get('won', 16384)}")
    a(f"s_mul_i32 {sOff}, {sW}, {WOS}")
    a(f"s_add_u32 {sOff}, {sOff}, {WOR}")
    if FB == 2:
        a(f"s_add_u32 {sTg}, {sTg}, 1")
    stamp(3)
    if PRE:
        a("s_waitcnt lgkmcnt(0)")
        a("s_branch L_kmid")
    a("L_k:")
    for t in range(1, 4): a(f"v_xor_b32 v{10+t}, {64*t}, {vKA}")
    spin(0, "s_cmp_gt_i32", sG, "v10", sT[0])
    a(f"ds_read_b128 v[{DT}:{DT+3}], {vKA}")
    for t in range(1, 4): a(f"ds_read_b128 v[{DT+4*t}:{DT+4*t+3}], v{10+t}")
    a("L_kmid:")
    a(f"v_add_u32 {vDn}, 1, {vDn}")
    a(f"v_add_u32 {vKA}, 0x8000, {vKA}")
    a(f"v_and_b32 {vKA}, 0x1ffff, {vKA}")
    for t in range(4):
        a(f"s_waitcnt lgkmcnt({3-t})")
        a(f"v_mfma_f32_16x16x32_bf16 v[16:19], v[{QF+4*t}:{QF+4*t+3}], v[{DT+4*t}:{DT+4*t+3}], {'0' if t == 0 else 'v[16:19]'}")
    a(f"ds_write_b32 {vDA}, {vDn} offset:32")
    a(f"s_add_u32 {sG}, {sG}, 8")
    a(f"s_nop 5")
    rbf("v16")
    a(f"v_mul_f32 v16, {sK}, v16")
    rbf("v16")
    a(f"ds_write_b32 {vSA}, v16")
    a(f"v_max_f32 v17, {vM}, v16")
    a(f"v_sub_f32 v18, {vM}, v17")
    a(f"v_sub_f32 v16, v16, v17")
    a(f"v_mul_f32 v18, {sL2E}, v18")
    a(f"v_mul_f32 v16, {sL2E}, v16")
    a(f"v_exp_f32 v18, v18")
    a(f"v_exp_f32 v16, v16")
    a(f"v_mov_b32 {vM}, v17")
    a(f"v_add_u32 {vSA}, 512, {vSA}")
    a(f"v_fma_f32 {vLs}, {vLs}, v18, v16")
    ctl("k")
    a(f"v_lshlrev_b32 v10, 4, {vL}")
    if WOT:
        rounds = {}
        for j in range(16): rounds.setdefault(WOR + j * WOM // WOD, []).append(j)
        if SPF:
            for j in range(16): rounds.setdefault(WOR + j * WOM // WOD - SPF, []).append(-1 - j)
        for rr, js_ in sorted(rounds.items()):
            a(f"s_cmp_lg_u32 {sR}, {rr}")
            a(f"s_cbranch_scc1 L_wo{rr}")
            for j in js_:
                if j < 0:
                    jj = -1 - j
                    a(f"s_lshl_b32 {sT[1]}, {sB}, 7")
                    a(f"s_add_u32 {sT[1]}, {sT[1]}, {1024*jj}")
                    a(f"s_load_dword {sT[2]}, s[36:37], {sT[1]}")
                    a(f"s_add_u32 {sT[1]}, {sT[1]}, 64")
                    a(f"s_load_dword {sT[3]}, s[36:37], {sT[1]}")
                    continue
                a(f"s_movk_i32 {sT[1]}, {1024*j}")
                a(f"buffer_load_dwordx4 {wslot(j)}, v10, {R}, {sT[1]} offen {WOP}")
            a(f"L_wo{rr}:")
    a(f"s_cmp_lg_u32 {sR}, {sOff}")
    a(f"s_cbranch_scc1 L_nowo")
    if not WOT:
        for j in range(16):
            if j % 4 == 0: a(f"s_movk_i32 {sT[1]}, {1024*j}")
            a(f"buffer_load_dwordx4 {wslot(j)}, v10, {R}, {sT[1]} offen offset:{1024*(j%4)} {WP}")
    a(f"s_lshl_b32 {sT[0]}, {sH}, 5")
    a(f"v_lshl_add_u32 v11, {vCol}, 1, {sT[0]}")
    a(f"global_load_ushort v138, v11, s[4:5] {WP}")
    a(f"s_mul_i32 {sT[0]}, {sW}, 448")
    a(f"v_mul_u32_u24 v11, 112, {vRow}")
    a(f"v_lshl_add_u32 v11, {vCol}, 2, v11")
    a(f"v_add_u32 v11, {sT[0]}, v11")
    a(f"v_cmp_lt_u32 vcc, 13, {vCol}")
    a(f"v_mov_b32 v12, 0x10000")
    a(f"s_mov_b32 s58, 3584")
    a(f"v_cndmask_b32 v11, v11, v12, vcc")
    for k, p in enumerate([16, 18, 20]):
        a(f"s_mov_b32 s56, s{p}"); a(f"s_mov_b32 s57, s{p+1}")
        for s_ in range(2):
            a(f"buffer_load_dword v{MX + 5*s_ + (1,3,4)[k]}, v11, {W2}, 0 offen offset:{56*s_} {WP}")
    a(f"s_load_dword {sB2}, s[22:23], 0")
    if TAIL == 3:
        a(f"s_lshl_b32 {sT[0]}, {sB}, 8")
        a(f"s_add_u32 {sT[0]}, {sT[0]}, 0x180000")
        a(f"s_load_dword {sE}, s[28:29], {sT[0]}")
    a("L_nowo:")
    a(f"s_cmp_lg_u32 {sR}, 15")
    a(f"s_cbranch_scc1 L_noms")
    unpack(141)
    ln(sM2, sD2, False)
    a("s_waitcnt vmcnt(0)")
    a(f"v_lshlrev_b32 {vH}, 16, v138")
    a(f"v_mov_b32 v145, {vH}")
    a(f"v_subrev_f32 {vH}, {sM1}, {vH}"); rbf(vH)
    a(f"v_mul_f32 {vH}, {sD1}, {vH}"); rbf(vH)
    a(f"v_subrev_f32 {vH}, {sM2}, {vH}"); rbf(vH)
    a(f"v_mul_f32 {vH}, {sD2}, {vH}"); rbf(vH)
    for s_ in range(2):
        b = MX + 5*s_
        a(f"v_lshlrev_b32 v{b}, 16, v{b+1}"); a(f"v_and_b32 v{b+1}, {sHI}, v{b+1}")
        a(f"v_lshlrev_b32 v{b+2}, 16, v{b+3}"); a(f"v_and_b32 v{b+3}, {sHI}, v{b+3}")
    kb = math.sqrt(2.0/math.pi)
    a(f"v_mov_b32 {vC0}, {hex(f2u(-2*kb*l2e))}")
    a(f"s_mov_b32 {sC1}, {hex(f2u(-2*kb*l2e*0.044715))}")
    a(f"v_mov_b32 {vMA}, 0")
    a("L_noms:")
    a(f"s_cmp_lt_u32 {sR}, 16")
    a(f"s_cbranch_scc1 L_nomix")
    BC = "row_newbcast:0 " + FULL
    for s_ in range(2):
        b = MX + 5*s_
        a(f"v_mul_f32_dpp v16, v{b}, {vH} {BC}")
        a(f"v_mul_f32_dpp v17, v{b+1}, {vH} {BC}")
        a(f"v_cvt_pk_bf16_f32 v17, v16, v17")
        a(f"v_lshlrev_b32 v16, 16, v17"); a(f"v_and_b32 v17, {sHI}, v17")
        a(f"v_add_f32_dpp v16, v{b+2}, v16 {BC}")
        a(f"v_add_f32_dpp v17, v{b+3}, v17 {BC}")
        a(f"v_cvt_pk_bf16_f32 v17, v16, v17")
        a(f"v_lshlrev_b32 v16, 16, v17"); a(f"v_and_b32 v17, {sHI}, v17")
        a(f"v_mul_f32 v18, v16, v16"); a(f"v_mul_f32 v19, v17, v17")
        a(f"v_fma_f32 v18, v18, {sC1}, {vC0}"); a(f"v_fma_f32 v19, v19, {sC1}, {vC0}")
        a(f"v_mul_f32 v18, v18, v16"); a(f"v_mul_f32 v19, v19, v17")
        a(f"v_exp_f32 v18, v18"); a(f"v_exp_f32 v19, v19")
        a(f"v_mov_b32_dpp v{b}, v{b} row_ror:15 {FULL}")
        a(f"v_add_f32 v18, 1.0, v18"); a(f"v_add_f32 v19, 1.0, v19")
        a(f"v_rcp_f32 v18, v18"); a(f"v_rcp_f32 v19, v19")
        a(f"v_mov_b32_dpp v{b+1}, v{b+1} row_ror:15 {FULL}")
        a(f"v_mul_f32 v18, v18, v16"); a(f"v_mul_f32 v19, v19, v17")
        a(f"v_cvt_pk_bf16_f32 v18, v18, v19")
        a(f"v_mov_b32_dpp v{b+2}, v{b+2} row_ror:15 {FULL}")
        a(f"v_mov_b32_dpp v{b+3}, v{b+3} row_ror:15 {FULL}")
        a(f"v_dot2c_f32_bf16_dpp {vMA}, v{b+4}, v18 {BC}")
        a(f"v_mov_b32_dpp v{b+4}, v{b+4} row_ror:15 {FULL}")
    a("L_nomix:")
    probe("k")
    a(f"s_add_u32 {sR}, {sR}, 1")
    a(f"s_cmp_lt_u32 {sR}, 32")
    a(f"s_cbranch_scc1 L_k")
    if STAMP: pass
    a(f"v_mov_b32 v16, {vM}")
    allreduce("v_max_f32", ["v16"], 4)
    a(f"v_sub_f32 v17, {vM}, v16")
    a(f"v_mul_f32 v17, {sL2E}, v17")
    a(f"v_exp_f32 v17, v17")
    a(f"s_lshl_b32 {sT[0]}, {sW}, 3")
    a(f"v_add_u32 v18, {sT[0]}, {vF}")
    a(f"v_mul_f32 v17, v17, {vLs}")
    allreduce("v_add_f32", ["v17"], 4)
    a(f"ds_write_b64 v18, v[16:17] offset:64")
    rows_sum(vMA, "v19")
    a(f"s_lshl_b32 {sT[0]}, {sW}, 6")
    a(f"s_add_u32 {sT[0]}, {sT[0]}, {L_BP}")
    a(f"v_lshl_add_u32 v19, {vCol}, 2, {sT[0]}")
    a(f"ds_write_b32 v19, {vMA}")
    a(f"v_mov_b32 v10, 1")
    a("s_waitcnt lgkmcnt(0)")
    a(f"s_mov_b64 exec, 1")
    a(f"ds_add_u32 {vF}, v10 offset:8")
    a(f"s_mov_b64 exec, -1")
    a(f"s_mov_b32 {sT[0]}, 0x05040100")
    a(f"s_mov_b32 {sT[1]}, 0x07060302")
    a("s_waitcnt vmcnt(0)")
    for p in range(8):
        for i in range(4):
            r0 = WREG + 8*p + i; r1 = r0 + 4
            a(f"v_perm_b32 v16, v{r1}, v{r0}, {sT[0]}")
            a(f"v_perm_b32 v{r1}, v{r1}, v{r0}, {sT[1]}")
            a(f"v_mov_b32 v{r0}, v16")
    spin(8, "s_cmp_ge_u32", 8, "v10", sT[0])
    a(f"v_and_b32 v18, 7, {vL}")
    a(f"v_lshl_add_u32 v18, v18, 3, {vF}")
    a(f"ds_read_b64 v[16:17], v18 offset:64")
    a(f"v_lshlrev_b32 v19, 2, {vL}")
    a(f"v_add_u32 v18, {L_BP}, v19")
    a(f"ds_read_b32 v20, v18")
    a(f"ds_read_b32 v21, v18 offset:256")
    a("s_waitcnt lgkmcnt(0)")
    a(f"v_mov_b32 {vM}, v16")
    allreduce("v_max_f32", [vM], 3)
    a(f"v_sub_f32 v16, v16, {vM}")
    a(f"v_mul_f32 v16, {sL2E}, v16")
    a(f"v_exp_f32 v16, v16")
    a(f"v_add_f32 v20, v20, v21")
    a(f"v_mul_f32 {vLs}, v16, v17")
    allreduce("v_add_f32", [vLs], 3)
    a(f"v_rcp_f32 {vLs}, {vLs}")
    rows_sum("v20", "v21")
    rbf("v20")
    a(f"s_lshl_b32 {sB2}, {sB2}, 16")
    a(f"v_add_f32 v20, {sB2}, v20")
    rbf("v20")
    if TAIL == 3:
        a(f"v_and_b32 v21, 7, {vL}")
        a(f"v_lshrrev_b32 v22, 5, {vL}")
        a(f"v_lshl_add_u32 v21, v21, 1, v22")
        a(f"v_lshlrev_b32 v22, 2, v21")
        a(f"ds_bpermute_b32 v146, v22, v20")
        a(f"ds_bpermute_b32 v145, v22, v145")
        a(f"s_lshl_b32 {sT[0]}, s2, 5")
        a(f"v_lshl_add_u32 v147, v21, 1, {sT[0]}")
        a(f"s_add_u32 {sE}, {sE}, 1")
    else:
        a(f"s_lshl_b32 {sT[0]}, s2, 6")
        a(f"s_add_u32 {sT[0]}, {sT[0]}, 0x80000")
        a(f"s_add_u32 s56, s28, {sT[0]}")
        a(f"s_addc_u32 s57, s29, 0")
        a(f"s_cmp_eq_u32 {sW}, 0")
        a(f"s_cselect_b32 s58, 64, 0")
        a(f"buffer_store_dword v20, v19, {W2}, 0 offen sc1")
    a(f"s_lshl_b32 {sT[0]}, {sW}, 12")
    a(f"v_lshl_add_u32 {vKA}, {vL}, 4, {sT[0]}")
    a(f"v_and_b32 {vSA}, 3, {vL}")
    a(f"v_lshl_add_u32 {vSA}, {vSA}, 2, {vRow}")
    a(f"s_lshl_b32 {sT[0]}, {sW}, 6")
    a(f"s_add_u32 {sT[0]}, {sT[0]}, {L_SC}")
    a(f"v_lshl_add_u32 {vSA}, {vSA}, 2, {sT[0]}")
    for i in range(8): a(f"v_mov_b32 {ACC[i]}, 0")
    a(f"s_mov_b32 {sR}, 0")
    stamp(4)
    a("L_v:")
    a(f"ds_read_b32 v16, {vSA}")
    a(f"v_add_u32 {vSA}, 512, {vSA}")
    a(f"v_add_u32 {vDn}, 1, {vDn}")
    a("s_waitcnt lgkmcnt(0)")
    a(f"v_sub_f32 v16, v16, {vM}")
    a(f"v_mul_f32 v16, {sL2E}, v16")
    a(f"v_exp_f32 v16, v16")
    a(f"s_add_u32 {sR}, {sR}, 1")
    a(f"v_mul_f32 v16, v16, {vLs}")
    a(f"v_cvt_pk_bf16_f32 v16, v16, v16")
    a(f"v_lshrrev_b32 v17, 16, v16")
    a(f"v_and_b32 v16, {sHI}, v16")
    spin(0, "s_cmp_gt_i32", sG, "v10", sT[0])
    for t in range(4): a(f"ds_read_b128 v[{DT+4*t}:{DT+4*t+3}], {vKA} offset:{1024*t}")
    a(f"v_add_u32 {vKA}, 0x8000, {vKA}")
    a(f"v_and_b32 {vKA}, 0x1ffff, {vKA}")
    a(f"s_add_u32 {sG}, {sG}, 8")
    for j in range(4):
        a(f"s_waitcnt lgkmcnt({3-j})")
        if j == 3: a(f"ds_write_b32 {vDA}, {vDn} offset:32")
        for i in range(4):
            a(f"v_dot2c_f32_bf16_dpp {ACC[2*i]}, v17, v{DT+4*j+i} quad_perm:[{j},{j},{j},{j}] {FULL}")
            a(f"v_dot2c_f32_bf16_dpp {ACC[2*i+1]}, v16, v{DT+4*j+i} quad_perm:[{j},{j},{j},{j}] {FULL}")
    probe("v")
    ctl("v")
    a(f"s_cmp_lt_u32 {sR}, 32")
    a(f"s_cbranch_scc1 L_v")
    stamp(5)
    if o.get("notail", 0) == 1:
        stamp(6); stamp(7)
        a("s_branch L_fin")
    a("s_nop 0")
    rows_reduce8("v15")
    a(f"v_and_b32 v10, 7, {vL}")
    a(f"v_mul_u32_u24 v10, 528, v10")
    a(f"v_and_b32 v11, 0x38, {vL}")
    a(f"s_lshl_b32 {sT[0]}, {sW}, 6")
    a(f"s_add_u32 {sT[0]}, {sT[0]}, {L_QP}")
    a(f"v_add3_u32 v10, v10, v11, {sT[0]}")
    a("s_waitcnt lgkmcnt(0)")
    a("s_barrier")
    tstamp(1)
    a(f"ds_read_b64 v[16:17], v10")
    for i in range(8): a(f"v_mov_b32 {ACC[i]}, 0")
    a("s_waitcnt lgkmcnt(0)")
    allreduce("v_add_f32", ["v16", "v17"], 3)
    a("v_cvt_pk_bf16_f32 v16, v16, v17")
    a("s_nop 0")
    for p in range(8): a(f"v_readlane_b32 {sT[p]}, v16, {8*p}")
    for p in range(8):
        for i in range(4):
            a(f"v_dot2c_f32_bf16 {ACC[2*i]}, {sT[p]}, v{WREG+8*p+i}")
            a(f"v_dot2c_f32_bf16 {ACC[2*i+1]}, {sT[p]}, v{WREG+8*p+4+i}")
    a(f"s_lshl_b32 {sT[0]}, {sW}, 11")
    a(f"v_lshl_add_u32 v10, {vL}, 5, {sT[0]}")
    a(f"s_lshl_b32 {sT[0]}, {sW}, 8")
    a(f"v_lshl_add_u32 v11, {vL}, 2, {sT[0]}")
    a(f"ds_write_b128 v10, v[24:27] offset:{L_Y}")
    a(f"ds_write_b128 v10, v[28:31] offset:{L_Y+16}")
    if TAIL == 3:
        a(f"s_lshl_b32 {sT[0]}, {sB}, 17")
        a(f"s_add_u32 s56, s28, {sT[0]}")
        a(f"s_addc_u32 s57, s29, 0")
        a(f"s_mov_b32 s58, 0x20000")
        a(f"s_lshl_b32 {sT[0]}, {sW}, 14")
        a(f"s_lshl_b32 {sT[1]}, {sH}, 7")
        a(f"s_add_u32 {sT[0]}, {sT[0]}, {sT[1]}")
        if o.get("st4", 1):
            a(f"v_bfe_u32 v13, {vL}, 3, 2")
            a(f"v_lshl_add_u32 v12, v13, 12, {sT[0]}")
            a(f"v_and_b32 v13, 7, {vL}")
            a(f"v_lshl_add_u32 v12, v13, 4, v12")
            a(f"v_lshrrev_b32 v13, 5, {vL}")
            a(f"v_lshl_add_u32 v12, v13, 17, v12")
            a(f"v_and_b32 v11, 31, {vL}")
            a(f"s_lshl_b32 {sT[0]}, {sW}, 8")
            a(f"v_lshl_add_u32 v11, v11, 3, {sT[0]}")
            a(f"v_lshl_add_u32 v11, v13, 13, v11")
            a("s_waitcnt lgkmcnt(0)")
            a("s_barrier")
            tstamp(2)
            for i in range(4): a(f"ds_read_b64 v[{16+2*i}:{17+2*i}], v11 offset:{L_Y + 2048*i}")
            a(f"s_lshl_b32 {sT[0]}, {sH}, 12")
            a(f"v_lshl_add_u32 v13, {vL}, 4, {sT[0]}")
            a("s_waitcnt lgkmcnt(0)")
            for i in range(4): a(f"v_add_f32 v{16+i}, v{16+i}, v{20+i}")
            a("v_add_f32 v20, v16, v18")
            a("v_add_f32 v21, v17, v19")
            a("v_add_f32 v22, v16, v18")
            a("v_add_f32 v23, v17, v19")
            a(f"v_mov_b32 v17, {sE}")
            a("v_permlane32_swap_b32 v20, v22")
            a("v_permlane32_swap_b32 v21, v23")
            a(f"v_mov_b32 v19, {sE}")
            a("v_add_f32 v16, v20, v22")
            a("v_add_f32 v18, v21, v23")
            a(f"buffer_store_dwordx4 v[16:19], v12, {W2}, 0 offen {o.get('stp', 'sc1')}")
        else:
            a(f"v_lshl_add_u32 v12, {vRow}, 12, {sT[0]}")
            a(f"v_lshl_add_u32 v12, {vCol}, 3, v12")
            a("s_waitcnt lgkmcnt(0)")
            a("s_barrier")
            tstamp(2)
            for i in range(8): a(f"ds_read_b32 v{16+i}, v11 offset:{L_Y + 2048*i}")
            a(f"s_lshl_b32 {sT[0]}, {sH}, 12")
            a(f"v_lshl_add_u32 v13, {vL}, 4, {sT[0]}")
            a("s_waitcnt lgkmcnt(0)")
            for st in (4, 2, 1):
                for i in range(st): a(f"v_add_f32 v{16+i}, v{16+i}, v{16+st+i}")
            a(f"v_mov_b32 v17, {sE}")
            a(f"buffer_store_dwordx2 v[16:17], v12, {W2}, 0 offen sc1")
        tstamp(3)
        stamp(6); stamp(7); tstamp(4)
        a(f"s_cmp_lg_u32 {sW}, 0")
        a(f"s_cbranch_scc1 L_fin")
        if STAMP == 1: a("s_mov_b32 s79, 0")
        a("L_poll:")
        if STAMP == 1: a("s_add_u32 s79, s79, 1")
        for i in range(4): a(f"buffer_load_dwordx4 v[{32+4*i}:{35+4*i}], v13, {W2}, 0 offen offset:{1024*i} {o.get('plp', 'sc1')}")
        a(f"s_mov_b64 s[44:45], exec")
        if BOUND:
            a(f"s_sub_u32 {sSpin}, {sSpin}, 16")
            a(f"s_cbranch_scc1 L_end")
        if o.get("psl", 0): a(f"s_sleep {o['psl']}")
        a("s_waitcnt vmcnt(0)")
        for i in range(8): a(f"v_cmpx_eq_u32 vcc, v17, v{33+2*i}")
        a(f"s_andn2_b64 exec, s[44:45], exec")
        a(f"s_cbranch_execnz L_poll")
        a(f"s_mov_b64 exec, -1")
        tstamp(4)
        for st in (8, 4):
            for i in range(0, st, 2): a(f"v_add_f32 v{32+i}, v{32+i}, v{32+st+i}")
        a("s_nop 1")
        a("v_permlane32_swap_b32 v32, v34")
        a("v_add_f32 v32, v32, v34")
        a("v_mov_b32 v33, v32"); a("s_nop 1")
        a("v_permlane16_swap_b32 v32, v33")
        a("v_add_f32 v32, v32, v33")
        a("s_nop 1")
        a(f"v_add_f32_dpp v32, v32, v32 row_ror:8 {FULL}")
        rbf("v32")
        a("v_add_f32 v32, v145, v32")
        rbf("v32")
        a("v_add_f32 v32, v32, v146")
        a("v_cvt_pk_bf16_f32 v32, v32, v32")
        a("s_mov_b32 exec_lo, 0xff")
        a("s_mov_b32 exec_hi, 0xff")
        a(f"global_store_short v147, v32, s[24:25]")
        a(f"s_cmp_lg_u32 {sH}, 0")
        a(f"s_cbranch_scc1 L_nob")
        a(f"s_lshl_b32 {sT[0]}, {sB}, 8")
        a(f"s_add_u32 {sT[0]}, {sT[0]}, 0x180000")
        a(f"v_mov_b32 v16, {sT[0]}")
        a(f"s_mov_b64 exec, 1")
        a(f"global_store_dword v16, v17, s[28:29]")
        a("L_nob:")
        a(f"s_mov_b64 exec, -1")
    else:
        a(f"s_lshl_b32 {sT[0]}, s2, 11")
        a(f"s_add_u32 s56, s28, {sT[0]}")
        a(f"s_addc_u32 s57, s29, 0")
        a(f"s_mov_b32 s58, 2048")
        a("s_waitcnt lgkmcnt(0)")
        a("s_barrier")
        tstamp(2)
        for i in range(8): a(f"ds_read_b32 v{16+i}, v11 offset:{L_Y + 2048*i}")
        a("s_waitcnt lgkmcnt(0)")
        for st in (4, 2, 1):
            for i in range(st): a(f"v_add_f32 v{16+i}, v{16+i}, v{16+st+i}")
        a(f"buffer_store_dword v16, v11, {W2}, 0 offen sc1")
        tstamp(3)
        a("s_waitcnt vmcnt(0)")
        a("s_barrier")
        stamp(6)
        if o.get("notail", 0) == 2:
            stamp(7)
            a("s_branch L_fin")
        a(f"s_cmp_lg_u32 {sW}, 0")
        a(f"s_cbranch_scc1 L_wait")
        a(f"s_lshl_b32 {sT[0]}, {sB}, 2")
        a(f"v_mov_b32 v16, {sT[0]}")
        a(f"v_mov_b32 v17, 1")
        a(f"s_mov_b64 exec, 1")
        a(f"global_atomic_add v18, v16, v17, s[26:27] sc0 sc1")
        a("s_waitcnt vmcnt(0)")
        a(f"ds_write_b32 {vF}, v18 offset:12")
        a(f"s_mov_b64 exec, -1")
        a("s_waitcnt lgkmcnt(0)")
        a("L_wait:")
        a("s_barrier")
        a(f"ds_read_b32 v18, {vF} offset:12")
        a("s_waitcnt lgkmcnt(0)")
        a(f"v_readfirstlane_b32 {sT[0]}, v18")
        stamp(7)
        a(f"s_cmp_lg_u32 {sT[0]}, 31")
        a(f"s_cbranch_scc1 L_fin")
        a(f"s_lshl_b32 {sT[0]}, {sB}, 16")
        a(f"s_add_u32 s56, s28, {sT[0]}")
        a(f"s_addc_u32 s57, s29, 0")
        a(f"s_mov_b32 s58, 65536")
        a(f"s_lshl_b32 {sT[0]}, {sW}, 8")
        a(f"v_lshl_add_u32 v10, {vCol}, 4, {sT[0]}")
        a(f"v_lshl_add_u32 v10, {vRow}, 14, v10")
        for i in range(8):
            if i % 2 == 0: a(f"s_movk_i32 {sT[1]}, {2048*i}")
            a(f"buffer_load_dwordx4 v[{32+4*i}:{35+4*i}], v10, {W2}, {sT[1]} offen offset:{2048*(i%2)} sc1")
        a(f"s_lshl_b32 {sT[0]}, {sW}, 6")
        a(f"v_lshl_add_u32 v11, {vCol}, 2, {vRow}")
        a(f"v_add_u32 v11, {sT[0]}, v11")
        a(f"v_lshlrev_b32 v12, 1, v11")
        a(f"global_load_ushort v13, v12, s[4:5]")
        a(f"s_lshl_b32 {sT[0]}, {sB}, 11")
        a(f"s_add_u32 {sT[0]}, {sT[0]}, 0x80000")
        a(f"v_lshl_add_u32 v11, v11, 2, {sT[0]}")
        a(f"global_load_dword v14, v11, s[28:29] sc1")
        a("s_waitcnt vmcnt(2)")
        tstamp(4)
        for st in (16, 8, 4):
            for i in range(st): a(f"v_add_f32 v{32+i}, v{32+i}, v{32+st+i}")
        a("s_nop 0")
        a("v_permlane32_swap_b32 v32, v34")
        a("v_permlane32_swap_b32 v33, v35")
        a("v_add_f32 v32, v32, v34")
        a("v_add_f32 v33, v33, v35")
        a("s_nop 1")
        a("v_permlane16_swap_b32 v32, v33")
        a("v_add_f32 v16, v32, v33")
        rbf("v16")
        a("s_waitcnt vmcnt(0)")
        a("v_lshlrev_b32 v13, 16, v13")
        a("v_add_f32 v16, v13, v16")
        rbf("v16")
        a("v_add_f32 v16, v16, v14")
        a("v_cvt_pk_bf16_f32 v16, v16, v16")
        a(f"s_lshl_b32 {sT[0]}, {sB}, 10")
        a(f"v_add_u32 v12, {sT[0]}, v12")
        a(f"global_store_short v12, v16, s[24:25]")
    a("L_fin:")
    if o.get("pin", 0):
        a("L_pin:")
        a("s_memrealtime s[62:63]")
        a("s_waitcnt lgkmcnt(0)")
        a("s_sub_u32 s62, s62, s60")
        a(f"s_cmp_lt_u32 s62, {o['pin']}")
        a("s_cbranch_scc1 L_pin")
    stamp(8)
    if STAMP == 1:
        a("s_waitcnt lgkmcnt(0)")
        a(f"s_mul_i32 {sT[0]}, s2, 9")
        a(f"s_add_u32 {sT[0]}, {sT[0]}, {sW}")
        a(f"s_add_u32 {sT[0]}, {sT[0]}, 1")
        a(f"s_lshl_b32 {sT[0]}, {sT[0]}, 7")
        a(f"s_add_u32 {sT[0]}, {sT[0]}, 0x100000")
        a(f"v_mov_b32 v16, 0")
        for i in range(18): a(f"v_writelane_b32 v16, s{60+i}, {i}")
        a(f"s_getreg_b32 {sT[1]}, hwreg(HW_REG_XCC_ID)")
        a(f"s_getreg_b32 {sT[2]}, hwreg(HW_REG_HW_ID)")
        a(f"v_writelane_b32 v16, {sT[1]}, 18")
        a(f"v_writelane_b32 v16, {sT[2]}, 19")
        a(f"v_writelane_b32 v16, {sSpin}, 20")
        a(f"v_writelane_b32 v16, s79, 21")
        a(f"v_lshl_add_u32 v17, {vL}, 2, {sT[0]}")
        a(f"s_mov_b64 exec, 0xffffffff")
        a(f"global_store_dword v17, v16, s[28:29]")
    if STAMP == 2:
        a("s_waitcnt lgkmcnt(0)")
        a(f"s_cmp_gt_i32 {sW}, 0")
        a("s_cbranch_scc1 L_end")
        a(f"v_mov_b32 v16, 0")
        a(f"s_not_b32 {sT[1]}, s60")
        a(f"v_writelane_b32 v16, {sT[1]}, 0")
        for i in range(6): a(f"v_writelane_b32 v16, s{66+2*i}, {i+1}")
        a(f"s_not_b32 {sT[1]}, s70")
        a(f"v_writelane_b32 v16, {sT[1]}, 7")
        a(f"v_lshlrev_b32 v17, 2, {vL}")
        a(f"s_mov_b64 exec, 0xff")
        a(f"global_atomic_umax v17, v16, s[26:27] offset:32 sc1")
    a("L_end:")
    a("s_endpgm")

    head = open("cdna_kernels/%s.s.ref" % NAME).read().split("; Override launch")[0]
    out = head + f"; @launch grid=(256,1,1) block=(576,1,1) lds={LDS_BYTES}\n"
    out += '.amdgcn_target "amdgcn-amd-amdhsa--gfx950"\n.text\n'
    out += f".globl {NAME}_kernel\n.p2align 8\n.type {NAME}_kernel,@function\n" + a.text()
    out += f""".section .rodata,"a"
.p2align 6
.amdhsa_kernel {NAME}_kernel
  .amdhsa_next_free_vgpr 152
  .amdhsa_next_free_sgpr 80
  .amdhsa_accum_offset 152
  .amdhsa_group_segment_fixed_size 0
  .amdhsa_kernarg_size 104
  .amdhsa_user_sgpr_count 2
  .amdhsa_user_sgpr_kernarg_segment_ptr 1
  .amdhsa_system_sgpr_workgroup_id_x 1
  .amdhsa_float_denorm_mode_32 3
.end_amdhsa_kernel
"""
    return out
if __name__ == "__main__":
    opts = {}
    for kv in sys.argv[2:]:
        k, v = kv.split("=")
        try: opts[k] = int(v, 0)
        except ValueError: opts[k] = v.replace("+", " ")
    open(sys.argv[1], "w").write(gen(opts))
```

```python
import sys, struct, math
NAME = "parallel_sum__mha_block_cached__mixer_token_mlp__decode"
def f2u(x): return struct.unpack("<I", struct.pack("<f", x))[0]
class Asm:
    def __init__(self): self.lines = []
    def __call__(self, s):
        s = s.strip()
        self.lines.append(s if s.endswith(":") else "    " + s)
    def c(self, s): self.lines.append("    ; " + s)
    def text(self): return "\n".join(self.lines) + "\n"

def gen(o):
    D = o.get("d", 20)
    STAMP = o.get("stamp", 0)
    ROT = o.get("rot", 0)
    BOUND = o.get("bound", 1)
    WOR = o.get("wor", 6)
    WQP = o.get("wqp", 0)
    SLEEP = o.get("sleep", 0)
    WP = o.get("wp", "")
    WOS = o.get("wos", 1)
    TAIL = o.get("tail", 3)
    WOP = o.get("wop", "nt")
    SPF = o.get("spf", 0)
    WOT = o.get("wot", 1)
    WOM = o.get("wom", 3); WOD = o.get("wod", 2)
    assert WOR + 7 * WOS < 15 and WOR + 15 * WOM // WOD < 32
    sE = "s3"
    FB = o.get("fb", 0)
    FP = o.get("fp", 8)
    FS = o.get("fs", 2)
    FG0 = o.get("fg0", 40)
    FDL = o.get("fdl", 2)
    FK0 = o.get("fk0", 4)
    FR = o.get("frep", 64)
    FLEAD = o.get("flead", 0)
    sTg = "s78"
    a = Asm()
    FULL = "row_mask:0xf bank_mask:0xf"
    l2e = 1.0 / math.log(2.0)
    sB, sH, sW = "s30", "s31", "s32"
    sOff, sR, sG = "s33", "s34", "s35"
    R = "s[36:39]"
    sM1, sD1, sM2, sD2 = "s40", "s41", "s42", "s43"
    sT = [f"s{44+i}" for i in range(8)]
    sHI, sB2, sSpin, sK = "s52", "s53", "s54", "s55"
    W2 = "s[56:59]"
    sL2E, sC1 = "s14", "s15"
    L_SC = 131072
    L_QP = L_SC + 16384
    L_XN = L_QP + 4352
    L_BP = L_XN + 1024
    L_FL = L_BP + 512
    LDS_BYTES = L_FL + 256
    L_Y = 0
    vL, vRow, vCol, vF = "v0", "v1", "v2", "v3"
    WREG = 64
    QF = 48
    DT = 32
    ACC = [f"v{24+i}" for i in range(8)]
    def wslot(j): return f"v[{WREG+4*j}:{WREG+4*j+3}]"
    nlab = [0]
    def lab(p):
        nlab[0] += 1; return f"L_{p}{nlab[0]}"
    TS = o.get("ts", 0)
    def tstamp(i):
        if TS: a(f"s_memrealtime s[{60+2*i}:{61+2*i}]")
    def stamp(i):
        if STAMP in (1, 2) or (STAMP in (3, 4) and i == 0): a(f"s_memrealtime s[{60+2*i}:{61+2*i}]")
    def wave_reduce(op, v, sdst):
        for ctl in ["quad_perm:[1,0,3,2] "+FULL, "quad_perm:[2,3,0,1] "+FULL, "row_half_mirror "+FULL, "row_mirror "+FULL,
                    "row_bcast:15 row_mask:0xa bank_mask:0xf", "row_bcast:31 row_mask:0xc bank_mask:0xf"]:
            a("s_nop 1"); a(f"{op}_dpp {v}, {v}, {v} {ctl}")
        a("s_nop 1"); a(f"v_readlane_b32 {sdst}, {v}, 63")
    def allreduce(op, regs, steps):
        for ctl in ["quad_perm:[1,0,3,2]", "quad_perm:[2,3,0,1]", "row_half_mirror", "row_mirror"][:steps]:
            if len(regs) < 3: a(f"s_nop {2-len(regs)}")
            for v in regs: a(f"{op}_dpp {v}, {v}, {v} {ctl} {FULL}")
    def rbf(v):
        a(f"v_cvt_pk_bf16_f32 {v}, {v}, {v}"); a(f"v_and_b32 {v}, {sHI}, {v}")
    def spin(off, cmp, val, tmpv, tmps):
        l0, l1 = lab("sp"), lab("go")
        a(f"{l0}:")
        a(f"ds_read_b32 {tmpv}, {vF} offset:{off}")
        a("s_waitcnt lgkmcnt(0)")
        a(f"v_readfirstlane_b32 {tmps}, {tmpv}")
        a(f"{cmp} {tmps}, {val}")
        if BOUND or SLEEP:
            a(f"s_cbranch_scc1 {l1}")
            if SLEEP: a(f"s_sleep {SLEEP}")
            if BOUND:
                a(f"s_sub_u32 {sSpin}, {sSpin}, 1")
                a(f"s_cbranch_scc1 L_end")
            a(f"s_branch {l0}")
            a(f"{l1}:")
        else:
            a(f"s_cbranch_scc0 {l0}")
    def rows_sum(v, t):
        a(f"v_mov_b32 {t}, {v}"); a("s_nop 1"); a(f"v_permlane32_swap_b32 {v}, {t}"); a(f"v_add_f32 {v}, {v}, {t}")
        a(f"v_mov_b32 {t}, {v}"); a("s_nop 1"); a(f"v_permlane16_swap_b32 {v}, {t}"); a(f"v_add_f32 {v}, {v}, {t}")
    def rows_reduce8(vaddr):
        for i in range(4): a(f"v_permlane32_swap_b32 {ACC[i]}, {ACC[i+4]}")
        for i in range(4): a(f"v_add_f32 {ACC[i]}, {ACC[i]}, {ACC[i+4]}")
        a("s_nop 0")
        for i in range(2): a(f"v_permlane16_swap_b32 {ACC[i]}, {ACC[i+2]}")
        for i in range(2): a(f"v_add_f32 {ACC[i]}, {ACC[i]}, {ACC[i+2]}")
        a(f"ds_write_b64 {vaddr}, v[24:25]")

    def probe(tag):
        PR = o.get("probe", 0)
        if not PR: return
        PP = o.get("pp", 4)
        a(f"s_and_b32 {sT[1]}, {sR}, {PP-1}")
        a(f"s_or_b32 {sT[1]}, {sT[1]}, {sW}")
        a(f"s_cbranch_scc1 L_np{tag}")
        a(f"v_mov_b32 v150, 1")
        if PR in (1, 2):
            a(f"v_mov_b32 v149, 0x200000")
            a(f"s_mov_b64 exec, 1")
            a(f"global_atomic_add v151, v149, v150, s[28:29] sc0 {'sc1' if PR == 1 else ''}")
            a(f"s_mov_b64 exec, -1")
        elif PR == 3:
            a(f"s_add_u32 {sT[1]}, s2, 0x200000")
            a(f"v_mov_b32 v149, {sT[1]}")
            a(f"s_mov_b64 exec, 1")
            a(f"global_store_byte v149, v150, s[28:29] sc1")
            a(f"s_mov_b64 exec, -1")
            a(f"v_lshlrev_b32 v149, 2, {vL}")
            a(f"v_add_u32 v149, 0x200000, v149")
            a(f"global_load_dword v151, v149, s[28:29] sc1")
        elif PR == 4:
            a(f"s_lshl_b32 {sT[1]}, s2, 8")
            a(f"s_add_u32 {sT[1]}, {sT[1]}, 0x200000")
            a(f"v_mov_b32 v149, {sT[1]}")
            a(f"s_mov_b64 exec, 1")
            a(f"global_store_dword v149, v150, s[28:29] sc1")
            a(f"s_mov_b64 exec, {hex((1 << o.get('np', 16)) - 1)}")
            a(f"v_mul_u32_u24 v149, {256 * 17}, {vL}")
            a(f"v_add_u32 v149, {sT[1]}, v149")
            a(f"v_and_b32 v149, 0x20ffff, v149")
            a(f"global_load_dword v151, v149, s[28:29] sc1")
            a(f"s_mov_b64 exec, -1")
        elif PR == 5:
            a(f"s_lshl_b32 {sT[1]}, {sB}, 12")
            a(f"s_add_u32 {sT[1]}, {sT[1]}, 0x200000")
            a(f"v_mov_b32 v149, {sT[1]}")
            a(f"s_mov_b64 exec, 1")
            a(f"global_atomic_add v151, v149, v150, s[28:29] sc0 sc1")
            a(f"s_mov_b64 exec, -1")
        elif PR in (6, 7):
            if PR == 6: a(f"s_mov_b32 {sT[1]}, 0x200000")
            else:
                a(f"s_lshl_b32 {sT[1]}, {sB}, 12")
                a(f"s_add_u32 {sT[1]}, {sT[1]}, 0x200000")
            a(f"s_mov_b32 {sT[2]}, 1")
            a(f"s_atomic_add {sT[2]}, s[28:29], {sT[1]} glc")
            a("s_waitcnt lgkmcnt(0)")
        elif PR == 8:
            a(f"s_lshr_b32 {sT[1]}, s2, {o.get('gs', 3)}")
            a(f"s_mul_i32 {sT[1]}, {sT[1]}, {o.get('ls', 4352)}")
            if o.get("fr", 1):
                a(f"s_lshl_b32 {sT[2]}, {sG}, 18")
                a(f"s_add_u32 {sT[1]}, {sT[1]}, {sT[2]}")
            a(f"s_add_u32 {sT[1]}, {sT[1]}, 0x200000")
            a(f"s_mov_b32 {sT[2]}, 1")
            if o.get("ld", 0): a(f"s_load_dword {sT[2]}, s[28:29], {sT[1]} glc")
            else: a(f"s_atomic_add {sT[2]}, s[28:29], {sT[1]} glc")
            a("s_waitcnt lgkmcnt(0)")
        a(f"L_np{tag}:")
    def ctl(tag):
        if FB != 2: return
        a(f"s_sub_u32 {sT[1]}, {sG}, {FG0 + 8}")
        a(f"s_cbranch_scc1 L_nc{tag}")
        a(f"s_and_b32 {sT[2]}, {sT[1]}, {8*FP - 1}")
        a(f"s_lshr_b32 {sT[1]}, {sT[1]}, {(8*FP).bit_length() - 1}")
        a(f"s_cmp_ge_u32 {sG}, {o.get('fend', 480)}")
        a(f"s_cbranch_scc1 L_nc{tag}")
        a(f"s_mul_i32 {sT[3]}, {sT[1]}, {FR * 4352}")
        a(f"s_add_u32 {sT[3]}, {sT[3]}, 0x200000")
        a(f"s_cmp_eq_u32 s2, {FLEAD}")
        a(f"s_cbranch_scc1 L_cl{tag}")
        a(f"s_and_b32 {sT[2]}, {sT[2]}, {hex(0xffffffff ^ (7 * FS))}")
        a(f"s_cbranch_scc1 L_nc{tag}")
        a(f"s_and_b32 {sT[2]}, s2, {FR - 1}")
        a(f"s_mul_i32 {sT[2]}, {sT[2]}, 4352")
        a(f"s_add_u32 {sT[3]}, {sT[3]}, {sT[2]}")
        a(f"s_load_dword {sT[2]}, s[28:29], {sT[3]} glc")
        a(f"s_lshl_b32 {sT[1]}, {sT[1]}, 2")
        a(f"v_add_u32 v10, {sT[1]}, {vF}")
        a(f"s_waitcnt lgkmcnt(0)")
        a(f"s_cmp_eq_u32 {sT[2]}, {sTg}")
        a(f"s_cbranch_scc0 L_nc{tag}")
        a(f"v_mov_b32 v11, 1")
        a(f"s_mov_b64 exec, 1")
        a(f"ds_add_u32 v10, v11 offset:132")
        a(f"s_mov_b64 exec, -1")
        a(f"s_branch L_nc{tag}")
        a(f"L_cl{tag}:")
        a(f"s_cmp_eq_u32 {sT[2]}, {4*FS - FDL}")
        a(f"s_cbranch_scc0 L_nc{tag}")
        a(f"v_mul_u32_u24 v10, 4352, {vL}")
        a(f"v_add_u32 v10, {sT[3]}, v10")
        a(f"v_mov_b32 v11, {sTg}")
        if FR < 64: a(f"s_mov_b64 exec, {hex((1 << FR) - 1)}")
        a(f"global_store_dword v10, v11, s[28:29] sc1")
        if FR < 64: a(f"s_mov_b64 exec, -1")
        a(f"L_nc{tag}:")
    a(f"{NAME}_kernel:")
    a("s_cmpk_ge_u32 s2, 256")
    a("s_cbranch_scc1 L_end")
    a("s_load_dwordx16 s[4:19], s[0:1], 0")
    a("s_load_dwordx8 s[20:27], s[0:1], 64")
    a("s_load_dwordx2 s[28:29], s[0:1], 96")
    stamp(0)
    if o.get("map", 0) == 1:
        a("s_and_b32 s3, s2, 7")
        a("s_lshl_b32 s3, s3, 2")
        a("s_bfe_u32 s44, s2, 0x20003")
        a("s_or_b32 s3, s3, s44")
        a("s_and_b32 s2, s2, 0xe0")
        a("s_or_b32 s2, s2, s3")
    a(f"v_lshrrev_b32 v4, 6, v0")
    a(f"v_and_b32 {vL}, 63, v0")
    a(f"v_readfirstlane_b32 {sW}, v4")
    a(f"v_mov_b32 {vF}, {L_FL}")
    a(f"v_lshl_add_u32 v9, {vL}, 2, {vF}")
    a(f"v_mov_b32 v10, 0")
    a(f"ds_write_b32 v9, v10")
    a(f"v_lshrrev_b32 {vRow}, 4, {vL}")
    a(f"v_and_b32 {vCol}, 15, {vL}")
    a(f"s_mov_b32 s39, 0x20000")
    a(f"s_mov_b32 s38, 0x100000")
    a(f"s_lshl_b32 {sT[0]}, s2, 20")
    a(f"v_xor_b32 v4, {vCol}, {vRow}")
    a(f"v_lshlrev_b32 v4, 4, v4")
    a(f"v_lshl_add_u32 v4, {vRow}, 8, v4")
    a(f"v_xor_b32 v5, 64, v4")
    a(f"v_xor_b32 v6, 0x80, v4")
    a(f"v_xor_b32 v7, 64, v6")
    js = (D - 1) % 4
    sMask = "s40"
    RS = o.get("rs", 3); DS = o.get("ds", 36); jss = (DS - 1) % 4
    a(f"v_mov_b32 v8, {(jss - DS - 3)//4 if RS else (js - D - 3)//4}")
    a(f"s_mov_b32 {sOff}, 0")
    a(f"s_mov_b32 m0, 0")
    a(f"s_movk_i32 {sMask}, 0x100")
    a(f"s_mov_b32 {sR}, 0")
    a(f"s_sub_u32 {sW}, {sW}, 1")
    a("s_waitcnt lgkmcnt(0)")
    a("s_barrier")
    a("s_cbranch_scc0 L_cons")

    a("s_setprio 3")
    if o.get("ss", 0): a("s_memrealtime s[62:63]")
    if o.get("lk", -1) == 0: a("s_memrealtime s[64:65]")
    a(f"s_add_u32 s36, s6, {sT[0]}")
    a(f"s_addc_u32 s37, s7, 0")
    if o.get("skew", 0):
        a(f"s_and_b32 s70, s2, {o.get('skm', 0)}")
        a(f"s_cmp_lg_u32 s70, {o.get('skv', 0)}")
        a("s_cbranch_scc1 L_nsk")
        a("s_mov_b32 s70, s60")
        a("s_atomic_umax s70, s[26:27], 0")
        a("L_nsk:")
        a("s_not_b32 s71, s60")
        a("s_atomic_umax s71, s[26:27], 4")
    if RS:
        a("L_ls:")
        for j in range(4):
            a(f"s_waitcnt vmcnt({DS-1})")
            if j == jss:
                a("v_add_u32 v8, 1, v8")
                a(f"ds_write_b32 {vF}, v8")
            a(f"buffer_load_dwordx4 v{4+j}, {R}, {sOff} offen offset:{1024*j} nt lds")
        a(f"s_addk_i32 {sOff}, 4096")
        a(f"s_and_b32 m0, {sOff}, 0x1ffff")
        if o.get("lk", -1) > 0:
            a(f"s_cmp_lg_u32 {sOff}, {o['lk']*4096}")
            a(f"s_cbranch_scc1 L_lk")
            a("s_memrealtime s[64:65]")
            a("L_lk:")
        a(f"s_cmp_lg_u32 {sOff}, {RS*32768}")
        a(f"s_cbranch_scc1 L_ls")
        a(f"v_mov_b32 v8, {(32*RS + js - D - 3)//4}")
        a(f"s_branch L_ld0")
    a("L_ld:")
    if FB:
        a(f"s_bitcmp1_b32 {sMask}, 0")
        a(f"s_cbranch_scc0 L_nd")
        a(f"buffer_load_dword v12, v4, {R}, s38 offen")
        a(f"L_nd:")
    for j in range(4):
        a(f"s_waitcnt vmcnt({D-1})")
        if j == js:
            a("v_add_u32 v8, 1, v8")
            a(f"ds_write_b32 {vF}, v8")
        a(f"buffer_load_dwordx4 v{4+j}, {R}, {sOff} offen offset:{1024*j} nt lds")
    a(f"s_addk_i32 {sOff}, 4096")
    a(f"s_and_b32 m0, {sOff}, 0x1ffff")
    a(f"s_lshr_b32 {sMask}, {sMask}, 1")
    a(f"s_cmp_lg_u32 {sMask}, 1")
    a(f"s_cbranch_scc1 L_ld")
    if RS: a(f"s_branch L_ld1")
    else:
        a(f"s_cmp_lg_u32 {sR}, 0")
        a(f"s_cbranch_scc1 L_ld1")
    a("L_ld0:")
    if RS: a(f"s_mov_b32 {sR}, {RS-1}")
    a(f"s_add_u32 s8, s8, {sT[0]}")
    a(f"s_addc_u32 s9, s9, 0")
    a(f"s_mov_b32 {sSpin}, 0x100000")
    a(f"v_and_b32 v9, 7, {vL}")
    a(f"v_lshl_add_u32 v9, v9, 2, {vF}")
    a(f"v_mov_b32 v11, {max(RS-1, 0) - 3}")
    if STAMP == 1: a("s_mov_b32 s79, 0")
    if FB == 2:
        a(f"v_mov_b32 v14, {FK0}")
        a(f"ds_write_b32 {vF}, v14 offset:128")
        a(f"v_mov_b32 v15, {vF}")
        a(f"s_cmp_eq_u32 s2, {FLEAD}")
        a(f"s_cselect_b32 s41, 0, 4")
        tab = [0xff, 0x7f, 0x77, 0x75, 0x55, 0x51, 0x11, 0x10]
        a(f"s_mov_b32 s46, {hex(sum(tab[i] << (8*i) for i in range(4)))}")
        a(f"s_mov_b32 s47, {hex(sum(tab[4+i] << (8*i) for i in range(4)))}")
    a("L_ld1:")
    a(f"s_add_u32 {sR}, {sR}, 1")
    a(f"v_add_u32 v11, 1, v11")
    if STAMP == 1:
        for k, rr in zip((1,2,3,6,7), str(o.get("marks", "2,4,6,8,16")).split(",")):
            a(f"s_cmp_lg_u32 {sR}, {rr}")
            a(f"s_cbranch_scc1 L_mk{k}")
            a(f"s_memrealtime s[{60+2*k}:{61+2*k}]")
            a(f"L_mk{k}:")
    if STAMP == 4:
        for k, rr in ((1, o.get("m0", 99)), (2, o["m1"])):
            a(f"s_cmp_lg_u32 {sR}, {rr}")
            a(f"s_cbranch_scc1 L_mk{k}")
            a(f"s_memrealtime s[{60+2*k}:{61+2*k}]")
            a(f"L_mk{k}:")
    a(f"s_cmp_lg_u32 {sR}, 32")
    a(f"s_cbranch_scc1 L_ldnv")
    a(f"s_mov_b32 s36, s8")
    a(f"s_mov_b32 s37, s9")
    a(f"s_mov_b32 {sOff}, 0")
    for j in range(4): a(f"v_lshlrev_b32 v{4+j}, 4, {vL}")
    stamp(4)
    a("L_ldnv:")
    a(f"s_cmp_eq_u32 {sR}, 64")
    a(f"s_cbranch_scc1 L_drain")
    a("L_ldck:")
    a("s_waitcnt lgkmcnt(0)")
    a(f"v_cmp_lt_i32 vcc, v10, v11")
    a(f"s_cbranch_vccnz L_ldslow")
    a(f"s_mov_b32 {sMask}, 0x100")
    if FB == 2:
        a(f"v_readfirstlane_b32 s42, v14")
        if STAMP == 1:
            a(f"s_add_u32 s79, s79, 8"); a(f"s_sub_u32 s79, s79, s42")
        a(f"s_lshl_b32 s42, s42, 3")
        a(f"s_lshr_b64 s[48:49], s[46:47], s42")
        a(f"s_and_b32 s48, s48, 0xff")
        a(f"s_cmp_lt_u32 {sR}, 63")
        a(f"s_cselect_b32 s48, s48, 0")
        a(f"s_cmp_lt_u32 s42, 64")
        a(f"s_cselect_b32 s48, s48, 0")
        a(f"s_or_b32 {sMask}, {sMask}, s48")
        RA = (FG0 + 8*FS + D//4 + 8 + 7) // 8
        a(f"s_and_b32 s42, {sR}, {FP-1}")
        a(f"s_cmp_eq_u32 s42, {RA % FP}")
        a(f"s_cselect_b32 s42, s41, 0")
        if RA >= FP:
            a(f"s_cmp_ge_u32 {sR}, {RA}")
            a(f"s_cselect_b32 s42, s42, 0")
        a(f"v_add_u32 v15, s42, v15")
        a(f"ds_read_b32 v14, v15 offset:128")
    a(f"ds_read_b32 v10, v9 offset:32")
    a(f"s_branch L_ld")
    a("L_drain:")
    pub = (2044 + js - D - 3)//4 + 1
    while pub < 512:
        pub += 1
        a(f"s_waitcnt vmcnt({2048 - 4*pub})")
        a("v_add_u32 v8, 1, v8")
        a(f"ds_write_b32 {vF}, v8")
    stamp(5)
    if STAMP == 4:
        a("s_barrier"); a("s_barrier")
        a("s_waitcnt lgkmcnt(0)")
        if "swg" in o:
            a(f"s_cmp_lg_u32 s2, {o['swg']}")
            a("s_cbranch_scc1 L_end")
        if o.get("skew", 0):
            a("s_load_dwordx2 s[64:65], s[26:27], 0 glc")
            a("s_waitcnt lgkmcnt(0)")
            a("s_not_b32 s65, s65")
            a("s_sub_u32 s64, s64, s65")
        else:
            a(f"s_sub_u32 s64, s64, {'s62' if 'm0' in o else 's60'}")
        a(f"s_sub_u32 s64, s64, {o.get('sub', 0)}")
        if o.get("neg", 0): a("s_sub_u32 s64, 0, s64")
        a(f"s_mul_i32 s64, s64, {o.get('amp', 10)}")
        a(f"s_add_u32 s64, s64, 10000")
        a(f"s_min_u32 s64, s64, 100000")
        a("L_pin2:")
        a("s_memrealtime s[66:67]")
        a("s_waitcnt lgkmcnt(0)")
        a("s_sub_u32 s66, s66, s60")
        a(f"s_cmp_lt_u32 s66, s64")
        a("s_cbranch_scc1 L_pin2")
    elif STAMP == 3:
        a(f"s_memrealtime s[74:75]")
        a("s_waitcnt lgkmcnt(0)")
        a(f"s_cmp_lg_u32 s2, {o.get('swg', 5)}")
        a("s_cbranch_scc1 L_end")
        for i in range(8): a(f"v_writelane_b32 v16, s{60+2*i}, {i}")
        a(f"v_subrev_u32 v16, s60, v16")
        a(f"v_lshlrev_b32 v17, 2, {vL}")
        a(f"s_mov_b64 exec, 0xff")
        a(f"global_store_dword v17, v16, s[26:27] offset:32")
    elif STAMP:
        if STAMP == 2:
            for i in (1,2,3,6,7): a(f"s_mov_b64 s[{60+2*i}:{61+2*i}], 0")
        a("s_branch L_fin")
    a("s_endpgm")
    a("L_ldslow:")
    a(f"ds_read_b32 v10, v9 offset:32")
    if BOUND:
        a(f"s_sub_u32 {sSpin}, {sSpin}, 1")
        a(f"s_cbranch_scc1 L_end")
    a("s_branch L_ldck")

    a("L_cons:")
    a(f"s_lshr_b32 {sB}, s2, 5")
    a(f"s_and_b32 {sH}, s2, 31")
    a(f"s_mov_b32 {sHI}, 0xffff0000")
    a(f"s_mov_b32 s59, 0x20000")
    a(f"s_lshl_b32 {sT[0]}, {sB}, 10")
    a(f"v_lshlrev_b32 v8, 4, {vL}")
    a(f"s_mov_b32 {sSpin}, 0x100000")
    a(f"s_add_u32 s4, s4, {sT[0]}")
    a(f"s_addc_u32 s5, s5, 0")
    a(f"global_load_dwordx4 v[4:7], v8, s[4:5] {WP}")
    if o.get("ipf", 0):
        a(f"s_getpc_b64 s[46:47]")
        a("L_pc:")
        a(f"s_lshl_b32 {sT[0]}, {sW}, 10")
        a(f"v_add_u32 v9, {sT[0]}, v8")
        a(f"v_min_u32 v9, L_end-L_pc-12, v9")
        a(f"global_load_dwordx4 v[16:19], v9, s[46:47]")
    a(f"s_lshl_b32 {sT[0]}, {sW}, 19")
    a(f"s_lshl_b32 {sT[1]}, {sH}, 8")
    a(f"s_add_u32 {sT[0]}, {sT[0]}, {sT[1]}")
    a(f"s_add_u32 s36, s10, {sT[0]}")
    a(f"s_addc_u32 s37, s11, 0")
    a(f"s_mov_b32 s38, {o.get('wqn', 0x80000)}")
    a(f"v_lshlrev_b32 v9, 17, {vRow}")
    a(f"v_lshl_add_u32 v9, {vCol}, 4, v9")
    if ROT: a(f"s_lshl_b32 {sT[2]}, {sB}, 14")
    else: a(f"s_mov_b32 {sT[2]}, 0")
    def wqload(j):
        a(f"s_xor_b32 {sT[3]}, {sT[2]}, {j*8192}")
        a(f"buffer_load_dwordx4 {wslot(j)}, v9, {R}, {sT[3]} offen {o.get('wqpol', 'nt')}")
    WQS = o.get("wqs", 6); PRE = o.get("pre", 1)
    NQ0 = WQP if WQP else (WQS if WQS else 16)
    if FB == 2:
        a(f"s_mov_b32 {sT[4]}, 0x180000")
        a(f"s_load_dword {sTg}, s[28:29], {sT[4]}")
    for j in range(NQ0): wqload(j)
    a(f"s_waitcnt vmcnt({NQ0})")
    stamp(1)
    ln_start = len(a.lines)
    X = [f"v{16+i}" for i in range(8)]
    def unpack(src4):
        for i in range(4):
            a(f"v_lshlrev_b32 {X[2*i]}, 16, v{src4+i}")
            a(f"v_and_b32 {X[2*i+1]}, {sHI}, v{src4+i}")
    def ln(sM, sD, write):
        a(f"v_add_f32 v24, {X[0]}, {X[1]}")
        for i in range(2, 8): a(f"v_add_f32 v24, v24, {X[i]}")
        wave_reduce("v_add_f32", "v24", sT[0])
        a("s_nop 1")
        a(f"v_mov_b32 v25, {sT[0]}")
        a(f"v_mul_f32 v25, {hex(f2u(1.0/512))}, v25")
        a(f"v_sub_f32 v26, {X[0]}, v25")
        a(f"v_mul_f32 v24, v26, v26")
        for i in range(1, 8):
            a(f"v_sub_f32 v26, {X[i]}, v25")
            a(f"v_fmac_f32 v24, v26, v26")
        wave_reduce("v_add_f32", "v24", sT[0])
        rbf("v25")
        a(f"v_mov_b32 v24, {sT[0]}")
        a(f"v_mul_f32 v24, {hex(f2u(1.0/512))}, v24")
        rbf("v24")
        a(f"v_add_f32 v24, {hex(f2u(1e-5))}, v24")
        rbf("v24")
        a(f"v_sqrt_f32 v24, v24")
        a("s_nop 0")
        rbf("v24")
        a(f"v_rcp_f32 v24, v24")
        a(f"v_readfirstlane_b32 {sM}, v25")
        a(f"v_readfirstlane_b32 {sD}, v24")
        if write:
            for i in range(8): a(f"v_sub_f32 {X[i]}, {X[i]}, v25")
            for i in range(4): a(f"v_cvt_pk_bf16_f32 v{4+i}, {X[2*i]}, {X[2*i+1]}")
            unpack(4)
            for i in range(8): a(f"v_mul_f32 {X[i]}, {X[i]}, v24")
            for i in range(4): a(f"v_cvt_pk_bf16_f32 v{4+i}, {X[2*i]}, {X[2*i+1]}")
    unpack(4)
    ln(sM1, sD1, True)
    a(f"v_add_u32 v8, {L_XN}, v8")
    a(f"ds_write_b128 v8, v[4:7]")
    a(f"s_lshl_b32 {sT[0]}, {sW}, 7")
    if ROT:
        a(f"s_lshl_b32 {sT[1]}, {sB}, 2")
        a(f"s_add_u32 {sT[0]}, {sT[0]}, {sT[1]}")
    a(f"s_add_u32 {sT[0]}, {sT[0]}, {L_XN}")
    a(f"v_lshl_add_u32 v8, {vRow}, 5, {sT[0]}")
    assert L_XN % 32 == 0
    for i in range(8):
        if i:
            a(f"v_xor_b32 v10, {4*i}, v8")
            a(f"ds_read_b32 v{QF+i}, v10")
        else:
            a(f"ds_read_b32 v{QF+i}, v8")
    for i in range(8): a(f"v_mov_b32 {ACC[i]}, 0")
    if WQP:
        body = a.lines[ln_start:]; del a.lines[ln_start:]
        nins = 16 - NQ0
        LNF = o.get("lnf", 100)
        inl = nins * LNF // 100
        pts = [int((k + 0.5) * len(body) / inl) for k in range(inl)] if inl else []
        k = 0
        for idx, line in enumerate(body):
            while k < inl and pts[k] == idx:
                a(f"s_waitcnt vmcnt({NQ0-1})"); wqload(NQ0 + k); k += 1
            a.lines.append(line)
        while k < nins:
            a(f"s_waitcnt vmcnt({NQ0-1})"); wqload(NQ0 + k); k += 1
    if WQS:
        for j in range(WQS, 16): wqload(j)
        NQ0 = 16
    if PRE:
        a(f"v_xor_b32 v12, {vRow}, {vCol}")
        a(f"v_lshlrev_b32 v12, 4, v12")
        a(f"v_lshl_add_u32 v12, {vCol}, 8, v12")
        a(f"s_lshl_b32 {sT[0]}, {sW}, 12")
        a(f"v_add_u32 v12, {sT[0]}, v12")
        for t in range(1, 4): a(f"v_xor_b32 v{19+t}, {64*t}, v12")
        spin(0, "s_cmp_gt_i32", sW, "v10", sT[0])
        a(f"ds_read_b128 v[{DT}:{DT+3}], v12")
        for t in range(1, 4): a(f"ds_read_b128 v[{DT+4*t}:{DT+4*t+3}], v{19+t}")
        a(f"s_lshl_b32 {sT[0]}, {sW}, 2")
        a(f"v_add_u32 v13, {sT[0]}, {vF}")
        a(f"v_mov_b32 v14, 1")
    a("s_waitcnt lgkmcnt(0)")
    if PRE: a(f"ds_write_b32 v13, v14 offset:32")
    for j in range(16):
        src = f"v{QF + j//2}"
        if j % 2 == 0:
            a(f"v_and_b32 v10, 0xffff, {src}"); a(f"v_lshlrev_b32 v11, 16, {src}")
        else:
            a(f"v_lshrrev_b32 v10, 16, {src}"); a(f"v_and_b32 v11, {sHI}, {src}")
        if 15 - j < NQ0: a(f"s_waitcnt vmcnt({15 - j})")
        for i in range(4):
            a(f"v_dot2c_f32_bf16 {ACC[2*i]}, v10, v{WREG+4*j+i}")
            a(f"v_dot2c_f32_bf16 {ACC[2*i+1]}, v11, v{WREG+4*j+i}")
    stamp(2)
    vPA = "v23"
    a(f"s_mul_i32 {sT[0]}, {sW}, 528")
    a(f"s_add_u32 {sT[0]}, {sT[0]}, {L_QP}")
    a(f"v_lshl_add_u32 v15, {vCol}, 5, {sT[0]}")
    a(f"v_lshl_add_u32 v15, {vRow}, 3, v15")
    rows_reduce8("v15")
    a(f"v_mov_b32 v10, 1")
    a("s_waitcnt lgkmcnt(0)")
    a(f"s_mov_b64 exec, 1")
    a(f"ds_add_u32 {vF}, v10 offset:4")
    a(f"s_mov_b64 exec, -1")
    MX = 128
    for i in range(4): a(f"v_mov_b32 v{141+i}, v{4+i}")
    spin(4, "s_cmp_ge_u32", 8, "v10", sT[0])
    a(f"v_lshlrev_b32 v10, 3, {vL}")
    a(f"v_add_u32 v10, {L_QP}, v10")
    for w in range(8): a(f"ds_read_b64 v[{WREG+2*w}:{WREG+2*w+1}], v10 offset:{528*w}")
    a("s_waitcnt lgkmcnt(0)")
    for st in (8, 4, 2):
        for i in range(st): a(f"v_add_f32 v{WREG+i}, v{WREG+i}, v{WREG+st+i}")
    a(f"v_cvt_pk_bf16_f32 v{WREG}, v{WREG}, v{WREG+1}")
    a(f"v_lshlrev_b32 v10, 2, {vL}")
    a(f"v_add_u32 v10, {L_XN}, v10")
    a(f"ds_write_b32 v10, v{WREG}")
    a(f"v_lshlrev_b32 v10, 4, {vRow}")
    a(f"v_add_u32 v10, {L_XN}, v10")
    for t in range(4): a(f"ds_read_b128 v[{QF+4*t}:{QF+4*t+3}], v10 offset:{64*t}")
    vH, vMA, vC0 = "v138", "v139", "v140"
    a(f"s_mov_b32 {sL2E}, {hex(f2u(l2e))}")
    a(f"s_mov_b32 {sK}, {hex(f2u(128 ** -0.5))}")
    vKA, vSA, vDA, vM, vLs, vDn = "v4", "v5", "v6", "v7", "v8", "v9"
    a(f"v_xor_b32 {vKA}, {vRow}, {vCol}")
    a(f"v_lshlrev_b32 {vKA}, 4, {vKA}")
    a(f"v_lshl_add_u32 {vKA}, {vCol}, 8, {vKA}")
    a(f"s_lshl_b32 {sT[0]}, {sW}, 12")
    a(f"v_add_u32 {vKA}, {sT[0]}, {vKA}")
    a(f"s_lshl_b32 {sT[0]}, {sW}, 6")
    a(f"s_add_u32 {sT[0]}, {sT[0]}, {L_SC}")
    a(f"v_lshl_add_u32 {vSA}, {vCol}, 2, {sT[0]}")
    a(f"s_lshl_b32 {sT[0]}, {sW}, 2")
    a(f"v_add_u32 {vDA}, {sT[0]}, {vF}")
    a(f"v_mov_b32 {vM}, 0xff7fffff")
    a(f"v_mov_b32 {vLs}, 0")
    a(f"v_mov_b32 {vDn}, 0")
    a(f"s_mov_b32 {sG}, {sW}")
    a(f"s_mov_b32 {sR}, 0")
    a(f"s_lshl_b32 {sT[0]}, {sH}, 17")
    a(f"s_lshl_b32 {sT[1]}, {sW}, 14")
    a(f"s_add_u32 {sT[0]}, {sT[0]}, {sT[1]}")
    a(f"s_add_u32 s36, s12, {sT[0]}")
    a(f"s_addc_u32 s37, s13, 0")
    a(f"s_mov_b32 s38, {o.get('won', 16384)}")
    a(f"s_mul_i32 {sOff}, {sW}, {WOS}")
    a(f"s_add_u32 {sOff}, {sOff}, {WOR}")
    if FB == 2:
        a(f"s_add_u32 {sTg}, {sTg}, 1")
    stamp(3)
    if PRE:
        a("s_waitcnt lgkmcnt(0)")
        a("s_branch L_kmid")
    a("L_k:")
    for t in range(1, 4): a(f"v_xor_b32 v{10+t}, {64*t}, {vKA}")
    spin(0, "s_cmp_gt_i32", sG, "v10", sT[0])
    a(f"ds_read_b128 v[{DT}:{DT+3}], {vKA}")
    for t in range(1, 4): a(f"ds_read_b128 v[{DT+4*t}:{DT+4*t+3}], v{10+t}")
    a("L_kmid:")
    a(f"v_add_u32 {vDn}, 1, {vDn}")
    a(f"v_add_u32 {vKA}, 0x8000, {vKA}")
    a(f"v_and_b32 {vKA}, 0x1ffff, {vKA}")
    for t in range(4):
        a(f"s_waitcnt lgkmcnt({3-t})")
        a(f"v_mfma_f32_16x16x32_bf16 v[16:19], v[{QF+4*t}:{QF+4*t+3}], v[{DT+4*t}:{DT+4*t+3}], {'0' if t == 0 else 'v[16:19]'}")
    a(f"ds_write_b32 {vDA}, {vDn} offset:32")
    a(f"s_add_u32 {sG}, {sG}, 8")
    a(f"s_nop 5")
    rbf("v16")
    a(f"v_mul_f32 v16, {sK}, v16")
    rbf("v16")
    a(f"ds_write_b32 {vSA}, v16")
    a(f"v_max_f32 v17, {vM}, v16")
    a(f"v_sub_f32 v18, {vM}, v17")
    a(f"v_sub_f32 v16, v16, v17")
    a(f"v_mul_f32 v18, {sL2E}, v18")
    a(f"v_mul_f32 v16, {sL2E}, v16")
    a(f"v_exp_f32 v18, v18")
    a(f"v_exp_f32 v16, v16")
    a(f"v_mov_b32 {vM}, v17")
    a(f"v_add_u32 {vSA}, 512, {vSA}")
    a(f"v_fma_f32 {vLs}, {vLs}, v18, v16")
    ctl("k")
    a(f"v_lshlrev_b32 v10, 4, {vL}")
    if WOT:
        rounds = {}
        for j in range(16): rounds.setdefault(WOR + j * WOM // WOD, []).append(j)
        if SPF:
            for j in range(16): rounds.setdefault(WOR + j * WOM // WOD - SPF, []).append(-1 - j)
        for rr, js_ in sorted(rounds.items()):
            a(f"s_cmp_lg_u32 {sR}, {rr}")
            a(f"s_cbranch_scc1 L_wo{rr}")
            for j in js_:
                if j < 0:
                    jj = -1 - j
                    a(f"s_lshl_b32 {sT[1]}, {sB}, 7")
                    a(f"s_add_u32 {sT[1]}, {sT[1]}, {1024*jj}")
                    a(f"s_load_dword {sT[2]}, s[36:37], {sT[1]}")
                    a(f"s_add_u32 {sT[1]}, {sT[1]}, 64")
                    a(f"s_load_dword {sT[3]}, s[36:37], {sT[1]}")
                    continue
                a(f"s_movk_i32 {sT[1]}, {1024*j}")
                a(f"buffer_load_dwordx4 {wslot(j)}, v10, {R}, {sT[1]} offen {WOP}")
            a(f"L_wo{rr}:")
    a(f"s_cmp_lg_u32 {sR}, {sOff}")
    a(f"s_cbranch_scc1 L_nowo")
    if not WOT:
        for j in range(16):
            if j % 4 == 0: a(f"s_movk_i32 {sT[1]}, {1024*j}")
            a(f"buffer_load_dwordx4 {wslot(j)}, v10, {R}, {sT[1]} offen offset:{1024*(j%4)} {WP}")
    a(f"s_lshl_b32 {sT[0]}, {sH}, 5")
    a(f"v_lshl_add_u32 v11, {vCol}, 1, {sT[0]}")
    a(f"global_load_ushort v138, v11, s[4:5] {WP}")
    a(f"s_mul_i32 {sT[0]}, {sW}, 448")
    a(f"v_mul_u32_u24 v11, 112, {vRow}")
    a(f"v_lshl_add_u32 v11, {vCol}, 2, v11")
    a(f"v_add_u32 v11, {sT[0]}, v11")
    a(f"v_cmp_lt_u32 vcc, 13, {vCol}")
    a(f"v_mov_b32 v12, 0x10000")
    a(f"s_mov_b32 s58, 3584")
    a(f"v_cndmask_b32 v11, v11, v12, vcc")
    for k, p in enumerate([16, 18, 20]):
        a(f"s_mov_b32 s56, s{p}"); a(f"s_mov_b32 s57, s{p+1}")
        for s_ in range(2):
            a(f"buffer_load_dword v{MX + 5*s_ + (1,3,4)[k]}, v11, {W2}, 0 offen offset:{56*s_} {WP}")
    a(f"s_load_dword {sB2}, s[22:23], 0")
    if TAIL == 3:
        a(f"s_lshl_b32 {sT[0]}, {sB}, 8")
        a(f"s_add_u32 {sT[0]}, {sT[0]}, 0x180000")
        a(f"s_load_dword {sE}, s[28:29], {sT[0]}")
    a("L_nowo:")
    a(f"s_cmp_lg_u32 {sR}, 15")
    a(f"s_cbranch_scc1 L_noms")
    unpack(141)
    ln(sM2, sD2, False)
    a("s_waitcnt vmcnt(0)")
    a(f"v_lshlrev_b32 {vH}, 16, v138")
    a(f"v_mov_b32 v145, {vH}")
    a(f"v_subrev_f32 {vH}, {sM1}, {vH}"); rbf(vH)
    a(f"v_mul_f32 {vH}, {sD1}, {vH}"); rbf(vH)
    a(f"v_subrev_f32 {vH}, {sM2}, {vH}"); rbf(vH)
    a(f"v_mul_f32 {vH}, {sD2}, {vH}"); rbf(vH)
    for s_ in range(2):
        b = MX + 5*s_
        a(f"v_lshlrev_b32 v{b}, 16, v{b+1}"); a(f"v_and_b32 v{b+1}, {sHI}, v{b+1}")
        a(f"v_lshlrev_b32 v{b+2}, 16, v{b+3}"); a(f"v_and_b32 v{b+3}, {sHI}, v{b+3}")
    kb = math.sqrt(2.0/math.pi)
    a(f"v_mov_b32 {vC0}, {hex(f2u(-2*kb*l2e))}")
    a(f"s_mov_b32 {sC1}, {hex(f2u(-2*kb*l2e*0.044715))}")
    a(f"v_mov_b32 {vMA}, 0")
    a("L_noms:")
    a(f"s_cmp_lt_u32 {sR}, 16")
    a(f"s_cbranch_scc1 L_nomix")
    BC = "row_newbcast:0 " + FULL
    for s_ in range(2):
        b = MX + 5*s_
        a(f"v_mul_f32_dpp v16, v{b}, {vH} {BC}")
        a(f"v_mul_f32_dpp v17, v{b+1}, {vH} {BC}")
        a(f"v_cvt_pk_bf16_f32 v17, v16, v17")
        a(f"v_lshlrev_b32 v16, 16, v17"); a(f"v_and_b32 v17, {sHI}, v17")
        a(f"v_add_f32_dpp v16, v{b+2}, v16 {BC}")
        a(f"v_add_f32_dpp v17, v{b+3}, v17 {BC}")
        a(f"v_cvt_pk_bf16_f32 v17, v16, v17")
        a(f"v_lshlrev_b32 v16, 16, v17"); a(f"v_and_b32 v17, {sHI}, v17")
        a(f"v_mul_f32 v18, v16, v16"); a(f"v_mul_f32 v19, v17, v17")
        a(f"v_fma_f32 v18, v18, {sC1}, {vC0}"); a(f"v_fma_f32 v19, v19, {sC1}, {vC0}")
        a(f"v_mul_f32 v18, v18, v16"); a(f"v_mul_f32 v19, v19, v17")
        a(f"v_exp_f32 v18, v18"); a(f"v_exp_f32 v19, v19")
        a(f"v_mov_b32_dpp v{b}, v{b} row_ror:15 {FULL}")
        a(f"v_add_f32 v18, 1.0, v18"); a(f"v_add_f32 v19, 1.0, v19")
        a(f"v_rcp_f32 v18, v18"); a(f"v_rcp_f32 v19, v19")
        a(f"v_mov_b32_dpp v{b+1}, v{b+1} row_ror:15 {FULL}")
        a(f"v_mul_f32 v18, v18, v16"); a(f"v_mul_f32 v19, v19, v17")
        a(f"v_cvt_pk_bf16_f32 v18, v18, v19")
        a(f"v_mov_b32_dpp v{b+2}, v{b+2} row_ror:15 {FULL}")
        a(f"v_mov_b32_dpp v{b+3}, v{b+3} row_ror:15 {FULL}")
        a(f"v_dot2c_f32_bf16_dpp {vMA}, v{b+4}, v18 {BC}")
        a(f"v_mov_b32_dpp v{b+4}, v{b+4} row_ror:15 {FULL}")
    a("L_nomix:")
    probe("k")
    a(f"s_add_u32 {sR}, {sR}, 1")
    a(f"s_cmp_lt_u32 {sR}, 32")
    a(f"s_cbranch_scc1 L_k")
    if STAMP: pass
    a(f"v_mov_b32 v16, {vM}")
    allreduce("v_max_f32", ["v16"], 4)
    a(f"v_sub_f32 v17, {vM}, v16")
    a(f"v_mul_f32 v17, {sL2E}, v17")
    a(f"v_exp_f32 v17, v17")
    a(f"s_lshl_b32 {sT[0]}, {sW}, 3")
    a(f"v_add_u32 v18, {sT[0]}, {vF}")
    a(f"v_mul_f32 v17, v17, {vLs}")
    allreduce("v_add_f32", ["v17"], 4)
    a(f"ds_write_b64 v18, v[16:17] offset:64")
    rows_sum(vMA, "v19")
    a(f"s_lshl_b32 {sT[0]}, {sW}, 6")
    a(f"s_add_u32 {sT[0]}, {sT[0]}, {L_BP}")
    a(f"v_lshl_add_u32 v19, {vCol}, 2, {sT[0]}")
    a(f"ds_write_b32 v19, {vMA}")
    a(f"v_mov_b32 v10, 1")
    a("s_waitcnt lgkmcnt(0)")
    a(f"s_mov_b64 exec, 1")
    a(f"ds_add_u32 {vF}, v10 offset:8")
    a(f"s_mov_b64 exec, -1")
    a(f"s_mov_b32 {sT[0]}, 0x05040100")
    a(f"s_mov_b32 {sT[1]}, 0x07060302")
    a("s_waitcnt vmcnt(0)")
    for p in range(8):
        for i in range(4):
            r0 = WREG + 8*p + i; r1 = r0 + 4
            a(f"v_perm_b32 v16, v{r1}, v{r0}, {sT[0]}")
            a(f"v_perm_b32 v{r1}, v{r1}, v{r0}, {sT[1]}")
            a(f"v_mov_b32 v{r0}, v16")
    spin(8, "s_cmp_ge_u32", 8, "v10", sT[0])
    a(f"v_and_b32 v18, 7, {vL}")
    a(f"v_lshl_add_u32 v18, v18, 3, {vF}")
    a(f"ds_read_b64 v[16:17], v18 offset:64")
    a(f"v_lshlrev_b32 v19, 2, {vL}")
    a(f"v_add_u32 v18, {L_BP}, v19")
    a(f"ds_read_b32 v20, v18")
    a(f"ds_read_b32 v21, v18 offset:256")
    a("s_waitcnt lgkmcnt(0)")
    a(f"v_mov_b32 {vM}, v16")
    allreduce("v_max_f32", [vM], 3)
    a(f"v_sub_f32 v16, v16, {vM}")
    a(f"v_mul_f32 v16, {sL2E}, v16")
    a(f"v_exp_f32 v16, v16")
    a(f"v_add_f32 v20, v20, v21")
    a(f"v_mul_f32 {vLs}, v16, v17")
    allreduce("v_add_f32", [vLs], 3)
    a(f"v_rcp_f32 {vLs}, {vLs}")
    rows_sum("v20", "v21")
    rbf("v20")
    a(f"s_lshl_b32 {sB2}, {sB2}, 16")
    a(f"v_add_f32 v20, {sB2}, v20")
    rbf("v20")
    if TAIL == 3:
        a(f"v_and_b32 v21, 7, {vL}")
        a(f"v_lshrrev_b32 v22, 5, {vL}")
        a(f"v_lshl_add_u32 v21, v21, 1, v22")
        a(f"v_lshlrev_b32 v22, 2, v21")
        a(f"ds_bpermute_b32 v146, v22, v20")
        a(f"ds_bpermute_b32 v145, v22, v145")
        a(f"s_lshl_b32 {sT[0]}, s2, 5")
        a(f"v_lshl_add_u32 v147, v21, 1, {sT[0]}")
        a(f"s_add_u32 {sE}, {sE}, 1")
    else:
        a(f"s_lshl_b32 {sT[0]}, s2, 6")
        a(f"s_add_u32 {sT[0]}, {sT[0]}, 0x80000")
        a(f"s_add_u32 s56, s28, {sT[0]}")
        a(f"s_addc_u32 s57, s29, 0")
        a(f"s_cmp_eq_u32 {sW}, 0")
        a(f"s_cselect_b32 s58, 64, 0")
        a(f"buffer_store_dword v20, v19, {W2}, 0 offen sc1")
    a(f"s_lshl_b32 {sT[0]}, {sW}, 12")
    a(f"v_lshl_add_u32 {vKA}, {vL}, 4, {sT[0]}")
    a(f"v_and_b32 {vSA}, 3, {vL}")
    a(f"v_lshl_add_u32 {vSA}, {vSA}, 2, {vRow}")
    a(f"s_lshl_b32 {sT[0]}, {sW}, 6")
    a(f"s_add_u32 {sT[0]}, {sT[0]}, {L_SC}")
    a(f"v_lshl_add_u32 {vSA}, {vSA}, 2, {sT[0]}")
    for i in range(8): a(f"v_mov_b32 {ACC[i]}, 0")
    a(f"s_mov_b32 {sR}, 0")
    stamp(4)
    a("L_v:")
    a(f"ds_read_b32 v16, {vSA}")
    a(f"v_add_u32 {vSA}, 512, {vSA}")
    a(f"v_add_u32 {vDn}, 1, {vDn}")
    a("s_waitcnt lgkmcnt(0)")
    a(f"v_sub_f32 v16, v16, {vM}")
    a(f"v_mul_f32 v16, {sL2E}, v16")
    a(f"v_exp_f32 v16, v16")
    a(f"s_add_u32 {sR}, {sR}, 1")
    a(f"v_mul_f32 v16, v16, {vLs}")
    a(f"v_cvt_pk_bf16_f32 v16, v16, v16")
    a(f"v_lshrrev_b32 v17, 16, v16")
    a(f"v_and_b32 v16, {sHI}, v16")
    spin(0, "s_cmp_gt_i32", sG, "v10", sT[0])
    for t in range(4): a(f"ds_read_b128 v[{DT+4*t}:{DT+4*t+3}], {vKA} offset:{1024*t}")
    a(f"v_add_u32 {vKA}, 0x8000, {vKA}")
    a(f"v_and_b32 {vKA}, 0x1ffff, {vKA}")
    a(f"s_add_u32 {sG}, {sG}, 8")
    for j in range(4):
        a(f"s_waitcnt lgkmcnt({3-j})")
        if j == 3: a(f"ds_write_b32 {vDA}, {vDn} offset:32")
        for i in range(4):
            a(f"v_dot2c_f32_bf16_dpp {ACC[2*i]}, v17, v{DT+4*j+i} quad_perm:[{j},{j},{j},{j}] {FULL}")
            a(f"v_dot2c_f32_bf16_dpp {ACC[2*i+1]}, v16, v{DT+4*j+i} quad_perm:[{j},{j},{j},{j}] {FULL}")
    probe("v")
    ctl("v")
    a(f"s_cmp_lt_u32 {sR}, 32")
    a(f"s_cbranch_scc1 L_v")
    stamp(5)
    if o.get("notail", 0) == 1:
        stamp(6); stamp(7)
        a("s_branch L_fin")
    a("s_nop 0")
    rows_reduce8("v15")
    a(f"v_and_b32 v10, 7, {vL}")
    a(f"v_mul_u32_u24 v10, 528, v10")
    a(f"v_and_b32 v11, 0x38, {vL}")
    a(f"s_lshl_b32 {sT[0]}, {sW}, 6")
    a(f"s_add_u32 {sT[0]}, {sT[0]}, {L_QP}")
    a(f"v_add3_u32 v10, v10, v11, {sT[0]}")
    a("s_waitcnt lgkmcnt(0)")
    a("s_barrier")
    tstamp(1)
    a(f"ds_read_b64 v[16:17], v10")
    for i in range(8): a(f"v_mov_b32 {ACC[i]}, 0")
    a("s_waitcnt lgkmcnt(0)")
    allreduce("v_add_f32", ["v16", "v17"], 3)
    a("v_cvt_pk_bf16_f32 v16, v16, v17")
    a("s_nop 0")
    for p in range(8): a(f"v_readlane_b32 {sT[p]}, v16, {8*p}")
    for p in range(8):
        for i in range(4):
            a(f"v_dot2c_f32_bf16 {ACC[2*i]}, {sT[p]}, v{WREG+8*p+i}")
            a(f"v_dot2c_f32_bf16 {ACC[2*i+1]}, {sT[p]}, v{WREG+8*p+4+i}")
    a(f"s_lshl_b32 {sT[0]}, {sW}, 11")
    a(f"v_lshl_add_u32 v10, {vL}, 5, {sT[0]}")
    a(f"s_lshl_b32 {sT[0]}, {sW}, 8")
    a(f"v_lshl_add_u32 v11, {vL}, 2, {sT[0]}")
    a(f"ds_write_b128 v10, v[24:27] offset:{L_Y}")
    a(f"ds_write_b128 v10, v[28:31] offset:{L_Y+16}")
    if TAIL == 3:
        a(f"s_lshl_b32 {sT[0]}, {sB}, 17")
        a(f"s_add_u32 s56, s28, {sT[0]}")
        a(f"s_addc_u32 s57, s29, 0")
        a(f"s_mov_b32 s58, 0x20000")
        a(f"s_lshl_b32 {sT[0]}, {sW}, 14")
        a(f"s_lshl_b32 {sT[1]}, {sH}, 7")
        a(f"s_add_u32 {sT[0]}, {sT[0]}, {sT[1]}")
        if o.get("st4", 1):
            a(f"v_bfe_u32 v13, {vL}, 3, 2")
            a(f"v_lshl_add_u32 v12, v13, 12, {sT[0]}")
            a(f"v_and_b32 v13, 7, {vL}")
            a(f"v_lshl_add_u32 v12, v13, 4, v12")
            a(f"v_lshrrev_b32 v13, 5, {vL}")
            a(f"v_lshl_add_u32 v12, v13, 17, v12")
            a(f"v_and_b32 v11, 31, {vL}")
            a(f"s_lshl_b32 {sT[0]}, {sW}, 8")
            a(f"v_lshl_add_u32 v11, v11, 3, {sT[0]}")
            a(f"v_lshl_add_u32 v11, v13, 13, v11")
            a("s_waitcnt lgkmcnt(0)")
            a("s_barrier")
            tstamp(2)
            for i in range(4): a(f"ds_read_b64 v[{16+2*i}:{17+2*i}], v11 offset:{L_Y + 2048*i}")
            a(f"s_lshl_b32 {sT[0]}, {sH}, 12")
            a(f"v_lshl_add_u32 v13, {vL}, 4, {sT[0]}")
            a("s_waitcnt lgkmcnt(0)")
            for i in range(4): a(f"v_add_f32 v{16+i}, v{16+i}, v{20+i}")
            a("v_add_f32 v20, v16, v18")
            a("v_add_f32 v21, v17, v19")
            a("v_add_f32 v22, v16, v18")
            a("v_add_f32 v23, v17, v19")
            a(f"v_mov_b32 v17, {sE}")
            a("v_permlane32_swap_b32 v20, v22")
            a("v_permlane32_swap_b32 v21, v23")
            a(f"v_mov_b32 v19, {sE}")
            a("v_add_f32 v16, v20, v22")
            a("v_add_f32 v18, v21, v23")
            a(f"buffer_store_dwordx4 v[16:19], v12, {W2}, 0 offen {o.get('stp', 'sc1')}")
        else:
            a(f"v_lshl_add_u32 v12, {vRow}, 12, {sT[0]}")
            a(f"v_lshl_add_u32 v12, {vCol}, 3, v12")
            a("s_waitcnt lgkmcnt(0)")
            a("s_barrier")
            tstamp(2)
            for i in range(8): a(f"ds_read_b32 v{16+i}, v11 offset:{L_Y + 2048*i}")
            a(f"s_lshl_b32 {sT[0]}, {sH}, 12")
            a(f"v_lshl_add_u32 v13, {vL}, 4, {sT[0]}")
            a("s_waitcnt lgkmcnt(0)")
            for st in (4, 2, 1):
                for i in range(st): a(f"v_add_f32 v{16+i}, v{16+i}, v{16+st+i}")
            a(f"v_mov_b32 v17, {sE}")
            a(f"buffer_store_dwordx2 v[16:17], v12, {W2}, 0 offen sc1")
        tstamp(3)
        stamp(6); stamp(7); tstamp(4)
        a(f"s_cmp_lg_u32 {sW}, 0")
        a(f"s_cbranch_scc1 L_fin")
        if STAMP == 1: a("s_mov_b32 s79, 0")
        a("L_poll:")
        if STAMP == 1: a("s_add_u32 s79, s79, 1")
        for i in range(4): a(f"buffer_load_dwordx4 v[{32+4*i}:{35+4*i}], v13, {W2}, 0 offen offset:{1024*i} {o.get('plp', 'sc1')}")
        a(f"s_mov_b64 s[44:45], exec")
        if BOUND:
            a(f"s_sub_u32 {sSpin}, {sSpin}, 16")
            a(f"s_cbranch_scc1 L_end")
        if o.get("psl", 0): a(f"s_sleep {o['psl']}")
        a("s_waitcnt vmcnt(0)")
        for i in range(8): a(f"v_cmpx_eq_u32 vcc, v17, v{33+2*i}")
        a(f"s_andn2_b64 exec, s[44:45], exec")
        a(f"s_cbranch_execnz L_poll")
        a(f"s_mov_b64 exec, -1")
        tstamp(4)
        for st in (8, 4):
            for i in range(0, st, 2): a(f"v_add_f32 v{32+i}, v{32+i}, v{32+st+i}")
        a("s_nop 1")
        a("v_permlane32_swap_b32 v32, v34")
        a("v_add_f32 v32, v32, v34")
        a("v_mov_b32 v33, v32"); a("s_nop 1")
        a("v_permlane16_swap_b32 v32, v33")
        a("v_add_f32 v32, v32, v33")
        a("s_nop 1")
        a(f"v_add_f32_dpp v32, v32, v32 row_ror:8 {FULL}")
        rbf("v32")
        a("v_add_f32 v32, v145, v32")
        rbf("v32")
        a("v_add_f32 v32, v32, v146")
        a("v_cvt_pk_bf16_f32 v32, v32, v32")
        a("s_mov_b32 exec_lo, 0xff")
        a("s_mov_b32 exec_hi, 0xff")
        a(f"global_store_short v147, v32, s[24:25]")
        a(f"s_cmp_lg_u32 {sH}, 0")
        a(f"s_cbranch_scc1 L_nob")
        a(f"s_lshl_b32 {sT[0]}, {sB}, 8")
        a(f"s_add_u32 {sT[0]}, {sT[0]}, 0x180000")
        a(f"v_mov_b32 v16, {sT[0]}")
        a(f"s_mov_b64 exec, 1")
        a(f"global_store_dword v16, v17, s[28:29]")
        a("L_nob:")
        a(f"s_mov_b64 exec, -1")
    else:
        a(f"s_lshl_b32 {sT[0]}, s2, 11")
        a(f"s_add_u32 s56, s28, {sT[0]}")
        a(f"s_addc_u32 s57, s29, 0")
        a(f"s_mov_b32 s58, 2048")
        a("s_waitcnt lgkmcnt(0)")
        a("s_barrier")
        tstamp(2)
        for i in range(8): a(f"ds_read_b32 v{16+i}, v11 offset:{L_Y + 2048*i}")
        a("s_waitcnt lgkmcnt(0)")
        for st in (4, 2, 1):
            for i in range(st): a(f"v_add_f32 v{16+i}, v{16+i}, v{16+st+i}")
        a(f"buffer_store_dword v16, v11, {W2}, 0 offen sc1")
        tstamp(3)
        a("s_waitcnt vmcnt(0)")
        a("s_barrier")
        stamp(6)
        if o.get("notail", 0) == 2:
            stamp(7)
            a("s_branch L_fin")
        a(f"s_cmp_lg_u32 {sW}, 0")
        a(f"s_cbranch_scc1 L_wait")
        a(f"s_lshl_b32 {sT[0]}, {sB}, 2")
        a(f"v_mov_b32 v16, {sT[0]}")
        a(f"v_mov_b32 v17, 1")
        a(f"s_mov_b64 exec, 1")
        a(f"global_atomic_add v18, v16, v17, s[26:27] sc0 sc1")
        a("s_waitcnt vmcnt(0)")
        a(f"ds_write_b32 {vF}, v18 offset:12")
        a(f"s_mov_b64 exec, -1")
        a("s_waitcnt lgkmcnt(0)")
        a("L_wait:")
        a("s_barrier")
        a(f"ds_read_b32 v18, {vF} offset:12")
        a("s_waitcnt lgkmcnt(0)")
        a(f"v_readfirstlane_b32 {sT[0]}, v18")
        stamp(7)
        a(f"s_cmp_lg_u32 {sT[0]}, 31")
        a(f"s_cbranch_scc1 L_fin")
        a(f"s_lshl_b32 {sT[0]}, {sB}, 16")
        a(f"s_add_u32 s56, s28, {sT[0]}")
        a(f"s_addc_u32 s57, s29, 0")
        a(f"s_mov_b32 s58, 65536")
        a(f"s_lshl_b32 {sT[0]}, {sW}, 8")
        a(f"v_lshl_add_u32 v10, {vCol}, 4, {sT[0]}")
        a(f"v_lshl_add_u32 v10, {vRow}, 14, v10")
        for i in range(8):
            if i % 2 == 0: a(f"s_movk_i32 {sT[1]}, {2048*i}")
            a(f"buffer_load_dwordx4 v[{32+4*i}:{35+4*i}], v10, {W2}, {sT[1]} offen offset:{2048*(i%2)} sc1")
        a(f"s_lshl_b32 {sT[0]}, {sW}, 6")
        a(f"v_lshl_add_u32 v11, {vCol}, 2, {vRow}")
        a(f"v_add_u32 v11, {sT[0]}, v11")
        a(f"v_lshlrev_b32 v12, 1, v11")
        a(f"global_load_ushort v13, v12, s[4:5]")
        a(f"s_lshl_b32 {sT[0]}, {sB}, 11")
        a(f"s_add_u32 {sT[0]}, {sT[0]}, 0x80000")
        a(f"v_lshl_add_u32 v11, v11, 2, {sT[0]}")
        a(f"global_load_dword v14, v11, s[28:29] sc1")
        a("s_waitcnt vmcnt(2)")
        tstamp(4)
        for st in (16, 8, 4):
            for i in range(st): a(f"v_add_f32 v{32+i}, v{32+i}, v{32+st+i}")
        a("s_nop 0")
        a("v_permlane32_swap_b32 v32, v34")
        a("v_permlane32_swap_b32 v33, v35")
        a("v_add_f32 v32, v32, v34")
        a("v_add_f32 v33, v33, v35")
        a("s_nop 1")
        a("v_permlane16_swap_b32 v32, v33")
        a("v_add_f32 v16, v32, v33")
        rbf("v16")
        a("s_waitcnt vmcnt(0)")
        a("v_lshlrev_b32 v13, 16, v13")
        a("v_add_f32 v16, v13, v16")
        rbf("v16")
        a("v_add_f32 v16, v16, v14")
        a("v_cvt_pk_bf16_f32 v16, v16, v16")
        a(f"s_lshl_b32 {sT[0]}, {sB}, 10")
        a(f"v_add_u32 v12, {sT[0]}, v12")
        a(f"global_store_short v12, v16, s[24:25]")
    a("L_fin:")
    if o.get("pin", 0):
        a("L_pin:")
        a("s_memrealtime s[62:63]")
        a("s_waitcnt lgkmcnt(0)")
        a("s_sub_u32 s62, s62, s60")
        a(f"s_cmp_lt_u32 s62, {o['pin']}")
        a("s_cbranch_scc1 L_pin")
    stamp(8)
    if STAMP == 1:
        a("s_waitcnt lgkmcnt(0)")
        a(f"s_mul_i32 {sT[0]}, s2, 9")
        a(f"s_add_u32 {sT[0]}, {sT[0]}, {sW}")
        a(f"s_add_u32 {sT[0]}, {sT[0]}, 1")
        a(f"s_lshl_b32 {sT[0]}, {sT[0]}, 7")
        a(f"s_add_u32 {sT[0]}, {sT[0]}, 0x100000")
        a(f"v_mov_b32 v16, 0")
        for i in range(18): a(f"v_writelane_b32 v16, s{60+i}, {i}")
        a(f"s_getreg_b32 {sT[1]}, hwreg(HW_REG_XCC_ID)")
        a(f"s_getreg_b32 {sT[2]}, hwreg(HW_REG_HW_ID)")
        a(f"v_writelane_b32 v16, {sT[1]}, 18")
        a(f"v_writelane_b32 v16, {sT[2]}, 19")
        a(f"v_writelane_b32 v16, {sSpin}, 20")
        a(f"v_writelane_b32 v16, s79, 21")
        a(f"v_lshl_add_u32 v17, {vL}, 2, {sT[0]}")
        a(f"s_mov_b64 exec, 0xffffffff")
        a(f"global_store_dword v17, v16, s[28:29]")
    if STAMP == 2:
        a("s_waitcnt lgkmcnt(0)")
        a(f"s_cmp_gt_i32 {sW}, 0")
        a("s_cbranch_scc1 L_end")
        a(f"v_mov_b32 v16, 0")
        a(f"s_not_b32 {sT[1]}, s60")
        a(f"v_writelane_b32 v16, {sT[1]}, 0")
        for i in range(6): a(f"v_writelane_b32 v16, s{66+2*i}, {i+1}")
        a(f"s_not_b32 {sT[1]}, s70")
        a(f"v_writelane_b32 v16, {sT[1]}, 7")
        a(f"v_lshlrev_b32 v17, 2, {vL}")
        a(f"s_mov_b64 exec, 0xff")
        a(f"global_atomic_umax v17, v16, s[26:27] offset:32 sc1")
    a("L_end:")
    a("s_endpgm")

    head = open("cdna_kernels/%s.s.ref" % NAME).read().split("; Override launch")[0]
    out = head + f"; @launch grid=(256,1,1) block=(576,1,1) lds={LDS_BYTES}\n"
    out += '.amdgcn_target "amdgcn-amd-amdhsa--gfx950"\n.text\n'
    out += f".globl {NAME}_kernel\n.p2align 8\n.type {NAME}_kernel,@function\n" + a.text()
    out += f""".section .rodata,"a"
.p2align 6
.amdhsa_kernel {NAME}_kernel
  .amdhsa_next_free_vgpr 152
  .amdhsa_next_free_sgpr 80
  .amdhsa_accum_offset 152
  .amdhsa_group_segment_fixed_size 0
  .amdhsa_kernarg_size 104
  .amdhsa_user_sgpr_count 2
  .amdhsa_user_sgpr_kernarg_segment_ptr 1
  .amdhsa_system_sgpr_workgroup_id_x 1
  .amdhsa_float_denorm_mode_32 3
.end_amdhsa_kernel
"""
    return out
if __name__ == "__main__":
    opts = {}
    for kv in sys.argv[2:]:
        k, v = kv.split("=")
        try: opts[k] = int(v, 0)
        except ValueError: opts[k] = v.replace("+", " ")
    open(sys.argv[1], "w").write(gen(opts))
```

```python
import sys, struct, math
NAME = "parallel_sum__mha_block_cached__mixer_token_mlp__decode"
def f2u(x): return struct.unpack("<I", struct.pack("<f", x))[0]
class Asm:
    def __init__(self): self.lines = []
    def __call__(self, s):
        s = s.strip()
        self.lines.append(s if s.endswith(":") else "    " + s)
    def c(self, s): self.lines.append("    ; " + s)
    def text(self): return "\n".join(self.lines) + "\n"

def gen(o):
    D = o.get("d", 20)
    STAMP = o.get("stamp", 0)
    ROT = o.get("rot", 0)
    BOUND = o.get("bound", 1)
    WOR = o.get("wor", 6)
    WQP = o.get("wqp", 0)
    SLEEP = o.get("sleep", 0)
    WP = o.get("wp", "")
    WOS = o.get("wos", 1)
    TAIL = o.get("tail", 3)
    WOP = o.get("wop", "nt")
    SPF = o.get("spf", 0)
    WOT = o.get("wot", 1)
    WOM = o.get("wom", 3); WOD = o.get("wod", 2)
    assert WOR + 7 * WOS < 15 and WOR + 15 * WOM // WOD < 32
    sE = "s3"
    FB = o.get("fb", 0)
    FP = o.get("fp", 8)
    FS = o.get("fs", 2)
    FG0 = o.get("fg0", 40)
    FDL = o.get("fdl", 2)
    FK0 = o.get("fk0", 4)
    FR = o.get("frep", 64)
    FLEAD = o.get("flead", 0)
    sTg = "s78"
    a = Asm()
    FULL = "row_mask:0xf bank_mask:0xf"
    l2e = 1.0 / math.log(2.0)
    sB, sH, sW = "s30", "s31", "s32"
    sOff, sR, sG = "s33", "s34", "s35"
    R = "s[36:39]"
    sM1, sD1, sM2, sD2 = "s40", "s41", "s42", "s43"
    sT = [f"s{44+i}" for i in range(8)]
    sHI, sB2, sSpin, sK = "s52", "s53", "s54", "s55"
    W2 = "s[56:59]"
    sL2E, sC1 = "s14", "s15"
    L_SC = 131072
    L_QP = L_SC + 16384
    L_XN = L_QP + 4352
    L_BP = L_XN + 1024
    L_FL = L_BP + 512
    LDS_BYTES = L_FL + 256
    L_Y = 0
    vL, vRow, vCol, vF = "v0", "v1", "v2", "v3"
    WREG = 64
    QF = 48
    DT = 32
    ACC = [f"v{24+i}" for i in range(8)]
    def wslot(j): return f"v[{WREG+4*j}:{WREG+4*j+3}]"
    nlab = [0]
    def lab(p):
        nlab[0] += 1; return f"L_{p}{nlab[0]}"
    TS = o.get("ts", 0)
    def tstamp(i):
        if TS: a(f"s_memrealtime s[{60+2*i}:{61+2*i}]")
    def stamp(i):
        if STAMP in (1, 2) or (STAMP in (3, 4) and i == 0): a(f"s_memrealtime s[{60+2*i}:{61+2*i}]")
    def wave_reduce(op, v, sdst):
        for ctl in ["quad_perm:[1,0,3,2] "+FULL, "quad_perm:[2,3,0,1] "+FULL, "row_half_mirror "+FULL, "row_mirror "+FULL,
                    "row_bcast:15 row_mask:0xa bank_mask:0xf", "row_bcast:31 row_mask:0xc bank_mask:0xf"]:
            a("s_nop 1"); a(f"{op}_dpp {v}, {v}, {v} {ctl}")
        a("s_nop 1"); a(f"v_readlane_b32 {sdst}, {v}, 63")
    def allreduce(op, regs, steps):
        for ctl in ["quad_perm:[1,0,3,2]", "quad_perm:[2,3,0,1]", "row_half_mirror", "row_mirror"][:steps]:
            if len(regs) < 3: a(f"s_nop {2-len(regs)}")
            for v in regs: a(f"{op}_dpp {v}, {v}, {v} {ctl} {FULL}")
    def rbf(v):
        a(f"v_cvt_pk_bf16_f32 {v}, {v}, {v}"); a(f"v_and_b32 {v}, {sHI}, {v}")
    def spin(off, cmp, val, tmpv, tmps):
        l0, l1 = lab("sp"), lab("go")
        a(f"{l0}:")
        a(f"ds_read_b32 {tmpv}, {vF} offset:{off}")
        a("s_waitcnt lgkmcnt(0)")
        a(f"v_readfirstlane_b32 {tmps}, {tmpv}")
        a(f"{cmp} {tmps}, {val}")
        if BOUND or SLEEP:
            a(f"s_cbranch_scc1 {l1}")
            if SLEEP: a(f"s_sleep {SLEEP}")
            if BOUND:
                a(f"s_sub_u32 {sSpin}, {sSpin}, 1")
                a(f"s_cbranch_scc1 L_end")
            a(f"s_branch {l0}")
            a(f"{l1}:")
        else:
            a(f"s_cbranch_scc0 {l0}")
    def rows_sum(v, t):
        a(f"v_mov_b32 {t}, {v}"); a("s_nop 1"); a(f"v_permlane32_swap_b32 {v}, {t}"); a(f"v_add_f32 {v}, {v}, {t}")
        a(f"v_mov_b32 {t}, {v}"); a("s_nop 1"); a(f"v_permlane16_swap_b32 {v}, {t}"); a(f"v_add_f32 {v}, {v}, {t}")
    def rows_reduce8(vaddr):
        for i in range(4): a(f"v_permlane32_swap_b32 {ACC[i]}, {ACC[i+4]}")
        for i in range(4): a(f"v_add_f32 {ACC[i]}, {ACC[i]}, {ACC[i+4]}")
        a("s_nop 0")
        for i in range(2): a(f"v_permlane16_swap_b32 {ACC[i]}, {ACC[i+2]}")
        for i in range(2): a(f"v_add_f32 {ACC[i]}, {ACC[i]}, {ACC[i+2]}")
        a(f"ds_write_b64 {vaddr}, v[24:25]")

    def probe(tag):
        PR = o.get("probe", 0)
        if not PR: return
        PP = o.get("pp", 4)
        a(f"s_and_b32 {sT[1]}, {sR}, {PP-1}")
        a(f"s_or_b32 {sT[1]}, {sT[1]}, {sW}")
        a(f"s_cbranch_scc1 L_np{tag}")
        a(f"v_mov_b32 v150, 1")
        if PR in (1, 2):
            a(f"v_mov_b32 v149, 0x200000")
            a(f"s_mov_b64 exec, 1")
            a(f"global_atomic_add v151, v149, v150, s[28:29] sc0 {'sc1' if PR == 1 else ''}")
            a(f"s_mov_b64 exec, -1")
        elif PR == 3:
            a(f"s_add_u32 {sT[1]}, s2, 0x200000")
            a(f"v_mov_b32 v149, {sT[1]}")
            a(f"s_mov_b64 exec, 1")
            a(f"global_store_byte v149, v150, s[28:29] sc1")
            a(f"s_mov_b64 exec, -1")
            a(f"v_lshlrev_b32 v149, 2, {vL}")
            a(f"v_add_u32 v149, 0x200000, v149")
            a(f"global_load_dword v151, v149, s[28:29] sc1")
        elif PR == 4:
            a(f"s_lshl_b32 {sT[1]}, s2, 8")
            a(f"s_add_u32 {sT[1]}, {sT[1]}, 0x200000")
            a(f"v_mov_b32 v149, {sT[1]}")
            a(f"s_mov_b64 exec, 1")
            a(f"global_store_dword v149, v150, s[28:29] sc1")
            a(f"s_mov_b64 exec, {hex((1 << o.get('np', 16)) - 1)}")
            a(f"v_mul_u32_u24 v149, {256 * 17}, {vL}")
            a(f"v_add_u32 v149, {sT[1]}, v149")
            a(f"v_and_b32 v149, 0x20ffff, v149")
            a(f"global_load_dword v151, v149, s[28:29] sc1")
            a(f"s_mov_b64 exec, -1")
        elif PR == 5:
            a(f"s_lshl_b32 {sT[1]}, {sB}, 12")
            a(f"s_add_u32 {sT[1]}, {sT[1]}, 0x200000")
            a(f"v_mov_b32 v149, {sT[1]}")
            a(f"s_mov_b64 exec, 1")
            a(f"global_atomic_add v151, v149, v150, s[28:29] sc0 sc1")
            a(f"s_mov_b64 exec, -1")
        elif PR in (6, 7):
            if PR == 6: a(f"s_mov_b32 {sT[1]}, 0x200000")
            else:
                a(f"s_lshl_b32 {sT[1]}, {sB}, 12")
                a(f"s_add_u32 {sT[1]}, {sT[1]}, 0x200000")
            a(f"s_mov_b32 {sT[2]}, 1")
            a(f"s_atomic_add {sT[2]}, s[28:29], {sT[1]} glc")
            a("s_waitcnt lgkmcnt(0)")
        elif PR == 8:
            a(f"s_lshr_b32 {sT[1]}, s2, {o.get('gs', 3)}")
            a(f"s_mul_i32 {sT[1]}, {sT[1]}, {o.get('ls', 4352)}")
            if o.get("fr", 1):
                a(f"s_lshl_b32 {sT[2]}, {sG}, 18")
                a(f"s_add_u32 {sT[1]}, {sT[1]}, {sT[2]}")
            a(f"s_add_u32 {sT[1]}, {sT[1]}, 0x200000")
            a(f"s_mov_b32 {sT[2]}, 1")
            if o.get("ld", 0): a(f"s_load_dword {sT[2]}, s[28:29], {sT[1]} glc")
            else: a(f"s_atomic_add {sT[2]}, s[28:29], {sT[1]} glc")
            a("s_waitcnt lgkmcnt(0)")
        a(f"L_np{tag}:")
    def ctl(tag):
        if FB != 2: return
        a(f"s_sub_u32 {sT[1]}, {sG}, {FG0 + 8}")
        a(f"s_cbranch_scc1 L_nc{tag}")
        a(f"s_and_b32 {sT[2]}, {sT[1]}, {8*FP - 1}")
        a(f"s_lshr_b32 {sT[1]}, {sT[1]}, {(8*FP).bit_length() - 1}")
        a(f"s_cmp_ge_u32 {sG}, {o.get('fend', 480)}")
        a(f"s_cbranch_scc1 L_nc{tag}")
        a(f"s_mul_i32 {sT[3]}, {sT[1]}, {FR * 4352}")
        a(f"s_add_u32 {sT[3]}, {sT[3]}, 0x200000")
        a(f"s_cmp_eq_u32 s2, {FLEAD}")
        a(f"s_cbranch_scc1 L_cl{tag}")
        a(f"s_and_b32 {sT[2]}, {sT[2]}, {hex(0xffffffff ^ (7 * FS))}")
        a(f"s_cbranch_scc1 L_nc{tag}")
        a(f"s_and_b32 {sT[2]}, s2, {FR - 1}")
        a(f"s_mul_i32 {sT[2]}, {sT[2]}, 4352")
        a(f"s_add_u32 {sT[3]}, {sT[3]}, {sT[2]}")
        a(f"s_load_dword {sT[2]}, s[28:29], {sT[3]} glc")
        a(f"s_lshl_b32 {sT[1]}, {sT[1]}, 2")
        a(f"v_add_u32 v10, {sT[1]}, {vF}")
        a(f"s_waitcnt lgkmcnt(0)")
        a(f"s_cmp_eq_u32 {sT[2]}, {sTg}")
        a(f"s_cbranch_scc0 L_nc{tag}")
        a(f"v_mov_b32 v11, 1")
        a(f"s_mov_b64 exec, 1")
        a(f"ds_add_u32 v10, v11 offset:132")
        a(f"s_mov_b64 exec, -1")
        a(f"s_branch L_nc{tag}")
        a(f"L_cl{tag}:")
        a(f"s_cmp_eq_u32 {sT[2]}, {4*FS - FDL}")
        a(f"s_cbranch_scc0 L_nc{tag}")
        a(f"v_mul_u32_u24 v10, 4352, {vL}")
        a(f"v_add_u32 v10, {sT[3]}, v10")
        a(f"v_mov_b32 v11, {sTg}")
        if FR < 64: a(f"s_mov_b64 exec, {hex((1 << FR) - 1)}")
        a(f"global_store_dword v10, v11, s[28:29] sc1")
        if FR < 64: a(f"s_mov_b64 exec, -1")
        a(f"L_nc{tag}:")
    a(f"{NAME}_kernel:")
    a("s_cmpk_ge_u32 s2, 256")
    a("s_cbranch_scc1 L_end")
    a("s_load_dwordx16 s[4:19], s[0:1], 0")
    a("s_load_dwordx8 s[20:27], s[0:1], 64")
    a("s_load_dwordx2 s[28:29], s[0:1], 96")
    stamp(0)
    if o.get("map", 0) == 1:
        a("s_and_b32 s3, s2, 7")
        a("s_lshl_b32 s3, s3, 2")
        a("s_bfe_u32 s44, s2, 0x20003")
        a("s_or_b32 s3, s3, s44")
        a("s_and_b32 s2, s2, 0xe0")
        a("s_or_b32 s2, s2, s3")
    a(f"v_lshrrev_b32 v4, 6, v0")
    a(f"v_and_b32 {vL}, 63, v0")
    a(f"v_readfirstlane_b32 {sW}, v4")
    a(f"v_mov_b32 {vF}, {L_FL}")
    a(f"v_lshl_add_u32 v9, {vL}, 2, {vF}")
    a(f"v_mov_b32 v10, 0")
    a(f"ds_write_b32 v9, v10")
    a(f"v_lshrrev_b32 {vRow}, 4, {vL}")
    a(f"v_and_b32 {vCol}, 15, {vL}")
    a(f"s_mov_b32 s39, 0x20000")
    a(f"s_mov_b32 s38, 0x100000")
    a(f"s_lshl_b32 {sT[0]}, s2, 20")
    a(f"v_xor_b32 v4, {vCol}, {vRow}")
    a(f"v_lshlrev_b32 v4, 4, v4")
    a(f"v_lshl_add_u32 v4, {vRow}, 8, v4")
    a(f"v_xor_b32 v5, 64, v4")
    a(f"v_xor_b32 v6, 0x80, v4")
    a(f"v_xor_b32 v7, 64, v6")
    js = (D - 1) % 4
    sMask = "s40"
    RS = o.get("rs", 3); DS = o.get("ds", 36); jss = (DS - 1) % 4
    a(f"v_mov_b32 v8, {(jss - DS - 3)//4 if RS else (js - D - 3)//4}")
    a(f"s_mov_b32 {sOff}, 0")
    a(f"s_mov_b32 m0, 0")
    a(f"s_movk_i32 {sMask}, 0x100")
    a(f"s_mov_b32 {sR}, 0")
    a(f"s_sub_u32 {sW}, {sW}, 1")
    a("s_waitcnt lgkmcnt(0)")
    a("s_barrier")
    a("s_cbranch_scc0 L_cons")

    a("s_setprio 3")
    if o.get("ss", 0): a("s_memrealtime s[62:63]")
    if o.get("lk", -1) == 0: a("s_memrealtime s[64:65]")
    a(f"s_add_u32 s36, s6, {sT[0]}")
    a(f"s_addc_u32 s37, s7, 0")
    if o.get("skew", 0):
        a(f"s_and_b32 s70, s2, {o.get('skm', 0)}")
        a(f"s_cmp_lg_u32 s70, {o.get('skv', 0)}")
        a("s_cbranch_scc1 L_nsk")
        a("s_mov_b32 s70, s60")
        a("s_atomic_umax s70, s[26:27], 0")
        a("L_nsk:")
        a("s_not_b32 s71, s60")
        a("s_atomic_umax s71, s[26:27], 4")
    if RS:
        a("L_ls:")
        for j in range(4):
            a(f"s_waitcnt vmcnt({DS-1})")
            if j == jss:
                a("v_add_u32 v8, 1, v8")
                a(f"ds_write_b32 {vF}, v8")
            a(f"buffer_load_dwordx4 v{4+j}, {R}, {sOff} offen offset:{1024*j} nt lds")
        a(f"s_addk_i32 {sOff}, 4096")
        a(f"s_and_b32 m0, {sOff}, 0x1ffff")
        if o.get("lk", -1) > 0:
            a(f"s_cmp_lg_u32 {sOff}, {o['lk']*4096}")
            a(f"s_cbranch_scc1 L_lk")
            a("s_memrealtime s[64:65]")
            a("L_lk:")
        a(f"s_cmp_lg_u32 {sOff}, {RS*32768}")
        a(f"s_cbranch_scc1 L_ls")
        a(f"v_mov_b32 v8, {(32*RS + js - D - 3)//4}")
        a(f"s_branch L_ld0")
    a("L_ld:")
    if FB:
        a(f"s_bitcmp1_b32 {sMask}, 0")
        a(f"s_cbranch_scc0 L_nd")
        a(f"buffer_load_dword v12, v4, {R}, s38 offen")
        a(f"L_nd:")
    for j in range(4):
        a(f"s_waitcnt vmcnt({D-1})")
        if j == js:
            a("v_add_u32 v8, 1, v8")
            a(f"ds_write_b32 {vF}, v8")
        a(f"buffer_load_dwordx4 v{4+j}, {R}, {sOff} offen offset:{1024*j} nt lds")
    a(f"s_addk_i32 {sOff}, 4096")
    a(f"s_and_b32 m0, {sOff}, 0x1ffff")
    a(f"s_lshr_b32 {sMask}, {sMask}, 1")
    a(f"s_cmp_lg_u32 {sMask}, 1")
    a(f"s_cbranch_scc1 L_ld")
    if RS: a(f"s_branch L_ld1")
    else:
        a(f"s_cmp_lg_u32 {sR}, 0")
        a(f"s_cbranch_scc1 L_ld1")
    a("L_ld0:")
    if RS: a(f"s_mov_b32 {sR}, {RS-1}")
    a(f"s_add_u32 s8, s8, {sT[0]}")
    a(f"s_addc_u32 s9, s9, 0")
    a(f"s_mov_b32 {sSpin}, 0x100000")
    a(f"v_and_b32 v9, 7, {vL}")
    a(f"v_lshl_add_u32 v9, v9, 2, {vF}")
    a(f"v_mov_b32 v11, {max(RS-1, 0) - 3}")
    if STAMP == 1: a("s_mov_b32 s79, 0")
    if FB == 2:
        a(f"v_mov_b32 v14, {FK0}")
        a(f"ds_write_b32 {vF}, v14 offset:128")
        a(f"v_mov_b32 v15, {vF}")
        a(f"s_cmp_eq_u32 s2, {FLEAD}")
        a(f"s_cselect_b32 s41, 0, 4")
        tab = [0xff, 0x7f, 0x77, 0x75, 0x55, 0x51, 0x11, 0x10]
        a(f"s_mov_b32 s46, {hex(sum(tab[i] << (8*i) for i in range(4)))}")
        a(f"s_mov_b32 s47, {hex(sum(tab[4+i] << (8*i) for i in range(4)))}")
    a("L_ld1:")
    a(f"s_add_u32 {sR}, {sR}, 1")
    a(f"v_add_u32 v11, 1, v11")
    if STAMP == 1:
        for k, rr in zip((1,2,3,6,7), str(o.get("marks", "2,4,6,8,16")).split(",")):
            a(f"s_cmp_lg_u32 {sR}, {rr}")
            a(f"s_cbranch_scc1 L_mk{k}")
            a(f"s_memrealtime s[{60+2*k}:{61+2*k}]")
            a(f"L_mk{k}:")
    if STAMP == 4:
        for k, rr in ((1, o.get("m0", 99)), (2, o["m1"])):
            a(f"s_cmp_lg_u32 {sR}, {rr}")
            a(f"s_cbranch_scc1 L_mk{k}")
            a(f"s_memrealtime s[{60+2*k}:{61+2*k}]")
            a(f"L_mk{k}:")
    a(f"s_cmp_lg_u32 {sR}, 32")
    a(f"s_cbranch_scc1 L_ldnv")
    a(f"s_mov_b32 s36, s8")
    a(f"s_mov_b32 s37, s9")
    a(f"s_mov_b32 {sOff}, 0")
    for j in range(4): a(f"v_lshlrev_b32 v{4+j}, 4, {vL}")
    stamp(4)
    a("L_ldnv:")
    a(f"s_cmp_eq_u32 {sR}, 64")
    a(f"s_cbranch_scc1 L_drain")
    a("L_ldck:")
    a("s_waitcnt lgkmcnt(0)")
    a(f"v_cmp_lt_i32 vcc, v10, v11")
    a(f"s_cbranch_vccnz L_ldslow")
    a(f"s_mov_b32 {sMask}, 0x100")
    if FB == 2:
        a(f"v_readfirstlane_b32 s42, v14")
        if STAMP == 1:
            a(f"s_add_u32 s79, s79, 8"); a(f"s_sub_u32 s79, s79, s42")
        a(f"s_lshl_b32 s42, s42, 3")
        a(f"s_lshr_b64 s[48:49], s[46:47], s42")
        a(f"s_and_b32 s48, s48, 0xff")
        a(f"s_cmp_lt_u32 {sR}, 63")
        a(f"s_cselect_b32 s48, s48, 0")
        a(f"s_cmp_lt_u32 s42, 64")
        a(f"s_cselect_b32 s48, s48, 0")
        a(f"s_or_b32 {sMask}, {sMask}, s48")
        RA = (FG0 + 8*FS + D//4 + 8 + 7) // 8
        a(f"s_and_b32 s42, {sR}, {FP-1}")
        a(f"s_cmp_eq_u32 s42, {RA % FP}")
        a(f"s_cselect_b32 s42, s41, 0")
        if RA >= FP:
            a(f"s_cmp_ge_u32 {sR}, {RA}")
            a(f"s_cselect_b32 s42, s42, 0")
        a(f"v_add_u32 v15, s42, v15")
        a(f"ds_read_b32 v14, v15 offset:128")
    a(f"ds_read_b32 v10, v9 offset:32")
    a(f"s_branch L_ld")
    a("L_drain:")
    pub = (2044 + js - D - 3)//4 + 1
    while pub < 512:
        pub += 1
        a(f"s_waitcnt vmcnt({2048 - 4*pub})")
        a("v_add_u32 v8, 1, v8")
        a(f"ds_write_b32 {vF}, v8")
    stamp(5)
    if STAMP == 4:
        a("s_barrier"); a("s_barrier")
        a("s_waitcnt lgkmcnt(0)")
        if "swg" in o:
            a(f"s_cmp_lg_u32 s2, {o['swg']}")
            a("s_cbranch_scc1 L_end")
        if o.get("skew", 0):
            a("s_load_dwordx2 s[64:65], s[26:27], 0 glc")
            a("s_waitcnt lgkmcnt(0)")
            a("s_not_b32 s65, s65")
            a("s_sub_u32 s64, s64, s65")
        else:
            a(f"s_sub_u32 s64, s64, {'s62' if 'm0' in o else 's60'}")
        a(f"s_sub_u32 s64, s64, {o.get('sub', 0)}")
        if o.get("neg", 0): a("s_sub_u32 s64, 0, s64")
        a(f"s_mul_i32 s64, s64, {o.get('amp', 10)}")
        a(f"s_add_u32 s64, s64, 10000")
        a(f"s_min_u32 s64, s64, 100000")
        a("L_pin2:")
        a("s_memrealtime s[66:67]")
        a("s_waitcnt lgkmcnt(0)")
        a("s_sub_u32 s66, s66, s60")
        a(f"s_cmp_lt_u32 s66, s64")
        a("s_cbranch_scc1 L_pin2")
    elif STAMP == 3:
        a(f"s_memrealtime s[74:75]")
        a("s_waitcnt lgkmcnt(0)")
        a(f"s_cmp_lg_u32 s2, {o.get('swg', 5)}")
        a("s_cbranch_scc1 L_end")
        for i in range(8): a(f"v_writelane_b32 v16, s{60+2*i}, {i}")
        a(f"v_subrev_u32 v16, s60, v16")
        a(f"v_lshlrev_b32 v17, 2, {vL}")
        a(f"s_mov_b64 exec, 0xff")
        a(f"global_store_dword v17, v16, s[26:27] offset:32")
    elif STAMP:
        if STAMP == 2:
            for i in (1,2,3,6,7): a(f"s_mov_b64 s[{60+2*i}:{61+2*i}], 0")
        a("s_branch L_fin")
    a("s_endpgm")
    a("L_ldslow:")
    a(f"ds_read_b32 v10, v9 offset:32")
    if BOUND:
        a(f"s_sub_u32 {sSpin}, {sSpin}, 1")
        a(f"s_cbranch_scc1 L_end")
    a("s_branch L_ldck")

    a("L_cons:")
    a(f"s_lshr_b32 {sB}, s2, 5")
    a(f"s_and_b32 {sH}, s2, 31")
    a(f"s_mov_b32 {sHI}, 0xffff0000")
    a(f"s_mov_b32 s59, 0x20000")
    a(f"s_lshl_b32 {sT[0]}, {sB}, 10")
    a(f"v_lshlrev_b32 v8, 4, {vL}")
    a(f"s_mov_b32 {sSpin}, 0x100000")
    a(f"s_add_u32 s4, s4, {sT[0]}")
    a(f"s_addc_u32 s5, s5, 0")
    a(f"global_load_dwordx4 v[4:7], v8, s[4:5] {WP}")
    if o.get("ipf", 0):
        a(f"s_getpc_b64 s[46:47]")
        a("L_pc:")
        a(f"s_lshl_b32 {sT[0]}, {sW}, 10")
        a(f"v_add_u32 v9, {sT[0]}, v8")
        a(f"v_min_u32 v9, L_end-L_pc-12, v9")
        a(f"global_load_dwordx4 v[16:19], v9, s[46:47]")
    a(f"s_lshl_b32 {sT[0]}, {sW}, 19")
    a(f"s_lshl_b32 {sT[1]}, {sH}, 8")
    a(f"s_add_u32 {sT[0]}, {sT[0]}, {sT[1]}")
    a(f"s_add_u32 s36, s10, {sT[0]}")
    a(f"s_addc_u32 s37, s11, 0")
    a(f"s_mov_b32 s38, {o.get('wqn', 0x80000)}")
    a(f"v_lshlrev_b32 v9, 17, {vRow}")
    a(f"v_lshl_add_u32 v9, {vCol}, 4, v9")
    if ROT: a(f"s_lshl_b32 {sT[2]}, {sB}, 14")
    else: a(f"s_mov_b32 {sT[2]}, 0")
    def wqload(j):
        a(f"s_xor_b32 {sT[3]}, {sT[2]}, {j*8192}")
        a(f"buffer_load_dwordx4 {wslot(j)}, v9, {R}, {sT[3]} offen {o.get('wqpol', 'nt')}")
    WQS = o.get("wqs", 6); PRE = o.get("pre", 1)
    NQ0 = WQP if WQP else (WQS if WQS else 16)
    if FB == 2:
        a(f"s_mov_b32 {sT[4]}, 0x180000")
        a(f"s_load_dword {sTg}, s[28:29], {sT[4]}")
    for j in range(NQ0): wqload(j)
    a(f"s_waitcnt vmcnt({NQ0})")
    stamp(1)
    ln_start = len(a.lines)
    X = [f"v{16+i}" for i in range(8)]
    def unpack(src4):
        for i in range(4):
            a(f"v_lshlrev_b32 {X[2*i]}, 16, v{src4+i}")
            a(f"v_and_b32 {X[2*i+1]}, {sHI}, v{src4+i}")
    def ln(sM, sD, write):
        a(f"v_add_f32 v24, {X[0]}, {X[1]}")
        for i in range(2, 8): a(f"v_add_f32 v24, v24, {X[i]}")
        wave_reduce("v_add_f32", "v24", sT[0])
        a("s_nop 1")
        a(f"v_mov_b32 v25, {sT[0]}")
        a(f"v_mul_f32 v25, {hex(f2u(1.0/512))}, v25")
        a(f"v_sub_f32 v26, {X[0]}, v25")
        a(f"v_mul_f32 v24, v26, v26")
        for i in range(1, 8):
            a(f"v_sub_f32 v26, {X[i]}, v25")
            a(f"v_fmac_f32 v24, v26, v26")
        wave_reduce("v_add_f32", "v24", sT[0])
        rbf("v25")
        a(f"v_mov_b32 v24, {sT[0]}")
        a(f"v_mul_f32 v24, {hex(f2u(1.0/512))}, v24")
        rbf("v24")
        a(f"v_add_f32 v24, {hex(f2u(1e-5))}, v24")
        rbf("v24")
        a(f"v_sqrt_f32 v24, v24")
        a("s_nop 0")
        rbf("v24")
        a(f"v_rcp_f32 v24, v24")
        a(f"v_readfirstlane_b32 {sM}, v25")
        a(f"v_readfirstlane_b32 {sD}, v24")
        if write:
            for i in range(8): a(f"v_sub_f32 {X[i]}, {X[i]}, v25")
            for i in range(4): a(f"v_cvt_pk_bf16_f32 v{4+i}, {X[2*i]}, {X[2*i+1]}")
            unpack(4)
            for i in range(8): a(f"v_mul_f32 {X[i]}, {X[i]}, v24")
            for i in range(4): a(f"v_cvt_pk_bf16_f32 v{4+i}, {X[2*i]}, {X[2*i+1]}")
    unpack(4)
    ln(sM1, sD1, True)
    a(f"v_add_u32 v8, {L_XN}, v8")
    a(f"ds_write_b128 v8, v[4:7]")
    a(f"s_lshl_b32 {sT[0]}, {sW}, 7")
    if ROT:
        a(f"s_lshl_b32 {sT[1]}, {sB}, 2")
        a(f"s_add_u32 {sT[0]}, {sT[0]}, {sT[1]}")
    a(f"s_add_u32 {sT[0]}, {sT[0]}, {L_XN}")
    a(f"v_lshl_add_u32 v8, {vRow}, 5, {sT[0]}")
    assert L_XN % 32 == 0
    for i in range(8):
        if i:
            a(f"v_xor_b32 v10, {4*i}, v8")
            a(f"ds_read_b32 v{QF+i}, v10")
        else:
            a(f"ds_read_b32 v{QF+i}, v8")
    for i in range(8): a(f"v_mov_b32 {ACC[i]}, 0")
    if WQP:
        body = a.lines[ln_start:]; del a.lines[ln_start:]
        nins = 16 - NQ0
        LNF = o.get("lnf", 100)
        inl = nins * LNF // 100
        pts = [int((k + 0.5) * len(body) / inl) for k in range(inl)] if inl else []
        k = 0
        for idx, line in enumerate(body):
            while k < inl and pts[k] == idx:
                a(f"s_waitcnt vmcnt({NQ0-1})"); wqload(NQ0 + k); k += 1
            a.lines.append(line)
        while k < nins:
            a(f"s_waitcnt vmcnt({NQ0-1})"); wqload(NQ0 + k); k += 1
    WQ2 = o.get("wq2", 0)
    WQL = o.get("wql", 0)
    nissued = NQ0
    if WQL:
        body = a.lines[ln_start:]; del a.lines[ln_start:]
        pts = [int(k * len(body) / WQL) for k in range(WQL)]
        k = 0
        for idx, line in enumerate(body):
            while k < WQL and pts[k] == idx:
                a(f"s_waitcnt vmcnt({WQ2-1})"); wqload(nissued); nissued += 1; k += 1
            a.lines.append(line)
    elif WQS:
        nissued = min(16, WQS + WQ2) if WQ2 else 16
        for j in range(WQS, nissued): wqload(j)
    if WQS: NQ0 = 16
    ST = [DT, 128, 144]
    def preread(n):
        if n: a(f"v_add_u32 v12, 0x8000, v12")
        for t in range(1, 4): a(f"v_xor_b32 v{19+t}, {64*t}, v12")
        a(f"s_add_u32 {sT[4]}, {sW}, {8*n}")
        spin(0, "s_cmp_gt_i32", sT[4], "v14", sT[0])
        a(f"ds_read_b128 v[{ST[n]}:{ST[n]+3}], v12")
        for t in range(1, 4): a(f"ds_read_b128 v[{ST[n]+4*t}:{ST[n]+4*t+3}], v{19+t}")
        a(f"v_mov_b32 v14, {n+1}")
        a("s_waitcnt lgkmcnt(0)")
        a(f"ds_write_b32 v13, v14 offset:32")
    PJ = [int(x) for x in str(o.get("pj", "6,11")).split(",")]
    if PRE:
        a(f"v_xor_b32 v12, {vRow}, {vCol}")
        a(f"v_lshlrev_b32 v12, 4, v12")
        a(f"v_lshl_add_u32 v12, {vCol}, 8, v12")
        a(f"s_lshl_b32 {sT[0]}, {sW}, 12")
        a(f"v_add_u32 v12, {sT[0]}, v12")
        a(f"s_lshl_b32 {sT[0]}, {sW}, 2")
        a(f"v_add_u32 v13, {sT[0]}, {vF}")
        preread(0)
    else:
        a("s_waitcnt lgkmcnt(0)")
    for j in range(16):
        for n in range(1, PRE):
            if PJ[n-1] == j: preread(n)
        src = f"v{QF + j//2}"
        if j % 2 == 0:
            a(f"v_and_b32 v10, 0xffff, {src}"); a(f"v_lshlrev_b32 v11, 16, {src}")
        else:
            a(f"v_lshrrev_b32 v10, 16, {src}"); a(f"v_and_b32 v11, {sHI}, {src}")
        if WQ2:
            a(f"s_waitcnt vmcnt({nissued - j - 1})")
            while nissued < 16 and nissued - j - 1 < WQ2:
                wqload(nissued); nissued += 1
        elif 15 - j < NQ0: a(f"s_waitcnt vmcnt({15 - j})")
        for i in range(4):
            a(f"v_dot2c_f32_bf16 {ACC[2*i]}, v10, v{WREG+4*j+i}")
            a(f"v_dot2c_f32_bf16 {ACC[2*i+1]}, v11, v{WREG+4*j+i}")
    stamp(2)
    vPA = "v23"
    a(f"s_mul_i32 {sT[0]}, {sW}, 528")
    a(f"s_add_u32 {sT[0]}, {sT[0]}, {L_QP}")
    a(f"v_lshl_add_u32 v15, {vCol}, 5, {sT[0]}")
    a(f"v_lshl_add_u32 v15, {vRow}, 3, v15")
    rows_reduce8("v15")
    a(f"v_mov_b32 v10, 1")
    a("s_waitcnt lgkmcnt(0)")
    a(f"s_mov_b64 exec, 1")
    a(f"ds_add_u32 {vF}, v10 offset:4")
    a(f"s_mov_b64 exec, -1")
    MX = 128
    for i in range(4): a(f"v_mov_b32 v{160+i}, v{4+i}")
    spin(4, "s_cmp_ge_u32", 8, "v10", sT[0])
    a(f"v_lshlrev_b32 v10, 3, {vL}")
    a(f"v_add_u32 v10, {L_QP}, v10")
    for w in range(8): a(f"ds_read_b64 v[{WREG+2*w}:{WREG+2*w+1}], v10 offset:{528*w}")
    a("s_waitcnt lgkmcnt(0)")
    for st in (8, 4, 2):
        for i in range(st): a(f"v_add_f32 v{WREG+i}, v{WREG+i}, v{WREG+st+i}")
    a(f"v_cvt_pk_bf16_f32 v{WREG}, v{WREG}, v{WREG+1}")
    a(f"v_lshlrev_b32 v10, 2, {vL}")
    a(f"v_add_u32 v10, {L_XN}, v10")
    a(f"ds_write_b32 v10, v{WREG}")
    a(f"v_lshlrev_b32 v10, 4, {vRow}")
    a(f"v_add_u32 v10, {L_XN}, v10")
    for t in range(4): a(f"ds_read_b128 v[{QF+4*t}:{QF+4*t+3}], v10 offset:{64*t}")
    vH, vMA, vC0 = "v138", "v139", "v140"
    a(f"s_mov_b32 {sL2E}, {hex(f2u(l2e))}")
    a(f"s_mov_b32 {sK}, {hex(f2u(128 ** -0.5))}")
    vKA, vSA, vDA, vM, vLs, vDn = "v4", "v5", "v6", "v7", "v8", "v9"
    a(f"v_xor_b32 {vKA}, {vRow}, {vCol}")
    a(f"v_lshlrev_b32 {vKA}, 4, {vKA}")
    a(f"v_lshl_add_u32 {vKA}, {vCol}, 8, {vKA}")
    a(f"s_lshl_b32 {sT[0]}, {sW}, 12")
    a(f"v_add_u32 {vKA}, {sT[0]}, {vKA}")
    a(f"s_lshl_b32 {sT[0]}, {sW}, 6")
    a(f"s_add_u32 {sT[0]}, {sT[0]}, {L_SC}")
    a(f"v_lshl_add_u32 {vSA}, {vCol}, 2, {sT[0]}")
    a(f"s_lshl_b32 {sT[0]}, {sW}, 2")
    a(f"v_add_u32 {vDA}, {sT[0]}, {vF}")
    a(f"v_mov_b32 {vM}, 0xff7fffff")
    a(f"v_mov_b32 {vLs}, 0")
    a(f"v_mov_b32 {vDn}, 0")
    a(f"s_mov_b32 {sG}, {sW}")
    a(f"s_mov_b32 {sR}, 0")
    a(f"s_lshl_b32 {sT[0]}, {sH}, 17")
    a(f"s_lshl_b32 {sT[1]}, {sW}, 14")
    a(f"s_add_u32 {sT[0]}, {sT[0]}, {sT[1]}")
    a(f"s_add_u32 s36, s12, {sT[0]}")
    a(f"s_addc_u32 s37, s13, 0")
    a(f"s_mov_b32 s38, {o.get('won', 16384)}")
    a(f"s_mul_i32 {sOff}, {sW}, {WOS}")
    a(f"s_add_u32 {sOff}, {sOff}, {WOR}")
    if FB == 2:
        a(f"s_add_u32 {sTg}, {sTg}, 1")
    stamp(3)
    if PRE:
        a("s_waitcnt lgkmcnt(0)")
        a("s_branch L_kmid")
    if PRE > 1:
        a("L_kst:")
        for n in range(1, PRE):
            for i in range(16): a(f"v_mov_b32 v{ST[n-1]+i}, v{ST[n]+i}")
        a("s_branch L_kmid")
    a("L_k:")
    if PRE > 1:
        a(f"s_cmp_lt_u32 {sR}, {PRE}")
        a(f"s_cbranch_scc1 L_kst")
    for t in range(1, 4): a(f"v_xor_b32 v{10+t}, {64*t}, {vKA}")
    spin(0, "s_cmp_gt_i32", sG, "v10", sT[0])
    a(f"ds_read_b128 v[{DT}:{DT+3}], {vKA}")
    for t in range(1, 4): a(f"ds_read_b128 v[{DT+4*t}:{DT+4*t+3}], v{10+t}")
    a("L_kmid:")
    a(f"v_add_u32 {vDn}, 1, {vDn}")
    a(f"v_add_u32 {vKA}, 0x8000, {vKA}")
    a(f"v_and_b32 {vKA}, 0x1ffff, {vKA}")
    for t in range(4):
        a(f"s_waitcnt lgkmcnt({3-t})")
        a(f"v_mfma_f32_16x16x32_bf16 v[16:19], v[{QF+4*t}:{QF+4*t+3}], v[{DT+4*t}:{DT+4*t+3}], {'0' if t == 0 else 'v[16:19]'}")
    if PRE > 1:
        a(f"v_max_u32 v10, {PRE}, {vDn}")
        a(f"ds_write_b32 {vDA}, v10 offset:32")
        a(f"s_add_u32 {sG}, {sG}, 8")
        a(f"s_nop 4")
    else:
        a(f"ds_write_b32 {vDA}, {vDn} offset:32")
        a(f"s_add_u32 {sG}, {sG}, 8")
        a(f"s_nop 5")
    rbf("v16")
    a(f"v_mul_f32 v16, {sK}, v16")
    rbf("v16")
    a(f"ds_write_b32 {vSA}, v16")
    a(f"v_max_f32 v17, {vM}, v16")
    a(f"v_sub_f32 v18, {vM}, v17")
    a(f"v_sub_f32 v16, v16, v17")
    a(f"v_mul_f32 v18, {sL2E}, v18")
    a(f"v_mul_f32 v16, {sL2E}, v16")
    a(f"v_exp_f32 v18, v18")
    a(f"v_exp_f32 v16, v16")
    a(f"v_mov_b32 {vM}, v17")
    a(f"v_add_u32 {vSA}, 512, {vSA}")
    a(f"v_fma_f32 {vLs}, {vLs}, v18, v16")
    ctl("k")
    a(f"v_lshlrev_b32 v10, 4, {vL}")
    if WOT:
        rounds = {}
        for j in range(16): rounds.setdefault(WOR + j * WOM // WOD, []).append(j)
        if SPF:
            for j in range(16): rounds.setdefault(WOR + j * WOM // WOD - SPF, []).append(-1 - j)
        for rr, js_ in sorted(rounds.items()):
            a(f"s_cmp_lg_u32 {sR}, {rr}")
            a(f"s_cbranch_scc1 L_wo{rr}")
            for j in js_:
                if j < 0:
                    jj = -1 - j
                    a(f"s_lshl_b32 {sT[1]}, {sB}, 7")
                    a(f"s_add_u32 {sT[1]}, {sT[1]}, {1024*jj}")
                    a(f"s_load_dword {sT[2]}, s[36:37], {sT[1]}")
                    a(f"s_add_u32 {sT[1]}, {sT[1]}, 64")
                    a(f"s_load_dword {sT[3]}, s[36:37], {sT[1]}")
                    continue
                a(f"s_movk_i32 {sT[1]}, {1024*j}")
                a(f"buffer_load_dwordx4 {wslot(j)}, v10, {R}, {sT[1]} offen {WOP}")
            a(f"L_wo{rr}:")
    a(f"s_cmp_lg_u32 {sR}, {sOff}")
    a(f"s_cbranch_scc1 L_nowo")
    if not WOT:
        for j in range(16):
            if j % 4 == 0: a(f"s_movk_i32 {sT[1]}, {1024*j}")
            a(f"buffer_load_dwordx4 {wslot(j)}, v10, {R}, {sT[1]} offen offset:{1024*(j%4)} {WP}")
    a(f"s_lshl_b32 {sT[0]}, {sH}, 5")
    a(f"v_lshl_add_u32 v11, {vCol}, 1, {sT[0]}")
    a(f"global_load_ushort v138, v11, s[4:5] {WP}")
    a(f"s_mul_i32 {sT[0]}, {sW}, 448")
    a(f"v_mul_u32_u24 v11, 112, {vRow}")
    a(f"v_lshl_add_u32 v11, {vCol}, 2, v11")
    a(f"v_add_u32 v11, {sT[0]}, v11")
    a(f"v_cmp_lt_u32 vcc, 13, {vCol}")
    a(f"v_mov_b32 v12, 0x10000")
    a(f"s_mov_b32 s58, 3584")
    a(f"v_cndmask_b32 v11, v11, v12, vcc")
    for k, p in enumerate([16, 18, 20]):
        a(f"s_mov_b32 s56, s{p}"); a(f"s_mov_b32 s57, s{p+1}")
        for s_ in range(2):
            a(f"buffer_load_dword v{MX + 5*s_ + (1,3,4)[k]}, v11, {W2}, 0 offen offset:{56*s_} {WP}")
    a(f"s_load_dword {sB2}, s[22:23], 0")
    if TAIL == 3:
        a(f"s_lshl_b32 {sT[0]}, {sB}, 8")
        a(f"s_add_u32 {sT[0]}, {sT[0]}, 0x180000")
        a(f"s_load_dword {sE}, s[28:29], {sT[0]}")
    a("L_nowo:")
    a(f"s_cmp_lg_u32 {sR}, 15")
    a(f"s_cbranch_scc1 L_noms")
    unpack(160)
    ln(sM2, sD2, False)
    a("s_waitcnt vmcnt(0)")
    a(f"v_lshlrev_b32 {vH}, 16, v138")
    a(f"v_mov_b32 v145, {vH}")
    a(f"v_subrev_f32 {vH}, {sM1}, {vH}"); rbf(vH)
    a(f"v_mul_f32 {vH}, {sD1}, {vH}"); rbf(vH)
    a(f"v_subrev_f32 {vH}, {sM2}, {vH}"); rbf(vH)
    a(f"v_mul_f32 {vH}, {sD2}, {vH}"); rbf(vH)
    for s_ in range(2):
        b = MX + 5*s_
        a(f"v_lshlrev_b32 v{b}, 16, v{b+1}"); a(f"v_and_b32 v{b+1}, {sHI}, v{b+1}")
        a(f"v_lshlrev_b32 v{b+2}, 16, v{b+3}"); a(f"v_and_b32 v{b+3}, {sHI}, v{b+3}")
    kb = math.sqrt(2.0/math.pi)
    a(f"v_mov_b32 {vC0}, {hex(f2u(-2*kb*l2e))}")
    a(f"s_mov_b32 {sC1}, {hex(f2u(-2*kb*l2e*0.044715))}")
    a(f"v_mov_b32 {vMA}, 0")
    a("L_noms:")
    a(f"s_cmp_lt_u32 {sR}, 16")
    a(f"s_cbranch_scc1 L_nomix")
    BC = "row_newbcast:0 " + FULL
    for s_ in range(2):
        b = MX + 5*s_
        a(f"v_mul_f32_dpp v16, v{b}, {vH} {BC}")
        a(f"v_mul_f32_dpp v17, v{b+1}, {vH} {BC}")
        a(f"v_cvt_pk_bf16_f32 v17, v16, v17")
        a(f"v_lshlrev_b32 v16, 16, v17"); a(f"v_and_b32 v17, {sHI}, v17")
        a(f"v_add_f32_dpp v16, v{b+2}, v16 {BC}")
        a(f"v_add_f32_dpp v17, v{b+3}, v17 {BC}")
        a(f"v_cvt_pk_bf16_f32 v17, v16, v17")
        a(f"v_lshlrev_b32 v16, 16, v17"); a(f"v_and_b32 v17, {sHI}, v17")
        a(f"v_mul_f32 v18, v16, v16"); a(f"v_mul_f32 v19, v17, v17")
        a(f"v_fma_f32 v18, v18, {sC1}, {vC0}"); a(f"v_fma_f32 v19, v19, {sC1}, {vC0}")
        a(f"v_mul_f32 v18, v18, v16"); a(f"v_mul_f32 v19, v19, v17")
        a(f"v_exp_f32 v18, v18"); a(f"v_exp_f32 v19, v19")
        a(f"v_mov_b32_dpp v{b}, v{b} row_ror:15 {FULL}")
        a(f"v_add_f32 v18, 1.0, v18"); a(f"v_add_f32 v19, 1.0, v19")
        a(f"v_rcp_f32 v18, v18"); a(f"v_rcp_f32 v19, v19")
        a(f"v_mov_b32_dpp v{b+1}, v{b+1} row_ror:15 {FULL}")
        a(f"v_mul_f32 v18, v18, v16"); a(f"v_mul_f32 v19, v19, v17")
        a(f"v_cvt_pk_bf16_f32 v18, v18, v19")
        a(f"v_mov_b32_dpp v{b+2}, v{b+2} row_ror:15 {FULL}")
        a(f"v_mov_b32_dpp v{b+3}, v{b+3} row_ror:15 {FULL}")
        a(f"v_dot2c_f32_bf16_dpp {vMA}, v{b+4}, v18 {BC}")
        a(f"v_mov_b32_dpp v{b+4}, v{b+4} row_ror:15 {FULL}")
    a("L_nomix:")
    probe("k")
    a(f"s_add_u32 {sR}, {sR}, 1")
    a(f"s_cmp_lt_u32 {sR}, 32")
    a(f"s_cbranch_scc1 L_k")
    if STAMP: pass
    a(f"v_mov_b32 v16, {vM}")
    allreduce("v_max_f32", ["v16"], 4)
    a(f"v_sub_f32 v17, {vM}, v16")
    a(f"v_mul_f32 v17, {sL2E}, v17")
    a(f"v_exp_f32 v17, v17")
    a(f"s_lshl_b32 {sT[0]}, {sW}, 3")
    a(f"v_add_u32 v18, {sT[0]}, {vF}")
    a(f"v_mul_f32 v17, v17, {vLs}")
    allreduce("v_add_f32", ["v17"], 4)
    a(f"ds_write_b64 v18, v[16:17] offset:64")
    rows_sum(vMA, "v19")
    a(f"s_lshl_b32 {sT[0]}, {sW}, 6")
    a(f"s_add_u32 {sT[0]}, {sT[0]}, {L_BP}")
    a(f"v_lshl_add_u32 v19, {vCol}, 2, {sT[0]}")
    a(f"ds_write_b32 v19, {vMA}")
    a(f"v_mov_b32 v10, 1")
    a("s_waitcnt lgkmcnt(0)")
    a(f"s_mov_b64 exec, 1")
    a(f"ds_add_u32 {vF}, v10 offset:8")
    a(f"s_mov_b64 exec, -1")
    a(f"s_mov_b32 {sT[0]}, 0x05040100")
    a(f"s_mov_b32 {sT[1]}, 0x07060302")
    a("s_waitcnt vmcnt(0)")
    for p in range(8):
        for i in range(4):
            r0 = WREG + 8*p + i; r1 = r0 + 4
            a(f"v_perm_b32 v16, v{r1}, v{r0}, {sT[0]}")
            a(f"v_perm_b32 v{r1}, v{r1}, v{r0}, {sT[1]}")
            a(f"v_mov_b32 v{r0}, v16")
    spin(8, "s_cmp_ge_u32", 8, "v10", sT[0])
    a(f"v_and_b32 v18, 7, {vL}")
    a(f"v_lshl_add_u32 v18, v18, 3, {vF}")
    a(f"ds_read_b64 v[16:17], v18 offset:64")
    a(f"v_lshlrev_b32 v19, 2, {vL}")
    a(f"v_add_u32 v18, {L_BP}, v19")
    a(f"ds_read_b32 v20, v18")
    a(f"ds_read_b32 v21, v18 offset:256")
    a("s_waitcnt lgkmcnt(0)")
    a(f"v_mov_b32 {vM}, v16")
    allreduce("v_max_f32", [vM], 3)
    a(f"v_sub_f32 v16, v16, {vM}")
    a(f"v_mul_f32 v16, {sL2E}, v16")
    a(f"v_exp_f32 v16, v16")
    a(f"v_add_f32 v20, v20, v21")
    a(f"v_mul_f32 {vLs}, v16, v17")
    allreduce("v_add_f32", [vLs], 3)
    a(f"v_rcp_f32 {vLs}, {vLs}")
    rows_sum("v20", "v21")
    rbf("v20")
    a(f"s_lshl_b32 {sB2}, {sB2}, 16")
    a(f"v_add_f32 v20, {sB2}, v20")
    rbf("v20")
    if TAIL == 3:
        a(f"v_and_b32 v21, 7, {vL}")
        a(f"v_lshrrev_b32 v22, 5, {vL}")
        a(f"v_lshl_add_u32 v21, v21, 1, v22")
        a(f"v_lshlrev_b32 v22, 2, v21")
        a(f"ds_bpermute_b32 v146, v22, v20")
        a(f"ds_bpermute_b32 v145, v22, v145")
        a(f"s_lshl_b32 {sT[0]}, s2, 5")
        a(f"v_lshl_add_u32 v147, v21, 1, {sT[0]}")
        a(f"s_add_u32 {sE}, {sE}, 1")
    else:
        a(f"s_lshl_b32 {sT[0]}, s2, 6")
        a(f"s_add_u32 {sT[0]}, {sT[0]}, 0x80000")
        a(f"s_add_u32 s56, s28, {sT[0]}")
        a(f"s_addc_u32 s57, s29, 0")
        a(f"s_cmp_eq_u32 {sW}, 0")
        a(f"s_cselect_b32 s58, 64, 0")
        a(f"buffer_store_dword v20, v19, {W2}, 0 offen sc1")
    a(f"s_lshl_b32 {sT[0]}, {sW}, 12")
    a(f"v_lshl_add_u32 {vKA}, {vL}, 4, {sT[0]}")
    a(f"v_and_b32 {vSA}, 3, {vL}")
    a(f"v_lshl_add_u32 {vSA}, {vSA}, 2, {vRow}")
    a(f"s_lshl_b32 {sT[0]}, {sW}, 6")
    a(f"s_add_u32 {sT[0]}, {sT[0]}, {L_SC}")
    a(f"v_lshl_add_u32 {vSA}, {vSA}, 2, {sT[0]}")
    for i in range(8): a(f"v_mov_b32 {ACC[i]}, 0")
    a(f"s_mov_b32 {sR}, 0")
    stamp(4)
    a("L_v:")
    a(f"ds_read_b32 v16, {vSA}")
    a(f"v_add_u32 {vSA}, 512, {vSA}")
    a(f"v_add_u32 {vDn}, 1, {vDn}")
    a("s_waitcnt lgkmcnt(0)")
    a(f"v_sub_f32 v16, v16, {vM}")
    a(f"v_mul_f32 v16, {sL2E}, v16")
    a(f"v_exp_f32 v16, v16")
    a(f"s_add_u32 {sR}, {sR}, 1")
    a(f"v_mul_f32 v16, v16, {vLs}")
    a(f"v_cvt_pk_bf16_f32 v16, v16, v16")
    a(f"v_lshrrev_b32 v17, 16, v16")
    a(f"v_and_b32 v16, {sHI}, v16")
    spin(0, "s_cmp_gt_i32", sG, "v10", sT[0])
    for t in range(4): a(f"ds_read_b128 v[{DT+4*t}:{DT+4*t+3}], {vKA} offset:{1024*t}")
    a(f"v_add_u32 {vKA}, 0x8000, {vKA}")
    a(f"v_and_b32 {vKA}, 0x1ffff, {vKA}")
    a(f"s_add_u32 {sG}, {sG}, 8")
    for j in range(4):
        a(f"s_waitcnt lgkmcnt({3-j})")
        if j == 3: a(f"ds_write_b32 {vDA}, {vDn} offset:32")
        for i in range(4):
            a(f"v_dot2c_f32_bf16_dpp {ACC[2*i]}, v17, v{DT+4*j+i} quad_perm:[{j},{j},{j},{j}] {FULL}")
            a(f"v_dot2c_f32_bf16_dpp {ACC[2*i+1]}, v16, v{DT+4*j+i} quad_perm:[{j},{j},{j},{j}] {FULL}")
    probe("v")
    ctl("v")
    a(f"s_cmp_lt_u32 {sR}, 32")
    a(f"s_cbranch_scc1 L_v")
    stamp(5)
    if o.get("notail", 0) == 1:
        stamp(6); stamp(7)
        a("s_branch L_fin")
    a("s_nop 0")
    rows_reduce8("v15")
    a(f"v_and_b32 v10, 7, {vL}")
    a(f"v_mul_u32_u24 v10, 528, v10")
    a(f"v_and_b32 v11, 0x38, {vL}")
    a(f"s_lshl_b32 {sT[0]}, {sW}, 6")
    a(f"s_add_u32 {sT[0]}, {sT[0]}, {L_QP}")
    a(f"v_add3_u32 v10, v10, v11, {sT[0]}")
    a("s_waitcnt lgkmcnt(0)")
    a("s_barrier")
    tstamp(1)
    a(f"ds_read_b64 v[16:17], v10")
    for i in range(8): a(f"v_mov_b32 {ACC[i]}, 0")
    a("s_waitcnt lgkmcnt(0)")
    allreduce("v_add_f32", ["v16", "v17"], 3)
    a("v_cvt_pk_bf16_f32 v16, v16, v17")
    a("s_nop 0")
    for p in range(8): a(f"v_readlane_b32 {sT[p]}, v16, {8*p}")
    for p in range(8):
        for i in range(4):
            a(f"v_dot2c_f32_bf16 {ACC[2*i]}, {sT[p]}, v{WREG+8*p+i}")
            a(f"v_dot2c_f32_bf16 {ACC[2*i+1]}, {sT[p]}, v{WREG+8*p+4+i}")
    a(f"s_lshl_b32 {sT[0]}, {sW}, 11")
    a(f"v_lshl_add_u32 v10, {vL}, 5, {sT[0]}")
    a(f"s_lshl_b32 {sT[0]}, {sW}, 8")
    a(f"v_lshl_add_u32 v11, {vL}, 2, {sT[0]}")
    a(f"ds_write_b128 v10, v[24:27] offset:{L_Y}")
    a(f"ds_write_b128 v10, v[28:31] offset:{L_Y+16}")
    if TAIL == 3:
        a(f"s_lshl_b32 {sT[0]}, {sB}, 17")
        a(f"s_add_u32 s56, s28, {sT[0]}")
        a(f"s_addc_u32 s57, s29, 0")
        a(f"s_mov_b32 s58, 0x20000")
        a(f"s_lshl_b32 {sT[0]}, {sW}, 14")
        a(f"s_lshl_b32 {sT[1]}, {sH}, 7")
        a(f"s_add_u32 {sT[0]}, {sT[0]}, {sT[1]}")
        if o.get("st4", 1):
            a(f"v_bfe_u32 v13, {vL}, 3, 2")
            a(f"v_lshl_add_u32 v12, v13, 12, {sT[0]}")
            a(f"v_and_b32 v13, 7, {vL}")
            a(f"v_lshl_add_u32 v12, v13, 4, v12")
            a(f"v_lshrrev_b32 v13, 5, {vL}")
            a(f"v_lshl_add_u32 v12, v13, 17, v12")
            a(f"v_and_b32 v11, 31, {vL}")
            a(f"s_lshl_b32 {sT[0]}, {sW}, 8")
            a(f"v_lshl_add_u32 v11, v11, 3, {sT[0]}")
            a(f"v_lshl_add_u32 v11, v13, 13, v11")
            a("s_waitcnt lgkmcnt(0)")
            a("s_barrier")
            tstamp(2)
            for i in range(4): a(f"ds_read_b64 v[{16+2*i}:{17+2*i}], v11 offset:{L_Y + 2048*i}")
            a(f"s_lshl_b32 {sT[0]}, {sH}, 12")
            a(f"v_lshl_add_u32 v13, {vL}, 4, {sT[0]}")
            a("s_waitcnt lgkmcnt(0)")
            for i in range(4): a(f"v_add_f32 v{16+i}, v{16+i}, v{20+i}")
            a("v_add_f32 v20, v16, v18")
            a("v_add_f32 v21, v17, v19")
            a("v_add_f32 v22, v16, v18")
            a("v_add_f32 v23, v17, v19")
            a(f"v_mov_b32 v17, {sE}")
            a("v_permlane32_swap_b32 v20, v22")
            a("v_permlane32_swap_b32 v21, v23")
            a(f"v_mov_b32 v19, {sE}")
            a("v_add_f32 v16, v20, v22")
            a("v_add_f32 v18, v21, v23")
            a(f"buffer_store_dwordx4 v[16:19], v12, {W2}, 0 offen {o.get('stp', 'sc1')}")
        else:
            a(f"v_lshl_add_u32 v12, {vRow}, 12, {sT[0]}")
            a(f"v_lshl_add_u32 v12, {vCol}, 3, v12")
            a("s_waitcnt lgkmcnt(0)")
            a("s_barrier")
            tstamp(2)
            for i in range(8): a(f"ds_read_b32 v{16+i}, v11 offset:{L_Y + 2048*i}")
            a(f"s_lshl_b32 {sT[0]}, {sH}, 12")
            a(f"v_lshl_add_u32 v13, {vL}, 4, {sT[0]}")
            a("s_waitcnt lgkmcnt(0)")
            for st in (4, 2, 1):
                for i in range(st): a(f"v_add_f32 v{16+i}, v{16+i}, v{16+st+i}")
            a(f"v_mov_b32 v17, {sE}")
            a(f"buffer_store_dwordx2 v[16:17], v12, {W2}, 0 offen sc1")
        tstamp(3)
        stamp(6); stamp(7); tstamp(4)
        a(f"s_cmp_lg_u32 {sW}, 0")
        a(f"s_cbranch_scc1 L_fin")
        if STAMP == 1: a("s_mov_b32 s79, 0")
        a("L_poll:")
        if STAMP == 1: a("s_add_u32 s79, s79, 1")
        for i in range(4): a(f"buffer_load_dwordx4 v[{32+4*i}:{35+4*i}], v13, {W2}, 0 offen offset:{1024*i} {o.get('plp', 'sc1')}")
        a(f"s_mov_b64 s[44:45], exec")
        if BOUND:
            a(f"s_sub_u32 {sSpin}, {sSpin}, 16")
            a(f"s_cbranch_scc1 L_end")
        if o.get("psl", 0): a(f"s_sleep {o['psl']}")
        a("s_waitcnt vmcnt(0)")
        for i in range(8): a(f"v_cmpx_eq_u32 vcc, v17, v{33+2*i}")
        a(f"s_andn2_b64 exec, s[44:45], exec")
        a(f"s_cbranch_execnz L_poll")
        a(f"s_mov_b64 exec, -1")
        tstamp(4)
        for st in (8, 4):
            for i in range(0, st, 2): a(f"v_add_f32 v{32+i}, v{32+i}, v{32+st+i}")
        a("s_nop 1")
        a("v_permlane32_swap_b32 v32, v34")
        a("v_add_f32 v32, v32, v34")
        a("v_mov_b32 v33, v32"); a("s_nop 1")
        a("v_permlane16_swap_b32 v32, v33")
        a("v_add_f32 v32, v32, v33")
        a("s_nop 1")
        a(f"v_add_f32_dpp v32, v32, v32 row_ror:8 {FULL}")
        rbf("v32")
        a("v_add_f32 v32, v145, v32")
        rbf("v32")
        a("v_add_f32 v32, v32, v146")
        a("v_cvt_pk_bf16_f32 v32, v32, v32")
        a("s_mov_b32 exec_lo, 0xff")
        a("s_mov_b32 exec_hi, 0xff")
        a(f"global_store_short v147, v32, s[24:25]")
        a(f"s_cmp_lg_u32 {sH}, 0")
        a(f"s_cbranch_scc1 L_nob")
        a(f"s_lshl_b32 {sT[0]}, {sB}, 8")
        a(f"s_add_u32 {sT[0]}, {sT[0]}, 0x180000")
        a(f"v_mov_b32 v16, {sT[0]}")
        a(f"s_mov_b64 exec, 1")
        a(f"global_store_dword v16, v17, s[28:29]")
        a("L_nob:")
        a(f"s_mov_b64 exec, -1")
    else:
        a(f"s_lshl_b32 {sT[0]}, s2, 11")
        a(f"s_add_u32 s56, s28, {sT[0]}")
        a(f"s_addc_u32 s57, s29, 0")
        a(f"s_mov_b32 s58, 2048")
        a("s_waitcnt lgkmcnt(0)")
        a("s_barrier")
        tstamp(2)
        for i in range(8): a(f"ds_read_b32 v{16+i}, v11 offset:{L_Y + 2048*i}")
        a("s_waitcnt lgkmcnt(0)")
        for st in (4, 2, 1):
            for i in range(st): a(f"v_add_f32 v{16+i}, v{16+i}, v{16+st+i}")
        a(f"buffer_store_dword v16, v11, {W2}, 0 offen sc1")
        tstamp(3)
        a("s_waitcnt vmcnt(0)")
        a("s_barrier")
        stamp(6)
        if o.get("notail", 0) == 2:
            stamp(7)
            a("s_branch L_fin")
        a(f"s_cmp_lg_u32 {sW}, 0")
        a(f"s_cbranch_scc1 L_wait")
        a(f"s_lshl_b32 {sT[0]}, {sB}, 2")
        a(f"v_mov_b32 v16, {sT[0]}")
        a(f"v_mov_b32 v17, 1")
        a(f"s_mov_b64 exec, 1")
        a(f"global_atomic_add v18, v16, v17, s[26:27] sc0 sc1")
        a("s_waitcnt vmcnt(0)")
        a(f"ds_write_b32 {vF}, v18 offset:12")
        a(f"s_mov_b64 exec, -1")
        a("s_waitcnt lgkmcnt(0)")
        a("L_wait:")
        a("s_barrier")
        a(f"ds_read_b32 v18, {vF} offset:12")
        a("s_waitcnt lgkmcnt(0)")
        a(f"v_readfirstlane_b32 {sT[0]}, v18")
        stamp(7)
        a(f"s_cmp_lg_u32 {sT[0]}, 31")
        a(f"s_cbranch_scc1 L_fin")
        a(f"s_lshl_b32 {sT[0]}, {sB}, 16")
        a(f"s_add_u32 s56, s28, {sT[0]}")
        a(f"s_addc_u32 s57, s29, 0")
        a(f"s_mov_b32 s58, 65536")
        a(f"s_lshl_b32 {sT[0]}, {sW}, 8")
        a(f"v_lshl_add_u32 v10, {vCol}, 4, {sT[0]}")
        a(f"v_lshl_add_u32 v10, {vRow}, 14, v10")
        for i in range(8):
            if i % 2 == 0: a(f"s_movk_i32 {sT[1]}, {2048*i}")
            a(f"buffer_load_dwordx4 v[{32+4*i}:{35+4*i}], v10, {W2}, {sT[1]} offen offset:{2048*(i%2)} sc1")
        a(f"s_lshl_b32 {sT[0]}, {sW}, 6")
        a(f"v_lshl_add_u32 v11, {vCol}, 2, {vRow}")
        a(f"v_add_u32 v11, {sT[0]}, v11")
        a(f"v_lshlrev_b32 v12, 1, v11")
        a(f"global_load_ushort v13, v12, s[4:5]")
        a(f"s_lshl_b32 {sT[0]}, {sB}, 11")
        a(f"s_add_u32 {sT[0]}, {sT[0]}, 0x80000")
        a(f"v_lshl_add_u32 v11, v11, 2, {sT[0]}")
        a(f"global_load_dword v14, v11, s[28:29] sc1")
        a("s_waitcnt vmcnt(2)")
        tstamp(4)
        for st in (16, 8, 4):
            for i in range(st): a(f"v_add_f32 v{32+i}, v{32+i}, v{32+st+i}")
        a("s_nop 0")
        a("v_permlane32_swap_b32 v32, v34")
        a("v_permlane32_swap_b32 v33, v35")
        a("v_add_f32 v32, v32, v34")
        a("v_add_f32 v33, v33, v35")
        a("s_nop 1")
        a("v_permlane16_swap_b32 v32, v33")
        a("v_add_f32 v16, v32, v33")
        rbf("v16")
        a("s_waitcnt vmcnt(0)")
        a("v_lshlrev_b32 v13, 16, v13")
        a("v_add_f32 v16, v13, v16")
        rbf("v16")
        a("v_add_f32 v16, v16, v14")
        a("v_cvt_pk_bf16_f32 v16, v16, v16")
        a(f"s_lshl_b32 {sT[0]}, {sB}, 10")
        a(f"v_add_u32 v12, {sT[0]}, v12")
        a(f"global_store_short v12, v16, s[24:25]")
    a("L_fin:")
    if o.get("pin", 0):
        a("L_pin:")
        a("s_memrealtime s[62:63]")
        a("s_waitcnt lgkmcnt(0)")
        a("s_sub_u32 s62, s62, s60")
        a(f"s_cmp_lt_u32 s62, {o['pin']}")
        a("s_cbranch_scc1 L_pin")
    stamp(8)
    if STAMP == 1:
        a("s_waitcnt lgkmcnt(0)")
        a(f"s_mul_i32 {sT[0]}, s2, 9")
        a(f"s_add_u32 {sT[0]}, {sT[0]}, {sW}")
        a(f"s_add_u32 {sT[0]}, {sT[0]}, 1")
        a(f"s_lshl_b32 {sT[0]}, {sT[0]}, 7")
        a(f"s_add_u32 {sT[0]}, {sT[0]}, 0x100000")
        a(f"v_mov_b32 v16, 0")
        for i in range(18): a(f"v_writelane_b32 v16, s{60+i}, {i}")
        a(f"s_getreg_b32 {sT[1]}, hwreg(HW_REG_XCC_ID)")
        a(f"s_getreg_b32 {sT[2]}, hwreg(HW_REG_HW_ID)")
        a(f"v_writelane_b32 v16, {sT[1]}, 18")
        a(f"v_writelane_b32 v16, {sT[2]}, 19")
        a(f"v_writelane_b32 v16, {sSpin}, 20")
        a(f"v_writelane_b32 v16, s79, 21")
        a(f"v_lshl_add_u32 v17, {vL}, 2, {sT[0]}")
        a(f"s_mov_b64 exec, 0xffffffff")
        a(f"global_store_dword v17, v16, s[28:29]")
    if STAMP == 2:
        a("s_waitcnt lgkmcnt(0)")
        a(f"s_cmp_gt_i32 {sW}, 0")
        a("s_cbranch_scc1 L_end")
        a(f"v_mov_b32 v16, 0")
        a(f"s_not_b32 {sT[1]}, s60")
        a(f"v_writelane_b32 v16, {sT[1]}, 0")
        for i in range(6): a(f"v_writelane_b32 v16, s{66+2*i}, {i+1}")
        a(f"s_not_b32 {sT[1]}, s70")
        a(f"v_writelane_b32 v16, {sT[1]}, 7")
        a(f"v_lshlrev_b32 v17, 2, {vL}")
        a(f"s_mov_b64 exec, 0xff")
        a(f"global_atomic_umax v17, v16, s[26:27] offset:32 sc1")
    a("L_end:")
    a("s_endpgm")

    head = open("cdna_kernels/%s.s.ref" % NAME).read().split("; Override launch")[0]
    out = head + f"; @launch grid=(256,1,1) block=(576,1,1) lds={LDS_BYTES}\n"
    out += '.amdgcn_target "amdgcn-amd-amdhsa--gfx950"\n.text\n'
    out += f".globl {NAME}_kernel\n.p2align 8\n.type {NAME}_kernel,@function\n" + a.text()
    out += f""".section .rodata,"a"
.p2align 6
.amdhsa_kernel {NAME}_kernel
  .amdhsa_next_free_vgpr 168
  .amdhsa_next_free_sgpr 80
  .amdhsa_accum_offset 168
  .amdhsa_group_segment_fixed_size 0
  .amdhsa_kernarg_size 104
  .amdhsa_user_sgpr_count 2
  .amdhsa_user_sgpr_kernarg_segment_ptr 1
  .amdhsa_system_sgpr_workgroup_id_x 1
  .amdhsa_float_denorm_mode_32 3
.end_amdhsa_kernel
"""
    return out
if __name__ == "__main__":
    opts = {}
    for kv in sys.argv[2:]:
        k, v = kv.split("=")
        try: opts[k] = int(v, 0)
        except ValueError: opts[k] = v.replace("+", " ")
    open(sys.argv[1], "w").write(gen(opts))
```

```python
import sys, struct, math
NAME = "parallel_sum__mha_block_cached__mixer_token_mlp__decode"
def f2u(x): return struct.unpack("<I", struct.pack("<f", x))[0]
class Asm:
    def __init__(self): self.lines = []
    def __call__(self, s):
        s = s.strip()
        self.lines.append(s if s.endswith(":") else "    " + s)
    def c(self, s): self.lines.append("    ; " + s)
    def text(self): return "\n".join(self.lines) + "\n"

def gen(o):
    D = o.get("d", 20)
    STAMP = o.get("stamp", 0)
    ROT = o.get("rot", 0)
    BOUND = o.get("bound", 1)
    WOR = o.get("wor", 6)
    WQP = o.get("wqp", 0)
    SLEEP = o.get("sleep", 0)
    WP = o.get("wp", "")
    WOS = o.get("wos", 1)
    TAIL = o.get("tail", 3)
    WOP = o.get("wop", "nt")
    SPF = o.get("spf", 0)
    WOT = o.get("wot", 1)
    WOM = o.get("wom", 3); WOD = o.get("wod", 2)
    assert WOR + 7 * WOS < 15 and WOR + 15 * WOM // WOD < 32
    sE = "s3"
    FB = o.get("fb", 0)
    FP = o.get("fp", 8)
    FS = o.get("fs", 2)
    FG0 = o.get("fg0", 40)
    FDL = o.get("fdl", 2)
    FK0 = o.get("fk0", 4)
    FR = o.get("frep", 64)
    FLEAD = o.get("flead", 0)
    sTg = "s78"
    a = Asm()
    FULL = "row_mask:0xf bank_mask:0xf"
    l2e = 1.0 / math.log(2.0)
    sB, sH, sW = "s30", "s31", "s32"
    sOff, sR, sG = "s33", "s34", "s35"
    R = "s[36:39]"
    sM1, sD1, sM2, sD2 = "s40", "s41", "s42", "s43"
    sT = [f"s{44+i}" for i in range(8)]
    sHI, sB2, sSpin, sK = "s52", "s53", "s54", "s55"
    W2 = "s[56:59]"
    sL2E, sC1 = "s14", "s15"
    L_SC = 131072
    L_QP = L_SC + 16384
    L_XN = L_QP + 4352
    L_BP = L_XN + 1024
    L_FL = L_BP + 512
    LDS_BYTES = L_FL + 256
    L_Y = 0
    vL, vRow, vCol, vF = "v0", "v1", "v2", "v3"
    WREG = 64
    QF = 48
    DT = 32
    ACC = [f"v{24+i}" for i in range(8)]
    def wslot(j): return f"v[{WREG+4*j}:{WREG+4*j+3}]"
    nlab = [0]
    def lab(p):
        nlab[0] += 1; return f"L_{p}{nlab[0]}"
    TS = o.get("ts", 0)
    def tstamp(i):
        if TS: a(f"s_memrealtime s[{60+2*i}:{61+2*i}]")
    def stamp(i):
        if STAMP in (1, 2) or (STAMP in (3, 4) and i == 0) or (STAMP == 5 and i in (0, 5)): a(f"s_memrealtime s[{60+2*i}:{61+2*i}]")
    def wave_reduce(op, v, sdst):
        for ctl in ["quad_perm:[1,0,3,2] "+FULL, "quad_perm:[2,3,0,1] "+FULL, "row_half_mirror "+FULL, "row_mirror "+FULL,
                    "row_bcast:15 row_mask:0xa bank_mask:0xf", "row_bcast:31 row_mask:0xc bank_mask:0xf"]:
            a("s_nop 1"); a(f"{op}_dpp {v}, {v}, {v} {ctl}")
        a("s_nop 1"); a(f"v_readlane_b32 {sdst}, {v}, 63")
    def allreduce(op, regs, steps):
        for ctl in ["quad_perm:[1,0,3,2]", "quad_perm:[2,3,0,1]", "row_half_mirror", "row_mirror"][:steps]:
            if len(regs) < 3: a(f"s_nop {2-len(regs)}")
            for v in regs: a(f"{op}_dpp {v}, {v}, {v} {ctl} {FULL}")
    def rbf(v):
        a(f"v_cvt_pk_bf16_f32 {v}, {v}, {v}"); a(f"v_and_b32 {v}, {sHI}, {v}")
    def spin(off, cmp, val, tmpv, tmps):
        l0, l1 = lab("sp"), lab("go")
        a(f"{l0}:")
        a(f"ds_read_b32 {tmpv}, {vF} offset:{off}")
        a("s_waitcnt lgkmcnt(0)")
        a(f"v_readfirstlane_b32 {tmps}, {tmpv}")
        a(f"{cmp} {tmps}, {val}")
        if BOUND or SLEEP:
            a(f"s_cbranch_scc1 {l1}")
            if SLEEP: a(f"s_sleep {SLEEP}")
            if BOUND:
                a(f"s_sub_u32 {sSpin}, {sSpin}, 1")
                a(f"s_cbranch_scc1 L_end")
            a(f"s_branch {l0}")
            a(f"{l1}:")
        else:
            a(f"s_cbranch_scc0 {l0}")
    def rows_sum(v, t):
        a(f"v_mov_b32 {t}, {v}"); a("s_nop 1"); a(f"v_permlane32_swap_b32 {v}, {t}"); a(f"v_add_f32 {v}, {v}, {t}")
        a(f"v_mov_b32 {t}, {v}"); a("s_nop 1"); a(f"v_permlane16_swap_b32 {v}, {t}"); a(f"v_add_f32 {v}, {v}, {t}")
    def rows_reduce8(vaddr):
        for i in range(4): a(f"v_permlane32_swap_b32 {ACC[i]}, {ACC[i+4]}")
        for i in range(4): a(f"v_add_f32 {ACC[i]}, {ACC[i]}, {ACC[i+4]}")
        a("s_nop 0")
        for i in range(2): a(f"v_permlane16_swap_b32 {ACC[i]}, {ACC[i+2]}")
        for i in range(2): a(f"v_add_f32 {ACC[i]}, {ACC[i]}, {ACC[i+2]}")
        a(f"ds_write_b64 {vaddr}, v[24:25]")

    def probe(tag):
        PR = o.get("probe", 0)
        if not PR: return
        PP = o.get("pp", 4)
        a(f"s_and_b32 {sT[1]}, {sR}, {PP-1}")
        a(f"s_or_b32 {sT[1]}, {sT[1]}, {sW}")
        a(f"s_cbranch_scc1 L_np{tag}")
        a(f"v_mov_b32 v150, 1")
        if PR in (1, 2):
            a(f"v_mov_b32 v149, 0x200000")
            a(f"s_mov_b64 exec, 1")
            a(f"global_atomic_add v151, v149, v150, s[28:29] sc0 {'sc1' if PR == 1 else ''}")
            a(f"s_mov_b64 exec, -1")
        elif PR == 3:
            a(f"s_add_u32 {sT[1]}, s2, 0x200000")
            a(f"v_mov_b32 v149, {sT[1]}")
            a(f"s_mov_b64 exec, 1")
            a(f"global_store_byte v149, v150, s[28:29] sc1")
            a(f"s_mov_b64 exec, -1")
            a(f"v_lshlrev_b32 v149, 2, {vL}")
            a(f"v_add_u32 v149, 0x200000, v149")
            a(f"global_load_dword v151, v149, s[28:29] sc1")
        elif PR == 4:
            a(f"s_lshl_b32 {sT[1]}, s2, 8")
            a(f"s_add_u32 {sT[1]}, {sT[1]}, 0x200000")
            a(f"v_mov_b32 v149, {sT[1]}")
            a(f"s_mov_b64 exec, 1")
            a(f"global_store_dword v149, v150, s[28:29] sc1")
            a(f"s_mov_b64 exec, {hex((1 << o.get('np', 16)) - 1)}")
            a(f"v_mul_u32_u24 v149, {256 * 17}, {vL}")
            a(f"v_add_u32 v149, {sT[1]}, v149")
            a(f"v_and_b32 v149, 0x20ffff, v149")
            a(f"global_load_dword v151, v149, s[28:29] sc1")
            a(f"s_mov_b64 exec, -1")
        elif PR == 5:
            a(f"s_lshl_b32 {sT[1]}, {sB}, 12")
            a(f"s_add_u32 {sT[1]}, {sT[1]}, 0x200000")
            a(f"v_mov_b32 v149, {sT[1]}")
            a(f"s_mov_b64 exec, 1")
            a(f"global_atomic_add v151, v149, v150, s[28:29] sc0 sc1")
            a(f"s_mov_b64 exec, -1")
        elif PR in (6, 7):
            if PR == 6: a(f"s_mov_b32 {sT[1]}, 0x200000")
            else:
                a(f"s_lshl_b32 {sT[1]}, {sB}, 12")
                a(f"s_add_u32 {sT[1]}, {sT[1]}, 0x200000")
            a(f"s_mov_b32 {sT[2]}, 1")
            a(f"s_atomic_add {sT[2]}, s[28:29], {sT[1]} glc")
            a("s_waitcnt lgkmcnt(0)")
        elif PR == 8:
            a(f"s_lshr_b32 {sT[1]}, s2, {o.get('gs', 3)}")
            a(f"s_mul_i32 {sT[1]}, {sT[1]}, {o.get('ls', 4352)}")
            if o.get("fr", 1):
                a(f"s_lshl_b32 {sT[2]}, {sG}, 18")
                a(f"s_add_u32 {sT[1]}, {sT[1]}, {sT[2]}")
            a(f"s_add_u32 {sT[1]}, {sT[1]}, 0x200000")
            a(f"s_mov_b32 {sT[2]}, 1")
            if o.get("ld", 0): a(f"s_load_dword {sT[2]}, s[28:29], {sT[1]} glc")
            else: a(f"s_atomic_add {sT[2]}, s[28:29], {sT[1]} glc")
            a("s_waitcnt lgkmcnt(0)")
        a(f"L_np{tag}:")
    def ctl(tag):
        if FB != 2: return
        a(f"s_sub_u32 {sT[1]}, {sG}, {FG0 + 8}")
        a(f"s_cbranch_scc1 L_nc{tag}")
        a(f"s_and_b32 {sT[2]}, {sT[1]}, {8*FP - 1}")
        a(f"s_lshr_b32 {sT[1]}, {sT[1]}, {(8*FP).bit_length() - 1}")
        a(f"s_cmp_ge_u32 {sG}, {o.get('fend', 480)}")
        a(f"s_cbranch_scc1 L_nc{tag}")
        a(f"s_mul_i32 {sT[3]}, {sT[1]}, {FR * 4352}")
        a(f"s_add_u32 {sT[3]}, {sT[3]}, 0x200000")
        a(f"s_cmp_eq_u32 s2, {FLEAD}")
        a(f"s_cbranch_scc1 L_cl{tag}")
        a(f"s_and_b32 {sT[2]}, {sT[2]}, {hex(0xffffffff ^ (7 * FS))}")
        a(f"s_cbranch_scc1 L_nc{tag}")
        a(f"s_and_b32 {sT[2]}, s2, {FR - 1}")
        a(f"s_mul_i32 {sT[2]}, {sT[2]}, 4352")
        a(f"s_add_u32 {sT[3]}, {sT[3]}, {sT[2]}")
        a(f"s_load_dword {sT[2]}, s[28:29], {sT[3]} glc")
        a(f"s_lshl_b32 {sT[1]}, {sT[1]}, 2")
        a(f"v_add_u32 v10, {sT[1]}, {vF}")
        a(f"s_waitcnt lgkmcnt(0)")
        a(f"s_cmp_eq_u32 {sT[2]}, {sTg}")
        a(f"s_cbranch_scc0 L_nc{tag}")
        a(f"v_mov_b32 v11, 1")
        a(f"s_mov_b64 exec, 1")
        a(f"ds_add_u32 v10, v11 offset:132")
        a(f"s_mov_b64 exec, -1")
        a(f"s_branch L_nc{tag}")
        a(f"L_cl{tag}:")
        a(f"s_cmp_eq_u32 {sT[2]}, {4*FS - FDL}")
        a(f"s_cbranch_scc0 L_nc{tag}")
        a(f"v_mul_u32_u24 v10, 4352, {vL}")
        a(f"v_add_u32 v10, {sT[3]}, v10")
        a(f"v_mov_b32 v11, {sTg}")
        if FR < 64: a(f"s_mov_b64 exec, {hex((1 << FR) - 1)}")
        a(f"global_store_dword v10, v11, s[28:29] sc1")
        if FR < 64: a(f"s_mov_b64 exec, -1")
        a(f"L_nc{tag}:")
    a(f"{NAME}_kernel:")
    a("s_cmpk_ge_u32 s2, 256")
    a("s_cbranch_scc1 L_end")
    a("s_load_dwordx16 s[4:19], s[0:1], 0")
    a("s_load_dwordx8 s[20:27], s[0:1], 64")
    a("s_load_dwordx2 s[28:29], s[0:1], 96")
    stamp(0)
    if o.get("map", 0) == 1:
        a("s_and_b32 s3, s2, 7")
        a("s_lshl_b32 s3, s3, 2")
        a("s_bfe_u32 s44, s2, 0x20003")
        a("s_or_b32 s3, s3, s44")
        a("s_and_b32 s2, s2, 0xe0")
        a("s_or_b32 s2, s2, s3")
    a(f"v_lshrrev_b32 v4, 6, v0")
    a(f"v_and_b32 {vL}, 63, v0")
    a(f"v_readfirstlane_b32 {sW}, v4")
    a(f"v_mov_b32 {vF}, {L_FL}")
    a(f"v_lshl_add_u32 v9, {vL}, 2, {vF}")
    a(f"v_mov_b32 v10, 0")
    a(f"ds_write_b32 v9, v10")
    a(f"v_lshrrev_b32 {vRow}, 4, {vL}")
    a(f"v_and_b32 {vCol}, 15, {vL}")
    a(f"s_mov_b32 s39, 0x20000")
    a(f"s_mov_b32 s38, 0x100000")
    a(f"s_lshl_b32 {sT[0]}, s2, 20")
    a(f"v_xor_b32 v4, {vCol}, {vRow}")
    a(f"v_lshlrev_b32 v4, 4, v4")
    a(f"v_lshl_add_u32 v4, {vRow}, 8, v4")
    a(f"v_xor_b32 v5, 64, v4")
    a(f"v_xor_b32 v6, 0x80, v4")
    a(f"v_xor_b32 v7, 64, v6")
    js = (D - 1) % 4
    sMask = "s40"
    RS = o.get("rs", 4); DS = o.get("ds", 24); jss = (DS - 1) % 4
    a(f"v_mov_b32 v8, {(jss - DS - 3)//4 if RS else (js - D - 3)//4}")
    a(f"s_mov_b32 {sOff}, 0")
    a(f"s_mov_b32 m0, 0")
    a(f"s_movk_i32 {sMask}, 0x100")
    a(f"s_mov_b32 {sR}, 0")
    a(f"s_sub_u32 {sW}, {sW}, 1")
    a("s_waitcnt lgkmcnt(0)")
    a("s_barrier")
    a("s_cbranch_scc0 L_cons")

    a("s_setprio 3")
    if o.get("ss", 0): a("s_memrealtime s[62:63]")
    if o.get("lk", -1) == 0: a("s_memrealtime s[64:65]")
    a(f"s_add_u32 s36, s6, {sT[0]}")
    a(f"s_addc_u32 s37, s7, 0")
    if o.get("skew", 0):
        a(f"s_and_b32 s70, s2, {o.get('skm', 0)}")
        a(f"s_cmp_lg_u32 s70, {o.get('skv', 0)}")
        a("s_cbranch_scc1 L_nsk")
        a("s_mov_b32 s70, s60")
        a("s_atomic_umax s70, s[26:27], 0")
        a("L_nsk:")
        a("s_not_b32 s71, s60")
        a("s_atomic_umax s71, s[26:27], 4")
    if RS:
        a("L_ls:")
        for j in range(4):
            a(f"s_waitcnt vmcnt({DS-1})")
            if j == jss:
                a("v_add_u32 v8, 1, v8")
                a(f"ds_write_b32 {vF}, v8")
            a(f"buffer_load_dwordx4 v{4+j}, {R}, {sOff} offen offset:{1024*j} nt lds")
        a(f"s_addk_i32 {sOff}, 4096")
        a(f"s_and_b32 m0, {sOff}, 0x1ffff")
        if o.get("lk", -1) > 0:
            a(f"s_cmp_lg_u32 {sOff}, {o['lk']*4096}")
            a(f"s_cbranch_scc1 L_lk")
            a("s_memrealtime s[64:65]")
            a("L_lk:")
        a(f"s_cmp_lg_u32 {sOff}, {RS*32768}")
        a(f"s_cbranch_scc1 L_ls")
        a(f"v_mov_b32 v8, {(32*RS + js - D - 3)//4}")
        a(f"s_branch L_ld0")
    a("L_ld:")
    if FB:
        a(f"s_bitcmp1_b32 {sMask}, 0")
        a(f"s_cbranch_scc0 L_nd")
        a(f"buffer_load_dword v12, v4, {R}, s38 offen")
        a(f"L_nd:")
    for j in range(4):
        a(f"s_waitcnt vmcnt({D-1})")
        if j == js:
            a("v_add_u32 v8, 1, v8")
            a(f"ds_write_b32 {vF}, v8")
        a(f"buffer_load_dwordx4 v{4+j}, {R}, {sOff} offen offset:{1024*j} nt lds")
    a(f"s_addk_i32 {sOff}, 4096")
    a(f"s_and_b32 m0, {sOff}, 0x1ffff")
    a(f"s_lshr_b32 {sMask}, {sMask}, 1")
    a(f"s_cmp_lg_u32 {sMask}, 1")
    a(f"s_cbranch_scc1 L_ld")
    if RS: a(f"s_branch L_ld1")
    else:
        a(f"s_cmp_lg_u32 {sR}, 0")
        a(f"s_cbranch_scc1 L_ld1")
    a("L_ld0:")
    if RS: a(f"s_mov_b32 {sR}, {RS-1}")
    a(f"s_add_u32 s8, s8, {sT[0]}")
    a(f"s_addc_u32 s9, s9, 0")
    a(f"s_mov_b32 {sSpin}, 0x100000")
    a(f"v_and_b32 v9, 7, {vL}")
    a(f"v_lshl_add_u32 v9, v9, 2, {vF}")
    a(f"v_mov_b32 v11, {max(RS-1, 0) - 3}")
    if STAMP == 1: a("s_mov_b32 s79, 0")
    if FB == 2:
        a(f"v_mov_b32 v14, {FK0}")
        a(f"ds_write_b32 {vF}, v14 offset:128")
        a(f"v_mov_b32 v15, {vF}")
        a(f"s_cmp_eq_u32 s2, {FLEAD}")
        a(f"s_cselect_b32 s41, 0, 4")
        tab = [0xff, 0x7f, 0x77, 0x75, 0x55, 0x51, 0x11, 0x10]
        a(f"s_mov_b32 s46, {hex(sum(tab[i] << (8*i) for i in range(4)))}")
        a(f"s_mov_b32 s47, {hex(sum(tab[4+i] << (8*i) for i in range(4)))}")
    a("L_ld1:")
    a(f"s_add_u32 {sR}, {sR}, 1")
    a(f"v_add_u32 v11, 1, v11")
    if STAMP == 1:
        for k, rr in zip((1,2,3,6,7), str(o.get("marks", "2,4,6,8,16")).split(",")):
            a(f"s_cmp_lg_u32 {sR}, {rr}")
            a(f"s_cbranch_scc1 L_mk{k}")
            a(f"s_memrealtime s[{60+2*k}:{61+2*k}]")
            a(f"L_mk{k}:")
    if STAMP == 4:
        for k, rr in ((1, o.get("m0", 99)), (2, o["m1"])):
            a(f"s_cmp_lg_u32 {sR}, {rr}")
            a(f"s_cbranch_scc1 L_mk{k}")
            a(f"s_memrealtime s[{60+2*k}:{61+2*k}]")
            a(f"L_mk{k}:")
    a(f"s_cmp_lg_u32 {sR}, 32")
    a(f"s_cbranch_scc1 L_ldnv")
    a(f"s_mov_b32 s36, s8")
    a(f"s_mov_b32 s37, s9")
    a(f"s_mov_b32 {sOff}, 0")
    for j in range(4): a(f"v_lshlrev_b32 v{4+j}, 4, {vL}")
    stamp(4)
    a("L_ldnv:")
    a(f"s_cmp_eq_u32 {sR}, 64")
    a(f"s_cbranch_scc1 L_drain")
    a("L_ldck:")
    a("s_waitcnt lgkmcnt(0)")
    a(f"v_cmp_lt_i32 vcc, v10, v11")
    a(f"s_cbranch_vccnz L_ldslow")
    a(f"s_mov_b32 {sMask}, 0x100")
    if FB == 2:
        a(f"v_readfirstlane_b32 s42, v14")
        if STAMP == 1:
            a(f"s_add_u32 s79, s79, 8"); a(f"s_sub_u32 s79, s79, s42")
        a(f"s_lshl_b32 s42, s42, 3")
        a(f"s_lshr_b64 s[48:49], s[46:47], s42")
        a(f"s_and_b32 s48, s48, 0xff")
        a(f"s_cmp_lt_u32 {sR}, 63")
        a(f"s_cselect_b32 s48, s48, 0")
        a(f"s_cmp_lt_u32 s42, 64")
        a(f"s_cselect_b32 s48, s48, 0")
        a(f"s_or_b32 {sMask}, {sMask}, s48")
        RA = (FG0 + 8*FS + D//4 + 8 + 7) // 8
        a(f"s_and_b32 s42, {sR}, {FP-1}")
        a(f"s_cmp_eq_u32 s42, {RA % FP}")
        a(f"s_cselect_b32 s42, s41, 0")
        if RA >= FP:
            a(f"s_cmp_ge_u32 {sR}, {RA}")
            a(f"s_cselect_b32 s42, s42, 0")
        a(f"v_add_u32 v15, s42, v15")
        a(f"ds_read_b32 v14, v15 offset:128")
    a(f"ds_read_b32 v10, v9 offset:32")
    a(f"s_branch L_ld")
    a("L_drain:")
    pub = (2044 + js - D - 3)//4 + 1
    while pub < 512:
        pub += 1
        a(f"s_waitcnt vmcnt({2048 - 4*pub})")
        a("v_add_u32 v8, 1, v8")
        a(f"ds_write_b32 {vF}, v8")
    stamp(5)
    if STAMP == 4:
        a("s_barrier"); a("s_barrier")
        a("s_waitcnt lgkmcnt(0)")
        if "swg" in o:
            a(f"s_cmp_lg_u32 s2, {o['swg']}")
            a("s_cbranch_scc1 L_end")
        if o.get("skew", 0):
            a("s_load_dwordx2 s[64:65], s[26:27], 0 glc")
            a("s_waitcnt lgkmcnt(0)")
            a("s_not_b32 s65, s65")
            a("s_sub_u32 s64, s64, s65")
        else:
            a(f"s_sub_u32 s64, s64, {'s62' if 'm0' in o else 's60'}")
        a(f"s_sub_u32 s64, s64, {o.get('sub', 0)}")
        if o.get("neg", 0): a("s_sub_u32 s64, 0, s64")
        a(f"s_mul_i32 s64, s64, {o.get('amp', 10)}")
        a(f"s_add_u32 s64, s64, 10000")
        a(f"s_min_u32 s64, s64, 100000")
        a("L_pin2:")
        a("s_memrealtime s[66:67]")
        a("s_waitcnt lgkmcnt(0)")
        a("s_sub_u32 s66, s66, s60")
        a(f"s_cmp_lt_u32 s66, s64")
        a("s_cbranch_scc1 L_pin2")
    elif STAMP == 3:
        a(f"s_memrealtime s[74:75]")
        a("s_waitcnt lgkmcnt(0)")
        a(f"s_cmp_lg_u32 s2, {o.get('swg', 5)}")
        a("s_cbranch_scc1 L_end")
        for i in range(8): a(f"v_writelane_b32 v16, s{60+2*i}, {i}")
        a(f"v_subrev_u32 v16, s60, v16")
        a(f"v_lshlrev_b32 v17, 2, {vL}")
        a(f"s_mov_b64 exec, 0xff")
        a(f"global_store_dword v17, v16, s[26:27] offset:32")
    elif STAMP in (1, 2):
        if STAMP == 2:
            for i in (1,2,3,6,7): a(f"s_mov_b64 s[{60+2*i}:{61+2*i}], 0")
        a("s_branch L_fin")
    a("s_endpgm")
    a("L_ldslow:")
    a(f"ds_read_b32 v10, v9 offset:32")
    if BOUND:
        a(f"s_sub_u32 {sSpin}, {sSpin}, 1")
        a(f"s_cbranch_scc1 L_end")
    a("s_branch L_ldck")

    a("L_cons:")
    a(f"s_lshr_b32 {sB}, s2, 5")
    a(f"s_and_b32 {sH}, s2, 31")
    a(f"s_mov_b32 {sHI}, 0xffff0000")
    a(f"s_mov_b32 s59, 0x20000")
    a(f"s_lshl_b32 {sT[0]}, {sB}, 10")
    a(f"v_lshlrev_b32 v8, 4, {vL}")
    a(f"s_mov_b32 {sSpin}, 0x100000")
    a(f"s_add_u32 s4, s4, {sT[0]}")
    a(f"s_addc_u32 s5, s5, 0")
    a(f"global_load_dwordx4 v[4:7], v8, s[4:5] {WP}")
    if o.get("ipf", 1):
        a(f"s_getpc_b64 s[46:47]")
        a("L_pc:")
        a(f"s_lshl_b32 {sT[0]}, {sW}, 10")
        a(f"v_add_u32 v9, {sT[0]}, v8")
        a(f"v_min_u32 v9, L_end-L_pc-12, v9")
        a(f"global_load_dwordx4 v[16:19], v9, s[46:47]")
    a(f"s_lshl_b32 {sT[0]}, {sW}, 19")
    a(f"s_lshl_b32 {sT[1]}, {sH}, 8")
    a(f"s_add_u32 {sT[0]}, {sT[0]}, {sT[1]}")
    a(f"s_add_u32 s36, s10, {sT[0]}")
    a(f"s_addc_u32 s37, s11, 0")
    a(f"s_mov_b32 s38, {o.get('wqn', 0x80000)}")
    a(f"v_lshlrev_b32 v9, 17, {vRow}")
    a(f"v_lshl_add_u32 v9, {vCol}, 4, v9")
    if ROT: a(f"s_lshl_b32 {sT[2]}, {sB}, 14")
    else: a(f"s_mov_b32 {sT[2]}, 0")
    def wqload(j):
        a(f"s_xor_b32 {sT[3]}, {sT[2]}, {j*8192}")
        a(f"buffer_load_dwordx4 {wslot(j)}, v9, {R}, {sT[3]} offen {o.get('wqpol', 'nt')}")
    WQS = o.get("wqs", 4); PRE = o.get("pre", 3)
    NQ0 = WQP if WQP else (WQS if WQS else 16)
    if FB == 2:
        a(f"s_mov_b32 {sT[4]}, 0x180000")
        a(f"s_load_dword {sTg}, s[28:29], {sT[4]}")
    for j in range(NQ0): wqload(j)
    a(f"s_waitcnt vmcnt({NQ0})")
    stamp(1)
    ln_start = len(a.lines)
    X = [f"v{16+i}" for i in range(8)]
    def unpack(src4):
        for i in range(4):
            a(f"v_lshlrev_b32 {X[2*i]}, 16, v{src4+i}")
            a(f"v_and_b32 {X[2*i+1]}, {sHI}, v{src4+i}")
    def ln(sM, sD, write):
        a(f"v_add_f32 v24, {X[0]}, {X[1]}")
        for i in range(2, 8): a(f"v_add_f32 v24, v24, {X[i]}")
        wave_reduce("v_add_f32", "v24", sT[0])
        a("s_nop 1")
        a(f"v_mov_b32 v25, {sT[0]}")
        a(f"v_mul_f32 v25, {hex(f2u(1.0/512))}, v25")
        a(f"v_sub_f32 v26, {X[0]}, v25")
        a(f"v_mul_f32 v24, v26, v26")
        for i in range(1, 8):
            a(f"v_sub_f32 v26, {X[i]}, v25")
            a(f"v_fmac_f32 v24, v26, v26")
        wave_reduce("v_add_f32", "v24", sT[0])
        rbf("v25")
        a(f"v_mov_b32 v24, {sT[0]}")
        a(f"v_mul_f32 v24, {hex(f2u(1.0/512))}, v24")
        rbf("v24")
        a(f"v_add_f32 v24, {hex(f2u(1e-5))}, v24")
        rbf("v24")
        a(f"v_sqrt_f32 v24, v24")
        a("s_nop 0")
        rbf("v24")
        a(f"v_rcp_f32 v24, v24")
        a(f"v_readfirstlane_b32 {sM}, v25")
        a(f"v_readfirstlane_b32 {sD}, v24")
        if write:
            for i in range(8): a(f"v_sub_f32 {X[i]}, {X[i]}, v25")
            for i in range(4): a(f"v_cvt_pk_bf16_f32 v{4+i}, {X[2*i]}, {X[2*i+1]}")
            unpack(4)
            for i in range(8): a(f"v_mul_f32 {X[i]}, {X[i]}, v24")
            for i in range(4): a(f"v_cvt_pk_bf16_f32 v{4+i}, {X[2*i]}, {X[2*i+1]}")
    unpack(4)
    ln(sM1, sD1, True)
    a(f"v_add_u32 v8, {L_XN}, v8")
    a(f"ds_write_b128 v8, v[4:7]")
    a(f"s_lshl_b32 {sT[0]}, {sW}, 7")
    if ROT:
        a(f"s_lshl_b32 {sT[1]}, {sB}, 2")
        a(f"s_add_u32 {sT[0]}, {sT[0]}, {sT[1]}")
    a(f"s_add_u32 {sT[0]}, {sT[0]}, {L_XN}")
    a(f"v_lshl_add_u32 v8, {vRow}, 5, {sT[0]}")
    assert L_XN % 32 == 0
    for i in range(8):
        if i:
            a(f"v_xor_b32 v10, {4*i}, v8")
            a(f"ds_read_b32 v{QF+i}, v10")
        else:
            a(f"ds_read_b32 v{QF+i}, v8")
    for i in range(8): a(f"v_mov_b32 {ACC[i]}, 0")
    if WQP:
        body = a.lines[ln_start:]; del a.lines[ln_start:]
        nins = 16 - NQ0
        LNF = o.get("lnf", 100)
        inl = nins * LNF // 100
        pts = [int((k + 0.5) * len(body) / inl) for k in range(inl)] if inl else []
        k = 0
        for idx, line in enumerate(body):
            while k < inl and pts[k] == idx:
                a(f"s_waitcnt vmcnt({NQ0-1})"); wqload(NQ0 + k); k += 1
            a.lines.append(line)
        while k < nins:
            a(f"s_waitcnt vmcnt({NQ0-1})"); wqload(NQ0 + k); k += 1
    WQ2 = o.get("wq2", 3)
    WQL = o.get("wql", 0)
    nissued = NQ0
    if WQL:
        body = a.lines[ln_start:]; del a.lines[ln_start:]
        pts = [int(k * len(body) / WQL) for k in range(WQL)]
        k = 0
        for idx, line in enumerate(body):
            while k < WQL and pts[k] == idx:
                a(f"s_waitcnt vmcnt({WQ2-1})"); wqload(nissued); nissued += 1; k += 1
            a.lines.append(line)
    elif WQS:
        nissued = min(16, WQS + WQ2) if WQ2 else 16
        for j in range(WQS, nissued): wqload(j)
    if WQS: NQ0 = 16
    ST = [DT, 128, 144]
    def preread(n):
        if n: a(f"v_add_u32 v12, 0x8000, v12")
        for t in range(1, 4): a(f"v_xor_b32 v{19+t}, {64*t}, v12")
        a(f"s_add_u32 {sT[4]}, {sW}, {8*n}")
        spin(0, "s_cmp_gt_i32", sT[4], "v14", sT[0])
        a(f"ds_read_b128 v[{ST[n]}:{ST[n]+3}], v12")
        for t in range(1, 4): a(f"ds_read_b128 v[{ST[n]+4*t}:{ST[n]+4*t+3}], v{19+t}")
        a(f"v_mov_b32 v14, {n+1}")
        a("s_waitcnt lgkmcnt(0)")
        a(f"ds_write_b32 v13, v14 offset:32")
    PJ = [int(x) for x in str(o.get("pj", "6,11")).split(",")]
    if PRE:
        a(f"v_xor_b32 v12, {vRow}, {vCol}")
        a(f"v_lshlrev_b32 v12, 4, v12")
        a(f"v_lshl_add_u32 v12, {vCol}, 8, v12")
        a(f"s_lshl_b32 {sT[0]}, {sW}, 12")
        a(f"v_add_u32 v12, {sT[0]}, v12")
        a(f"s_lshl_b32 {sT[0]}, {sW}, 2")
        a(f"v_add_u32 v13, {sT[0]}, {vF}")
        preread(0)
    else:
        a("s_waitcnt lgkmcnt(0)")
    for j in range(16):
        for n in range(1, PRE):
            if PJ[n-1] == j: preread(n)
        src = f"v{QF + j//2}"
        if j % 2 == 0:
            a(f"v_and_b32 v10, 0xffff, {src}"); a(f"v_lshlrev_b32 v11, 16, {src}")
        else:
            a(f"v_lshrrev_b32 v10, 16, {src}"); a(f"v_and_b32 v11, {sHI}, {src}")
        if WQ2:
            a(f"s_waitcnt vmcnt({nissued - j - 1})")
            while nissued < 16 and nissued - j - 1 < WQ2:
                wqload(nissued); nissued += 1
        elif 15 - j < NQ0: a(f"s_waitcnt vmcnt({15 - j})")
        for i in range(4):
            a(f"v_dot2c_f32_bf16 {ACC[2*i]}, v10, v{WREG+4*j+i}")
            a(f"v_dot2c_f32_bf16 {ACC[2*i+1]}, v11, v{WREG+4*j+i}")
    stamp(2)
    vPA = "v23"
    a(f"s_mul_i32 {sT[0]}, {sW}, 528")
    a(f"s_add_u32 {sT[0]}, {sT[0]}, {L_QP}")
    a(f"v_lshl_add_u32 v15, {vCol}, 5, {sT[0]}")
    a(f"v_lshl_add_u32 v15, {vRow}, 3, v15")
    rows_reduce8("v15")
    a(f"v_mov_b32 v10, 1")
    a("s_waitcnt lgkmcnt(0)")
    a(f"s_mov_b64 exec, 1")
    a(f"ds_add_u32 {vF}, v10 offset:4")
    a(f"s_mov_b64 exec, -1")
    MX = 128
    for i in range(4): a(f"v_mov_b32 v{160+i}, v{4+i}")
    spin(4, "s_cmp_ge_u32", 8, "v10", sT[0])
    a(f"v_lshlrev_b32 v10, 3, {vL}")
    a(f"v_add_u32 v10, {L_QP}, v10")
    for w in range(8): a(f"ds_read_b64 v[{WREG+2*w}:{WREG+2*w+1}], v10 offset:{528*w}")
    a("s_waitcnt lgkmcnt(0)")
    for st in (8, 4, 2):
        for i in range(st): a(f"v_add_f32 v{WREG+i}, v{WREG+i}, v{WREG+st+i}")
    a(f"v_cvt_pk_bf16_f32 v{WREG}, v{WREG}, v{WREG+1}")
    a(f"v_lshlrev_b32 v10, 2, {vL}")
    a(f"v_add_u32 v10, {L_XN}, v10")
    a(f"ds_write_b32 v10, v{WREG}")
    a(f"v_lshlrev_b32 v10, 4, {vRow}")
    a(f"v_add_u32 v10, {L_XN}, v10")
    for t in range(4): a(f"ds_read_b128 v[{QF+4*t}:{QF+4*t+3}], v10 offset:{64*t}")
    vH, vMA, vC0 = "v138", "v139", "v140"
    a(f"s_mov_b32 {sL2E}, {hex(f2u(l2e))}")
    a(f"s_mov_b32 {sK}, {hex(f2u(128 ** -0.5))}")
    vKA, vSA, vDA, vM, vLs, vDn = "v4", "v5", "v6", "v7", "v8", "v9"
    a(f"v_xor_b32 {vKA}, {vRow}, {vCol}")
    a(f"v_lshlrev_b32 {vKA}, 4, {vKA}")
    a(f"v_lshl_add_u32 {vKA}, {vCol}, 8, {vKA}")
    a(f"s_lshl_b32 {sT[0]}, {sW}, 12")
    a(f"v_add_u32 {vKA}, {sT[0]}, {vKA}")
    a(f"s_lshl_b32 {sT[0]}, {sW}, 6")
    a(f"s_add_u32 {sT[0]}, {sT[0]}, {L_SC}")
    a(f"v_lshl_add_u32 {vSA}, {vCol}, 2, {sT[0]}")
    a(f"s_lshl_b32 {sT[0]}, {sW}, 2")
    a(f"v_add_u32 {vDA}, {sT[0]}, {vF}")
    a(f"v_mov_b32 {vM}, 0xff7fffff")
    a(f"v_mov_b32 {vLs}, 0")
    a(f"v_mov_b32 {vDn}, 0")
    a(f"s_mov_b32 {sG}, {sW}")
    a(f"s_mov_b32 {sR}, 0")
    a(f"s_lshl_b32 {sT[0]}, {sH}, 17")
    a(f"s_lshl_b32 {sT[1]}, {sW}, 14")
    a(f"s_add_u32 {sT[0]}, {sT[0]}, {sT[1]}")
    a(f"s_add_u32 s36, s12, {sT[0]}")
    a(f"s_addc_u32 s37, s13, 0")
    a(f"s_mov_b32 s38, {o.get('won', 16384)}")
    a(f"s_mul_i32 {sOff}, {sW}, {WOS}")
    a(f"s_add_u32 {sOff}, {sOff}, {WOR}")
    if FB == 2:
        a(f"s_add_u32 {sTg}, {sTg}, 1")
    stamp(3)
    if PRE:
        a("s_waitcnt lgkmcnt(0)")
        a("s_branch L_kmid")
    if PRE > 1:
        a("L_kst:")
        for n in range(1, PRE):
            for i in range(16): a(f"v_mov_b32 v{ST[n-1]+i}, v{ST[n]+i}")
        a("s_branch L_kmid")
    a("L_k:")
    if PRE > 1:
        a(f"s_cmp_lt_u32 {sR}, {PRE}")
        a(f"s_cbranch_scc1 L_kst")
    for t in range(1, 4): a(f"v_xor_b32 v{10+t}, {64*t}, {vKA}")
    spin(0, "s_cmp_gt_i32", sG, "v10", sT[0])
    a(f"ds_read_b128 v[{DT}:{DT+3}], {vKA}")
    for t in range(1, 4): a(f"ds_read_b128 v[{DT+4*t}:{DT+4*t+3}], v{10+t}")
    a("L_kmid:")
    a(f"v_add_u32 {vDn}, 1, {vDn}")
    a(f"v_add_u32 {vKA}, 0x8000, {vKA}")
    a(f"v_and_b32 {vKA}, 0x1ffff, {vKA}")
    for t in range(4):
        a(f"s_waitcnt lgkmcnt({3-t})")
        a(f"v_mfma_f32_16x16x32_bf16 v[16:19], v[{QF+4*t}:{QF+4*t+3}], v[{DT+4*t}:{DT+4*t+3}], {'0' if t == 0 else 'v[16:19]'}")
    if PRE > 1:
        a(f"v_max_u32 v10, {PRE}, {vDn}")
        a(f"ds_write_b32 {vDA}, v10 offset:32")
        a(f"s_add_u32 {sG}, {sG}, 8")
        a(f"s_nop 4")
    else:
        a(f"ds_write_b32 {vDA}, {vDn} offset:32")
        a(f"s_add_u32 {sG}, {sG}, 8")
        a(f"s_nop 5")
    rbf("v16")
    a(f"v_mul_f32 v16, {sK}, v16")
    rbf("v16")
    a(f"ds_write_b32 {vSA}, v16")
    a(f"v_max_f32 v17, {vM}, v16")
    a(f"v_sub_f32 v18, {vM}, v17")
    a(f"v_sub_f32 v16, v16, v17")
    a(f"v_mul_f32 v18, {sL2E}, v18")
    a(f"v_mul_f32 v16, {sL2E}, v16")
    a(f"v_exp_f32 v18, v18")
    a(f"v_exp_f32 v16, v16")
    a(f"v_mov_b32 {vM}, v17")
    a(f"v_add_u32 {vSA}, 512, {vSA}")
    a(f"v_fma_f32 {vLs}, {vLs}, v18, v16")
    ctl("k")
    a(f"v_lshlrev_b32 v10, 4, {vL}")
    if WOT:
        rounds = {}
        for j in range(16): rounds.setdefault(WOR + j * WOM // WOD, []).append(j)
        if SPF:
            for j in range(16): rounds.setdefault(WOR + j * WOM // WOD - SPF, []).append(-1 - j)
        for rr, js_ in sorted(rounds.items()):
            a(f"s_cmp_lg_u32 {sR}, {rr}")
            a(f"s_cbranch_scc1 L_wo{rr}")
            for j in js_:
                if j < 0:
                    jj = -1 - j
                    a(f"s_lshl_b32 {sT[1]}, {sB}, 7")
                    a(f"s_add_u32 {sT[1]}, {sT[1]}, {1024*jj}")
                    a(f"s_load_dword {sT[2]}, s[36:37], {sT[1]}")
                    a(f"s_add_u32 {sT[1]}, {sT[1]}, 64")
                    a(f"s_load_dword {sT[3]}, s[36:37], {sT[1]}")
                    continue
                a(f"s_movk_i32 {sT[1]}, {1024*j}")
                a(f"buffer_load_dwordx4 {wslot(j)}, v10, {R}, {sT[1]} offen {WOP}")
            a(f"L_wo{rr}:")
    a(f"s_cmp_lg_u32 {sR}, {sOff}")
    a(f"s_cbranch_scc1 L_nowo")
    if not WOT:
        for j in range(16):
            if j % 4 == 0: a(f"s_movk_i32 {sT[1]}, {1024*j}")
            a(f"buffer_load_dwordx4 {wslot(j)}, v10, {R}, {sT[1]} offen offset:{1024*(j%4)} {WP}")
    a(f"s_lshl_b32 {sT[0]}, {sH}, 5")
    a(f"v_lshl_add_u32 v11, {vCol}, 1, {sT[0]}")
    a(f"global_load_ushort v138, v11, s[4:5] {WP}")
    a(f"s_mul_i32 {sT[0]}, {sW}, 448")
    a(f"v_mul_u32_u24 v11, 112, {vRow}")
    a(f"v_lshl_add_u32 v11, {vCol}, 2, v11")
    a(f"v_add_u32 v11, {sT[0]}, v11")
    a(f"v_cmp_lt_u32 vcc, 13, {vCol}")
    a(f"v_mov_b32 v12, 0x10000")
    a(f"s_mov_b32 s58, 3584")
    a(f"v_cndmask_b32 v11, v11, v12, vcc")
    for k, p in enumerate([16, 18, 20]):
        a(f"s_mov_b32 s56, s{p}"); a(f"s_mov_b32 s57, s{p+1}")
        for s_ in range(2):
            a(f"buffer_load_dword v{MX + 5*s_ + (1,3,4)[k]}, v11, {W2}, 0 offen offset:{56*s_} {WP}")
    a(f"s_load_dword {sB2}, s[22:23], 0")
    if TAIL == 3:
        a(f"s_lshl_b32 {sT[0]}, {sB}, 8")
        a(f"s_add_u32 {sT[0]}, {sT[0]}, 0x180000")
        a(f"s_load_dword {sE}, s[28:29], {sT[0]}")
    a("L_nowo:")
    a(f"s_cmp_lg_u32 {sR}, 15")
    a(f"s_cbranch_scc1 L_noms")
    unpack(160)
    ln(sM2, sD2, False)
    a("s_waitcnt vmcnt(0)")
    a(f"v_lshlrev_b32 {vH}, 16, v138")
    a(f"v_mov_b32 v145, {vH}")
    a(f"v_subrev_f32 {vH}, {sM1}, {vH}"); rbf(vH)
    a(f"v_mul_f32 {vH}, {sD1}, {vH}"); rbf(vH)
    a(f"v_subrev_f32 {vH}, {sM2}, {vH}"); rbf(vH)
    a(f"v_mul_f32 {vH}, {sD2}, {vH}"); rbf(vH)
    for s_ in range(2):
        b = MX + 5*s_
        a(f"v_lshlrev_b32 v{b}, 16, v{b+1}"); a(f"v_and_b32 v{b+1}, {sHI}, v{b+1}")
        a(f"v_lshlrev_b32 v{b+2}, 16, v{b+3}"); a(f"v_and_b32 v{b+3}, {sHI}, v{b+3}")
    kb = math.sqrt(2.0/math.pi)
    a(f"v_mov_b32 {vC0}, {hex(f2u(-2*kb*l2e))}")
    a(f"s_mov_b32 {sC1}, {hex(f2u(-2*kb*l2e*0.044715))}")
    a(f"v_mov_b32 {vMA}, 0")
    a("L_noms:")
    a(f"s_cmp_lt_u32 {sR}, 16")
    a(f"s_cbranch_scc1 L_nomix")
    BC = "row_newbcast:0 " + FULL
    for s_ in range(2):
        b = MX + 5*s_
        a(f"v_mul_f32_dpp v16, v{b}, {vH} {BC}")
        a(f"v_mul_f32_dpp v17, v{b+1}, {vH} {BC}")
        a(f"v_cvt_pk_bf16_f32 v17, v16, v17")
        a(f"v_lshlrev_b32 v16, 16, v17"); a(f"v_and_b32 v17, {sHI}, v17")
        a(f"v_add_f32_dpp v16, v{b+2}, v16 {BC}")
        a(f"v_add_f32_dpp v17, v{b+3}, v17 {BC}")
        a(f"v_cvt_pk_bf16_f32 v17, v16, v17")
        a(f"v_lshlrev_b32 v16, 16, v17"); a(f"v_and_b32 v17, {sHI}, v17")
        a(f"v_mul_f32 v18, v16, v16"); a(f"v_mul_f32 v19, v17, v17")
        a(f"v_fma_f32 v18, v18, {sC1}, {vC0}"); a(f"v_fma_f32 v19, v19, {sC1}, {vC0}")
        a(f"v_mul_f32 v18, v18, v16"); a(f"v_mul_f32 v19, v19, v17")
        a(f"v_exp_f32 v18, v18"); a(f"v_exp_f32 v19, v19")
        a(f"v_mov_b32_dpp v{b}, v{b} row_ror:15 {FULL}")
        a(f"v_add_f32 v18, 1.0, v18"); a(f"v_add_f32 v19, 1.0, v19")
        a(f"v_rcp_f32 v18, v18"); a(f"v_rcp_f32 v19, v19")
        a(f"v_mov_b32_dpp v{b+1}, v{b+1} row_ror:15 {FULL}")
        a(f"v_mul_f32 v18, v18, v16"); a(f"v_mul_f32 v19, v19, v17")
        a(f"v_cvt_pk_bf16_f32 v18, v18, v19")
        a(f"v_mov_b32_dpp v{b+2}, v{b+2} row_ror:15 {FULL}")
        a(f"v_mov_b32_dpp v{b+3}, v{b+3} row_ror:15 {FULL}")
        a(f"v_dot2c_f32_bf16_dpp {vMA}, v{b+4}, v18 {BC}")
        a(f"v_mov_b32_dpp v{b+4}, v{b+4} row_ror:15 {FULL}")
    a("L_nomix:")
    probe("k")
    a(f"s_add_u32 {sR}, {sR}, 1")
    a(f"s_cmp_lt_u32 {sR}, 32")
    a(f"s_cbranch_scc1 L_k")
    if STAMP: pass
    a(f"v_mov_b32 v16, {vM}")
    allreduce("v_max_f32", ["v16"], 4)
    a(f"v_sub_f32 v17, {vM}, v16")
    a(f"v_mul_f32 v17, {sL2E}, v17")
    a(f"v_exp_f32 v17, v17")
    a(f"s_lshl_b32 {sT[0]}, {sW}, 3")
    a(f"v_add_u32 v18, {sT[0]}, {vF}")
    a(f"v_mul_f32 v17, v17, {vLs}")
    allreduce("v_add_f32", ["v17"], 4)
    a(f"ds_write_b64 v18, v[16:17] offset:64")
    rows_sum(vMA, "v19")
    a(f"s_lshl_b32 {sT[0]}, {sW}, 6")
    a(f"s_add_u32 {sT[0]}, {sT[0]}, {L_BP}")
    a(f"v_lshl_add_u32 v19, {vCol}, 2, {sT[0]}")
    a(f"ds_write_b32 v19, {vMA}")
    a(f"v_mov_b32 v10, 1")
    a("s_waitcnt lgkmcnt(0)")
    a(f"s_mov_b64 exec, 1")
    a(f"ds_add_u32 {vF}, v10 offset:8")
    a(f"s_mov_b64 exec, -1")
    a(f"s_mov_b32 {sT[0]}, 0x05040100")
    a(f"s_mov_b32 {sT[1]}, 0x07060302")
    a("s_waitcnt vmcnt(0)")
    for p in range(8):
        for i in range(4):
            r0 = WREG + 8*p + i; r1 = r0 + 4
            a(f"v_perm_b32 v16, v{r1}, v{r0}, {sT[0]}")
            a(f"v_perm_b32 v{r1}, v{r1}, v{r0}, {sT[1]}")
            a(f"v_mov_b32 v{r0}, v16")
    spin(8, "s_cmp_ge_u32", 8, "v10", sT[0])
    a(f"v_and_b32 v18, 7, {vL}")
    a(f"v_lshl_add_u32 v18, v18, 3, {vF}")
    a(f"ds_read_b64 v[16:17], v18 offset:64")
    a(f"v_lshlrev_b32 v19, 2, {vL}")
    a(f"v_add_u32 v18, {L_BP}, v19")
    a(f"ds_read_b32 v20, v18")
    a(f"ds_read_b32 v21, v18 offset:256")
    a("s_waitcnt lgkmcnt(0)")
    a(f"v_mov_b32 {vM}, v16")
    allreduce("v_max_f32", [vM], 3)
    a(f"v_sub_f32 v16, v16, {vM}")
    a(f"v_mul_f32 v16, {sL2E}, v16")
    a(f"v_exp_f32 v16, v16")
    a(f"v_add_f32 v20, v20, v21")
    a(f"v_mul_f32 {vLs}, v16, v17")
    allreduce("v_add_f32", [vLs], 3)
    a(f"v_rcp_f32 {vLs}, {vLs}")
    rows_sum("v20", "v21")
    rbf("v20")
    a(f"s_lshl_b32 {sB2}, {sB2}, 16")
    a(f"v_add_f32 v20, {sB2}, v20")
    rbf("v20")
    if TAIL == 3:
        a(f"v_and_b32 v21, 7, {vL}")
        a(f"v_lshrrev_b32 v22, 5, {vL}")
        a(f"v_lshl_add_u32 v21, v21, 1, v22")
        a(f"v_lshlrev_b32 v22, 2, v21")
        a(f"ds_bpermute_b32 v146, v22, v20")
        a(f"ds_bpermute_b32 v145, v22, v145")
        a(f"s_lshl_b32 {sT[0]}, s2, 5")
        a(f"v_lshl_add_u32 v147, v21, 1, {sT[0]}")
        a(f"s_add_u32 {sE}, {sE}, 1")
    else:
        a(f"s_lshl_b32 {sT[0]}, s2, 6")
        a(f"s_add_u32 {sT[0]}, {sT[0]}, 0x80000")
        a(f"s_add_u32 s56, s28, {sT[0]}")
        a(f"s_addc_u32 s57, s29, 0")
        a(f"s_cmp_eq_u32 {sW}, 0")
        a(f"s_cselect_b32 s58, 64, 0")
        a(f"buffer_store_dword v20, v19, {W2}, 0 offen sc1")
    a(f"s_lshl_b32 {sT[0]}, {sW}, 12")
    a(f"v_lshl_add_u32 {vKA}, {vL}, 4, {sT[0]}")
    a(f"v_and_b32 {vSA}, 3, {vL}")
    a(f"v_lshl_add_u32 {vSA}, {vSA}, 2, {vRow}")
    a(f"s_lshl_b32 {sT[0]}, {sW}, 6")
    a(f"s_add_u32 {sT[0]}, {sT[0]}, {L_SC}")
    a(f"v_lshl_add_u32 {vSA}, {vSA}, 2, {sT[0]}")
    for i in range(8): a(f"v_mov_b32 {ACC[i]}, 0")
    a(f"s_mov_b32 {sR}, 0")
    stamp(4)
    a("L_v:")
    a(f"ds_read_b32 v16, {vSA}")
    a(f"v_add_u32 {vSA}, 512, {vSA}")
    a(f"v_add_u32 {vDn}, 1, {vDn}")
    a("s_waitcnt lgkmcnt(0)")
    a(f"v_sub_f32 v16, v16, {vM}")
    a(f"v_mul_f32 v16, {sL2E}, v16")
    a(f"v_exp_f32 v16, v16")
    a(f"s_add_u32 {sR}, {sR}, 1")
    a(f"v_mul_f32 v16, v16, {vLs}")
    a(f"v_cvt_pk_bf16_f32 v16, v16, v16")
    a(f"v_lshrrev_b32 v17, 16, v16")
    a(f"v_and_b32 v16, {sHI}, v16")
    spin(0, "s_cmp_gt_i32", sG, "v10", sT[0])
    for t in range(4): a(f"ds_read_b128 v[{DT+4*t}:{DT+4*t+3}], {vKA} offset:{1024*t}")
    a(f"v_add_u32 {vKA}, 0x8000, {vKA}")
    a(f"v_and_b32 {vKA}, 0x1ffff, {vKA}")
    a(f"s_add_u32 {sG}, {sG}, 8")
    for j in range(4):
        a(f"s_waitcnt lgkmcnt({3-j})")
        if j == 3: a(f"ds_write_b32 {vDA}, {vDn} offset:32")
        for i in range(4):
            a(f"v_dot2c_f32_bf16_dpp {ACC[2*i]}, v17, v{DT+4*j+i} quad_perm:[{j},{j},{j},{j}] {FULL}")
            a(f"v_dot2c_f32_bf16_dpp {ACC[2*i+1]}, v16, v{DT+4*j+i} quad_perm:[{j},{j},{j},{j}] {FULL}")
    probe("v")
    ctl("v")
    a(f"s_cmp_lt_u32 {sR}, 32")
    a(f"s_cbranch_scc1 L_v")
    stamp(5)
    if o.get("notail", 0) == 1:
        stamp(6); stamp(7)
        a("s_branch L_fin")
    a("s_nop 0")
    rows_reduce8("v15")
    a(f"v_and_b32 v10, 7, {vL}")
    a(f"v_mul_u32_u24 v10, 528, v10")
    a(f"v_and_b32 v11, 0x38, {vL}")
    a(f"s_lshl_b32 {sT[0]}, {sW}, 6")
    a(f"s_add_u32 {sT[0]}, {sT[0]}, {L_QP}")
    a(f"v_add3_u32 v10, v10, v11, {sT[0]}")
    a("s_waitcnt lgkmcnt(0)")
    a("s_barrier")
    tstamp(1)
    a(f"ds_read_b64 v[16:17], v10")
    for i in range(8): a(f"v_mov_b32 {ACC[i]}, 0")
    a("s_waitcnt lgkmcnt(0)")
    allreduce("v_add_f32", ["v16", "v17"], 3)
    a("v_cvt_pk_bf16_f32 v16, v16, v17")
    a("s_nop 0")
    for p in range(8): a(f"v_readlane_b32 {sT[p]}, v16, {8*p}")
    for p in range(8):
        for i in range(4):
            a(f"v_dot2c_f32_bf16 {ACC[2*i]}, {sT[p]}, v{WREG+8*p+i}")
            a(f"v_dot2c_f32_bf16 {ACC[2*i+1]}, {sT[p]}, v{WREG+8*p+4+i}")
    a(f"s_lshl_b32 {sT[0]}, {sW}, 11")
    a(f"v_lshl_add_u32 v10, {vL}, 5, {sT[0]}")
    a(f"s_lshl_b32 {sT[0]}, {sW}, 8")
    a(f"v_lshl_add_u32 v11, {vL}, 2, {sT[0]}")
    a(f"ds_write_b128 v10, v[24:27] offset:{L_Y}")
    a(f"ds_write_b128 v10, v[28:31] offset:{L_Y+16}")
    if TAIL == 3:
        a(f"s_lshl_b32 {sT[0]}, {sB}, 17")
        a(f"s_add_u32 s56, s28, {sT[0]}")
        a(f"s_addc_u32 s57, s29, 0")
        a(f"s_mov_b32 s58, 0x20000")
        a(f"s_lshl_b32 {sT[0]}, {sW}, 14")
        a(f"s_lshl_b32 {sT[1]}, {sH}, 7")
        a(f"s_add_u32 {sT[0]}, {sT[0]}, {sT[1]}")
        if o.get("st4", 1):
            a(f"v_bfe_u32 v13, {vL}, 3, 2")
            a(f"v_lshl_add_u32 v12, v13, 12, {sT[0]}")
            a(f"v_and_b32 v13, 7, {vL}")
            a(f"v_lshl_add_u32 v12, v13, 4, v12")
            a(f"v_lshrrev_b32 v13, 5, {vL}")
            a(f"v_lshl_add_u32 v12, v13, 17, v12")
            a(f"v_and_b32 v11, 31, {vL}")
            a(f"s_lshl_b32 {sT[0]}, {sW}, 8")
            a(f"v_lshl_add_u32 v11, v11, 3, {sT[0]}")
            a(f"v_lshl_add_u32 v11, v13, 13, v11")
            a("s_waitcnt lgkmcnt(0)")
            a("s_barrier")
            tstamp(2)
            for i in range(4): a(f"ds_read_b64 v[{16+2*i}:{17+2*i}], v11 offset:{L_Y + 2048*i}")
            a(f"s_lshl_b32 {sT[0]}, {sH}, 12")
            a(f"v_lshl_add_u32 v13, {vL}, 4, {sT[0]}")
            a("s_waitcnt lgkmcnt(0)")
            for i in range(4): a(f"v_add_f32 v{16+i}, v{16+i}, v{20+i}")
            a("v_add_f32 v20, v16, v18")
            a("v_add_f32 v21, v17, v19")
            a("v_add_f32 v22, v16, v18")
            a("v_add_f32 v23, v17, v19")
            a(f"v_mov_b32 v17, {sE}")
            a("v_permlane32_swap_b32 v20, v22")
            a("v_permlane32_swap_b32 v21, v23")
            a(f"v_mov_b32 v19, {sE}")
            a("v_add_f32 v16, v20, v22")
            a("v_add_f32 v18, v21, v23")
            a(f"buffer_store_dwordx4 v[16:19], v12, {W2}, 0 offen {o.get('stp', 'sc1')}")
        else:
            a(f"v_lshl_add_u32 v12, {vRow}, 12, {sT[0]}")
            a(f"v_lshl_add_u32 v12, {vCol}, 3, v12")
            a("s_waitcnt lgkmcnt(0)")
            a("s_barrier")
            tstamp(2)
            for i in range(8): a(f"ds_read_b32 v{16+i}, v11 offset:{L_Y + 2048*i}")
            a(f"s_lshl_b32 {sT[0]}, {sH}, 12")
            a(f"v_lshl_add_u32 v13, {vL}, 4, {sT[0]}")
            a("s_waitcnt lgkmcnt(0)")
            for st in (4, 2, 1):
                for i in range(st): a(f"v_add_f32 v{16+i}, v{16+i}, v{16+st+i}")
            a(f"v_mov_b32 v17, {sE}")
            a(f"buffer_store_dwordx2 v[16:17], v12, {W2}, 0 offen sc1")
        tstamp(3)
        stamp(6); stamp(7); tstamp(4)
        a(f"s_cmp_lg_u32 {sW}, 0")
        a(f"s_cbranch_scc1 L_fin")
        if STAMP == 1: a("s_mov_b32 s79, 0")
        a("L_poll:")
        if STAMP == 1: a("s_add_u32 s79, s79, 1")
        for i in range(4): a(f"buffer_load_dwordx4 v[{32+4*i}:{35+4*i}], v13, {W2}, 0 offen offset:{1024*i} {o.get('plp', 'sc1')}")
        a(f"s_mov_b64 s[44:45], exec")
        if BOUND:
            a(f"s_sub_u32 {sSpin}, {sSpin}, 16")
            a(f"s_cbranch_scc1 L_end")
        if o.get("psl", 0): a(f"s_sleep {o['psl']}")
        a("s_waitcnt vmcnt(0)")
        for i in range(8): a(f"v_cmpx_eq_u32 vcc, v17, v{33+2*i}")
        a(f"s_andn2_b64 exec, s[44:45], exec")
        a(f"s_cbranch_execnz L_poll")
        a(f"s_mov_b64 exec, -1")
        tstamp(4)
        for st in (8, 4):
            for i in range(0, st, 2): a(f"v_add_f32 v{32+i}, v{32+i}, v{32+st+i}")
        a("s_nop 1")
        a("v_permlane32_swap_b32 v32, v34")
        a("v_add_f32 v32, v32, v34")
        a("v_mov_b32 v33, v32"); a("s_nop 1")
        a("v_permlane16_swap_b32 v32, v33")
        a("v_add_f32 v32, v32, v33")
        a("s_nop 1")
        a(f"v_add_f32_dpp v32, v32, v32 row_ror:8 {FULL}")
        rbf("v32")
        a("v_add_f32 v32, v145, v32")
        rbf("v32")
        a("v_add_f32 v32, v32, v146")
        a("v_cvt_pk_bf16_f32 v32, v32, v32")
        a("s_mov_b32 exec_lo, 0xff")
        a("s_mov_b32 exec_hi, 0xff")
        a(f"global_store_short v147, v32, s[24:25] {o.get('outp', '')}")
        a(f"s_cmp_lg_u32 {sH}, 0")
        a(f"s_cbranch_scc1 L_nob")
        a(f"s_lshl_b32 {sT[0]}, {sB}, 8")
        a(f"s_add_u32 {sT[0]}, {sT[0]}, 0x180000")
        a(f"v_mov_b32 v16, {sT[0]}")
        a(f"s_mov_b64 exec, 1")
        a(f"global_store_dword v16, v17, s[28:29] {o.get('outp', '')}")
        a("L_nob:")
        a(f"s_mov_b64 exec, -1")
    else:
        a(f"s_lshl_b32 {sT[0]}, s2, 11")
        a(f"s_add_u32 s56, s28, {sT[0]}")
        a(f"s_addc_u32 s57, s29, 0")
        a(f"s_mov_b32 s58, 2048")
        a("s_waitcnt lgkmcnt(0)")
        a("s_barrier")
        tstamp(2)
        for i in range(8): a(f"ds_read_b32 v{16+i}, v11 offset:{L_Y + 2048*i}")
        a("s_waitcnt lgkmcnt(0)")
        for st in (4, 2, 1):
            for i in range(st): a(f"v_add_f32 v{16+i}, v{16+i}, v{16+st+i}")
        a(f"buffer_store_dword v16, v11, {W2}, 0 offen sc1")
        tstamp(3)
        a("s_waitcnt vmcnt(0)")
        a("s_barrier")
        stamp(6)
        if o.get("notail", 0) == 2:
            stamp(7)
            a("s_branch L_fin")
        a(f"s_cmp_lg_u32 {sW}, 0")
        a(f"s_cbranch_scc1 L_wait")
        a(f"s_lshl_b32 {sT[0]}, {sB}, 2")
        a(f"v_mov_b32 v16, {sT[0]}")
        a(f"v_mov_b32 v17, 1")
        a(f"s_mov_b64 exec, 1")
        a(f"global_atomic_add v18, v16, v17, s[26:27] sc0 sc1")
        a("s_waitcnt vmcnt(0)")
        a(f"ds_write_b32 {vF}, v18 offset:12")
        a(f"s_mov_b64 exec, -1")
        a("s_waitcnt lgkmcnt(0)")
        a("L_wait:")
        a("s_barrier")
        a(f"ds_read_b32 v18, {vF} offset:12")
        a("s_waitcnt lgkmcnt(0)")
        a(f"v_readfirstlane_b32 {sT[0]}, v18")
        stamp(7)
        a(f"s_cmp_lg_u32 {sT[0]}, 31")
        a(f"s_cbranch_scc1 L_fin")
        a(f"s_lshl_b32 {sT[0]}, {sB}, 16")
        a(f"s_add_u32 s56, s28, {sT[0]}")
        a(f"s_addc_u32 s57, s29, 0")
        a(f"s_mov_b32 s58, 65536")
        a(f"s_lshl_b32 {sT[0]}, {sW}, 8")
        a(f"v_lshl_add_u32 v10, {vCol}, 4, {sT[0]}")
        a(f"v_lshl_add_u32 v10, {vRow}, 14, v10")
        for i in range(8):
            if i % 2 == 0: a(f"s_movk_i32 {sT[1]}, {2048*i}")
            a(f"buffer_load_dwordx4 v[{32+4*i}:{35+4*i}], v10, {W2}, {sT[1]} offen offset:{2048*(i%2)} sc1")
        a(f"s_lshl_b32 {sT[0]}, {sW}, 6")
        a(f"v_lshl_add_u32 v11, {vCol}, 2, {vRow}")
        a(f"v_add_u32 v11, {sT[0]}, v11")
        a(f"v_lshlrev_b32 v12, 1, v11")
        a(f"global_load_ushort v13, v12, s[4:5]")
        a(f"s_lshl_b32 {sT[0]}, {sB}, 11")
        a(f"s_add_u32 {sT[0]}, {sT[0]}, 0x80000")
        a(f"v_lshl_add_u32 v11, v11, 2, {sT[0]}")
        a(f"global_load_dword v14, v11, s[28:29] sc1")
        a("s_waitcnt vmcnt(2)")
        tstamp(4)
        for st in (16, 8, 4):
            for i in range(st): a(f"v_add_f32 v{32+i}, v{32+i}, v{32+st+i}")
        a("s_nop 0")
        a("v_permlane32_swap_b32 v32, v34")
        a("v_permlane32_swap_b32 v33, v35")
        a("v_add_f32 v32, v32, v34")
        a("v_add_f32 v33, v33, v35")
        a("s_nop 1")
        a("v_permlane16_swap_b32 v32, v33")
        a("v_add_f32 v16, v32, v33")
        rbf("v16")
        a("s_waitcnt vmcnt(0)")
        a("v_lshlrev_b32 v13, 16, v13")
        a("v_add_f32 v16, v13, v16")
        rbf("v16")
        a("v_add_f32 v16, v16, v14")
        a("v_cvt_pk_bf16_f32 v16, v16, v16")
        a(f"s_lshl_b32 {sT[0]}, {sB}, 10")
        a(f"v_add_u32 v12, {sT[0]}, v12")
        a(f"global_store_short v12, v16, s[24:25]")
    a("L_fin:")
    if STAMP == 5:
        a("s_memrealtime s[72:73]")
        a("s_waitcnt lgkmcnt(0)")
        a(f"s_cmp_lg_u32 {sW}, {o.get('lw', 0)}")
        a("s_cbranch_scc1 L_end")
        if "swg" in o:
            a(f"s_cmp_lg_u32 s2, {o['swg']}")
            a("s_cbranch_scc1 L_end")
        a(f"s_sub_u32 s74, s{60+2*o['t1']}, s{60+2*o['t0']}")
        a(f"s_sub_u32 s74, s74, {o.get('sub', 0)}")
        if o.get("neg", 0): a("s_sub_u32 s74, 0, s74")
        a(f"s_mul_i32 s74, s74, {o.get('amp', 10)}")
        a(f"s_add_u32 s74, s74, 10000")
        a(f"s_min_u32 s74, s74, 100000")
        a("L_pin3:")
        a("s_memrealtime s[76:77]")
        a("s_waitcnt lgkmcnt(0)")
        a("s_sub_u32 s76, s76, s60")
        a(f"s_cmp_lt_u32 s76, s74")
        a("s_cbranch_scc1 L_pin3")
    if o.get("pin", 0):
        a("L_pin:")
        a("s_memrealtime s[62:63]")
        a("s_waitcnt lgkmcnt(0)")
        a("s_sub_u32 s62, s62, s60")
        a(f"s_cmp_lt_u32 s62, {o['pin']}")
        a("s_cbranch_scc1 L_pin")
    stamp(8)
    if STAMP == 1:
        a("s_waitcnt lgkmcnt(0)")
        a(f"s_mul_i32 {sT[0]}, s2, 9")
        a(f"s_add_u32 {sT[0]}, {sT[0]}, {sW}")
        a(f"s_add_u32 {sT[0]}, {sT[0]}, 1")
        a(f"s_lshl_b32 {sT[0]}, {sT[0]}, 7")
        a(f"s_add_u32 {sT[0]}, {sT[0]}, 0x100000")
        a(f"v_mov_b32 v16, 0")
        for i in range(18): a(f"v_writelane_b32 v16, s{60+i}, {i}")
        a(f"s_getreg_b32 {sT[1]}, hwreg(HW_REG_XCC_ID)")
        a(f"s_getreg_b32 {sT[2]}, hwreg(HW_REG_HW_ID)")
        a(f"v_writelane_b32 v16, {sT[1]}, 18")
        a(f"v_writelane_b32 v16, {sT[2]}, 19")
        a(f"v_writelane_b32 v16, {sSpin}, 20")
        a(f"v_writelane_b32 v16, s79, 21")
        a(f"v_lshl_add_u32 v17, {vL}, 2, {sT[0]}")
        a(f"s_mov_b64 exec, 0xffffffff")
        a(f"global_store_dword v17, v16, s[28:29]")
    if STAMP == 2:
        a("s_waitcnt lgkmcnt(0)")
        a(f"s_cmp_gt_i32 {sW}, 0")
        a("s_cbranch_scc1 L_end")
        a(f"v_mov_b32 v16, 0")
        a(f"s_not_b32 {sT[1]}, s60")
        a(f"v_writelane_b32 v16, {sT[1]}, 0")
        for i in range(6): a(f"v_writelane_b32 v16, s{66+2*i}, {i+1}")
        a(f"s_not_b32 {sT[1]}, s70")
        a(f"v_writelane_b32 v16, {sT[1]}, 7")
        a(f"v_lshlrev_b32 v17, 2, {vL}")
        a(f"s_mov_b64 exec, 0xff")
        a(f"global_atomic_umax v17, v16, s[26:27] offset:32 sc1")
    a("L_end:")
    a("s_endpgm")

    head = open("cdna_kernels/%s.s.ref" % NAME).read().split("; Override launch")[0]
    out = head + f"; @launch grid=(256,1,1) block=(576,1,1) lds={LDS_BYTES}\n"
    out += '.amdgcn_target "amdgcn-amd-amdhsa--gfx950"\n.text\n'
    out += f".globl {NAME}_kernel\n.p2align 8\n.type {NAME}_kernel,@function\n" + a.text()
    out += f""".section .rodata,"a"
.p2align 6
.amdhsa_kernel {NAME}_kernel
  .amdhsa_next_free_vgpr 168
  .amdhsa_next_free_sgpr 80
  .amdhsa_accum_offset 168
  .amdhsa_group_segment_fixed_size 0
  .amdhsa_kernarg_size 104
  .amdhsa_user_sgpr_count 2
  .amdhsa_user_sgpr_kernarg_segment_ptr 1
  .amdhsa_system_sgpr_workgroup_id_x 1
  .amdhsa_float_denorm_mode_32 3
.end_amdhsa_kernel
"""
    return out
if __name__ == "__main__":
    opts = {}
    for kv in sys.argv[2:]:
        k, v = kv.split("=")
        try: opts[k] = int(v, 0)
        except ValueError: opts[k] = v.replace("+", " ")
    open(sys.argv[1], "w").write(gen(opts))
```

```python
import sys, struct, math
NAME = "parallel_sum__mha_block_cached__mixer_token_mlp__decode"
def f2u(x): return struct.unpack("<I", struct.pack("<f", x))[0]
class Asm:
    def __init__(self): self.lines = []
    def __call__(self, s):
        s = s.strip()
        self.lines.append(s if s.endswith(":") else "    " + s)
    def c(self, s): self.lines.append("    ; " + s)
    def text(self): return "\n".join(self.lines) + "\n"

def gen(o):
    D = o.get("d", 20)
    STAMP = o.get("stamp", 0)
    ROT = o.get("rot", 0)
    BOUND = o.get("bound", 1)
    WOR = o.get("wor", 6)
    WQP = o.get("wqp", 0)
    SLEEP = o.get("sleep", 0)
    WP = o.get("wp", "")
    WOS = o.get("wos", 1)
    TAIL = o.get("tail", 3)
    WOP = o.get("wop", "nt")
    SPF = o.get("spf", 0)
    WOT = o.get("wot", 1)
    WOM = o.get("wom", 3); WOD = o.get("wod", 2)
    WMR = o.get('wmr', 6)
    assert WMR + 7 * WOS < 15 and WOR + 15 * WOM // WOD < 32
    sE = "s3"
    FB = o.get("fb", 0)
    FP = o.get("fp", 8)
    FS = o.get("fs", 2)
    FG0 = o.get("fg0", 40)
    FDL = o.get("fdl", 2)
    FK0 = o.get("fk0", 4)
    FR = o.get("frep", 8 if o.get("ml", 1) else 64)
    FLEAD = o.get("flead", 0)
    sTg = "s78"
    FSA = o.get("fsa", (7 * FS) // 2 + 1)
    a = Asm()
    FULL = "row_mask:0xf bank_mask:0xf"
    l2e = 1.0 / math.log(2.0)
    sB, sH, sW = "s30", "s31", "s32"
    sOff, sR, sG = "s33", "s34", "s35"
    R = "s[36:39]"
    sM1, sD1, sM2, sD2 = "s40", "s41", "s42", "s43"
    sT = [f"s{44+i}" for i in range(8)]
    sHI, sB2, sSpin, sK = "s52", "s53", "s54", "s55"
    W2 = "s[56:59]"
    sL2E, sC1 = "s14", "s15"
    L_SC = 131072
    L_QP = L_SC + 16384
    L_XN = L_QP + 4352
    L_BP = L_XN + 1024
    L_FL = L_BP + 512
    LDS_BYTES = L_FL + 256
    L_Y = 0
    vL, vRow, vCol, vF = "v0", "v1", "v2", "v3"
    WREG = 64
    QF = 48
    DT = 32
    ACC = [f"v{24+i}" for i in range(8)]
    def wslot(j): return f"v[{WREG+4*j}:{WREG+4*j+3}]"
    nlab = [0]
    def lab(p):
        nlab[0] += 1; return f"L_{p}{nlab[0]}"
    TS = o.get("ts", 0)
    def tstamp(i):
        if TS: a(f"s_memrealtime s[{60+2*i}:{61+2*i}]")
    def stamp(i):
        if STAMP in (1, 2) or (STAMP in (3, 4) and i == 0) or (STAMP == 5 and i in (0, 5)): a(f"s_memrealtime s[{60+2*i}:{61+2*i}]")
    def wave_reduce(op, v, sdst):
        for ctl in ["quad_perm:[1,0,3,2] "+FULL, "quad_perm:[2,3,0,1] "+FULL, "row_half_mirror "+FULL, "row_mirror "+FULL,
                    "row_bcast:15 row_mask:0xa bank_mask:0xf", "row_bcast:31 row_mask:0xc bank_mask:0xf"]:
            a("s_nop 1"); a(f"{op}_dpp {v}, {v}, {v} {ctl}")
        a("s_nop 1"); a(f"v_readlane_b32 {sdst}, {v}, 63")
    def allreduce(op, regs, steps):
        for ctl in ["quad_perm:[1,0,3,2]", "quad_perm:[2,3,0,1]", "row_half_mirror", "row_mirror"][:steps]:
            if len(regs) < 3: a(f"s_nop {2-len(regs)}")
            for v in regs: a(f"{op}_dpp {v}, {v}, {v} {ctl} {FULL}")
    def rbf(v):
        a(f"v_cvt_pk_bf16_f32 {v}, {v}, {v}"); a(f"v_and_b32 {v}, {sHI}, {v}")
    def spin(off, cmp, val, tmpv, tmps):
        l0, l1 = lab("sp"), lab("go")
        a(f"{l0}:")
        a(f"ds_read_b32 {tmpv}, {vF} offset:{off}")
        a("s_waitcnt lgkmcnt(0)")
        a(f"v_readfirstlane_b32 {tmps}, {tmpv}")
        a(f"{cmp} {tmps}, {val}")
        if BOUND or SLEEP:
            a(f"s_cbranch_scc1 {l1}")
            if SLEEP: a(f"s_sleep {SLEEP}")
            if BOUND:
                a(f"s_sub_u32 {sSpin}, {sSpin}, 1")
                a(f"s_cbranch_scc1 L_end")
            a(f"s_branch {l0}")
            a(f"{l1}:")
        else:
            a(f"s_cbranch_scc0 {l0}")
    def rows_sum(v, t):
        a(f"v_mov_b32 {t}, {v}"); a("s_nop 1"); a(f"v_permlane32_swap_b32 {v}, {t}"); a(f"v_add_f32 {v}, {v}, {t}")
        a(f"v_mov_b32 {t}, {v}"); a("s_nop 1"); a(f"v_permlane16_swap_b32 {v}, {t}"); a(f"v_add_f32 {v}, {v}, {t}")
    def rows_reduce8(vaddr):
        for i in range(4): a(f"v_permlane32_swap_b32 {ACC[i]}, {ACC[i+4]}")
        for i in range(4): a(f"v_add_f32 {ACC[i]}, {ACC[i]}, {ACC[i+4]}")
        a("s_nop 0")
        for i in range(2): a(f"v_permlane16_swap_b32 {ACC[i]}, {ACC[i+2]}")
        for i in range(2): a(f"v_add_f32 {ACC[i]}, {ACC[i]}, {ACC[i+2]}")
        a(f"ds_write_b64 {vaddr}, v[24:25]")

    def probe(tag):
        PR = o.get("probe", 0)
        if not PR: return
        PP = o.get("pp", 4)
        a(f"s_and_b32 {sT[1]}, {sR}, {PP-1}")
        a(f"s_or_b32 {sT[1]}, {sT[1]}, {sW}")
        a(f"s_cbranch_scc1 L_np{tag}")
        a(f"v_mov_b32 v150, 1")
        if PR in (1, 2):
            a(f"v_mov_b32 v149, 0x200000")
            a(f"s_mov_b64 exec, 1")
            a(f"global_atomic_add v151, v149, v150, s[28:29] sc0 {'sc1' if PR == 1 else ''}")
            a(f"s_mov_b64 exec, -1")
        elif PR == 3:
            a(f"s_add_u32 {sT[1]}, s2, 0x200000")
            a(f"v_mov_b32 v149, {sT[1]}")
            a(f"s_mov_b64 exec, 1")
            a(f"global_store_byte v149, v150, s[28:29] sc1")
            a(f"s_mov_b64 exec, -1")
            a(f"v_lshlrev_b32 v149, 2, {vL}")
            a(f"v_add_u32 v149, 0x200000, v149")
            a(f"global_load_dword v151, v149, s[28:29] sc1")
        elif PR == 4:
            a(f"s_lshl_b32 {sT[1]}, s2, 8")
            a(f"s_add_u32 {sT[1]}, {sT[1]}, 0x200000")
            a(f"v_mov_b32 v149, {sT[1]}")
            a(f"s_mov_b64 exec, 1")
            a(f"global_store_dword v149, v150, s[28:29] sc1")
            a(f"s_mov_b64 exec, {hex((1 << o.get('np', 16)) - 1)}")
            a(f"v_mul_u32_u24 v149, {256 * 17}, {vL}")
            a(f"v_add_u32 v149, {sT[1]}, v149")
            a(f"v_and_b32 v149, 0x20ffff, v149")
            a(f"global_load_dword v151, v149, s[28:29] sc1")
            a(f"s_mov_b64 exec, -1")
        elif PR == 5:
            a(f"s_lshl_b32 {sT[1]}, {sB}, 12")
            a(f"s_add_u32 {sT[1]}, {sT[1]}, 0x200000")
            a(f"v_mov_b32 v149, {sT[1]}")
            a(f"s_mov_b64 exec, 1")
            a(f"global_atomic_add v151, v149, v150, s[28:29] sc0 sc1")
            a(f"s_mov_b64 exec, -1")
        elif PR in (6, 7):
            if PR == 6: a(f"s_mov_b32 {sT[1]}, 0x200000")
            else:
                a(f"s_lshl_b32 {sT[1]}, {sB}, 12")
                a(f"s_add_u32 {sT[1]}, {sT[1]}, 0x200000")
            a(f"s_mov_b32 {sT[2]}, 1")
            a(f"s_atomic_add {sT[2]}, s[28:29], {sT[1]} glc")
            a("s_waitcnt lgkmcnt(0)")
        elif PR == 8:
            a(f"s_lshr_b32 {sT[1]}, s2, {o.get('gs', 3)}")
            a(f"s_mul_i32 {sT[1]}, {sT[1]}, {o.get('ls', 4352)}")
            if o.get("fr", 1):
                a(f"s_lshl_b32 {sT[2]}, {sG}, 18")
                a(f"s_add_u32 {sT[1]}, {sT[1]}, {sT[2]}")
            a(f"s_add_u32 {sT[1]}, {sT[1]}, 0x200000")
            a(f"s_mov_b32 {sT[2]}, 1")
            if o.get("ld", 0): a(f"s_load_dword {sT[2]}, s[28:29], {sT[1]} glc")
            else: a(f"s_atomic_add {sT[2]}, s[28:29], {sT[1]} glc")
            a("s_waitcnt lgkmcnt(0)")
        a(f"L_np{tag}:")
    def ctl(tag):
        if FB != 2: return
        if o.get("clk", 0):
            B0 = o.get("b0", 150)
            a(f"s_cmp_lg_u32 {sW}, 0")
            a(f"s_cbranch_scc1 L_nc{tag}")
            a(f"s_cmp_lt_u32 {sG}, {FG0}")
            a(f"s_cbranch_scc1 L_nc{tag}")
            a(f"s_memrealtime s[80:81]")
            a(f"s_mul_i32 {sT[1]}, {sG}, {o['tau']}")
            a(f"s_lshr_b32 {sT[1]}, {sT[1]}, 10")
            a(f"s_add_u32 {sT[1]}, {sT[1]}, {o['t0']}")
            a(f"s_waitcnt lgkmcnt(0)")
            a(f"s_sub_u32 {sT[2]}, s80, s60")
            a(f"s_sub_u32 {sT[2]}, {sT[1]}, {sT[2]}")
            a(f"s_max_i32 {sT[2]}, {sT[2]}, -200")
            a(f"s_min_i32 {sT[2]}, {sT[2]}, 200")
            a(f"s_mul_i32 {sT[3]}, {sT[2]}, {o.get('ki', 0)}")
            a(f"s_add_u32 s11, s11, {sT[3]}")
            a(f"s_max_i32 s11, s11, 0")
            a(f"s_min_i32 s11, s11, {255*64}")
            a(f"s_mul_i32 {sT[2]}, {sT[2]}, {o.get('kp', 64)}")
            a(f"s_add_u32 {sT[2]}, {sT[2]}, s11")
            a(f"s_ashr_i32 {sT[2]}, {sT[2]}, 6")
            a(f"s_max_i32 {sT[2]}, {sT[2]}, 0")
            a(f"s_min_i32 {sT[2]}, {sT[2]}, 255")
            a(f"v_mov_b32 v11, {sT[2]}")
            a(f"ds_write_b32 {vF}, v11 offset:64")
            a(f"L_nc{tag}:")
            return
        if o.get("ml", 1):
            a(f"s_sub_u32 {sT[1]}, {sG}, {FG0 + 8}")
            a(f"s_cbranch_scc1 L_nc{tag}")
            a(f"s_cmp_ge_u32 {sG}, {o.get('fend', 480)}")
            a(f"s_cbranch_scc1 L_nc{tag}")
            a(f"s_and_b32 {sT[2]}, {sT[1]}, {8*FP - 1}")
            a(f"s_lshr_b32 {sT[1]}, {sT[1]}, {(8*FP).bit_length() - 1}")
            a(f"s_mul_i32 {sT[3]}, {sT[1]}, {FR * 4352}")
            a(f"s_add_u32 {sT[3]}, {sT[3]}, 0x200000")
            a(f"s_cmp_ge_u32 s2, 8")
            a(f"s_cbranch_scc1 L_cs{tag}")
            a(f"s_add_u32 {sT[4]}, s2, {sT[1]}")
            a(f"s_and_b32 {sT[4]}, {sT[4]}, 7")
            a(f"s_mul_i32 {sT[4]}, {sT[4]}, {FS}")
            a(f"s_cmp_eq_u32 {sT[2]}, {sT[4]}")
            a(f"s_cbranch_scc0 L_cs{tag}")
            a(f"v_mul_u32_u24 v10, 4352, {vL}")
            a(f"s_lshl_b32 {sT[4]}, s2, 2")
            a(f"s_add_u32 {sT[4]}, {sT[4]}, {sT[3]}")
            a(f"v_add_u32 v10, {sT[4]}, v10")
            a(f"v_mov_b32 v11, {sTg}")
            a(f"s_mov_b64 exec, {hex((1 << FR) - 1)}")
            a(f"global_store_dword v10, v11, s[28:29] sc1")
            a(f"s_mov_b64 exec, -1")
            a(f"L_cs{tag}:")
            a(f"s_cmp_eq_u32 {sT[2]}, {FSA}")
            a(f"s_cbranch_scc0 L_nc{tag}")
            a(f"s_lshr_b32 {sT[2]}, s2, 3")
            a(f"s_and_b32 {sT[2]}, {sT[2]}, {FR - 1}")
            a(f"s_mul_i32 {sT[2]}, {sT[2]}, 4352")
            a(f"s_add_u32 {sT[3]}, {sT[3]}, {sT[2]}")
            a(f"s_load_dwordx8 s[80:87], s[28:29], {sT[3]} glc")
            a(f"s_lshl_b32 {sT[1]}, {sT[1]}, 2")
            a(f"v_add_u32 v10, {sT[1]}, {vF}")
            a(f"s_mov_b32 {sT[2]}, 0")
            a(f"s_waitcnt lgkmcnt(0)")
            for i in range(8):
                a(f"s_cmp_eq_u32 s{80+i}, {sTg}")
                a(f"s_addc_u32 {sT[2]}, {sT[2]}, 0")
            if o.get("br", 1):
                B0 = o.get("b0", 150); BG = o.get("bg", 36); BI = o.get("bi", 0); BIM = o.get("bim", 64)
                a(f"s_sub_u32 {sT[2]}, 4, {sT[2]}")
                if BI:
                    a(f"s_mul_i32 {sT[3]}, {sT[2]}, {BI}")
                    a(f"s_add_u32 s11, s11, {sT[3]}")
                    a(f"s_max_i32 s11, s11, {B0 - BIM}")
                    a(f"s_min_i32 s11, s11, {B0 + BIM}")
                a(f"s_mul_i32 {sT[2]}, {sT[2]}, {BG}")
                a(f"s_add_u32 {sT[2]}, {sT[2]}, {'s11' if BI else B0}")
                a(f"s_max_i32 {sT[2]}, {sT[2]}, 0")
                a(f"s_min_i32 {sT[2]}, {sT[2]}, 255")
                a(f"v_mov_b32 v11, {sT[2]}")
                if o.get("fctl", 1): a(f"ds_write_b32 {vF}, v11 offset:64")
            else:
                a(f"v_mov_b32 v11, {sT[2]}")
                a(f"ds_write_b32 v10, v11 offset:132")
            a(f"L_nc{tag}:")
            return
        a(f"s_sub_u32 {sT[1]}, {sG}, {FG0 + 8}")
        a(f"s_cbranch_scc1 L_nc{tag}")
        a(f"s_and_b32 {sT[2]}, {sT[1]}, {8*FP - 1}")
        a(f"s_lshr_b32 {sT[1]}, {sT[1]}, {(8*FP).bit_length() - 1}")
        a(f"s_cmp_ge_u32 {sG}, {o.get('fend', 480)}")
        a(f"s_cbranch_scc1 L_nc{tag}")
        a(f"s_mul_i32 {sT[3]}, {sT[1]}, {FR * 4352}")
        a(f"s_add_u32 {sT[3]}, {sT[3]}, 0x200000")
        a(f"s_cmp_eq_u32 s2, {FLEAD}")
        a(f"s_cbranch_scc1 L_cl{tag}")
        if o.get("fnr", 0): a(f"s_branch L_nc{tag}")
        a(f"s_and_b32 {sT[2]}, {sT[2]}, {hex(0xffffffff ^ (7 * FS))}")
        a(f"s_cbranch_scc1 L_nc{tag}")
        a(f"s_and_b32 {sT[2]}, s2, {FR - 1}")
        a(f"s_mul_i32 {sT[2]}, {sT[2]}, 4352")
        a(f"s_add_u32 {sT[3]}, {sT[3]}, {sT[2]}")
        a(f"s_load_dword {sT[2]}, s[28:29], {sT[3]} glc")
        a(f"s_lshl_b32 {sT[1]}, {sT[1]}, 2")
        a(f"v_add_u32 v10, {sT[1]}, {vF}")
        a(f"s_waitcnt lgkmcnt(0)")
        a(f"s_cmp_eq_u32 {sT[2]}, {sTg}")
        a(f"s_cbranch_scc0 L_nc{tag}")
        a(f"v_mov_b32 v11, 1")
        a(f"s_mov_b64 exec, 1")
        a(f"ds_add_u32 v10, v11 offset:132")
        a(f"s_mov_b64 exec, -1")
        a(f"s_branch L_nc{tag}")
        a(f"L_cl{tag}:")
        if o.get("fnw", 0): a(f"s_branch L_nc{tag}")
        a(f"s_cmp_eq_u32 {sT[2]}, {4*FS - FDL}")
        a(f"s_cbranch_scc0 L_nc{tag}")
        a(f"v_mul_u32_u24 v10, 4352, {vL}")
        a(f"v_add_u32 v10, {sT[3]}, v10")
        a(f"v_mov_b32 v11, {sTg}")
        if FR < 64: a(f"s_mov_b64 exec, {hex((1 << FR) - 1)}")
        a(f"global_store_dword v10, v11, s[28:29] sc1")
        if FR < 64: a(f"s_mov_b64 exec, -1")
        a(f"L_nc{tag}:")
    def early_pf(mode):
        if o.get("epf", 1) != mode: return 0
        a(f"s_lshl_b32 {sT[5]}, {sH}, 17")
        a(f"s_lshl_b32 {sT[6]}, {sW}, 14")
        a(f"s_add_u32 {sT[5]}, {sT[5]}, {sT[6]}")
        a(f"s_lshl_b32 {sT[6]}, {sB}, 7")
        a(f"s_add_u32 {sT[5]}, {sT[5]}, {sT[6]}")
        if mode == 3:
            a(f"s_add_u32 s80, s12, {sT[5]}")
            a(f"s_addc_u32 s81, s13, 0")
            for j in range(16):
                a(f"s_load_dword s82, s[80:81], {1024*j}")
                if o.get("pf64", 1): a(f"s_load_dword s83, s[80:81], {1024*j+64}")
            return 0
        a(f"v_lshrrev_b32 v11, 3, {vL}")
        a(f"v_and_b32 v10, 7, {vL}")
        a(f"v_lshl_add_u32 v10, v10, 4, {sT[5]}")
        a(f"v_lshl_add_u32 v11, v11, 10, v10")
        a(f"global_load_dwordx4 v[160:163], v11, s[12:13]")
        a(f"v_add_u32 v11, 0x2000, v11")
        a(f"global_load_dwordx4 v[164:167], v11, s[12:13]")
        return 2
    a(f"{NAME}_kernel:")
    a("s_cmpk_ge_u32 s2, 256")
    a("s_cbranch_scc1 L_end")
    a("s_load_dwordx16 s[4:19], s[0:1], 0")
    a("s_load_dwordx8 s[20:27], s[0:1], 64")
    a("s_load_dwordx2 s[28:29], s[0:1], 96")
    stamp(0)
    if o.get("map", 0) == 1:
        a("s_and_b32 s3, s2, 7")
        a("s_lshl_b32 s3, s3, 2")
        a("s_bfe_u32 s44, s2, 0x20003")
        a("s_or_b32 s3, s3, s44")
        a("s_and_b32 s2, s2, 0xe0")
        a("s_or_b32 s2, s2, s3")
    a(f"v_lshrrev_b32 v4, 6, v0")
    a(f"v_and_b32 {vL}, 63, v0")
    a(f"v_readfirstlane_b32 {sW}, v4")
    a(f"v_mov_b32 {vF}, {L_FL}")
    a(f"v_lshl_add_u32 v9, {vL}, 2, {vF}")
    a(f"v_mov_b32 v10, 0")
    a(f"ds_write_b32 v9, v10")
    a(f"v_lshrrev_b32 {vRow}, 4, {vL}")
    a(f"v_and_b32 {vCol}, 15, {vL}")
    a(f"s_mov_b32 s39, 0x20000")
    a(f"s_mov_b32 s38, 0x100000")
    a(f"s_lshl_b32 {sT[0]}, s2, 20")
    a(f"v_xor_b32 v4, {vCol}, {vRow}")
    a(f"v_lshlrev_b32 v4, 4, v4")
    a(f"v_lshl_add_u32 v4, {vRow}, 8, v4")
    a(f"v_xor_b32 v5, 64, v4")
    a(f"v_xor_b32 v6, 0x80, v4")
    a(f"v_xor_b32 v7, 64, v6")
    js = (D - 1) % 4
    sMask = "s40"
    RS = o.get("rs", 4); DS = o.get("ds", 24); jss = (DS - 1) % 4
    a(f"v_mov_b32 v8, {(jss - DS - 3)//4 if RS else (js - D - 3)//4}")
    a(f"s_mov_b32 {sOff}, 0")
    GO = [int(x) for x in str(o.get("go", "15,12,13,16,14")).split(",")]
    GO += [b for b in range(12, 20) if b not in GO]
    GX = [tuple(int(y) for y in x.split("^")) for x in o.get("gx", "13^3,14^4").split(",") if x.strip()]
    sSrc = "s50"
    groups = []
    i = 0
    while i < 8:
        j = i
        while j + 1 < 8 and GO[j+1] == GO[j] + 1: j += 1
        groups.append((12 + i, j - i + 1, GO[i])); i = j + 1
    def srcupd():
        first = True
        for lo, w, dst in groups:
            if lo == dst: a(f"s_and_b32 s49, {sOff}, {hex(((1 << w) - 1) << lo)}")
            else:
                a(f"s_bfe_u32 s49, {sOff}, {hex(lo | (w << 16))}")
                a(f"s_lshl_b32 s49, s49, {dst}")
            a(f"s_xor_b32 {sSrc}, {'s51' if first else sSrc}, s49"); first = False
    if GX == [(13, 3), (14, 4)]:
        a(f"s_lshl_b32 s51, s2, 10")
        a(f"s_and_b32 s51, s51, 0x6000")
    else:
        a(f"s_mov_b32 s51, 0")
        for ab, wb in GX:
            a(f"s_bfe_u32 s49, s2, {hex(wb | (1 << 16))}"); a(f"s_lshl_b32 s49, s49, {ab}"); a(f"s_xor_b32 s51, s51, s49")
    a(f"s_mov_b32 {sSrc}, s51")
    a(f"s_mov_b32 m0, 0")
    a(f"s_movk_i32 {sMask}, 0x100")
    a(f"s_mov_b32 {sR}, 0")
    a(f"s_sub_u32 {sW}, {sW}, 1")
    a("s_waitcnt lgkmcnt(0)")
    a("s_barrier")
    a("s_cbranch_scc0 L_cons")

    a("s_setprio 3")
    if o.get("ss", 0): a("s_memrealtime s[62:63]")
    if o.get("lk", -1) == 0: a("s_memrealtime s[64:65]")
    a(f"s_add_u32 s36, s6, {sT[0]}")
    a(f"s_addc_u32 s37, s7, 0")
    if o.get("skew", 0):
        a(f"s_and_b32 s70, s2, {o.get('skm', 0)}")
        a(f"s_cmp_lg_u32 s70, {o.get('skv', 0)}")
        a("s_cbranch_scc1 L_nsk")
        a("s_mov_b32 s70, s60")
        a("s_atomic_umax s70, s[26:27], 0")
        a("L_nsk:")
        a("s_not_b32 s71, s60")
        a("s_atomic_umax s71, s[26:27], 4")
    PAIR = o.get("pair", 1)
    BR = o.get("br", 1)
    B0 = o.get("b0", 150); BG = o.get("bg", 36); BI = o.get("bi", 0)
    if PAIR:
        def pair_body(Dw, jw, fb, tag):
            for half in range(2):
                if fb and not BR:
                    a(f"s_bitcmp1_b32 {sMask}, {half}")
                    a(f"s_cbranch_scc0 L_nd{tag}{half}")
                    a(f"buffer_load_dword v12, v4, {R}, s38 offen")
                    a(f"L_nd{tag}{half}:")
                for j in range(4):
                    if fb and BR and j % 2 == 0:
                        a(f"s_add_u32 s46, s46, s47")
                        a(f"s_cbranch_scc0 L_nd{tag}{half}{j}")
                        a(f"buffer_load_dword v12, v4, {R}, s38 offen")
                        a(f"L_nd{tag}{half}{j}:")
                    a(f"s_waitcnt vmcnt({Dw-1})")
                    a(f"buffer_load_dwordx4 v{4+j}, {R}, {sSrc} offen offset:{1024*j} nt lds")
                    if j == jw:
                        a("v_add_u32 v8, 1, v8")
                        a(f"ds_write_b32 {vF}, v8")
                    if half == 0 and j == 0: a(f"s_bitset1_b32 {sOff}, 15")
                    if half == 0 and j == 1: a(f"s_addk_i32 {sOff}, 4096")
                    if half == 0 and j == 2: a(f"s_bitset0_b32 {sOff}, 15")
                a(f"s_addk_i32 m0, 4096")
                if half == 0: a(f"s_bitset1_b32 {sSrc}, 15")
                else: a(f"s_xor_b32 {sSrc}, {sOff}, s51")
        if RS:
            a("L_ls:")
            pair_body(DS, jss, 0, "s")
            a(f"s_cmp_lg_u32 m0, {RS*32768}")
            a(f"s_cbranch_scc1 L_ls")
            a(f"v_mov_b32 v8, {(32*RS + js - D - 3)//4}")
            a(f"s_branch L_ld0")
        a("L_ld:")
        pair_body(D, js, FB, "m")
        a(f"s_lshr_b32 {sMask}, {sMask}, 2")
        a(f"s_cmp_lg_u32 {sMask}, 1")
        a(f"s_cbranch_scc1 L_ld")
    else:
        if RS:
            a("L_ls:")
            for j in range(4):
                a(f"s_waitcnt vmcnt({DS-1})")
                if j == jss:
                    a("v_add_u32 v8, 1, v8")
                    a(f"ds_write_b32 {vF}, v8")
                a(f"buffer_load_dwordx4 v{4+j}, {R}, {sSrc} offen offset:{1024*j} nt lds")
            a(f"s_addk_i32 {sOff}, 4096")
            srcupd()
            a(f"s_and_b32 m0, {sOff}, 0x1ffff")
            if o.get("lk", -1) > 0:
                a(f"s_cmp_lg_u32 {sOff}, {o['lk']*4096}")
                a(f"s_cbranch_scc1 L_lk")
                a("s_memrealtime s[64:65]")
                a("L_lk:")
            a(f"s_cmp_lg_u32 {sOff}, {RS*32768}")
            a(f"s_cbranch_scc1 L_ls")
            a(f"v_mov_b32 v8, {(32*RS + js - D - 3)//4}")
            a(f"s_branch L_ld0")
        a("L_ld:")
        if FB:
            a(f"s_bitcmp1_b32 {sMask}, 0")
            a(f"s_cbranch_scc0 L_nd")
            a(f"buffer_load_dword v12, v4, {R}, s38 offen")
            a(f"L_nd:")
        for j in range(4):
            a(f"s_waitcnt vmcnt({D-1})")
            if j == js:
                a("v_add_u32 v8, 1, v8")
                a(f"ds_write_b32 {vF}, v8")
            a(f"buffer_load_dwordx4 v{4+j}, {R}, {sSrc} offen offset:{1024*j} nt lds")
        a(f"s_addk_i32 {sOff}, 4096")
        srcupd()
        a(f"s_and_b32 m0, {sOff}, 0x1ffff")
        a(f"s_lshr_b32 {sMask}, {sMask}, 1")
        a(f"s_cmp_lg_u32 {sMask}, 1")
        a(f"s_cbranch_scc1 L_ld")
    if RS: a(f"s_branch L_ld1")
    else:
        a(f"s_cmp_lg_u32 {sR}, 0")
        a(f"s_cbranch_scc1 L_ld1")
    a("L_ld0:")
    if RS: a(f"s_mov_b32 {sR}, {RS-1}")
    a(f"s_add_u32 s8, s8, {sT[0]}")
    a(f"s_addc_u32 s9, s9, 0")
    a(f"s_mov_b32 {sSpin}, 0x100000")
    LEAN = FB == 2 and BR and o.get("ml", 1)
    if LEAN:
        a(f"v_min_u32 v9, 8, {vL}")
        a(f"v_lshl_add_u32 v9, v9, 2, {vF}")
        a(f"v_mov_b32 v11, {max(RS-1, 0) - 3}")
        a(f"v_cmp_lt_u32 vcc, 7, {vL}")
        a(f"v_mov_b32 v14, {B0}")
        a(f"v_mov_b32 v15, -1000")
        a(f"ds_write_b32 {vF}, v14 offset:64")
        a(f"v_cndmask_b32 v11, v11, v15, vcc")
        a(f"v_cndmask_b32 v10, v10, v14, vcc")
        a(f"s_mov_b32 s46, 0")
        if STAMP == 1: a("s_mov_b32 s79, 0")
    else:
        a(f"v_and_b32 v9, 7, {vL}")
        a(f"v_lshl_add_u32 v9, v9, 2, {vF}")
        a(f"v_mov_b32 v11, {max(RS-1, 0) - 3}")
        if STAMP == 1: a("s_mov_b32 s79, 0")
        if FB == 2:
            a(f"v_mov_b32 v14, {FK0}")
            a(f"ds_write_b32 {vF}, v14 offset:128")
            a(f"v_mov_b32 v15, {vF}")
            a(f"s_cmp_eq_u32 s2, {FLEAD}")
            a(f"s_cselect_b32 s41, {4 if o.get('ml', 1) else 0}, {4 if o.get('fctl', 1) else 0}")
            if BI: a("s_mov_b32 s43, 0"); a("s_mov_b32 s45, 0")
            tab = [0xff, 0x7f, 0x77, 0x75, 0x55, 0x51, 0x11, 0x10]
            a(f"s_mov_b32 s46, {hex(sum(tab[i] << (8*i) for i in range(4)))}")
            a(f"s_mov_b32 s47, {hex(sum(tab[4+i] << (8*i) for i in range(4)))}")
    a("L_ld1:")
    if PAIR: a(f"s_bitset0_b32 m0, 17")
    a(f"s_add_u32 {sR}, {sR}, 1")
    a(f"v_add_u32 v11, 1, v11")
    if STAMP == 1:
        for k, rr in zip((1,2,3,6,7), str(o.get("marks", "2,4,6,8,16")).split(",")):
            a(f"s_cmp_lg_u32 {sR}, {rr}")
            a(f"s_cbranch_scc1 L_mk{k}")
            a(f"s_memrealtime s[{60+2*k}:{61+2*k}]")
            a(f"L_mk{k}:")
    if STAMP == 4:
        for k, rr in ((1, o.get("m0", 99)), (2, o["m1"])):
            a(f"s_cmp_lg_u32 {sR}, {rr}")
            a(f"s_cbranch_scc1 L_mk{k}")
            a(f"s_memrealtime s[{60+2*k}:{61+2*k}]")
            a(f"L_mk{k}:")
    a(f"s_cmp_lg_u32 {sR}, 32")
    a(f"s_cbranch_scc1 L_ldnv")
    a(f"s_mov_b32 s36, s8")
    a(f"s_mov_b32 s37, s9")
    a(f"s_mov_b32 {sOff}, 0")
    a(f"s_mov_b32 {sSrc}, s51")
    for j in range(4): a(f"v_lshlrev_b32 v{4+j}, 4, {vL}")
    stamp(4)
    a("L_ldnv:")
    a(f"s_cmp_eq_u32 {sR}, 64")
    a(f"s_cbranch_scc1 L_drain")
    a("L_ldck:")
    a("s_waitcnt lgkmcnt(0)")
    a(f"v_cmp_lt_i32 vcc, v10, v11")
    a(f"s_cbranch_vccnz L_ldslow")
    a(f"s_movk_i32 {sMask}, 0x100")
    if LEAN:
        a(f"v_readlane_b32 s47, v10, 8")
        if STAMP == 1: a(f"s_lshr_b32 s48, s47, 4"); a(f"s_add_u32 s79, s79, s48")
        a(f"s_cmp_lt_u32 {sR}, 63")
        a(f"s_cselect_b32 s47, s47, 0")
        a(f"s_lshl_b32 s47, s47, 24")
    elif FB == 2:
        if BR:
            a(f"v_readfirstlane_b32 s42, v14")
            if BI:
                a(f"s_sub_u32 s48, s42, 4")
                a(f"s_mul_i32 s48, s48, s43")
                a(f"s_mul_i32 s48, s48, {BI}")
                a(f"s_ashr_i32 s48, s48, 2")
                a(f"s_sub_u32 s45, s45, s48")
                a(f"s_max_i32 s45, s45, {-o.get('bim', 64)}")
                a(f"s_min_i32 s45, s45, {o.get('bim', 64)}")
            a(f"s_mul_i32 s42, s42, {BG}")
            a(f"s_sub_u32 s42, {B0 + 4*BG}, s42")
            if BI: a(f"s_add_u32 s42, s42, s45")
            a(f"s_max_i32 s42, s42, 0")
            a(f"s_min_i32 s42, s42, 255")
            if STAMP == 1: a(f"s_lshr_b32 s48, s42, 4"); a(f"s_add_u32 s79, s79, s48")
            a(f"s_lshl_b32 s47, s42, 24")
            a(f"s_cmp_lt_u32 {sR}, 63")
            a(f"s_cselect_b32 s47, s47, 0")
        else:
            a(f"v_readfirstlane_b32 s42, v14")
            if STAMP == 1:
                a(f"s_add_u32 s79, s79, 8"); a(f"s_sub_u32 s79, s79, s42")
            a(f"s_lshl_b32 s42, s42, 3")
            a(f"s_lshr_b64 s[48:49], s[46:47], s42")
            a(f"s_and_b32 s48, s48, 0xff")
            a(f"s_cmp_lt_u32 {sR}, 63")
            a(f"s_cselect_b32 s48, s48, 0")
            a(f"s_cmp_lt_u32 s42, 64")
            a(f"s_cselect_b32 s48, s48, 0")
            a(f"s_or_b32 {sMask}, {sMask}, s48")
        RA = (FG0 + (FSA + 1 if o.get("ml", 1) else 8*FS) + D//4 + 8 + 7) // 8
        a(f"s_and_b32 s42, {sR}, {FP-1}")
        a(f"s_cmp_eq_u32 s42, {RA % FP}")
        a(f"s_cselect_b32 s42, s41, 0")
        if RA >= FP:
            a(f"s_cmp_ge_u32 {sR}, {RA}")
            a(f"s_cselect_b32 s42, s42, 0")
        lastg = FSA if o.get("ml", 1) else 7 * FS
        KM = len([k for k in range(64) if FG0 + lastg + 8*FP*k + 8 < o.get("fend", 480)])
        if RA + FP * KM < 63:
            a(f"s_cmp_lt_u32 {sR}, {RA + FP * KM}")
            a(f"s_cselect_b32 s42, s42, 0")
        if BI: a(f"s_mov_b32 s43, s42")
        a(f"v_add_u32 v15, s42, v15")
        a(f"ds_read_b32 v14, v15 offset:128")
    a(f"ds_read_b32 v10, v9 offset:32")
    a(f"s_branch L_ld")
    a("L_drain:")
    pub = (2044 + js - D - 3)//4 + 1
    while pub < 512:
        pub += 1
        a(f"s_waitcnt vmcnt({2048 - 4*pub})")
        a("v_add_u32 v8, 1, v8")
        a(f"ds_write_b32 {vF}, v8")
    stamp(5)
    if STAMP == 4:
        a("s_barrier"); a("s_barrier")
        a("s_waitcnt lgkmcnt(0)")
        if "swg" in o:
            a(f"s_cmp_lg_u32 s2, {o['swg']}")
            a("s_cbranch_scc1 L_end")
        if o.get("skew", 0):
            a("s_load_dwordx2 s[64:65], s[26:27], 0 glc")
            a("s_waitcnt lgkmcnt(0)")
            a("s_not_b32 s65, s65")
            a("s_sub_u32 s64, s64, s65")
        else:
            a(f"s_sub_u32 s64, s64, {'s62' if 'm0' in o else 's60'}")
        a(f"s_sub_u32 s64, s64, {o.get('sub', 0)}")
        if o.get("neg", 0): a("s_sub_u32 s64, 0, s64")
        a(f"s_mul_i32 s64, s64, {o.get('amp', 10)}")
        a(f"s_add_u32 s64, s64, 10000")
        a(f"s_min_u32 s64, s64, 100000")
        a("L_pin2:")
        a("s_memrealtime s[66:67]")
        a("s_waitcnt lgkmcnt(0)")
        a("s_sub_u32 s66, s66, s60")
        a(f"s_cmp_lt_u32 s66, s64")
        a("s_cbranch_scc1 L_pin2")
    elif STAMP == 3:
        a(f"s_memrealtime s[74:75]")
        a("s_waitcnt lgkmcnt(0)")
        a(f"s_cmp_lg_u32 s2, {o.get('swg', 5)}")
        a("s_cbranch_scc1 L_end")
        for i in range(8): a(f"v_writelane_b32 v16, s{60+2*i}, {i}")
        a(f"v_subrev_u32 v16, s60, v16")
        a(f"v_lshlrev_b32 v17, 2, {vL}")
        a(f"s_mov_b64 exec, 0xff")
        a(f"global_store_dword v17, v16, s[26:27] offset:32")
    elif STAMP in (1, 2):
        if STAMP == 2:
            for i in (1,2,3,6,7): a(f"s_mov_b64 s[{60+2*i}:{61+2*i}], 0")
        a("s_branch L_fin")
    a("s_endpgm")
    a("L_ldslow:")
    a(f"ds_read_b32 v10, v9 offset:32")
    if BOUND:
        a(f"s_sub_u32 {sSpin}, {sSpin}, 1")
        a(f"s_cbranch_scc1 L_end")
    a("s_branch L_ldck")

    a("L_cons:")
    a(f"s_lshr_b32 {sB}, s2, 5")
    a(f"s_and_b32 {sH}, s2, 31")
    a(f"s_mov_b32 {sHI}, 0xffff0000")
    a(f"s_mov_b32 s59, 0x20000")
    a(f"s_lshl_b32 {sT[0]}, {sB}, 10")
    a(f"v_lshlrev_b32 v8, 4, {vL}")
    a(f"s_mov_b32 {sSpin}, 0x100000")
    a(f"s_add_u32 s4, s4, {sT[0]}")
    a(f"s_addc_u32 s5, s5, 0")
    a(f"global_load_dwordx4 v[4:7], v8, s[4:5] {WP}")
    if o.get("ipf", 1):
        a(f"s_getpc_b64 s[46:47]")
        a("L_pc:")
        a(f"s_lshl_b32 {sT[0]}, {sW}, 10")
        a(f"v_add_u32 v9, {sT[0]}, v8")
        a(f"v_min_u32 v9, L_end-L_pc-12, v9")
        a(f"global_load_dwordx4 v[16:19], v9, s[46:47]")
    a(f"s_lshl_b32 {sT[0]}, {sW}, 19")
    a(f"s_lshl_b32 {sT[1]}, {sH}, 8")
    a(f"s_add_u32 {sT[0]}, {sT[0]}, {sT[1]}")
    a(f"s_add_u32 s36, s10, {sT[0]}")
    a(f"s_addc_u32 s37, s11, 0")
    a(f"s_mov_b32 s38, {o.get('wqn', 0x80000)}")
    QM = o.get("qm", 1)
    a(f"v_lshlrev_b32 v9, {14 if QM else 17}, {vRow}")
    a(f"v_lshl_add_u32 v9, {vCol}, 4, v9")
    if QM: a(f"s_lshl_b32 {sT[2]}, {sW}, 16")
    elif ROT: a(f"s_lshl_b32 {sT[2]}, {sB}, 14")
    else: a(f"s_mov_b32 {sT[2]}, 0")
    def wqload(j):
        a(f"s_xor_b32 {sT[3]}, {sT[2]}, {((j >> 1) * 8 + (j & 1)) * 8192 if QM else j*8192}")
        a(f"buffer_load_dwordx4 {wslot(j)}, v9, {R}, {sT[3]} offen {o.get('wqpol', 'nt')}")
    WQS = o.get("wqs", 4); PRE = o.get("pre", 3)
    NQ0 = WQP if WQP else (WQS if WQS else 16)
    if FB == 2:
        a(f"s_mov_b32 {sT[4]}, 0x180000")
        a(f"s_load_dword {sTg}, s[28:29], {sT[4]}")
    npf = early_pf(1)
    for j in range(NQ0): wqload(j)
    early_pf(3)
    a(f"s_waitcnt vmcnt({NQ0 + npf})")
    stamp(1)
    ln_start = len(a.lines)
    X = [f"v{16+i}" for i in range(8)]
    def unpack(src4):
        for i in range(4):
            a(f"v_lshlrev_b32 {X[2*i]}, 16, v{src4+i}")
            a(f"v_and_b32 {X[2*i+1]}, {sHI}, v{src4+i}")
    def ln(sM, sD, write):
        a(f"v_add_f32 v24, {X[0]}, {X[1]}")
        for i in range(2, 8): a(f"v_add_f32 v24, v24, {X[i]}")
        wave_reduce("v_add_f32", "v24", sT[0])
        a("s_nop 1")
        a(f"v_mov_b32 v25, {sT[0]}")
        a(f"v_mul_f32 v25, {hex(f2u(1.0/512))}, v25")
        a(f"v_sub_f32 v26, {X[0]}, v25")
        a(f"v_mul_f32 v24, v26, v26")
        for i in range(1, 8):
            a(f"v_sub_f32 v26, {X[i]}, v25")
            a(f"v_fmac_f32 v24, v26, v26")
        wave_reduce("v_add_f32", "v24", sT[0])
        rbf("v25")
        a(f"v_mov_b32 v24, {sT[0]}")
        a(f"v_mul_f32 v24, {hex(f2u(1.0/512))}, v24")
        rbf("v24")
        a(f"v_add_f32 v24, {hex(f2u(1e-5))}, v24")
        rbf("v24")
        a(f"v_sqrt_f32 v24, v24")
        a("s_nop 0")
        rbf("v24")
        a(f"v_rcp_f32 v24, v24")
        a(f"v_readfirstlane_b32 {sM}, v25")
        a(f"v_readfirstlane_b32 {sD}, v24")
        if write:
            for i in range(8): a(f"v_sub_f32 {X[i]}, {X[i]}, v25")
            for i in range(4): a(f"v_cvt_pk_bf16_f32 v{4+i}, {X[2*i]}, {X[2*i+1]}")
            unpack(4)
            for i in range(8): a(f"v_mul_f32 {X[i]}, {X[i]}, v24")
            for i in range(4): a(f"v_cvt_pk_bf16_f32 v{4+i}, {X[2*i]}, {X[2*i+1]}")
    unpack(4)
    ln(sM1, sD1, True)
    a(f"v_add_u32 v8, {L_XN}, v8")
    a(f"ds_write_b128 v8, v[4:7]")
    a(f"s_lshl_b32 {sT[0]}, {sW}, 7")
    if QM:
        a(f"s_lshl_b32 {sT[1]}, {sW}, 4")
        a(f"s_add_u32 {sT[0]}, {sT[0]}, {sT[1]}")
    elif ROT:
        a(f"s_lshl_b32 {sT[1]}, {sB}, 2")
        a(f"s_add_u32 {sT[0]}, {sT[0]}, {sT[1]}")
    a(f"s_add_u32 {sT[0]}, {sT[0]}, {L_XN}")
    a(f"v_lshl_add_u32 v8, {vRow}, {2 if QM else 5}, {sT[0]}")
    assert L_XN % 128 == 0
    for i in range(8):
        if i:
            a(f"v_xor_b32 v10, {16*i if QM else 4*i}, v8")
            a(f"ds_read_b32 v{QF+i}, v10")
        else:
            a(f"ds_read_b32 v{QF+i}, v8")
    for i in range(8): a(f"v_mov_b32 {ACC[i]}, 0")
    if WQP:
        body = a.lines[ln_start:]; del a.lines[ln_start:]
        nins = 16 - NQ0
        LNF = o.get("lnf", 100)
        inl = nins * LNF // 100
        pts = [int((k + 0.5) * len(body) / inl) for k in range(inl)] if inl else []
        k = 0
        for idx, line in enumerate(body):
            while k < inl and pts[k] == idx:
                a(f"s_waitcnt vmcnt({NQ0-1})"); wqload(NQ0 + k); k += 1
            a.lines.append(line)
        while k < nins:
            a(f"s_waitcnt vmcnt({NQ0-1})"); wqload(NQ0 + k); k += 1
    WQ2 = o.get("wq2", 3)
    WQL = o.get("wql", 0)
    nissued = NQ0
    if WQL:
        body = a.lines[ln_start:]; del a.lines[ln_start:]
        pts = [int(k * len(body) / WQL) for k in range(WQL)]
        k = 0
        for idx, line in enumerate(body):
            while k < WQL and pts[k] == idx:
                a(f"s_waitcnt vmcnt({WQ2-1})"); wqload(nissued); nissued += 1; k += 1
            a.lines.append(line)
    elif WQS:
        early_pf(2)
        nissued = min(16, WQS + WQ2) if WQ2 else 16
        for j in range(WQS, nissued): wqload(j)
    if WQS: NQ0 = 16
    ST = [DT, 128, 144]
    def preread(n):
        if n: a(f"v_add_u32 v12, 0x8000, v12")
        for t in range(1, 4): a(f"v_xor_b32 v{19+t}, {64*t}, v12")
        a(f"s_add_u32 {sT[4]}, {sW}, {8*n}")
        spin(0, "s_cmp_gt_i32", sT[4], "v14", sT[0])
        a(f"ds_read_b128 v[{ST[n]}:{ST[n]+3}], v12")
        for t in range(1, 4): a(f"ds_read_b128 v[{ST[n]+4*t}:{ST[n]+4*t+3}], v{19+t}")
        a(f"v_mov_b32 v14, {n+1}")
        a("s_waitcnt lgkmcnt(0)")
        a(f"ds_write_b32 v13, v14 offset:32")
    PJ = [int(x) for x in str(o.get("pj", "6,11")).split(",")]
    if PRE:
        a(f"v_xor_b32 v12, {vRow}, {vCol}")
        a(f"v_lshlrev_b32 v12, 4, v12")
        a(f"v_lshl_add_u32 v12, {vCol}, 8, v12")
        a(f"s_lshl_b32 {sT[0]}, {sW}, 12")
        a(f"v_add_u32 v12, {sT[0]}, v12")
        a(f"s_lshl_b32 {sT[0]}, {sW}, 2")
        a(f"v_add_u32 v13, {sT[0]}, {vF}")
        preread(0)
    else:
        a("s_waitcnt lgkmcnt(0)")
    for j in range(16):
        for n in range(1, PRE):
            if PJ[n-1] == j: preread(n)
        src = f"v{QF + j//2}"
        if j % 2 == 0:
            a(f"v_and_b32 v10, 0xffff, {src}"); a(f"v_lshlrev_b32 v11, 16, {src}")
        else:
            a(f"v_lshrrev_b32 v10, 16, {src}"); a(f"v_and_b32 v11, {sHI}, {src}")
        if WQ2:
            a(f"s_waitcnt vmcnt({nissued - j - 1})")
            while nissued < 16 and nissued - j - 1 < WQ2:
                wqload(nissued); nissued += 1
        elif 15 - j < NQ0: a(f"s_waitcnt vmcnt({15 - j})")
        for i in range(4):
            a(f"v_dot2c_f32_bf16 {ACC[2*i]}, v10, v{WREG+4*j+i}")
            a(f"v_dot2c_f32_bf16 {ACC[2*i+1]}, v11, v{WREG+4*j+i}")
    stamp(2)
    vPA = "v23"
    a(f"s_mul_i32 {sT[0]}, {sW}, 528")
    a(f"s_add_u32 {sT[0]}, {sT[0]}, {L_QP}")
    a(f"v_lshl_add_u32 v15, {vCol}, 5, {sT[0]}")
    a(f"v_lshl_add_u32 v15, {vRow}, 3, v15")
    rows_reduce8("v15")
    a(f"v_mov_b32 v10, 1")
    a("s_waitcnt lgkmcnt(0)")
    a(f"s_mov_b64 exec, 1")
    a(f"ds_add_u32 {vF}, v10 offset:4")
    a(f"s_mov_b64 exec, -1")
    MX = 128
    for i in range(4): a(f"v_mov_b32 v{160+i}, v{4+i}")
    spin(4, "s_cmp_ge_u32", 8, "v10", sT[0])
    a(f"v_lshlrev_b32 v10, 3, {vL}")
    a(f"v_add_u32 v10, {L_QP}, v10")
    for w in range(8): a(f"ds_read_b64 v[{WREG+2*w}:{WREG+2*w+1}], v10 offset:{528*w}")
    a("s_waitcnt lgkmcnt(0)")
    for st in (8, 4, 2):
        for i in range(st): a(f"v_add_f32 v{WREG+i}, v{WREG+i}, v{WREG+st+i}")
    a(f"v_cvt_pk_bf16_f32 v{WREG}, v{WREG}, v{WREG+1}")
    a(f"v_lshlrev_b32 v10, 2, {vL}")
    a(f"v_add_u32 v10, {L_XN}, v10")
    a(f"ds_write_b32 v10, v{WREG}")
    a(f"v_lshlrev_b32 v10, 4, {vRow}")
    a(f"v_add_u32 v10, {L_XN}, v10")
    for t in range(4): a(f"ds_read_b128 v[{QF+4*t}:{QF+4*t+3}], v10 offset:{64*t}")
    vH, vMA, vC0 = "v138", "v139", "v140"
    a(f"s_mov_b32 {sL2E}, {hex(f2u(l2e))}")
    a(f"s_mov_b32 {sK}, {hex(f2u(128 ** -0.5))}")
    vKA, vSA, vDA, vM, vLs, vDn = "v4", "v5", "v6", "v7", "v8", "v9"
    a(f"v_xor_b32 {vKA}, {vRow}, {vCol}")
    a(f"v_lshlrev_b32 {vKA}, 4, {vKA}")
    a(f"v_lshl_add_u32 {vKA}, {vCol}, 8, {vKA}")
    a(f"s_lshl_b32 {sT[0]}, {sW}, 12")
    a(f"v_add_u32 {vKA}, {sT[0]}, {vKA}")
    a(f"s_lshl_b32 {sT[0]}, {sW}, 6")
    a(f"s_add_u32 {sT[0]}, {sT[0]}, {L_SC}")
    a(f"v_lshl_add_u32 {vSA}, {vCol}, 2, {sT[0]}")
    a(f"s_lshl_b32 {sT[0]}, {sW}, 2")
    a(f"v_add_u32 {vDA}, {sT[0]}, {vF}")
    a(f"v_mov_b32 {vM}, 0xff7fffff")
    a(f"v_mov_b32 {vLs}, 0")
    a(f"v_mov_b32 {vDn}, 0")
    a(f"s_mov_b32 {sG}, {sW}")
    a(f"s_mov_b32 {sR}, 0")
    a(f"s_lshl_b32 {sT[0]}, {sH}, 17")
    a(f"s_lshl_b32 {sT[1]}, {sW}, 14")
    a(f"s_add_u32 {sT[0]}, {sT[0]}, {sT[1]}")
    a(f"s_add_u32 s36, s12, {sT[0]}")
    a(f"s_addc_u32 s37, s13, 0")
    a(f"s_mov_b32 s38, {o.get('won', 16384)}")
    OM = o.get("om", 1); sOX = "s10"
    if OM:
        a(f"s_xor_b32 {sOX}, {sW}, {sH}")
        a(f"s_and_b32 {sOX}, {sOX}, 7")
        a(f"s_lshl_b32 {sOX}, {sOX}, 11")
    a(f"s_mul_i32 {sOff}, {sW}, {WOS}")
    a(f"s_add_u32 {sOff}, {sOff}, {WMR}")
    if FB == 2:
        a(f"s_add_u32 {sTg}, {sTg}, 1")
        a(f"s_movk_i32 s11, {o.get('b0', 150) * (64 if o.get('clk', 0) else 1)}")
    stamp(3)
    if PRE:
        a("s_waitcnt lgkmcnt(0)")
        a("s_branch L_kmid")
    if PRE > 1:
        a("L_kst:")
        for n in range(1, PRE):
            for i in range(16): a(f"v_mov_b32 v{ST[n-1]+i}, v{ST[n]+i}")
        a("s_branch L_kmid")
    a("L_k:")
    if PRE > 1:
        a(f"s_cmp_lt_u32 {sR}, {PRE}")
        a(f"s_cbranch_scc1 L_kst")
    for t in range(1, 4): a(f"v_xor_b32 v{10+t}, {64*t}, {vKA}")
    spin(0, "s_cmp_gt_i32", sG, "v10", sT[0])
    a(f"ds_read_b128 v[{DT}:{DT+3}], {vKA}")
    for t in range(1, 4): a(f"ds_read_b128 v[{DT+4*t}:{DT+4*t+3}], v{10+t}")
    a("L_kmid:")
    a(f"v_add_u32 {vDn}, 1, {vDn}")
    a(f"v_add_u32 {vKA}, 0x8000, {vKA}")
    a(f"v_and_b32 {vKA}, 0x1ffff, {vKA}")
    for t in range(4):
        a(f"s_waitcnt lgkmcnt({3-t})")
        a(f"v_mfma_f32_16x16x32_bf16 v[16:19], v[{QF+4*t}:{QF+4*t+3}], v[{DT+4*t}:{DT+4*t+3}], {'0' if t == 0 else 'v[16:19]'}")
    if PRE > 1:
        a(f"v_max_u32 v10, {PRE}, {vDn}")
        a(f"ds_write_b32 {vDA}, v10 offset:32")
        a(f"s_add_u32 {sG}, {sG}, 8")
        a(f"s_nop 4")
    else:
        a(f"ds_write_b32 {vDA}, {vDn} offset:32")
        a(f"s_add_u32 {sG}, {sG}, 8")
        a(f"s_nop 5")
    rbf("v16")
    a(f"v_mul_f32 v16, {sK}, v16")
    rbf("v16")
    a(f"ds_write_b32 {vSA}, v16")
    a(f"v_max_f32 v17, {vM}, v16")
    a(f"v_sub_f32 v18, {vM}, v17")
    a(f"v_sub_f32 v16, v16, v17")
    a(f"v_mul_f32 v18, {sL2E}, v18")
    a(f"v_mul_f32 v16, {sL2E}, v16")
    a(f"v_exp_f32 v18, v18")
    a(f"v_exp_f32 v16, v16")
    a(f"v_mov_b32 {vM}, v17")
    a(f"v_add_u32 {vSA}, 512, {vSA}")
    a(f"v_fma_f32 {vLs}, {vLs}, v18, v16")
    ctl("k")
    a(f"v_lshlrev_b32 v10, 4, {vL}")
    WPF = o.get("wpf", -1)
    if WPF >= 0:
        a(f"s_cmp_lg_u32 {sR}, {WPF}")
        a(f"s_cbranch_scc1 L_npf")
        a(f"v_lshrrev_b32 v11, 3, {vL}")
        a(f"v_and_b32 v12, 7, {vL}")
        a(f"v_lshlrev_b32 v12, 4, v12")
        a(f"v_lshl_add_u32 v11, v11, 10, v12")
        a(f"s_lshl_b32 {sT[1]}, {sB}, 7")
        a(f"buffer_load_dwordx4 {wslot(14)}, v11, {R}, {sT[1]} offen {o.get('pfp', '')}")
        a(f"s_add_u32 {sT[1]}, {sT[1]}, 8192")
        a(f"buffer_load_dwordx4 {wslot(15)}, v11, {R}, {sT[1]} offen {o.get('pfp', '')}")
        a("L_npf:")
    if WOT:
        rounds = {}
        for j in range(16): rounds.setdefault(WOR + j * WOM // WOD, []).append(j)
        if SPF:
            for j in range(16): rounds.setdefault(WOR + j * WOM // WOD - SPF, []).append(-1 - j)
        for rr, js_ in sorted(rounds.items()):
            a(f"s_cmp_lg_u32 {sR}, {rr}")
            a(f"s_cbranch_scc1 L_wo{rr}")
            for j in js_:
                if j < 0:
                    jj = -1 - j
                    a(f"s_lshl_b32 {sT[1]}, {sB}, 7")
                    a(f"s_add_u32 {sT[1]}, {sT[1]}, {1024*jj}")
                    a(f"s_load_dword {sT[2]}, s[36:37], {sT[1]}")
                    a(f"s_add_u32 {sT[1]}, {sT[1]}, 64")
                    a(f"s_load_dword {sT[3]}, s[36:37], {sT[1]}")
                    continue
                if OM: a(f"s_xor_b32 {sT[1]}, {sOX}, {1024*j}")
                else: a(f"s_movk_i32 {sT[1]}, {1024*j}")
                a(f"buffer_load_dwordx4 {wslot(j)}, v10, {R}, {sT[1]} offen {WOP}")
            a(f"L_wo{rr}:")
    a(f"s_cmp_lg_u32 {sR}, {sOff}")
    a(f"s_cbranch_scc1 L_nowo")
    if not WOT:
        for j in range(16):
            if j % 4 == 0: a(f"s_movk_i32 {sT[1]}, {1024*j}")
            a(f"buffer_load_dwordx4 {wslot(j)}, v10, {R}, {sT[1]} offen offset:{1024*(j%4)} {WP}")
    a(f"s_lshl_b32 {sT[0]}, {sH}, 5")
    a(f"v_lshl_add_u32 v11, {vCol}, 1, {sT[0]}")
    a(f"global_load_ushort v138, v11, s[4:5] {WP}")
    a(f"s_mul_i32 {sT[0]}, {sW}, 448")
    a(f"v_mul_u32_u24 v11, 112, {vRow}")
    a(f"v_lshl_add_u32 v11, {vCol}, 2, v11")
    a(f"v_add_u32 v11, {sT[0]}, v11")
    a(f"v_cmp_lt_u32 vcc, 13, {vCol}")
    a(f"v_mov_b32 v12, 0x10000")
    a(f"s_mov_b32 s58, 3584")
    a(f"v_cndmask_b32 v11, v11, v12, vcc")
    for k, p in enumerate([16, 18, 20]):
        a(f"s_mov_b32 s56, s{p}"); a(f"s_mov_b32 s57, s{p+1}")
        for s_ in range(2):
            a(f"buffer_load_dword v{MX + 5*s_ + (1,3,4)[k]}, v11, {W2}, 0 offen offset:{56*s_} {WP}")
    a(f"s_load_dword {sB2}, s[22:23], 0")
    if TAIL == 3:
        a(f"s_lshl_b32 {sT[0]}, {sB}, 8")
        a(f"s_add_u32 {sT[0]}, {sT[0]}, 0x180000")
        a(f"s_load_dword {sE}, s[28:29], {sT[0]}")
    a("L_nowo:")
    a(f"s_cmp_lg_u32 {sR}, 15")
    a(f"s_cbranch_scc1 L_noms")
    unpack(160)
    ln(sM2, sD2, False)
    a("s_waitcnt vmcnt(0)")
    a(f"v_lshlrev_b32 {vH}, 16, v138")
    a(f"v_mov_b32 v145, {vH}")
    a(f"v_subrev_f32 {vH}, {sM1}, {vH}"); rbf(vH)
    a(f"v_mul_f32 {vH}, {sD1}, {vH}"); rbf(vH)
    a(f"v_subrev_f32 {vH}, {sM2}, {vH}"); rbf(vH)
    a(f"v_mul_f32 {vH}, {sD2}, {vH}"); rbf(vH)
    for s_ in range(2):
        b = MX + 5*s_
        a(f"v_lshlrev_b32 v{b}, 16, v{b+1}"); a(f"v_and_b32 v{b+1}, {sHI}, v{b+1}")
        a(f"v_lshlrev_b32 v{b+2}, 16, v{b+3}"); a(f"v_and_b32 v{b+3}, {sHI}, v{b+3}")
    kb = math.sqrt(2.0/math.pi)
    a(f"v_mov_b32 {vC0}, {hex(f2u(-2*kb*l2e))}")
    a(f"s_mov_b32 {sC1}, {hex(f2u(-2*kb*l2e*0.044715))}")
    a(f"v_mov_b32 {vMA}, 0")
    a("L_noms:")
    a(f"s_cmp_lt_u32 {sR}, 16")
    a(f"s_cbranch_scc1 L_nomix")
    BC = "row_newbcast:0 " + FULL
    for s_ in range(2):
        b = MX + 5*s_
        a(f"v_mul_f32_dpp v16, v{b}, {vH} {BC}")
        a(f"v_mul_f32_dpp v17, v{b+1}, {vH} {BC}")
        a(f"v_cvt_pk_bf16_f32 v17, v16, v17")
        a(f"v_lshlrev_b32 v16, 16, v17"); a(f"v_and_b32 v17, {sHI}, v17")
        a(f"v_add_f32_dpp v16, v{b+2}, v16 {BC}")
        a(f"v_add_f32_dpp v17, v{b+3}, v17 {BC}")
        a(f"v_cvt_pk_bf16_f32 v17, v16, v17")
        a(f"v_lshlrev_b32 v16, 16, v17"); a(f"v_and_b32 v17, {sHI}, v17")
        a(f"v_mul_f32 v18, v16, v16"); a(f"v_mul_f32 v19, v17, v17")
        a(f"v_fma_f32 v18, v18, {sC1}, {vC0}"); a(f"v_fma_f32 v19, v19, {sC1}, {vC0}")
        a(f"v_mul_f32 v18, v18, v16"); a(f"v_mul_f32 v19, v19, v17")
        a(f"v_exp_f32 v18, v18"); a(f"v_exp_f32 v19, v19")
        a(f"v_mov_b32_dpp v{b}, v{b} row_ror:15 {FULL}")
        a(f"v_add_f32 v18, 1.0, v18"); a(f"v_add_f32 v19, 1.0, v19")
        a(f"v_rcp_f32 v18, v18"); a(f"v_rcp_f32 v19, v19")
        a(f"v_mov_b32_dpp v{b+1}, v{b+1} row_ror:15 {FULL}")
        a(f"v_mul_f32 v18, v18, v16"); a(f"v_mul_f32 v19, v19, v17")
        a(f"v_cvt_pk_bf16_f32 v18, v18, v19")
        a(f"v_mov_b32_dpp v{b+2}, v{b+2} row_ror:15 {FULL}")
        a(f"v_mov_b32_dpp v{b+3}, v{b+3} row_ror:15 {FULL}")
        a(f"v_dot2c_f32_bf16_dpp {vMA}, v{b+4}, v18 {BC}")
        a(f"v_mov_b32_dpp v{b+4}, v{b+4} row_ror:15 {FULL}")
    a("L_nomix:")
    probe("k")
    a(f"s_add_u32 {sR}, {sR}, 1")
    a(f"s_cmp_lt_u32 {sR}, 32")
    a(f"s_cbranch_scc1 L_k")
    if STAMP: pass
    a(f"v_mov_b32 v16, {vM}")
    allreduce("v_max_f32", ["v16"], 4)
    a(f"v_sub_f32 v17, {vM}, v16")
    a(f"v_mul_f32 v17, {sL2E}, v17")
    a(f"v_exp_f32 v17, v17")
    a(f"s_lshl_b32 {sT[0]}, {sW}, 3")
    a(f"v_add_u32 v18, {sT[0]}, {vF}")
    a(f"v_mul_f32 v17, v17, {vLs}")
    allreduce("v_add_f32", ["v17"], 4)
    a(f"ds_write_b64 v18, v[16:17] offset:192")
    rows_sum(vMA, "v19")
    a(f"s_lshl_b32 {sT[0]}, {sW}, 6")
    a(f"s_add_u32 {sT[0]}, {sT[0]}, {L_BP}")
    a(f"v_lshl_add_u32 v19, {vCol}, 2, {sT[0]}")
    a(f"ds_write_b32 v19, {vMA}")
    a(f"v_mov_b32 v10, 1")
    a("s_waitcnt lgkmcnt(0)")
    a(f"s_mov_b64 exec, 1")
    a(f"ds_add_u32 {vF}, v10 offset:8")
    a(f"s_mov_b64 exec, -1")
    a(f"s_mov_b32 {sT[0]}, 0x05040100")
    a(f"s_mov_b32 {sT[1]}, 0x07060302")
    a("s_waitcnt vmcnt(0)")
    for p in range(8):
        for i in range(4):
            r0 = WREG + 8*p + i; r1 = r0 + 4
            a(f"v_perm_b32 v16, v{r1}, v{r0}, {sT[0]}")
            a(f"v_perm_b32 v{r1}, v{r1}, v{r0}, {sT[1]}")
            a(f"v_mov_b32 v{r0}, v16")
    spin(8, "s_cmp_ge_u32", 8, "v10", sT[0])
    a(f"v_and_b32 v18, 7, {vL}")
    a(f"v_lshl_add_u32 v18, v18, 3, {vF}")
    a(f"ds_read_b64 v[16:17], v18 offset:192")
    a(f"v_lshlrev_b32 v19, 2, {vL}")
    a(f"v_add_u32 v18, {L_BP}, v19")
    a(f"ds_read_b32 v20, v18")
    a(f"ds_read_b32 v21, v18 offset:256")
    a("s_waitcnt lgkmcnt(0)")
    a(f"v_mov_b32 {vM}, v16")
    allreduce("v_max_f32", [vM], 3)
    a(f"v_sub_f32 v16, v16, {vM}")
    a(f"v_mul_f32 v16, {sL2E}, v16")
    a(f"v_exp_f32 v16, v16")
    a(f"v_add_f32 v20, v20, v21")
    a(f"v_mul_f32 {vLs}, v16, v17")
    allreduce("v_add_f32", [vLs], 3)
    a(f"v_rcp_f32 {vLs}, {vLs}")
    rows_sum("v20", "v21")
    rbf("v20")
    a(f"s_lshl_b32 {sB2}, {sB2}, 16")
    a(f"v_add_f32 v20, {sB2}, v20")
    rbf("v20")
    if TAIL == 3:
        a(f"v_and_b32 v21, 7, {vL}")
        a(f"v_lshrrev_b32 v22, 5, {vL}")
        a(f"v_lshl_add_u32 v21, v21, 1, v22")
        a(f"v_lshlrev_b32 v22, 2, v21")
        a(f"ds_bpermute_b32 v146, v22, v20")
        a(f"ds_bpermute_b32 v145, v22, v145")
        a(f"s_lshl_b32 {sT[0]}, s2, 5")
        a(f"v_lshl_add_u32 v147, v21, 1, {sT[0]}")
        a(f"s_add_u32 {sE}, {sE}, 1")
    else:
        a(f"s_lshl_b32 {sT[0]}, s2, 6")
        a(f"s_add_u32 {sT[0]}, {sT[0]}, 0x80000")
        a(f"s_add_u32 s56, s28, {sT[0]}")
        a(f"s_addc_u32 s57, s29, 0")
        a(f"s_cmp_eq_u32 {sW}, 0")
        a(f"s_cselect_b32 s58, 64, 0")
        a(f"buffer_store_dword v20, v19, {W2}, 0 offen sc1")
    a(f"s_lshl_b32 {sT[0]}, {sW}, 12")
    a(f"v_lshl_add_u32 {vKA}, {vL}, 4, {sT[0]}")
    a(f"v_and_b32 {vSA}, 3, {vL}")
    a(f"v_lshl_add_u32 {vSA}, {vSA}, 2, {vRow}")
    a(f"s_lshl_b32 {sT[0]}, {sW}, 6")
    a(f"s_add_u32 {sT[0]}, {sT[0]}, {L_SC}")
    a(f"v_lshl_add_u32 {vSA}, {vSA}, 2, {sT[0]}")
    for i in range(8): a(f"v_mov_b32 {ACC[i]}, 0")
    a(f"s_mov_b32 {sR}, 0")
    stamp(4)
    a("L_v:")
    a(f"ds_read_b32 v16, {vSA}")
    a(f"v_add_u32 {vSA}, 512, {vSA}")
    a(f"v_add_u32 {vDn}, 1, {vDn}")
    a("s_waitcnt lgkmcnt(0)")
    a(f"v_sub_f32 v16, v16, {vM}")
    a(f"v_mul_f32 v16, {sL2E}, v16")
    a(f"v_exp_f32 v16, v16")
    a(f"s_add_u32 {sR}, {sR}, 1")
    a(f"v_mul_f32 v16, v16, {vLs}")
    a(f"v_cvt_pk_bf16_f32 v16, v16, v16")
    a(f"v_lshrrev_b32 v17, 16, v16")
    a(f"v_and_b32 v16, {sHI}, v16")
    spin(0, "s_cmp_gt_i32", sG, "v10", sT[0])
    for t in range(4): a(f"ds_read_b128 v[{DT+4*t}:{DT+4*t+3}], {vKA} offset:{1024*t}")
    a(f"v_add_u32 {vKA}, 0x8000, {vKA}")
    a(f"v_and_b32 {vKA}, 0x1ffff, {vKA}")
    a(f"s_add_u32 {sG}, {sG}, 8")
    for j in range(4):
        a(f"s_waitcnt lgkmcnt({3-j})")
        if j == 3: a(f"ds_write_b32 {vDA}, {vDn} offset:32")
        for i in range(4):
            a(f"v_dot2c_f32_bf16_dpp {ACC[2*i]}, v17, v{DT+4*j+i} quad_perm:[{j},{j},{j},{j}] {FULL}")
            a(f"v_dot2c_f32_bf16_dpp {ACC[2*i+1]}, v16, v{DT+4*j+i} quad_perm:[{j},{j},{j},{j}] {FULL}")
    probe("v")
    ctl("v")
    a(f"s_cmp_lt_u32 {sR}, 32")
    a(f"s_cbranch_scc1 L_v")
    stamp(5)
    if o.get("notail", 0) == 1:
        stamp(6); stamp(7)
        a("s_branch L_fin")
    a("s_nop 0")
    rows_reduce8("v15")
    a(f"v_and_b32 v10, 7, {vL}")
    a(f"v_mul_u32_u24 v10, 528, v10")
    a(f"v_and_b32 v11, 0x38, {vL}")
    if OM:
        a(f"s_lshr_b32 {sT[0]}, {sOX}, 8")
        a(f"v_xor_b32 v11, {sT[0]}, v11")
    a(f"s_lshl_b32 {sT[0]}, {sW}, 6")
    a(f"s_add_u32 {sT[0]}, {sT[0]}, {L_QP}")
    a(f"v_add3_u32 v10, v10, v11, {sT[0]}")
    a("s_waitcnt lgkmcnt(0)")
    a("s_barrier")
    tstamp(1)
    a(f"ds_read_b64 v[16:17], v10")
    for i in range(8): a(f"v_mov_b32 {ACC[i]}, 0")
    a("s_waitcnt lgkmcnt(0)")
    allreduce("v_add_f32", ["v16", "v17"], 3)
    a("v_cvt_pk_bf16_f32 v16, v16, v17")
    a("s_nop 0")
    for p in range(8): a(f"v_readlane_b32 {sT[p]}, v16, {8*p}")
    for p in range(8):
        for i in range(4):
            a(f"v_dot2c_f32_bf16 {ACC[2*i]}, {sT[p]}, v{WREG+8*p+i}")
            a(f"v_dot2c_f32_bf16 {ACC[2*i+1]}, {sT[p]}, v{WREG+8*p+4+i}")
    a(f"s_lshl_b32 {sT[0]}, {sW}, 11")
    a(f"v_lshl_add_u32 v10, {vL}, 5, {sT[0]}")
    a(f"s_lshl_b32 {sT[0]}, {sW}, 8")
    a(f"v_lshl_add_u32 v11, {vL}, 2, {sT[0]}")
    a(f"ds_write_b128 v10, v[24:27] offset:{L_Y}")
    a(f"ds_write_b128 v10, v[28:31] offset:{L_Y+16}")
    if TAIL == 3:
        a(f"s_lshl_b32 {sT[0]}, {sB}, 17")
        a(f"s_add_u32 s56, s28, {sT[0]}")
        a(f"s_addc_u32 s57, s29, 0")
        a(f"s_mov_b32 s58, 0x20000")
        a(f"s_lshl_b32 {sT[0]}, {sW}, 14")
        a(f"s_lshl_b32 {sT[1]}, {sH}, 7")
        a(f"s_add_u32 {sT[0]}, {sT[0]}, {sT[1]}")
        if o.get("st4", 1):
            a(f"v_bfe_u32 v13, {vL}, 3, 2")
            a(f"v_lshl_add_u32 v12, v13, 12, {sT[0]}")
            a(f"v_and_b32 v13, 7, {vL}")
            a(f"v_lshl_add_u32 v12, v13, 4, v12")
            a(f"v_lshrrev_b32 v13, 5, {vL}")
            a(f"v_lshl_add_u32 v12, v13, 17, v12")
            a(f"v_and_b32 v11, 31, {vL}")
            a(f"s_lshl_b32 {sT[0]}, {sW}, 8")
            a(f"v_lshl_add_u32 v11, v11, 3, {sT[0]}")
            a(f"v_lshl_add_u32 v11, v13, 13, v11")
            a("s_waitcnt lgkmcnt(0)")
            a("s_barrier")
            tstamp(2)
            for i in range(4): a(f"ds_read_b64 v[{16+2*i}:{17+2*i}], v11 offset:{L_Y + 2048*i}")
            a(f"s_lshl_b32 {sT[0]}, {sH}, 12")
            a(f"v_lshl_add_u32 v13, {vL}, 4, {sT[0]}")
            a("s_waitcnt lgkmcnt(0)")
            for i in range(4): a(f"v_add_f32 v{16+i}, v{16+i}, v{20+i}")
            a("v_add_f32 v20, v16, v18")
            a("v_add_f32 v21, v17, v19")
            a("v_add_f32 v22, v16, v18")
            a("v_add_f32 v23, v17, v19")
            a(f"v_mov_b32 v17, {sE}")
            a("v_permlane32_swap_b32 v20, v22")
            a("v_permlane32_swap_b32 v21, v23")
            a(f"v_mov_b32 v19, {sE}")
            a("v_add_f32 v16, v20, v22")
            a("v_add_f32 v18, v21, v23")
            a(f"buffer_store_dwordx4 v[16:19], v12, {W2}, 0 offen {o.get('stp', 'sc1')}")
        else:
            a(f"v_lshl_add_u32 v12, {vRow}, 12, {sT[0]}")
            a(f"v_lshl_add_u32 v12, {vCol}, 3, v12")
            a("s_waitcnt lgkmcnt(0)")
            a("s_barrier")
            tstamp(2)
            for i in range(8): a(f"ds_read_b32 v{16+i}, v11 offset:{L_Y + 2048*i}")
            a(f"s_lshl_b32 {sT[0]}, {sH}, 12")
            a(f"v_lshl_add_u32 v13, {vL}, 4, {sT[0]}")
            a("s_waitcnt lgkmcnt(0)")
            for st in (4, 2, 1):
                for i in range(st): a(f"v_add_f32 v{16+i}, v{16+i}, v{16+st+i}")
            a(f"v_mov_b32 v17, {sE}")
            a(f"buffer_store_dwordx2 v[16:17], v12, {W2}, 0 offen sc1")
        tstamp(3)
        stamp(6); stamp(7); tstamp(4)
        a(f"s_cmp_lg_u32 {sW}, 0")
        a(f"s_cbranch_scc1 L_fin")
        if STAMP == 1: a("s_mov_b32 s79, 0")
        a("L_poll:")
        if STAMP == 1: a("s_add_u32 s79, s79, 1")
        for i in range(4): a(f"buffer_load_dwordx4 v[{32+4*i}:{35+4*i}], v13, {W2}, 0 offen offset:{1024*i} {o.get('plp', 'sc1')}")
        a(f"s_mov_b64 s[44:45], exec")
        if BOUND:
            a(f"s_sub_u32 {sSpin}, {sSpin}, 16")
            a(f"s_cbranch_scc1 L_end")
        if o.get("psl", 0): a(f"s_sleep {o['psl']}")
        a("s_waitcnt vmcnt(0)")
        for i in range(8): a(f"v_cmpx_eq_u32 vcc, v17, v{33+2*i}")
        a(f"s_andn2_b64 exec, s[44:45], exec")
        a(f"s_cbranch_execnz L_poll")
        a(f"s_mov_b64 exec, -1")
        tstamp(4)
        for st in (8, 4):
            for i in range(0, st, 2): a(f"v_add_f32 v{32+i}, v{32+i}, v{32+st+i}")
        a("s_nop 1")
        a("v_permlane32_swap_b32 v32, v34")
        a("v_add_f32 v32, v32, v34")
        a("v_mov_b32 v33, v32"); a("s_nop 1")
        a("v_permlane16_swap_b32 v32, v33")
        a("v_add_f32 v32, v32, v33")
        a("s_nop 1")
        a(f"v_add_f32_dpp v32, v32, v32 row_ror:8 {FULL}")
        rbf("v32")
        a("v_add_f32 v32, v145, v32")
        rbf("v32")
        a("v_add_f32 v32, v32, v146")
        a("v_cvt_pk_bf16_f32 v32, v32, v32")
        a("s_mov_b32 exec_lo, 0xff")
        a("s_mov_b32 exec_hi, 0xff")
        a(f"global_store_short v147, v32, s[24:25] {o.get('outp', '')}")
        a(f"s_cmp_lg_u32 {sH}, 0")
        a(f"s_cbranch_scc1 L_nob")
        a(f"s_lshl_b32 {sT[0]}, {sB}, 8")
        a(f"s_add_u32 {sT[0]}, {sT[0]}, 0x180000")
        a(f"v_mov_b32 v16, {sT[0]}")
        a(f"s_mov_b64 exec, 1")
        a(f"global_store_dword v16, v17, s[28:29] {o.get('outp', '')}")
        a("L_nob:")
        a(f"s_mov_b64 exec, -1")
    else:
        a(f"s_lshl_b32 {sT[0]}, s2, 11")
        a(f"s_add_u32 s56, s28, {sT[0]}")
        a(f"s_addc_u32 s57, s29, 0")
        a(f"s_mov_b32 s58, 2048")
        a("s_waitcnt lgkmcnt(0)")
        a("s_barrier")
        tstamp(2)
        for i in range(8): a(f"ds_read_b32 v{16+i}, v11 offset:{L_Y + 2048*i}")
        a("s_waitcnt lgkmcnt(0)")
        for st in (4, 2, 1):
            for i in range(st): a(f"v_add_f32 v{16+i}, v{16+i}, v{16+st+i}")
        a(f"buffer_store_dword v16, v11, {W2}, 0 offen sc1")
        tstamp(3)
        a("s_waitcnt vmcnt(0)")
        a("s_barrier")
        stamp(6)
        if o.get("notail", 0) == 2:
            stamp(7)
            a("s_branch L_fin")
        a(f"s_cmp_lg_u32 {sW}, 0")
        a(f"s_cbranch_scc1 L_wait")
        a(f"s_lshl_b32 {sT[0]}, {sB}, 2")
        a(f"v_mov_b32 v16, {sT[0]}")
        a(f"v_mov_b32 v17, 1")
        a(f"s_mov_b64 exec, 1")
        a(f"global_atomic_add v18, v16, v17, s[26:27] sc0 sc1")
        a("s_waitcnt vmcnt(0)")
        a(f"ds_write_b32 {vF}, v18 offset:12")
        a(f"s_mov_b64 exec, -1")
        a("s_waitcnt lgkmcnt(0)")
        a("L_wait:")
        a("s_barrier")
        a(f"ds_read_b32 v18, {vF} offset:12")
        a("s_waitcnt lgkmcnt(0)")
        a(f"v_readfirstlane_b32 {sT[0]}, v18")
        stamp(7)
        a(f"s_cmp_lg_u32 {sT[0]}, 31")
        a(f"s_cbranch_scc1 L_fin")
        a(f"s_lshl_b32 {sT[0]}, {sB}, 16")
        a(f"s_add_u32 s56, s28, {sT[0]}")
        a(f"s_addc_u32 s57, s29, 0")
        a(f"s_mov_b32 s58, 65536")
        a(f"s_lshl_b32 {sT[0]}, {sW}, 8")
        a(f"v_lshl_add_u32 v10, {vCol}, 4, {sT[0]}")
        a(f"v_lshl_add_u32 v10, {vRow}, 14, v10")
        for i in range(8):
            if i % 2 == 0: a(f"s_movk_i32 {sT[1]}, {2048*i}")
            a(f"buffer_load_dwordx4 v[{32+4*i}:{35+4*i}], v10, {W2}, {sT[1]} offen offset:{2048*(i%2)} sc1")
        a(f"s_lshl_b32 {sT[0]}, {sW}, 6")
        a(f"v_lshl_add_u32 v11, {vCol}, 2, {vRow}")
        a(f"v_add_u32 v11, {sT[0]}, v11")
        a(f"v_lshlrev_b32 v12, 1, v11")
        a(f"global_load_ushort v13, v12, s[4:5]")
        a(f"s_lshl_b32 {sT[0]}, {sB}, 11")
        a(f"s_add_u32 {sT[0]}, {sT[0]}, 0x80000")
        a(f"v_lshl_add_u32 v11, v11, 2, {sT[0]}")
        a(f"global_load_dword v14, v11, s[28:29] sc1")
        a("s_waitcnt vmcnt(2)")
        tstamp(4)
        for st in (16, 8, 4):
            for i in range(st): a(f"v_add_f32 v{32+i}, v{32+i}, v{32+st+i}")
        a("s_nop 0")
        a("v_permlane32_swap_b32 v32, v34")
        a("v_permlane32_swap_b32 v33, v35")
        a("v_add_f32 v32, v32, v34")
        a("v_add_f32 v33, v33, v35")
        a("s_nop 1")
        a("v_permlane16_swap_b32 v32, v33")
        a("v_add_f32 v16, v32, v33")
        rbf("v16")
        a("s_waitcnt vmcnt(0)")
        a("v_lshlrev_b32 v13, 16, v13")
        a("v_add_f32 v16, v13, v16")
        rbf("v16")
        a("v_add_f32 v16, v16, v14")
        a("v_cvt_pk_bf16_f32 v16, v16, v16")
        a(f"s_lshl_b32 {sT[0]}, {sB}, 10")
        a(f"v_add_u32 v12, {sT[0]}, v12")
        a(f"global_store_short v12, v16, s[24:25]")
    a("L_fin:")
    if STAMP == 5:
        a("s_memrealtime s[72:73]")
        a("s_waitcnt lgkmcnt(0)")
        a(f"s_cmp_lg_u32 {sW}, {o.get('lw', 0)}")
        a("s_cbranch_scc1 L_end")
        if "swg" in o:
            a(f"s_cmp_lg_u32 s2, {o['swg']}")
            a("s_cbranch_scc1 L_end")
        a(f"s_sub_u32 s74, s{60+2*o['t1']}, s{60+2*o['t0']}")
        a(f"s_sub_u32 s74, s74, {o.get('sub', 0)}")
        if o.get("neg", 0): a("s_sub_u32 s74, 0, s74")
        a(f"s_mul_i32 s74, s74, {o.get('amp', 10)}")
        a(f"s_add_u32 s74, s74, 10000")
        a(f"s_min_u32 s74, s74, 100000")
        a("L_pin3:")
        a("s_memrealtime s[76:77]")
        a("s_waitcnt lgkmcnt(0)")
        a("s_sub_u32 s76, s76, s60")
        a(f"s_cmp_lt_u32 s76, s74")
        a("s_cbranch_scc1 L_pin3")
    if o.get("pin", 0):
        a("L_pin:")
        a("s_memrealtime s[62:63]")
        a("s_waitcnt lgkmcnt(0)")
        a("s_sub_u32 s62, s62, s60")
        a(f"s_cmp_lt_u32 s62, {o['pin']}")
        a("s_cbranch_scc1 L_pin")
    stamp(8)
    if STAMP == 1:
        a("s_waitcnt lgkmcnt(0)")
        a(f"s_mul_i32 {sT[0]}, s2, 9")
        a(f"s_add_u32 {sT[0]}, {sT[0]}, {sW}")
        a(f"s_add_u32 {sT[0]}, {sT[0]}, 1")
        a(f"s_lshl_b32 {sT[0]}, {sT[0]}, 7")
        a(f"s_add_u32 {sT[0]}, {sT[0]}, 0x100000")
        a(f"v_mov_b32 v16, 0")
        for i in range(18): a(f"v_writelane_b32 v16, s{60+i}, {i}")
        a(f"s_getreg_b32 {sT[1]}, hwreg(HW_REG_XCC_ID)")
        a(f"s_getreg_b32 {sT[2]}, hwreg(HW_REG_HW_ID)")
        a(f"v_writelane_b32 v16, {sT[1]}, 18")
        a(f"v_writelane_b32 v16, {sT[2]}, 19")
        a(f"v_writelane_b32 v16, {sSpin}, 20")
        a(f"v_writelane_b32 v16, s79, 21")
        a(f"v_lshl_add_u32 v17, {vL}, 2, {sT[0]}")
        a(f"s_mov_b64 exec, 0xffffffff")
        a(f"global_store_dword v17, v16, s[28:29]")
    if STAMP == 2:
        a("s_waitcnt lgkmcnt(0)")
        a(f"s_cmp_gt_i32 {sW}, 0")
        a("s_cbranch_scc1 L_end")
        a(f"v_mov_b32 v16, 0")
        a(f"s_not_b32 {sT[1]}, s60")
        a(f"v_writelane_b32 v16, {sT[1]}, 0")
        for i in range(6): a(f"v_writelane_b32 v16, s{66+2*i}, {i+1}")
        a(f"s_not_b32 {sT[1]}, s70")
        a(f"v_writelane_b32 v16, {sT[1]}, 7")
        a(f"v_lshlrev_b32 v17, 2, {vL}")
        a(f"s_mov_b64 exec, 0xff")
        a(f"global_atomic_umax v17, v16, s[26:27] offset:32 sc1")
    a("L_end:")
    a("s_endpgm")

    head = open("cdna_kernels/%s.s.ref" % NAME).read().split("; Override launch")[0]
    out = head + f"; @launch grid=(256,1,1) block=(576,1,1) lds={LDS_BYTES}\n"
    out += '.amdgcn_target "amdgcn-amd-amdhsa--gfx950"\n.text\n'
    out += f".globl {NAME}_kernel\n.p2align 8\n.type {NAME}_kernel,@function\n" + a.text()
    out += f""".section .rodata,"a"
.p2align 6
.amdhsa_kernel {NAME}_kernel
  .amdhsa_next_free_vgpr 168
  .amdhsa_next_free_sgpr 88
  .amdhsa_accum_offset 168
  .amdhsa_group_segment_fixed_size 0
  .amdhsa_kernarg_size 104
  .amdhsa_user_sgpr_count 2
  .amdhsa_user_sgpr_kernarg_segment_ptr 1
  .amdhsa_system_sgpr_workgroup_id_x 1
  .amdhsa_float_denorm_mode_32 3
.end_amdhsa_kernel
"""
    return out
if __name__ == "__main__":
    opts = {}
    for kv in sys.argv[2:]:
        k, v = kv.split("=")
        try: opts[k] = int(v, 0)
        except ValueError: opts[k] = v.replace("+", " ")
    open(sys.argv[1], "w").write(gen(opts))
```

```python
import sys, struct, math
NAME = "parallel_sum__mha_block_cached__mixer_token_mlp__decode"
def f2u(x): return struct.unpack("<I", struct.pack("<f", x))[0]
class Asm:
    def __init__(self): self.lines = []
    def __call__(self, s, c=None):
        s = s.strip()
        l = s if s.endswith(":") else "    " + s
        if c: l = l.ljust(72) + "; " + c
        self.lines.append(l)
    def c(self, s): self.lines.append("    ; " + s)
    def text(self): return "\n".join(self.lines) + "\n"

def gen(o):
    D = o.get("d", 26); DS = o.get("ds", 24); RS = o.get("rs", 4)
    STAMP = o.get("stamp", 0); TS = o.get("ts", 0)
    BOUND = o.get("bound", 0)
    FB = o.get("fb", 1)
    FP = o.get("fp", 8); FS = o.get("fs", 3); FG0 = o.get("fg0", 212); FR = o.get("frep", 8)
    FSA = o.get("fsa", (7 * FS) // 2 + 1); FEND = o.get("fend", 480)
    B0 = o.get("b0", 150); BG = o.get("bg", 30)
    WQS = o.get("wqs", 4); WQ2 = o.get("wq2", 3); PRE = 3
    PJ = [int(x) for x in str(o.get("pj", "6,11")).split(",")]
    WOR = o.get("wor", 6); WOM = o.get("wom", 3); WOD = o.get("wod", 2); WMR = 6
    DRY = o.get("dry", 1); PP = o.get("pp", 1)
    a = Asm()
    FULL = "row_mask:0xf bank_mask:0xf"
    l2e = 1.0 / math.log(2.0)
    WS_EPOCH = 0x180000; WS_MARK = 0x200000
    sE, sL2E, sC1 = "s3", "s14", "s15"
    sB, sH, sW, sOff, sR, sG = "s30", "s31", "s32", "s33", "s34", "s35"
    R = "s[36:39]"; W2 = "s[56:59]"
    sM1, sD1, sM2, sD2 = "s40", "s41", "s42", "s43"
    sT = [f"s{44+i}" for i in range(8)]
    sHI, sB2, sSpin, sK, sTg = "s52", "s53", "s54", "s55", "s78"
    sCnt, sAcc, sInc, sSrc, sX = "s40", "s46", "s47", "s50", "s51"
    L_SC = 131072; L_QP = L_SC + 16384; L_XN = L_QP + 4352; L_BP = L_XN + 1024; L_FL = L_BP + 512
    F_LAND, F_ARRQ, F_ARRS, F_TAG, F_DONE, F_RATE, F_ML = 0, 4, 8, 12, 32, 64, 192
    L_FIN = L_FL + 256
    LDS_BYTES = L_FIN + 128
    vL, vRow, vCol, vF = "v0", "v1", "v2", "v3"
    WREG, QF, DT, MX = 64, 48, 32, 128
    ACC = [f"v{24+i}" for i in range(8)]
    ST = [DT, 128, 144]
    nlab = [0]
    def lab(p): nlab[0] += 1; return f"L_{p}{nlab[0]}"
    def stamp(i, force=False):
        if STAMP == 1 or (STAMP >= 4 and i in (0, 5)) or force: a(f"s_memrealtime s[{60+2*i}:{61+2*i}]")
    def tstamp(i):
        if TS: a(f"s_memrealtime s[{60+2*i}:{61+2*i}]")
    def wave_reduce(op, v, sdst):
        for ctl in ["quad_perm:[1,0,3,2] "+FULL, "quad_perm:[2,3,0,1] "+FULL, "row_half_mirror "+FULL, "row_mirror "+FULL,
                    "row_bcast:15 row_mask:0xa bank_mask:0xf", "row_bcast:31 row_mask:0xc bank_mask:0xf"]:
            a("s_nop 1"); a(f"{op}_dpp {v}, {v}, {v} {ctl}")
        a("s_nop 1"); a(f"v_readlane_b32 {sdst}, {v}, 63")
    def allreduce(op, v, steps):
        for ctl in ["quad_perm:[1,0,3,2]", "quad_perm:[2,3,0,1]", "row_half_mirror", "row_mirror"][:steps]:
            a("s_nop 1"); a(f"{op}_dpp {v}, {v}, {v} {ctl} {FULL}")
    def rbf(v):
        a(f"v_cvt_pk_bf16_f32 {v}, {v}, {v}"); a(f"v_and_b32 {v}, {sHI}, {v}")
    def spin(off, cmp, val, tmpv, tmps):
        l0, l1 = lab("sp"), lab("go")
        a(f"{l0}:")
        a(f"ds_read_b32 {tmpv}, {vF} offset:{off}")
        a("s_waitcnt lgkmcnt(0)")
        a(f"v_readfirstlane_b32 {tmps}, {tmpv}")
        a(f"{cmp} {tmps}, {val}")
        if BOUND:
            a(f"s_cbranch_scc1 {l1}")
            a(f"s_sub_u32 {sSpin}, {sSpin}, 1"); a(f"s_cbranch_scc1 L_end"); a(f"s_branch {l0}")
            a(f"{l1}:")
        else: a(f"s_cbranch_scc0 {l0}")
    def rows_sum(v, t):
        a(f"v_mov_b32 {t}, {v}"); a("s_nop 1"); a(f"v_permlane32_swap_b32 {v}, {t}"); a(f"v_add_f32 {v}, {v}, {t}")
        a(f"v_mov_b32 {t}, {v}"); a("s_nop 1"); a(f"v_permlane16_swap_b32 {v}, {t}"); a(f"v_add_f32 {v}, {v}, {t}")
    def rows_reduce8(vaddr):
        for i in range(4): a(f"v_permlane32_swap_b32 {ACC[i]}, {ACC[i+4]}")
        for i in range(4): a(f"v_add_f32 {ACC[i]}, {ACC[i]}, {ACC[i+4]}")
        a("s_nop 0")
        for i in range(2): a(f"v_permlane16_swap_b32 {ACC[i]}, {ACC[i+2]}")
        for i in range(2): a(f"v_add_f32 {ACC[i]}, {ACC[i]}, {ACC[i+2]}")
        a(f"ds_write_b64 {vaddr}, v[24:25]")
    def arrive(off):
        a(f"v_mov_b32 v10, 1")
        a("s_waitcnt lgkmcnt(0)")
        a(f"s_mov_b64 exec, 1"); a(f"ds_add_u32 {vF}, v10 offset:{off}"); a(f"s_mov_b64 exec, -1")
    def sum8(base, vaddr):
        for w in range(8): a(f"ds_read_b64 v[{base+2*w}:{base+2*w+1}], {vaddr} offset:{528*w}")
        a(f"s_waitcnt lgkmcnt({0 if TS else 4})")
        for i in range(4): a(f"v_add_f32 v{base+i}, v{base+i}, v{base+4+i}")
        for i in range(2): a(f"v_add_f32 v{base+i}, v{base+i}, v{base+2+i}")
        a("s_waitcnt lgkmcnt(0)")
        for i in range(4): a(f"v_add_f32 v{base+8+i}, v{base+8+i}, v{base+12+i}")
        for i in range(2): a(f"v_add_f32 v{base+8+i}, v{base+8+i}, v{base+10+i}")
        for i in range(2): a(f"v_add_f32 v{base+i}, v{base+i}, v{base+8+i}")
        a(f"v_cvt_pk_bf16_f32 v{base}, v{base}, v{base+1}")
    def ctl(tag):
        if not FB: return
        a.c("flow control: compare own progress with eight reference workgroups, set the loader's idle-slot rate")
        a(f"s_sub_u32 {sT[1]}, {sG}, {FG0 + 8}")
        a(f"s_cmp_ge_u32 {sT[1]}, {FEND - FG0 - 8}")
        a(f"s_cbranch_scc1 L_nc{tag}")
        a(f"s_and_b32 {sT[2]}, {sT[1]}, {8*FP - 1}", "phase inside the control period")
        a(f"s_lshr_b32 {sT[1]}, {sT[1]}, {(8*FP).bit_length() - 1}", "checkpoint number")
        a(f"s_mul_i32 {sT[3]}, {sT[1]}, {FR * 4352}")
        a(f"s_add_u32 {sT[3]}, {sT[3]}, {hex(WS_MARK)}")
        a(f"s_cmp_ge_u32 s2, 8")
        a(f"s_cbranch_scc1 L_cs{tag}")
        a(f"s_add_u32 {sT[4]}, s2, {sT[1]}")
        a(f"s_and_b32 {sT[4]}, {sT[4]}, 7")
        a(f"s_mul_i32 {sT[4]}, {sT[4]}, {FS}")
        a(f"s_cmp_eq_u32 {sT[2]}, {sT[4]}")
        a(f"s_cbranch_scc0 L_cs{tag}")
        a(f"v_mul_u32_u24 v10, 4352, {vL}")
        a(f"s_lshl_b32 {sT[4]}, s2, 2")
        a(f"s_add_u32 {sT[4]}, {sT[4]}, {sT[3]}")
        a(f"v_add_u32 v10, {sT[4]}, v10")
        a(f"v_mov_b32 v11, {sTg}")
        a(f"s_mov_b64 exec, {hex((1 << FR) - 1)}")
        a(f"global_store_dword v10, v11, s[28:29] sc1", "reference workgroup: leave this launch's mark")
        a(f"s_mov_b64 exec, -1")
        a(f"L_cs{tag}:")
        a(f"s_cmp_eq_u32 {sT[2]}, {FSA}")
        a(f"s_cbranch_scc0 L_nc{tag}")
        a(f"s_bfe_u32 {sT[2]}, s2, {hex(3 | ((FR.bit_length() - 1) << 16))}")
        a(f"s_mul_i32 {sT[2]}, {sT[2]}, 4352")
        a(f"s_add_u32 {sT[3]}, {sT[3]}, {sT[2]}")
        a(f"s_load_dwordx8 s[80:87], s[28:29], {sT[3]} glc")
        a(f"s_mov_b32 {sT[2]}, 4")
        a(f"s_waitcnt lgkmcnt(0)")
        for i in range(8):
            a(f"s_cmp_eq_u32 s{80+i}, {sTg}")
            a(f"s_subb_u32 {sT[2]}, {sT[2]}, 0")
        a(f"s_mul_i32 {sT[2]}, {sT[2]}, {BG}")
        a(f"s_add_u32 {sT[2]}, {sT[2]}, {B0}")
        a(f"s_max_i32 {sT[2]}, {sT[2]}, 0")
        a(f"s_min_i32 {sT[2]}, {sT[2]}, 255")
        a(f"v_mov_b32 v11, {sT[2]}")
        a(f"ds_write_b32 {vF}, v11 offset:{F_RATE}")
        a(f"L_nc{tag}:")

    a(f"{NAME}_kernel:")
    a("s_cmpk_ge_u32 s2, 256")
    a("s_cbranch_scc1 L_end")
    a("s_load_dwordx16 s[4:19], s[0:1], 0")
    a("s_load_dwordx8 s[20:27], s[0:1], 64")
    a("s_load_dwordx2 s[28:29], s[0:1], 96")
    stamp(0)
    a(f"v_lshrrev_b32 v4, 6, v0")
    a(f"v_and_b32 {vL}, 63, v0")
    a(f"v_readfirstlane_b32 {sW}, v4")
    a(f"v_mov_b32 {vF}, {L_FL}")
    a(f"v_lshl_add_u32 v9, {vL}, 2, {vF}")
    a(f"v_mov_b32 v10, 0")
    a(f"ds_write_b32 v9, v10", "every wave clears the flag block before the barrier")
    a(f"v_lshrrev_b32 {vRow}, 4, {vL}")
    a(f"v_and_b32 {vCol}, 15, {vL}")
    a(f"s_mov_b32 s39, 0x20000")
    a(f"s_mov_b32 s38, 0x100000")
    a(f"s_lshl_b32 {sT[0]}, s2, 20")
    a(f"v_xor_b32 v4, {vCol}, {vRow}", "K rows are stored with their 16-byte chunks xor-swizzled by key&15")
    a(f"v_lshlrev_b32 v4, 4, v4")
    a(f"v_lshl_add_u32 v4, {vRow}, 8, v4")
    a(f"v_xor_b32 v5, 64, v4")
    a(f"v_xor_b32 v6, 0x80, v4")
    a(f"v_xor_b32 v7, 64, v6")
    js = (D - 1) % 4; jss = (DS - 1) % 4
    a(f"v_mov_b32 v8, {(jss - DS - 3)//4}", "landed-granule counter")
    a(f"s_mov_b32 {sOff}, 0")
    a(f"s_lshl_b32 {sX}, s2, 10")
    a(f"s_and_b32 {sX}, {sX}, 0x6000")
    a(f"s_mov_b32 {sSrc}, {sX}")
    a(f"s_mov_b32 m0, 0")
    a(f"s_sub_u32 {sW}, {sW}, 1", "consumer index; borrow marks the loader")
    a("s_waitcnt lgkmcnt(0)")
    a("s_barrier")
    a("s_cbranch_scc0 L_cons")

    a("s_setprio 3")
    a(f"s_add_u32 s36, s6, {sT[0]}")
    a(f"s_addc_u32 s37, s7, 0")
    def pair_body(Dw, jw, fb, tag):
        for half in range(2):
            for j in range(4):
                if fb and j % 2 == 0:
                    a(f"s_add_u32 {sAcc}, {sAcc}, {sInc}")
                    a(f"s_cbranch_scc0 L_nd{tag}{half}{j}")
                    a(f"buffer_load_dword v12, v4, {R}, s38 offen", "out of range: takes one slot of the window, moves no data")
                    a(f"L_nd{tag}{half}{j}:")
                a(f"s_waitcnt vmcnt({Dw-1})")
                a(f"buffer_load_dwordx4 v{4+j}, {R}, {sSrc} offen offset:{1024*j} nt lds")
                if j == jw:
                    a("v_add_u32 v8, 1, v8"); a(f"ds_write_b32 {vF}, v8")
                if half == 0 and j == 0: a(f"s_bitset1_b32 {sOff}, 15")
                if half == 0 and j == 1: a(f"s_addk_i32 {sOff}, 4096")
                if half == 0 and j == 2: a(f"s_bitset0_b32 {sOff}, 15")
            a(f"s_addk_i32 m0, 4096")
            if half == 0: a(f"s_bitset1_b32 {sSrc}, 15")
            else: a(f"s_xor_b32 {sSrc}, {sOff}, {sX}")
    a("L_ls:")
    pair_body(DS, jss, 0, "s")
    a(f"s_cmp_lg_u32 m0, {RS*32768}")
    a(f"s_cbranch_scc1 L_ls")
    a(f"v_mov_b32 v8, {(32*RS + js - D - 3)//4}")
    a(f"s_mov_b32 {sR}, {RS-1}")
    a(f"s_add_u32 s8, s8, {sT[0]}")
    a(f"s_addc_u32 s9, s9, 0")
    a(f"s_mov_b32 {sSpin}, 0x100000")
    a(f"v_min_u32 v9, 8, {vL}")
    a(f"v_lshl_add_u32 v9, v9, 2, {vF}", "lanes 0-7: done[], other lanes: idle-slot rate")
    a(f"v_mov_b32 v11, {RS - 4}")
    a(f"v_cmp_lt_u32 vcc, 7, {vL}")
    a(f"v_mov_b32 v14, {B0 if FB else 0}")
    a(f"v_mov_b32 v15, -1000")
    a(f"ds_write_b32 {vF}, v14 offset:{F_RATE}")
    a(f"v_cndmask_b32 v11, v11, v15, vcc")
    a(f"v_cndmask_b32 v10, v10, v14, vcc")
    a(f"s_mov_b32 {sAcc}, 0")
    if STAMP == 1: a("s_mov_b32 s79, 0")
    a(f"s_branch L_ld1")
    a("L_ld:")
    pair_body(D, js, FB, "m")
    a(f"s_sub_u32 {sCnt}, {sCnt}, 1")
    a(f"s_cbranch_scc0 L_ld")
    a("L_ld1:")
    a(f"s_bitset0_b32 m0, 17")
    a(f"s_add_u32 {sR}, {sR}, 1")
    a(f"v_add_u32 v11, 1, v11")
    marks = []
    if STAMP == 1: marks = list(zip((1,2,3,6,7), str(o.get("marks", "4,5,6,8,16")).split(",")))
    if STAMP == 4: marks = [(1, o.get("m0", 99)), (2, o["m1"])]
    for k, rr in marks:
        a(f"s_cmp_lg_u32 {sR}, {rr}"); a(f"s_cbranch_scc1 L_mk{k}"); stamp(k, True); a(f"L_mk{k}:")
    a(f"s_and_b32 {sCnt}, {sR}, 31")
    a(f"s_cbranch_scc0 L_ldsw")
    a("L_ldck:")
    a("s_waitcnt lgkmcnt(0)")
    a(f"v_cmp_lt_i32 vcc, v10, v11", "ring space: every consumer has finished round R-4 (values read one round ago)")
    a(f"s_cbranch_vccnz L_ldslow")
    a(f"s_mov_b32 {sCnt}, 3")
    if FB:
        a(f"v_readlane_b32 {sInc}, v10, 8")
        if STAMP == 1: a(f"s_lshr_b32 s48, {sInc}, 4"); a(f"s_add_u32 s79, s79, s48")
        a(f"s_cmp_lt_u32 {sR}, 63")
        a(f"s_cselect_b32 {sInc}, {sInc}, 0")
        a(f"s_lshl_b32 {sInc}, {sInc}, 24")
    a(f"ds_read_b32 v10, v9 offset:{F_DONE}")
    a(f"s_branch L_ld")
    a("L_ldslow:")
    a(f"ds_read_b32 v10, v9 offset:{F_DONE}")
    if BOUND or STAMP == 1:
        a(f"s_sub_u32 {sSpin}, {sSpin}, 1")
        a(f"s_cbranch_scc1 L_end")
    a("s_branch L_ldck")
    a("L_ldsw:")
    a(f"s_cmp_eq_u32 {sR}, 64")
    a(f"s_cbranch_scc1 L_drain")
    a(f"s_mov_b32 s36, s8", "switch to V (stored unswizzled)")
    a(f"s_mov_b32 s37, s9")
    a(f"s_mov_b32 {sOff}, 0")
    a(f"s_mov_b32 {sSrc}, {sX}")
    for j in range(4): a(f"v_lshlrev_b32 v{4+j}, 4, {vL}")
    stamp(4)
    a("s_branch L_ldck")
    a("L_drain:")
    a.c("set up the final stage while the last loads land: lane l owns output column 2*(l&7) + (l>>5)")
    a(f"v_and_b32 v21, 7, {vL}")
    a(f"v_lshrrev_b32 v22, 5, {vL}")
    a(f"v_lshl_add_u32 v21, v21, 1, v22")
    a(f"v_lshl_add_u32 v22, v21, 2, {vF}")
    a(f"ds_read_b32 v17, {vF} offset:{F_TAG}")
    a(f"ds_read_b32 v18, v22 offset:{L_FIN - L_FL}")
    a(f"ds_read_b32 v19, v22 offset:{L_FIN - L_FL + 64}")
    a(f"s_lshl_b32 {sT[0]}, s2, 5")
    a(f"v_lshl_add_u32 v20, v21, 1, {sT[0]}", "byte offset in out")
    a(f"s_lshl_b32 {sT[0]}, s2, 12")
    a(f"s_add_u32 s56, s28, {sT[0]}", "inbox of this workgroup: 32 producers x 128 bytes")
    a(f"s_addc_u32 s57, s29, 0")
    a(f"s_movk_i32 s58, 4096")
    a(f"s_mov_b32 s59, 0x20000")
    a(f"s_mov_b32 {sHI}, 0xffff0000")
    a(f"s_mov_b64 s[44:45], -1")
    a(f"s_mov_b64 s[46:47], -1")
    pub = (2044 + js - D - 3)//4 + 1
    while pub < 512:
        pub += 1
        a(f"s_waitcnt vmcnt({2048 - 4*pub})")
        a("v_add_u32 v8, 1, v8"); a(f"ds_write_b32 {vF}, v8")
    stamp(5)
    sets = [(32, "s[44:45]"), (48, "s[46:47]")][:PP]
    def pissue(base):
        for i in range(4): a(f"buffer_load_dwordx4 v[{base+4*i}:{base+4*i+3}], v4, {W2}, 0 offen offset:{1024*i} {o.get('plp', 'sc1')}")
    pissue(32)
    a("s_waitcnt lgkmcnt(0)")
    a("s_barrier", "pairs with the consumers' barrier before the output projection")
    if PP == 2: pissue(48)
    if STAMP == 1: a("s_mov_b32 s88, 0")
    a("L_poll:")
    for k, (base, m) in enumerate(sets):
        if STAMP == 1: a("s_add_u32 s88, s88, 1")
        a(f"s_waitcnt vmcnt({4*(PP-1)})")
        a(f"s_mov_b64 exec, {m}")
        for i in range(8): a(f"v_cmpx_eq_u32 vcc, v17, v{base+1+2*i}")
        a(f"s_andn2_b64 {m}, {m}, exec", "lanes whose four 16-byte pieces are not all this launch's yet")
        a(f"s_cbranch_scc0 L_got{k}")
        a(f"s_mov_b64 exec, {m}")
        if o.get("psl", 0): a(f"s_sleep {o['psl']}")
        pissue(base)
    a(f"s_sub_u32 {sSpin}, {sSpin}, 16")
    a(f"s_cbranch_scc0 L_poll")
    a("s_endpgm")
    for k, (base, m) in reversed(list(enumerate(sets))):
        a(f"L_got{k}:")
        a(f"s_mov_b64 exec, -1")
        if k == 0: a("L_fin0:")
        tstamp(4)
        a(f"v_add_f32 v24, v{base}, v{base+8}"); a(f"v_add_f32 v25, v{base+2}, v{base+10}")
        a(f"v_add_f32 v26, v{base+4}, v{base+12}"); a(f"v_add_f32 v27, v{base+6}, v{base+14}")
        if k: a("s_branch L_fin1")
    a("L_fin1:")
    a("v_add_f32 v24, v24, v26"); a("v_add_f32 v25, v25, v27")
    a("s_nop 1")
    a("v_permlane32_swap_b32 v24, v25")
    a("v_add_f32 v24, v24, v25")
    a("v_mov_b32 v25, v24"); a("s_nop 1")
    a("v_permlane16_swap_b32 v24, v25")
    a("v_add_f32 v24, v24, v25")
    a("s_nop 1")
    a(f"v_add_f32_dpp v24, v24, v24 row_ror:8 {FULL}")
    rbf("v24")
    a("v_add_f32 v24, v18, v24", "x + attention")
    rbf("v24")
    a("v_add_f32 v24, v24, v19", "+ mixer")
    a("v_cvt_pk_bf16_f32 v24, v24, v24")
    if DRY: a("s_cbranch_execz L_dryret")
    a("s_mov_b32 exec_lo, 0xff")
    a("s_mov_b32 exec_hi, 0xff")
    a(f"global_store_short v20, v24, s[24:25]")
    a(f"s_and_b32 {sT[0]}, s2, 31")
    a(f"s_cbranch_scc1 L_fin")
    a(f"s_lshl_b32 {sT[0]}, s2, 3")
    a(f"s_add_u32 {sT[0]}, {sT[0]}, {hex(WS_EPOCH)}")
    a(f"v_mov_b32 v16, {sT[0]}")
    a(f"s_mov_b64 exec, 1")
    a(f"global_store_dword v16, v17, s[28:29]", "next launch's tag differs from this one")
    a("s_branch L_fin")

    a("L_cons:")
    a(f"s_lshr_b32 {sB}, s2, 5")
    a(f"s_and_b32 {sH}, s2, 31")
    a(f"s_mov_b32 {sHI}, 0xffff0000")
    a(f"s_mov_b32 s59, 0x20000")
    a(f"s_lshl_b32 {sT[0]}, {sB}, 10")
    a(f"v_lshlrev_b32 v8, 4, {vL}")
    if BOUND: a(f"s_mov_b32 {sSpin}, 0x100000")
    a(f"s_add_u32 s4, s4, {sT[0]}")
    a(f"s_addc_u32 s5, s5, 0")
    a(f"global_load_dwordx4 v[4:7], v8, s[4:5]", "x[b][8l..8l+7]")
    npre = 0
    if o.get("ipf", 1):
        a.c("pull the rest of this kernel's code towards L2")
        a(f"s_getpc_b64 s[46:47]")
        a("L_pc:")
        a(f"s_lshl_b32 {sT[0]}, {sW}, 10")
        a(f"v_add_u32 v9, {sT[0]}, v8")
        a(f"v_min_u32 v9, L_end-L_pc-12, v9")
        a(f"global_load_dwordx4 v[16:19], v9, s[46:47]")
    a.c("wq rows 64w + 8*((j>>1)^w) + 2r + (j&1), columns 128h + 8c")
    a(f"s_lshl_b32 {sT[0]}, {sW}, 19")
    a(f"s_lshl_b32 {sT[1]}, {sH}, 8")
    a(f"s_add_u32 {sT[0]}, {sT[0]}, {sT[1]}")
    a(f"s_add_u32 s36, s10, {sT[0]}")
    a(f"s_addc_u32 s37, s11, 0")
    a(f"s_sub_u32 s38, 0x400000, {sT[0]}")
    a(f"v_lshlrev_b32 v9, 14, {vRow}")
    a(f"v_lshl_add_u32 v9, {vCol}, 4, v9")
    a(f"s_lshl_b32 {sT[2]}, {sW}, 16")
    def wslot(j): return f"v[{WREG+4*j}:{WREG+4*j+3}]"
    def wqload(j):
        a(f"s_xor_b32 {sT[3]}, {sT[2]}, {((j >> 1) * 8 + (j & 1)) * 8192}")
        a(f"buffer_load_dwordx4 {wslot(j)}, v9, {R}, {sT[3]} offen nt")
    if FB:
        a(f"s_mov_b32 {sT[4]}, {hex(WS_EPOCH)}")
        a(f"s_load_dword {sTg}, s[28:29], {sT[4]}")
    a.c("this workgroup's eighth of the head's wo slice -> L2 (the slice itself is read later)")
    a(f"s_lshl_b32 {sT[5]}, {sH}, 17")
    a(f"s_lshl_b32 {sT[6]}, {sW}, 14")
    a(f"s_add_u32 {sT[5]}, {sT[5]}, {sT[6]}")
    a(f"s_lshl_b32 {sT[6]}, {sB}, 7")
    a(f"s_add_u32 {sT[5]}, {sT[5]}, {sT[6]}")
    a(f"v_lshrrev_b32 v11, 3, {vL}")
    a(f"v_and_b32 v10, 7, {vL}")
    a(f"v_lshl_add_u32 v10, v10, 4, {sT[5]}")
    a(f"v_lshl_add_u32 v11, v11, 10, v10")
    a(f"global_load_dwordx4 v[160:163], v11, s[12:13]")
    a(f"v_add_u32 v11, 0x2000, v11")
    a(f"global_load_dwordx4 v[164:167], v11, s[12:13]")
    for j in range(WQS): wqload(j)
    a(f"s_waitcnt vmcnt({WQS + 2})")
    stamp(1)
    X = [f"v{16+i}" for i in range(8)]
    def unpack(src4):
        for i in range(4):
            a(f"v_lshlrev_b32 {X[2*i]}, 16, v{src4+i}")
            a(f"v_and_b32 {X[2*i+1]}, {sHI}, v{src4+i}")
    def ln(sM, sD, write):
        a.c("LayerNorm statistics with the reference's bf16 roundings")
        a(f"v_add_f32 v24, {X[0]}, {X[1]}")
        for i in range(2, 8): a(f"v_add_f32 v24, v24, {X[i]}")
        wave_reduce("v_add_f32", "v24", sT[0])
        a("s_nop 1")
        a(f"v_mov_b32 v25, {sT[0]}")
        a(f"v_mul_f32 v25, {hex(f2u(1.0/512))}, v25")
        a(f"v_sub_f32 v26, {X[0]}, v25")
        a(f"v_mul_f32 v24, v26, v26")
        for i in range(1, 8):
            a(f"v_sub_f32 v26, {X[i]}, v25"); a(f"v_fmac_f32 v24, v26, v26")
        wave_reduce("v_add_f32", "v24", sT[0])
        rbf("v25")
        a(f"v_mov_b32 v24, {sT[0]}")
        a(f"v_mul_f32 v24, {hex(f2u(1.0/512))}, v24")
        rbf("v24")
        a(f"v_add_f32 v24, {hex(f2u(1e-5))}, v24")
        rbf("v24")
        a(f"v_sqrt_f32 v24, v24")
        a("s_nop 0")
        rbf("v24")
        a(f"v_rcp_f32 v24, v24")
        a(f"v_readfirstlane_b32 {sM}, v25")
        a(f"v_readfirstlane_b32 {sD}, v24")
        if write:
            for i in range(8): a(f"v_sub_f32 {X[i]}, {X[i]}, v25")
            for i in range(4): a(f"v_cvt_pk_bf16_f32 v{4+i}, {X[2*i]}, {X[2*i+1]}")
            unpack(4)
            for i in range(8): a(f"v_mul_f32 {X[i]}, {X[i]}, v24")
            for i in range(4): a(f"v_cvt_pk_bf16_f32 v{4+i}, {X[2*i]}, {X[2*i+1]}")
    unpack(4)
    ln(sM1, sD1, True)
    a(f"v_add_u32 v8, {L_XN}, v8")
    a(f"ds_write_b128 v8, v[4:7]", "packed xn (every wave writes the same bytes)")
    a(f"s_mul_i32 {sT[0]}, {sW}, 144")
    a(f"s_add_u32 {sT[0]}, {sT[0]}, {L_XN}")
    a(f"v_lshl_add_u32 v8, {vRow}, 2, {sT[0]}")
    assert L_XN % 128 == 0
    for i in range(8):
        if i: a(f"v_xor_b32 v10, {16*i}, v8")
        a(f"ds_read_b32 v{QF+i}, {'v10' if i else 'v8'}")
    for i in range(8): a(f"v_mov_b32 {ACC[i]}, 0")
    nissued = WQS + WQ2
    for j in range(WQS, nissued): wqload(j)
    def preread(n):
        a.c(f"take K granule {n} of this wave out of the ring early: frees a round for the loader")
        if n: a(f"v_add_u32 v12, 0x8000, v12")
        for t in range(1, 4): a(f"v_xor_b32 v{19+t}, {64*t}, v12")
        a(f"s_add_u32 {sT[4]}, {sW}, {8*n}")
        spin(F_LAND, "s_cmp_gt_i32", sT[4], "v14", sT[0])
        a(f"ds_read_b128 v[{ST[n]}:{ST[n]+3}], v12")
        for t in range(1, 4): a(f"ds_read_b128 v[{ST[n]+4*t}:{ST[n]+4*t+3}], v{19+t}")
        a(f"v_mov_b32 v14, {n+1}")
        a("s_waitcnt lgkmcnt(0)")
        a(f"ds_write_b32 v13, v14 offset:{F_DONE}")
    a(f"v_xor_b32 v12, {vRow}, {vCol}")
    a(f"v_lshlrev_b32 v12, 4, v12")
    a(f"v_lshl_add_u32 v12, {vCol}, 8, v12")
    a(f"s_lshl_b32 {sT[0]}, {sW}, 12")
    a(f"v_add_u32 v12, {sT[0]}, v12")
    a(f"s_lshl_b32 {sT[0]}, {sW}, 2")
    a(f"v_add_u32 v13, {sT[0]}, {vF}")
    preread(0)
    a.c("q projection: acc[col] += xn[row] * wq[row][col]")
    for j in range(16):
        for n in range(1, PRE):
            if PJ[n-1] == j: preread(n)
        src = f"v{QF + j//2}"
        if j % 2 == 0: a(f"v_and_b32 v10, 0xffff, {src}"); a(f"v_lshlrev_b32 v11, 16, {src}")
        else: a(f"v_lshrrev_b32 v10, 16, {src}"); a(f"v_and_b32 v11, {sHI}, {src}")
        a(f"s_waitcnt vmcnt({nissued - j - 1})")
        while nissued < 16 and nissued - j - 1 < WQ2:
            wqload(nissued); nissued += 1
        for i in range(4):
            a(f"v_dot2c_f32_bf16 {ACC[2*i]}, v10, v{WREG+4*j+i}")
            a(f"v_dot2c_f32_bf16 {ACC[2*i+1]}, v11, v{WREG+4*j+i}")
    stamp(2)
    vPW, vPR = "v15", "v14"
    a(f"s_mul_i32 {sT[0]}, {sW}, 528")
    a(f"s_add_u32 {sT[0]}, {sT[0]}, {L_QP}")
    a(f"v_lshl_add_u32 {vPW}, {vCol}, 5, {sT[0]}")
    a(f"v_lshl_add_u32 {vPW}, {vRow}, 3, {vPW}")
    rows_reduce8(vPW)
    arrive(F_ARRQ)
    for i in range(4): a(f"v_mov_b32 v{160+i}, v{4+i}", "keep xn for the second LayerNorm" if i == 0 else None)
    a(f"v_lshlrev_b32 {vPR}, 3, {vL}")
    a(f"v_add_u32 {vPR}, {L_QP}, {vPR}")
    spin(F_ARRQ, "s_cmp_ge_u32", 8, "v10", sT[0])
    sum8(WREG, vPR)
    a(f"v_lshlrev_b32 v10, 2, {vL}")
    a(f"v_add_u32 v10, {L_XN}, v10")
    a(f"ds_write_b32 v10, v{WREG}", "packed q (xn is dead: every wave has arrived)")
    a(f"v_lshlrev_b32 v10, 4, {vRow}")
    a(f"v_add_u32 v10, {L_XN}, v10")
    for t in range(4): a(f"ds_read_b128 v[{QF+4*t}:{QF+4*t+3}], v10 offset:{64*t}", "MFMA A fragments of q" if t == 0 else None)
    vH, vMA, vC0, vXr = "v138", "v139", "v140", "v145"
    a(f"s_mov_b32 {sL2E}, {hex(f2u(l2e))}")
    a(f"s_mov_b32 {sK}, {hex(f2u(128 ** -0.5))}")
    vKA, vSA, vDA, vM, vLs, vDn = "v4", "v5", "v6", "v7", "v8", "v9"
    a(f"v_add_u32 {vKA}, 0xffff0000, v12")
    a(f"s_lshl_b32 {sT[0]}, {sW}, 6")
    a(f"s_add_u32 {sT[0]}, {sT[0]}, {L_SC}")
    a(f"v_lshl_add_u32 {vSA}, {vCol}, 2, {sT[0]}")
    a(f"v_mov_b32 {vDA}, v13")
    a(f"v_mov_b32 {vM}, 0xff7fffff")
    a(f"v_mov_b32 {vLs}, 0")
    a(f"v_mov_b32 {vDn}, 0")
    a(f"s_mov_b32 {sG}, {sW}")
    a(f"s_mov_b32 {sR}, 0")
    a.c("wo: rows 128h + 32r + 2j + e, columns 64w + 4c")
    a(f"s_lshl_b32 {sT[0]}, {sH}, 17")
    a(f"s_add_u32 s36, s12, {sT[0]}")
    a(f"s_addc_u32 s37, s13, 0")
    a(f"s_mov_b32 s38, 0x20000")
    vWO = "v164"
    a(f"s_lshl_b32 {sT[0]}, {sW}, 7")
    a(f"v_lshl_add_u32 {vWO}, {vCol}, 3, {sT[0]}")
    a(f"v_lshl_add_u32 {vWO}, {vRow}, 15, {vWO}")
    a(f"s_add_u32 {sOff}, {sW}, {WMR}")
    if FB: a(f"s_add_u32 {sTg}, {sTg}, 1")
    stamp(3)
    a("s_waitcnt lgkmcnt(0)")
    a("s_branch L_kmid")
    a("L_kst:")
    for n in range(1, PRE):
        for i in range(16): a(f"v_mov_b32 v{ST[n-1]+i}, v{ST[n]+i}")
    a("s_branch L_kmid")
    a("L_k:")
    a(f"s_cmp_lt_u32 {sR}, {PRE}")
    a(f"s_cbranch_scc1 L_kst")
    for t in range(1, 4): a(f"v_xor_b32 v{10+t}, {64*t}, {vKA}")
    spin(F_LAND, "s_cmp_gt_i32", sG, "v10", sT[0])
    a(f"ds_read_b128 v[{DT}:{DT+3}], {vKA}")
    for t in range(1, 4): a(f"ds_read_b128 v[{DT+4*t}:{DT+4*t+3}], v{10+t}")
    a("L_kmid:")
    a(f"v_add_u32 {vDn}, 1, {vDn}")
    a(f"v_add_u32 {vKA}, 0x8000, {vKA}")
    a(f"v_and_b32 {vKA}, 0x1ffff, {vKA}")
    for t in range(4):
        a(f"s_waitcnt lgkmcnt({3-t})")
        a(f"v_mfma_f32_16x16x32_bf16 v[16:19], v[{QF+4*t}:{QF+4*t+3}], v[{DT+4*t}:{DT+4*t+3}], {'0' if t == 0 else 'v[16:19]'}")
    a(f"v_max_u32 v10, {PRE}, {vDn}")
    a(f"ds_write_b32 {vDA}, v10 offset:{F_DONE}")
    a(f"s_add_u32 {sG}, {sG}, 8")
    a(f"s_nop 4")
    rbf("v16")
    a(f"v_mul_f32 v16, {sK}, v16")
    rbf("v16")
    a(f"ds_write_b32 {vSA}, v16", "score of key l&15 of this granule")
    a(f"v_max_f32 v17, {vM}, v16", "running max / sum per lane")
    a(f"v_sub_f32 v18, {vM}, v17")
    a(f"v_sub_f32 v16, v16, v17")
    a(f"v_mul_f32 v18, {sL2E}, v18")
    a(f"v_mul_f32 v16, {sL2E}, v16")
    a(f"v_exp_f32 v18, v18")
    a(f"v_exp_f32 v16, v16")
    a(f"v_mov_b32 {vM}, v17")
    a(f"v_add_u32 {vSA}, 512, {vSA}")
    a(f"v_fma_f32 {vLs}, {vLs}, v18, v16")
    if FG0 < 256: ctl("k")
    a.c("wo slice trickles in, one row pair at a time")
    for j in range(16):
        rr = WOR + j * WOM // WOD
        a(f"s_cmp_lg_u32 {sR}, {rr}")
        a(f"s_cbranch_scc1 L_wo{j}")
        a(f"s_movk_i32 {sT[1]}, {2048*j}")
        a(f"buffer_load_dwordx2 v[{WREG+4*j}:{WREG+4*j+1}], {vWO}, {R}, {sT[1]} offen nt")
        a(f"buffer_load_dwordx2 v[{WREG+4*j+2}:{WREG+4*j+3}], {vWO}, {R}, {sT[1]} offen offset:1024 nt")
        a(f"L_wo{j}:")
    a(f"s_cmp_lg_u32 {sR}, {sOff}")
    a(f"s_cbranch_scc1 L_nomx")
    a.c("mixer operands: lane (r,c) handles d = 16h + c and hidden pairs (4w+r)*28 + {c, 14+c}")
    a(f"s_lshl_b32 {sT[0]}, {sH}, 5")
    a(f"v_lshl_add_u32 v11, {vCol}, 1, {sT[0]}")
    a(f"global_load_ushort {vH}, v11, s[4:5]")
    a(f"s_mul_i32 {sT[0]}, {sW}, 448")
    a(f"v_mul_u32_u24 v11, 112, {vRow}")
    a(f"v_lshl_add_u32 v11, {vCol}, 2, v11")
    a(f"v_add_u32 v11, {sT[0]}, v11")
    a(f"v_cmp_lt_u32 vcc, 13, {vCol}")
    a(f"v_mov_b32 v12, 0x10000")
    a(f"s_movk_i32 s58, 3584")
    a(f"v_cndmask_b32 v11, v11, v12, vcc", "lanes 14,15 read out of range -> 0")
    for k, p in enumerate([16, 18, 20]):
        a(f"s_mov_b32 s56, s{p}"); a(f"s_mov_b32 s57, s{p+1}")
        for s_ in range(2):
            a(f"buffer_load_dword v{MX + 5*s_ + (1,3,4)[k]}, v11, {W2}, 0 offen offset:{56*s_}")
    a(f"v_mov_b32 v12, 0")
    a(f"global_load_ushort v146, v12, s[22:23]", "b2")
    a(f"s_lshl_b32 {sT[0]}, {sB}, 8")
    a(f"s_add_u32 {sT[0]}, {sT[0]}, {hex(WS_EPOCH)}")
    a(f"s_load_dword {sE}, s[28:29], {sT[0]}", "whatever the batch's tag word holds on entry")
    a("L_nomx:")
    a(f"s_cmp_lg_u32 {sR}, 15")
    a(f"s_cbranch_scc1 L_noms")
    unpack(160)
    ln(sM2, sD2, False)
    a("s_waitcnt vmcnt(0)")
    a(f"v_lshlrev_b32 {vH}, 16, {vH}")
    a(f"v_mov_b32 {vXr}, {vH}")
    a(f"v_subrev_f32 {vH}, {sM1}, {vH}"); rbf(vH)
    a(f"v_mul_f32 {vH}, {sD1}, {vH}"); rbf(vH)
    a(f"v_subrev_f32 {vH}, {sM2}, {vH}"); rbf(vH)
    a(f"v_mul_f32 {vH}, {sD2}, {vH}"); rbf(vH)
    for s_ in range(2):
        b = MX + 5*s_
        a(f"v_lshlrev_b32 v{b}, 16, v{b+1}"); a(f"v_and_b32 v{b+1}, {sHI}, v{b+1}")
        a(f"v_lshlrev_b32 v{b+2}, 16, v{b+3}"); a(f"v_and_b32 v{b+3}, {sHI}, v{b+3}")
    kb = math.sqrt(2.0/math.pi)
    a(f"v_mov_b32 {vC0}, {hex(f2u(-2*kb*l2e))}")
    a(f"s_mov_b32 {sC1}, {hex(f2u(-2*kb*l2e*0.044715))}")
    a(f"v_mov_b32 {vMA}, 0")
    a("L_noms:")
    a(f"s_cmp_lt_u32 {sR}, 16")
    a(f"s_cbranch_scc1 L_nomix")
    a.c("mixer: gelu_tanh(u) = u / (1 + exp(-2 z)), two hidden pairs per round")
    BC = "row_newbcast:0 " + FULL
    for s_ in range(2):
        b = MX + 5*s_
        a(f"v_mul_f32_dpp v16, v{b}, {vH} {BC}"); a(f"v_mul_f32_dpp v17, v{b+1}, {vH} {BC}")
        a(f"v_cvt_pk_bf16_f32 v17, v16, v17")
        a(f"v_lshlrev_b32 v16, 16, v17"); a(f"v_and_b32 v17, {sHI}, v17")
        a(f"v_add_f32_dpp v16, v{b+2}, v16 {BC}"); a(f"v_add_f32_dpp v17, v{b+3}, v17 {BC}")
        a(f"v_cvt_pk_bf16_f32 v17, v16, v17")
        a(f"v_lshlrev_b32 v16, 16, v17"); a(f"v_and_b32 v17, {sHI}, v17")
        a(f"v_mul_f32 v18, v16, v16"); a(f"v_mul_f32 v19, v17, v17")
        a(f"v_fma_f32 v18, v18, {sC1}, {vC0}"); a(f"v_fma_f32 v19, v19, {sC1}, {vC0}")
        a(f"v_mul_f32 v18, v18, v16"); a(f"v_mul_f32 v19, v19, v17")
        a(f"v_exp_f32 v18, v18"); a(f"v_exp_f32 v19, v19")
        a(f"v_mov_b32_dpp v{b}, v{b} row_ror:15 {FULL}")
        a(f"v_add_f32 v18, 1.0, v18"); a(f"v_add_f32 v19, 1.0, v19")
        a(f"v_rcp_f32 v18, v18"); a(f"v_rcp_f32 v19, v19")
        a(f"v_mov_b32_dpp v{b+1}, v{b+1} row_ror:15 {FULL}")
        a(f"v_mul_f32 v18, v18, v16"); a(f"v_mul_f32 v19, v19, v17")
        a(f"v_cvt_pk_bf16_f32 v18, v18, v19")
        a(f"v_mov_b32_dpp v{b+2}, v{b+2} row_ror:15 {FULL}")
        a(f"v_mov_b32_dpp v{b+3}, v{b+3} row_ror:15 {FULL}")
        a(f"v_dot2c_f32_bf16_dpp {vMA}, v{b+4}, v18 {BC}")
        a(f"v_mov_b32_dpp v{b+4}, v{b+4} row_ror:15 {FULL}")
    a("L_nomix:")
    a(f"s_add_u32 {sR}, {sR}, 1")
    a(f"s_cmp_lt_u32 {sR}, 32")
    a(f"s_cbranch_scc1 L_k")
    a.c("---- softmax statistics: per-wave (max, sum), then over the 8 waves ----")
    a(f"v_mov_b32 v16, {vM}")
    allreduce("v_max_f32", "v16", 4)
    a(f"v_sub_f32 v17, {vM}, v16")
    a(f"v_mul_f32 v17, {sL2E}, v17")
    a(f"v_exp_f32 v17, v17")
    a(f"s_lshl_b32 {sT[0]}, {sW}, 3")
    a(f"v_add_u32 v18, {sT[0]}, {vF}")
    a(f"v_mul_f32 v17, v17, {vLs}")
    allreduce("v_add_f32", "v17", 4)
    a(f"ds_write_b64 v18, v[16:17] offset:{F_ML}")
    rows_sum(vMA, "v19")
    a(f"s_lshl_b32 {sT[0]}, {sW}, 6")
    a(f"s_add_u32 {sT[0]}, {sT[0]}, {L_BP}")
    a(f"v_lshl_add_u32 v19, {vCol}, 2, {sT[0]}")
    a(f"ds_write_b32 v19, {vMA}")
    arrive(F_ARRS)
    a.c("interleave the wo row pairs: (row 2j, row 2j+1) per column")
    a(f"s_mov_b32 {sT[0]}, 0x05040100")
    a(f"s_mov_b32 {sT[1]}, 0x07060302")
    a("s_waitcnt vmcnt(0)")
    for j in range(16):
        for i in range(2):
            r0 = WREG + 4*j + i; r1 = r0 + 2
            a(f"v_perm_b32 v16, v{r1}, v{r0}, {sT[0]}")
            a(f"v_perm_b32 v{r1}, v{r1}, v{r0}, {sT[1]}")
            a(f"v_mov_b32 v{r0}, v16")
    a.c("hand-off addresses: lane (r,c) ends with column 64w + 4c + r")
    vYA = "v13"
    a(f"s_lshl_b32 {sT[0]}, {sB}, 17")
    a(f"s_add_u32 s56, s28, {sT[0]}")
    a(f"s_addc_u32 s57, s29, 0")
    a(f"s_mov_b32 s58, 0x20000")
    a(f"s_lshl_b32 {sT[0]}, {sW}, 14")
    a(f"s_lshl_b32 {sT[1]}, {sH}, 7")
    a(f"s_add_u32 {sT[0]}, {sT[0]}, {sT[1]}")
    a(f"v_lshrrev_b32 v12, 2, {vCol}")
    a(f"v_lshl_add_u32 {vYA}, v12, 12, {sT[0]}")
    a(f"v_and_b32 v12, 3, {vCol}")
    a(f"v_lshl_add_u32 {vYA}, v12, 5, {vYA}")
    a(f"v_lshl_add_u32 {vYA}, {vRow}, 3, {vYA}")
    if o.get("stm", 2) == 4:
        a(f"v_and_b32 v12, 1, {vRow}")
        a(f"v_lshl_add_u32 {vYA}, v12, 17, {vYA}")
    a(f"s_add_u32 {sE}, {sE}, 1", "this launch's tag")
    if DRY:
        a.c("walk the end-of-kernel code once with no lane active, so that it is in the instruction cache")
        a(f"s_mov_b64 exec, 0")
        a(f"s_branch L_tailb")
        a("L_dryret:")
        a(f"s_mov_b64 exec, -1")
    spin(F_ARRS, "s_cmp_ge_u32", 8, "v10", sT[0])
    a(f"v_and_b32 v18, 7, {vL}")
    a(f"v_lshl_add_u32 v18, v18, 3, {vF}")
    a(f"ds_read_b64 v[16:17], v18 offset:{F_ML}")
    a(f"v_lshlrev_b32 v19, 2, {vL}")
    a(f"v_add_u32 v18, {L_BP}, v19")
    a(f"ds_read_b32 v20, v18")
    a(f"ds_read_b32 v21, v18 offset:256")
    a("s_waitcnt lgkmcnt(0)")
    a(f"v_mov_b32 {vM}, v16")
    allreduce("v_max_f32", vM, 3)
    a(f"v_sub_f32 v16, v16, {vM}")
    a(f"v_mul_f32 v16, {sL2E}, v16")
    a(f"v_exp_f32 v16, v16")
    a(f"v_add_f32 v20, v20, v21")
    a(f"v_mul_f32 {vLs}, v16, v17")
    allreduce("v_add_f32", vLs, 3)
    a(f"v_rcp_f32 {vLs}, {vLs}")
    rows_sum("v20", "v21")
    rbf("v20")
    a(f"v_lshlrev_b32 v146, 16, v146")
    a(f"v_add_f32 v20, v146, v20")
    rbf("v20")
    a(f"v_lshl_add_u32 v18, {vCol}, 2, {vF}")
    a(f"v_mov_b32 v19, {sE}")
    a(f"ds_write_b32 v18, {vXr} offset:{L_FIN - L_FL}", "operands of the final stage (all waves write the same values)")
    a(f"ds_write_b32 v18, v20 offset:{L_FIN - L_FL + 64}")
    a(f"ds_write_b32 {vF}, v19 offset:{F_TAG}")
    a(f"s_lshl_b32 {sT[0]}, {sW}, 12")
    a(f"v_lshl_add_u32 {vKA}, {vL}, 4, {sT[0]}")
    a(f"v_and_b32 {vSA}, 3, {vL}")
    a(f"v_lshl_add_u32 {vSA}, {vSA}, 2, {vRow}")
    a(f"s_lshl_b32 {sT[0]}, {sW}, 6")
    a(f"s_add_u32 {sT[0]}, {sT[0]}, {L_SC}")
    a(f"v_lshl_add_u32 {vSA}, {vSA}, 2, {sT[0]}")
    for i in range(8): a(f"v_mov_b32 {ACC[i]}, 0")
    Y = ["v48", "v50", "v51", "v52"]
    for y in Y: a(f"v_mov_b32 {y}, 0")
    a(f"v_mov_b32 v49, {sE}")
    stamp(4)
    a("s_branch L_v")
    a("L_vc:")
    ctl("v")
    a("L_v:")
    a(f"ds_read_b32 v16, {vSA}")
    a(f"v_add_u32 {vSA}, 512, {vSA}")
    a(f"v_add_u32 {vDn}, 1, {vDn}")
    a("s_waitcnt lgkmcnt(0)")
    a(f"v_sub_f32 v16, v16, {vM}", "p = bf16(exp(s - max) / sum)")
    a(f"v_mul_f32 v16, {sL2E}, v16")
    a(f"v_exp_f32 v16, v16")
    a(f"s_nop 0")
    a(f"v_mul_f32 v16, v16, {vLs}")
    a(f"v_cvt_pk_bf16_f32 v16, v16, v16")
    a(f"v_lshrrev_b32 v17, 16, v16")
    a(f"v_and_b32 v16, {sHI}, v16")
    spin(F_LAND, "s_cmp_gt_i32", sG, "v10", sT[0])
    for t in range(4): a(f"ds_read_b128 v[{DT+4*t}:{DT+4*t+3}], {vKA} offset:{1024*t}")
    a(f"v_add_u32 {vKA}, 0x8000, {vKA}")
    a(f"v_and_b32 {vKA}, 0x1ffff, {vKA}")
    a(f"s_add_u32 {sG}, {sG}, 8")
    a(f"s_cmpk_lt_u32 {sG}, 512")
    for j in range(4):
        a(f"s_waitcnt lgkmcnt({3-j})")
        if j == 3: a(f"ds_write_b32 {vDA}, {vDn} offset:{F_DONE}")
        for i in range(4):
            a(f"v_dot2c_f32_bf16_dpp {ACC[2*i]}, v17, v{DT+4*j+i} quad_perm:[{j},{j},{j},{j}] {FULL}")
            a(f"v_dot2c_f32_bf16_dpp {ACC[2*i+1]}, v16, v{DT+4*j+i} quad_perm:[{j},{j},{j},{j}] {FULL}")
    a(f"s_cbranch_scc1 L_vc")
    stamp(5)
    a.c("---- o over rows and waves, output projection, hand-off ----")
    a("s_nop 1")
    rows_reduce8(vPW)
    a("s_waitcnt lgkmcnt(0)")
    a("s_barrier")
    a("L_tailb:")
    tstamp(1)
    sum8(DT, vPR)
    a("s_nop 1")
    tstamp(2)
    for j in range(16):
        for c in range(4):
            a(f"v_dot2c_f32_bf16_dpp {Y[c]}, v{DT}, v{WREG+4*j+(0,2,1,3)[c]} row_newbcast:{j} {FULL}")
    a("s_nop 1")
    a(f"v_permlane32_swap_b32 {Y[0]}, {Y[2]}")
    a(f"v_permlane32_swap_b32 {Y[1]}, {Y[3]}")
    a(f"v_add_f32 {Y[0]}, {Y[0]}, {Y[2]}")
    a(f"v_add_f32 {Y[1]}, {Y[1]}, {Y[3]}")
    STM = o.get("stm", 2); STP = o.get("stp", "sc1")
    if STM == 4:
        a(f"v_mov_b32 {Y[2]}, {Y[0]}"); a(f"v_mov_b32 {Y[3]}, {Y[1]}")
        a("s_nop 0")
        a(f"v_permlane16_swap_b32 {Y[0]}, {Y[2]}")
        a(f"v_permlane16_swap_b32 {Y[1]}, {Y[3]}")
        a(f"v_add_f32 {Y[0]}, {Y[0]}, {Y[2]}")
        a(f"v_add_f32 {Y[1]}, {Y[1]}, {Y[3]}")
        a(f"v_mov_b32 v51, v49")
    else:
        a("s_nop 1")
        a(f"v_permlane16_swap_b32 {Y[0]}, {Y[1]}")
        a(f"v_add_f32 {Y[0]}, {Y[0]}, {Y[1]}")
    if DRY: a("s_cbranch_execz L_fin0")
    if STM == 4: a(f"buffer_store_dwordx4 v[48:51], {vYA}, {W2}, 0 offen {STP}")
    elif STM == 2: a(f"buffer_store_dwordx2 v[48:49], {vYA}, {W2}, 0 offen {STP}", "{partial, tag} to the workgroup that owns the column")
    elif STM == 3: a(f"buffer_atomic_swap_x2 v[48:49], {vYA}, {W2}, 0 offen {STP}")
    if o.get("wb", 0): a("buffer_wbl2 sc1")
    tstamp(3)
    stamp(6); stamp(7)
    a("L_fin:")
    if STAMP: a(f"s_mov_b64 exec, -1")
    stamp(8)
    if STAMP in (4, 5):
        a("s_memrealtime s[72:73]")
        a("s_waitcnt lgkmcnt(0)")
        a(f"s_cmp_lg_u32 {sW}, {o.get('lw', -1)}"); a("s_cbranch_scc1 L_end")
        if "swg" in o: a(f"s_cmp_lg_u32 s2, {o['swg']}"); a("s_cbranch_scc1 L_end")
        a(f"s_sub_u32 s74, s{60+2*o['t1']}, s{60+2*o['t0']}")
        a(f"s_sub_u32 s74, s74, {o.get('sub', 0)}")
        if o.get("neg", 0): a("s_sub_u32 s74, 0, s74")
        a(f"s_mul_i32 s74, s74, {o.get('amp', 10)}")
        a(f"s_add_u32 s74, s74, 10000"); a(f"s_min_u32 s74, s74, 100000")
        a("L_pin3:")
        a("s_memrealtime s[76:77]"); a("s_waitcnt lgkmcnt(0)"); a("s_sub_u32 s76, s76, s60")
        a(f"s_cmp_lt_u32 s76, s74"); a("s_cbranch_scc1 L_pin3")
    if STAMP == 1:
        a("s_waitcnt vmcnt(0) lgkmcnt(0)")
        a(f"s_mul_i32 {sT[0]}, s2, 9"); a(f"s_add_u32 {sT[0]}, {sT[0]}, {sW}"); a(f"s_add_u32 {sT[0]}, {sT[0]}, 1")
        a(f"s_lshl_b32 {sT[0]}, {sT[0]}, 7"); a(f"s_add_u32 {sT[0]}, {sT[0]}, 0x100000")
        a(f"v_mov_b32 v16, 0")
        for i in range(18): a(f"v_writelane_b32 v16, s{60+i}, {i}")
        a(f"s_getreg_b32 {sT[1]}, hwreg(HW_REG_XCC_ID)"); a(f"s_getreg_b32 {sT[2]}, hwreg(HW_REG_HW_ID)")
        a(f"v_writelane_b32 v16, {sT[1]}, 18"); a(f"v_writelane_b32 v16, {sT[2]}, 19")
        a(f"v_writelane_b32 v16, {sSpin}, 20"); a(f"v_writelane_b32 v16, s79, 21"); a(f"v_writelane_b32 v16, s88, 22")
        a(f"v_lshl_add_u32 v17, {vL}, 2, {sT[0]}")
        a(f"s_mov_b64 exec, 0xffffffff")
        a(f"global_store_dword v17, v16, s[28:29]")
    a("L_end:")
    a("s_endpgm")

    head = open("cdna_kernels/%s.s.ref" % NAME).read().split("; Override launch")[0]
    out = head + f"; @launch grid=(256,1,1) block=(576,1,1) lds={LDS_BYTES}\n"
    out += '.amdgcn_target "amdgcn-amd-amdhsa--gfx950"\n.text\n'
    out += f".globl {NAME}_kernel\n.p2align 8\n.type {NAME}_kernel,@function\n" + a.text()
    out += f""".section .rodata,"a"
.p2align 6
.amdhsa_kernel {NAME}_kernel
  .amdhsa_next_free_vgpr 168
  .amdhsa_next_free_sgpr 96
  .amdhsa_accum_offset 168
  .amdhsa_group_segment_fixed_size 0
  .amdhsa_kernarg_size 104
  .amdhsa_user_sgpr_count 2
  .amdhsa_user_sgpr_kernarg_segment_ptr 1
  .amdhsa_system_sgpr_workgroup_id_x 1
  .amdhsa_float_denorm_mode_32 3
.end_amdhsa_kernel
"""
    return out
if __name__ == "__main__":
    opts = {}
    for kv in sys.argv[2:]:
        k, v = kv.split("=")
        try: opts[k] = int(v, 0)
        except ValueError: opts[k] = v.replace("+", " ")
    open(sys.argv[1], "w").write(gen(opts))
```

```python
import sys, struct, math
NAME = "parallel_sum__mha_block_cached__mixer_token_mlp__decode"
def f2u(x): return struct.unpack("<I", struct.pack("<f", x))[0]
class Asm:
    def __init__(self): self.lines = []
    def __call__(self, s, c=None):
        s = s.strip()
        l = s if s.endswith(":") else "    " + s
        if c: l = l.ljust(72) + "; " + c
        self.lines.append(l)
    def c(self, s): self.lines.append("    ; " + s)
    def text(self): return "\n".join(self.lines) + "\n"

def gen(o):
    D = o.get("d", 26); DS = o.get("ds", 24); RS = o.get("rs", 4)
    STAMP = o.get("stamp", 0); TS = o.get("ts", 0)
    BOUND = o.get("bound", 0)
    FB = o.get("fb", 1)
    FP = o.get("fp", 8); FS = o.get("fs", 3); FG0 = o.get("fg0", 212); FR = o.get("frep", 8)
    FSA = o.get("fsa", (7 * FS) // 2 + 1); FEND = o.get("fend", 480)
    B0 = o.get("b0", 150); BG = o.get("bg", 30)
    WQS = o.get("wqs", 4); WQ2 = o.get("wq2", 3); PRE = 3
    PJ = [int(x) for x in str(o.get("pj", "6,11")).split(",")]
    WOR = o.get("wor", 6); WOM = o.get("wom", 3); WOD = o.get("wod", 2); WMR = 6
    DRY = o.get("dry", 2); PP = o.get("pp", 1)
    a = Asm()
    FULL = "row_mask:0xf bank_mask:0xf"
    l2e = 1.0 / math.log(2.0)
    WS_EPOCH = 0x180000; WS_MARK = 0x200000
    sE, sL2E, sC1 = "s3", "s14", "s15"
    sB, sH, sW, sOff, sR, sG = "s30", "s31", "s32", "s33", "s34", "s35"
    R = "s[36:39]"; W2 = "s[56:59]"
    sM1, sD1, sM2, sD2 = "s40", "s41", "s42", "s43"
    sT = [f"s{44+i}" for i in range(8)]
    sHI, sB2, sSpin, sK, sTg = "s52", "s53", "s54", "s55", "s78"
    sCnt, sAcc, sInc, sSrc, sX = "s40", "s46", "s47", "s50", "s51"
    L_SC = 131072; L_QP = L_SC + 16384; L_XN = L_QP + 4352; L_BP = L_XN + 1024; L_FL = L_BP + 512
    F_LAND, F_ARRQ, F_ARRS, F_TAG, F_DONE, F_RATE, F_ML = 0, 4, 8, 12, 32, 64, 192
    L_FIN = L_FL + 256
    LDS_BYTES = L_FIN + 128
    vL, vRow, vCol, vF = "v0", "v1", "v2", "v3"
    WREG, QF, DT, MX = 64, 48, 32, 128
    ACC = [f"v{24+i}" for i in range(8)]
    ST = [DT, 128, 144]
    nlab = [0]
    def lab(p): nlab[0] += 1; return f"L_{p}{nlab[0]}"
    def stamp(i, force=False):
        if STAMP == 1 or (STAMP >= 4 and i in (0, 5)) or force: a(f"s_memrealtime s[{60+2*i}:{61+2*i}]")
    def tstamp(i):
        if TS: a(f"s_memrealtime s[{60+2*i}:{61+2*i}]")
    def wave_reduce(op, v, sdst):
        for ctl in ["quad_perm:[1,0,3,2] "+FULL, "quad_perm:[2,3,0,1] "+FULL, "row_half_mirror "+FULL, "row_mirror "+FULL,
                    "row_bcast:15 row_mask:0xa bank_mask:0xf", "row_bcast:31 row_mask:0xc bank_mask:0xf"]:
            a("s_nop 1"); a(f"{op}_dpp {v}, {v}, {v} {ctl}")
        a("s_nop 1"); a(f"v_readlane_b32 {sdst}, {v}, 63")
    def allreduce(op, v, steps):
        for ctl in ["quad_perm:[1,0,3,2]", "quad_perm:[2,3,0,1]", "row_half_mirror", "row_mirror"][:steps]:
            a("s_nop 1"); a(f"{op}_dpp {v}, {v}, {v} {ctl} {FULL}")
    def rbf(v):
        a(f"v_cvt_pk_bf16_f32 {v}, {v}, {v}"); a(f"v_and_b32 {v}, {sHI}, {v}")
    def spin(off, cmp, val, tmpv, tmps):
        l0, l1 = lab("sp"), lab("go")
        a(f"{l0}:")
        a(f"ds_read_b32 {tmpv}, {vF} offset:{off}")
        a("s_waitcnt lgkmcnt(0)")
        a(f"v_readfirstlane_b32 {tmps}, {tmpv}")
        a(f"{cmp} {tmps}, {val}")
        if BOUND:
            a(f"s_cbranch_scc1 {l1}")
            a(f"s_sub_u32 {sSpin}, {sSpin}, 1"); a(f"s_cbranch_scc1 L_end"); a(f"s_branch {l0}")
            a(f"{l1}:")
        else: a(f"s_cbranch_scc0 {l0}")
    def rows_sum(v, t):
        a(f"v_mov_b32 {t}, {v}"); a("s_nop 1"); a(f"v_permlane32_swap_b32 {v}, {t}"); a(f"v_add_f32 {v}, {v}, {t}")
        a(f"v_mov_b32 {t}, {v}"); a("s_nop 1"); a(f"v_permlane16_swap_b32 {v}, {t}"); a(f"v_add_f32 {v}, {v}, {t}")
    def rows_reduce8(vaddr):
        for i in range(4): a(f"v_permlane32_swap_b32 {ACC[i]}, {ACC[i+4]}")
        for i in range(4): a(f"v_add_f32 {ACC[i]}, {ACC[i]}, {ACC[i+4]}")
        a("s_nop 0")
        for i in range(2): a(f"v_permlane16_swap_b32 {ACC[i]}, {ACC[i+2]}")
        for i in range(2): a(f"v_add_f32 {ACC[i]}, {ACC[i]}, {ACC[i+2]}")
        a(f"ds_write_b64 {vaddr}, v[24:25]")
    def arrive(off):
        a(f"v_mov_b32 v10, 1")
        a("s_waitcnt lgkmcnt(0)")
        a(f"s_mov_b64 exec, 1"); a(f"ds_add_u32 {vF}, v10 offset:{off}"); a(f"s_mov_b64 exec, -1")
    def sum8(base, vaddr):
        for w in range(8): a(f"ds_read_b64 v[{base+2*w}:{base+2*w+1}], {vaddr} offset:{528*w}")
        a(f"s_waitcnt lgkmcnt({0 if TS else 4})")
        for i in range(4): a(f"v_add_f32 v{base+i}, v{base+i}, v{base+4+i}")
        for i in range(2): a(f"v_add_f32 v{base+i}, v{base+i}, v{base+2+i}")
        a("s_waitcnt lgkmcnt(0)")
        for i in range(4): a(f"v_add_f32 v{base+8+i}, v{base+8+i}, v{base+12+i}")
        for i in range(2): a(f"v_add_f32 v{base+8+i}, v{base+8+i}, v{base+10+i}")
        for i in range(2): a(f"v_add_f32 v{base+i}, v{base+i}, v{base+8+i}")
        a(f"v_cvt_pk_bf16_f32 v{base}, v{base}, v{base+1}")
    def ctl(tag):
        if not FB: return
        a.c("flow control: compare own progress with eight reference workgroups, set the loader's idle-slot rate")
        a(f"s_sub_u32 {sT[1]}, {sG}, {FG0 + 8}")
        a(f"s_cmp_ge_u32 {sT[1]}, {FEND - FG0 - 8}")
        a(f"s_cbranch_scc1 L_nc{tag}")
        a(f"s_and_b32 {sT[2]}, {sT[1]}, {8*FP - 1}", "phase inside the control period")
        a(f"s_lshr_b32 {sT[1]}, {sT[1]}, {(8*FP).bit_length() - 1}", "checkpoint number")
        a(f"s_mul_i32 {sT[3]}, {sT[1]}, {FR * 4352}")
        a(f"s_add_u32 {sT[3]}, {sT[3]}, {hex(WS_MARK)}")
        a(f"s_cmp_ge_u32 s2, 8")
        a(f"s_cbranch_scc1 L_cs{tag}")
        a(f"s_add_u32 {sT[4]}, s2, {sT[1]}")
        a(f"s_and_b32 {sT[4]}, {sT[4]}, 7")
        a(f"s_mul_i32 {sT[4]}, {sT[4]}, {FS}")
        a(f"s_cmp_eq_u32 {sT[2]}, {sT[4]}")
        a(f"s_cbranch_scc0 L_cs{tag}")
        a(f"v_mul_u32_u24 v10, 4352, {vL}")
        a(f"s_lshl_b32 {sT[4]}, s2, 2")
        a(f"s_add_u32 {sT[4]}, {sT[4]}, {sT[3]}")
        a(f"v_add_u32 v10, {sT[4]}, v10")
        a(f"v_mov_b32 v11, {sTg}")
        a(f"s_mov_b64 exec, {hex((1 << FR) - 1)}")
        a(f"global_store_dword v10, v11, s[28:29] sc1", "reference workgroup: leave this launch's mark")
        a(f"s_mov_b64 exec, -1")
        a(f"L_cs{tag}:")
        a(f"s_cmp_eq_u32 {sT[2]}, {FSA}")
        a(f"s_cbranch_scc0 L_nc{tag}")
        a(f"s_bfe_u32 {sT[2]}, s2, {hex(3 | ((FR.bit_length() - 1) << 16))}")
        a(f"s_mul_i32 {sT[2]}, {sT[2]}, 4352")
        a(f"s_add_u32 {sT[3]}, {sT[3]}, {sT[2]}")
        a(f"s_load_dwordx8 s[80:87], s[28:29], {sT[3]} glc")
        a(f"s_mov_b32 {sT[2]}, 4")
        a(f"s_waitcnt lgkmcnt(0)")
        for i in range(8):
            a(f"s_cmp_eq_u32 s{80+i}, {sTg}")
            a(f"s_subb_u32 {sT[2]}, {sT[2]}, 0")
        a(f"s_mul_i32 {sT[2]}, {sT[2]}, {BG}")
        a(f"s_add_u32 {sT[2]}, {sT[2]}, {B0}")
        a(f"s_max_i32 {sT[2]}, {sT[2]}, 0")
        a(f"s_min_i32 {sT[2]}, {sT[2]}, 255")
        a(f"v_mov_b32 v11, {sT[2]}")
        a(f"ds_write_b32 {vF}, v11 offset:{F_RATE}")
        a(f"L_nc{tag}:")

    a(f"{NAME}_kernel:")
    a("s_cmpk_ge_u32 s2, 256")
    a("s_cbranch_scc1 L_end")
    a("s_load_dwordx16 s[4:19], s[0:1], 0")
    a("s_load_dwordx8 s[20:27], s[0:1], 64")
    a("s_load_dwordx2 s[28:29], s[0:1], 96")
    stamp(0)
    a(f"v_lshrrev_b32 v4, 6, v0")
    a(f"v_and_b32 {vL}, 63, v0")
    a(f"v_readfirstlane_b32 {sW}, v4")
    a(f"v_mov_b32 {vF}, {L_FL}")
    a(f"v_lshl_add_u32 v9, {vL}, 2, {vF}")
    a(f"v_mov_b32 v10, 0")
    a(f"ds_write_b32 v9, v10", "every wave clears the flag block before the barrier")
    a(f"v_lshrrev_b32 {vRow}, 4, {vL}")
    a(f"v_and_b32 {vCol}, 15, {vL}")
    a(f"s_mov_b32 s39, 0x20000")
    a(f"s_mov_b32 s38, 0x100000")
    a(f"s_lshl_b32 {sT[0]}, s2, 20")
    a(f"v_xor_b32 v4, {vCol}, {vRow}", "K rows are stored with their 16-byte chunks xor-swizzled by key&15")
    a(f"v_lshlrev_b32 v4, 4, v4")
    a(f"v_lshl_add_u32 v4, {vRow}, 8, v4")
    a(f"v_xor_b32 v5, 64, v4")
    a(f"v_xor_b32 v6, 0x80, v4")
    a(f"v_xor_b32 v7, 64, v6")
    js = (D - 1) % 4; jss = (DS - 1) % 4
    a(f"v_mov_b32 v8, {(jss - DS - 3)//4}", "landed-granule counter")
    a(f"s_mov_b32 {sOff}, 0")
    a(f"s_lshl_b32 {sX}, s2, 10")
    a(f"s_and_b32 {sX}, {sX}, 0x6000")
    a(f"s_mov_b32 {sSrc}, {sX}")
    a(f"s_mov_b32 m0, 0")
    a(f"s_sub_u32 {sW}, {sW}, 1", "consumer index; borrow marks the loader")
    a("s_waitcnt lgkmcnt(0)")
    a("s_barrier")
    a("s_cbranch_scc0 L_cons")

    a("s_setprio 3")
    a(f"s_add_u32 s36, s6, {sT[0]}")
    a(f"s_addc_u32 s37, s7, 0")
    def pair_body(Dw, jw, fb, tag):
        for half in range(2):
            for j in range(4):
                if fb and j % 2 == 0:
                    a(f"s_add_u32 {sAcc}, {sAcc}, {sInc}")
                    a(f"s_cbranch_scc0 L_nd{tag}{half}{j}")
                    a(f"buffer_load_dword v12, v4, {R}, s38 offen", "out of range: takes one slot of the window, moves no data")
                    a(f"L_nd{tag}{half}{j}:")
                a(f"s_waitcnt vmcnt({Dw-1})")
                a(f"buffer_load_dwordx4 v{4+j}, {R}, {sSrc} offen offset:{1024*j} nt lds")
                if j == jw:
                    a("v_add_u32 v8, 1, v8"); a(f"ds_write_b32 {vF}, v8")
                if half == 0 and j == 0: a(f"s_bitset1_b32 {sOff}, 15")
                if half == 0 and j == 1: a(f"s_addk_i32 {sOff}, 4096")
                if half == 0 and j == 2: a(f"s_bitset0_b32 {sOff}, 15")
            a(f"s_addk_i32 m0, 4096")
            if half == 0: a(f"s_bitset1_b32 {sSrc}, 15")
            else: a(f"s_xor_b32 {sSrc}, {sOff}, {sX}")
    a("L_ls:")
    pair_body(DS, jss, 0, "s")
    a(f"s_cmp_lg_u32 m0, {RS*32768}")
    a(f"s_cbranch_scc1 L_ls")
    a(f"v_mov_b32 v8, {(32*RS + js - D - 3)//4}")
    a(f"s_mov_b32 {sR}, {RS-1}")
    a(f"s_add_u32 s8, s8, {sT[0]}")
    a(f"s_addc_u32 s9, s9, 0")
    a(f"s_mov_b32 {sSpin}, 0x100000")
    a(f"v_min_u32 v9, 8, {vL}")
    a(f"v_lshl_add_u32 v9, v9, 2, {vF}", "lanes 0-7: done[], other lanes: idle-slot rate")
    a(f"v_mov_b32 v11, {RS - 4}")
    a(f"v_cmp_lt_u32 vcc, 7, {vL}")
    a(f"v_mov_b32 v14, {B0 if FB else 0}")
    a(f"v_mov_b32 v15, -1000")
    a(f"ds_write_b32 {vF}, v14 offset:{F_RATE}")
    a(f"v_cndmask_b32 v11, v11, v15, vcc")
    a(f"v_cndmask_b32 v10, v10, v14, vcc")
    a(f"s_mov_b32 {sAcc}, 0")
    if STAMP == 1: a("s_mov_b32 s79, 0")
    a(f"s_branch L_ld1")
    a("L_ld:")
    pair_body(D, js, FB, "m")
    a(f"s_sub_u32 {sCnt}, {sCnt}, 1")
    a(f"s_cbranch_scc0 L_ld")
    a("L_ld1:")
    a(f"s_bitset0_b32 m0, 17")
    a(f"s_add_u32 {sR}, {sR}, 1")
    a(f"v_add_u32 v11, 1, v11")
    marks = []
    if STAMP == 1: marks = list(zip((1,2,3,6,7), str(o.get("marks", "4,5,6,8,16")).split(",")))
    if STAMP == 4: marks = [(1, o.get("m0", 99)), (2, o["m1"])]
    for k, rr in marks:
        a(f"s_cmp_lg_u32 {sR}, {rr}"); a(f"s_cbranch_scc1 L_mk{k}"); stamp(k, True); a(f"L_mk{k}:")
    a(f"s_and_b32 {sCnt}, {sR}, 31")
    a(f"s_cbranch_scc0 L_ldsw")
    a("L_ldck:")
    a("s_waitcnt lgkmcnt(0)")
    a(f"v_cmp_lt_i32 vcc, v10, v11", "ring space: every consumer has finished round R-4 (values read one round ago)")
    a(f"s_cbranch_vccnz L_ldslow")
    a(f"s_mov_b32 {sCnt}, 3")
    if FB:
        a(f"v_readlane_b32 {sInc}, v10, 8")
        if STAMP == 1: a(f"s_lshr_b32 s48, {sInc}, 4"); a(f"s_add_u32 s79, s79, s48")
        a(f"s_cmp_lt_u32 {sR}, 63")
        a(f"s_cselect_b32 {sInc}, {sInc}, 0")
        a(f"s_lshl_b32 {sInc}, {sInc}, 24")
    a(f"ds_read_b32 v10, v9 offset:{F_DONE}")
    a(f"s_branch L_ld")
    a("L_ldslow:")
    a(f"ds_read_b32 v10, v9 offset:{F_DONE}")
    if BOUND or STAMP == 1:
        a(f"s_sub_u32 {sSpin}, {sSpin}, 1")
        a(f"s_cbranch_scc1 L_end")
    a("s_branch L_ldck")
    a("L_ldsw:")
    a(f"s_cmp_eq_u32 {sR}, 64")
    a(f"s_cbranch_scc1 L_drain")
    a(f"s_mov_b32 s36, s8", "switch to V (stored unswizzled)")
    a(f"s_mov_b32 s37, s9")
    a(f"s_mov_b32 {sOff}, 0")
    a(f"s_mov_b32 {sSrc}, {sX}")
    for j in range(4): a(f"v_lshlrev_b32 v{4+j}, 4, {vL}")
    stamp(4)
    a("s_branch L_ldck")
    a("L_drain:")
    a.c("set up the final stage while the last loads land: lane l owns output column 2*(l&7) + (l>>5)")
    a(f"v_and_b32 v21, 7, {vL}")
    a(f"v_lshrrev_b32 v22, 5, {vL}")
    a(f"v_lshl_add_u32 v21, v21, 1, v22")
    a(f"v_lshl_add_u32 v22, v21, 2, {vF}")
    a(f"ds_read_b32 v17, {vF} offset:{F_TAG}")
    a(f"ds_read_b32 v18, v22 offset:{L_FIN - L_FL}")
    a(f"ds_read_b32 v19, v22 offset:{L_FIN - L_FL + 64}")
    a(f"s_lshl_b32 {sT[0]}, s2, 5")
    a(f"v_lshl_add_u32 v20, v21, 1, {sT[0]}", "byte offset in out")
    a(f"s_lshl_b32 {sT[0]}, s2, 12")
    a(f"s_add_u32 s56, s28, {sT[0]}", "inbox of this workgroup: 32 producers x 128 bytes")
    a(f"s_addc_u32 s57, s29, 0")
    a(f"s_movk_i32 s58, 4096")
    a(f"s_mov_b32 s59, 0x20000")
    a(f"s_mov_b32 {sHI}, 0xffff0000")
    a(f"s_mov_b64 s[44:45], -1")
    a(f"s_mov_b64 s[46:47], -1")
    pub = (2044 + js - D - 3)//4 + 1
    while pub < 512:
        pub += 1
        a(f"s_waitcnt vmcnt({2048 - 4*pub})")
        a("v_add_u32 v8, 1, v8"); a(f"ds_write_b32 {vF}, v8")
    stamp(5)
    sets = [(32, "s[44:45]"), (48, "s[46:47]")][:PP]
    def pissue(base):
        for i in range(4): a(f"buffer_load_dwordx4 v[{base+4*i}:{base+4*i+3}], v4, {W2}, 0 offen offset:{1024*i} {o.get('plp', 'sc1')}")
    if DRY == 2: a("s_cbranch_execz L_fin0")
    pissue(32)
    a("s_waitcnt lgkmcnt(0)")
    a("s_barrier", "pairs with the consumers' barrier before the output projection")
    if PP == 2: pissue(48)
    if STAMP == 1: a("s_mov_b32 s88, 0")
    a("L_poll:")
    for k, (base, m) in enumerate(sets):
        if STAMP == 1: a("s_add_u32 s88, s88, 1")
        a(f"s_waitcnt vmcnt({4*(PP-1)})")
        a(f"s_mov_b64 exec, {m}")
        for i in range(8): a(f"v_cmpx_eq_u32 vcc, v17, v{base+1+2*i}")
        a(f"s_andn2_b64 {m}, {m}, exec", "lanes whose four 16-byte pieces are not all this launch's yet")
        a(f"s_cbranch_scc0 L_got{k}")
        a(f"s_mov_b64 exec, {m}")
        if o.get("psl", 0): a(f"s_sleep {o['psl']}")
        pissue(base)
    a(f"s_sub_u32 {sSpin}, {sSpin}, 16")
    a(f"s_cbranch_scc0 L_poll")
    a("s_endpgm")
    for k, (base, m) in reversed(list(enumerate(sets))):
        a(f"L_got{k}:")
        a(f"s_mov_b64 exec, -1")
        if k == 0: a("L_fin0:")
        tstamp(4)
        a(f"v_add_f32 v24, v{base}, v{base+8}"); a(f"v_add_f32 v25, v{base+2}, v{base+10}")
        a(f"v_add_f32 v26, v{base+4}, v{base+12}"); a(f"v_add_f32 v27, v{base+6}, v{base+14}")
        if k: a("s_branch L_fin1")
    a("L_fin1:")
    a("v_add_f32 v24, v24, v26"); a("v_add_f32 v25, v25, v27")
    a("s_nop 1")
    a("v_permlane32_swap_b32 v24, v25")
    a("v_add_f32 v24, v24, v25")
    a("v_mov_b32 v25, v24"); a("s_nop 1")
    a("v_permlane16_swap_b32 v24, v25")
    a("v_add_f32 v24, v24, v25")
    a("s_nop 1")
    a(f"v_add_f32_dpp v24, v24, v24 row_ror:8 {FULL}")
    rbf("v24")
    a("v_add_f32 v24, v18, v24", "x + attention")
    rbf("v24")
    a("v_add_f32 v24, v24, v19", "+ mixer")
    a("v_cvt_pk_bf16_f32 v24, v24, v24")
    if DRY: a("s_cbranch_execz L_dryret")
    a("s_mov_b32 exec_lo, 0xff")
    a("s_mov_b32 exec_hi, 0xff")
    a(f"global_store_short v20, v24, s[24:25]")
    a(f"s_and_b32 {sT[0]}, s2, 31")
    a(f"s_cbranch_scc1 L_fin")
    a(f"s_lshl_b32 {sT[0]}, s2, 3")
    a(f"s_add_u32 {sT[0]}, {sT[0]}, {hex(WS_EPOCH)}")
    a(f"v_mov_b32 v16, {sT[0]}")
    a(f"s_mov_b64 exec, 1")
    a(f"global_store_dword v16, v17, s[28:29]", "next launch's tag differs from this one")
    a("s_branch L_fin")

    a("L_cons:")
    a(f"s_lshr_b32 {sB}, s2, 5")
    a(f"s_and_b32 {sH}, s2, 31")
    a(f"s_mov_b32 {sHI}, 0xffff0000")
    a(f"s_mov_b32 s59, 0x20000")
    a(f"s_lshl_b32 {sT[0]}, {sB}, 10")
    a(f"v_lshlrev_b32 v8, 4, {vL}")
    if BOUND: a(f"s_mov_b32 {sSpin}, 0x100000")
    a(f"s_add_u32 s4, s4, {sT[0]}")
    a(f"s_addc_u32 s5, s5, 0")
    a(f"global_load_dwordx4 v[4:7], v8, s[4:5]", "x[b][8l..8l+7]")
    npre = 0
    IPF = o.get("ipf", 2)
    if IPF == 1:
        a(f"s_getpc_b64 s[46:47]")
        a("L_pc:")
        a(f"s_lshl_b32 {sT[0]}, {sW}, 10")
        a(f"v_add_u32 v9, {sT[0]}, v8")
        a(f"v_min_u32 v9, L_end-L_pc-12, v9")
        a(f"global_load_dwordx4 v[16:19], v9, s[46:47]")
    if IPF == 2:
        a.c("pull this kernel's code towards L2: one dword per 32 bytes, 2 KiB per wave")
        a(f"s_getpc_b64 s[46:47]")
        a("L_pc:")
        a(f"s_sub_u32 s46, s46, L_pc-L_ld")
        a(f"s_subb_u32 s47, s47, 0")
        a(f"s_lshl_b32 {sT[0]}, {sW}, 11")
        a(f"v_lshl_add_u32 v9, {vL}, 5, {sT[0]}")
        a(f"v_min_u32 v9, L_end-L_ld, v9")
        a(f"global_load_dword v16, v9, s[46:47]")
    a.c("wq rows 64w + 8*((j>>1)^w) + 2r + (j&1), columns 128h + 8c")
    a(f"s_lshl_b32 {sT[0]}, {sW}, 19")
    a(f"s_lshl_b32 {sT[1]}, {sH}, 8")
    a(f"s_add_u32 {sT[0]}, {sT[0]}, {sT[1]}")
    a(f"s_add_u32 s36, s10, {sT[0]}")
    a(f"s_addc_u32 s37, s11, 0")
    a(f"s_sub_u32 s38, 0x400000, {sT[0]}")
    a(f"v_lshlrev_b32 v9, 14, {vRow}")
    a(f"v_lshl_add_u32 v9, {vCol}, 4, v9")
    a(f"s_lshl_b32 {sT[2]}, {sW}, 16")
    def wslot(j): return f"v[{WREG+4*j}:{WREG+4*j+3}]"
    def wqload(j):
        a(f"s_xor_b32 {sT[3]}, {sT[2]}, {((j >> 1) * 8 + (j & 1)) * 8192}")
        a(f"buffer_load_dwordx4 {wslot(j)}, v9, {R}, {sT[3]} offen nt")
    if FB:
        a(f"s_mov_b32 {sT[4]}, {hex(WS_EPOCH)}")
        a(f"s_load_dword {sTg}, s[28:29], {sT[4]}")
    a.c("this workgroup's eighth of the head's wo slice -> L2 (the slice itself is read later)")
    a(f"s_lshl_b32 {sT[5]}, {sH}, 17")
    a(f"s_lshl_b32 {sT[6]}, {sW}, 14")
    a(f"s_add_u32 {sT[5]}, {sT[5]}, {sT[6]}")
    a(f"s_lshl_b32 {sT[6]}, {sB}, 7")
    a(f"s_add_u32 {sT[5]}, {sT[5]}, {sT[6]}")
    a(f"v_lshrrev_b32 v11, 3, {vL}")
    a(f"v_and_b32 v10, 7, {vL}")
    a(f"v_lshl_add_u32 v10, v10, 4, {sT[5]}")
    a(f"v_lshl_add_u32 v11, v11, 10, v10")
    a(f"global_load_dwordx4 v[160:163], v11, s[12:13]")
    a(f"v_add_u32 v11, 0x2000, v11")
    a(f"global_load_dwordx4 v[164:167], v11, s[12:13]")
    for j in range(WQS): wqload(j)
    a(f"s_waitcnt vmcnt({WQS + 2})")
    stamp(1)
    X = [f"v{16+i}" for i in range(8)]
    def unpack(src4):
        for i in range(4):
            a(f"v_lshlrev_b32 {X[2*i]}, 16, v{src4+i}")
            a(f"v_and_b32 {X[2*i+1]}, {sHI}, v{src4+i}")
    def ln(sM, sD, write):
        a.c("LayerNorm statistics with the reference's bf16 roundings")
        a(f"v_add_f32 v24, {X[0]}, {X[1]}")
        for i in range(2, 8): a(f"v_add_f32 v24, v24, {X[i]}")
        wave_reduce("v_add_f32", "v24", sT[0])
        a("s_nop 1")
        a(f"v_mov_b32 v25, {sT[0]}")
        a(f"v_mul_f32 v25, {hex(f2u(1.0/512))}, v25")
        a(f"v_sub_f32 v26, {X[0]}, v25")
        a(f"v_mul_f32 v24, v26, v26")
        for i in range(1, 8):
            a(f"v_sub_f32 v26, {X[i]}, v25"); a(f"v_fmac_f32 v24, v26, v26")
        wave_reduce("v_add_f32", "v24", sT[0])
        rbf("v25")
        a(f"v_mov_b32 v24, {sT[0]}")
        a(f"v_mul_f32 v24, {hex(f2u(1.0/512))}, v24")
        rbf("v24")
        a(f"v_add_f32 v24, {hex(f2u(1e-5))}, v24")
        rbf("v24")
        a(f"v_sqrt_f32 v24, v24")
        a("s_nop 0")
        rbf("v24")
        a(f"v_rcp_f32 v24, v24")
        a(f"v_readfirstlane_b32 {sM}, v25")
        a(f"v_readfirstlane_b32 {sD}, v24")
        if write:
            for i in range(8): a(f"v_sub_f32 {X[i]}, {X[i]}, v25")
            for i in range(4): a(f"v_cvt_pk_bf16_f32 v{4+i}, {X[2*i]}, {X[2*i+1]}")
            unpack(4)
            for i in range(8): a(f"v_mul_f32 {X[i]}, {X[i]}, v24")
            for i in range(4): a(f"v_cvt_pk_bf16_f32 v{4+i}, {X[2*i]}, {X[2*i+1]}")
    unpack(4)
    ln(sM1, sD1, True)
    a(f"v_add_u32 v8, {L_XN}, v8")
    a(f"ds_write_b128 v8, v[4:7]", "packed xn (every wave writes the same bytes)")
    a(f"s_mul_i32 {sT[0]}, {sW}, 144")
    a(f"s_add_u32 {sT[0]}, {sT[0]}, {L_XN}")
    a(f"v_lshl_add_u32 v8, {vRow}, 2, {sT[0]}")
    assert L_XN % 128 == 0
    for i in range(8):
        if i: a(f"v_xor_b32 v10, {16*i}, v8")
        a(f"ds_read_b32 v{QF+i}, {'v10' if i else 'v8'}")
    for i in range(8): a(f"v_mov_b32 {ACC[i]}, 0")
    nissued = WQS + WQ2
    for j in range(WQS, nissued): wqload(j)
    def preread(n):
        a.c(f"take K granule {n} of this wave out of the ring early: frees a round for the loader")
        if n: a(f"v_add_u32 v12, 0x8000, v12")
        for t in range(1, 4): a(f"v_xor_b32 v{19+t}, {64*t}, v12")
        a(f"s_add_u32 {sT[4]}, {sW}, {8*n}")
        spin(F_LAND, "s_cmp_gt_i32", sT[4], "v14", sT[0])
        a(f"ds_read_b128 v[{ST[n]}:{ST[n]+3}], v12")
        for t in range(1, 4): a(f"ds_read_b128 v[{ST[n]+4*t}:{ST[n]+4*t+3}], v{19+t}")
        a(f"v_mov_b32 v14, {n+1}")
        a("s_waitcnt lgkmcnt(0)")
        a(f"ds_write_b32 v13, v14 offset:{F_DONE}")
    a(f"v_xor_b32 v12, {vRow}, {vCol}")
    a(f"v_lshlrev_b32 v12, 4, v12")
    a(f"v_lshl_add_u32 v12, {vCol}, 8, v12")
    a(f"s_lshl_b32 {sT[0]}, {sW}, 12")
    a(f"v_add_u32 v12, {sT[0]}, v12")
    a(f"s_lshl_b32 {sT[0]}, {sW}, 2")
    a(f"v_add_u32 v13, {sT[0]}, {vF}")
    preread(0)
    a.c("q projection: acc[col] += xn[row] * wq[row][col]")
    for j in range(16):
        for n in range(1, PRE):
            if PJ[n-1] == j: preread(n)
        src = f"v{QF + j//2}"
        if j % 2 == 0: a(f"v_and_b32 v10, 0xffff, {src}"); a(f"v_lshlrev_b32 v11, 16, {src}")
        else: a(f"v_lshrrev_b32 v10, 16, {src}"); a(f"v_and_b32 v11, {sHI}, {src}")
        a(f"s_waitcnt vmcnt({nissued - j - 1})")
        while nissued < 16 and nissued - j - 1 < WQ2:
            wqload(nissued); nissued += 1
        for i in range(4):
            a(f"v_dot2c_f32_bf16 {ACC[2*i]}, v10, v{WREG+4*j+i}")
            a(f"v_dot2c_f32_bf16 {ACC[2*i+1]}, v11, v{WREG+4*j+i}")
    stamp(2)
    vPW, vPR = "v15", "v14"
    a(f"s_mul_i32 {sT[0]}, {sW}, 528")
    a(f"s_add_u32 {sT[0]}, {sT[0]}, {L_QP}")
    a(f"v_lshl_add_u32 {vPW}, {vCol}, 5, {sT[0]}")
    a(f"v_lshl_add_u32 {vPW}, {vRow}, 3, {vPW}")
    rows_reduce8(vPW)
    arrive(F_ARRQ)
    for i in range(4): a(f"v_mov_b32 v{160+i}, v{4+i}", "keep xn for the second LayerNorm" if i == 0 else None)
    a(f"v_lshlrev_b32 {vPR}, 3, {vL}")
    a(f"v_add_u32 {vPR}, {L_QP}, {vPR}")
    spin(F_ARRQ, "s_cmp_ge_u32", 8, "v10", sT[0])
    sum8(WREG, vPR)
    a(f"v_lshlrev_b32 v10, 2, {vL}")
    a(f"v_add_u32 v10, {L_XN}, v10")
    a(f"ds_write_b32 v10, v{WREG}", "packed q (xn is dead: every wave has arrived)")
    a(f"v_lshlrev_b32 v10, 4, {vRow}")
    a(f"v_add_u32 v10, {L_XN}, v10")
    for t in range(4): a(f"ds_read_b128 v[{QF+4*t}:{QF+4*t+3}], v10 offset:{64*t}", "MFMA A fragments of q" if t == 0 else None)
    vH, vMA, vC0, vXr = "v138", "v139", "v140", "v145"
    a(f"s_mov_b32 {sL2E}, {hex(f2u(l2e))}")
    a(f"s_mov_b32 {sK}, {hex(f2u(128 ** -0.5))}")
    vKA, vSA, vDA, vM, vLs, vDn = "v4", "v5", "v6", "v7", "v8", "v9"
    a(f"v_add_u32 {vKA}, 0xffff0000, v12")
    a(f"s_lshl_b32 {sT[0]}, {sW}, 6")
    a(f"s_add_u32 {sT[0]}, {sT[0]}, {L_SC}")
    a(f"v_lshl_add_u32 {vSA}, {vCol}, 2, {sT[0]}")
    a(f"v_mov_b32 {vDA}, v13")
    a(f"v_mov_b32 {vM}, 0xff7fffff")
    a(f"v_mov_b32 {vLs}, 0")
    a(f"v_mov_b32 {vDn}, 0")
    a(f"s_mov_b32 {sG}, {sW}")
    a(f"s_mov_b32 {sR}, 0")
    a.c("wo: rows 128h + 32r + 2j + e, columns 64w + 4c")
    a(f"s_lshl_b32 {sT[0]}, {sH}, 17")
    a(f"s_add_u32 s36, s12, {sT[0]}")
    a(f"s_addc_u32 s37, s13, 0")
    a(f"s_mov_b32 s38, 0x20000")
    vWO = "v164"
    a(f"s_lshl_b32 {sT[0]}, {sW}, 7")
    a(f"v_lshl_add_u32 {vWO}, {vCol}, 3, {sT[0]}")
    a(f"v_lshl_add_u32 {vWO}, {vRow}, 15, {vWO}")
    a(f"s_add_u32 {sOff}, {sW}, {WMR}")
    if FB: a(f"s_add_u32 {sTg}, {sTg}, 1")
    stamp(3)
    a("s_waitcnt lgkmcnt(0)")
    a("s_branch L_kmid")
    a("L_kst:")
    for n in range(1, PRE):
        for i in range(16): a(f"v_mov_b32 v{ST[n-1]+i}, v{ST[n]+i}")
    a("s_branch L_kmid")
    a("L_k:")
    a(f"s_cmp_lt_u32 {sR}, {PRE}")
    a(f"s_cbranch_scc1 L_kst")
    for t in range(1, 4): a(f"v_xor_b32 v{10+t}, {64*t}, {vKA}")
    spin(F_LAND, "s_cmp_gt_i32", sG, "v10", sT[0])
    a(f"ds_read_b128 v[{DT}:{DT+3}], {vKA}")
    for t in range(1, 4): a(f"ds_read_b128 v[{DT+4*t}:{DT+4*t+3}], v{10+t}")
    a("L_kmid:")
    a(f"v_add_u32 {vDn}, 1, {vDn}")
    a(f"v_add_u32 {vKA}, 0x8000, {vKA}")
    a(f"v_and_b32 {vKA}, 0x1ffff, {vKA}")
    for t in range(4):
        a(f"s_waitcnt lgkmcnt({3-t})")
        a(f"v_mfma_f32_16x16x32_bf16 v[16:19], v[{QF+4*t}:{QF+4*t+3}], v[{DT+4*t}:{DT+4*t+3}], {'0' if t == 0 else 'v[16:19]'}")
    a(f"v_max_u32 v10, {PRE}, {vDn}")
    a(f"ds_write_b32 {vDA}, v10 offset:{F_DONE}")
    a(f"s_add_u32 {sG}, {sG}, 8")
    a(f"s_nop 4")
    rbf("v16")
    a(f"v_mul_f32 v16, {sK}, v16")
    rbf("v16")
    a(f"ds_write_b32 {vSA}, v16", "score of key l&15 of this granule")
    a(f"v_max_f32 v17, {vM}, v16", "running max / sum per lane")
    a(f"v_sub_f32 v18, {vM}, v17")
    a(f"v_sub_f32 v16, v16, v17")
    a(f"v_mul_f32 v18, {sL2E}, v18")
    a(f"v_mul_f32 v16, {sL2E}, v16")
    a(f"v_exp_f32 v18, v18")
    a(f"v_exp_f32 v16, v16")
    a(f"v_mov_b32 {vM}, v17")
    a(f"v_add_u32 {vSA}, 512, {vSA}")
    a(f"v_fma_f32 {vLs}, {vLs}, v18, v16")
    if FG0 < 256: ctl("k")
    a.c("wo slice trickles in, one row pair at a time")
    for j in range(16):
        rr = WOR + j * WOM // WOD
        a(f"s_cmp_lg_u32 {sR}, {rr}")
        a(f"s_cbranch_scc1 L_wo{j}")
        a(f"s_movk_i32 {sT[1]}, {2048*j}")
        a(f"buffer_load_dwordx2 v[{WREG+4*j}:{WREG+4*j+1}], {vWO}, {R}, {sT[1]} offen nt")
        a(f"buffer_load_dwordx2 v[{WREG+4*j+2}:{WREG+4*j+3}], {vWO}, {R}, {sT[1]} offen offset:1024 nt")
        a(f"L_wo{j}:")
    a(f"s_cmp_lg_u32 {sR}, {sOff}")
    a(f"s_cbranch_scc1 L_nomx")
    a.c("mixer operands: lane (r,c) handles d = 16h + c and hidden pairs (4w+r)*28 + {c, 14+c}")
    a(f"s_lshl_b32 {sT[0]}, {sH}, 5")
    a(f"v_lshl_add_u32 v11, {vCol}, 1, {sT[0]}")
    a(f"global_load_ushort {vH}, v11, s[4:5]")
    a(f"s_mul_i32 {sT[0]}, {sW}, 448")
    a(f"v_mul_u32_u24 v11, 112, {vRow}")
    a(f"v_lshl_add_u32 v11, {vCol}, 2, v11")
    a(f"v_add_u32 v11, {sT[0]}, v11")
    a(f"v_cmp_lt_u32 vcc, 13, {vCol}")
    a(f"v_mov_b32 v12, 0x10000")
    a(f"s_movk_i32 s58, 3584")
    a(f"v_cndmask_b32 v11, v11, v12, vcc", "lanes 14,15 read out of range -> 0")
    for k, p in enumerate([16, 18, 20]):
        a(f"s_mov_b32 s56, s{p}"); a(f"s_mov_b32 s57, s{p+1}")
        for s_ in range(2):
            a(f"buffer_load_dword v{MX + 5*s_ + (1,3,4)[k]}, v11, {W2}, 0 offen offset:{56*s_}")
    a(f"v_mov_b32 v12, 0")
    a(f"global_load_ushort v146, v12, s[22:23]", "b2")
    a(f"s_lshl_b32 {sT[0]}, {sB}, 8")
    a(f"s_add_u32 {sT[0]}, {sT[0]}, {hex(WS_EPOCH)}")
    a(f"s_load_dword {sE}, s[28:29], {sT[0]}", "whatever the batch's tag word holds on entry")
    a("L_nomx:")
    a(f"s_cmp_lg_u32 {sR}, 15")
    a(f"s_cbranch_scc1 L_noms")
    unpack(160)
    ln(sM2, sD2, False)
    a("s_waitcnt vmcnt(0)")
    a(f"v_lshlrev_b32 {vH}, 16, {vH}")
    a(f"v_mov_b32 {vXr}, {vH}")
    a(f"v_subrev_f32 {vH}, {sM1}, {vH}"); rbf(vH)
    a(f"v_mul_f32 {vH}, {sD1}, {vH}"); rbf(vH)
    a(f"v_subrev_f32 {vH}, {sM2}, {vH}"); rbf(vH)
    a(f"v_mul_f32 {vH}, {sD2}, {vH}"); rbf(vH)
    for s_ in range(2):
        b = MX + 5*s_
        a(f"v_lshlrev_b32 v{b}, 16, v{b+1}"); a(f"v_and_b32 v{b+1}, {sHI}, v{b+1}")
        a(f"v_lshlrev_b32 v{b+2}, 16, v{b+3}"); a(f"v_and_b32 v{b+3}, {sHI}, v{b+3}")
    kb = math.sqrt(2.0/math.pi)
    a(f"v_mov_b32 {vC0}, {hex(f2u(-2*kb*l2e))}")
    a(f"s_mov_b32 {sC1}, {hex(f2u(-2*kb*l2e*0.044715))}")
    a(f"v_mov_b32 {vMA}, 0")
    a("L_noms:")
    a(f"s_cmp_lt_u32 {sR}, 16")
    a(f"s_cbranch_scc1 L_nomix")
    a.c("mixer: gelu_tanh(u) = u / (1 + exp(-2 z)), two hidden pairs per round")
    BC = "row_newbcast:0 " + FULL
    for s_ in range(2):
        b = MX + 5*s_
        a(f"v_mul_f32_dpp v16, v{b}, {vH} {BC}"); a(f"v_mul_f32_dpp v17, v{b+1}, {vH} {BC}")
        a(f"v_cvt_pk_bf16_f32 v17, v16, v17")
        a(f"v_lshlrev_b32 v16, 16, v17"); a(f"v_and_b32 v17, {sHI}, v17")
        a(f"v_add_f32_dpp v16, v{b+2}, v16 {BC}"); a(f"v_add_f32_dpp v17, v{b+3}, v17 {BC}")
        a(f"v_cvt_pk_bf16_f32 v17, v16, v17")
        a(f"v_lshlrev_b32 v16, 16, v17"); a(f"v_and_b32 v17, {sHI}, v17")
        a(f"v_mul_f32 v18, v16, v16"); a(f"v_mul_f32 v19, v17, v17")
        a(f"v_fma_f32 v18, v18, {sC1}, {vC0}"); a(f"v_fma_f32 v19, v19, {sC1}, {vC0}")
        a(f"v_mul_f32 v18, v18, v16"); a(f"v_mul_f32 v19, v19, v17")
        a(f"v_exp_f32 v18, v18"); a(f"v_exp_f32 v19, v19")
        a(f"v_mov_b32_dpp v{b}, v{b} row_ror:15 {FULL}")
        a(f"v_add_f32 v18, 1.0, v18"); a(f"v_add_f32 v19, 1.0, v19")
        a(f"v_rcp_f32 v18, v18"); a(f"v_rcp_f32 v19, v19")
        a(f"v_mov_b32_dpp v{b+1}, v{b+1} row_ror:15 {FULL}")
        a(f"v_mul_f32 v18, v18, v16"); a(f"v_mul_f32 v19, v19, v17")
        a(f"v_cvt_pk_bf16_f32 v18, v18, v19")
        a(f"v_mov_b32_dpp v{b+2}, v{b+2} row_ror:15 {FULL}")
        a(f"v_mov_b32_dpp v{b+3}, v{b+3} row_ror:15 {FULL}")
        a(f"v_dot2c_f32_bf16_dpp {vMA}, v{b+4}, v18 {BC}")
        a(f"v_mov_b32_dpp v{b+4}, v{b+4} row_ror:15 {FULL}")
    a("L_nomix:")
    a(f"s_add_u32 {sR}, {sR}, 1")
    a(f"s_cmp_lt_u32 {sR}, 32")
    a(f"s_cbranch_scc1 L_k")
    a.c("---- softmax statistics: per-wave (max, sum), then over the 8 waves ----")
    a(f"v_mov_b32 v16, {vM}")
    allreduce("v_max_f32", "v16", 4)
    a(f"v_sub_f32 v17, {vM}, v16")
    a(f"v_mul_f32 v17, {sL2E}, v17")
    a(f"v_exp_f32 v17, v17")
    a(f"s_lshl_b32 {sT[0]}, {sW}, 3")
    a(f"v_add_u32 v18, {sT[0]}, {vF}")
    a(f"v_mul_f32 v17, v17, {vLs}")
    allreduce("v_add_f32", "v17", 4)
    a(f"ds_write_b64 v18, v[16:17] offset:{F_ML}")
    rows_sum(vMA, "v19")
    a(f"s_lshl_b32 {sT[0]}, {sW}, 6")
    a(f"s_add_u32 {sT[0]}, {sT[0]}, {L_BP}")
    a(f"v_lshl_add_u32 v19, {vCol}, 2, {sT[0]}")
    a(f"ds_write_b32 v19, {vMA}")
    arrive(F_ARRS)
    a.c("interleave the wo row pairs: (row 2j, row 2j+1) per column")
    a(f"s_mov_b32 {sT[0]}, 0x05040100")
    a(f"s_mov_b32 {sT[1]}, 0x07060302")
    a("s_waitcnt vmcnt(0)")
    for j in range(16):
        for i in range(2):
            r0 = WREG + 4*j + i; r1 = r0 + 2
            a(f"v_perm_b32 v16, v{r1}, v{r0}, {sT[0]}")
            a(f"v_perm_b32 v{r1}, v{r1}, v{r0}, {sT[1]}")
            a(f"v_mov_b32 v{r0}, v16")
    if DRY:
        a.c("walk the end-of-kernel code once with no lane active, so that it is in the instruction cache")
        a(f"s_mov_b64 exec, 0")
        a(f"s_branch L_tailb")
        a("L_dryret:")
        a(f"s_mov_b64 exec, -1")
    a.c("hand-off addresses: lane (r,c) ends with column 64w + 4c + r")
    vYA = "v13"
    a(f"s_lshl_b32 {sT[0]}, {sB}, 17")
    a(f"s_add_u32 s56, s28, {sT[0]}")
    a(f"s_addc_u32 s57, s29, 0")
    a(f"s_mov_b32 s58, 0x20000")
    a(f"s_lshl_b32 {sT[0]}, {sW}, 14")
    a(f"s_lshl_b32 {sT[1]}, {sH}, 7")
    a(f"s_add_u32 {sT[0]}, {sT[0]}, {sT[1]}")
    a(f"v_lshrrev_b32 v12, 2, {vCol}")
    a(f"v_lshl_add_u32 {vYA}, v12, 12, {sT[0]}")
    a(f"v_and_b32 v12, 3, {vCol}")
    a(f"v_lshl_add_u32 {vYA}, v12, 5, {vYA}")
    a(f"v_lshl_add_u32 {vYA}, {vRow}, 3, {vYA}")
    if o.get("stm", 2) == 4:
        a(f"v_and_b32 v12, 1, {vRow}")
        a(f"v_lshl_add_u32 {vYA}, v12, 17, {vYA}")
    a(f"s_add_u32 {sE}, {sE}, 1", "this launch's tag")
    spin(F_ARRS, "s_cmp_ge_u32", 8, "v10", sT[0])
    a(f"v_and_b32 v18, 7, {vL}")
    a(f"v_lshl_add_u32 v18, v18, 3, {vF}")
    a(f"ds_read_b64 v[16:17], v18 offset:{F_ML}")
    a(f"v_lshlrev_b32 v19, 2, {vL}")
    a(f"v_add_u32 v18, {L_BP}, v19")
    a(f"ds_read_b32 v20, v18")
    a(f"ds_read_b32 v21, v18 offset:256")
    a("s_waitcnt lgkmcnt(0)")
    a(f"v_mov_b32 {vM}, v16")
    allreduce("v_max_f32", vM, 3)
    a(f"v_sub_f32 v16, v16, {vM}")
    a(f"v_mul_f32 v16, {sL2E}, v16")
    a(f"v_exp_f32 v16, v16")
    a(f"v_add_f32 v20, v20, v21")
    a(f"v_mul_f32 {vLs}, v16, v17")
    allreduce("v_add_f32", vLs, 3)
    a(f"v_rcp_f32 {vLs}, {vLs}")
    rows_sum("v20", "v21")
    rbf("v20")
    a(f"v_lshlrev_b32 v146, 16, v146")
    a(f"v_add_f32 v20, v146, v20")
    rbf("v20")
    a(f"v_lshl_add_u32 v18, {vCol}, 2, {vF}")
    a(f"v_mov_b32 v19, {sE}")
    a(f"ds_write_b32 v18, {vXr} offset:{L_FIN - L_FL}", "operands of the final stage (all waves write the same values)")
    a(f"ds_write_b32 v18, v20 offset:{L_FIN - L_FL + 64}")
    a(f"ds_write_b32 {vF}, v19 offset:{F_TAG}")
    a(f"s_lshl_b32 {sT[0]}, {sW}, 12")
    a(f"v_lshl_add_u32 {vKA}, {vL}, 4, {sT[0]}")
    a(f"v_and_b32 {vSA}, 3, {vL}")
    a(f"v_lshl_add_u32 {vSA}, {vSA}, 2, {vRow}")
    a(f"s_lshl_b32 {sT[0]}, {sW}, 6")
    a(f"s_add_u32 {sT[0]}, {sT[0]}, {L_SC}")
    a(f"v_lshl_add_u32 {vSA}, {vSA}, 2, {sT[0]}")
    for i in range(8): a(f"v_mov_b32 {ACC[i]}, 0")
    Y = ["v48", "v50", "v51", "v52"]
    for y in Y: a(f"v_mov_b32 {y}, 0")
    a(f"v_mov_b32 v49, {sE}")
    stamp(4)
    a("s_branch L_v")
    a("L_vc:")
    ctl("v")
    a("L_v:")
    a(f"ds_read_b32 v16, {vSA}")
    a(f"v_add_u32 {vSA}, 512, {vSA}")
    a(f"v_add_u32 {vDn}, 1, {vDn}")
    a("s_waitcnt lgkmcnt(0)")
    a(f"v_sub_f32 v16, v16, {vM}", "p = bf16(exp(s - max) / sum)")
    a(f"v_mul_f32 v16, {sL2E}, v16")
    a(f"v_exp_f32 v16, v16")
    a(f"s_nop 0")
    a(f"v_mul_f32 v16, v16, {vLs}")
    a(f"v_cvt_pk_bf16_f32 v16, v16, v16")
    a(f"v_lshrrev_b32 v17, 16, v16")
    a(f"v_and_b32 v16, {sHI}, v16")
    spin(F_LAND, "s_cmp_gt_i32", sG, "v10", sT[0])
    for t in range(4): a(f"ds_read_b128 v[{DT+4*t}:{DT+4*t+3}], {vKA} offset:{1024*t}")
    a(f"v_add_u32 {vKA}, 0x8000, {vKA}")
    a(f"v_and_b32 {vKA}, 0x1ffff, {vKA}")
    a(f"s_add_u32 {sG}, {sG}, 8")
    a(f"s_cmpk_lt_u32 {sG}, 512")
    for j in range(4):
        a(f"s_waitcnt lgkmcnt({3-j})")
        if j == 3: a(f"ds_write_b32 {vDA}, {vDn} offset:{F_DONE}")
        for i in range(4):
            a(f"v_dot2c_f32_bf16_dpp {ACC[2*i]}, v17, v{DT+4*j+i} quad_perm:[{j},{j},{j},{j}] {FULL}")
            a(f"v_dot2c_f32_bf16_dpp {ACC[2*i+1]}, v16, v{DT+4*j+i} quad_perm:[{j},{j},{j},{j}] {FULL}")
    a(f"s_cbranch_scc1 L_vc")
    stamp(5)
    a.c("---- o over rows and waves, output projection, hand-off ----")
    a("s_nop 1")
    rows_reduce8(vPW)
    a("s_waitcnt lgkmcnt(0)")
    a("s_barrier")
    a("L_tailb:")
    tstamp(1)
    sum8(DT, vPR)
    a("s_nop 1")
    tstamp(2)
    for j in range(16):
        for c in range(4):
            a(f"v_dot2c_f32_bf16_dpp {Y[c]}, v{DT}, v{WREG+4*j+(0,2,1,3)[c]} row_newbcast:{j} {FULL}")
    a("s_nop 1")
    a(f"v_permlane32_swap_b32 {Y[0]}, {Y[2]}")
    a(f"v_permlane32_swap_b32 {Y[1]}, {Y[3]}")
    a(f"v_add_f32 {Y[0]}, {Y[0]}, {Y[2]}")
    a(f"v_add_f32 {Y[1]}, {Y[1]}, {Y[3]}")
    STM = o.get("stm", 2); STP = o.get("stp", "sc1")
    if STM == 4:
        a(f"v_mov_b32 {Y[2]}, {Y[0]}"); a(f"v_mov_b32 {Y[3]}, {Y[1]}")
        a("s_nop 0")
        a(f"v_permlane16_swap_b32 {Y[0]}, {Y[2]}")
        a(f"v_permlane16_swap_b32 {Y[1]}, {Y[3]}")
        a(f"v_add_f32 {Y[0]}, {Y[0]}, {Y[2]}")
        a(f"v_add_f32 {Y[1]}, {Y[1]}, {Y[3]}")
        a(f"v_mov_b32 v51, v49")
    else:
        a("s_nop 1")
        a(f"v_permlane16_swap_b32 {Y[0]}, {Y[1]}")
        a(f"v_add_f32 {Y[0]}, {Y[0]}, {Y[1]}")
    if DRY: a(f"s_cbranch_execz {'L_drain' if DRY == 2 else 'L_fin0'}")
    if STM == 4: a(f"buffer_store_dwordx4 v[48:51], {vYA}, {W2}, 0 offen {STP}")
    elif STM == 2: a(f"buffer_store_dwordx2 v[48:49], {vYA}, {W2}, 0 offen {STP}", "{partial, tag} to the workgroup that owns the column")
    elif STM == 3: a(f"buffer_atomic_swap_x2 v[48:49], {vYA}, {W2}, 0 offen {STP}")
    if o.get("wb", 0): a("buffer_wbl2 sc1")
    tstamp(3)
    stamp(6); stamp(7)
    a("L_fin:")
    if STAMP: a(f"s_mov_b64 exec, -1")
    stamp(8)
    if STAMP in (4, 5):
        a("s_memrealtime s[72:73]")
        a("s_waitcnt lgkmcnt(0)")
        a(f"s_cmp_lg_u32 {sW}, {o.get('lw', -1)}"); a("s_cbranch_scc1 L_end")
        if "swg" in o: a(f"s_cmp_lg_u32 s2, {o['swg']}"); a("s_cbranch_scc1 L_end")
        a(f"s_sub_u32 s74, s{60+2*o['t1']}, s{60+2*o['t0']}")
        a(f"s_sub_u32 s74, s74, {o.get('sub', 0)}")
        if o.get("neg", 0): a("s_sub_u32 s74, 0, s74")
        a(f"s_mul_i32 s74, s74, {o.get('amp', 10)}")
        a(f"s_add_u32 s74, s74, 10000"); a(f"s_min_u32 s74, s74, 100000")
        a("L_pin3:")
        a("s_memrealtime s[76:77]"); a("s_waitcnt lgkmcnt(0)"); a("s_sub_u32 s76, s76, s60")
        a(f"s_cmp_lt_u32 s76, s74"); a("s_cbranch_scc1 L_pin3")
    if STAMP == 1:
        a("s_waitcnt vmcnt(0) lgkmcnt(0)")
        a(f"s_mul_i32 {sT[0]}, s2, 9"); a(f"s_add_u32 {sT[0]}, {sT[0]}, {sW}"); a(f"s_add_u32 {sT[0]}, {sT[0]}, 1")
        a(f"s_lshl_b32 {sT[0]}, {sT[0]}, 7"); a(f"s_add_u32 {sT[0]}, {sT[0]}, 0x100000")
        a(f"v_mov_b32 v16, 0")
        for i in range(18): a(f"v_writelane_b32 v16, s{60+i}, {i}")
        a(f"s_getreg_b32 {sT[1]}, hwreg(HW_REG_XCC_ID)"); a(f"s_getreg_b32 {sT[2]}, hwreg(HW_REG_HW_ID)")
        a(f"v_writelane_b32 v16, {sT[1]}, 18"); a(f"v_writelane_b32 v16, {sT[2]}, 19")
        a(f"v_writelane_b32 v16, {sSpin}, 20"); a(f"v_writelane_b32 v16, s79, 21"); a(f"v_writelane_b32 v16, s88, 22")
        a(f"v_lshl_add_u32 v17, {vL}, 2, {sT[0]}")
        a(f"s_mov_b64 exec, 0xffffffff")
        a(f"global_store_dword v17, v16, s[28:29]")
    a("L_end:")
    a("s_endpgm")

    head = open("cdna_kernels/%s.s.ref" % NAME).read().split("; Override launch")[0]
    out = head + f"; @launch grid=(256,1,1) block=(576,1,1) lds={LDS_BYTES}\n"
    out += '.amdgcn_target "amdgcn-amd-amdhsa--gfx950"\n.text\n'
    out += f".globl {NAME}_kernel\n.p2align 8\n.type {NAME}_kernel,@function\n" + a.text()
    out += f""".section .rodata,"a"
.p2align 6
.amdhsa_kernel {NAME}_kernel
  .amdhsa_next_free_vgpr 168
  .amdhsa_next_free_sgpr 96
  .amdhsa_accum_offset 168
  .amdhsa_group_segment_fixed_size 0
  .amdhsa_kernarg_size 104
  .amdhsa_user_sgpr_count 2
  .amdhsa_user_sgpr_kernarg_segment_ptr 1
  .amdhsa_system_sgpr_workgroup_id_x 1
  .amdhsa_float_denorm_mode_32 3
.end_amdhsa_kernel
"""
    return out
if __name__ == "__main__":
    opts = {}
    for kv in sys.argv[2:]:
        k, v = kv.split("=")
        try: opts[k] = int(v, 0)
        except ValueError: opts[k] = v.replace("+", " ")
    open(sys.argv[1], "w").write(gen(opts))
```

```python
import sys, struct, math
NAME = "parallel_sum__mha_block_cached__mixer_token_mlp__decode"
def f2u(x): return struct.unpack("<I", struct.pack("<f", x))[0]
class Asm:
    def __init__(self): self.lines = []
    def __call__(self, s, c=None):
        s = s.strip()
        l = s if s.endswith(":") else "    " + s
        if c: l = l.ljust(72) + "; " + c
        self.lines.append(l)
    def c(self, s): self.lines.append("    ; " + s)
    def text(self): return "\n".join(self.lines) + "\n"

def gen(o):
    D = o.get("d", 26); DS = o.get("ds", 24); RS = o.get("rs", 4)
    STAMP = o.get("stamp", 0); TS = o.get("ts", 0)
    BOUND = o.get("bound", 0)
    FB = o.get("fb", 1)
    FP = o.get("fp", 8); FS = o.get("fs", 3); FG0 = o.get("fg0", 212); FR = o.get("frep", 8)
    FSA = o.get("fsa", (7 * FS) // 2 + 1); FEND = o.get("fend", 480)
    B0 = o.get("b0", 150); BG = o.get("bg", 30)
    WQS = o.get("wqs", 4); WQ2 = o.get("wq2", 3); PRE = 3
    PJ = [int(x) for x in str(o.get("pj", "6,11")).split(",")]
    WOR = o.get("wor", 6); WOM = o.get("wom", 3); WOD = o.get("wod", 2); WMR = 6
    DRY = o.get("dry", 2); PP = o.get("pp", 1)
    a = Asm()
    FULL = "row_mask:0xf bank_mask:0xf"
    l2e = 1.0 / math.log(2.0)
    WS_EPOCH = 0x180000; WS_MARK = 0x200000
    sE, sL2E, sC1 = "s3", "s14", "s15"
    sB, sH, sW, sOff, sR, sG = "s30", "s31", "s32", "s33", "s34", "s35"
    R = "s[36:39]"; W2 = "s[56:59]"
    sM1, sD1, sM2, sD2 = "s40", "s41", "s42", "s43"
    sT = [f"s{44+i}" for i in range(8)]
    sHI, sB2, sSpin, sK, sTg = "s52", "s53", "s54", "s55", "s78"
    sCnt, sAcc, sInc, sSrc, sX = "s40", "s46", "s47", "s50", "s51"
    L_SC = 131072; L_QP = L_SC + 16384; L_XN = L_QP + 4352; L_BP = L_XN + 1024; L_FL = L_BP + 512
    F_LAND, F_ARRQ, F_ARRS, F_TAG, F_DONE, F_RATE, F_ML = 0, 4, 8, 12, 32, 64, 192
    L_FIN = L_FL + 256
    LDS_BYTES = L_FIN + 128
    vL, vRow, vCol, vF = "v0", "v1", "v2", "v3"
    WREG, QF, DT, MX = 64, 48, 32, 128
    ACC = [f"v{24+i}" for i in range(8)]
    ST = [DT, 128, 144]
    nlab = [0]
    def lab(p): nlab[0] += 1; return f"L_{p}{nlab[0]}"
    def stamp(i, force=False):
        if STAMP == 1 or (STAMP >= 4 and i in (0, 5)) or force: a(f"s_memrealtime s[{60+2*i}:{61+2*i}]")
    def tstamp(i):
        if TS: a(f"s_memrealtime s[{60+2*i}:{61+2*i}]")
    def wave_reduce(op, v, sdst):
        for ctl in ["quad_perm:[1,0,3,2] "+FULL, "quad_perm:[2,3,0,1] "+FULL, "row_half_mirror "+FULL, "row_mirror "+FULL,
                    "row_bcast:15 row_mask:0xa bank_mask:0xf", "row_bcast:31 row_mask:0xc bank_mask:0xf"]:
            a("s_nop 1"); a(f"{op}_dpp {v}, {v}, {v} {ctl}")
        a("s_nop 1"); a(f"v_readlane_b32 {sdst}, {v}, 63")
    def allreduce(op, v, steps):
        for ctl in ["quad_perm:[1,0,3,2]", "quad_perm:[2,3,0,1]", "row_half_mirror", "row_mirror"][:steps]:
            a("s_nop 1"); a(f"{op}_dpp {v}, {v}, {v} {ctl} {FULL}")
    def rbf(v):
        a(f"v_cvt_pk_bf16_f32 {v}, {v}, {v}"); a(f"v_and_b32 {v}, {sHI}, {v}")
    def spin(off, cmp, val, tmpv, tmps):
        l0, l1 = lab("sp"), lab("go")
        a(f"{l0}:")
        a(f"ds_read_b32 {tmpv}, {vF} offset:{off}")
        a("s_waitcnt lgkmcnt(0)")
        a(f"v_readfirstlane_b32 {tmps}, {tmpv}")
        a(f"{cmp} {tmps}, {val}")
        if BOUND:
            a(f"s_cbranch_scc1 {l1}")
            a(f"s_sub_u32 {sSpin}, {sSpin}, 1"); a(f"s_cbranch_scc1 L_end"); a(f"s_branch {l0}")
            a(f"{l1}:")
        else: a(f"s_cbranch_scc0 {l0}")
    def rows_sum(v, t):
        a(f"v_mov_b32 {t}, {v}"); a("s_nop 1"); a(f"v_permlane32_swap_b32 {v}, {t}"); a(f"v_add_f32 {v}, {v}, {t}")
        a(f"v_mov_b32 {t}, {v}"); a("s_nop 1"); a(f"v_permlane16_swap_b32 {v}, {t}"); a(f"v_add_f32 {v}, {v}, {t}")
    def rows_reduce8(vaddr):
        for i in range(4): a(f"v_permlane32_swap_b32 {ACC[i]}, {ACC[i+4]}")
        for i in range(4): a(f"v_add_f32 {ACC[i]}, {ACC[i]}, {ACC[i+4]}")
        a("s_nop 0")
        for i in range(2): a(f"v_permlane16_swap_b32 {ACC[i]}, {ACC[i+2]}")
        for i in range(2): a(f"v_add_f32 {ACC[i]}, {ACC[i]}, {ACC[i+2]}")
        a(f"ds_write_b64 {vaddr}, v[24:25]")
    def arrive(off):
        a(f"v_mov_b32 v10, 1")
        a("s_waitcnt lgkmcnt(0)")
        a(f"s_mov_b64 exec, 1"); a(f"ds_add_u32 {vF}, v10 offset:{off}"); a(f"s_mov_b64 exec, -1")
    def sum8(base, vaddr):
        for w in range(8): a(f"ds_read_b64 v[{base+2*w}:{base+2*w+1}], {vaddr} offset:{528*w}")
        a(f"s_waitcnt lgkmcnt({0 if TS else 4})")
        for i in range(4): a(f"v_add_f32 v{base+i}, v{base+i}, v{base+4+i}")
        for i in range(2): a(f"v_add_f32 v{base+i}, v{base+i}, v{base+2+i}")
        a("s_waitcnt lgkmcnt(0)")
        for i in range(4): a(f"v_add_f32 v{base+8+i}, v{base+8+i}, v{base+12+i}")
        for i in range(2): a(f"v_add_f32 v{base+8+i}, v{base+8+i}, v{base+10+i}")
        for i in range(2): a(f"v_add_f32 v{base+i}, v{base+i}, v{base+8+i}")
        a(f"v_cvt_pk_bf16_f32 v{base}, v{base}, v{base+1}")
    def ctl(tag):
        if not FB: return
        a.c("flow control: compare own progress with eight reference workgroups, set the loader's idle-slot rate")
        a(f"s_sub_u32 {sT[1]}, {sG}, {FG0 + 8}")
        a(f"s_cmp_ge_u32 {sT[1]}, {FEND - FG0 - 8}")
        a(f"s_cbranch_scc1 L_nc{tag}")
        a(f"s_and_b32 {sT[2]}, {sT[1]}, {8*FP - 1}", "phase inside the control period")
        a(f"s_lshr_b32 {sT[1]}, {sT[1]}, {(8*FP).bit_length() - 1}", "checkpoint number")
        a(f"s_mul_i32 {sT[3]}, {sT[1]}, {FR * 4352}")
        a(f"s_add_u32 {sT[3]}, {sT[3]}, {hex(WS_MARK)}")
        a(f"s_cmp_ge_u32 s2, 8")
        a(f"s_cbranch_scc1 L_cs{tag}")
        a(f"s_add_u32 {sT[4]}, s2, {sT[1]}")
        a(f"s_and_b32 {sT[4]}, {sT[4]}, 7")
        a(f"s_mul_i32 {sT[4]}, {sT[4]}, {FS}")
        a(f"s_cmp_eq_u32 {sT[2]}, {sT[4]}")
        a(f"s_cbranch_scc0 L_cs{tag}")
        a(f"v_mul_u32_u24 v10, 4352, {vL}")
        a(f"s_lshl_b32 {sT[4]}, s2, 2")
        a(f"s_add_u32 {sT[4]}, {sT[4]}, {sT[3]}")
        a(f"v_add_u32 v10, {sT[4]}, v10")
        a(f"v_mov_b32 v11, {sTg}")
        a(f"s_mov_b64 exec, {hex((1 << FR) - 1)}")
        a(f"global_store_dword v10, v11, s[28:29] sc1", "reference workgroup: leave this launch's mark")
        a(f"s_mov_b64 exec, -1")
        a(f"L_cs{tag}:")
        a(f"s_cmp_eq_u32 {sT[2]}, {FSA}")
        a(f"s_cbranch_scc0 L_nc{tag}")
        a(f"s_bfe_u32 {sT[2]}, s2, {hex(3 | ((FR.bit_length() - 1) << 16))}")
        a(f"s_mul_i32 {sT[2]}, {sT[2]}, 4352")
        a(f"s_add_u32 {sT[3]}, {sT[3]}, {sT[2]}")
        a(f"s_load_dwordx8 s[80:87], s[28:29], {sT[3]} glc")
        a(f"s_mov_b32 {sT[2]}, 4")
        a(f"s_waitcnt lgkmcnt(0)")
        for i in range(8):
            a(f"s_cmp_eq_u32 s{80+i}, {sTg}")
            a(f"s_subb_u32 {sT[2]}, {sT[2]}, 0")
        a(f"s_mul_i32 {sT[2]}, {sT[2]}, {BG}")
        a(f"s_add_u32 {sT[2]}, {sT[2]}, {B0}")
        a(f"s_max_i32 {sT[2]}, {sT[2]}, 0")
        a(f"s_min_i32 {sT[2]}, {sT[2]}, 255")
        a(f"v_mov_b32 v11, {sT[2]}")
        a(f"ds_write_b32 {vF}, v11 offset:{F_RATE}")
        a(f"L_nc{tag}:")

    a(f"{NAME}_kernel:")
    a("s_cmpk_ge_u32 s2, 256")
    a("s_cbranch_scc1 L_end")
    a("s_load_dwordx16 s[4:19], s[0:1], 0")
    a("s_load_dwordx8 s[20:27], s[0:1], 64")
    a("s_load_dwordx2 s[28:29], s[0:1], 96")
    stamp(0)
    a(f"v_lshrrev_b32 v4, 6, v0")
    a(f"v_and_b32 {vL}, 63, v0")
    a(f"v_readfirstlane_b32 {sW}, v4")
    a(f"v_mov_b32 {vF}, {L_FL}")
    a(f"v_lshl_add_u32 v9, {vL}, 2, {vF}")
    a(f"v_mov_b32 v10, 0")
    a(f"ds_write_b32 v9, v10", "every wave clears the flag block before the barrier")
    a(f"v_lshrrev_b32 {vRow}, 4, {vL}")
    a(f"v_and_b32 {vCol}, 15, {vL}")
    a(f"s_mov_b32 s39, 0x20000")
    a(f"s_mov_b32 s38, 0x100000")
    a(f"s_lshl_b32 {sT[0]}, s2, 20")
    a(f"v_xor_b32 v4, {vCol}, {vRow}", "K rows are stored with their 16-byte chunks xor-swizzled by key&15")
    a(f"v_lshlrev_b32 v4, 4, v4")
    a(f"v_lshl_add_u32 v4, {vRow}, 8, v4")
    a(f"v_xor_b32 v5, 64, v4")
    a(f"v_xor_b32 v6, 0x80, v4")
    a(f"v_xor_b32 v7, 64, v6")
    js = (D - 1) % 4; jss = (DS - 1) % 4
    a(f"v_mov_b32 v8, {(jss - DS - 3)//4}", "landed-granule counter")
    a(f"s_mov_b32 {sOff}, 0")
    a(f"s_lshl_b32 {sX}, s2, 10")
    a(f"s_and_b32 {sX}, {sX}, 0x6000")
    a(f"s_mov_b32 {sSrc}, {sX}")
    a(f"s_mov_b32 m0, 0")
    a(f"s_sub_u32 {sW}, {sW}, 1", "consumer index; borrow marks the loader")
    a("s_waitcnt lgkmcnt(0)")
    a("s_barrier")
    a("s_cbranch_scc0 L_cons")

    a("s_setprio 3")
    a(f"s_add_u32 s36, s6, {sT[0]}")
    a(f"s_addc_u32 s37, s7, 0")
    def pair_body(Dw, jw, fb, tag):
        for half in range(2):
            for j in range(4):
                if fb and j % 2 == 0:
                    a(f"s_add_u32 {sAcc}, {sAcc}, {sInc}")
                    a(f"s_cbranch_scc0 L_nd{tag}{half}{j}")
                    a(f"buffer_load_dword v12, v4, {R}, s38 offen", "out of range: takes one slot of the window, moves no data")
                    a(f"L_nd{tag}{half}{j}:")
                a(f"s_waitcnt vmcnt({Dw-1})")
                a(f"buffer_load_dwordx4 v{4+j}, {R}, {sSrc} offen offset:{1024*j} nt lds")
                if j == jw:
                    a("v_add_u32 v8, 1, v8"); a(f"ds_write_b32 {vF}, v8")
                if half == 0 and j == 0: a(f"s_bitset1_b32 {sOff}, 15")
                if half == 0 and j == 1: a(f"s_addk_i32 {sOff}, 4096")
                if half == 0 and j == 2: a(f"s_bitset0_b32 {sOff}, 15")
            a(f"s_addk_i32 m0, 4096")
            if half == 0: a(f"s_bitset1_b32 {sSrc}, 15")
            else: a(f"s_xor_b32 {sSrc}, {sOff}, {sX}")
    a("L_ls:")
    pair_body(DS, jss, 0, "s")
    a(f"s_cmp_lg_u32 m0, {RS*32768}")
    a(f"s_cbranch_scc1 L_ls")
    a(f"v_mov_b32 v8, {(32*RS + js - D - 3)//4}")
    a(f"s_mov_b32 {sR}, {RS-1}")
    a(f"s_add_u32 s8, s8, {sT[0]}")
    a(f"s_addc_u32 s9, s9, 0")
    a(f"s_mov_b32 {sSpin}, 0x100000")
    a(f"v_min_u32 v9, 8, {vL}")
    a(f"v_lshl_add_u32 v9, v9, 2, {vF}", "lanes 0-7: done[], other lanes: idle-slot rate")
    a(f"v_mov_b32 v11, {RS - 4}")
    a(f"v_cmp_lt_u32 vcc, 7, {vL}")
    a(f"v_mov_b32 v14, {B0 if FB else 0}")
    a(f"v_mov_b32 v15, -1000")
    a(f"ds_write_b32 {vF}, v14 offset:{F_RATE}")
    a(f"v_cndmask_b32 v11, v11, v15, vcc")
    a(f"v_cndmask_b32 v10, v10, v14, vcc")
    a(f"s_mov_b32 {sAcc}, 0")
    if STAMP == 1: a("s_mov_b32 s79, 0")
    a(f"s_branch L_ld1")
    a("L_ld:")
    pair_body(D, js, FB, "m")
    a(f"s_sub_u32 {sCnt}, {sCnt}, 1")
    a(f"s_cbranch_scc0 L_ld")
    a("L_ld1:")
    a(f"s_bitset0_b32 m0, 17")
    a(f"s_add_u32 {sR}, {sR}, 1")
    a(f"v_add_u32 v11, 1, v11")
    marks = []
    if STAMP == 1: marks = list(zip((1,2,3,6,7), str(o.get("marks", "4,5,6,8,16")).split(",")))
    if STAMP == 4: marks = [(1, o.get("m0", 99)), (2, o["m1"])]
    for k, rr in marks:
        a(f"s_cmp_lg_u32 {sR}, {rr}"); a(f"s_cbranch_scc1 L_mk{k}"); stamp(k, True); a(f"L_mk{k}:")
    a(f"s_and_b32 {sCnt}, {sR}, 31")
    a(f"s_cbranch_scc0 L_ldsw")
    a("L_ldck:")
    a("s_waitcnt lgkmcnt(0)")
    a(f"v_cmp_lt_i32 vcc, v10, v11", "ring space: every consumer has finished round R-4 (values read one round ago)")
    a(f"s_cbranch_vccnz L_ldslow")
    a(f"s_mov_b32 {sCnt}, 3")
    if FB:
        a(f"v_readlane_b32 {sInc}, v10, 8")
        if STAMP == 1: a(f"s_lshr_b32 s48, {sInc}, 4"); a(f"s_add_u32 s79, s79, s48")
        a(f"s_cmp_lt_u32 {sR}, 63")
        a(f"s_cselect_b32 {sInc}, {sInc}, 0")
        a(f"s_lshl_b32 {sInc}, {sInc}, 24")
    a(f"ds_read_b32 v10, v9 offset:{F_DONE}")
    a(f"s_branch L_ld")
    a("L_ldslow:")
    a(f"ds_read_b32 v10, v9 offset:{F_DONE}")
    if BOUND or STAMP == 1:
        a(f"s_sub_u32 {sSpin}, {sSpin}, 1")
        a(f"s_cbranch_scc1 L_end")
    a("s_branch L_ldck")
    a("L_ldsw:")
    a(f"s_cmp_eq_u32 {sR}, 64")
    a(f"s_cbranch_scc1 L_drain")
    a(f"s_mov_b32 s36, s8", "switch to V (stored unswizzled)")
    a(f"s_mov_b32 s37, s9")
    a(f"s_mov_b32 {sOff}, 0")
    a(f"s_mov_b32 {sSrc}, {sX}")
    for j in range(4): a(f"v_lshlrev_b32 v{4+j}, 4, {vL}")
    stamp(4)
    a("s_branch L_ldck")
    a("L_drain:")
    a.c("set up the final stage while the last loads land: lane l owns output column 2*(l&7) + (l>>5)")
    a(f"v_and_b32 v21, 7, {vL}")
    a(f"v_lshrrev_b32 v22, 5, {vL}")
    a(f"v_lshl_add_u32 v21, v21, 1, v22")
    a(f"v_lshl_add_u32 v22, v21, 2, {vF}")
    a(f"ds_read_b32 v17, {vF} offset:{F_TAG}")
    a(f"ds_read_b32 v18, v22 offset:{L_FIN - L_FL}")
    a(f"ds_read_b32 v19, v22 offset:{L_FIN - L_FL + 64}")
    a(f"s_lshl_b32 {sT[0]}, s2, 5")
    a(f"v_lshl_add_u32 v20, v21, 1, {sT[0]}", "byte offset in out")
    a(f"s_lshl_b32 {sT[0]}, s2, 12")
    a(f"s_add_u32 s56, s28, {sT[0]}", "inbox of this workgroup: 32 producers x 128 bytes")
    a(f"s_addc_u32 s57, s29, 0")
    a(f"s_movk_i32 s58, 4096")
    a(f"s_mov_b32 s59, 0x20000")
    a(f"s_mov_b32 {sHI}, 0xffff0000")
    a(f"s_mov_b64 s[44:45], -1")
    a(f"s_mov_b64 s[46:47], -1")
    pub = (2044 + js - D - 3)//4 + 1
    while pub < 512:
        pub += 1
        a(f"s_waitcnt vmcnt({2048 - 4*pub})")
        a("v_add_u32 v8, 1, v8"); a(f"ds_write_b32 {vF}, v8")
    stamp(5)
    sets = [(32, "s[44:45]"), (48, "s[46:47]")][:PP]
    def pissue(base):
        for i in range(4): a(f"buffer_load_dwordx4 v[{base+4*i}:{base+4*i+3}], v4, {W2}, 0 offen offset:{1024*i} {o.get('plp', 'sc1')}")
    if DRY == 2: a("s_cbranch_execz L_fin0")
    pissue(32)
    a("s_waitcnt lgkmcnt(0)")
    a("s_barrier", "pairs with the consumers' barrier before the output projection")
    if PP == 2: pissue(48)
    if STAMP == 1: a("s_mov_b32 s88, 0")
    a("L_poll:")
    for k, (base, m) in enumerate(sets):
        if STAMP == 1: a("s_add_u32 s88, s88, 1")
        a(f"s_waitcnt vmcnt({4*(PP-1)})")
        a(f"s_mov_b64 exec, {m}")
        for i in range(8): a(f"v_cmpx_eq_u32 vcc, v17, v{base+1+2*i}")
        a(f"s_andn2_b64 {m}, {m}, exec", "lanes whose four 16-byte pieces are not all this launch's yet")
        a(f"s_cbranch_scc0 L_got{k}")
        a(f"s_mov_b64 exec, {m}")
        if o.get("psl", 0): a(f"s_sleep {o['psl']}")
        pissue(base)
    a(f"s_sub_u32 {sSpin}, {sSpin}, 16")
    a(f"s_cbranch_scc0 L_poll")
    a("s_endpgm")
    for k, (base, m) in reversed(list(enumerate(sets))):
        a(f"L_got{k}:")
        a(f"s_mov_b64 exec, -1")
        if k == 0: a("L_fin0:")
        tstamp(4)
        a(f"v_add_f32 v24, v{base}, v{base+8}"); a(f"v_add_f32 v25, v{base+2}, v{base+10}")
        a(f"v_add_f32 v26, v{base+4}, v{base+12}"); a(f"v_add_f32 v27, v{base+6}, v{base+14}")
        if k: a("s_branch L_fin1")
    a("L_fin1:")
    a("v_add_f32 v24, v24, v26"); a("v_add_f32 v25, v25, v27")
    a("s_nop 1")
    a("v_permlane32_swap_b32 v24, v25")
    a("v_add_f32 v24, v24, v25")
    a("v_mov_b32 v25, v24"); a("s_nop 1")
    a("v_permlane16_swap_b32 v24, v25")
    a("v_add_f32 v24, v24, v25")
    a("s_nop 1")
    a(f"v_add_f32_dpp v24, v24, v24 row_ror:8 {FULL}")
    rbf("v24")
    a("v_add_f32 v24, v18, v24", "x + attention")
    rbf("v24")
    a("v_add_f32 v24, v24, v19", "+ mixer")
    a("v_cvt_pk_bf16_f32 v24, v24, v24")
    if DRY: a("s_cbranch_execz L_dryret")
    a("s_mov_b32 exec_lo, 0xff")
    a("s_mov_b32 exec_hi, 0xff")
    a(f"global_store_short v20, v24, s[24:25]")
    a(f"s_and_b32 {sT[0]}, s2, 31")
    a(f"s_cbranch_scc1 L_fin")
    a(f"s_lshl_b32 {sT[0]}, s2, 3")
    a(f"s_add_u32 {sT[0]}, {sT[0]}, {hex(WS_EPOCH)}")
    a(f"v_mov_b32 v16, {sT[0]}")
    a(f"s_mov_b64 exec, 1")
    a(f"global_store_dword v16, v17, s[28:29]", "next launch's tag differs from this one")
    a("s_branch L_fin")

    a("L_cons:")
    a(f"s_lshr_b32 {sB}, s2, 5")
    a(f"s_and_b32 {sH}, s2, 31")
    a(f"s_mov_b32 {sHI}, 0xffff0000")
    a(f"s_mov_b32 s59, 0x20000")
    a(f"s_lshl_b32 {sT[0]}, {sB}, 10")
    a(f"v_lshlrev_b32 v8, 4, {vL}")
    if BOUND: a(f"s_mov_b32 {sSpin}, 0x100000")
    a(f"s_add_u32 s4, s4, {sT[0]}")
    a(f"s_addc_u32 s5, s5, 0")
    a(f"global_load_dwordx4 v[4:7], v8, s[4:5]", "x[b][8l..8l+7]")
    npre = 0
    IPF = o.get("ipf", 2)
    if IPF == 1:
        a(f"s_getpc_b64 s[46:47]")
        a("L_pc:")
        a(f"s_lshl_b32 {sT[0]}, {sW}, 10")
        a(f"v_add_u32 v9, {sT[0]}, v8")
        a(f"v_min_u32 v9, L_end-L_pc-12, v9")
        a(f"global_load_dwordx4 v[16:19], v9, s[46:47]")
    if IPF == 2:
        a.c("pull this kernel's code towards L2: one dword per 32 bytes, 2 KiB per wave")
        a(f"s_getpc_b64 s[46:47]")
        a("L_pc:")
        a(f"s_sub_u32 s46, s46, L_pc-L_ld")
        a(f"s_subb_u32 s47, s47, 0")
        a(f"s_lshl_b32 {sT[0]}, {sW}, 11")
        a(f"v_lshl_add_u32 v9, {vL}, 5, {sT[0]}")
        a(f"v_min_u32 v9, L_end-L_ld, v9")
        a(f"global_load_dword v16, v9, s[46:47]")
    a.c("wq rows 64w + 8*((j>>1)^w) + 2r + (j&1), columns 128h + 8c")
    a(f"s_lshl_b32 {sT[0]}, {sW}, 19")
    a(f"s_lshl_b32 {sT[1]}, {sH}, 8")
    a(f"s_add_u32 {sT[0]}, {sT[0]}, {sT[1]}")
    a(f"s_add_u32 s36, s10, {sT[0]}")
    a(f"s_addc_u32 s37, s11, 0")
    a(f"s_sub_u32 s38, 0x400000, {sT[0]}")
    a(f"v_lshlrev_b32 v9, 14, {vRow}")
    a(f"v_lshl_add_u32 v9, {vCol}, 4, v9")
    a(f"s_lshl_b32 {sT[2]}, {sW}, 16")
    def wslot(j): return f"v[{WREG+4*j}:{WREG+4*j+3}]"
    def wqload(j):
        a(f"s_xor_b32 {sT[3]}, {sT[2]}, {((j >> 1) * 8 + (j & 1)) * 8192}")
        a(f"buffer_load_dwordx4 {wslot(j)}, v9, {R}, {sT[3]} offen nt")
    if FB:
        a(f"s_mov_b32 {sT[4]}, {hex(WS_EPOCH)}")
        a(f"s_load_dword {sTg}, s[28:29], {sT[4]}")
    a.c("this workgroup's eighth of the head's wo slice -> L2 (the slice itself is read later)")
    a(f"s_lshl_b32 {sT[5]}, {sH}, 17")
    a(f"s_lshl_b32 {sT[6]}, {sW}, 14")
    a(f"s_add_u32 {sT[5]}, {sT[5]}, {sT[6]}")
    a(f"s_lshl_b32 {sT[6]}, {sB}, 7")
    a(f"s_add_u32 {sT[5]}, {sT[5]}, {sT[6]}")
    a(f"v_lshrrev_b32 v11, 3, {vL}")
    a(f"v_and_b32 v10, 7, {vL}")
    a(f"v_lshl_add_u32 v10, v10, 4, {sT[5]}")
    a(f"v_lshl_add_u32 v11, v11, 10, v10")
    a(f"global_load_dwordx4 v[160:163], v11, s[12:13]")
    a(f"v_add_u32 v11, 0x2000, v11")
    a(f"global_load_dwordx4 v[164:167], v11, s[12:13]")
    for j in range(WQS): wqload(j)
    a(f"s_waitcnt vmcnt({WQS + 2})")
    stamp(1)
    X = [f"v{16+i}" for i in range(8)]
    def unpack(src4):
        for i in range(4):
            a(f"v_lshlrev_b32 {X[2*i]}, 16, v{src4+i}")
            a(f"v_and_b32 {X[2*i+1]}, {sHI}, v{src4+i}")
    def ln(sM, sD, write):
        a.c("LayerNorm statistics with the reference's bf16 roundings")
        a(f"v_add_f32 v24, {X[0]}, {X[1]}")
        for i in range(2, 8): a(f"v_add_f32 v24, v24, {X[i]}")
        wave_reduce("v_add_f32", "v24", sT[0])
        a("s_nop 1")
        a(f"v_mov_b32 v25, {sT[0]}")
        a(f"v_mul_f32 v25, {hex(f2u(1.0/512))}, v25")
        a(f"v_sub_f32 v26, {X[0]}, v25")
        a(f"v_mul_f32 v24, v26, v26")
        for i in range(1, 8):
            a(f"v_sub_f32 v26, {X[i]}, v25"); a(f"v_fmac_f32 v24, v26, v26")
        wave_reduce("v_add_f32", "v24", sT[0])
        rbf("v25")
        a(f"v_mov_b32 v24, {sT[0]}")
        a(f"v_mul_f32 v24, {hex(f2u(1.0/512))}, v24")
        rbf("v24")
        a(f"v_add_f32 v24, {hex(f2u(1e-5))}, v24")
        rbf("v24")
        a(f"v_sqrt_f32 v24, v24")
        a("s_nop 0")
        rbf("v24")
        a(f"v_rcp_f32 v24, v24")
        a(f"v_readfirstlane_b32 {sM}, v25")
        a(f"v_readfirstlane_b32 {sD}, v24")
        if write:
            for i in range(8): a(f"v_sub_f32 {X[i]}, {X[i]}, v25")
            for i in range(4): a(f"v_cvt_pk_bf16_f32 v{4+i}, {X[2*i]}, {X[2*i+1]}")
            unpack(4)
            for i in range(8): a(f"v_mul_f32 {X[i]}, {X[i]}, v24")
            for i in range(4): a(f"v_cvt_pk_bf16_f32 v{4+i}, {X[2*i]}, {X[2*i+1]}")
    unpack(4)
    ln(sM1, sD1, True)
    a(f"v_add_u32 v8, {L_XN}, v8")
    a(f"ds_write_b128 v8, v[4:7]", "packed xn (every wave writes the same bytes)")
    a(f"s_mul_i32 {sT[0]}, {sW}, 144")
    a(f"s_add_u32 {sT[0]}, {sT[0]}, {L_XN}")
    a(f"v_lshl_add_u32 v8, {vRow}, 2, {sT[0]}")
    assert L_XN % 128 == 0
    for i in range(8):
        if i: a(f"v_xor_b32 v10, {16*i}, v8")
        a(f"ds_read_b32 v{QF+i}, {'v10' if i else 'v8'}")
    for i in range(8): a(f"v_mov_b32 {ACC[i]}, 0")
    nissued = WQS + WQ2
    for j in range(WQS, nissued): wqload(j)
    def preread(n):
        a.c(f"take K granule {n} of this wave out of the ring early: frees a round for the loader")
        if n: a(f"v_add_u32 v12, 0x8000, v12")
        for t in range(1, 4): a(f"v_xor_b32 v{19+t}, {64*t}, v12")
        a(f"s_add_u32 {sT[4]}, {sW}, {8*n}")
        spin(F_LAND, "s_cmp_gt_i32", sT[4], "v14", sT[0])
        a(f"ds_read_b128 v[{ST[n]}:{ST[n]+3}], v12")
        for t in range(1, 4): a(f"ds_read_b128 v[{ST[n]+4*t}:{ST[n]+4*t+3}], v{19+t}")
        a(f"v_mov_b32 v14, {n+1}")
        a("s_waitcnt lgkmcnt(0)")
        a(f"ds_write_b32 v13, v14 offset:{F_DONE}")
    a(f"v_xor_b32 v12, {vRow}, {vCol}")
    a(f"v_lshlrev_b32 v12, 4, v12")
    a(f"v_lshl_add_u32 v12, {vCol}, 8, v12")
    a(f"s_lshl_b32 {sT[0]}, {sW}, 12")
    a(f"v_add_u32 v12, {sT[0]}, v12")
    a(f"s_lshl_b32 {sT[0]}, {sW}, 2")
    a(f"v_add_u32 v13, {sT[0]}, {vF}")
    preread(0)
    a.c("q projection: acc[col] += xn[row] * wq[row][col]")
    for j in range(16):
        for n in range(1, PRE):
            if PJ[n-1] == j: preread(n)
        src = f"v{QF + j//2}"
        if j % 2 == 0: a(f"v_and_b32 v10, 0xffff, {src}"); a(f"v_lshlrev_b32 v11, 16, {src}")
        else: a(f"v_lshrrev_b32 v10, 16, {src}"); a(f"v_and_b32 v11, {sHI}, {src}")
        a(f"s_waitcnt vmcnt({nissued - j - 1})")
        while nissued < 16 and nissued - j - 1 < WQ2:
            wqload(nissued); nissued += 1
        for i in range(4):
            a(f"v_dot2c_f32_bf16 {ACC[2*i]}, v10, v{WREG+4*j+i}")
            a(f"v_dot2c_f32_bf16 {ACC[2*i+1]}, v11, v{WREG+4*j+i}")
    stamp(2)
    vPW, vPR = "v15", "v14"
    a(f"s_mul_i32 {sT[0]}, {sW}, 528")
    a(f"s_add_u32 {sT[0]}, {sT[0]}, {L_QP}")
    a(f"v_lshl_add_u32 {vPW}, {vCol}, 5, {sT[0]}")
    a(f"v_lshl_add_u32 {vPW}, {vRow}, 3, {vPW}")
    rows_reduce8(vPW)
    arrive(F_ARRQ)
    for i in range(4): a(f"v_mov_b32 v{160+i}, v{4+i}", "keep xn for the second LayerNorm" if i == 0 else None)
    a(f"v_lshlrev_b32 {vPR}, 3, {vL}")
    a(f"v_add_u32 {vPR}, {L_QP}, {vPR}")
    spin(F_ARRQ, "s_cmp_ge_u32", 8, "v10", sT[0])
    sum8(WREG, vPR)
    a(f"v_lshlrev_b32 v10, 2, {vL}")
    a(f"v_add_u32 v10, {L_XN}, v10")
    a(f"ds_write_b32 v10, v{WREG}", "packed q (xn is dead: every wave has arrived)")
    a(f"v_lshlrev_b32 v10, 4, {vRow}")
    a(f"v_add_u32 v10, {L_XN}, v10")
    for t in range(4): a(f"ds_read_b128 v[{QF+4*t}:{QF+4*t+3}], v10 offset:{64*t}", "MFMA A fragments of q" if t == 0 else None)
    vH, vMA, vC0, vXr = "v138", "v139", "v140", "v145"
    a(f"s_mov_b32 {sL2E}, {hex(f2u(l2e))}")
    a(f"s_mov_b32 {sK}, {hex(f2u(128 ** -0.5))}")
    vKA, vSA, vDA, vM, vLs, vDn = "v4", "v5", "v6", "v7", "v8", "v9"
    a(f"v_add_u32 {vKA}, 0xffff0000, v12")
    a(f"s_lshl_b32 {sT[0]}, {sW}, 6")
    a(f"s_add_u32 {sT[0]}, {sT[0]}, {L_SC}")
    a(f"v_lshl_add_u32 {vSA}, {vCol}, 2, {sT[0]}")
    a(f"v_mov_b32 {vDA}, v13")
    a(f"v_mov_b32 {vM}, 0xff7fffff")
    a(f"v_mov_b32 {vLs}, 0")
    a(f"v_mov_b32 {vDn}, 0")
    a(f"s_mov_b32 {sG}, {sW}")
    a(f"s_mov_b32 {sR}, 0")
    a.c("wo: rows 128h + 32r + 2j + e, columns 64w + 4c")
    a(f"s_lshl_b32 {sT[0]}, {sH}, 17")
    a(f"s_add_u32 s36, s12, {sT[0]}")
    a(f"s_addc_u32 s37, s13, 0")
    a(f"s_mov_b32 s38, 0x20000")
    vWO = "v164"
    a(f"s_lshl_b32 {sT[0]}, {sW}, 7")
    a(f"v_lshl_add_u32 {vWO}, {vCol}, 3, {sT[0]}")
    a(f"v_lshl_add_u32 {vWO}, {vRow}, 15, {vWO}")
    a(f"s_add_u32 {sOff}, {sW}, {WMR}")
    if FB: a(f"s_add_u32 {sTg}, {sTg}, 1")
    stamp(3)
    a("s_waitcnt lgkmcnt(0)")
    a("s_branch L_kmid")
    a("L_kst:")
    for n in range(1, PRE):
        for i in range(16): a(f"v_mov_b32 v{ST[n-1]+i}, v{ST[n]+i}")
    a("s_branch L_kmid")
    a("L_k:")
    a(f"s_cmp_lt_u32 {sR}, {PRE}")
    a(f"s_cbranch_scc1 L_kst")
    for t in range(1, 4): a(f"v_xor_b32 v{10+t}, {64*t}, {vKA}")
    spin(F_LAND, "s_cmp_gt_i32", sG, "v10", sT[0])
    a(f"ds_read_b128 v[{DT}:{DT+3}], {vKA}")
    for t in range(1, 4): a(f"ds_read_b128 v[{DT+4*t}:{DT+4*t+3}], v{10+t}")
    a("L_kmid:")
    a(f"v_add_u32 {vDn}, 1, {vDn}")
    a(f"v_add_u32 {vKA}, 0x8000, {vKA}")
    a(f"v_and_b32 {vKA}, 0x1ffff, {vKA}")
    for t in range(4):
        a(f"s_waitcnt lgkmcnt({3-t})")
        a(f"v_mfma_f32_16x16x32_bf16 v[16:19], v[{QF+4*t}:{QF+4*t+3}], v[{DT+4*t}:{DT+4*t+3}], {'0' if t == 0 else 'v[16:19]'}")
    a(f"v_max_u32 v10, {PRE}, {vDn}")
    a(f"ds_write_b32 {vDA}, v10 offset:{F_DONE}")
    a(f"s_add_u32 {sG}, {sG}, 8")
    a(f"s_nop 4")
    rbf("v16")
    a(f"v_mul_f32 v16, {sK}, v16")
    rbf("v16")
    a(f"ds_write_b32 {vSA}, v16", "score of key l&15 of this granule")
    a(f"v_max_f32 v17, {vM}, v16", "running max / sum per lane")
    a(f"v_sub_f32 v18, {vM}, v17")
    a(f"v_sub_f32 v16, v16, v17")
    a(f"v_mul_f32 v18, {sL2E}, v18")
    a(f"v_mul_f32 v16, {sL2E}, v16")
    a(f"v_exp_f32 v18, v18")
    a(f"v_exp_f32 v16, v16")
    a(f"v_mov_b32 {vM}, v17")
    a(f"v_add_u32 {vSA}, 512, {vSA}")
    a(f"v_fma_f32 {vLs}, {vLs}, v18, v16")
    if FG0 < 256: ctl("k")
    a.c("wo slice trickles in, one row pair at a time")
    for j in range(16):
        rr = WOR + j * WOM // WOD
        a(f"s_cmp_lg_u32 {sR}, {rr}")
        a(f"s_cbranch_scc1 L_wo{j}")
        a(f"s_movk_i32 {sT[1]}, {2048*j}")
        a(f"buffer_load_dwordx2 v[{WREG+4*j}:{WREG+4*j+1}], {vWO}, {R}, {sT[1]} offen nt")
        a(f"buffer_load_dwordx2 v[{WREG+4*j+2}:{WREG+4*j+3}], {vWO}, {R}, {sT[1]} offen offset:1024 nt")
        a(f"L_wo{j}:")
    a(f"s_cmp_lg_u32 {sR}, {sOff}")
    a(f"s_cbranch_scc1 L_nomx")
    a.c("mixer operands: lane (r,c) handles d = 16h + c and hidden pairs (4w+r)*28 + {c, 14+c}")
    a(f"s_lshl_b32 {sT[0]}, {sH}, 5")
    a(f"v_lshl_add_u32 v11, {vCol}, 1, {sT[0]}")
    a(f"global_load_ushort {vH}, v11, s[4:5]")
    a(f"s_mul_i32 {sT[0]}, {sW}, 448")
    a(f"v_mul_u32_u24 v11, 112, {vRow}")
    a(f"v_lshl_add_u32 v11, {vCol}, 2, v11")
    a(f"v_add_u32 v11, {sT[0]}, v11")
    a(f"v_cmp_lt_u32 vcc, 13, {vCol}")
    a(f"v_mov_b32 v12, 0x10000")
    a(f"s_movk_i32 s58, 3584")
    a(f"v_cndmask_b32 v11, v11, v12, vcc", "lanes 14,15 read out of range -> 0")
    for k, p in enumerate([16, 18, 20]):
        a(f"s_mov_b32 s56, s{p}"); a(f"s_mov_b32 s57, s{p+1}")
        for s_ in range(2):
            a(f"buffer_load_dword v{MX + 5*s_ + (1,3,4)[k]}, v11, {W2}, 0 offen offset:{56*s_}")
    a(f"v_mov_b32 v12, 0")
    a(f"global_load_ushort v146, v12, s[22:23]", "b2")
    a(f"s_lshl_b32 {sT[0]}, {sB}, 8")
    a(f"s_add_u32 {sT[0]}, {sT[0]}, {hex(WS_EPOCH)}")
    a(f"s_load_dword {sE}, s[28:29], {sT[0]}", "whatever the batch's tag word holds on entry")
    a("L_nomx:")
    a(f"s_cmp_lg_u32 {sR}, 15")
    a(f"s_cbranch_scc1 L_noms")
    unpack(160)
    ln(sM2, sD2, False)
    a("s_waitcnt vmcnt(0)")
    a(f"v_lshlrev_b32 {vH}, 16, {vH}")
    a(f"v_mov_b32 {vXr}, {vH}")
    a(f"v_subrev_f32 {vH}, {sM1}, {vH}"); rbf(vH)
    a(f"v_mul_f32 {vH}, {sD1}, {vH}"); rbf(vH)
    a(f"v_subrev_f32 {vH}, {sM2}, {vH}"); rbf(vH)
    a(f"v_mul_f32 {vH}, {sD2}, {vH}"); rbf(vH)
    for s_ in range(2):
        b = MX + 5*s_
        a(f"v_lshlrev_b32 v{b}, 16, v{b+1}"); a(f"v_and_b32 v{b+1}, {sHI}, v{b+1}")
        a(f"v_lshlrev_b32 v{b+2}, 16, v{b+3}"); a(f"v_and_b32 v{b+3}, {sHI}, v{b+3}")
    kb = math.sqrt(2.0/math.pi)
    a(f"v_mov_b32 {vC0}, {hex(f2u(-2*kb*l2e))}")
    a(f"s_mov_b32 {sC1}, {hex(f2u(-2*kb*l2e*0.044715))}")
    a(f"v_mov_b32 {vMA}, 0")
    a("L_noms:")
    a(f"s_cmp_lt_u32 {sR}, 16")
    a(f"s_cbranch_scc1 L_nomix")
    a.c("mixer: gelu_tanh(u) = u / (1 + exp(-2 z)), two hidden pairs per round")
    BC = "row_newbcast:0 " + FULL
    for s_ in range(2):
        b = MX + 5*s_
        a(f"v_mul_f32_dpp v16, v{b}, {vH} {BC}"); a(f"v_mul_f32_dpp v17, v{b+1}, {vH} {BC}")
        a(f"v_cvt_pk_bf16_f32 v17, v16, v17")
        a(f"v_lshlrev_b32 v16, 16, v17"); a(f"v_and_b32 v17, {sHI}, v17")
        a(f"v_add_f32_dpp v16, v{b+2}, v16 {BC}"); a(f"v_add_f32_dpp v17, v{b+3}, v17 {BC}")
        a(f"v_cvt_pk_bf16_f32 v17, v16, v17")
        a(f"v_lshlrev_b32 v16, 16, v17"); a(f"v_and_b32 v17, {sHI}, v17")
        a(f"v_mul_f32 v18, v16, v16"); a(f"v_mul_f32 v19, v17, v17")
        a(f"v_fma_f32 v18, v18, {sC1}, {vC0}"); a(f"v_fma_f32 v19, v19, {sC1}, {vC0}")
        a(f"v_mul_f32 v18, v18, v16"); a(f"v_mul_f32 v19, v19, v17")
        a(f"v_exp_f32 v18, v18"); a(f"v_exp_f32 v19, v19")
        a(f"v_mov_b32_dpp v{b}, v{b} row_ror:15 {FULL}")
        a(f"v_add_f32 v18, 1.0, v18"); a(f"v_add_f32 v19, 1.0, v19")
        a(f"v_rcp_f32 v18, v18"); a(f"v_rcp_f32 v19, v19")
        a(f"v_mov_b32_dpp v{b+1}, v{b+1} row_ror:15 {FULL}")
        a(f"v_mul_f32 v18, v18, v16"); a(f"v_mul_f32 v19, v19, v17")
        a(f"v_cvt_pk_bf16_f32 v18, v18, v19")
        a(f"v_mov_b32_dpp v{b+2}, v{b+2} row_ror:15 {FULL}")
        a(f"v_mov_b32_dpp v{b+3}, v{b+3} row_ror:15 {FULL}")
        a(f"v_dot2c_f32_bf16_dpp {vMA}, v{b+4}, v18 {BC}")
        a(f"v_mov_b32_dpp v{b+4}, v{b+4} row_ror:15 {FULL}")
    a("L_nomix:")
    a(f"s_add_u32 {sR}, {sR}, 1")
    a(f"s_cmp_lt_u32 {sR}, 32")
    a(f"s_cbranch_scc1 L_k")
    a.c("---- softmax statistics: per-wave (max, sum), then over the 8 waves ----")
    a(f"v_mov_b32 v16, {vM}")
    allreduce("v_max_f32", "v16", 4)
    a(f"v_sub_f32 v17, {vM}, v16")
    a(f"v_mul_f32 v17, {sL2E}, v17")
    a(f"v_exp_f32 v17, v17")
    a(f"s_lshl_b32 {sT[0]}, {sW}, 3")
    a(f"v_add_u32 v18, {sT[0]}, {vF}")
    a(f"v_mul_f32 v17, v17, {vLs}")
    allreduce("v_add_f32", "v17", 4)
    a(f"ds_write_b64 v18, v[16:17] offset:{F_ML}")
    rows_sum(vMA, "v19")
    a(f"s_lshl_b32 {sT[0]}, {sW}, 6")
    a(f"s_add_u32 {sT[0]}, {sT[0]}, {L_BP}")
    a(f"v_lshl_add_u32 v19, {vCol}, 2, {sT[0]}")
    a(f"ds_write_b32 v19, {vMA}")
    arrive(F_ARRS)
    a.c("interleave the wo row pairs: (row 2j, row 2j+1) per column")
    a(f"s_mov_b32 {sT[0]}, 0x05040100")
    a(f"s_mov_b32 {sT[1]}, 0x07060302")
    a("s_waitcnt vmcnt(0)")
    for j in range(16):
        for i in range(2):
            r0 = WREG + 4*j + i; r1 = r0 + 2
            a(f"v_perm_b32 v16, v{r1}, v{r0}, {sT[0]}")
            a(f"v_perm_b32 v{r1}, v{r1}, v{r0}, {sT[1]}")
            a(f"v_mov_b32 v{r0}, v16")
    if DRY:
        a.c("walk the end-of-kernel code once with no lane active, so that it is in the instruction cache")
        a(f"s_mov_b64 exec, 0")
        a(f"s_branch L_tailb")
        a("L_dryret:")
        a(f"s_mov_b64 exec, -1")
    a.c("hand-off addresses: lane (r,c) ends with column 64w + 4c + r")
    vYA = "v13"
    a(f"s_lshl_b32 {sT[0]}, {sB}, 17")
    a(f"s_add_u32 s56, s28, {sT[0]}")
    a(f"s_addc_u32 s57, s29, 0")
    a(f"s_mov_b32 s58, 0x20000")
    a(f"s_lshl_b32 {sT[0]}, {sW}, 14")
    a(f"s_lshl_b32 {sT[1]}, {sH}, 7")
    a(f"s_add_u32 {sT[0]}, {sT[0]}, {sT[1]}")
    a(f"v_lshrrev_b32 v12, 2, {vCol}")
    a(f"v_lshl_add_u32 {vYA}, v12, 12, {sT[0]}")
    a(f"v_and_b32 v12, 3, {vCol}")
    a(f"v_lshl_add_u32 {vYA}, v12, 5, {vYA}")
    a(f"v_lshl_add_u32 {vYA}, {vRow}, 3, {vYA}")
    if o.get("stm", 2) == 4:
        a(f"v_and_b32 v12, 1, {vRow}")
        a(f"v_lshl_add_u32 {vYA}, v12, 17, {vYA}")
    a(f"s_add_u32 {sE}, {sE}, 1", "this launch's tag")
    spin(F_ARRS, "s_cmp_ge_u32", 8, "v10", sT[0])
    a(f"v_and_b32 v18, 7, {vL}")
    a(f"v_lshl_add_u32 v18, v18, 3, {vF}")
    a(f"ds_read_b64 v[16:17], v18 offset:{F_ML}")
    a(f"v_lshlrev_b32 v19, 2, {vL}")
    a(f"v_add_u32 v18, {L_BP}, v19")
    a(f"ds_read_b32 v20, v18")
    a(f"ds_read_b32 v21, v18 offset:256")
    a("s_waitcnt lgkmcnt(0)")
    a(f"v_mov_b32 {vM}, v16")
    allreduce("v_max_f32", vM, 3)
    a(f"v_sub_f32 v16, v16, {vM}")
    a(f"v_mul_f32 v16, {sL2E}, v16")
    a(f"v_exp_f32 v16, v16")
    a(f"v_add_f32 v20, v20, v21")
    a(f"v_mul_f32 {vLs}, v16, v17")
    allreduce("v_add_f32", vLs, 3)
    a(f"v_rcp_f32 {vLs}, {vLs}")
    rows_sum("v20", "v21")
    rbf("v20")
    a(f"v_lshlrev_b32 v146, 16, v146")
    a(f"v_add_f32 v20, v146, v20")
    rbf("v20")
    a(f"v_lshl_add_u32 v18, {vCol}, 2, {vF}")
    a(f"v_mov_b32 v19, {sE}")
    a(f"ds_write_b32 v18, {vXr} offset:{L_FIN - L_FL}", "operands of the final stage (all waves write the same values)")
    a(f"ds_write_b32 v18, v20 offset:{L_FIN - L_FL + 64}")
    a(f"ds_write_b32 {vF}, v19 offset:{F_TAG}")
    a(f"s_lshl_b32 {sT[0]}, {sW}, 12")
    a(f"v_lshl_add_u32 {vKA}, {vL}, 4, {sT[0]}")
    a(f"v_and_b32 {vSA}, 3, {vL}")
    a(f"v_lshl_add_u32 {vSA}, {vSA}, 2, {vRow}")
    a(f"s_lshl_b32 {sT[0]}, {sW}, 6")
    a(f"s_add_u32 {sT[0]}, {sT[0]}, {L_SC}")
    a(f"v_lshl_add_u32 {vSA}, {vSA}, 2, {sT[0]}")
    for i in range(8): a(f"v_mov_b32 {ACC[i]}, 0")
    Y = ["v48", "v50", "v51", "v52"]
    for y in Y: a(f"v_mov_b32 {y}, 0")
    a(f"v_mov_b32 v49, {sE}")
    stamp(4)
    a("s_branch L_v")
    a("L_vc:")
    ctl("v")
    a("L_v:")
    a(f"ds_read_b32 v16, {vSA}")
    a(f"v_add_u32 {vSA}, 512, {vSA}")
    a(f"v_add_u32 {vDn}, 1, {vDn}")
    a("s_waitcnt lgkmcnt(0)")
    a(f"v_sub_f32 v16, v16, {vM}", "p = bf16(exp(s - max) / sum)")
    a(f"v_mul_f32 v16, {sL2E}, v16")
    a(f"v_exp_f32 v16, v16")
    a(f"s_nop 0")
    a(f"v_mul_f32 v16, v16, {vLs}")
    a(f"v_cvt_pk_bf16_f32 v16, v16, v16")
    a(f"v_lshrrev_b32 v17, 16, v16")
    a(f"v_and_b32 v16, {sHI}, v16")
    spin(F_LAND, "s_cmp_gt_i32", sG, "v10", sT[0])
    for t in range(4): a(f"ds_read_b128 v[{DT+4*t}:{DT+4*t+3}], {vKA} offset:{1024*t}")
    a(f"v_add_u32 {vKA}, 0x8000, {vKA}")
    a(f"v_and_b32 {vKA}, 0x1ffff, {vKA}")
    a(f"s_add_u32 {sG}, {sG}, 8")
    a(f"s_cmpk_lt_u32 {sG}, 512")
    for j in range(4):
        a(f"s_waitcnt lgkmcnt({3-j})")
        if j == 3: a(f"ds_write_b32 {vDA}, {vDn} offset:{F_DONE}")
        for i in range(4):
            a(f"v_dot2c_f32_bf16_dpp {ACC[2*i]}, v17, v{DT+4*j+i} quad_perm:[{j},{j},{j},{j}] {FULL}")
            a(f"v_dot2c_f32_bf16_dpp {ACC[2*i+1]}, v16, v{DT+4*j+i} quad_perm:[{j},{j},{j},{j}] {FULL}")
    a(f"s_cbranch_scc1 L_vc")
    stamp(5)
    a.c("---- o over rows and waves, output projection, hand-off ----")
    a("s_nop 1")
    rows_reduce8(vPW)
    a("s_waitcnt lgkmcnt(0)")
    a("s_barrier")
    a("L_tailb:")
    tstamp(1)
    sum8(DT, vPR)
    a("s_nop 1")
    tstamp(2)
    for j in range(16):
        for c in range(4):
            a(f"v_dot2c_f32_bf16_dpp {Y[c]}, v{DT}, v{WREG+4*j+(0,2,1,3)[c]} row_newbcast:{j} {FULL}")
    a("s_nop 1")
    a(f"v_permlane32_swap_b32 {Y[0]}, {Y[2]}")
    a(f"v_permlane32_swap_b32 {Y[1]}, {Y[3]}")
    a(f"v_add_f32 {Y[0]}, {Y[0]}, {Y[2]}")
    a(f"v_add_f32 {Y[1]}, {Y[1]}, {Y[3]}")
    STM = o.get("stm", 2); STP = o.get("stp", "sc1")
    if STM == 4:
        a(f"v_mov_b32 {Y[2]}, {Y[0]}"); a(f"v_mov_b32 {Y[3]}, {Y[1]}")
        a("s_nop 0")
        a(f"v_permlane16_swap_b32 {Y[0]}, {Y[2]}")
        a(f"v_permlane16_swap_b32 {Y[1]}, {Y[3]}")
        a(f"v_add_f32 {Y[0]}, {Y[0]}, {Y[2]}")
        a(f"v_add_f32 {Y[1]}, {Y[1]}, {Y[3]}")
        a(f"v_mov_b32 v51, v49")
    else:
        a("s_nop 1")
        a(f"v_permlane16_swap_b32 {Y[0]}, {Y[1]}")
        a(f"v_add_f32 {Y[0]}, {Y[0]}, {Y[1]}")
    if DRY: a(f"s_cbranch_execz {'L_drain' if DRY == 2 else 'L_fin0'}")
    if STM == 4: a(f"buffer_store_dwordx4 v[48:51], {vYA}, {W2}, 0 offen {STP}")
    elif STM == 2: a(f"buffer_store_dwordx2 v[48:49], {vYA}, {W2}, 0 offen {STP}", "{partial, tag} to the workgroup that owns the column")
    elif STM == 3: a(f"buffer_atomic_swap_x2 v[48:49], {vYA}, {W2}, 0 offen {STP}")
    if o.get("wb", 0): a("buffer_wbl2 sc1")
    tstamp(3)
    stamp(6); stamp(7)
    a("L_fin:")
    if STAMP: a(f"s_mov_b64 exec, -1")
    stamp(8)
    if STAMP in (4, 5):
        a("s_memrealtime s[72:73]")
        a("s_waitcnt lgkmcnt(0)")
        a(f"s_cmp_lg_u32 {sW}, {o.get('lw', -1)}"); a("s_cbranch_scc1 L_end")
        if "swg" in o: a(f"s_cmp_lg_u32 s2, {o['swg']}"); a("s_cbranch_scc1 L_end")
        a(f"s_sub_u32 s74, s{60+2*o['t1']}, s{60+2*o['t0']}")
        if o.get("avg", 0):
            a("L_hold:")
            a("s_memrealtime s[76:77]"); a("s_waitcnt lgkmcnt(0)"); a("s_sub_u32 s76, s76, s60")
            a(f"s_cmp_lt_u32 s76, 8500"); a("s_cbranch_scc1 L_hold")
            a("s_add_u32 s74, s74, 0x1000000")
            a("s_mov_b32 s75, s74")
            a("s_atomic_add s75, s[26:27], 0 glc")
            a("s_waitcnt lgkmcnt(0)")
            a("s_add_u32 s74, s74, s75")
            a("s_cbranch_scc0 L_end")
            a("s_lshr_b32 s74, s74, 8")
        a(f"s_sub_u32 s74, s74, {o.get('sub', 0)}")
        if o.get("neg", 0): a("s_sub_u32 s74, 0, s74")
        a(f"s_mul_i32 s74, s74, {o.get('amp', 10)}")
        a(f"s_add_u32 s74, s74, 10000"); a(f"s_min_u32 s74, s74, 100000")
        a("L_pin3:")
        a("s_memrealtime s[76:77]"); a("s_waitcnt lgkmcnt(0)"); a("s_sub_u32 s76, s76, s60")
        a(f"s_cmp_lt_u32 s76, s74"); a("s_cbranch_scc1 L_pin3")
    if STAMP == 1:
        a("s_waitcnt vmcnt(0) lgkmcnt(0)")
        a(f"s_mul_i32 {sT[0]}, s2, 9"); a(f"s_add_u32 {sT[0]}, {sT[0]}, {sW}"); a(f"s_add_u32 {sT[0]}, {sT[0]}, 1")
        a(f"s_lshl_b32 {sT[0]}, {sT[0]}, 7"); a(f"s_add_u32 {sT[0]}, {sT[0]}, 0x100000")
        a(f"v_mov_b32 v16, 0")
        for i in range(18): a(f"v_writelane_b32 v16, s{60+i}, {i}")
        a(f"s_getreg_b32 {sT[1]}, hwreg(HW_REG_XCC_ID)"); a(f"s_getreg_b32 {sT[2]}, hwreg(HW_REG_HW_ID)")
        a(f"v_writelane_b32 v16, {sT[1]}, 18"); a(f"v_writelane_b32 v16, {sT[2]}, 19")
        a(f"v_writelane_b32 v16, {sSpin}, 20"); a(f"v_writelane_b32 v16, s79, 21"); a(f"v_writelane_b32 v16, s88, 22")
        a(f"v_lshl_add_u32 v17, {vL}, 2, {sT[0]}")
        a(f"s_mov_b64 exec, 0xffffffff")
        a(f"global_store_dword v17, v16, s[28:29]")
    a("L_end:")
    a("s_endpgm")

    head = open("cdna_kernels/%s.s.ref" % NAME).read().split("; Override launch")[0]
    out = head + f"; @launch grid=(256,1,1) block=(576,1,1) lds={LDS_BYTES}\n"
    out += '.amdgcn_target "amdgcn-amd-amdhsa--gfx950"\n.text\n'
    out += f".globl {NAME}_kernel\n.p2align 8\n.type {NAME}_kernel,@function\n" + a.text()
    out += f""".section .rodata,"a"
.p2align 6
.amdhsa_kernel {NAME}_kernel
  .amdhsa_next_free_vgpr 168
  .amdhsa_next_free_sgpr 96
  .amdhsa_accum_offset 168
  .amdhsa_group_segment_fixed_size 0
  .amdhsa_kernarg_size 104
  .amdhsa_user_sgpr_count 2
  .amdhsa_user_sgpr_kernarg_segment_ptr 1
  .amdhsa_system_sgpr_workgroup_id_x 1
  .amdhsa_float_denorm_mode_32 3
.end_amdhsa_kernel
"""
    return out
if __name__ == "__main__":
    opts = {}
    for kv in sys.argv[2:]:
        k, v = kv.split("=")
        try: opts[k] = int(v, 0)
        except ValueError: opts[k] = v.replace("+", " ")
    open(sys.argv[1], "w").write(gen(opts))
```

```python
import sys, struct, math
NAME = "parallel_sum__mha_block_cached__mixer_token_mlp__decode"
def f2u(x): return struct.unpack("<I", struct.pack("<f", x))[0]
class Asm:
    def __init__(self): self.lines = []
    def __call__(self, s, c=None):
        s = s.strip()
        l = s if s.endswith(":") else "    " + s
        if c: l = l.ljust(72) + "; " + c
        self.lines.append(l)
    def c(self, s): self.lines.append("    ; " + s)
    def text(self): return "\n".join(self.lines) + "\n"

def gen(o):
    D = o.get("d", 26); DS = o.get("ds", 24); RS = o.get("rs", 4)
    STAMP = o.get("stamp", 0); TS = o.get("ts", 0)
    BOUND = o.get("bound", 0)
    FB = o.get("fb", 1)
    FP = o.get("fp", 8); FS = o.get("fs", 3); FG0 = o.get("fg0", 212); FR = o.get("frep", 8)
    FSA = o.get("fsa", (7 * FS) // 2 + 1); FEND = o.get("fend", 440)
    B0 = o.get("b0", 165); BG = o.get("bg", 36)
    WQS = o.get("wqs", 4); WQ2 = o.get("wq2", 4); PRE = 3
    PJ = [int(x) for x in str(o.get("pj", "6,11")).split(",")]
    WOR = o.get("wor", 6); WOM = o.get("wom", 3); WOD = o.get("wod", 2); WMR = 6
    DRY = o.get("dry", 2); PP = o.get("pp", 1)
    a = Asm()
    FULL = "row_mask:0xf bank_mask:0xf"
    l2e = 1.0 / math.log(2.0)
    WS_EPOCH = 0x180000; WS_MARK = 0x200000
    sE, sL2E, sC1 = "s3", "s14", "s15"
    sB, sH, sW, sOff, sR, sG = "s30", "s31", "s32", "s33", "s34", "s35"
    R = "s[36:39]"; W2 = "s[56:59]"
    sM1, sD1, sM2, sD2 = "s40", "s41", "s42", "s43"
    sT = [f"s{44+i}" for i in range(8)]
    sHI, sB2, sSpin, sK, sTg = "s52", "s53", "s54", "s55", "s78"
    sCnt, sAcc, sInc, sSrc, sX = "s40", "s46", "s47", "s50", "s51"
    L_SC = 131072; L_QP = L_SC + 16384; L_XN = L_QP + 4352; L_BP = L_XN + 1024; L_FL = L_BP + 512
    F_LAND, F_ARRQ, F_ARRS, F_TAG, F_DONE, F_RATE, F_ML = 0, 4, 8, 12, 32, 64, 192
    L_FIN = L_FL + 256
    LDS_BYTES = L_FIN + 128
    vL, vRow, vCol, vF = "v0", "v1", "v2", "v3"
    WREG, QF, DT, MX = 64, 48, 32, 128
    ACC = [f"v{24+i}" for i in range(8)]
    ST = [DT, 128, 144]
    nlab = [0]
    def lab(p): nlab[0] += 1; return f"L_{p}{nlab[0]}"
    def stamp(i, force=False):
        if STAMP == 1 or (STAMP >= 4 and i in (0, 5)) or force: a(f"s_memrealtime s[{60+2*i}:{61+2*i}]")
    def tstamp(i):
        if TS: a(f"s_memrealtime s[{60+2*i}:{61+2*i}]")
    def wave_reduce(op, v, sdst):
        for ctl in ["quad_perm:[1,0,3,2] "+FULL, "quad_perm:[2,3,0,1] "+FULL, "row_half_mirror "+FULL, "row_mirror "+FULL,
                    "row_bcast:15 row_mask:0xa bank_mask:0xf", "row_bcast:31 row_mask:0xc bank_mask:0xf"]:
            a("s_nop 1"); a(f"{op}_dpp {v}, {v}, {v} {ctl}")
        a("s_nop 1"); a(f"v_readlane_b32 {sdst}, {v}, 63")
    def allreduce(op, v, steps):
        for ctl in ["quad_perm:[1,0,3,2]", "quad_perm:[2,3,0,1]", "row_half_mirror", "row_mirror"][:steps]:
            a("s_nop 1"); a(f"{op}_dpp {v}, {v}, {v} {ctl} {FULL}")
    def rbf(v):
        a(f"v_cvt_pk_bf16_f32 {v}, {v}, {v}"); a(f"v_and_b32 {v}, {sHI}, {v}")
    def spin(off, cmp, val, tmpv, tmps):
        l0, l1 = lab("sp"), lab("go")
        a(f"{l0}:")
        a(f"ds_read_b32 {tmpv}, {vF} offset:{off}")
        a("s_waitcnt lgkmcnt(0)")
        a(f"v_readfirstlane_b32 {tmps}, {tmpv}")
        a(f"{cmp} {tmps}, {val}")
        if BOUND:
            a(f"s_cbranch_scc1 {l1}")
            a(f"s_sub_u32 {sSpin}, {sSpin}, 1"); a(f"s_cbranch_scc1 L_end"); a(f"s_branch {l0}")
            a(f"{l1}:")
        else: a(f"s_cbranch_scc0 {l0}")
    def rows_sum(v, t):
        a(f"v_mov_b32 {t}, {v}"); a("s_nop 1"); a(f"v_permlane32_swap_b32 {v}, {t}"); a(f"v_add_f32 {v}, {v}, {t}")
        a(f"v_mov_b32 {t}, {v}"); a("s_nop 1"); a(f"v_permlane16_swap_b32 {v}, {t}"); a(f"v_add_f32 {v}, {v}, {t}")
    def rows_reduce8(vaddr):
        for i in range(4): a(f"v_permlane32_swap_b32 {ACC[i]}, {ACC[i+4]}")
        for i in range(4): a(f"v_add_f32 {ACC[i]}, {ACC[i]}, {ACC[i+4]}")
        a("s_nop 0")
        for i in range(2): a(f"v_permlane16_swap_b32 {ACC[i]}, {ACC[i+2]}")
        for i in range(2): a(f"v_add_f32 {ACC[i]}, {ACC[i]}, {ACC[i+2]}")
        a(f"ds_write_b64 {vaddr}, v[24:25]")
    def arrive(off):
        a(f"v_mov_b32 v10, 1")
        a("s_waitcnt lgkmcnt(0)")
        a(f"s_mov_b64 exec, 1"); a(f"ds_add_u32 {vF}, v10 offset:{off}"); a(f"s_mov_b64 exec, -1")
    def sum8(base, vaddr):
        for w in range(8): a(f"ds_read_b64 v[{base+2*w}:{base+2*w+1}], {vaddr} offset:{528*w}")
        a(f"s_waitcnt lgkmcnt({0 if TS else 4})")
        for i in range(4): a(f"v_add_f32 v{base+i}, v{base+i}, v{base+4+i}")
        for i in range(2): a(f"v_add_f32 v{base+i}, v{base+i}, v{base+2+i}")
        a("s_waitcnt lgkmcnt(0)")
        for i in range(4): a(f"v_add_f32 v{base+8+i}, v{base+8+i}, v{base+12+i}")
        for i in range(2): a(f"v_add_f32 v{base+8+i}, v{base+8+i}, v{base+10+i}")
        for i in range(2): a(f"v_add_f32 v{base+i}, v{base+i}, v{base+8+i}")
        a(f"v_cvt_pk_bf16_f32 v{base}, v{base}, v{base+1}")
    def ctl(tag, FG0=FG0, FP=FP, FS=FS, FSA=FSA, FEND=FEND, BG=BG, B0=B0, WS_MARK=WS_MARK):
        if not FB: return
        a.c("flow control: compare own progress with eight reference workgroups, set the loader's idle-slot rate")
        a(f"s_sub_u32 {sT[1]}, {sG}, {FG0 + 8}")
        a(f"s_cmp_ge_u32 {sT[1]}, {FEND - FG0 - 8}")
        a(f"s_cbranch_scc1 L_nc{tag}")
        a(f"s_and_b32 {sT[2]}, {sT[1]}, {8*FP - 1}", "phase inside the control period")
        a(f"s_lshr_b32 {sT[1]}, {sT[1]}, {(8*FP).bit_length() - 1}", "checkpoint number")
        a(f"s_mul_i32 {sT[3]}, {sT[1]}, {FR * 4352}")
        a(f"s_add_u32 {sT[3]}, {sT[3]}, {hex(WS_MARK)}")
        a(f"s_cmp_ge_u32 s2, 8")
        a(f"s_cbranch_scc1 L_cs{tag}")
        a(f"s_add_u32 {sT[4]}, s2, {sT[1]}")
        a(f"s_and_b32 {sT[4]}, {sT[4]}, 7")
        a(f"s_mul_i32 {sT[4]}, {sT[4]}, {FS}")
        a(f"s_cmp_eq_u32 {sT[2]}, {sT[4]}")
        a(f"s_cbranch_scc0 L_cs{tag}")
        a(f"v_mul_u32_u24 v10, 4352, {vL}")
        a(f"s_lshl_b32 {sT[4]}, s2, 2")
        a(f"s_add_u32 {sT[4]}, {sT[4]}, {sT[3]}")
        a(f"v_add_u32 v10, {sT[4]}, v10")
        a(f"v_mov_b32 v11, {sTg}")
        a(f"s_mov_b64 exec, {hex((1 << FR) - 1)}")
        a(f"global_store_dword v10, v11, s[28:29] sc1", "reference workgroup: leave this launch's mark")
        a(f"s_mov_b64 exec, -1")
        a(f"L_cs{tag}:")
        a(f"s_cmp_eq_u32 {sT[2]}, {FSA}")
        a(f"s_cbranch_scc0 L_nc{tag}")
        a(f"s_bfe_u32 {sT[2]}, s2, {hex(3 | ((FR.bit_length() - 1) << 16))}")
        a(f"s_mul_i32 {sT[2]}, {sT[2]}, 4352")
        a(f"s_add_u32 {sT[3]}, {sT[3]}, {sT[2]}")
        a(f"s_load_dwordx8 s[80:87], s[28:29], {sT[3]} glc")
        a(f"s_mov_b32 {sT[2]}, 4")
        a(f"s_waitcnt lgkmcnt(0)")
        for i in range(8):
            a(f"s_cmp_eq_u32 s{80+i}, {sTg}")
            a(f"s_subb_u32 {sT[2]}, {sT[2]}, 0")
        a(f"s_mul_i32 {sT[2]}, {sT[2]}, {BG}")
        a(f"s_add_u32 {sT[2]}, {sT[2]}, {B0}")
        a(f"s_max_i32 {sT[2]}, {sT[2]}, 0")
        a(f"s_min_i32 {sT[2]}, {sT[2]}, 255")
        a(f"v_mov_b32 v11, {sT[2]}")
        a(f"ds_write_b32 {vF}, v11 offset:{F_RATE}")
        a(f"L_nc{tag}:")

    a(f"{NAME}_kernel:")
    a("s_cmpk_ge_u32 s2, 256")
    a("s_cbranch_scc1 L_end")
    a("s_load_dwordx16 s[4:19], s[0:1], 0")
    a("s_load_dwordx8 s[20:27], s[0:1], 64")
    a("s_load_dwordx2 s[28:29], s[0:1], 96")
    stamp(0)
    HS = o.get("hs", 4)
    js = (D - 1) % 4; jss = (DS - 1) % 4
    if HS:
        assert HS % 2 == 0 and 4 * HS <= DS
        a(f"v_readfirstlane_b32 {sW}, v0")
        a(f"v_and_b32 {vL}, 63, v0")
        a(f"v_lshrrev_b32 {vRow}, 4, {vL}")
        a(f"v_and_b32 {vCol}, 15, {vL}")
        a(f"s_mov_b32 s39, 0x20000")
        a(f"s_lshr_b32 {sW}, {sW}, 6")
        a("s_cbranch_scc1 L_cons")
        a(f"v_xor_b32 v4, {vCol}, {vRow}", "K rows are stored with their 16-byte chunks xor-swizzled by key&15")
        a(f"v_lshlrev_b32 v4, 4, v4")
        a(f"v_lshl_add_u32 v4, {vRow}, 8, v4")
        a(f"v_xor_b32 v5, 64, v4")
        a(f"v_xor_b32 v6, 0x80, v4")
        a(f"v_xor_b32 v7, 64, v6")
        a(f"s_lshl_b32 s38, 1, 20")
        a(f"s_lshl_b32 {sT[0]}, s2, 20")
        a(f"s_lshl_b32 {sX}, s2, 10")
        a(f"s_and_b32 {sX}, {sX}, 0x6000")
        a(f"s_mov_b32 {sOff}, 0")
        a(f"s_mov_b32 m0, 0")
        a("s_waitcnt lgkmcnt(0)")
        a(f"s_add_u32 s36, s6, {sT[0]}")
        a(f"s_addc_u32 s37, s7, 0")
        if o.get("ss", 0): stamp(1, True)
        a("L_l0:")
        a(f"s_xor_b32 {sSrc}, {sOff}, {sX}")
        for j in range(4): a(f"buffer_load_dwordx4 v{4+j}, {R}, {sSrc} offen offset:{1024*j} nt lds")
        a(f"s_addk_i32 m0, 4096")
        a(f"s_bitset1_b32 {sSrc}, 15")
        for j in range(4): a(f"buffer_load_dwordx4 v{4+j}, {R}, {sSrc} offen offset:{1024*j} nt lds")
        a(f"s_addk_i32 m0, 4096")
        a(f"s_addk_i32 {sOff}, 4096")
        a(f"s_cmpk_lg_u32 {sOff}, {HS * 2048}")
        a(f"s_cbranch_scc1 L_l0")
        if o.get("ss", 0): stamp(2, True); stamp(3, True)
        a("s_barrier", "the consumers have cleared the flag block")
        a("s_setprio 3")
        a(f"s_xor_b32 {sSrc}, {sOff}, {sX}")
        a(f"v_mov_b32 {vF}, {L_FL}")
        a(f"v_mov_b32 v8, {(4*HS + jss - DS - 3)//4}", "landed-granule counter")
        a(f"v_mov_b32 v10, 0")
        a(f"s_mov_b32 {sW}, -1")
    else:
        a(f"v_lshrrev_b32 v4, 6, v0")
        a(f"v_and_b32 {vL}, 63, v0")
        a(f"v_readfirstlane_b32 {sW}, v4")
        a(f"v_mov_b32 {vF}, {L_FL}")
        a(f"v_lshl_add_u32 v9, {vL}, 2, {vF}")
        a(f"v_mov_b32 v10, 0")
        a(f"ds_write_b32 v9, v10", "every wave clears the flag block before the barrier")
        a(f"v_lshrrev_b32 {vRow}, 4, {vL}")
        a(f"v_and_b32 {vCol}, 15, {vL}")
        a(f"s_mov_b32 s39, 0x20000")
        a(f"s_mov_b32 s38, 0x100000")
        a(f"s_lshl_b32 {sT[0]}, s2, 20")
        a(f"v_xor_b32 v4, {vCol}, {vRow}", "K rows are stored with their 16-byte chunks xor-swizzled by key&15")
        a(f"v_lshlrev_b32 v4, 4, v4")
        a(f"v_lshl_add_u32 v4, {vRow}, 8, v4")
        a(f"v_xor_b32 v5, 64, v4")
        a(f"v_xor_b32 v6, 0x80, v4")
        a(f"v_xor_b32 v7, 64, v6")
        js = (D - 1) % 4; jss = (DS - 1) % 4
        a(f"v_mov_b32 v8, {(jss - DS - 3)//4}", "landed-granule counter")
        a(f"s_mov_b32 {sOff}, 0")
        a(f"s_lshl_b32 {sX}, s2, 10")
        a(f"s_and_b32 {sX}, {sX}, 0x6000")
        a(f"s_mov_b32 {sSrc}, {sX}")
        a(f"s_mov_b32 m0, 0")
        a(f"s_sub_u32 {sW}, {sW}, 1", "consumer index; borrow marks the loader")
        a("s_waitcnt lgkmcnt(0)")
        a("s_barrier")
        a("s_cbranch_scc0 L_cons")

        a("s_setprio 3")
        a(f"s_add_u32 s36, s6, {sT[0]}")
        a(f"s_addc_u32 s37, s7, 0")
    RO = [int(x) for x in str(o.get("ro", "0")).split(",")]
    def round_base(src, lo):
        first = True; i = 0
        while i < 5:
            j = i
            while j + 1 < 5 and RO[j+1] == RO[j] + 1: j += 1
            a(f"s_bfe_u32 s49, {src}, {hex((lo + i) | ((j - i + 1) << 16))}")
            a(f"s_lshl_b32 {sOff if first else 's49'}, s49, {RO[i]}")
            if not first: a(f"s_or_b32 {sOff}, {sOff}, s49")
            first = False; i = j + 1
        a(f"s_xor_b32 {sSrc}, {sOff}, {sX}")
    def pair_body(Dw, jw, fb, tag):
        for half in range(2):
            for j in range(4):
                if fb and j % 2 == 0:
                    a(f"s_add_u32 {sAcc}, {sAcc}, {sInc}")
                    a(f"s_cbranch_scc0 L_nd{tag}{half}{j}")
                    a(f"buffer_load_dword v12, v4, {R}, s38 offen", "out of range: takes one slot of the window, moves no data")
                    a(f"L_nd{tag}{half}{j}:")
                a(f"s_waitcnt vmcnt({Dw-1})")
                a(f"buffer_load_dwordx4 v{4+j}, {R}, {sSrc} offen offset:{1024*j} nt lds")
                if j == jw:
                    a("v_add_u32 v8, 1, v8"); a(f"ds_write_b32 {vF}, v8")
                if half == 0 and j == 0 and RO == [0]: a(f"s_bitset1_b32 {sOff}, 15")
                if half == 0 and j == 1: a(f"s_addk_i32 {sOff}, 4096")
                if half == 0 and j == 2 and RO == [0]: a(f"s_bitset0_b32 {sOff}, 15")
            a(f"s_addk_i32 m0, 4096")
            if half == 0: a(f"s_bitset1_b32 {sSrc}, 15")
            else: a(f"s_xor_b32 {sSrc}, {sOff}, {sX}")
    if o.get("ss", 0) and not HS: stamp(1, True)
    a("L_ls:")
    pair_body(DS, jss, 0, "s")
    if o.get("ss", 0):
        for k, g in ((2, 2), (3, 6), (6, 8), (7, 16)):
            a(f"s_cmp_lg_u32 m0, {g*4096}"); a(f"s_cbranch_scc1 L_ss{k}"); stamp(k, True); a(f"L_ss{k}:")
    if RO != [0]:
        a(f"s_and_b32 s49, m0, 0x7fff")
        a(f"s_cbranch_scc1 L_ls")
        round_base("m0", 15)
    a(f"s_cmp_lg_u32 m0, {RS*32768}")
    a(f"s_cbranch_scc1 L_ls")
    a(f"v_mov_b32 v8, {(32*RS + js - D - 3)//4}")
    a(f"s_mov_b32 {sR}, {RS-1}")
    a(f"s_add_u32 s8, s8, {sT[0]}")
    a(f"s_addc_u32 s9, s9, 0")
    a(f"s_mov_b32 {sSpin}, 0x100000")
    a(f"v_min_u32 v9, 8, {vL}")
    a(f"v_lshl_add_u32 v9, v9, 2, {vF}", "lanes 0-7: done[], other lanes: idle-slot rate")
    a(f"v_mov_b32 v11, {RS - 4}")
    a(f"v_cmp_lt_u32 vcc, 7, {vL}")
    a(f"v_mov_b32 v14, {B0 if FB else 0}")
    a(f"v_mov_b32 v15, -1000")
    a(f"ds_write_b32 {vF}, v14 offset:{F_RATE}")
    a(f"v_cndmask_b32 v11, v11, v15, vcc")
    a(f"v_cndmask_b32 v10, v10, v14, vcc")
    a(f"s_mov_b32 {sAcc}, 0")
    if STAMP == 1: a("s_mov_b32 s79, 0")
    a(f"s_branch L_ld1")
    a("L_ld:")
    pair_body(D, js, FB, "m")
    a(f"s_sub_u32 {sCnt}, {sCnt}, 1")
    a(f"s_cbranch_scc0 L_ld")
    a("L_ld1:")
    a(f"s_bitset0_b32 m0, 17")
    a(f"s_add_u32 {sR}, {sR}, 1")
    a(f"v_add_u32 v11, 1, v11")
    if RO != [0]: round_base(sR, 0)
    marks = []
    if STAMP == 1: marks = list(zip((1,2,3,6,7), str(o.get("marks", "4,5,6,8,16")).split(",")))
    if STAMP == 4: marks = [(1, o.get("m0", 99)), (2, o["m1"])]
    for k, rr in marks:
        a(f"s_cmp_lg_u32 {sR}, {rr}"); a(f"s_cbranch_scc1 L_mk{k}"); stamp(k, True); a(f"L_mk{k}:")
    a(f"s_and_b32 {sCnt}, {sR}, 31")
    a(f"s_cbranch_scc0 L_ldsw")
    a("L_ldck:")
    a("s_waitcnt lgkmcnt(0)")
    a(f"v_cmp_lt_i32 vcc, v10, v11", "ring space: every consumer has finished round R-4 (values read one round ago)")
    a(f"s_cbranch_vccnz L_ldslow")
    a(f"s_mov_b32 {sCnt}, 3")
    if FB:
        a(f"v_readlane_b32 {sInc}, v10, 8")
        if STAMP == 1: a(f"s_lshr_b32 s48, {sInc}, 4"); a(f"s_add_u32 s79, s79, s48")
        a(f"s_cmp_lt_u32 {sR}, 63")
        a(f"s_cselect_b32 {sInc}, {sInc}, 0")
        a(f"s_lshl_b32 {sInc}, {sInc}, 24")
    a(f"ds_read_b32 v10, v9 offset:{F_DONE}")
    a(f"s_branch L_ld")
    a("L_ldslow:")
    a(f"ds_read_b32 v10, v9 offset:{F_DONE}")
    if BOUND or STAMP == 1:
        a(f"s_sub_u32 {sSpin}, {sSpin}, 1")
        a(f"s_cbranch_scc1 L_end")
    a("s_branch L_ldck")
    a("L_ldsw:")
    a(f"s_cmp_eq_u32 {sR}, 64")
    a(f"s_cbranch_scc1 L_drain")
    a(f"s_mov_b32 s36, s8", "switch to V (stored unswizzled)")
    a(f"s_mov_b32 s37, s9")
    a(f"s_mov_b32 {sOff}, 0")
    a(f"s_mov_b32 {sSrc}, {sX}")
    for j in range(4): a(f"v_lshlrev_b32 v{4+j}, 4, {vL}")
    stamp(4)
    a("s_branch L_ldck")
    a("L_drain:")
    a.c("set up the final stage while the last loads land: lane l owns output column 2*(l&7) + (l>>5)")
    a(f"v_and_b32 v21, 7, {vL}")
    a(f"v_lshrrev_b32 v22, 5, {vL}")
    a(f"v_lshl_add_u32 v21, v21, 1, v22")
    a(f"v_lshl_add_u32 v22, v21, 2, {vF}")
    a(f"ds_read_b32 v17, {vF} offset:{F_TAG}")
    a(f"ds_read_b32 v18, v22 offset:{L_FIN - L_FL}")
    a(f"ds_read_b32 v19, v22 offset:{L_FIN - L_FL + 64}")
    a(f"s_lshl_b32 {sT[0]}, s2, 5")
    a(f"v_lshl_add_u32 v20, v21, 1, {sT[0]}", "byte offset in out")
    a(f"s_lshl_b32 {sT[0]}, s2, 12")
    a(f"s_add_u32 s56, s28, {sT[0]}", "inbox of this workgroup: 32 producers x 128 bytes")
    a(f"s_addc_u32 s57, s29, 0")
    a(f"s_movk_i32 s58, 4096")
    a(f"s_mov_b32 s59, 0x20000")
    a(f"s_mov_b32 {sHI}, 0xffff0000")
    a(f"s_mov_b64 s[44:45], -1")
    a(f"s_mov_b64 s[46:47], -1")
    pub = (2044 + js - D - 3)//4 + 1
    while pub < 512:
        pub += 1
        a(f"s_waitcnt vmcnt({2048 - 4*pub})")
        a("v_add_u32 v8, 1, v8"); a(f"ds_write_b32 {vF}, v8")
    stamp(5)
    sets = [(32, "s[44:45]"), (48, "s[46:47]")][:PP]
    def pissue(base):
        for i in range(4): a(f"buffer_load_dwordx4 v[{base+4*i}:{base+4*i+3}], v4, {W2}, 0 offen offset:{1024*i} {o.get('plp', 'sc1')}")
    if DRY == 2: a("s_cbranch_execz L_fin0")
    pissue(32)
    a("s_waitcnt lgkmcnt(0)")
    a("s_barrier", "pairs with the consumers' barrier before the output projection")
    if PP == 2: pissue(48)
    if STAMP == 1: a("s_mov_b32 s88, 0")
    a("L_poll:")
    for k, (base, m) in enumerate(sets):
        if STAMP == 1: a("s_add_u32 s88, s88, 1")
        a(f"s_waitcnt vmcnt({4*(PP-1)})")
        a(f"s_mov_b64 exec, {m}")
        for i in range(8): a(f"v_cmpx_eq_u32 vcc, v17, v{base+1+2*i}")
        a(f"s_andn2_b64 {m}, {m}, exec", "lanes whose four 16-byte pieces are not all this launch's yet")
        a(f"s_cbranch_scc0 L_got{k}")
        a(f"s_mov_b64 exec, {m}")
        if o.get("psl", 0): a(f"s_sleep {o['psl']}")
        pissue(base)
    a(f"s_sub_u32 {sSpin}, {sSpin}, 16")
    a(f"s_cbranch_scc0 L_poll")
    a("s_endpgm")
    for k, (base, m) in reversed(list(enumerate(sets))):
        a(f"L_got{k}:")
        a(f"s_mov_b64 exec, -1")
        if k == 0: a("L_fin0:")
        tstamp(4)
        a(f"v_add_f32 v24, v{base}, v{base+8}"); a(f"v_add_f32 v25, v{base+2}, v{base+10}")
        a(f"v_add_f32 v26, v{base+4}, v{base+12}"); a(f"v_add_f32 v27, v{base+6}, v{base+14}")
        if k: a("s_branch L_fin1")
    a("L_fin1:")
    a("v_add_f32 v24, v24, v26"); a("v_add_f32 v25, v25, v27")
    a("s_nop 1")
    a("v_permlane32_swap_b32 v24, v25")
    a("v_add_f32 v24, v24, v25")
    a("v_mov_b32 v25, v24"); a("s_nop 1")
    a("v_permlane16_swap_b32 v24, v25")
    a("v_add_f32 v24, v24, v25")
    a("s_nop 1")
    a(f"v_add_f32_dpp v24, v24, v24 row_ror:8 {FULL}")
    rbf("v24")
    a("v_add_f32 v24, v18, v24", "x + attention")
    rbf("v24")
    a("v_add_f32 v24, v24, v19", "+ mixer")
    a("v_cvt_pk_bf16_f32 v24, v24, v24")
    if DRY: a("s_cbranch_execz L_dryret")
    a("s_mov_b32 exec_lo, 0xff")
    a("s_mov_b32 exec_hi, 0xff")
    a(f"global_store_short v20, v24, s[24:25]")
    a(f"s_and_b32 {sT[0]}, s2, 31")
    a(f"s_cbranch_scc1 L_fin")
    a(f"s_lshl_b32 {sT[0]}, s2, 3")
    a(f"s_add_u32 {sT[0]}, {sT[0]}, {hex(WS_EPOCH)}")
    a(f"v_mov_b32 v16, {sT[0]}")
    a(f"s_mov_b64 exec, 1")
    a(f"global_store_dword v16, v17, s[28:29]", "next launch's tag differs from this one")
    a("s_branch L_fin")

    a("L_cons:")
    if HS:
        a(f"v_mov_b32 {vF}, {L_FL}")
        a(f"v_lshl_add_u32 v9, {vL}, 2, {vF}")
        a(f"v_mov_b32 v10, 0")
        a(f"ds_write_b32 v9, v10", "every consumer clears the flag block before the barrier")
        a(f"s_sub_u32 {sW}, {sW}, 1")
    a(f"s_lshr_b32 {sB}, s2, 5")
    a(f"s_and_b32 {sH}, s2, 31")
    a(f"s_mov_b32 {sHI}, 0xffff0000")
    a(f"s_mov_b32 s59, 0x20000")
    a(f"s_lshl_b32 {sT[0]}, {sB}, 10")
    a(f"v_lshlrev_b32 v8, 4, {vL}")
    if BOUND: a(f"s_mov_b32 {sSpin}, 0x100000")
    if HS: a("s_waitcnt lgkmcnt(0)")
    a(f"s_add_u32 s4, s4, {sT[0]}")
    a(f"s_addc_u32 s5, s5, 0")
    a(f"global_load_dwordx4 v[4:7], v8, s[4:5]", "x[b][8l..8l+7]")
    npre = 0
    IPF = o.get("ipf", 2)
    if IPF == 1:
        a(f"s_getpc_b64 s[46:47]")
        a("L_pc:")
        a(f"s_lshl_b32 {sT[0]}, {sW}, 10")
        a(f"v_add_u32 v9, {sT[0]}, v8")
        a(f"v_min_u32 v9, L_end-L_pc-12, v9")
        a(f"global_load_dwordx4 v[16:19], v9, s[46:47]")
    if IPF == 2:
        a.c("pull this kernel's code towards L2: one dword per 32 bytes, 2 KiB per wave")
        a(f"s_getpc_b64 s[46:47]")
        a("L_pc:")
        a(f"s_sub_u32 s46, s46, L_pc-L_ld")
        a(f"s_subb_u32 s47, s47, 0")
        a(f"s_lshl_b32 {sT[0]}, {sW}, 11")
        a(f"v_lshl_add_u32 v9, {vL}, 5, {sT[0]}")
        a(f"v_min_u32 v9, L_end-L_ld, v9")
        a(f"global_load_dword v16, v9, s[46:47]")
    a.c("wq rows 64w + 8*((j>>1)^w) + 2r + (j&1), columns 128h + 8c")
    a(f"s_lshl_b32 {sT[0]}, {sW}, 19")
    a(f"s_lshl_b32 {sT[1]}, {sH}, 8")
    a(f"s_add_u32 {sT[0]}, {sT[0]}, {sT[1]}")
    a(f"s_add_u32 s36, s10, {sT[0]}")
    a(f"s_addc_u32 s37, s11, 0")
    a(f"s_sub_u32 s38, 0x400000, {sT[0]}")
    QM = o.get("qm", 1)
    a(f"v_lshlrev_b32 v9, {14 if QM == 1 else 15}, {vRow}")
    a(f"v_lshl_add_u32 v9, {vCol}, 4, v9")
    if QM == 1: a(f"s_lshl_b32 {sT[2]}, {sW}, 16")
    else:
        a(f"s_lshl_b32 {sT[2]}, {sW}, 16")
        a(f"s_and_b32 {sT[2]}, {sT[2]}, 0x60000")
        a(f"s_lshl_b32 {sT[3]}, {sW}, 14")
        a(f"s_and_b32 {sT[3]}, {sT[3]}, 0x4000")
        a(f"s_or_b32 {sT[2]}, {sT[2]}, {sT[3]}")
    def wslot(j): return f"v[{WREG+4*j}:{WREG+4*j+3}]"
    def wqload(j):
        a(f"s_xor_b32 {sT[3]}, {sT[2]}, {((j >> 1) * 8 + (j & 1)) * 8192 if QM == 1 else ((j >> 2) * 16 + (j & 3)) * 8192}")
        a(f"buffer_load_dwordx4 {wslot(j)}, v9, {R}, {sT[3]} offen {o.get('wqpol', 'nt')}")
    if FB:
        a(f"s_mov_b32 {sT[4]}, {hex(WS_EPOCH)}")
        a(f"s_load_dword {sTg}, s[28:29], {sT[4]}")
    a.c("this workgroup's eighth of the head's wo slice -> L2 (the slice itself is read later)")
    if o.get("opf", 1):
        a(f"s_lshl_b32 {sT[5]}, {sH}, 17")
        a(f"s_lshl_b32 {sT[6]}, {sW}, 10")
        a(f"s_add_u32 {sT[5]}, {sT[5]}, {sT[6]}")
        a(f"s_and_b32 {sT[6]}, {sB}, 4")
        a(f"s_add_u32 {sT[6]}, {sT[6]}, {sB}")
        a(f"s_lshl_b32 {sT[6]}, {sT[6]}, 13")
        a(f"s_add_u32 {sT[5]}, {sT[5]}, {sT[6]}")
        a(f"v_add_u32 v11, {sT[5]}, v8")
        if HS: a("s_barrier")
        a(f"global_load_dwordx4 v[160:163], v11, s[12:13]")
        a(f"v_add_u32 v11, 0x8000, v11")
        a(f"global_load_dwordx4 v[164:167], v11, s[12:13]")
    else:
        a(f"s_lshl_b32 {sT[5]}, {sH}, 17")
        a(f"s_lshl_b32 {sT[6]}, {sW}, 14")
        a(f"s_add_u32 {sT[5]}, {sT[5]}, {sT[6]}")
        a(f"s_lshl_b32 {sT[6]}, {sB}, 7")
        a(f"s_add_u32 {sT[5]}, {sT[5]}, {sT[6]}")
        a(f"v_lshrrev_b32 v11, 3, {vL}")
        a(f"v_and_b32 v10, 7, {vL}")
        a(f"v_lshl_add_u32 v10, v10, 4, {sT[5]}")
        a(f"v_lshl_add_u32 v11, v11, 10, v10")
        if HS: a("s_barrier")
        a(f"global_load_dwordx4 v[160:163], v11, s[12:13]")
        a(f"v_add_u32 v11, 0x2000, v11")
        a(f"global_load_dwordx4 v[164:167], v11, s[12:13]")
    QPF = o.get("qpf", 0)
    if QPF:
        a(f"s_lshl_b32 {sT[3]}, {sB}, 16")
        a(f"buffer_load_dwordx4 v[152:155], v9, {R}, {sT[3]} offen")
        a(f"s_add_u32 {sT[3]}, {sT[3]}, 8192")
        a(f"buffer_load_dwordx4 v[156:159], v9, {R}, {sT[3]} offen")
    for j in range(WQS): wqload(j)
    a(f"s_waitcnt vmcnt({WQS + 2 + 2*QPF})")
    stamp(1)
    X = [f"v{16+i}" for i in range(8)]
    def unpack(src4):
        for i in range(4):
            a(f"v_lshlrev_b32 {X[2*i]}, 16, v{src4+i}")
            a(f"v_and_b32 {X[2*i+1]}, {sHI}, v{src4+i}")
    def ln(sM, sD, write):
        a.c("LayerNorm statistics with the reference's bf16 roundings")
        a(f"v_add_f32 v24, {X[0]}, {X[1]}")
        for i in range(2, 8): a(f"v_add_f32 v24, v24, {X[i]}")
        wave_reduce("v_add_f32", "v24", sT[0])
        a("s_nop 1")
        a(f"v_mov_b32 v25, {sT[0]}")
        a(f"v_mul_f32 v25, {hex(f2u(1.0/512))}, v25")
        a(f"v_sub_f32 v26, {X[0]}, v25")
        a(f"v_mul_f32 v24, v26, v26")
        for i in range(1, 8):
            a(f"v_sub_f32 v26, {X[i]}, v25"); a(f"v_fmac_f32 v24, v26, v26")
        wave_reduce("v_add_f32", "v24", sT[0])
        rbf("v25")
        a(f"v_mov_b32 v24, {sT[0]}")
        a(f"v_mul_f32 v24, {hex(f2u(1.0/512))}, v24")
        rbf("v24")
        a(f"v_add_f32 v24, {hex(f2u(1e-5))}, v24")
        rbf("v24")
        a(f"v_sqrt_f32 v24, v24")
        a("s_nop 0")
        rbf("v24")
        a(f"v_rcp_f32 v24, v24")
        a(f"v_readfirstlane_b32 {sM}, v25")
        a(f"v_readfirstlane_b32 {sD}, v24")
        if write:
            for i in range(8): a(f"v_sub_f32 {X[i]}, {X[i]}, v25")
            for i in range(4): a(f"v_cvt_pk_bf16_f32 v{4+i}, {X[2*i]}, {X[2*i+1]}")
            unpack(4)
            for i in range(8): a(f"v_mul_f32 {X[i]}, {X[i]}, v24")
            for i in range(4): a(f"v_cvt_pk_bf16_f32 v{4+i}, {X[2*i]}, {X[2*i+1]}")
    unpack(4)
    ln(sM1, sD1, True)
    a(f"v_add_u32 v8, {L_XN}, v8")
    a(f"ds_write_b128 v8, v[4:7]", "packed xn (every wave writes the same bytes)")
    if QM == 1: a(f"s_mul_i32 {sT[0]}, {sW}, 144")
    else:
        a(f"s_lshr_b32 {sT[0]}, {sT[2]}, 12")
        a(f"s_lshl_b32 {sT[1]}, {sW}, 7")
        a(f"s_add_u32 {sT[0]}, {sT[0]}, {sT[1]}")
    a(f"s_add_u32 {sT[0]}, {sT[0]}, {L_XN}")
    a(f"v_lshl_add_u32 v8, {vRow}, {2 if QM == 1 else 3}, {sT[0]}")
    assert L_XN % 128 == 0
    for i in range(8):
        if i: a(f"v_xor_b32 v10, {16*i if QM == 1 else 32*(i >> 1) + 4*(i & 1)}, v8")
        a(f"ds_read_b32 v{QF+i}, {'v10' if i else 'v8'}")
    for i in range(8): a(f"v_mov_b32 {ACC[i]}, 0")
    nissued = WQS + WQ2
    for j in range(WQS, nissued): wqload(j)
    def preread(n):
        a.c(f"take K granule {n} of this wave out of the ring early: frees a round for the loader")
        if n: a(f"v_add_u32 v12, 0x8000, v12")
        for t in range(1, 4): a(f"v_xor_b32 v{19+t}, {64*t}, v12")
        a(f"s_add_u32 {sT[4]}, {sW}, {8*n}")
        spin(F_LAND, "s_cmp_gt_i32", sT[4], "v14", sT[0])
        a(f"ds_read_b128 v[{ST[n]}:{ST[n]+3}], v12")
        for t in range(1, 4): a(f"ds_read_b128 v[{ST[n]+4*t}:{ST[n]+4*t+3}], v{19+t}")
        a(f"v_mov_b32 v14, {n+1}")
        a("s_waitcnt lgkmcnt(0)")
        a(f"ds_write_b32 v13, v14 offset:{F_DONE}")
    a(f"v_xor_b32 v12, {vRow}, {vCol}")
    a(f"v_lshlrev_b32 v12, 4, v12")
    a(f"v_lshl_add_u32 v12, {vCol}, 8, v12")
    a(f"s_lshl_b32 {sT[0]}, {sW}, 12")
    a(f"v_add_u32 v12, {sT[0]}, v12")
    a(f"s_lshl_b32 {sT[0]}, {sW}, 2")
    a(f"v_add_u32 v13, {sT[0]}, {vF}")
    preread(0)
    a.c("q projection: acc[col] += xn[row] * wq[row][col]")
    for j in range(16):
        for n in range(1, PRE):
            if PJ[n-1] == j: preread(n)
        src = f"v{QF + j//2}"
        if j % 2 == 0: a(f"v_and_b32 v10, 0xffff, {src}"); a(f"v_lshlrev_b32 v11, 16, {src}")
        else: a(f"v_lshrrev_b32 v10, 16, {src}"); a(f"v_and_b32 v11, {sHI}, {src}")
        a(f"s_waitcnt vmcnt({nissued - j - 1})")
        while nissued < 16 and nissued - j - 1 < WQ2:
            wqload(nissued); nissued += 1
        for i in range(4):
            a(f"v_dot2c_f32_bf16 {ACC[2*i]}, v10, v{WREG+4*j+i}")
            a(f"v_dot2c_f32_bf16 {ACC[2*i+1]}, v11, v{WREG+4*j+i}")
    stamp(2)
    vPW, vPR = "v15", "v14"
    a(f"s_mul_i32 {sT[0]}, {sW}, 528")
    a(f"s_add_u32 {sT[0]}, {sT[0]}, {L_QP}")
    a(f"v_lshl_add_u32 {vPW}, {vCol}, 5, {sT[0]}")
    a(f"v_lshl_add_u32 {vPW}, {vRow}, 3, {vPW}")
    rows_reduce8(vPW)
    arrive(F_ARRQ)
    for i in range(4): a(f"v_mov_b32 v{160+i}, v{4+i}", "keep xn for the second LayerNorm" if i == 0 else None)
    a(f"v_lshlrev_b32 {vPR}, 3, {vL}")
    a(f"v_add_u32 {vPR}, {L_QP}, {vPR}")
    spin(F_ARRQ, "s_cmp_ge_u32", 8, "v10", sT[0])
    sum8(WREG, vPR)
    a(f"v_lshlrev_b32 v10, 2, {vL}")
    a(f"v_add_u32 v10, {L_XN}, v10")
    a(f"ds_write_b32 v10, v{WREG}", "packed q (xn is dead: every wave has arrived)")
    a(f"v_lshlrev_b32 v10, 4, {vRow}")
    a(f"v_add_u32 v10, {L_XN}, v10")
    for t in range(4): a(f"ds_read_b128 v[{QF+4*t}:{QF+4*t+3}], v10 offset:{64*t}", "MFMA A fragments of q" if t == 0 else None)
    vH, vMA, vC0, vXr = "v138", "v139", "v140", "v145"
    a(f"s_mov_b32 {sL2E}, {hex(f2u(l2e))}")
    a(f"s_mov_b32 {sK}, {hex(f2u(128 ** -0.5))}")
    vKA, vSA, vDA, vM, vLs, vDn = "v4", "v5", "v6", "v7", "v8", "v9"
    a(f"v_add_u32 {vKA}, 0xffff0000, v12")
    a(f"s_lshl_b32 {sT[0]}, {sW}, 6")
    a(f"s_add_u32 {sT[0]}, {sT[0]}, {L_SC}")
    a(f"v_lshl_add_u32 {vSA}, {vCol}, 2, {sT[0]}")
    a(f"v_mov_b32 {vDA}, v13")
    a(f"v_mov_b32 {vM}, 0xff7fffff")
    a(f"v_mov_b32 {vLs}, 0")
    a(f"v_mov_b32 {vDn}, 0")
    a(f"s_mov_b32 {sG}, {sW}")
    a(f"s_mov_b32 {sR}, 0")
    a.c("wo: rows 128h + 32r + 2j + e, columns 64w + 4c")
    a(f"s_lshl_b32 {sT[0]}, {sH}, 17")
    a(f"s_add_u32 s36, s12, {sT[0]}")
    a(f"s_addc_u32 s37, s13, 0")
    a(f"s_mov_b32 s38, 0x20000")
    vWO = "v164"
    a(f"s_lshl_b32 {sT[0]}, {sW}, 7")
    a(f"v_lshl_add_u32 {vWO}, {vCol}, 3, {sT[0]}")
    a(f"v_lshl_add_u32 {vWO}, {vRow}, 15, {vWO}")
    a(f"s_add_u32 {sOff}, {sW}, {WMR}")
    if FB: a(f"s_add_u32 {sTg}, {sTg}, 1")
    stamp(3)
    a("s_waitcnt lgkmcnt(0)")
    a("s_branch L_kmid")
    a("L_kst:")
    for n in range(1, PRE):
        for i in range(16): a(f"v_mov_b32 v{ST[n-1]+i}, v{ST[n]+i}")
    a("s_branch L_kmid")
    a("L_k:")
    a(f"s_cmp_lt_u32 {sR}, {PRE}")
    a(f"s_cbranch_scc1 L_kst")
    for t in range(1, 4): a(f"v_xor_b32 v{10+t}, {64*t}, {vKA}")
    spin(F_LAND, "s_cmp_gt_i32", sG, "v10", sT[0])
    a(f"ds_read_b128 v[{DT}:{DT+3}], {vKA}")
    for t in range(1, 4): a(f"ds_read_b128 v[{DT+4*t}:{DT+4*t+3}], v{10+t}")
    a("L_kmid:")
    a(f"v_add_u32 {vDn}, 1, {vDn}")
    a(f"v_add_u32 {vKA}, 0x8000, {vKA}")
    a(f"v_and_b32 {vKA}, 0x1ffff, {vKA}")
    for t in range(4):
        a(f"s_waitcnt lgkmcnt({3-t})")
        a(f"v_mfma_f32_16x16x32_bf16 v[16:19], v[{QF+4*t}:{QF+4*t+3}], v[{DT+4*t}:{DT+4*t+3}], {'0' if t == 0 else 'v[16:19]'}")
    a(f"v_max_u32 v10, {PRE}, {vDn}")
    a(f"ds_write_b32 {vDA}, v10 offset:{F_DONE}")
    a(f"s_add_u32 {sG}, {sG}, 8")
    a(f"s_nop 4")
    rbf("v16")
    a(f"v_mul_f32 v16, {sK}, v16")
    rbf("v16")
    a(f"ds_write_b32 {vSA}, v16", "score of key l&15 of this granule")
    a(f"v_max_f32 v17, {vM}, v16", "running max / sum per lane")
    a(f"v_sub_f32 v18, {vM}, v17")
    a(f"v_sub_f32 v16, v16, v17")
    a(f"v_mul_f32 v18, {sL2E}, v18")
    a(f"v_mul_f32 v16, {sL2E}, v16")
    a(f"v_exp_f32 v18, v18")
    a(f"v_exp_f32 v16, v16")
    a(f"v_mov_b32 {vM}, v17")
    a(f"v_add_u32 {vSA}, 512, {vSA}")
    a(f"v_fma_f32 {vLs}, {vLs}, v18, v16")
    if FG0 < 256: ctl("k")
    a.c("wo slice trickles in, one row pair at a time")
    for j in range(16):
        rr = WOR + j * WOM // WOD
        a(f"s_cmp_lg_u32 {sR}, {rr}")
        a(f"s_cbranch_scc1 L_wo{j}")
        a(f"s_movk_i32 {sT[1]}, {2048*j}")
        a(f"buffer_load_dwordx2 v[{WREG+4*j}:{WREG+4*j+1}], {vWO}, {R}, {sT[1]} offen nt")
        a(f"buffer_load_dwordx2 v[{WREG+4*j+2}:{WREG+4*j+3}], {vWO}, {R}, {sT[1]} offen offset:1024 nt")
        a(f"L_wo{j}:")
    a(f"s_cmp_lg_u32 {sR}, {sOff}")
    a(f"s_cbranch_scc1 L_nomx")
    a.c("mixer operands: lane (r,c) handles d = 16h + c and hidden pairs (4w+r)*28 + {c, 14+c}")
    a(f"s_lshl_b32 {sT[0]}, {sH}, 5")
    a(f"v_lshl_add_u32 v11, {vCol}, 1, {sT[0]}")
    a(f"global_load_ushort {vH}, v11, s[4:5]")
    a(f"s_mul_i32 {sT[0]}, {sW}, 448")
    a(f"v_mul_u32_u24 v11, 112, {vRow}")
    a(f"v_lshl_add_u32 v11, {vCol}, 2, v11")
    a(f"v_add_u32 v11, {sT[0]}, v11")
    a(f"v_cmp_lt_u32 vcc, 13, {vCol}")
    a(f"v_mov_b32 v12, 0x10000")
    a(f"s_movk_i32 s58, 3584")
    a(f"v_cndmask_b32 v11, v11, v12, vcc", "lanes 14,15 read out of range -> 0")
    for k, p in enumerate([16, 18, 20]):
        a(f"s_mov_b32 s56, s{p}"); a(f"s_mov_b32 s57, s{p+1}")
        for s_ in range(2):
            a(f"buffer_load_dword v{MX + 5*s_ + (1,3,4)[k]}, v11, {W2}, 0 offen offset:{56*s_}")
    a(f"v_mov_b32 v12, 0")
    a(f"global_load_ushort v146, v12, s[22:23]", "b2")
    a(f"s_lshl_b32 {sT[0]}, {sB}, 8")
    a(f"s_add_u32 {sT[0]}, {sT[0]}, {hex(WS_EPOCH)}")
    a(f"s_load_dword {sE}, s[28:29], {sT[0]}", "whatever the batch's tag word holds on entry")
    a("L_nomx:")
    a(f"s_cmp_lg_u32 {sR}, 15")
    a(f"s_cbranch_scc1 L_noms")
    unpack(160)
    ln(sM2, sD2, False)
    a("s_waitcnt vmcnt(0)")
    a(f"v_lshlrev_b32 {vH}, 16, {vH}")
    a(f"v_mov_b32 {vXr}, {vH}")
    a(f"v_subrev_f32 {vH}, {sM1}, {vH}"); rbf(vH)
    a(f"v_mul_f32 {vH}, {sD1}, {vH}"); rbf(vH)
    a(f"v_subrev_f32 {vH}, {sM2}, {vH}"); rbf(vH)
    a(f"v_mul_f32 {vH}, {sD2}, {vH}"); rbf(vH)
    for s_ in range(2):
        b = MX + 5*s_
        a(f"v_lshlrev_b32 v{b}, 16, v{b+1}"); a(f"v_and_b32 v{b+1}, {sHI}, v{b+1}")
        a(f"v_lshlrev_b32 v{b+2}, 16, v{b+3}"); a(f"v_and_b32 v{b+3}, {sHI}, v{b+3}")
    kb = math.sqrt(2.0/math.pi)
    a(f"v_mov_b32 {vC0}, {hex(f2u(-2*kb*l2e))}")
    a(f"s_mov_b32 {sC1}, {hex(f2u(-2*kb*l2e*0.044715))}")
    a(f"v_mov_b32 {vMA}, 0")
    a("L_noms:")
    a(f"s_cmp_lt_u32 {sR}, 16")
    a(f"s_cbranch_scc1 L_nomix")
    a.c("mixer: gelu_tanh(u) = u / (1 + exp(-2 z)), two hidden pairs per round")
    BC = "row_newbcast:0 " + FULL
    for s_ in range(2):
        b = MX + 5*s_
        a(f"v_mul_f32_dpp v16, v{b}, {vH} {BC}"); a(f"v_mul_f32_dpp v17, v{b+1}, {vH} {BC}")
        a(f"v_cvt_pk_bf16_f32 v17, v16, v17")
        a(f"v_lshlrev_b32 v16, 16, v17"); a(f"v_and_b32 v17, {sHI}, v17")
        a(f"v_add_f32_dpp v16, v{b+2}, v16 {BC}"); a(f"v_add_f32_dpp v17, v{b+3}, v17 {BC}")
        a(f"v_cvt_pk_bf16_f32 v17, v16, v17")
        a(f"v_lshlrev_b32 v16, 16, v17"); a(f"v_and_b32 v17, {sHI}, v17")
        a(f"v_mul_f32 v18, v16, v16"); a(f"v_mul_f32 v19, v17, v17")
        a(f"v_fma_f32 v18, v18, {sC1}, {vC0}"); a(f"v_fma_f32 v19, v19, {sC1}, {vC0}")
        a(f"v_mul_f32 v18, v18, v16"); a(f"v_mul_f32 v19, v19, v17")
        a(f"v_exp_f32 v18, v18"); a(f"v_exp_f32 v19, v19")
        a(f"v_mov_b32_dpp v{b}, v{b} row_ror:15 {FULL}")
        a(f"v_add_f32 v18, 1.0, v18"); a(f"v_add_f32 v19, 1.0, v19")
        a(f"v_rcp_f32 v18, v18"); a(f"v_rcp_f32 v19, v19")
        a(f"v_mov_b32_dpp v{b+1}, v{b+1} row_ror:15 {FULL}")
        a(f"v_mul_f32 v18, v18, v16"); a(f"v_mul_f32 v19, v19, v17")
        a(f"v_cvt_pk_bf16_f32 v18, v18, v19")
        a(f"v_mov_b32_dpp v{b+2}, v{b+2} row_ror:15 {FULL}")
        a(f"v_mov_b32_dpp v{b+3}, v{b+3} row_ror:15 {FULL}")
        a(f"v_dot2c_f32_bf16_dpp {vMA}, v{b+4}, v18 {BC}")
        a(f"v_mov_b32_dpp v{b+4}, v{b+4} row_ror:15 {FULL}")
    a("L_nomix:")
    a(f"s_add_u32 {sR}, {sR}, 1")
    a(f"s_cmp_lt_u32 {sR}, 32")
    a(f"s_cbranch_scc1 L_k")
    a.c("---- softmax statistics: per-wave (max, sum), then over the 8 waves ----")
    a(f"v_mov_b32 v16, {vM}")
    allreduce("v_max_f32", "v16", 4)
    a(f"v_sub_f32 v17, {vM}, v16")
    a(f"v_mul_f32 v17, {sL2E}, v17")
    a(f"v_exp_f32 v17, v17")
    a(f"s_lshl_b32 {sT[0]}, {sW}, 3")
    a(f"v_add_u32 v18, {sT[0]}, {vF}")
    a(f"v_mul_f32 v17, v17, {vLs}")
    allreduce("v_add_f32", "v17", 4)
    a(f"ds_write_b64 v18, v[16:17] offset:{F_ML}")
    rows_sum(vMA, "v19")
    a(f"s_lshl_b32 {sT[0]}, {sW}, 6")
    a(f"s_add_u32 {sT[0]}, {sT[0]}, {L_BP}")
    a(f"v_lshl_add_u32 v19, {vCol}, 2, {sT[0]}")
    a(f"ds_write_b32 v19, {vMA}")
    arrive(F_ARRS)
    a.c("interleave the wo row pairs: (row 2j, row 2j+1) per column")
    a(f"s_mov_b32 {sT[0]}, 0x05040100")
    a(f"s_mov_b32 {sT[1]}, 0x07060302")
    a("s_waitcnt vmcnt(0)")
    for j in range(16):
        for i in range(2):
            r0 = WREG + 4*j + i; r1 = r0 + 2
            a(f"v_perm_b32 v16, v{r1}, v{r0}, {sT[0]}")
            a(f"v_perm_b32 v{r1}, v{r1}, v{r0}, {sT[1]}")
            a(f"v_mov_b32 v{r0}, v16")
    if DRY:
        a.c("walk the end-of-kernel code once with no lane active, so that it is in the instruction cache")
        a(f"s_mov_b64 exec, 0")
        a(f"s_branch L_tailb")
        a("L_dryret:")
        a(f"s_mov_b64 exec, -1")
    a.c("hand-off addresses: lane (r,c) ends with column 64w + 4c + r")
    vYA = "v13"
    a(f"s_lshl_b32 {sT[0]}, {sB}, 17")
    a(f"s_add_u32 s56, s28, {sT[0]}")
    a(f"s_addc_u32 s57, s29, 0")
    a(f"s_mov_b32 s58, 0x20000")
    a(f"s_lshl_b32 {sT[0]}, {sW}, 14")
    a(f"s_lshl_b32 {sT[1]}, {sH}, 7")
    a(f"s_add_u32 {sT[0]}, {sT[0]}, {sT[1]}")
    a(f"v_lshrrev_b32 v12, 2, {vCol}")
    a(f"v_lshl_add_u32 {vYA}, v12, 12, {sT[0]}")
    a(f"v_and_b32 v12, 3, {vCol}")
    a(f"v_lshl_add_u32 {vYA}, v12, 5, {vYA}")
    a(f"v_lshl_add_u32 {vYA}, {vRow}, 3, {vYA}")
    if o.get("stm", 2) == 4:
        a(f"v_and_b32 v12, 1, {vRow}")
        a(f"v_lshl_add_u32 {vYA}, v12, 17, {vYA}")
    a(f"s_add_u32 {sE}, {sE}, 1", "this launch's tag")
    spin(F_ARRS, "s_cmp_ge_u32", 8, "v10", sT[0])
    a(f"v_and_b32 v18, 7, {vL}")
    a(f"v_lshl_add_u32 v18, v18, 3, {vF}")
    a(f"ds_read_b64 v[16:17], v18 offset:{F_ML}")
    a(f"v_lshlrev_b32 v19, 2, {vL}")
    a(f"v_add_u32 v18, {L_BP}, v19")
    a(f"ds_read_b32 v20, v18")
    a(f"ds_read_b32 v21, v18 offset:256")
    a("s_waitcnt lgkmcnt(0)")
    a(f"v_mov_b32 {vM}, v16")
    allreduce("v_max_f32", vM, 3)
    a(f"v_sub_f32 v16, v16, {vM}")
    a(f"v_mul_f32 v16, {sL2E}, v16")
    a(f"v_exp_f32 v16, v16")
    a(f"v_add_f32 v20, v20, v21")
    a(f"v_mul_f32 {vLs}, v16, v17")
    allreduce("v_add_f32", vLs, 3)
    a(f"v_rcp_f32 {vLs}, {vLs}")
    rows_sum("v20", "v21")
    rbf("v20")
    a(f"v_lshlrev_b32 v146, 16, v146")
    a(f"v_add_f32 v20, v146, v20")
    rbf("v20")
    a(f"v_lshl_add_u32 v18, {vCol}, 2, {vF}")
    a(f"v_mov_b32 v19, {sE}")
    a(f"ds_write_b32 v18, {vXr} offset:{L_FIN - L_FL}", "operands of the final stage (all waves write the same values)")
    a(f"ds_write_b32 v18, v20 offset:{L_FIN - L_FL + 64}")
    a(f"ds_write_b32 {vF}, v19 offset:{F_TAG}")
    a(f"s_lshl_b32 {sT[0]}, {sW}, 12")
    a(f"v_lshl_add_u32 {vKA}, {vL}, 4, {sT[0]}")
    a(f"v_and_b32 {vSA}, 3, {vL}")
    a(f"v_lshl_add_u32 {vSA}, {vSA}, 2, {vRow}")
    a(f"s_lshl_b32 {sT[0]}, {sW}, 6")
    a(f"s_add_u32 {sT[0]}, {sT[0]}, {L_SC}")
    a(f"v_lshl_add_u32 {vSA}, {vSA}, 2, {sT[0]}")
    for i in range(8): a(f"v_mov_b32 {ACC[i]}, 0")
    Y = ["v48", "v50", "v51", "v52"]
    for y in Y: a(f"v_mov_b32 {y}, 0")
    a(f"v_mov_b32 v49, {sE}")
    stamp(4)
    a("s_branch L_v")
    a("L_vc:")
    ctl("v")
    if o.get("fg1", 440):
        fs1 = o.get("fs1", 2)
        ctl("w", FG0=o.get("fg1", 440), FP=o.get("fp1", 4), FS=fs1, FSA=o.get("fsa1", (7 * fs1) // 2 + 1), FEND=o.get("fend1", 490),
            BG=o.get("bg1", 50), B0=o.get("b01", B0), WS_MARK=WS_MARK + 0x100000)
    a("L_v:")
    a(f"ds_read_b32 v16, {vSA}")
    a(f"v_add_u32 {vSA}, 512, {vSA}")
    a(f"v_add_u32 {vDn}, 1, {vDn}")
    a("s_waitcnt lgkmcnt(0)")
    a(f"v_sub_f32 v16, v16, {vM}", "p = bf16(exp(s - max) / sum)")
    a(f"v_mul_f32 v16, {sL2E}, v16")
    a(f"v_exp_f32 v16, v16")
    a(f"s_nop 0")
    a(f"v_mul_f32 v16, v16, {vLs}")
    a(f"v_cvt_pk_bf16_f32 v16, v16, v16")
    a(f"v_lshrrev_b32 v17, 16, v16")
    a(f"v_and_b32 v16, {sHI}, v16")
    spin(F_LAND, "s_cmp_gt_i32", sG, "v10", sT[0])
    for t in range(4): a(f"ds_read_b128 v[{DT+4*t}:{DT+4*t+3}], {vKA} offset:{1024*t}")
    a(f"v_add_u32 {vKA}, 0x8000, {vKA}")
    a(f"v_and_b32 {vKA}, 0x1ffff, {vKA}")
    a(f"s_add_u32 {sG}, {sG}, 8")
    a(f"s_cmpk_lt_u32 {sG}, 512")
    for j in range(4):
        a(f"s_waitcnt lgkmcnt({3-j})")
        if j == 3: a(f"ds_write_b32 {vDA}, {vDn} offset:{F_DONE}")
        for i in range(4):
            a(f"v_dot2c_f32_bf16_dpp {ACC[2*i]}, v17, v{DT+4*j+i} quad_perm:[{j},{j},{j},{j}] {FULL}")
            a(f"v_dot2c_f32_bf16_dpp {ACC[2*i+1]}, v16, v{DT+4*j+i} quad_perm:[{j},{j},{j},{j}] {FULL}")
    a(f"s_cbranch_scc1 L_vc")
    stamp(5)
    a.c("---- o over rows and waves, output projection, hand-off ----")
    a("s_nop 1")
    rows_reduce8(vPW)
    a("s_waitcnt lgkmcnt(0)")
    a("s_barrier")
    a("L_tailb:")
    tstamp(1)
    sum8(DT, vPR)
    a("s_nop 1")
    tstamp(2)
    for j in range(16):
        for c in range(4):
            a(f"v_dot2c_f32_bf16_dpp {Y[c]}, v{DT}, v{WREG+4*j+(0,2,1,3)[c]} row_newbcast:{j} {FULL}")
    a("s_nop 1")
    a(f"v_permlane32_swap_b32 {Y[0]}, {Y[2]}")
    a(f"v_permlane32_swap_b32 {Y[1]}, {Y[3]}")
    a(f"v_add_f32 {Y[0]}, {Y[0]}, {Y[2]}")
    a(f"v_add_f32 {Y[1]}, {Y[1]}, {Y[3]}")
    STM = o.get("stm", 2); STP = o.get("stp", "sc1")
    if STM == 4:
        a(f"v_mov_b32 {Y[2]}, {Y[0]}"); a(f"v_mov_b32 {Y[3]}, {Y[1]}")
        a("s_nop 0")
        a(f"v_permlane16_swap_b32 {Y[0]}, {Y[2]}")
        a(f"v_permlane16_swap_b32 {Y[1]}, {Y[3]}")
        a(f"v_add_f32 {Y[0]}, {Y[0]}, {Y[2]}")
        a(f"v_add_f32 {Y[1]}, {Y[1]}, {Y[3]}")
        a(f"v_mov_b32 v51, v49")
    else:
        a("s_nop 1")
        a(f"v_permlane16_swap_b32 {Y[0]}, {Y[1]}")
        a(f"v_add_f32 {Y[0]}, {Y[0]}, {Y[1]}")
    if DRY: a(f"s_cbranch_execz {'L_drain' if DRY == 2 else 'L_fin0'}")
    if STM == 4: a(f"buffer_store_dwordx4 v[48:51], {vYA}, {W2}, 0 offen {STP}")
    elif STM == 2: a(f"buffer_store_dwordx2 v[48:49], {vYA}, {W2}, 0 offen {STP}", "{partial, tag} to the workgroup that owns the column")
    elif STM == 3: a(f"buffer_atomic_swap_x2 v[48:49], {vYA}, {W2}, 0 offen {STP}")
    if o.get("wb", 0): a("buffer_wbl2 sc1")
    tstamp(3)
    stamp(6); stamp(7)
    a("L_fin:")
    if STAMP: a(f"s_mov_b64 exec, -1")
    stamp(8)
    if STAMP in (4, 5):
        a("s_memrealtime s[72:73]")
        a("s_waitcnt lgkmcnt(0)")
        a(f"s_cmp_lg_u32 {sW}, {o.get('lw', -1)}"); a("s_cbranch_scc1 L_end")
        if "swg" in o: a(f"s_cmp_lg_u32 s2, {o['swg']}"); a("s_cbranch_scc1 L_end")
        a(f"s_sub_u32 s74, s{60+2*o['t1']}, s{60+2*o['t0']}")
        if o.get("avg", 0):
            a("L_hold:")
            a("s_memrealtime s[76:77]"); a("s_waitcnt lgkmcnt(0)"); a("s_sub_u32 s76, s76, s60")
            a(f"s_cmp_lt_u32 s76, 8500"); a("s_cbranch_scc1 L_hold")
            a("s_add_u32 s74, s74, 0x1000000")
            a("s_mov_b32 s75, s74")
            a("s_atomic_add s75, s[26:27], 0 glc")
            a("s_waitcnt lgkmcnt(0)")
            a("s_add_u32 s74, s74, s75")
            a("s_cbranch_scc0 L_end")
            a("s_lshr_b32 s74, s74, 8")
        a(f"s_sub_u32 s74, s74, {o.get('sub', 0)}")
        if o.get("neg", 0): a("s_sub_u32 s74, 0, s74")
        a(f"s_mul_i32 s74, s74, {o.get('amp', 10)}")
        a(f"s_add_u32 s74, s74, 10000"); a(f"s_min_u32 s74, s74, 100000")
        a("L_pin3:")
        a("s_memrealtime s[76:77]"); a("s_waitcnt lgkmcnt(0)"); a("s_sub_u32 s76, s76, s60")
        a(f"s_cmp_lt_u32 s76, s74"); a("s_cbranch_scc1 L_pin3")
    if STAMP == 1:
        a("s_waitcnt vmcnt(0) lgkmcnt(0)")
        a(f"s_mul_i32 {sT[0]}, s2, 9"); a(f"s_add_u32 {sT[0]}, {sT[0]}, {sW}"); a(f"s_add_u32 {sT[0]}, {sT[0]}, 1")
        a(f"s_lshl_b32 {sT[0]}, {sT[0]}, 7"); a(f"s_add_u32 {sT[0]}, {sT[0]}, 0x100000")
        a(f"v_mov_b32 v16, 0")
        for i in range(18): a(f"v_writelane_b32 v16, s{60+i}, {i}")
        a(f"s_getreg_b32 {sT[1]}, hwreg(HW_REG_XCC_ID)"); a(f"s_getreg_b32 {sT[2]}, hwreg(HW_REG_HW_ID)")
        a(f"v_writelane_b32 v16, {sT[1]}, 18"); a(f"v_writelane_b32 v16, {sT[2]}, 19")
        a(f"v_writelane_b32 v16, {sSpin}, 20"); a(f"v_writelane_b32 v16, s79, 21"); a(f"v_writelane_b32 v16, s88, 22")
        a(f"v_lshl_add_u32 v17, {vL}, 2, {sT[0]}")
        a(f"s_mov_b64 exec, 0xffffffff")
        a(f"global_store_dword v17, v16, s[28:29]")
    a("L_end:")
    a("s_endpgm")

    head = open("cdna_kernels/%s.s.ref" % NAME).read().split("; Override launch")[0]
    out = head + f"; @launch grid=(256,1,1) block=(576,1,1) lds={LDS_BYTES}\n"
    out += '.amdgcn_target "amdgcn-amd-amdhsa--gfx950"\n.text\n'
    out += f".globl {NAME}_kernel\n.p2align 8\n.type {NAME}_kernel,@function\n" + a.text()
    out += f""".section .rodata,"a"
.p2align 6
.amdhsa_kernel {NAME}_kernel
  .amdhsa_next_free_vgpr 168
  .amdhsa_next_free_sgpr 96
  .amdhsa_accum_offset 168
  .amdhsa_group_segment_fixed_size 0
  .amdhsa_kernarg_size 104
  .amdhsa_user_sgpr_count 2
  .amdhsa_user_sgpr_kernarg_segment_ptr 1
  .amdhsa_system_sgpr_workgroup_id_x 1
  .amdhsa_float_denorm_mode_32 3
.end_amdhsa_kernel
"""
    return out
if __name__ == "__main__":
    opts = {}
    for kv in sys.argv[2:]:
        k, v = kv.split("=")
        try: opts[k] = int(v, 0)
        except ValueError: opts[k] = v.replace("+", " ")
    open(sys.argv[1], "w").write(gen(opts))
```

```python
import sys, struct, math
NAME = "parallel_sum__mha_block_cached__mixer_token_mlp__decode"
def f2u(x): return struct.unpack("<I", struct.pack("<f", x))[0]
class Asm:
    def __init__(self): self.lines = []
    def __call__(self, s, c=None):
        s = s.strip()
        l = s if s.endswith(":") else "    " + s
        if c: l = l.ljust(72) + "; " + c
        self.lines.append(l)
    def c(self, s): self.lines.append("    ; " + s)
    def text(self): return "\n".join(self.lines) + "\n"

def gen(o):
    D = o.get("d", 26); DS = o.get("ds", 24); RS = o.get("rs", 4)
    STAMP = o.get("stamp", 0); TS = o.get("ts", 0)
    BOUND = o.get("bound", 0)
    FB = o.get("fb", 1)
    FP = o.get("fp", 8); FS = o.get("fs", 3); FG0 = o.get("fg0", 212); FR = o.get("frep", 8)
    FSA = o.get("fsa", (7 * FS) // 2 + 1); FEND = o.get("fend", 440)
    B0 = o.get("b0", 165); BG = o.get("bg", 36)
    WQS = o.get("wqs", 4); WQ2 = o.get("wq2", 4); PRE = 3
    PJ = [int(x) for x in str(o.get("pj", "6,11")).split(",")]
    WOR = o.get("wor", 6); WOM = o.get("wom", 3); WOD = o.get("wod", 2); WMR = 6
    DRY = o.get("dry", 2); PP = o.get("pp", 1)
    SP = o.get("sp", "nt")
    a = Asm()
    FULL = "row_mask:0xf bank_mask:0xf"
    l2e = 1.0 / math.log(2.0)
    WS_EPOCH = 0x180000; WS_MARK = 0x200000
    sE, sL2E, sC1 = "s3", "s14", "s15"
    sB, sH, sW, sOff, sR, sG = "s30", "s31", "s32", "s33", "s34", "s35"
    R = "s[36:39]"; W2 = "s[56:59]"
    sM1, sD1, sM2, sD2 = "s40", "s41", "s42", "s43"
    sT = [f"s{44+i}" for i in range(8)]
    sHI, sB2, sSpin, sK, sTg = "s52", "s53", "s54", "s55", "s78"
    sCnt, sAcc, sInc, sSrc, sX = "s40", "s46", "s47", "s50", "s51"
    L_SC = 131072; L_QP = L_SC + 16384; L_XN = L_QP + 4352; L_BP = L_XN + 1024; L_FL = L_BP + 512
    F_LAND, F_ARRQ, F_ARRS, F_TAG, F_DONE, F_RATE, F_ML = 0, 4, 8, 12, 32, 64, 192
    L_FIN = L_FL + 256
    LDS_BYTES = L_FIN + 128
    vL, vRow, vCol, vF = "v0", "v1", "v2", "v3"
    WREG, QF, DT, MX = 64, 48, 32, 128
    ACC = [f"v{24+i}" for i in range(8)]
    ST = [DT, 128, 144]
    nlab = [0]
    def lab(p): nlab[0] += 1; return f"L_{p}{nlab[0]}"
    def stamp(i, force=False):
        if STAMP == 1 or (STAMP >= 4 and i in (0, 5)) or force: a(f"s_memrealtime s[{60+2*i}:{61+2*i}]")
    def tstamp(i):
        if TS: a(f"s_memrealtime s[{60+2*i}:{61+2*i}]")
    def wave_reduce(op, v, sdst):
        for ctl in ["quad_perm:[1,0,3,2] "+FULL, "quad_perm:[2,3,0,1] "+FULL, "row_half_mirror "+FULL, "row_mirror "+FULL,
                    "row_bcast:15 row_mask:0xa bank_mask:0xf", "row_bcast:31 row_mask:0xc bank_mask:0xf"]:
            a("s_nop 1"); a(f"{op}_dpp {v}, {v}, {v} {ctl}")
        a("s_nop 1"); a(f"v_readlane_b32 {sdst}, {v}, 63")
    def allreduce(op, v, steps):
        for ctl in ["quad_perm:[1,0,3,2]", "quad_perm:[2,3,0,1]", "row_half_mirror", "row_mirror"][:steps]:
            a("s_nop 1"); a(f"{op}_dpp {v}, {v}, {v} {ctl} {FULL}")
    def rbf(v):
        a(f"v_cvt_pk_bf16_f32 {v}, {v}, {v}"); a(f"v_and_b32 {v}, {sHI}, {v}")
    def spin(off, cmp, val, tmpv, tmps):
        l0, l1 = lab("sp"), lab("go")
        a(f"{l0}:")
        a(f"ds_read_b32 {tmpv}, {vF} offset:{off}")
        a("s_waitcnt lgkmcnt(0)")
        a(f"v_readfirstlane_b32 {tmps}, {tmpv}")
        a(f"{cmp} {tmps}, {val}")
        if BOUND:
            a(f"s_cbranch_scc1 {l1}")
            a(f"s_sub_u32 {sSpin}, {sSpin}, 1"); a(f"s_cbranch_scc1 L_end"); a(f"s_branch {l0}")
            a(f"{l1}:")
        else: a(f"s_cbranch_scc0 {l0}")
    def rows_sum(v, t):
        a(f"v_mov_b32 {t}, {v}"); a("s_nop 1"); a(f"v_permlane32_swap_b32 {v}, {t}"); a(f"v_add_f32 {v}, {v}, {t}")
        a(f"v_mov_b32 {t}, {v}"); a("s_nop 1"); a(f"v_permlane16_swap_b32 {v}, {t}"); a(f"v_add_f32 {v}, {v}, {t}")
    def rows_reduce8(vaddr):
        for i in range(4): a(f"v_permlane32_swap_b32 {ACC[i]}, {ACC[i+4]}")
        for i in range(4): a(f"v_add_f32 {ACC[i]}, {ACC[i]}, {ACC[i+4]}")
        a("s_nop 0")
        for i in range(2): a(f"v_permlane16_swap_b32 {ACC[i]}, {ACC[i+2]}")
        for i in range(2): a(f"v_add_f32 {ACC[i]}, {ACC[i]}, {ACC[i+2]}")
        a(f"ds_write_b64 {vaddr}, v[24:25]")
    def arrive(off):
        a(f"v_mov_b32 v10, 1")
        a("s_waitcnt lgkmcnt(0)")
        a(f"s_mov_b64 exec, 1"); a(f"ds_add_u32 {vF}, v10 offset:{off}"); a(f"s_mov_b64 exec, -1")
    def sum8(base, vaddr):
        for w in range(8): a(f"ds_read_b64 v[{base+2*w}:{base+2*w+1}], {vaddr} offset:{528*w}")
        a(f"s_waitcnt lgkmcnt({0 if TS else 4})")
        for i in range(4): a(f"v_add_f32 v{base+i}, v{base+i}, v{base+4+i}")
        for i in range(2): a(f"v_add_f32 v{base+i}, v{base+i}, v{base+2+i}")
        a("s_waitcnt lgkmcnt(0)")
        for i in range(4): a(f"v_add_f32 v{base+8+i}, v{base+8+i}, v{base+12+i}")
        for i in range(2): a(f"v_add_f32 v{base+8+i}, v{base+8+i}, v{base+10+i}")
        for i in range(2): a(f"v_add_f32 v{base+i}, v{base+i}, v{base+8+i}")
        a(f"v_cvt_pk_bf16_f32 v{base}, v{base}, v{base+1}")
    def ctl(tag, FG0=FG0, FP=FP, FS=FS, FSA=FSA, FEND=FEND, BG=BG, B0=B0, WS_MARK=WS_MARK):
        if not FB: return
        a.c("flow control: compare own progress with eight reference workgroups, set the loader's idle-slot rate")
        a(f"s_sub_u32 {sT[1]}, {sG}, {FG0 + 8}")
        a(f"s_cmp_ge_u32 {sT[1]}, {FEND - FG0 - 8}")
        a(f"s_cbranch_scc1 L_nc{tag}")
        a(f"s_and_b32 {sT[2]}, {sT[1]}, {8*FP - 1}", "phase inside the control period")
        a(f"s_lshr_b32 {sT[1]}, {sT[1]}, {(8*FP).bit_length() - 1}", "checkpoint number")
        a(f"s_mul_i32 {sT[3]}, {sT[1]}, {FR * 4352}")
        a(f"s_add_u32 {sT[3]}, {sT[3]}, {hex(WS_MARK)}")
        a(f"s_cmp_ge_u32 s2, 8")
        a(f"s_cbranch_scc1 L_cs{tag}")
        a(f"s_add_u32 {sT[4]}, s2, {sT[1]}")
        a(f"s_and_b32 {sT[4]}, {sT[4]}, 7")
        a(f"s_mul_i32 {sT[4]}, {sT[4]}, {FS}")
        a(f"s_cmp_eq_u32 {sT[2]}, {sT[4]}")
        a(f"s_cbranch_scc0 L_cs{tag}")
        a(f"v_mul_u32_u24 v10, 4352, {vL}")
        a(f"s_lshl_b32 {sT[4]}, s2, 2")
        a(f"s_add_u32 {sT[4]}, {sT[4]}, {sT[3]}")
        a(f"v_add_u32 v10, {sT[4]}, v10")
        a(f"v_mov_b32 v11, {sTg}")
        a(f"s_mov_b64 exec, {hex((1 << FR) - 1)}")
        a(f"global_store_dword v10, v11, s[28:29] sc1", "reference workgroup: leave this launch's mark")
        a(f"s_mov_b64 exec, -1")
        a(f"L_cs{tag}:")
        a(f"s_cmp_eq_u32 {sT[2]}, {FSA}")
        a(f"s_cbranch_scc0 L_nc{tag}")
        a(f"s_bfe_u32 {sT[2]}, s2, {hex(3 | ((FR.bit_length() - 1) << 16))}")
        a(f"s_mul_i32 {sT[2]}, {sT[2]}, 4352")
        a(f"s_add_u32 {sT[3]}, {sT[3]}, {sT[2]}")
        a(f"s_load_dwordx8 s[80:87], s[28:29], {sT[3]} glc")
        a(f"s_mov_b32 {sT[2]}, 4")
        a(f"s_waitcnt lgkmcnt(0)")
        for i in range(8):
            a(f"s_cmp_eq_u32 s{80+i}, {sTg}")
            a(f"s_subb_u32 {sT[2]}, {sT[2]}, 0")
        BI = o.get("bi", 0)
        if BI:
            a(f"s_mul_i32 {sT[3]}, {sT[2]}, {BI}")
        a(f"s_mul_i32 {sT[2]}, {sT[2]}, {BG}")
        a(f"s_add_u32 {sT[2]}, {sT[2]}, {B0}")
        if BI:
            a(f"s_add_u32 {sT[2]}, {sT[2]}, s11")
            a(f"s_add_u32 s11, s11, {sT[3]}")
            a(f"s_max_i32 s11, s11, {-o.get('bim', 70)}")
            a(f"s_min_i32 s11, s11, {o.get('bim', 70)}")
        a(f"s_max_i32 {sT[2]}, {sT[2]}, 0")
        a(f"s_min_i32 {sT[2]}, {sT[2]}, 255")
        a(f"v_mov_b32 v11, {sT[2]}")
        a(f"ds_write_b32 {vF}, v11 offset:{F_RATE}")
        a(f"L_nc{tag}:")

    a(f"{NAME}_kernel:")
    a("s_cmpk_ge_u32 s2, 256")
    a("s_cbranch_scc1 L_end")
    a("s_load_dwordx16 s[4:19], s[0:1], 0")
    a("s_load_dwordx8 s[20:27], s[0:1], 64")
    a("s_load_dwordx2 s[28:29], s[0:1], 96")
    stamp(0)
    HS = o.get("hs", 4)
    js = (D - 1) % 4; jss = (DS - 1) % 4
    if HS:
        assert HS % 2 == 0 and 4 * HS <= DS
        a(f"v_readfirstlane_b32 {sW}, v0")
        a(f"v_and_b32 {vL}, 63, v0")
        a(f"v_lshrrev_b32 {vRow}, 4, {vL}")
        a(f"v_and_b32 {vCol}, 15, {vL}")
        a(f"s_mov_b32 s39, 0x20000")
        a(f"s_lshr_b32 {sW}, {sW}, 6")
        a("s_cbranch_scc1 L_cons")
        a(f"v_xor_b32 v4, {vCol}, {vRow}", "K rows are stored with their 16-byte chunks xor-swizzled by key&15")
        a(f"v_lshlrev_b32 v4, 4, v4")
        a(f"v_lshl_add_u32 v4, {vRow}, 8, v4")
        a(f"v_xor_b32 v5, 64, v4")
        a(f"v_xor_b32 v6, 0x80, v4")
        a(f"v_xor_b32 v7, 64, v6")
        a(f"s_lshl_b32 s38, 1, 20")
        a(f"s_lshl_b32 {sT[0]}, s2, 20")
        a(f"s_lshl_b32 {sX}, s2, 10")
        a(f"s_and_b32 {sX}, {sX}, 0x6000")
        a(f"s_mov_b32 {sOff}, 0")
        a(f"s_mov_b32 m0, 0")
        a("s_waitcnt lgkmcnt(0)")
        a(f"s_add_u32 s36, s6, {sT[0]}")
        a(f"s_addc_u32 s37, s7, 0")
        if o.get("ss", 0): stamp(1, True)
        a("L_l0:")
        a(f"s_xor_b32 {sSrc}, {sOff}, {sX}")
        for j in range(4): a(f"buffer_load_dwordx4 v{4+j}, {R}, {sSrc} offen offset:{1024*j} {SP} lds")
        a(f"s_addk_i32 m0, 4096")
        a(f"s_bitset1_b32 {sSrc}, 15")
        for j in range(4): a(f"buffer_load_dwordx4 v{4+j}, {R}, {sSrc} offen offset:{1024*j} {SP} lds")
        a(f"s_addk_i32 m0, 4096")
        a(f"s_addk_i32 {sOff}, 4096")
        a(f"s_cmpk_lg_u32 {sOff}, {HS * 2048}")
        a(f"s_cbranch_scc1 L_l0")
        if o.get("ss", 0): stamp(2, True); stamp(3, True)
        a("s_barrier", "the consumers have cleared the flag block")
        a("s_setprio 3")
        a(f"s_xor_b32 {sSrc}, {sOff}, {sX}")
        a(f"v_mov_b32 {vF}, {L_FL}")
        a(f"v_mov_b32 v8, {(4*HS + jss - DS - 3)//4}", "landed-granule counter")
        a(f"v_mov_b32 v10, 0")
        a(f"s_mov_b32 {sW}, -1")
    else:
        a(f"v_lshrrev_b32 v4, 6, v0")
        a(f"v_and_b32 {vL}, 63, v0")
        a(f"v_readfirstlane_b32 {sW}, v4")
        a(f"v_mov_b32 {vF}, {L_FL}")
        a(f"v_lshl_add_u32 v9, {vL}, 2, {vF}")
        a(f"v_mov_b32 v10, 0")
        a(f"ds_write_b32 v9, v10", "every wave clears the flag block before the barrier")
        a(f"v_lshrrev_b32 {vRow}, 4, {vL}")
        a(f"v_and_b32 {vCol}, 15, {vL}")
        a(f"s_mov_b32 s39, 0x20000")
        a(f"s_mov_b32 s38, 0x100000")
        a(f"s_lshl_b32 {sT[0]}, s2, 20")
        a(f"v_xor_b32 v4, {vCol}, {vRow}", "K rows are stored with their 16-byte chunks xor-swizzled by key&15")
        a(f"v_lshlrev_b32 v4, 4, v4")
        a(f"v_lshl_add_u32 v4, {vRow}, 8, v4")
        a(f"v_xor_b32 v5, 64, v4")
        a(f"v_xor_b32 v6, 0x80, v4")
        a(f"v_xor_b32 v7, 64, v6")
        js = (D - 1) % 4; jss = (DS - 1) % 4
        a(f"v_mov_b32 v8, {(jss - DS - 3)//4}", "landed-granule counter")
        a(f"s_mov_b32 {sOff}, 0")
        a(f"s_lshl_b32 {sX}, s2, 10")
        a(f"s_and_b32 {sX}, {sX}, 0x6000")
        a(f"s_mov_b32 {sSrc}, {sX}")
        a(f"s_mov_b32 m0, 0")
        a(f"s_sub_u32 {sW}, {sW}, 1", "consumer index; borrow marks the loader")
        a("s_waitcnt lgkmcnt(0)")
        a("s_barrier")
        a("s_cbranch_scc0 L_cons")

        a("s_setprio 3")
        a(f"s_add_u32 s36, s6, {sT[0]}")
        a(f"s_addc_u32 s37, s7, 0")
    RO = [int(x) for x in str(o.get("ro", "0")).split(",")]
    def round_base(src, lo):
        first = True; i = 0
        while i < 5:
            j = i
            while j + 1 < 5 and RO[j+1] == RO[j] + 1: j += 1
            a(f"s_bfe_u32 s49, {src}, {hex((lo + i) | ((j - i + 1) << 16))}")
            a(f"s_lshl_b32 {sOff if first else 's49'}, s49, {RO[i]}")
            if not first: a(f"s_or_b32 {sOff}, {sOff}, s49")
            first = False; i = j + 1
        a(f"s_xor_b32 {sSrc}, {sOff}, {sX}")
    def pair_body(Dw, jw, fb, tag):
        for half in range(2):
            for j in range(4):
                if fb and j % 2 == 0:
                    a(f"s_add_u32 {sAcc}, {sAcc}, {sInc}")
                    a(f"s_cbranch_scc0 L_nd{tag}{half}{j}")
                    a(f"buffer_load_dword v12, v4, {R}, s38 offen", "out of range: takes one slot of the window, moves no data")
                    a(f"L_nd{tag}{half}{j}:")
                a(f"s_waitcnt vmcnt({Dw-1})")
                a(f"buffer_load_dwordx4 v{4+j}, {R}, {sSrc} offen offset:{1024*j} {SP} lds")
                if j == jw:
                    a("v_add_u32 v8, 1, v8"); a(f"ds_write_b32 {vF}, v8")
                if half == 0 and j == 0 and RO == [0]: a(f"s_bitset1_b32 {sOff}, 15")
                if half == 0 and j == 1: a(f"s_addk_i32 {sOff}, 4096")
                if half == 0 and j == 2 and RO == [0]: a(f"s_bitset0_b32 {sOff}, 15")
            a(f"s_addk_i32 m0, 4096")
            if half == 0: a(f"s_bitset1_b32 {sSrc}, 15")
            else: a(f"s_xor_b32 {sSrc}, {sOff}, {sX}")
    if o.get("ss", 0) and not HS: stamp(1, True)
    a("L_ls:")
    pair_body(DS, jss, 0, "s")
    if o.get("ss", 0):
        for k, g in ((2, 2), (3, 6), (6, 8), (7, 16)):
            a(f"s_cmp_lg_u32 m0, {g*4096}"); a(f"s_cbranch_scc1 L_ss{k}"); stamp(k, True); a(f"L_ss{k}:")
    if RO != [0]:
        a(f"s_and_b32 s49, m0, 0x7fff")
        a(f"s_cbranch_scc1 L_ls")
        round_base("m0", 15)
    a(f"s_cmp_lg_u32 m0, {RS*32768}")
    a(f"s_cbranch_scc1 L_ls")
    a(f"v_mov_b32 v8, {(32*RS + js - D - 3)//4}")
    a(f"s_mov_b32 {sR}, {RS-1}")
    a(f"s_add_u32 s8, s8, {sT[0]}")
    a(f"s_addc_u32 s9, s9, 0")
    a(f"s_mov_b32 {sSpin}, 0x100000")
    a(f"v_min_u32 v9, 8, {vL}")
    a(f"v_lshl_add_u32 v9, v9, 2, {vF}", "lanes 0-7: done[], other lanes: idle-slot rate")
    a(f"v_mov_b32 v11, {RS - 4}")
    a(f"v_cmp_lt_u32 vcc, 7, {vL}")
    a(f"v_mov_b32 v14, {B0 if FB else 0}")
    a(f"v_mov_b32 v15, -1000")
    a(f"ds_write_b32 {vF}, v14 offset:{F_RATE}")
    a(f"v_cndmask_b32 v11, v11, v15, vcc")
    a(f"v_cndmask_b32 v10, v10, v14, vcc")
    a(f"s_mov_b32 {sAcc}, 0")
    if STAMP == 1: a("s_mov_b32 s79, 0")
    a(f"s_branch L_ld1")
    a("L_ld:")
    pair_body(D, js, FB, "m")
    a(f"s_sub_u32 {sCnt}, {sCnt}, 1")
    a(f"s_cbranch_scc0 L_ld")
    a("L_ld1:")
    a(f"s_bitset0_b32 m0, 17")
    a(f"s_add_u32 {sR}, {sR}, 1")
    a(f"v_add_u32 v11, 1, v11")
    if RO != [0]: round_base(sR, 0)
    marks = []
    if STAMP == 1: marks = list(zip((1,2,3,6,7), str(o.get("marks", "4,5,6,8,16")).split(",")))
    if STAMP == 4: marks = [(1, o.get("m0", 99)), (2, o["m1"])]
    for k, rr in marks:
        a(f"s_cmp_lg_u32 {sR}, {rr}"); a(f"s_cbranch_scc1 L_mk{k}"); stamp(k, True); a(f"L_mk{k}:")
    a(f"s_and_b32 {sCnt}, {sR}, 31")
    a(f"s_cbranch_scc0 L_ldsw")
    a("L_ldck:")
    a("s_waitcnt lgkmcnt(0)")
    a(f"v_cmp_lt_i32 vcc, v10, v11", "ring space: every consumer has finished round R-4 (values read one round ago)")
    a(f"s_cbranch_vccnz L_ldslow")
    a(f"s_mov_b32 {sCnt}, 3")
    if FB:
        a(f"v_readlane_b32 {sInc}, v10, 8")
        if STAMP == 1: a(f"s_lshr_b32 s48, {sInc}, 4"); a(f"s_add_u32 s79, s79, s48")
        a(f"s_cmp_lt_u32 {sR}, 63")
        a(f"s_cselect_b32 {sInc}, {sInc}, 0")
        a(f"s_lshl_b32 {sInc}, {sInc}, 24")
    a(f"ds_read_b32 v10, v9 offset:{F_DONE}")
    a(f"s_branch L_ld")
    a("L_ldslow:")
    a(f"ds_read_b32 v10, v9 offset:{F_DONE}")
    if BOUND or STAMP == 1:
        a(f"s_sub_u32 {sSpin}, {sSpin}, 1")
        a(f"s_cbranch_scc1 L_end")
    a("s_branch L_ldck")
    a("L_ldsw:")
    a(f"s_cmp_eq_u32 {sR}, 64")
    a(f"s_cbranch_scc1 L_drain")
    a(f"s_mov_b32 s36, s8", "switch to V (stored unswizzled)")
    a(f"s_mov_b32 s37, s9")
    a(f"s_mov_b32 {sOff}, 0")
    a(f"s_mov_b32 {sSrc}, {sX}")
    for j in range(4): a(f"v_lshlrev_b32 v{4+j}, 4, {vL}")
    stamp(4)
    a("s_branch L_ldck")
    a("L_drain:")
    a.c("set up the final stage while the last loads land: lane l owns output column 2*(l&7) + (l>>5)")
    a(f"v_and_b32 v21, 7, {vL}")
    a(f"v_lshrrev_b32 v22, 5, {vL}")
    a(f"v_lshl_add_u32 v21, v21, 1, v22")
    a(f"v_lshl_add_u32 v22, v21, 2, {vF}")
    a(f"ds_read_b32 v17, {vF} offset:{F_TAG}")
    a(f"ds_read_b32 v18, v22 offset:{L_FIN - L_FL}")
    a(f"ds_read_b32 v19, v22 offset:{L_FIN - L_FL + 64}")
    a(f"s_lshl_b32 {sT[0]}, s2, 5")
    a(f"v_lshl_add_u32 v20, v21, 1, {sT[0]}", "byte offset in out")
    a(f"s_lshl_b32 {sT[0]}, s2, 12")
    a(f"s_add_u32 s56, s28, {sT[0]}", "inbox of this workgroup: 32 producers x 128 bytes")
    a(f"s_addc_u32 s57, s29, 0")
    a(f"s_movk_i32 s58, 4096")
    a(f"s_mov_b32 s59, 0x20000")
    a(f"s_mov_b32 {sHI}, 0xffff0000")
    a(f"s_mov_b64 s[44:45], -1")
    a(f"s_mov_b64 s[46:47], -1")
    pub = (2044 + js - D - 3)//4 + 1
    while pub < 512:
        pub += 1
        a(f"s_waitcnt vmcnt({2048 - 4*pub})")
        a("v_add_u32 v8, 1, v8"); a(f"ds_write_b32 {vF}, v8")
    stamp(5)
    sets = [(32, "s[44:45]"), (48, "s[46:47]")][:PP]
    def pissue(base):
        for i in range(4): a(f"buffer_load_dwordx4 v[{base+4*i}:{base+4*i+3}], v4, {W2}, 0 offen offset:{1024*i} {o.get('plp', 'sc1')}")
    if DRY == 2: a("s_cbranch_execz L_fin0")
    pissue(32)
    a("s_waitcnt lgkmcnt(0)")
    a("s_barrier", "pairs with the consumers' barrier before the output projection")
    if PP == 2: pissue(48)
    if STAMP == 1: a("s_mov_b32 s88, 0")
    a("L_poll:")
    for k, (base, m) in enumerate(sets):
        if STAMP == 1: a("s_add_u32 s88, s88, 1")
        a(f"s_waitcnt vmcnt({4*(PP-1)})")
        a(f"s_mov_b64 exec, {m}")
        for i in range(8): a(f"v_cmpx_eq_u32 vcc, v17, v{base+1+2*i}")
        a(f"s_andn2_b64 {m}, {m}, exec", "lanes whose four 16-byte pieces are not all this launch's yet")
        a(f"s_cbranch_scc0 L_got{k}")
        a(f"s_mov_b64 exec, {m}")
        if o.get("psl", 0): a(f"s_sleep {o['psl']}")
        pissue(base)
    a(f"s_sub_u32 {sSpin}, {sSpin}, 16")
    a(f"s_cbranch_scc0 L_poll")
    a("s_endpgm")
    for k, (base, m) in reversed(list(enumerate(sets))):
        a(f"L_got{k}:")
        a(f"s_mov_b64 exec, -1")
        if k == 0: a("L_fin0:")
        tstamp(4)
        a(f"v_add_f32 v24, v{base}, v{base+8}"); a(f"v_add_f32 v25, v{base+2}, v{base+10}")
        a(f"v_add_f32 v26, v{base+4}, v{base+12}"); a(f"v_add_f32 v27, v{base+6}, v{base+14}")
        if k: a("s_branch L_fin1")
    a("L_fin1:")
    a("v_add_f32 v24, v24, v26"); a("v_add_f32 v25, v25, v27")
    a("s_nop 1")
    a("v_permlane32_swap_b32 v24, v25")
    a("v_add_f32 v24, v24, v25")
    a("v_mov_b32 v25, v24"); a("s_nop 1")
    a("v_permlane16_swap_b32 v24, v25")
    a("v_add_f32 v24, v24, v25")
    a("s_nop 1")
    a(f"v_add_f32_dpp v24, v24, v24 row_ror:8 {FULL}")
    rbf("v24")
    a("v_add_f32 v24, v18, v24", "x + attention")
    rbf("v24")
    a("v_add_f32 v24, v24, v19", "+ mixer")
    a("v_cvt_pk_bf16_f32 v24, v24, v24")
    if DRY: a("s_cbranch_execz L_dryret")
    a("s_mov_b32 exec_lo, 0xff")
    a("s_mov_b32 exec_hi, 0xff")
    a(f"global_store_short v20, v24, s[24:25]")
    a(f"s_and_b32 {sT[0]}, s2, 31")
    a(f"s_cbranch_scc1 L_fin")
    a(f"s_lshl_b32 {sT[0]}, s2, 3")
    a(f"s_add_u32 {sT[0]}, {sT[0]}, {hex(WS_EPOCH)}")
    a(f"v_mov_b32 v16, {sT[0]}")
    a(f"s_mov_b64 exec, 1")
    a(f"global_store_dword v16, v17, s[28:29]", "next launch's tag differs from this one")
    a("s_branch L_fin")

    a("L_cons:")
    if HS:
        a(f"v_mov_b32 {vF}, {L_FL}")
        a(f"v_lshl_add_u32 v9, {vL}, 2, {vF}")
        a(f"v_mov_b32 v10, 0")
        a(f"ds_write_b32 v9, v10", "every consumer clears the flag block before the barrier")
        a(f"s_sub_u32 {sW}, {sW}, 1")
    a(f"s_lshr_b32 {sB}, s2, 5")
    a(f"s_and_b32 {sH}, s2, 31")
    a(f"s_mov_b32 {sHI}, 0xffff0000")
    a(f"s_mov_b32 s59, 0x20000")
    a(f"s_lshl_b32 {sT[0]}, {sB}, 10")
    a(f"v_lshlrev_b32 v8, 4, {vL}")
    if BOUND: a(f"s_mov_b32 {sSpin}, 0x100000")
    if HS: a("s_waitcnt lgkmcnt(0)")
    a(f"s_add_u32 s4, s4, {sT[0]}")
    a(f"s_addc_u32 s5, s5, 0")
    a(f"global_load_dwordx4 v[4:7], v8, s[4:5]", "x[b][8l..8l+7]")
    npre = 0
    IPF = o.get("ipf", 2)
    if IPF == 1:
        a(f"s_getpc_b64 s[46:47]")
        a("L_pc:")
        a(f"s_lshl_b32 {sT[0]}, {sW}, 10")
        a(f"v_add_u32 v9, {sT[0]}, v8")
        a(f"v_min_u32 v9, L_end-L_pc-12, v9")
        a(f"global_load_dwordx4 v[16:19], v9, s[46:47]")
    if IPF == 2:
        a.c("pull this kernel's code towards L2: one dword per 32 bytes, 2 KiB per wave")
        a(f"s_getpc_b64 s[46:47]")
        a("L_pc:")
        a(f"s_sub_u32 s46, s46, L_pc-L_ld")
        a(f"s_subb_u32 s47, s47, 0")
        a(f"s_lshl_b32 {sT[0]}, {sW}, 11")
        a(f"v_lshl_add_u32 v9, {vL}, 5, {sT[0]}")
        a(f"v_min_u32 v9, L_end-L_ld, v9")
        a(f"global_load_dword v16, v9, s[46:47]")
    a.c("wq rows 64w + 8*((j>>1)^w) + 2r + (j&1), columns 128h + 8c")
    a(f"s_lshl_b32 {sT[0]}, {sW}, 19")
    a(f"s_lshl_b32 {sT[1]}, {sH}, 8")
    a(f"s_add_u32 {sT[0]}, {sT[0]}, {sT[1]}")
    a(f"s_add_u32 s36, s10, {sT[0]}")
    a(f"s_addc_u32 s37, s11, 0")
    a(f"s_sub_u32 s38, 0x400000, {sT[0]}")
    QM = o.get("qm", 1)
    a(f"v_lshlrev_b32 v9, {14 if QM == 1 else 15}, {vRow}")
    a(f"v_lshl_add_u32 v9, {vCol}, 4, v9")
    if QM == 1: a(f"s_lshl_b32 {sT[2]}, {sW}, 16")
    else:
        a(f"s_lshl_b32 {sT[2]}, {sW}, 16")
        a(f"s_and_b32 {sT[2]}, {sT[2]}, 0x60000")
        a(f"s_lshl_b32 {sT[3]}, {sW}, 14")
        a(f"s_and_b32 {sT[3]}, {sT[3]}, 0x4000")
        a(f"s_or_b32 {sT[2]}, {sT[2]}, {sT[3]}")
    def wslot(j): return f"v[{WREG+4*j}:{WREG+4*j+3}]"
    def wqload(j):
        a(f"s_xor_b32 {sT[3]}, {sT[2]}, {((j >> 1) * 8 + (j & 1)) * 8192 if QM == 1 else ((j >> 2) * 16 + (j & 3)) * 8192}")
        a(f"buffer_load_dwordx4 {wslot(j)}, v9, {R}, {sT[3]} offen {o.get('wqpol', 'nt')}")
    if FB:
        a(f"s_mov_b32 {sT[4]}, {hex(WS_EPOCH)}")
        a(f"s_load_dword {sTg}, s[28:29], {sT[4]}")
    a.c("this workgroup's eighth of the head's wo slice -> L2 (the slice itself is read later)")
    if o.get("opf", 1):
        a(f"s_lshl_b32 {sT[5]}, {sH}, 17")
        a(f"s_lshl_b32 {sT[6]}, {sW}, 10")
        a(f"s_add_u32 {sT[5]}, {sT[5]}, {sT[6]}")
        a(f"s_and_b32 {sT[6]}, {sB}, 4")
        a(f"s_add_u32 {sT[6]}, {sT[6]}, {sB}")
        a(f"s_lshl_b32 {sT[6]}, {sT[6]}, 13")
        a(f"s_add_u32 {sT[5]}, {sT[5]}, {sT[6]}")
        a(f"v_add_u32 v11, {sT[5]}, v8")
        if HS: a("s_barrier")
        a(f"global_load_dwordx4 v[160:163], v11, s[12:13]")
        a(f"v_add_u32 v11, 0x8000, v11")
        a(f"global_load_dwordx4 v[164:167], v11, s[12:13]")
    else:
        a(f"s_lshl_b32 {sT[5]}, {sH}, 17")
        a(f"s_lshl_b32 {sT[6]}, {sW}, 14")
        a(f"s_add_u32 {sT[5]}, {sT[5]}, {sT[6]}")
        a(f"s_lshl_b32 {sT[6]}, {sB}, 7")
        a(f"s_add_u32 {sT[5]}, {sT[5]}, {sT[6]}")
        a(f"v_lshrrev_b32 v11, 3, {vL}")
        a(f"v_and_b32 v10, 7, {vL}")
        a(f"v_lshl_add_u32 v10, v10, 4, {sT[5]}")
        a(f"v_lshl_add_u32 v11, v11, 10, v10")
        if HS: a("s_barrier")
        a(f"global_load_dwordx4 v[160:163], v11, s[12:13]")
        a(f"v_add_u32 v11, 0x2000, v11")
        a(f"global_load_dwordx4 v[164:167], v11, s[12:13]")
    QPF = o.get("qpf", 0)
    if QPF:
        a(f"s_lshl_b32 {sT[3]}, {sB}, 16")
        a(f"buffer_load_dwordx4 v[152:155], v9, {R}, {sT[3]} offen")
        a(f"s_add_u32 {sT[3]}, {sT[3]}, 8192")
        a(f"buffer_load_dwordx4 v[156:159], v9, {R}, {sT[3]} offen")
    for j in range(WQS): wqload(j)
    a(f"s_waitcnt vmcnt({WQS + 2 + 2*QPF})")
    stamp(1)
    X = [f"v{16+i}" for i in range(8)]
    def unpack(src4):
        for i in range(4):
            a(f"v_lshlrev_b32 {X[2*i]}, 16, v{src4+i}")
            a(f"v_and_b32 {X[2*i+1]}, {sHI}, v{src4+i}")
    def ln(sM, sD, write):
        a.c("LayerNorm statistics with the reference's bf16 roundings")
        a(f"v_add_f32 v24, {X[0]}, {X[1]}")
        for i in range(2, 8): a(f"v_add_f32 v24, v24, {X[i]}")
        wave_reduce("v_add_f32", "v24", sT[0])
        a("s_nop 1")
        a(f"v_mov_b32 v25, {sT[0]}")
        a(f"v_mul_f32 v25, {hex(f2u(1.0/512))}, v25")
        a(f"v_sub_f32 v26, {X[0]}, v25")
        a(f"v_mul_f32 v24, v26, v26")
        for i in range(1, 8):
            a(f"v_sub_f32 v26, {X[i]}, v25"); a(f"v_fmac_f32 v24, v26, v26")
        wave_reduce("v_add_f32", "v24", sT[0])
        rbf("v25")
        a(f"v_mov_b32 v24, {sT[0]}")
        a(f"v_mul_f32 v24, {hex(f2u(1.0/512))}, v24")
        rbf("v24")
        a(f"v_add_f32 v24, {hex(f2u(1e-5))}, v24")
        rbf("v24")
        a(f"v_sqrt_f32 v24, v24")
        a("s_nop 0")
        rbf("v24")
        a(f"v_rcp_f32 v24, v24")
        a(f"v_readfirstlane_b32 {sM}, v25")
        a(f"v_readfirstlane_b32 {sD}, v24")
        if write:
            for i in range(8): a(f"v_sub_f32 {X[i]}, {X[i]}, v25")
            for i in range(4): a(f"v_cvt_pk_bf16_f32 v{4+i}, {X[2*i]}, {X[2*i+1]}")
            unpack(4)
            for i in range(8): a(f"v_mul_f32 {X[i]}, {X[i]}, v24")
            for i in range(4): a(f"v_cvt_pk_bf16_f32 v{4+i}, {X[2*i]}, {X[2*i+1]}")
    unpack(4)
    ln(sM1, sD1, True)
    a(f"v_add_u32 v8, {L_XN}, v8")
    a(f"ds_write_b128 v8, v[4:7]", "packed xn (every wave writes the same bytes)")
    if QM == 1: a(f"s_mul_i32 {sT[0]}, {sW}, 144")
    else:
        a(f"s_lshr_b32 {sT[0]}, {sT[2]}, 12")
        a(f"s_lshl_b32 {sT[1]}, {sW}, 7")
        a(f"s_add_u32 {sT[0]}, {sT[0]}, {sT[1]}")
    a(f"s_add_u32 {sT[0]}, {sT[0]}, {L_XN}")
    a(f"v_lshl_add_u32 v8, {vRow}, {2 if QM == 1 else 3}, {sT[0]}")
    assert L_XN % 128 == 0
    for i in range(8):
        if i: a(f"v_xor_b32 v10, {16*i if QM == 1 else 32*(i >> 1) + 4*(i & 1)}, v8")
        a(f"ds_read_b32 v{QF+i}, {'v10' if i else 'v8'}")
    for i in range(8): a(f"v_mov_b32 {ACC[i]}, 0")
    nissued = WQS + WQ2
    for j in range(WQS, nissued): wqload(j)
    def preread(n):
        a.c(f"take K granule {n} of this wave out of the ring early: frees a round for the loader")
        if n: a(f"v_add_u32 v12, 0x8000, v12")
        for t in range(1, 4): a(f"v_xor_b32 v{19+t}, {64*t}, v12")
        a(f"s_add_u32 {sT[4]}, {sW}, {8*n}")
        spin(F_LAND, "s_cmp_gt_i32", sT[4], "v14", sT[0])
        a(f"ds_read_b128 v[{ST[n]}:{ST[n]+3}], v12")
        for t in range(1, 4): a(f"ds_read_b128 v[{ST[n]+4*t}:{ST[n]+4*t+3}], v{19+t}")
        a(f"v_mov_b32 v14, {n+1}")
        a("s_waitcnt lgkmcnt(0)")
        a(f"ds_write_b32 v13, v14 offset:{F_DONE}")
    a(f"v_xor_b32 v12, {vRow}, {vCol}")
    a(f"v_lshlrev_b32 v12, 4, v12")
    a(f"v_lshl_add_u32 v12, {vCol}, 8, v12")
    a(f"s_lshl_b32 {sT[0]}, {sW}, 12")
    a(f"v_add_u32 v12, {sT[0]}, v12")
    a(f"s_lshl_b32 {sT[0]}, {sW}, 2")
    a(f"v_add_u32 v13, {sT[0]}, {vF}")
    preread(0)
    a.c("q projection: acc[col] += xn[row] * wq[row][col]")
    for j in range(16):
        for n in range(1, PRE):
            if PJ[n-1] == j: preread(n)
        src = f"v{QF + j//2}"
        if j % 2 == 0: a(f"v_and_b32 v10, 0xffff, {src}"); a(f"v_lshlrev_b32 v11, 16, {src}")
        else: a(f"v_lshrrev_b32 v10, 16, {src}"); a(f"v_and_b32 v11, {sHI}, {src}")
        a(f"s_waitcnt vmcnt({nissued - j - 1})")
        while nissued < 16 and nissued - j - 1 < WQ2:
            wqload(nissued); nissued += 1
        for i in range(4):
            a(f"v_dot2c_f32_bf16 {ACC[2*i]}, v10, v{WREG+4*j+i}")
            a(f"v_dot2c_f32_bf16 {ACC[2*i+1]}, v11, v{WREG+4*j+i}")
    stamp(2)
    vPW, vPR = "v15", "v14"
    a(f"s_mul_i32 {sT[0]}, {sW}, 528")
    a(f"s_add_u32 {sT[0]}, {sT[0]}, {L_QP}")
    a(f"v_lshl_add_u32 {vPW}, {vCol}, 5, {sT[0]}")
    a(f"v_lshl_add_u32 {vPW}, {vRow}, 3, {vPW}")
    rows_reduce8(vPW)
    arrive(F_ARRQ)
    for i in range(4): a(f"v_mov_b32 v{160+i}, v{4+i}", "keep xn for the second LayerNorm" if i == 0 else None)
    a(f"v_lshlrev_b32 {vPR}, 3, {vL}")
    a(f"v_add_u32 {vPR}, {L_QP}, {vPR}")
    spin(F_ARRQ, "s_cmp_ge_u32", 8, "v10", sT[0])
    sum8(WREG, vPR)
    a(f"v_lshlrev_b32 v10, 2, {vL}")
    a(f"v_add_u32 v10, {L_XN}, v10")
    a(f"ds_write_b32 v10, v{WREG}", "packed q (xn is dead: every wave has arrived)")
    a(f"v_lshlrev_b32 v10, 4, {vRow}")
    a(f"v_add_u32 v10, {L_XN}, v10")
    for t in range(4): a(f"ds_read_b128 v[{QF+4*t}:{QF+4*t+3}], v10 offset:{64*t}", "MFMA A fragments of q" if t == 0 else None)
    vH, vMA, vC0, vXr = "v138", "v139", "v140", "v145"
    a(f"s_mov_b32 {sL2E}, {hex(f2u(l2e))}")
    a(f"s_mov_b32 {sK}, {hex(f2u(128 ** -0.5))}")
    vKA, vSA, vDA, vM, vLs, vDn = "v4", "v5", "v6", "v7", "v8", "v9"
    a(f"v_add_u32 {vKA}, 0xffff0000, v12")
    a(f"s_lshl_b32 {sT[0]}, {sW}, 6")
    a(f"s_add_u32 {sT[0]}, {sT[0]}, {L_SC}")
    a(f"v_lshl_add_u32 {vSA}, {vCol}, 2, {sT[0]}")
    a(f"v_mov_b32 {vDA}, v13")
    a(f"v_mov_b32 {vM}, 0xff7fffff")
    a(f"v_mov_b32 {vLs}, 0")
    a(f"v_mov_b32 {vDn}, 0")
    a(f"s_mov_b32 {sG}, {sW}")
    a(f"s_mov_b32 {sR}, 0")
    a.c("wo: rows 128h + 32r + 2j + e, columns 64w + 4c")
    a(f"s_lshl_b32 {sT[0]}, {sH}, 17")
    a(f"s_add_u32 s36, s12, {sT[0]}")
    a(f"s_addc_u32 s37, s13, 0")
    a(f"s_mov_b32 s38, {o.get('won', 0x20000)}")
    vWO = "v164"
    a(f"s_lshl_b32 {sT[0]}, {sW}, 7")
    a(f"v_lshl_add_u32 {vWO}, {vCol}, 3, {sT[0]}")
    a(f"v_lshl_add_u32 {vWO}, {vRow}, 15, {vWO}")
    a(f"s_add_u32 {sOff}, {sW}, {WMR}")
    if FB:
        a(f"s_mul_i32 {sTg}, {sTg}, 1664525")
        a(f"s_add_u32 {sTg}, {sTg}, 1013904223")
    if o.get("bi", 0): a("s_mov_b32 s11, 0")
    stamp(3)
    a("s_waitcnt lgkmcnt(0)")
    a("s_branch L_kmid")
    a("L_kst:")
    for n in range(1, PRE):
        for i in range(16): a(f"v_mov_b32 v{ST[n-1]+i}, v{ST[n]+i}")
    a("s_branch L_kmid")
    a("L_k:")
    a(f"s_cmp_lt_u32 {sR}, {PRE}")
    a(f"s_cbranch_scc1 L_kst")
    for t in range(1, 4): a(f"v_xor_b32 v{10+t}, {64*t}, {vKA}")
    spin(F_LAND, "s_cmp_gt_i32", sG, "v10", sT[0])
    a(f"ds_read_b128 v[{DT}:{DT+3}], {vKA}")
    for t in range(1, 4): a(f"ds_read_b128 v[{DT+4*t}:{DT+4*t+3}], v{10+t}")
    a("L_kmid:")
    a(f"v_add_u32 {vDn}, 1, {vDn}")
    a(f"v_add_u32 {vKA}, 0x8000, {vKA}")
    a(f"v_and_b32 {vKA}, 0x1ffff, {vKA}")
    for t in range(4):
        a(f"s_waitcnt lgkmcnt({3-t})")
        a(f"v_mfma_f32_16x16x32_bf16 v[16:19], v[{QF+4*t}:{QF+4*t+3}], v[{DT+4*t}:{DT+4*t+3}], {'0' if t == 0 else 'v[16:19]'}")
    a(f"v_max_u32 v10, {PRE}, {vDn}")
    a(f"ds_write_b32 {vDA}, v10 offset:{F_DONE}")
    a(f"s_add_u32 {sG}, {sG}, 8")
    a(f"s_nop 4")
    rbf("v16")
    a(f"v_mul_f32 v16, {sK}, v16")
    rbf("v16")
    a(f"ds_write_b32 {vSA}, v16", "score of key l&15 of this granule")
    a(f"v_max_f32 v17, {vM}, v16", "running max / sum per lane")
    a(f"v_sub_f32 v18, {vM}, v17")
    a(f"v_sub_f32 v16, v16, v17")
    a(f"v_mul_f32 v18, {sL2E}, v18")
    a(f"v_mul_f32 v16, {sL2E}, v16")
    a(f"v_exp_f32 v18, v18")
    a(f"v_exp_f32 v16, v16")
    a(f"v_mov_b32 {vM}, v17")
    a(f"v_add_u32 {vSA}, 512, {vSA}")
    a(f"v_fma_f32 {vLs}, {vLs}, v18, v16")
    if FG0 < 256: ctl("k")
    a.c("wo slice trickles in, one row pair at a time")
    for j in range(16):
        rr = WOR + j * WOM // WOD
        a(f"s_cmp_lg_u32 {sR}, {rr}")
        a(f"s_cbranch_scc1 L_wo{j}")
        a(f"s_movk_i32 {sT[1]}, {2048*j}")
        a(f"buffer_load_dwordx2 v[{WREG+4*j}:{WREG+4*j+1}], {vWO}, {R}, {sT[1]} offen nt")
        a(f"buffer_load_dwordx2 v[{WREG+4*j+2}:{WREG+4*j+3}], {vWO}, {R}, {sT[1]} offen offset:1024 nt")
        a(f"L_wo{j}:")
    a(f"s_cmp_lg_u32 {sR}, {sOff}")
    a(f"s_cbranch_scc1 L_nomx")
    a.c("mixer operands: lane (r,c) handles d = 16h + c and hidden pairs (4w+r)*28 + {c, 14+c}")
    a(f"s_lshl_b32 {sT[0]}, {sH}, 5")
    a(f"v_lshl_add_u32 v11, {vCol}, 1, {sT[0]}")
    a(f"global_load_ushort {vH}, v11, s[4:5]")
    a(f"s_mul_i32 {sT[0]}, {sW}, 448")
    a(f"v_mul_u32_u24 v11, 112, {vRow}")
    a(f"v_lshl_add_u32 v11, {vCol}, 2, v11")
    a(f"v_add_u32 v11, {sT[0]}, v11")
    a(f"v_cmp_lt_u32 vcc, 13, {vCol}")
    a(f"v_mov_b32 v12, 0x10000")
    a(f"s_movk_i32 s58, 3584")
    a(f"v_cndmask_b32 v11, v11, v12, vcc", "lanes 14,15 read out of range -> 0")
    for k, p in enumerate([16, 18, 20]):
        a(f"s_mov_b32 s56, s{p}"); a(f"s_mov_b32 s57, s{p+1}")
        for s_ in range(2):
            a(f"buffer_load_dword v{MX + 5*s_ + (1,3,4)[k]}, v11, {W2}, 0 offen offset:{56*s_}")
    a(f"v_mov_b32 v12, 0")
    a(f"global_load_ushort v146, v12, s[22:23]", "b2")
    a(f"s_lshl_b32 {sT[0]}, {sB}, 8")
    a(f"s_add_u32 {sT[0]}, {sT[0]}, {hex(WS_EPOCH)}")
    a(f"s_load_dword {sE}, s[28:29], {sT[0]}", "whatever the batch's tag word holds on entry")
    a("L_nomx:")
    a(f"s_cmp_lg_u32 {sR}, 15")
    a(f"s_cbranch_scc1 L_noms")
    unpack(160)
    ln(sM2, sD2, False)
    a("s_waitcnt vmcnt(0)")
    a(f"v_lshlrev_b32 {vH}, 16, {vH}")
    a(f"v_mov_b32 {vXr}, {vH}")
    a(f"v_subrev_f32 {vH}, {sM1}, {vH}"); rbf(vH)
    a(f"v_mul_f32 {vH}, {sD1}, {vH}"); rbf(vH)
    a(f"v_subrev_f32 {vH}, {sM2}, {vH}"); rbf(vH)
    a(f"v_mul_f32 {vH}, {sD2}, {vH}"); rbf(vH)
    for s_ in range(2):
        b = MX + 5*s_
        a(f"v_lshlrev_b32 v{b}, 16, v{b+1}"); a(f"v_and_b32 v{b+1}, {sHI}, v{b+1}")
        a(f"v_lshlrev_b32 v{b+2}, 16, v{b+3}"); a(f"v_and_b32 v{b+3}, {sHI}, v{b+3}")
    kb = math.sqrt(2.0/math.pi)
    a(f"v_mov_b32 {vC0}, {hex(f2u(-2*kb*l2e))}")
    a(f"s_mov_b32 {sC1}, {hex(f2u(-2*kb*l2e*0.044715))}")
    a(f"v_mov_b32 {vMA}, 0")
    a("L_noms:")
    a(f"s_cmp_lt_u32 {sR}, 16")
    a(f"s_cbranch_scc1 L_nomix")
    a.c("mixer: gelu_tanh(u) = u / (1 + exp(-2 z)), two hidden pairs per round")
    BC = "row_newbcast:0 " + FULL
    for s_ in range(2):
        b = MX + 5*s_
        a(f"v_mul_f32_dpp v16, v{b}, {vH} {BC}"); a(f"v_mul_f32_dpp v17, v{b+1}, {vH} {BC}")
        a(f"v_cvt_pk_bf16_f32 v17, v16, v17")
        a(f"v_lshlrev_b32 v16, 16, v17"); a(f"v_and_b32 v17, {sHI}, v17")
        a(f"v_add_f32_dpp v16, v{b+2}, v16 {BC}"); a(f"v_add_f32_dpp v17, v{b+3}, v17 {BC}")
        a(f"v_cvt_pk_bf16_f32 v17, v16, v17")
        a(f"v_lshlrev_b32 v16, 16, v17"); a(f"v_and_b32 v17, {sHI}, v17")
        a(f"v_mul_f32 v18, v16, v16"); a(f"v_mul_f32 v19, v17, v17")
        a(f"v_fma_f32 v18, v18, {sC1}, {vC0}"); a(f"v_fma_f32 v19, v19, {sC1}, {vC0}")
        a(f"v_mul_f32 v18, v18, v16"); a(f"v_mul_f32 v19, v19, v17")
        a(f"v_exp_f32 v18, v18"); a(f"v_exp_f32 v19, v19")
        a(f"v_mov_b32_dpp v{b}, v{b} row_ror:15 {FULL}")
        a(f"v_add_f32 v18, 1.0, v18"); a(f"v_add_f32 v19, 1.0, v19")
        a(f"v_rcp_f32 v18, v18"); a(f"v_rcp_f32 v19, v19")
        a(f"v_mov_b32_dpp v{b+1}, v{b+1} row_ror:15 {FULL}")
        a(f"v_mul_f32 v18, v18, v16"); a(f"v_mul_f32 v19, v19, v17")
        a(f"v_cvt_pk_bf16_f32 v18, v18, v19")
        a(f"v_mov_b32_dpp v{b+2}, v{b+2} row_ror:15 {FULL}")
        a(f"v_mov_b32_dpp v{b+3}, v{b+3} row_ror:15 {FULL}")
        a(f"v_dot2c_f32_bf16_dpp {vMA}, v{b+4}, v18 {BC}")
        a(f"v_mov_b32_dpp v{b+4}, v{b+4} row_ror:15 {FULL}")
    a("L_nomix:")
    a(f"s_add_u32 {sR}, {sR}, 1")
    a(f"s_cmp_lt_u32 {sR}, 32")
    a(f"s_cbranch_scc1 L_k")
    a.c("---- softmax statistics: per-wave (max, sum), then over the 8 waves ----")
    a(f"v_mov_b32 v16, {vM}")
    allreduce("v_max_f32", "v16", 4)
    a(f"v_sub_f32 v17, {vM}, v16")
    a(f"v_mul_f32 v17, {sL2E}, v17")
    a(f"v_exp_f32 v17, v17")
    a(f"s_lshl_b32 {sT[0]}, {sW}, 3")
    a(f"v_add_u32 v18, {sT[0]}, {vF}")
    a(f"v_mul_f32 v17, v17, {vLs}")
    allreduce("v_add_f32", "v17", 4)
    a(f"ds_write_b64 v18, v[16:17] offset:{F_ML}")
    rows_sum(vMA, "v19")
    a(f"s_lshl_b32 {sT[0]}, {sW}, 6")
    a(f"s_add_u32 {sT[0]}, {sT[0]}, {L_BP}")
    a(f"v_lshl_add_u32 v19, {vCol}, 2, {sT[0]}")
    a(f"ds_write_b32 v19, {vMA}")
    arrive(F_ARRS)
    a.c("interleave the wo row pairs: (row 2j, row 2j+1) per column")
    a(f"s_mov_b32 {sT[0]}, 0x05040100")
    a(f"s_mov_b32 {sT[1]}, 0x07060302")
    a("s_waitcnt vmcnt(0)")
    for j in range(16):
        for i in range(2):
            r0 = WREG + 4*j + i; r1 = r0 + 2
            a(f"v_perm_b32 v16, v{r1}, v{r0}, {sT[0]}")
            a(f"v_perm_b32 v{r1}, v{r1}, v{r0}, {sT[1]}")
            a(f"v_mov_b32 v{r0}, v16")
    if DRY:
        a.c("walk the end-of-kernel code once with no lane active, so that it is in the instruction cache")
        a(f"s_mov_b64 exec, 0")
        a(f"s_branch L_tailb")
        a("L_dryret:")
        a(f"s_mov_b64 exec, -1")
    a.c("hand-off addresses: lane (r,c) ends with column 64w + 4c + r")
    vYA = "v13"
    a(f"s_lshl_b32 {sT[0]}, {sB}, 17")
    a(f"s_add_u32 s56, s28, {sT[0]}")
    a(f"s_addc_u32 s57, s29, 0")
    a(f"s_mov_b32 s58, 0x20000")
    a(f"s_lshl_b32 {sT[0]}, {sW}, 14")
    a(f"s_lshl_b32 {sT[1]}, {sH}, 7")
    a(f"s_add_u32 {sT[0]}, {sT[0]}, {sT[1]}")
    a(f"v_lshrrev_b32 v12, 2, {vCol}")
    a(f"v_lshl_add_u32 {vYA}, v12, 12, {sT[0]}")
    a(f"v_and_b32 v12, 3, {vCol}")
    a(f"v_lshl_add_u32 {vYA}, v12, 5, {vYA}")
    a(f"v_lshl_add_u32 {vYA}, {vRow}, 3, {vYA}")
    if o.get("stm", 2) == 4:
        a(f"v_and_b32 v12, 1, {vRow}")
        a(f"v_lshl_add_u32 {vYA}, v12, 17, {vYA}")
    a(f"s_mul_i32 {sE}, {sE}, 1664525", "this launch's tag: a full-period step away from the word found on entry")
    a(f"s_add_u32 {sE}, {sE}, 1013904223")
    spin(F_ARRS, "s_cmp_ge_u32", 8, "v10", sT[0])
    a(f"v_and_b32 v18, 7, {vL}")
    a(f"v_lshl_add_u32 v18, v18, 3, {vF}")
    a(f"ds_read_b64 v[16:17], v18 offset:{F_ML}")
    a(f"v_lshlrev_b32 v19, 2, {vL}")
    a(f"v_add_u32 v18, {L_BP}, v19")
    a(f"ds_read_b32 v20, v18")
    a(f"ds_read_b32 v21, v18 offset:256")
    a("s_waitcnt lgkmcnt(0)")
    a(f"v_mov_b32 {vM}, v16")
    allreduce("v_max_f32", vM, 3)
    a(f"v_sub_f32 v16, v16, {vM}")
    a(f"v_mul_f32 v16, {sL2E}, v16")
    a(f"v_exp_f32 v16, v16")
    a(f"v_add_f32 v20, v20, v21")
    a(f"v_mul_f32 {vLs}, v16, v17")
    allreduce("v_add_f32", vLs, 3)
    a(f"v_rcp_f32 {vLs}, {vLs}")
    rows_sum("v20", "v21")
    rbf("v20")
    a(f"v_lshlrev_b32 v146, 16, v146")
    a(f"v_add_f32 v20, v146, v20")
    rbf("v20")
    a(f"v_lshl_add_u32 v18, {vCol}, 2, {vF}")
    a(f"v_mov_b32 v19, {sE}")
    a(f"ds_write_b32 v18, {vXr} offset:{L_FIN - L_FL}", "operands of the final stage (all waves write the same values)")
    a(f"ds_write_b32 v18, v20 offset:{L_FIN - L_FL + 64}")
    a(f"ds_write_b32 {vF}, v19 offset:{F_TAG}")
    a(f"s_lshl_b32 {sT[0]}, {sW}, 12")
    a(f"v_lshl_add_u32 {vKA}, {vL}, 4, {sT[0]}")
    a(f"v_and_b32 {vSA}, 3, {vL}")
    a(f"v_lshl_add_u32 {vSA}, {vSA}, 2, {vRow}")
    a(f"s_lshl_b32 {sT[0]}, {sW}, 6")
    a(f"s_add_u32 {sT[0]}, {sT[0]}, {L_SC}")
    a(f"v_lshl_add_u32 {vSA}, {vSA}, 2, {sT[0]}")
    for i in range(8): a(f"v_mov_b32 {ACC[i]}, 0")
    Y = ["v48", "v50", "v51", "v52"]
    for y in Y: a(f"v_mov_b32 {y}, 0")
    a(f"v_mov_b32 v49, {sE}")
    stamp(4)
    a("s_branch L_v")
    a("L_vc:")
    ctl("v")
    if o.get("fg1", 440):
        fs1 = o.get("fs1", 2)
        ctl("w", FG0=o.get("fg1", 440), FP=o.get("fp1", 4), FS=fs1, FSA=o.get("fsa1", (7 * fs1) // 2 + 1), FEND=o.get("fend1", 490),
            BG=o.get("bg1", 50), B0=o.get("b01", B0), WS_MARK=WS_MARK + 0x100000)
    a("L_v:")
    a(f"ds_read_b32 v16, {vSA}")
    a(f"v_add_u32 {vSA}, 512, {vSA}")
    a(f"v_add_u32 {vDn}, 1, {vDn}")
    a("s_waitcnt lgkmcnt(0)")
    a(f"v_sub_f32 v16, v16, {vM}", "p = bf16(exp(s - max) / sum)")
    a(f"v_mul_f32 v16, {sL2E}, v16")
    a(f"v_exp_f32 v16, v16")
    a(f"s_nop 0")
    a(f"v_mul_f32 v16, v16, {vLs}")
    a(f"v_cvt_pk_bf16_f32 v16, v16, v16")
    a(f"v_lshrrev_b32 v17, 16, v16")
    a(f"v_and_b32 v16, {sHI}, v16")
    spin(F_LAND, "s_cmp_gt_i32", sG, "v10", sT[0])
    for t in range(4): a(f"ds_read_b128 v[{DT+4*t}:{DT+4*t+3}], {vKA} offset:{1024*t}")
    a(f"v_add_u32 {vKA}, 0x8000, {vKA}")
    a(f"v_and_b32 {vKA}, 0x1ffff, {vKA}")
    a(f"s_add_u32 {sG}, {sG}, 8")
    a(f"s_cmpk_lt_u32 {sG}, 512")
    for j in range(4):
        a(f"s_waitcnt lgkmcnt({3-j})")
        if j == 3: a(f"ds_write_b32 {vDA}, {vDn} offset:{F_DONE}")
        for i in range(4):
            a(f"v_dot2c_f32_bf16_dpp {ACC[2*i]}, v17, v{DT+4*j+i} quad_perm:[{j},{j},{j},{j}] {FULL}")
            a(f"v_dot2c_f32_bf16_dpp {ACC[2*i+1]}, v16, v{DT+4*j+i} quad_perm:[{j},{j},{j},{j}] {FULL}")
    a(f"s_cbranch_scc1 L_vc")
    stamp(5)
    a.c("---- o over rows and waves, output projection, hand-off ----")
    a("s_nop 1")
    rows_reduce8(vPW)
    a("s_waitcnt lgkmcnt(0)")
    a("s_barrier")
    a("L_tailb:")
    tstamp(1)
    sum8(DT, vPR)
    a("s_nop 1")
    tstamp(2)
    for j in range(16):
        for c in range(4):
            a(f"v_dot2c_f32_bf16_dpp {Y[c]}, v{DT}, v{WREG+4*j+(0,2,1,3)[c]} row_newbcast:{j} {FULL}")
    a("s_nop 1")
    a(f"v_permlane32_swap_b32 {Y[0]}, {Y[2]}")
    a(f"v_permlane32_swap_b32 {Y[1]}, {Y[3]}")
    a(f"v_add_f32 {Y[0]}, {Y[0]}, {Y[2]}")
    a(f"v_add_f32 {Y[1]}, {Y[1]}, {Y[3]}")
    STM = o.get("stm", 2); STP = o.get("stp", "sc1")
    if STM == 4:
        a(f"v_mov_b32 {Y[2]}, {Y[0]}"); a(f"v_mov_b32 {Y[3]}, {Y[1]}")
        a("s_nop 0")
        a(f"v_permlane16_swap_b32 {Y[0]}, {Y[2]}")
        a(f"v_permlane16_swap_b32 {Y[1]}, {Y[3]}")
        a(f"v_add_f32 {Y[0]}, {Y[0]}, {Y[2]}")
        a(f"v_add_f32 {Y[1]}, {Y[1]}, {Y[3]}")
        a(f"v_mov_b32 v51, v49")
    else:
        a("s_nop 1")
        a(f"v_permlane16_swap_b32 {Y[0]}, {Y[1]}")
        a(f"v_add_f32 {Y[0]}, {Y[0]}, {Y[1]}")
    if DRY: a(f"s_cbranch_execz {'L_drain' if DRY == 2 else 'L_fin0'}")
    if STM == 4: a(f"buffer_store_dwordx4 v[48:51], {vYA}, {W2}, 0 offen {STP}")
    elif STM == 2: a(f"buffer_store_dwordx2 v[48:49], {vYA}, {W2}, 0 offen {STP}", "{partial, tag} to the workgroup that owns the column")
    elif STM == 3: a(f"buffer_atomic_swap_x2 v[48:49], {vYA}, {W2}, 0 offen {STP}")
    if o.get("wb", 0): a("buffer_wbl2 sc1")
    tstamp(3)
    stamp(6); stamp(7)
    a("L_fin:")
    if STAMP: a(f"s_mov_b64 exec, -1")
    stamp(8)
    if STAMP in (4, 5):
        a("s_memrealtime s[72:73]")
        a("s_waitcnt lgkmcnt(0)")
        a(f"s_cmp_lg_u32 {sW}, {o.get('lw', -1)}"); a("s_cbranch_scc1 L_end")
        if "swg" in o: a(f"s_cmp_lg_u32 s2, {o['swg']}"); a("s_cbranch_scc1 L_end")
        a(f"s_sub_u32 s74, s{60+2*o['t1']}, s{60+2*o['t0']}")
        if o.get("avg", 0):
            a("L_hold:")
            a("s_memrealtime s[76:77]"); a("s_waitcnt lgkmcnt(0)"); a("s_sub_u32 s76, s76, s60")
            a(f"s_cmp_lt_u32 s76, 8500"); a("s_cbranch_scc1 L_hold")
            a("s_add_u32 s74, s74, 0x1000000")
            a("s_mov_b32 s75, s74")
            a("s_atomic_add s75, s[26:27], 0 glc")
            a("s_waitcnt lgkmcnt(0)")
            a("s_add_u32 s74, s74, s75")
            a("s_cbranch_scc0 L_end")
            a("s_lshr_b32 s74, s74, 8")
        a(f"s_sub_u32 s74, s74, {o.get('sub', 0)}")
        if o.get("neg", 0): a("s_sub_u32 s74, 0, s74")
        a(f"s_mul_i32 s74, s74, {o.get('amp', 10)}")
        a(f"s_add_u32 s74, s74, 10000"); a(f"s_min_u32 s74, s74, 100000")
        a("L_pin3:")
        a("s_memrealtime s[76:77]"); a("s_waitcnt lgkmcnt(0)"); a("s_sub_u32 s76, s76, s60")
        a(f"s_cmp_lt_u32 s76, s74"); a("s_cbranch_scc1 L_pin3")
    if STAMP == 1:
        a("s_waitcnt vmcnt(0) lgkmcnt(0)")
        a(f"s_mul_i32 {sT[0]}, s2, 9"); a(f"s_add_u32 {sT[0]}, {sT[0]}, {sW}"); a(f"s_add_u32 {sT[0]}, {sT[0]}, 1")
        a(f"s_lshl_b32 {sT[0]}, {sT[0]}, 7"); a(f"s_add_u32 {sT[0]}, {sT[0]}, 0x100000")
        a(f"v_mov_b32 v16, 0")
        for i in range(18): a(f"v_writelane_b32 v16, s{60+i}, {i}")
        a(f"s_getreg_b32 {sT[1]}, hwreg(HW_REG_XCC_ID)"); a(f"s_getreg_b32 {sT[2]}, hwreg(HW_REG_HW_ID)")
        a(f"v_writelane_b32 v16, {sT[1]}, 18"); a(f"v_writelane_b32 v16, {sT[2]}, 19")
        a(f"v_writelane_b32 v16, {sSpin}, 20"); a(f"v_writelane_b32 v16, s79, 21"); a(f"v_writelane_b32 v16, s88, 22")
        a(f"v_lshl_add_u32 v17, {vL}, 2, {sT[0]}")
        a(f"s_mov_b64 exec, 0xffffffff")
        a(f"global_store_dword v17, v16, s[28:29]")
    a("L_end:")
    a("s_endpgm")

    head = open("cdna_kernels/%s.s.ref" % NAME).read().split("; Override launch")[0]
    out = head + f"; @launch grid=(256,1,1) block=(576,1,1) lds={LDS_BYTES}\n"
    out += '.amdgcn_target "amdgcn-amd-amdhsa--gfx950"\n.text\n'
    out += f".globl {NAME}_kernel\n.p2align 8\n.type {NAME}_kernel,@function\n" + a.text()
    out += f""".section .rodata,"a"
.p2align 6
.amdhsa_kernel {NAME}_kernel
  .amdhsa_next_free_vgpr 168
  .amdhsa_next_free_sgpr 96
  .amdhsa_accum_offset 168
  .amdhsa_group_segment_fixed_size 0
  .amdhsa_kernarg_size 104
  .amdhsa_user_sgpr_count 2
  .amdhsa_user_sgpr_kernarg_segment_ptr 1
  .amdhsa_system_sgpr_workgroup_id_x 1
  .amdhsa_float_denorm_mode_32 3
.end_amdhsa_kernel
"""
    return out
if __name__ == "__main__":
    opts = {}
    for kv in sys.argv[2:]:
        k, v = kv.split("=")
        try: opts[k] = int(v, 0)
        except ValueError: opts[k] = v.replace("+", " ")
    open(sys.argv[1], "w").write(gen(opts))
```

```python
import sys, struct, math
NAME = "parallel_sum__mha_block_cached__mixer_token_mlp__decode"
def f2u(x): return struct.unpack("<I", struct.pack("<f", x))[0]
class Asm:
    def __init__(self): self.lines = []
    def __call__(self, s, c=None):
        s = s.strip()
        l = s if s.endswith(":") else "    " + s
        if c: l = l.ljust(72) + "; " + c
        self.lines.append(l)
    def c(self, s): self.lines.append("    ; " + s)
    def text(self): return "\n".join(self.lines) + "\n"

def gen(o):
    D = o.get("d", 26); DS = o.get("ds", 24); RS = o.get("rs", 4)
    STAMP = o.get("stamp", 0); TS = o.get("ts", 0)
    BOUND = o.get("bound", 0)
    FB = o.get("fb", 1)
    FP = o.get("fp", 8); FS = o.get("fs", 3); FG0 = o.get("fg0", 212); FR = o.get("frep", 8)
    FSA = o.get("fsa", (7 * FS) // 2 + 1); FEND = o.get("fend", 440)
    B0 = o.get("b0", 165); BG = o.get("bg", 36)
    WQS = o.get("wqs", 4); WQ2 = o.get("wq2", 4); PRE = 3
    PJ = [int(x) for x in str(o.get("pj", "6,11")).split(",")]
    WOR = o.get("wor", 6); WOM = o.get("wom", 3); WOD = o.get("wod", 2); WMR = 6
    DRY = o.get("dry", 2); PP = o.get("pp", 1)
    SP = o.get("sp", "nt")
    POL = o.get("pol", 1); WS_POL = 0x190000; F_PSUM, F_POL = 16, 20
    if POL: o["ib"] = 0
    a = Asm()
    FULL = "row_mask:0xf bank_mask:0xf"
    l2e = 1.0 / math.log(2.0)
    WS_EPOCH = 0x180000; WS_MARK = 0x200000
    sE, sL2E, sC1 = "s3", "s14", "s15"
    sB, sH, sW, sOff, sR, sG = "s30", "s31", "s32", "s33", "s34", "s35"
    R = "s[36:39]"; W2 = "s[56:59]"
    sM1, sD1, sM2, sD2 = "s40", "s41", "s42", "s43"
    sT = [f"s{44+i}" for i in range(8)]
    sHI, sB2, sSpin, sK, sTg = "s52", "s53", "s54", "s55", "s78"
    sCnt, sAcc, sInc, sSrc, sX = "s40", "s46", "s47", "s50", "s51"
    L_SC = 131072; L_QP = L_SC + 16384; L_XN = L_QP + 4352; L_BP = L_XN + 1024; L_FL = L_BP + 512
    F_LAND, F_ARRQ, F_ARRS, F_TAG, F_DONE, F_RATE, F_ML = 0, 4, 8, 12, 32, 64, 192
    L_FIN = L_FL + 256
    LDS_BYTES = L_FIN + 128
    vL, vRow, vCol, vF = "v0", "v1", "v2", "v3"
    WREG, QF, DT, MX = 64, 48, 32, 128
    ACC = [f"v{24+i}" for i in range(8)]
    ST = [DT, 128, 144]
    nlab = [0]
    def lab(p): nlab[0] += 1; return f"L_{p}{nlab[0]}"
    def stamp(i, force=False):
        if STAMP == 1 or (STAMP >= 4 and i in (0, 5)) or force: a(f"s_memrealtime s[{60+2*i}:{61+2*i}]")
    def tstamp(i):
        if TS: a(f"s_memrealtime s[{60+2*i}:{61+2*i}]")
    def wave_reduce(op, v, sdst):
        for ctl in ["quad_perm:[1,0,3,2] "+FULL, "quad_perm:[2,3,0,1] "+FULL, "row_half_mirror "+FULL, "row_mirror "+FULL,
                    "row_bcast:15 row_mask:0xa bank_mask:0xf", "row_bcast:31 row_mask:0xc bank_mask:0xf"]:
            a("s_nop 1"); a(f"{op}_dpp {v}, {v}, {v} {ctl}")
        a("s_nop 1"); a(f"v_readlane_b32 {sdst}, {v}, 63")
    def allreduce(op, v, steps):
        for ctl in ["quad_perm:[1,0,3,2]", "quad_perm:[2,3,0,1]", "row_half_mirror", "row_mirror"][:steps]:
            a("s_nop 1"); a(f"{op}_dpp {v}, {v}, {v} {ctl} {FULL}")
    def rbf(v):
        a(f"v_cvt_pk_bf16_f32 {v}, {v}, {v}"); a(f"v_and_b32 {v}, {sHI}, {v}")
    def spin(off, cmp, val, tmpv, tmps):
        l0, l1 = lab("sp"), lab("go")
        a(f"{l0}:")
        a(f"ds_read_b32 {tmpv}, {vF} offset:{off}")
        a("s_waitcnt lgkmcnt(0)")
        a(f"v_readfirstlane_b32 {tmps}, {tmpv}")
        a(f"{cmp} {tmps}, {val}")
        if BOUND:
            a(f"s_cbranch_scc1 {l1}")
            a(f"s_sub_u32 {sSpin}, {sSpin}, 1"); a(f"s_cbranch_scc1 L_end"); a(f"s_branch {l0}")
            a(f"{l1}:")
        else: a(f"s_cbranch_scc0 {l0}")
    def rows_sum(v, t):
        a(f"v_mov_b32 {t}, {v}"); a("s_nop 1"); a(f"v_permlane32_swap_b32 {v}, {t}"); a(f"v_add_f32 {v}, {v}, {t}")
        a(f"v_mov_b32 {t}, {v}"); a("s_nop 1"); a(f"v_permlane16_swap_b32 {v}, {t}"); a(f"v_add_f32 {v}, {v}, {t}")
    def rows_reduce8(vaddr):
        for i in range(4): a(f"v_permlane32_swap_b32 {ACC[i]}, {ACC[i+4]}")
        a("v_pk_add_f32 v[24:25], v[24:25], v[28:29]"); a("v_pk_add_f32 v[26:27], v[26:27], v[30:31]")
        a("s_nop 1")
        for i in range(2): a(f"v_permlane16_swap_b32 {ACC[i]}, {ACC[i+2]}")
        a("v_pk_add_f32 v[24:25], v[24:25], v[26:27]")
        a(f"ds_write_b64 {vaddr}, v[24:25]")
    def arrive(off):
        a(f"v_mov_b32 v10, 1")
        a("s_waitcnt lgkmcnt(0)")
        a(f"s_mov_b64 exec, 1"); a(f"ds_add_u32 {vF}, v10 offset:{off}"); a(f"s_mov_b64 exec, -1")
    def sum8(base, vaddr):
        for w in range(8): a(f"ds_read_b64 v[{base+2*w}:{base+2*w+1}], {vaddr} offset:{528*w}")
        a(f"s_waitcnt lgkmcnt({0 if TS else 4})")
        pk = lambda d, x: a(f"v_pk_add_f32 v[{base+d}:{base+d+1}], v[{base+d}:{base+d+1}], v[{base+x}:{base+x+1}]")
        pk(0, 4); pk(2, 6); pk(0, 2)
        a("s_waitcnt lgkmcnt(0)")
        pk(8, 12); pk(10, 14); pk(8, 10); pk(0, 8)
        a(f"v_cvt_pk_bf16_f32 v{base}, v{base}, v{base+1}")
    def ctl(tag, FG0=FG0, FP=FP, FS=FS, FSA=FSA, FEND=FEND, BG=BG, B0=B0, WS_MARK=WS_MARK):
        if not FB: return
        a.c("flow control: compare own progress with eight reference workgroups, set the loader's idle-slot rate")
        a(f"s_sub_u32 {sT[1]}, {sG}, {FG0 + 8}")
        a(f"s_cmp_ge_u32 {sT[1]}, {FEND - FG0 - 8}")
        a(f"s_cbranch_scc1 L_nc{tag}")
        a(f"s_and_b32 {sT[2]}, {sT[1]}, {8*FP - 1}", "phase inside the control period")
        a(f"s_lshr_b32 {sT[1]}, {sT[1]}, {(8*FP).bit_length() - 1}", "checkpoint number")
        a(f"s_mul_i32 {sT[3]}, {sT[1]}, {FR * 4352}")
        a(f"s_add_u32 {sT[3]}, {sT[3]}, {hex(WS_MARK)}")
        a(f"s_cmp_ge_u32 s2, 8")
        a(f"s_cbranch_scc1 L_cs{tag}")
        a(f"s_add_u32 {sT[4]}, s2, {sT[1]}")
        a(f"s_and_b32 {sT[4]}, {sT[4]}, 7")
        a(f"s_mul_i32 {sT[4]}, {sT[4]}, {FS}")
        a(f"s_cmp_eq_u32 {sT[2]}, {sT[4]}")
        a(f"s_cbranch_scc0 L_cs{tag}")
        a(f"v_mul_u32_u24 v10, 4352, {vL}")
        a(f"s_lshl_b32 {sT[4]}, s2, 2")
        a(f"s_add_u32 {sT[4]}, {sT[4]}, {sT[3]}")
        a(f"v_add_u32 v10, {sT[4]}, v10")
        a(f"v_mov_b32 v11, {sTg}")
        a(f"s_mov_b64 exec, {hex((1 << FR) - 1)}")
        a(f"global_store_dword v10, v11, s[28:29] sc1", "reference workgroup: leave this launch's mark")
        a(f"s_mov_b64 exec, -1")
        a(f"L_cs{tag}:")
        a(f"s_cmp_eq_u32 {sT[2]}, {FSA}")
        a(f"s_cbranch_scc0 L_nc{tag}")
        a(f"s_bfe_u32 {sT[2]}, s2, {hex(3 | ((FR.bit_length() - 1) << 16))}")
        a(f"s_mul_i32 {sT[2]}, {sT[2]}, 4352")
        a(f"s_add_u32 {sT[3]}, {sT[3]}, {sT[2]}")
        a(f"s_load_dwordx8 s[80:87], s[28:29], {sT[3]} glc")
        a(f"s_mov_b32 {sT[2]}, 4")
        a(f"s_waitcnt lgkmcnt(0)")
        for i in range(8):
            a(f"s_cmp_eq_u32 s{80+i}, {sTg}")
            a(f"s_subb_u32 {sT[2]}, {sT[2]}, 0")
        BI = o.get("bi", 0)
        if BI:
            a(f"s_mul_i32 {sT[3]}, {sT[2]}, {BI}")
        a(f"s_mul_i32 {sT[2]}, {sT[2]}, {BG}")
        a(f"s_add_u32 {sT[2]}, {sT[2]}, {B0}")
        if BI:
            a(f"s_add_u32 {sT[2]}, {sT[2]}, s11")
            a(f"s_add_u32 s11, s11, {sT[3]}")
            a(f"s_max_i32 s11, s11, {-o.get('bim', 70)}")
            a(f"s_min_i32 s11, s11, {o.get('bim', 70)}")
        a(f"s_max_i32 {sT[2]}, {sT[2]}, 0")
        a(f"s_min_i32 {sT[2]}, {sT[2]}, 255")
        a(f"v_mov_b32 v11, {sT[2]}")
        a(f"ds_write_b32 {vF}, v11 offset:{F_RATE}")
        a(f"L_nc{tag}:")

    a(f"{NAME}_kernel:")
    a("s_cmpk_ge_u32 s2, 256")
    a("s_cbranch_scc1 L_end")
    a("s_load_dwordx16 s[4:19], s[0:1], 0")
    a("s_load_dwordx8 s[20:27], s[0:1], 64")
    a("s_load_dwordx2 s[28:29], s[0:1], 96")
    stamp(0)
    HS = o.get("hs", 4)
    js = (D - 1) % 4; jss = (DS - 1) % 4
    if HS:
        assert HS % 2 == 0 and 4 * HS <= DS
        a(f"v_readfirstlane_b32 {sW}, v0")
        a(f"v_and_b32 {vL}, 63, v0")
        a(f"v_lshrrev_b32 {vRow}, 4, {vL}")
        a(f"v_and_b32 {vCol}, 15, {vL}")
        a(f"s_mov_b32 s39, 0x20000")
        a(f"s_lshr_b32 {sW}, {sW}, 6")
        a("s_cbranch_scc1 L_cons")
        a(f"v_xor_b32 v4, {vCol}, {vRow}", "K rows are stored with their 16-byte chunks xor-swizzled by key&15")
        a(f"v_lshlrev_b32 v4, 4, v4")
        a(f"v_lshl_add_u32 v4, {vRow}, 8, v4")
        a(f"v_xor_b32 v5, 64, v4")
        a(f"v_xor_b32 v6, 0x80, v4")
        a(f"v_xor_b32 v7, 64, v6")
        a(f"s_lshl_b32 s38, 1, 20")
        a(f"s_lshl_b32 {sT[0]}, s2, 20")
        if "gx" in o:
            a(f"s_mov_b32 {sX}, 0")
            for x in o["gx"].split(","):
                ab, wb = x.split("^")
                a(f"s_bfe_u32 s49, s2, {hex(int(wb) | (1 << 16))}"); a(f"s_lshl_b32 s49, s49, {ab}"); a(f"s_xor_b32 {sX}, {sX}, s49")
        elif "gm" in o:
            a(f"s_mul_i32 {sX}, s2, {o['gm']}")
            a(f"s_and_b32 {sX}, {sX}, 0x7000")
        else:
            a(f"s_lshl_b32 {sX}, s2, 10")
            a(f"s_and_b32 {sX}, {sX}, 0x6000")
        a(f"s_mov_b32 {sOff}, 0")
        a(f"s_mov_b32 m0, 0")
        a("s_waitcnt lgkmcnt(0)")
        a(f"s_add_u32 s36, s6, {sT[0]}")
        a(f"s_addc_u32 s37, s7, 0")
        if o.get("ss", 0): stamp(1, True)
        a("L_l0:")
        a(f"s_xor_b32 {sSrc}, {sOff}, {sX}")
        for j in range(4): a(f"buffer_load_dwordx4 v{4+j}, {R}, {sSrc} offen offset:{1024*j} {SP} lds")
        a(f"s_addk_i32 m0, 4096")
        a(f"s_bitset1_b32 {sSrc}, 15")
        for j in range(4): a(f"buffer_load_dwordx4 v{4+j}, {R}, {sSrc} offen offset:{1024*j} {SP} lds")
        a(f"s_addk_i32 m0, 4096")
        a(f"s_addk_i32 {sOff}, 4096")
        a(f"s_cmpk_lg_u32 {sOff}, {HS * 2048}")
        a(f"s_cbranch_scc1 L_l0")
        if o.get("ss", 0): stamp(2, True); stamp(3, True)
        a("s_barrier", "the consumers have cleared the flag block")
        a("s_setprio 3")
        a(f"s_xor_b32 {sSrc}, {sOff}, {sX}")
        a(f"v_mov_b32 {vF}, {L_FL}")
        a(f"v_mov_b32 v8, {(4*HS + jss - DS - 3)//4}", "landed-granule counter")
        a(f"v_mov_b32 v10, 0")
        a(f"s_mov_b32 {sW}, -1")
    else:
        a(f"v_lshrrev_b32 v4, 6, v0")
        a(f"v_and_b32 {vL}, 63, v0")
        a(f"v_readfirstlane_b32 {sW}, v4")
        a(f"v_mov_b32 {vF}, {L_FL}")
        a(f"v_lshl_add_u32 v9, {vL}, 2, {vF}")
        a(f"v_mov_b32 v10, 0")
        a(f"ds_write_b32 v9, v10", "every wave clears the flag block before the barrier")
        a(f"v_lshrrev_b32 {vRow}, 4, {vL}")
        a(f"v_and_b32 {vCol}, 15, {vL}")
        a(f"s_mov_b32 s39, 0x20000")
        a(f"s_mov_b32 s38, 0x100000")
        a(f"s_lshl_b32 {sT[0]}, s2, 20")
        a(f"v_xor_b32 v4, {vCol}, {vRow}", "K rows are stored with their 16-byte chunks xor-swizzled by key&15")
        a(f"v_lshlrev_b32 v4, 4, v4")
        a(f"v_lshl_add_u32 v4, {vRow}, 8, v4")
        a(f"v_xor_b32 v5, 64, v4")
        a(f"v_xor_b32 v6, 0x80, v4")
        a(f"v_xor_b32 v7, 64, v6")
        js = (D - 1) % 4; jss = (DS - 1) % 4
        a(f"v_mov_b32 v8, {(jss - DS - 3)//4}", "landed-granule counter")
        a(f"s_mov_b32 {sOff}, 0")
        a(f"s_lshl_b32 {sX}, s2, 10")
        a(f"s_and_b32 {sX}, {sX}, 0x6000")
        a(f"s_mov_b32 {sSrc}, {sX}")
        a(f"s_mov_b32 m0, 0")
        a(f"s_sub_u32 {sW}, {sW}, 1", "consumer index; borrow marks the loader")
        a("s_waitcnt lgkmcnt(0)")
        a("s_barrier")
        a("s_cbranch_scc0 L_cons")

        a("s_setprio 3")
        a(f"s_add_u32 s36, s6, {sT[0]}")
        a(f"s_addc_u32 s37, s7, 0")
    RO = [int(x) for x in str(o.get("ro", "0")).split(",")]
    def round_base(src, lo):
        first = True; i = 0
        while i < 5:
            j = i
            while j + 1 < 5 and RO[j+1] == RO[j] + 1: j += 1
            a(f"s_bfe_u32 s49, {src}, {hex((lo + i) | ((j - i + 1) << 16))}")
            a(f"s_lshl_b32 {sOff if first else 's49'}, s49, {RO[i]}")
            if not first: a(f"s_or_b32 {sOff}, {sOff}, s49")
            first = False; i = j + 1
        a(f"s_xor_b32 {sSrc}, {sOff}, {sX}")
    def pair_body(Dw, jw, fb, tag):
        for half in range(2):
            for j in range(4):
                if fb and j % 2 == 0:
                    a(f"s_add_u32 {sAcc}, {sAcc}, {sInc}")
                    a(f"s_cbranch_scc0 L_nd{tag}{half}{j}")
                    a(f"buffer_load_dword v12, v4, {R}, s38 offen", "out of range: takes one slot of the window, moves no data")
                    a(f"L_nd{tag}{half}{j}:")
                a(f"s_waitcnt vmcnt({Dw-1})")
                a(f"buffer_load_dwordx4 v{4+j}, {R}, {sSrc} offen offset:{1024*j} {SP} lds")
                if j == jw:
                    a("v_add_u32 v8, 1, v8"); a(f"ds_write_b32 {vF}, v8")
                if half == 0 and j == 0 and RO == [0]: a(f"s_bitset1_b32 {sOff}, 15")
                if half == 0 and j == 1: a(f"s_addk_i32 {sOff}, 4096")
                if half == 0 and j == 2 and RO == [0]: a(f"s_bitset0_b32 {sOff}, 15")
            a(f"s_addk_i32 m0, 4096")
            if half == 0: a(f"s_bitset1_b32 {sSrc}, 15")
            else: a(f"s_xor_b32 {sSrc}, {sOff}, {sX}")
    if o.get("ss", 0) and not HS: stamp(1, True)
    a("L_ls:")
    pair_body(DS, jss, 0, "s")
    if o.get("ss", 0):
        for k, g in ((2, 2), (3, 6), (6, 8), (7, 16)):
            a(f"s_cmp_lg_u32 m0, {g*4096}"); a(f"s_cbranch_scc1 L_ss{k}"); stamp(k, True); a(f"L_ss{k}:")
    if RO != [0]:
        a(f"s_and_b32 s49, m0, 0x7fff")
        a(f"s_cbranch_scc1 L_ls")
        round_base("m0", 15)
    a(f"s_cmp_lg_u32 m0, {RS*32768}")
    a(f"s_cbranch_scc1 L_ls")
    a(f"v_mov_b32 v8, {(32*RS + js - D - 3)//4}")
    a(f"s_mov_b32 {sR}, {RS-1}")
    a(f"s_add_u32 s8, s8, {sT[0]}")
    a(f"s_addc_u32 s9, s9, 0")
    a(f"s_mov_b32 {sSpin}, 0x100000")
    a(f"v_min_u32 v9, 8, {vL}")
    a(f"v_lshl_add_u32 v9, v9, 2, {vF}", "lanes 0-7: done[], other lanes: idle-slot rate")
    a(f"v_mov_b32 v11, {RS - 4}")
    a(f"v_cmp_lt_u32 vcc, 7, {vL}")
    a(f"v_mov_b32 v14, {B0 if FB else 0}")
    a(f"v_mov_b32 v15, -1000")
    a(f"ds_write_b32 {vF}, v14 offset:{F_RATE}")
    a(f"v_cndmask_b32 v11, v11, v15, vcc")
    a(f"v_cndmask_b32 v10, v10, v14, vcc")
    a(f"s_mov_b32 {sAcc}, 0")
    if STAMP == 1: a("s_mov_b32 s79, 0")
    a(f"s_branch L_ld1")
    a("L_ld:")
    pair_body(D, js, FB, "m")
    a(f"s_sub_u32 {sCnt}, {sCnt}, 1")
    a(f"s_cbranch_scc0 L_ld")
    a("L_ld1:")
    a(f"s_bitset0_b32 m0, 17")
    a(f"s_add_u32 {sR}, {sR}, 1")
    a(f"v_add_u32 v11, 1, v11")
    if RO != [0]: round_base(sR, 0)
    marks = []
    if STAMP == 1: marks = list(zip((1,2,3,6,7), str(o.get("marks", "4,5,6,8,16")).split(",")))
    if STAMP == 4: marks = [(1, o.get("m0", 99)), (2, o["m1"])]
    for k, rr in marks:
        a(f"s_cmp_lg_u32 {sR}, {rr}"); a(f"s_cbranch_scc1 L_mk{k}"); stamp(k, True); a(f"L_mk{k}:")
    a(f"s_and_b32 {sCnt}, {sR}, 31")
    a(f"s_cbranch_scc0 L_ldsw")
    a("L_ldck:")
    a("s_waitcnt lgkmcnt(0)")
    a(f"v_cmp_lt_i32 vcc, v10, v11", "ring space: every consumer has finished round R-4 (values read one round ago)")
    a(f"s_cbranch_vccnz L_ldslow")
    a(f"s_mov_b32 {sCnt}, 3")
    if FB:
        a(f"v_readlane_b32 {sInc}, v10, 8")
        if STAMP == 1: a(f"s_lshr_b32 s48, {sInc}, 4"); a(f"s_add_u32 s79, s79, s48")
        a(f"s_cmp_lt_u32 {sR}, 63")
        a(f"s_cselect_b32 {sInc}, {sInc}, 0")
        a(f"s_lshl_b32 {sInc}, {sInc}, 24")
    a(f"ds_read_b32 v10, v9 offset:{F_DONE}")
    a(f"s_branch L_ld")
    a("L_ldslow:")
    a(f"ds_read_b32 v10, v9 offset:{F_DONE}")
    if BOUND or STAMP == 1:
        a(f"s_sub_u32 {sSpin}, {sSpin}, 1")
        a(f"s_cbranch_scc1 L_end")
    a("s_branch L_ldck")
    a("L_ldsw:")
    a(f"s_cmp_eq_u32 {sR}, 64")
    a(f"s_cbranch_scc1 L_drain")
    a(f"s_mov_b32 s36, s8", "switch to V (stored unswizzled)")
    a(f"s_mov_b32 s37, s9")
    a(f"s_mov_b32 {sOff}, 0")
    a(f"s_mov_b32 {sSrc}, {sX}")
    for j in range(4): a(f"v_lshlrev_b32 v{4+j}, 4, {vL}")
    stamp(4)
    a("s_branch L_ldck")
    a("L_drain:")
    a.c("set up the final stage while the last loads land: lane l owns output column 2*(l&7) + (l>>5)")
    a(f"v_and_b32 v21, 7, {vL}")
    a(f"v_lshrrev_b32 v22, 5, {vL}")
    a(f"v_lshl_add_u32 v21, v21, 1, v22")
    a(f"v_lshl_add_u32 v22, v21, 2, {vF}")
    a(f"ds_read_b32 v17, {vF} offset:{F_TAG}")
    a(f"ds_read_b32 v18, v22 offset:{L_FIN - L_FL}")
    a(f"ds_read_b32 v19, v22 offset:{L_FIN - L_FL + 64}")
    a(f"s_lshl_b32 {sT[0]}, s2, 5")
    a(f"v_lshl_add_u32 v20, v21, 1, {sT[0]}", "byte offset in out")
    IB = o.get("ib", -1); DUP = o.get("dup", 0); WS_IN = 0x400000
    if DUP:
        a(f"ds_read_b32 v23, {vF} offset:16", "votes for the second copy being the nearer one")
        a(f"s_and_b32 {sT[1]}, s2, 0xfe")
        a(f"s_add_u32 {sT[1]}, {sT[1]}, s2")
        a(f"s_lshl_b32 {sT[0]}, {sT[1]}, 12")
        a(f"s_add_u32 {sT[0]}, {sT[0]}, {hex(WS_IN)}")
    elif IB >= 0:
        a(f"s_lshr_b32 {sT[1]}, s2, 1")
        a(f"s_xor_b32 {sT[1]}, {sT[1]}, s2")
        a(f"s_and_b32 {sT[1]}, {sT[1]}, 2")
        a(f"s_mul_i32 {sT[1]}, {sT[1]}, 3")
        a(f"s_xor_b32 {sT[1]}, {sT[1]}, s2")
        if IB: a(f"s_xor_b32 {sT[1]}, {sT[1]}, {IB}")
        a(f"s_lshl_b32 {sT[0]}, {sT[1]}, 12")
        if POL:
            a(f"ds_read_b32 v23, {vF} offset:{F_POL}")
            a(f"s_and_b32 {sT[1]}, {sT[0]}, 0x2000")
            a(f"s_bitset0_b32 {sT[0]}, 13")
            a(f"v_add_u32 v4, {sT[1]}, v4")
    else: a(f"s_lshl_b32 {sT[0]}, s2, 12")
    a(f"s_add_u32 s56, s28, {sT[0]}", "inbox of this workgroup: 32 producers x 128 bytes")
    a(f"s_addc_u32 s57, s29, 0")
    a(f"s_movk_i32 s58, {0x3000 if DUP or POL else 4096}")
    a(f"s_mov_b32 s59, 0x20000")
    if POL:
        a("s_waitcnt lgkmcnt(0)")
        a(f"v_xor_b32 v4, v23, v4")
    if DUP:
        a("s_waitcnt lgkmcnt(0)")
        if DUP == 1:
            a(f"v_cmp_lt_i32 vcc, 0, v23")
            a(f"v_add_u32 v5, 0x2000, v4")
            a(f"s_nop 0")
            a(f"v_cndmask_b32 v4, v4, v5, vcc")
        else:
            a(f"s_lshl_b32 {sT[1]}, s2, 11"); a(f"s_and_b32 {sT[1]}, {sT[1]}, 0x2000")
            if DUP & 1: a(f"s_xor_b32 {sT[1]}, {sT[1]}, 0x2000")
            a(f"v_add_u32 v4, {sT[1]}, v4")
    a(f"s_mov_b32 {sHI}, 0xffff0000")
    a(f"s_mov_b64 s[44:45], -1")
    a(f"s_mov_b64 s[46:47], -1")
    pub = (2044 + js - D - 3)//4 + 1
    while pub < 512:
        pub += 1
        a(f"s_waitcnt vmcnt({2048 - 4*pub})")
        a("v_add_u32 v8, 1, v8"); a(f"ds_write_b32 {vF}, v8")
    stamp(5)
    sets = [(32, "s[44:45]"), (48, "s[46:47]")][:PP]
    def pissue(base):
        for i in range(4): a(f"buffer_load_dwordx4 v[{base+4*i}:{base+4*i+3}], v4, {W2}, 0 offen offset:{1024*i} {o.get('plp', 'sc1')}")
    if DRY == 2: a("s_cbranch_execz L_fin0")
    pissue(32)
    a("s_waitcnt lgkmcnt(0)")
    a("s_barrier", "pairs with the consumers' barrier before the output projection")
    if PP == 2: pissue(48)
    if STAMP == 1: a("s_mov_b32 s88, 0")
    a("L_poll:")
    for k, (base, m) in enumerate(sets):
        if STAMP == 1: a("s_add_u32 s88, s88, 1")
        a(f"s_waitcnt vmcnt({4*(PP-1)})")
        a(f"s_mov_b64 exec, {m}")
        for i in range(8): a(f"v_cmpx_eq_u32 vcc, v17, v{base+1+2*i}")
        a(f"s_andn2_b64 {m}, {m}, exec", "lanes whose four 16-byte pieces are not all this launch's yet")
        a(f"s_cbranch_scc0 L_got{k}")
        a(f"s_mov_b64 exec, {m}")
        if o.get("psl", 0): a(f"s_sleep {o['psl']}")
        pissue(base)
    a(f"s_sub_u32 {sSpin}, {sSpin}, 16")
    a(f"s_cbranch_scc0 L_poll")
    a("s_endpgm")
    for k, (base, m) in reversed(list(enumerate(sets))):
        a(f"L_got{k}:")
        a(f"s_mov_b64 exec, -1")
        if k == 0: a("L_fin0:")
        tstamp(4)
        a(f"v_add_f32 v24, v{base}, v{base+8}"); a(f"v_add_f32 v25, v{base+2}, v{base+10}")
        a(f"v_add_f32 v26, v{base+4}, v{base+12}"); a(f"v_add_f32 v27, v{base+6}, v{base+14}")
        if k: a("s_branch L_fin1")
    a("L_fin1:")
    a("v_add_f32 v24, v24, v26"); a("v_add_f32 v25, v25, v27")
    a("s_nop 1")
    a("v_permlane32_swap_b32 v24, v25")
    a("v_add_f32 v24, v24, v25")
    a("v_mov_b32 v25, v24"); a("s_nop 1")
    a("v_permlane16_swap_b32 v24, v25")
    a("v_add_f32 v24, v24, v25")
    a("s_nop 1")
    a(f"v_add_f32_dpp v24, v24, v24 row_ror:8 {FULL}")
    rbf("v24")
    a("v_add_f32 v24, v18, v24", "x + attention")
    rbf("v24")
    a("v_add_f32 v24, v24, v19", "+ mixer")
    a("v_cvt_pk_bf16_f32 v24, v24, v24")
    if DRY: a("s_cbranch_execz L_dryret")
    a("s_mov_b32 exec_lo, 0xff")
    a("s_mov_b32 exec_hi, 0xff")
    a(f"global_store_short v20, v24, s[24:25]")
    a(f"s_and_b32 {sT[0]}, s2, 31")
    a(f"s_cbranch_scc1 L_fin")
    a(f"s_lshl_b32 {sT[0]}, s2, 3")
    a(f"s_add_u32 {sT[0]}, {sT[0]}, {hex(WS_EPOCH)}")
    a(f"v_mov_b32 v16, {sT[0]}")
    a(f"s_mov_b64 exec, 1")
    a(f"global_store_dword v16, v17, s[28:29]", "next launch's tag differs from this one")
    a("s_branch L_fin")

    a("L_cons:")
    if HS:
        a(f"v_mov_b32 {vF}, {L_FL}")
        a(f"v_lshl_add_u32 v9, {vL}, 2, {vF}")
        a(f"v_mov_b32 v10, 0")
        a(f"ds_write_b32 v9, v10", "every consumer clears the flag block before the barrier")
        a(f"s_sub_u32 {sW}, {sW}, 1")
    a(f"s_lshr_b32 {sB}, s2, 5")
    a(f"s_and_b32 {sH}, s2, 31")
    a(f"s_mov_b32 {sHI}, 0xffff0000")
    a(f"s_mov_b32 s59, 0x20000")
    a(f"s_lshl_b32 {sT[0]}, {sB}, 10")
    a(f"v_lshlrev_b32 v8, 4, {vL}")
    if BOUND: a(f"s_mov_b32 {sSpin}, 0x100000")
    if HS: a("s_waitcnt lgkmcnt(0)")
    a(f"s_add_u32 s4, s4, {sT[0]}")
    a(f"s_addc_u32 s5, s5, 0")
    a(f"global_load_dwordx4 v[4:7], v8, s[4:5]", "x[b][8l..8l+7]")
    npre = 0
    IPF = o.get("ipf", 2)
    if IPF == 1:
        a(f"s_getpc_b64 s[46:47]")
        a("L_pc:")
        a(f"s_lshl_b32 {sT[0]}, {sW}, 10")
        a(f"v_add_u32 v9, {sT[0]}, v8")
        a(f"v_min_u32 v9, L_end-L_pc-12, v9")
        a(f"global_load_dwordx4 v[16:19], v9, s[46:47]")
    if IPF == 2:
        a.c("pull this kernel's code towards L2: one dword per 32 bytes, 2 KiB per wave")
        a(f"s_getpc_b64 s[46:47]")
        a("L_pc:")
        a(f"s_sub_u32 s46, s46, L_pc-L_ld")
        a(f"s_subb_u32 s47, s47, 0")
        a(f"s_lshl_b32 {sT[0]}, {sW}, 11")
        a(f"v_lshl_add_u32 v9, {vL}, 5, {sT[0]}")
        a(f"v_min_u32 v9, L_end-L_ld, v9")
        a(f"global_load_dword v16, v9, s[46:47]")
    a.c("wq rows 64w + 8*((j>>1)^w) + 2r + (j&1), columns 128h + 8c")
    a(f"s_lshl_b32 {sT[0]}, {sW}, 19")
    a(f"s_lshl_b32 {sT[1]}, {sH}, 8")
    a(f"s_add_u32 {sT[0]}, {sT[0]}, {sT[1]}")
    a(f"s_add_u32 s36, s10, {sT[0]}")
    a(f"s_addc_u32 s37, s11, 0")
    a(f"s_sub_u32 s38, 0x400000, {sT[0]}")
    QM = o.get("qm", 1)
    a(f"v_lshlrev_b32 v9, {14 if QM == 1 else 15}, {vRow}")
    a(f"v_lshl_add_u32 v9, {vCol}, 4, v9")
    if QM == 1: a(f"s_lshl_b32 {sT[2]}, {sW}, 16")
    else:
        a(f"s_lshl_b32 {sT[2]}, {sW}, 16")
        a(f"s_and_b32 {sT[2]}, {sT[2]}, 0x60000")
        a(f"s_lshl_b32 {sT[3]}, {sW}, 14")
        a(f"s_and_b32 {sT[3]}, {sT[3]}, 0x4000")
        a(f"s_or_b32 {sT[2]}, {sT[2]}, {sT[3]}")
    def wslot(j): return f"v[{WREG+4*j}:{WREG+4*j+3}]"
    def wqload(j):
        a(f"s_xor_b32 {sT[3]}, {sT[2]}, {((j >> 1) * 8 + (j & 1)) * 8192 if QM == 1 else ((j >> 2) * 16 + (j & 3)) * 8192}")
        a(f"buffer_load_dwordx4 {wslot(j)}, v9, {R}, {sT[3]} offen {o.get('wqpol', 'nt')}")
    if FB:
        a(f"s_mov_b32 {sT[4]}, {hex(WS_EPOCH)}")
        a(f"s_load_dword {sTg}, s[28:29], {sT[4]}")
    a.c("this workgroup's eighth of the head's wo slice -> L2 (the slice itself is read later)")
    if o.get("opf", 1):
        a(f"s_lshl_b32 {sT[5]}, {sH}, 17")
        a(f"s_lshl_b32 {sT[6]}, {sW}, 10")
        a(f"s_add_u32 {sT[5]}, {sT[5]}, {sT[6]}")
        a(f"s_and_b32 {sT[6]}, {sB}, 4")
        a(f"s_add_u32 {sT[6]}, {sT[6]}, {sB}")
        a(f"s_lshl_b32 {sT[6]}, {sT[6]}, 13")
        a(f"s_add_u32 {sT[5]}, {sT[5]}, {sT[6]}")
        a(f"v_add_u32 v11, {sT[5]}, v8")
        if HS: a("s_barrier")
        a(f"global_load_dwordx4 v[160:163], v11, s[12:13]")
        a(f"v_add_u32 v11, 0x8000, v11")
        a(f"global_load_dwordx4 v[164:167], v11, s[12:13]")
    else:
        a(f"s_lshl_b32 {sT[5]}, {sH}, 17")
        a(f"s_lshl_b32 {sT[6]}, {sW}, 14")
        a(f"s_add_u32 {sT[5]}, {sT[5]}, {sT[6]}")
        a(f"s_lshl_b32 {sT[6]}, {sB}, 7")
        a(f"s_add_u32 {sT[5]}, {sT[5]}, {sT[6]}")
        a(f"v_lshrrev_b32 v11, 3, {vL}")
        a(f"v_and_b32 v10, 7, {vL}")
        a(f"v_lshl_add_u32 v10, v10, 4, {sT[5]}")
        a(f"v_lshl_add_u32 v11, v11, 10, v10")
        if HS: a("s_barrier")
        a(f"global_load_dwordx4 v[160:163], v11, s[12:13]")
        a(f"v_add_u32 v11, 0x2000, v11")
        a(f"global_load_dwordx4 v[164:167], v11, s[12:13]")
    QPF = o.get("qpf", 0)
    if QPF:
        a(f"s_lshl_b32 {sT[3]}, {sB}, 16")
        a(f"buffer_load_dwordx4 v[152:155], v9, {R}, {sT[3]} offen")
        a(f"s_add_u32 {sT[3]}, {sT[3]}, 8192")
        a(f"buffer_load_dwordx4 v[156:159], v9, {R}, {sT[3]} offen")
    for j in range(WQS): wqload(j)
    a(f"s_waitcnt vmcnt({WQS + 2 + 2*QPF})")
    stamp(1)
    X = [f"v{16+i}" for i in range(8)]
    def unpack(src4):
        for i in range(4):
            a(f"v_lshlrev_b32 {X[2*i]}, 16, v{src4+i}")
            a(f"v_and_b32 {X[2*i+1]}, {sHI}, v{src4+i}")
    def ln(sM, sD, write):
        a.c("LayerNorm statistics with the reference's bf16 roundings")
        a(f"v_add_f32 v24, {X[0]}, {X[1]}")
        for i in range(2, 8): a(f"v_add_f32 v24, v24, {X[i]}")
        wave_reduce("v_add_f32", "v24", sT[0])
        a("s_nop 1")
        a(f"v_mov_b32 v25, {sT[0]}")
        a(f"v_mul_f32 v25, {hex(f2u(1.0/512))}, v25")
        a(f"v_sub_f32 v26, {X[0]}, v25")
        a(f"v_mul_f32 v24, v26, v26")
        for i in range(1, 8):
            a(f"v_sub_f32 v26, {X[i]}, v25"); a(f"v_fmac_f32 v24, v26, v26")
        wave_reduce("v_add_f32", "v24", sT[0])
        rbf("v25")
        a(f"v_mov_b32 v24, {sT[0]}")
        a(f"v_mul_f32 v24, {hex(f2u(1.0/512))}, v24")
        rbf("v24")
        a(f"v_add_f32 v24, {hex(f2u(1e-5))}, v24")
        rbf("v24")
        a(f"v_sqrt_f32 v24, v24")
        a("s_nop 0")
        rbf("v24")
        a(f"v_rcp_f32 v24, v24")
        a(f"v_readfirstlane_b32 {sM}, v25")
        a(f"v_readfirstlane_b32 {sD}, v24")
        if write:
            for i in range(8): a(f"v_sub_f32 {X[i]}, {X[i]}, v25")
            for i in range(4): a(f"v_cvt_pk_bf16_f32 v{4+i}, {X[2*i]}, {X[2*i+1]}")
            unpack(4)
            for i in range(8): a(f"v_mul_f32 {X[i]}, {X[i]}, v24")
            for i in range(4): a(f"v_cvt_pk_bf16_f32 v{4+i}, {X[2*i]}, {X[2*i+1]}")
    unpack(4)
    ln(sM1, sD1, True)
    a(f"v_add_u32 v8, {L_XN}, v8")
    a(f"ds_write_b128 v8, v[4:7]", "packed xn (every wave writes the same bytes)")
    if QM == 1: a(f"s_mul_i32 {sT[0]}, {sW}, 144")
    else:
        a(f"s_lshr_b32 {sT[0]}, {sT[2]}, 12")
        a(f"s_lshl_b32 {sT[1]}, {sW}, 7")
        a(f"s_add_u32 {sT[0]}, {sT[0]}, {sT[1]}")
    a(f"s_add_u32 {sT[0]}, {sT[0]}, {L_XN}")
    a(f"v_lshl_add_u32 v8, {vRow}, {2 if QM == 1 else 3}, {sT[0]}")
    assert L_XN % 128 == 0
    for i in range(8):
        if i: a(f"v_xor_b32 v10, {16*i if QM == 1 else 32*(i >> 1) + 4*(i & 1)}, v8")
        a(f"ds_read_b32 v{QF+i}, {'v10' if i else 'v8'}")
    for i in range(8): a(f"v_mov_b32 {ACC[i]}, 0")
    nissued = WQS + WQ2
    for j in range(WQS, nissued): wqload(j)
    def preread(n):
        a.c(f"take K granule {n} of this wave out of the ring early: frees a round for the loader")
        if n: a(f"v_add_u32 v12, 0x8000, v12")
        for t in range(1, 4): a(f"v_xor_b32 v{19+t}, {64*t}, v12")
        a(f"s_add_u32 {sT[4]}, {sW}, {8*n}")
        spin(F_LAND, "s_cmp_gt_i32", sT[4], "v14", sT[0])
        a(f"ds_read_b128 v[{ST[n]}:{ST[n]+3}], v12")
        for t in range(1, 4): a(f"ds_read_b128 v[{ST[n]+4*t}:{ST[n]+4*t+3}], v{19+t}")
        a(f"v_mov_b32 v14, {n+1}")
        a("s_waitcnt lgkmcnt(0)")
        a(f"ds_write_b32 v13, v14 offset:{F_DONE}")
    a(f"v_xor_b32 v12, {vRow}, {vCol}")
    a(f"v_lshlrev_b32 v12, 4, v12")
    a(f"v_lshl_add_u32 v12, {vCol}, 8, v12")
    a(f"s_lshl_b32 {sT[0]}, {sW}, 12")
    a(f"v_add_u32 v12, {sT[0]}, v12")
    a(f"s_lshl_b32 {sT[0]}, {sW}, 2")
    a(f"v_add_u32 v13, {sT[0]}, {vF}")
    preread(0)
    a.c("q projection: acc[col] += xn[row] * wq[row][col]")
    for j in range(16):
        for n in range(1, PRE):
            if PJ[n-1] == j: preread(n)
        src = f"v{QF + j//2}"
        if j % 2 == 0: a(f"v_and_b32 v10, 0xffff, {src}"); a(f"v_lshlrev_b32 v11, 16, {src}")
        else: a(f"v_lshrrev_b32 v10, 16, {src}"); a(f"v_and_b32 v11, {sHI}, {src}")
        a(f"s_waitcnt vmcnt({nissued - j - 1})")
        while nissued < 16 and nissued - j - 1 < WQ2:
            wqload(nissued); nissued += 1
        for i in range(4):
            a(f"v_dot2c_f32_bf16 {ACC[2*i]}, v10, v{WREG+4*j+i}")
            a(f"v_dot2c_f32_bf16 {ACC[2*i+1]}, v11, v{WREG+4*j+i}")
    stamp(2)
    vPW, vPR = "v15", "v14"
    a(f"s_mul_i32 {sT[0]}, {sW}, 528")
    a(f"s_add_u32 {sT[0]}, {sT[0]}, {L_QP}")
    a(f"v_lshl_add_u32 {vPW}, {vCol}, 5, {sT[0]}")
    a(f"v_lshl_add_u32 {vPW}, {vRow}, 3, {vPW}")
    rows_reduce8(vPW)
    arrive(F_ARRQ)
    for i in range(4): a(f"v_mov_b32 v{160+i}, v{4+i}", "keep xn for the second LayerNorm" if i == 0 else None)
    a(f"v_lshlrev_b32 {vPR}, 3, {vL}")
    a(f"v_add_u32 {vPR}, {L_QP}, {vPR}")
    spin(F_ARRQ, "s_cmp_ge_u32", 8, "v10", sT[0])
    sum8(WREG, vPR)
    a(f"v_lshlrev_b32 v10, 2, {vL}")
    a(f"v_add_u32 v10, {L_XN}, v10")
    a(f"ds_write_b32 v10, v{WREG}", "packed q (xn is dead: every wave has arrived)")
    a(f"v_lshlrev_b32 v10, 4, {vRow}")
    a(f"v_add_u32 v10, {L_XN}, v10")
    for t in range(4): a(f"ds_read_b128 v[{QF+4*t}:{QF+4*t+3}], v10 offset:{64*t}", "MFMA A fragments of q" if t == 0 else None)
    vH, vMA, vC0, vXr = "v138", "v139", "v140", "v145"
    a(f"s_mov_b32 {sL2E}, {hex(f2u(l2e))}")
    a(f"s_mov_b32 {sK}, {hex(f2u(128 ** -0.5))}")
    vKA, vSA, vDA, vM, vLs, vDn = "v4", "v5", "v6", "v7", "v8", "v9"
    a(f"v_add_u32 {vKA}, 0xffff0000, v12")
    a(f"s_lshl_b32 {sT[0]}, {sW}, 6")
    a(f"s_add_u32 {sT[0]}, {sT[0]}, {L_SC}")
    a(f"v_lshl_add_u32 {vSA}, {vCol}, 2, {sT[0]}")
    a(f"v_mov_b32 {vDA}, v13")
    a(f"v_mov_b32 {vM}, 0xff7fffff")
    a(f"v_mov_b32 {vLs}, 0")
    a(f"v_mov_b32 {vDn}, 0")
    a(f"s_mov_b32 {sG}, {sW}")
    a(f"s_mov_b32 {sR}, 0")
    a.c("wo: rows 128h + 32r + 2j + e, columns 64w + 4c")
    a(f"s_lshl_b32 {sT[0]}, {sH}, 17")
    a(f"s_add_u32 s36, s12, {sT[0]}")
    a(f"s_addc_u32 s37, s13, 0")
    a(f"s_mov_b32 s38, {o.get('won', 0x20000)}")
    vWO = "v164"
    a(f"s_lshl_b32 {sT[0]}, {sW}, 7")
    a(f"v_lshl_add_u32 {vWO}, {vCol}, 3, {sT[0]}")
    a(f"v_lshl_add_u32 {vWO}, {vRow}, 15, {vWO}")
    a(f"s_add_u32 {sOff}, {sW}, {WMR}")
    if FB:
        a(f"s_mul_i32 {sTg}, {sTg}, 1664525")
        a(f"s_add_u32 {sTg}, {sTg}, 1013904223")
    if o.get("bi", 0): a("s_mov_b32 s11, 0")
    stamp(3)
    a("s_waitcnt lgkmcnt(0)")
    a("s_branch L_kmid")
    a("L_kst:")
    for n in range(1, PRE):
        for i in range(16): a(f"v_mov_b32 v{ST[n-1]+i}, v{ST[n]+i}")
    a("s_branch L_kmid")
    a("L_k:")
    a(f"s_cmp_lt_u32 {sR}, {PRE}")
    a(f"s_cbranch_scc1 L_kst")
    for t in range(1, 4): a(f"v_xor_b32 v{10+t}, {64*t}, {vKA}")
    spin(F_LAND, "s_cmp_gt_i32", sG, "v10", sT[0])
    a(f"ds_read_b128 v[{DT}:{DT+3}], {vKA}")
    for t in range(1, 4): a(f"ds_read_b128 v[{DT+4*t}:{DT+4*t+3}], v{10+t}")
    a("L_kmid:")
    a(f"v_add_u32 {vDn}, 1, {vDn}")
    a(f"v_add_u32 {vKA}, 0x8000, {vKA}")
    a(f"v_and_b32 {vKA}, 0x1ffff, {vKA}")
    for t in range(4):
        a(f"s_waitcnt lgkmcnt({3-t})")
        a(f"v_mfma_f32_16x16x32_bf16 v[16:19], v[{QF+4*t}:{QF+4*t+3}], v[{DT+4*t}:{DT+4*t+3}], {'0' if t == 0 else 'v[16:19]'}")
    a(f"v_max_u32 v10, {PRE}, {vDn}")
    a(f"ds_write_b32 {vDA}, v10 offset:{F_DONE}")
    a(f"s_add_u32 {sG}, {sG}, 8")
    a(f"s_nop 4")
    rbf("v16")
    a(f"v_mul_f32 v16, {sK}, v16")
    rbf("v16")
    a(f"ds_write_b32 {vSA}, v16", "score of key l&15 of this granule")
    a(f"v_max_f32 v17, {vM}, v16", "running max / sum per lane")
    a(f"v_sub_f32 v18, {vM}, v17")
    a(f"v_sub_f32 v16, v16, v17")
    a(f"v_mul_f32 v18, {sL2E}, v18")
    a(f"v_mul_f32 v16, {sL2E}, v16")
    a(f"v_exp_f32 v18, v18")
    a(f"v_exp_f32 v16, v16")
    a(f"v_mov_b32 {vM}, v17")
    a(f"v_add_u32 {vSA}, 512, {vSA}")
    a(f"v_fma_f32 {vLs}, {vLs}, v18, v16")
    if FG0 < 256: ctl("k")
    if POL:
        PR0 = o.get("pr0", 18)
        a.c("inbox placement (speed only): head 0 of the batch finds which half of the inbox area answers it faster")
        a(f"s_cmp_lg_u32 {sH}, 0")
        a(f"s_cbranch_scc1 L_npub")
        a(f"s_sub_u32 {sT[1]}, {sG}, {8*PR0 + 8}")
        a(f"s_cmp_ge_u32 {sT[1]}, 32")
        a(f"s_cbranch_scc1 L_nprobe")
        a(f"s_lshl_b32 {sT[1]}, {sT[1]}, 8")
        a(f"s_lshl_b32 {sT[2]}, {sB}, 17")
        a(f"s_add_u32 {sT[2]}, {sT[2]}, {sT[1]}")
        a(f"s_lshl_b32 {sT[1]}, {sT[1]}, 5")
        a(f"s_and_b32 {sT[1]}, {sT[1]}, 0x2000", "odd waves ask the upper half first")
        a(f"s_add_u32 {sT[2]}, {sT[2]}, {sT[1]}")
        a(f"s_xor_b32 {sT[3]}, {sT[2]}, 0x2000")
        a(f"s_load_dword s80, s[28:29], {sT[2]} glc")
        a(f"s_load_dword s81, s[28:29], {sT[3]} glc")
        a(f"s_waitcnt lgkmcnt(0)")
        for k, (r0, off) in enumerate((("s80", sT[2]), ("s81", sT[3]))):
            a(f"s_not_b32 {r0}, {r0}")
            a(f"s_mov_b32 s82, {r0}")
            a(f"s_movk_i32 {sT[4+k]}, 2048")
            a(f"s_load_dword s82, s[28:29], {off} glc")
            a(f"L_pw{k}:")
            a(f"s_sub_u32 {sT[4+k]}, {sT[4+k]}, 1")
            a(f"s_cbranch_scc1 L_pe{k}")
            a(f"s_cmp_eq_u32 s82, {r0}")
            a(f"s_cbranch_scc1 L_pw{k}")
            a(f"L_pe{k}:")
            a(f"s_waitcnt lgkmcnt(0)")
        a(f"s_cmp_gt_i32 {sT[5]}, {sT[4]}")
        a(f"s_cselect_b32 {sT[2]}, {sT[3]}, {sT[2]}")
        a(f"s_bitcmp1_b32 {sT[2]}, 13")
        a(f"s_cselect_b32 {sT[4]}, 1, -1")
        a(f"v_mov_b32 v11, {sT[4]}")
        a(f"s_mov_b64 exec, 1")
        a(f"ds_add_u32 {vF}, v11 offset:{F_PSUM}")
        a(f"s_mov_b64 exec, -1")
        a("L_nprobe:")
        a(f"s_cmp_lg_u32 {sG}, {8*(PR0+6) + 8}")
        a(f"s_cbranch_scc1 L_npub")
        a(f"ds_read_b32 v10, {vF} offset:{F_PSUM}")
        a(f"s_lshl_b32 {sT[1]}, {sB}, 11")
        a(f"s_add_u32 {sT[1]}, {sT[1]}, {hex(WS_POL)}")
        a(f"v_lshl_add_u32 v12, {vL}, 8, {sT[1]}")
        a(f"s_waitcnt lgkmcnt(0)")
        a(f"v_readfirstlane_b32 {sT[2]}, v10")
        a(f"s_cmp_gt_i32 {sT[2]}, 0")
        a(f"s_cselect_b32 {sT[2]}, 1, 0")
        a(f"s_xor_b32 {sT[2]}, {sT[2]}, {sE}")
        a(f"v_mov_b32 v11, {sT[2]}")
        a(f"s_mov_b64 exec, 0xff")
        a(f"global_store_dword v12, v11, s[28:29] sc1", "tag ^ choice, eight copies")
        a(f"s_mov_b64 exec, -1")
        a("L_npub:")
        a(f"s_cmp_lg_u32 {sG}, {8*(PR0+12) + 8}")
        a(f"s_cbranch_scc1 L_nget")
        a(f"s_lshl_b32 {sT[1]}, s2, 6")
        a(f"s_and_b32 {sT[1]}, {sT[1]}, 0x3f00")
        a(f"s_add_u32 {sT[1]}, {sT[1]}, {hex(WS_POL)}")
        a(f"s_mov_b32 {sT[3]}, 0x10000")
        a("L_pget:")
        a(f"s_load_dword {sT[2]}, s[28:29], {sT[1]} glc")
        a(f"s_sub_u32 {sT[3]}, {sT[3]}, 1")
        a(f"s_waitcnt lgkmcnt(0)")
        a(f"s_cbranch_scc1 L_pgot")
        a(f"s_xor_b32 {sT[2]}, {sT[2]}, {sE}")
        a(f"s_cmp_gt_u32 {sT[2]}, 1")
        a(f"s_cbranch_scc1 L_pget")
        a("L_pgot:")
        a(f"s_and_b32 {sT[2]}, {sT[2]}, 1")
        a(f"s_lshl_b32 {sT[2]}, {sT[2]}, 13")
        a(f"v_mov_b32 v11, {sT[2]}")
        a(f"ds_write_b32 {vF}, v11 offset:{F_POL}")
        a("L_nget:")
    a.c("wo slice trickles in, one row pair at a time")
    for j in range(16):
        rr = WOR + j * WOM // WOD
        a(f"s_cmp_lg_u32 {sR}, {rr}")
        a(f"s_cbranch_scc1 L_wo{j}")
        a(f"s_movk_i32 {sT[1]}, {2048*j}")
        a(f"buffer_load_dwordx2 v[{WREG+4*j}:{WREG+4*j+1}], {vWO}, {R}, {sT[1]} offen nt")
        a(f"buffer_load_dwordx2 v[{WREG+4*j+2}:{WREG+4*j+3}], {vWO}, {R}, {sT[1]} offen offset:1024 nt")
        a(f"L_wo{j}:")
    a(f"s_cmp_lg_u32 {sR}, {sOff}")
    a(f"s_cbranch_scc1 L_nomx")
    a.c("mixer operands: lane (r,c) handles d = 16h + c and hidden pairs (4w+r)*28 + {c, 14+c}")
    a(f"s_lshl_b32 {sT[0]}, {sH}, 5")
    a(f"v_lshl_add_u32 v11, {vCol}, 1, {sT[0]}")
    a(f"global_load_ushort {vH}, v11, s[4:5]")
    a(f"s_mul_i32 {sT[0]}, {sW}, 448")
    a(f"v_mul_u32_u24 v11, 112, {vRow}")
    a(f"v_lshl_add_u32 v11, {vCol}, 2, v11")
    a(f"v_add_u32 v11, {sT[0]}, v11")
    a(f"v_cmp_lt_u32 vcc, 13, {vCol}")
    a(f"v_mov_b32 v12, 0x10000")
    a(f"s_movk_i32 s58, 3584")
    a(f"v_cndmask_b32 v11, v11, v12, vcc", "lanes 14,15 read out of range -> 0")
    for k, p in enumerate([16, 18, 20]):
        a(f"s_mov_b32 s56, s{p}"); a(f"s_mov_b32 s57, s{p+1}")
        for s_ in range(2):
            a(f"buffer_load_dword v{MX + 5*s_ + (1,3,4)[k]}, v11, {W2}, 0 offen offset:{56*s_}")
    a(f"v_mov_b32 v12, 0")
    a(f"global_load_ushort v146, v12, s[22:23]", "b2")
    a(f"s_lshl_b32 {sT[0]}, {sB}, 8")
    a(f"s_add_u32 {sT[0]}, {sT[0]}, {hex(WS_EPOCH)}")
    a(f"s_load_dword {sE}, s[28:29], {sT[0]}", "whatever the batch's tag word holds on entry")
    a("L_nomx:")
    a(f"s_cmp_lg_u32 {sR}, 15")
    a(f"s_cbranch_scc1 L_noms")
    unpack(160)
    ln(sM2, sD2, False)
    a("s_waitcnt vmcnt(0)")
    a(f"v_lshlrev_b32 {vH}, 16, {vH}")
    a(f"v_mov_b32 {vXr}, {vH}")
    a(f"v_subrev_f32 {vH}, {sM1}, {vH}"); rbf(vH)
    a(f"v_mul_f32 {vH}, {sD1}, {vH}"); rbf(vH)
    a(f"v_subrev_f32 {vH}, {sM2}, {vH}"); rbf(vH)
    a(f"v_mul_f32 {vH}, {sD2}, {vH}"); rbf(vH)
    for s_ in range(2):
        b = MX + 5*s_
        a(f"v_lshlrev_b32 v{b}, 16, v{b+1}"); a(f"v_and_b32 v{b+1}, {sHI}, v{b+1}")
        a(f"v_lshlrev_b32 v{b+2}, 16, v{b+3}"); a(f"v_and_b32 v{b+3}, {sHI}, v{b+3}")
    kb = math.sqrt(2.0/math.pi)
    a(f"v_mov_b32 {vC0}, {hex(f2u(-2*kb*l2e))}")
    a(f"s_mov_b32 {sC1}, {hex(f2u(-2*kb*l2e*0.044715))}")
    a(f"v_mov_b32 {vMA}, 0")
    a(f"s_mul_i32 {sE}, {sE}, 1664525", "this launch's tag: a full-period step away from the word found on entry")
    a(f"s_add_u32 {sE}, {sE}, 1013904223")
    a("L_noms:")
    a(f"s_cmp_lt_u32 {sR}, 16")
    a(f"s_cbranch_scc1 L_nomix")
    a.c("mixer: gelu_tanh(u) = u / (1 + exp(-2 z)), two hidden pairs per round")
    BC = "row_newbcast:0 " + FULL
    for s_ in range(2):
        b = MX + 5*s_
        a(f"v_mul_f32_dpp v16, v{b}, {vH} {BC}"); a(f"v_mul_f32_dpp v17, v{b+1}, {vH} {BC}")
        a(f"v_cvt_pk_bf16_f32 v17, v16, v17")
        a(f"v_lshlrev_b32 v16, 16, v17"); a(f"v_and_b32 v17, {sHI}, v17")
        a(f"v_add_f32_dpp v16, v{b+2}, v16 {BC}"); a(f"v_add_f32_dpp v17, v{b+3}, v17 {BC}")
        a(f"v_cvt_pk_bf16_f32 v17, v16, v17")
        a(f"v_lshlrev_b32 v16, 16, v17"); a(f"v_and_b32 v17, {sHI}, v17")
        a(f"v_mul_f32 v18, v16, v16"); a(f"v_mul_f32 v19, v17, v17")
        a(f"v_fma_f32 v18, v18, {sC1}, {vC0}"); a(f"v_fma_f32 v19, v19, {sC1}, {vC0}")
        a(f"v_mul_f32 v18, v18, v16"); a(f"v_mul_f32 v19, v19, v17")
        a(f"v_exp_f32 v18, v18"); a(f"v_exp_f32 v19, v19")
        a(f"v_mov_b32_dpp v{b}, v{b} row_ror:15 {FULL}")
        a(f"v_add_f32 v18, 1.0, v18"); a(f"v_add_f32 v19, 1.0, v19")
        a(f"v_rcp_f32 v18, v18"); a(f"v_rcp_f32 v19, v19")
        a(f"v_mov_b32_dpp v{b+1}, v{b+1} row_ror:15 {FULL}")
        a(f"v_mul_f32 v18, v18, v16"); a(f"v_mul_f32 v19, v19, v17")
        a(f"v_cvt_pk_bf16_f32 v18, v18, v19")
        a(f"v_mov_b32_dpp v{b+2}, v{b+2} row_ror:15 {FULL}")
        a(f"v_mov_b32_dpp v{b+3}, v{b+3} row_ror:15 {FULL}")
        a(f"v_dot2c_f32_bf16_dpp {vMA}, v{b+4}, v18 {BC}")
        a(f"v_mov_b32_dpp v{b+4}, v{b+4} row_ror:15 {FULL}")
    a("L_nomix:")
    a(f"s_add_u32 {sR}, {sR}, 1")
    a(f"s_cmp_lt_u32 {sR}, 32")
    a(f"s_cbranch_scc1 L_k")
    a.c("---- softmax statistics: per-wave (max, sum), then over the 8 waves ----")
    a(f"v_mov_b32 v16, {vM}")
    allreduce("v_max_f32", "v16", 4)
    a(f"v_sub_f32 v17, {vM}, v16")
    a(f"v_mul_f32 v17, {sL2E}, v17")
    a(f"v_exp_f32 v17, v17")
    a(f"s_lshl_b32 {sT[0]}, {sW}, 3")
    a(f"v_add_u32 v18, {sT[0]}, {vF}")
    a(f"v_mul_f32 v17, v17, {vLs}")
    allreduce("v_add_f32", "v17", 4)
    a(f"ds_write_b64 v18, v[16:17] offset:{F_ML}")
    rows_sum(vMA, "v19")
    a(f"s_lshl_b32 {sT[0]}, {sW}, 6")
    a(f"s_add_u32 {sT[0]}, {sT[0]}, {L_BP}")
    a(f"v_lshl_add_u32 v19, {vCol}, 2, {sT[0]}")
    a(f"ds_write_b32 v19, {vMA}")
    arrive(F_ARRS)
    a.c("interleave the wo row pairs: (row 2j, row 2j+1) per column")
    a(f"s_mov_b32 {sT[0]}, 0x05040100")
    a(f"s_mov_b32 {sT[1]}, 0x07060302")
    a("s_waitcnt vmcnt(0)")
    for j in range(16):
        for i in range(2):
            r0 = WREG + 4*j + i; r1 = r0 + 2
            a(f"v_perm_b32 v16, v{r1}, v{r0}, {sT[0]}")
            a(f"v_perm_b32 v{r1}, v{r1}, v{r0}, {sT[1]}")
            a(f"v_mov_b32 v{r0}, v16")
    if DRY:
        a.c("walk the end-of-kernel code once with no lane active, so that it is in the instruction cache")
        a(f"s_mov_b64 exec, 0")
        a(f"s_branch L_tailb")
        a("L_dryret:")
        a(f"s_mov_b64 exec, -1")
    a.c("hand-off addresses: lane (r,c) ends with column 64w + 4c + r")
    vYA = "v13"
    if DUP:
        a(f"s_lshl_b32 {sT[0]}, {sB}, 18")
        a(f"s_add_u32 {sT[0]}, {sT[0]}, {hex(WS_IN)}")
        a(f"s_add_u32 s56, s28, {sT[0]}")
        a(f"s_addc_u32 s57, s29, 0")
        a(f"s_mov_b32 s58, 0x40000")
        a(f"s_lshl_b32 {sT[0]}, {sW}, 15")
        a(f"s_lshl_b32 {sT[1]}, {sH}, 7")
        a(f"s_add_u32 {sT[0]}, {sT[0]}, {sT[1]}")
        a(f"v_bfe_u32 v12, {vCol}, 2, 1")
        a(f"v_lshl_add_u32 {vYA}, v12, 12, {sT[0]}")
        a(f"v_lshrrev_b32 v12, 3, {vCol}")
        a(f"v_lshl_add_u32 {vYA}, v12, 14, {vYA}")
        a(f"s_movk_i32 s10, 0x2000")
    else:
        a(f"s_lshl_b32 {sT[0]}, {sB}, 17")
        a(f"s_add_u32 s56, s28, {sT[0]}")
        a(f"s_addc_u32 s57, s29, 0")
        a(f"s_mov_b32 s58, 0x20000")
        a(f"s_lshl_b32 {sT[0]}, {sW}, 14")
        a(f"s_lshl_b32 {sT[1]}, {sH}, 7")
        a(f"s_add_u32 {sT[0]}, {sT[0]}, {sT[1]}")
        a(f"v_lshrrev_b32 v12, 2, {vCol}")
        a(f"v_lshl_add_u32 {vYA}, v12, 12, {sT[0]}")
    a(f"v_and_b32 v12, 3, {vCol}")
    a(f"v_lshl_add_u32 {vYA}, v12, 5, {vYA}")
    a(f"v_lshl_add_u32 {vYA}, {vRow}, 3, {vYA}")
    if IB >= 0:
        a(f"v_lshrrev_b32 v12, 1, {vYA}")
        a(f"v_xor_b32 v12, v12, {vYA}")
        a(f"v_and_b32 v12, 0x2000, v12")
        a(f"v_mul_u32_u24 v12, 3, v12")
        a(f"v_xor_b32 {vYA}, v12, {vYA}")
        if IB: a(f"v_xor_b32 {vYA}, {IB << 12}, {vYA}")
    if o.get("stm", 2) == 4:
        a(f"v_and_b32 v12, 1, {vRow}")
        a(f"v_lshl_add_u32 {vYA}, v12, 17, {vYA}")
    spin(F_ARRS, "s_cmp_ge_u32", 8, "v10", sT[0])
    a(f"v_and_b32 v18, 7, {vL}")
    a(f"v_lshl_add_u32 v18, v18, 3, {vF}")
    a(f"ds_read_b64 v[16:17], v18 offset:{F_ML}")
    a(f"v_lshlrev_b32 v19, 2, {vL}")
    a(f"v_add_u32 v18, {L_BP}, v19")
    a(f"ds_read_b32 v20, v18")
    a(f"ds_read_b32 v21, v18 offset:256")
    if POL: a(f"ds_read_b32 v12, {vF} offset:{F_POL}")
    a("s_waitcnt lgkmcnt(0)")
    if POL: a(f"v_xor_b32 {vYA}, v12, {vYA}")
    a(f"v_mov_b32 {vM}, v16")
    allreduce("v_max_f32", vM, 3)
    a(f"v_sub_f32 v16, v16, {vM}")
    a(f"v_mul_f32 v16, {sL2E}, v16")
    a(f"v_exp_f32 v16, v16")
    a(f"v_add_f32 v20, v20, v21")
    a(f"v_mul_f32 {vLs}, v16, v17")
    allreduce("v_add_f32", vLs, 3)
    a(f"v_rcp_f32 {vLs}, {vLs}")
    rows_sum("v20", "v21")
    rbf("v20")
    a(f"v_lshlrev_b32 v146, 16, v146")
    a(f"v_add_f32 v20, v146, v20")
    rbf("v20")
    a(f"v_lshl_add_u32 v18, {vCol}, 2, {vF}")
    a(f"v_mov_b32 v19, {sE}")
    a(f"ds_write_b32 v18, {vXr} offset:{L_FIN - L_FL}", "operands of the final stage (all waves write the same values)")
    a(f"ds_write_b32 v18, v20 offset:{L_FIN - L_FL + 64}")
    a(f"ds_write_b32 {vF}, v19 offset:{F_TAG}")
    a(f"s_lshl_b32 {sT[0]}, {sW}, 12")
    a(f"v_lshl_add_u32 {vKA}, {vL}, 4, {sT[0]}")
    a(f"v_and_b32 {vSA}, 3, {vL}")
    a(f"v_lshl_add_u32 {vSA}, {vSA}, 2, {vRow}")
    a(f"s_lshl_b32 {sT[0]}, {sW}, 6")
    a(f"s_add_u32 {sT[0]}, {sT[0]}, {L_SC}")
    a(f"v_lshl_add_u32 {vSA}, {vSA}, 2, {sT[0]}")
    for i in range(8): a(f"v_mov_b32 {ACC[i]}, 0")
    Y = ["v48", "v50", "v51", "v52"]
    for y in Y: a(f"v_mov_b32 {y}, 0")
    a(f"v_mov_b32 v49, {sE}")
    stamp(4)
    a("s_branch L_v")
    a("L_vc:")
    if DUP == 1:
        NR = o.get("nr", 2)
        a.c("which copy of the inbox answers first?  (placement only: either copy carries the same data)")
        a(f"s_sub_u32 {sT[1]}, {sG}, {o.get('rg', 320)}")
        a(f"s_cmp_ge_u32 {sT[1]}, {8 * NR}")
        a(f"s_cbranch_scc1 L_nrace")
        a(f"s_and_b32 {sT[2]}, {sH}, 0x1e")
        a(f"s_add_u32 {sT[2]}, {sT[2]}, {sH}")
        a(f"s_lshl_b32 {sT[2]}, {sT[2]}, 12")
        a(f"s_lshl_b32 {sT[1]}, {sT[1]}, 8")
        a(f"s_add_u32 {sT[2]}, {sT[2]}, {sT[1]}")
        a(f"s_lshl_b32 {sT[1]}, {sW}, 13")
        a(f"s_and_b32 {sT[1]}, {sT[1]}, 0x2000", "odd waves ask the second copy first")
        a(f"s_add_u32 {sT[2]}, {sT[2]}, {sT[1]}")
        a(f"s_xor_b32 {sT[3]}, {sT[2]}, 0x2000")
        a(f"s_load_dword s80, s[56:57], {sT[2]} glc")
        a(f"s_load_dword s81, s[56:57], {sT[3]} glc")
        a(f"s_waitcnt lgkmcnt(0)")
        a(f"s_not_b32 s82, s80")
        a(f"s_load_dword s82, s[56:57], {sT[2]} glc")
        a(f"s_load_dword s83, s[56:57], {sT[3]} glc")
        a(f"s_waitcnt lgkmcnt(1)")
        a(f"s_cmp_eq_u32 s82, s80")
        a(f"s_cselect_b32 {sT[4]}, {sT[2]}, {sT[3]}", "offset of the winner")
        a(f"s_waitcnt lgkmcnt(0)")
        a(f"s_bitcmp1_b32 {sT[4]}, 13")
        a(f"s_cselect_b32 {sT[4]}, 1, -1")
        a(f"v_mov_b32 v11, {sT[4]}")
        a(f"s_mov_b64 exec, 1")
        a(f"ds_add_u32 {vF}, v11 offset:16")
        a(f"s_mov_b64 exec, -1")
        a("L_nrace:")
    ctl("v")
    if o.get("fg1", 440):
        fs1 = o.get("fs1", 2)
        ctl("w", FG0=o.get("fg1", 440), FP=o.get("fp1", 4), FS=fs1, FSA=o.get("fsa1", (7 * fs1) // 2 + 1), FEND=o.get("fend1", 490),
            BG=o.get("bg1", 50), B0=o.get("b01", B0), WS_MARK=WS_MARK + 0x100000)
    a("L_v:")
    a(f"ds_read_b32 v16, {vSA}")
    a(f"v_add_u32 {vSA}, 512, {vSA}")
    a(f"v_add_u32 {vDn}, 1, {vDn}")
    a("s_waitcnt lgkmcnt(0)")
    a(f"v_sub_f32 v16, v16, {vM}", "p = bf16(exp(s - max) / sum)")
    a(f"v_mul_f32 v16, {sL2E}, v16")
    a(f"v_exp_f32 v16, v16")
    a(f"s_nop 0")
    a(f"v_mul_f32 v16, v16, {vLs}")
    a(f"v_cvt_pk_bf16_f32 v16, v16, v16")
    a(f"v_lshrrev_b32 v17, 16, v16")
    a(f"v_and_b32 v16, {sHI}, v16")
    spin(F_LAND, "s_cmp_gt_i32", sG, "v10", sT[0])
    for t in range(4): a(f"ds_read_b128 v[{DT+4*t}:{DT+4*t+3}], {vKA} offset:{1024*t}")
    a(f"v_add_u32 {vKA}, 0x8000, {vKA}")
    a(f"v_and_b32 {vKA}, 0x1ffff, {vKA}")
    a(f"s_add_u32 {sG}, {sG}, 8")
    a(f"s_cmpk_lt_u32 {sG}, 512")
    for j in range(4):
        a(f"s_waitcnt lgkmcnt({3-j})")
        if j == 3: a(f"ds_write_b32 {vDA}, {vDn} offset:{F_DONE}")
        for i in range(4):
            a(f"v_dot2c_f32_bf16_dpp {ACC[2*i]}, v17, v{DT+4*j+i} quad_perm:[{j},{j},{j},{j}] {FULL}")
            a(f"v_dot2c_f32_bf16_dpp {ACC[2*i+1]}, v16, v{DT+4*j+i} quad_perm:[{j},{j},{j},{j}] {FULL}")
    a(f"s_cbranch_scc1 L_vc")
    stamp(5)
    a.c("---- o over rows and waves, output projection, hand-off ----")
    a("s_nop 1")
    rows_reduce8(vPW)
    a("s_waitcnt lgkmcnt(0)")
    a("s_barrier")
    a("L_tailb:")
    tstamp(1)
    sum8(DT, vPR)
    a("s_nop 1")
    tstamp(2)
    for j in range(16):
        for c in range(4):
            a(f"v_dot2c_f32_bf16_dpp {Y[c]}, v{DT}, v{WREG+4*j+(0,2,1,3)[c]} row_newbcast:{j} {FULL}")
    a("s_nop 1")
    a(f"v_permlane32_swap_b32 {Y[0]}, {Y[2]}")
    a(f"v_permlane32_swap_b32 {Y[1]}, {Y[3]}")
    a(f"v_add_f32 {Y[0]}, {Y[0]}, {Y[2]}")
    a(f"v_add_f32 {Y[1]}, {Y[1]}, {Y[3]}")
    STM = o.get("stm", 2); STP = o.get("stp", "sc1")
    if STM == 4:
        a(f"v_mov_b32 {Y[2]}, {Y[0]}"); a(f"v_mov_b32 {Y[3]}, {Y[1]}")
        a("s_nop 0")
        a(f"v_permlane16_swap_b32 {Y[0]}, {Y[2]}")
        a(f"v_permlane16_swap_b32 {Y[1]}, {Y[3]}")
        a(f"v_add_f32 {Y[0]}, {Y[0]}, {Y[2]}")
        a(f"v_add_f32 {Y[1]}, {Y[1]}, {Y[3]}")
        a(f"v_mov_b32 v51, v49")
    else:
        a("s_nop 1")
        a(f"v_permlane16_swap_b32 {Y[0]}, {Y[1]}")
        a(f"v_add_f32 {Y[0]}, {Y[0]}, {Y[1]}")
    if DRY: a(f"s_cbranch_execz {'L_drain' if DRY == 2 else 'L_fin0'}")
    if STM == 4: a(f"buffer_store_dwordx4 v[48:51], {vYA}, {W2}, 0 offen {STP}")
    elif STM == 2: a(f"buffer_store_dwordx2 v[48:49], {vYA}, {W2}, 0 offen {STP}", "{partial, tag} to the workgroup that owns the column")
    if DUP: a(f"buffer_store_dwordx2 v[48:49], {vYA}, {W2}, s10 offen {STP}", "second copy, homed on the other half of the memory")
    if STM == 3: a(f"buffer_atomic_swap_x2 v[48:49], {vYA}, {W2}, 0 offen {STP}")
    if o.get("wb", 0): a("buffer_wbl2 sc1")
    tstamp(3)
    stamp(6); stamp(7)
    a("L_fin:")
    if STAMP: a(f"s_mov_b64 exec, -1")
    stamp(8)
    if STAMP in (4, 5):
        a("s_memrealtime s[72:73]")
        a("s_waitcnt lgkmcnt(0)")
        a(f"s_cmp_lg_u32 {sW}, {o.get('lw', -1)}"); a("s_cbranch_scc1 L_end")
        if "swg" in o: a(f"s_cmp_lg_u32 s2, {o['swg']}"); a("s_cbranch_scc1 L_end")
        a(f"s_sub_u32 s74, s{60+2*o['t1']}, s{60+2*o['t0']}")
        if o.get("avg", 0):
            a("L_hold:")
            a("s_memrealtime s[76:77]"); a("s_waitcnt lgkmcnt(0)"); a("s_sub_u32 s76, s76, s60")
            a(f"s_cmp_lt_u32 s76, 8500"); a("s_cbranch_scc1 L_hold")
            a("s_add_u32 s74, s74, 0x1000000")
            a("s_mov_b32 s75, s74")
            a("s_atomic_add s75, s[26:27], 0 glc")
            a("s_waitcnt lgkmcnt(0)")
            a("s_add_u32 s74, s74, s75")
            a("s_cbranch_scc0 L_end")
            a("s_lshr_b32 s74, s74, 8")
        a(f"s_sub_u32 s74, s74, {o.get('sub', 0)}")
        if o.get("neg", 0): a("s_sub_u32 s74, 0, s74")
        a(f"s_mul_i32 s74, s74, {o.get('amp', 10)}")
        a(f"s_add_u32 s74, s74, 10000"); a(f"s_min_u32 s74, s74, 100000")
        a("L_pin3:")
        a("s_memrealtime s[76:77]"); a("s_waitcnt lgkmcnt(0)"); a("s_sub_u32 s76, s76, s60")
        a(f"s_cmp_lt_u32 s76, s74"); a("s_cbranch_scc1 L_pin3")
    if STAMP == 1:
        a("s_waitcnt vmcnt(0) lgkmcnt(0)")
        a(f"s_mul_i32 {sT[0]}, s2, 9"); a(f"s_add_u32 {sT[0]}, {sT[0]}, {sW}"); a(f"s_add_u32 {sT[0]}, {sT[0]}, 1")
        a(f"s_lshl_b32 {sT[0]}, {sT[0]}, 7"); a(f"s_add_u32 {sT[0]}, {sT[0]}, 0x100000")
        a(f"v_mov_b32 v16, 0")
        for i in range(18): a(f"v_writelane_b32 v16, s{60+i}, {i}")
        a(f"s_getreg_b32 {sT[1]}, hwreg(HW_REG_XCC_ID)"); a(f"s_getreg_b32 {sT[2]}, hwreg(HW_REG_HW_ID)")
        a(f"v_writelane_b32 v16, {sT[1]}, 18"); a(f"v_writelane_b32 v16, {sT[2]}, 19")
        a(f"v_writelane_b32 v16, {sSpin}, 20"); a(f"v_writelane_b32 v16, s79, 21"); a(f"v_writelane_b32 v16, s88, 22")
        if POL: a(f"ds_read_b32 v23, {vF} offset:{F_PSUM}"); a("s_waitcnt lgkmcnt(0)")
        if DUP or POL: a("v_readfirstlane_b32 s89, v23"); a("s_nop 3"); a(f"v_writelane_b32 v16, s89, 23")
        a(f"v_lshl_add_u32 v17, {vL}, 2, {sT[0]}")
        a(f"s_mov_b64 exec, 0xffffffff")
        a(f"global_store_dword v17, v16, s[28:29]")
    a("L_end:")
    a("s_endpgm")

    head = open("cdna_kernels/%s.s.ref" % NAME).read().split("; Override launch")[0]
    out = head + f"; @launch grid=(256,1,1) block=(576,1,1) lds={LDS_BYTES}\n"
    out += '.amdgcn_target "amdgcn-amd-amdhsa--gfx950"\n.text\n'
    out += f".globl {NAME}_kernel\n.p2align 8\n.type {NAME}_kernel,@function\n" + a.text()
    out += f""".section .rodata,"a"
.p2align 6
.amdhsa_kernel {NAME}_kernel
  .amdhsa_next_free_vgpr 168
  .amdhsa_next_free_sgpr 96
  .amdhsa_accum_offset 168
  .amdhsa_group_segment_fixed_size 0
  .amdhsa_kernarg_size 104
  .amdhsa_user_sgpr_count 2
  .amdhsa_user_sgpr_kernarg_segment_ptr 1
  .amdhsa_system_sgpr_workgroup_id_x 1
  .amdhsa_float_denorm_mode_32 3
.end_amdhsa_kernel
"""
    return out
if __name__ == "__main__":
    opts = {}
    for kv in sys.argv[2:]:
        k, v = kv.split("=")
        try: opts[k] = int(v, 0)
        except ValueError: opts[k] = v.replace("+", " ")
    open(sys.argv[1], "w").write(gen(opts))
```

```python
import sys, struct, math
NAME = "parallel_sum__mha_block_cached__mixer_token_mlp__decode"
def f2u(x): return struct.unpack("<I", struct.pack("<f", x))[0]
class Asm:
    def __init__(self): self.lines = []
    def __call__(self, s, c=None):
        s = s.strip()
        l = s if s.endswith(":") else "    " + s
        if c: l = l.ljust(72) + "; " + c
        self.lines.append(l)
    def c(self, s): self.lines.append("    ; " + s)
    def text(self): return "\n".join(self.lines) + "\n"

DOC = """; ---------------------------------------------------------------------------------------------------
; Design.  One workgroup per (batch b, head h) = one per CU (LDS size), 9 waves.
;      Granules 32 KiB apart (same DRAM rows) are fetched back to back.  K and V use the same order.
;      LayerNorm, q = xn @ wq[:, head] (dot2), scores by MFMA with the reference's bf16 roundings, running max/sum,
;      y = bf16(o) @ wo[head rows, :].
;  Sum over heads: every workgroup sends 16 columns of y to each of the 32 workgroups of its batch as
;      {value, tag} pairs in d_ws; wave 0 of the owner waits for its 32 x 16 pairs, adds x and the mixer output.
;  Speed only (never the result): workgroups compare their progress with eight reference workgroups and trim the
; ---------------------------------------------------------------------------------------------------
"""
def gen(o):
    D = o.get("d", 26); DS = o.get("ds", 24); RS = o.get("rs", 4)
    STAMP = o.get("stamp", 0); TS = o.get("ts", 0)
    BOUND = o.get("bound", 0)
    FB = o.get("fb", 1)
    FP = o.get("fp", 8); FS = o.get("fs", 3); FG0 = o.get("fg0", 212); FR = o.get("frep", 8)
    FSA = o.get("fsa", (7 * FS) // 2 + 1); FEND = o.get("fend", 440)
    B0 = o.get("b0", 155); BG = o.get("bg", 42)
    WQS = o.get("wqs", 4); WQ2 = o.get("wq2", 4); PRE = 3
    PJ = [int(x) for x in str(o.get("pj", "6,11")).split(",")]
    WOR = o.get("wor", 6); WOM = o.get("wom", 3); WOD = o.get("wod", 2); WMR = 6
    DRY = o.get("dry", 2); PP = o.get("pp", 1)
    SP = o.get("sp", "nt")
    P13 = o.get("p13", 1)
    if P13 and "ro" not in o: o["ro"] = "14,16,17,18,19"
    POL = o.get("pol", 1); WS_POL = 0x190000; F_PSUM, F_POL = 16, 20
    if POL: o["ib"] = 0
    a = Asm()
    FULL = "row_mask:0xf bank_mask:0xf"
    l2e = 1.0 / math.log(2.0)
    WS_EPOCH = 0x180000; WS_MARK = 0x200000
    sE, sL2E, sC1 = "s3", "s14", "s15"
    sB, sH, sW, sOff, sR, sG = "s30", "s31", "s32", "s33", "s34", "s35"
    R = "s[36:39]"; W2 = "s[56:59]"
    sM1, sD1, sM2, sD2 = "s40", "s41", "s42", "s43"
    sT = [f"s{44+i}" for i in range(8)]
    sHI, sB2, sSpin, sK, sTg = "s52", "s53", "s54", "s55", "s78"
    sCnt, sAcc, sInc, sSrc, sX = "s40", "s46", "s47", "s50", "s51"
    L_SC = 131072; L_QP = L_SC + 16384; L_XN = L_QP + 4352; L_BP = L_XN + 1024; L_FL = L_BP + 512
    F_LAND, F_ARRQ, F_ARRS, F_TAG, F_DONE, F_RATE, F_ML = 0, 4, 8, 12, 32, 64, 192
    L_FIN = L_FL + 256
    LDS_BYTES = L_FIN + 128
    vL, vRow, vCol, vF = "v0", "v1", "v2", "v3"
    WREG, QF, DT, MX = 64, 48, 32, 128
    ACC = [f"v{24+i}" for i in range(8)]
    ST = [DT, 128, 144]
    nlab = [0]
    def lab(p): nlab[0] += 1; return f"L_{p}{nlab[0]}"
    def stamp(i, force=False):
        if STAMP == 1 or (STAMP >= 4 and i in (0, 5)) or force: a(f"s_memrealtime s[{60+2*i}:{61+2*i}]")
    def tstamp(i):
        if TS: a(f"s_memrealtime s[{60+2*i}:{61+2*i}]")
    def wave_reduce(op, v, sdst):
        for ctl in ["quad_perm:[1,0,3,2] "+FULL, "quad_perm:[2,3,0,1] "+FULL, "row_half_mirror "+FULL, "row_mirror "+FULL,
                    "row_bcast:15 row_mask:0xa bank_mask:0xf", "row_bcast:31 row_mask:0xc bank_mask:0xf"]:
            a("s_nop 1"); a(f"{op}_dpp {v}, {v}, {v} {ctl}")
        a("s_nop 1"); a(f"v_readlane_b32 {sdst}, {v}, 63")
    def allreduce(op, v, steps):
        for ctl in ["quad_perm:[1,0,3,2]", "quad_perm:[2,3,0,1]", "row_half_mirror", "row_mirror"][:steps]:
            a("s_nop 1"); a(f"{op}_dpp {v}, {v}, {v} {ctl} {FULL}")
    def rbf(v):
        a(f"v_cvt_pk_bf16_f32 {v}, {v}, {v}"); a(f"v_and_b32 {v}, {sHI}, {v}")
    def spin(off, cmp, val, tmpv, tmps):
        l0, l1 = lab("sp"), lab("go")
        a(f"{l0}:")
        a(f"ds_read_b32 {tmpv}, {vF} offset:{off}")
        a("s_waitcnt lgkmcnt(0)")
        a(f"v_readfirstlane_b32 {tmps}, {tmpv}")
        a(f"{cmp} {tmps}, {val}")
        if BOUND:
            a(f"s_cbranch_scc1 {l1}")
            a(f"s_sub_u32 {sSpin}, {sSpin}, 1"); a(f"s_cbranch_scc1 L_end"); a(f"s_branch {l0}")
            a(f"{l1}:")
        else: a(f"s_cbranch_scc0 {l0}")
    def rows_sum(v, t):
        a(f"v_mov_b32 {t}, {v}"); a("s_nop 1"); a(f"v_permlane32_swap_b32 {v}, {t}"); a(f"v_add_f32 {v}, {v}, {t}")
        a(f"v_mov_b32 {t}, {v}"); a("s_nop 1"); a(f"v_permlane16_swap_b32 {v}, {t}"); a(f"v_add_f32 {v}, {v}, {t}")
    def rows_reduce8(vaddr):
        for i in range(4): a(f"v_permlane32_swap_b32 {ACC[i]}, {ACC[i+4]}")
        a("v_pk_add_f32 v[24:25], v[24:25], v[28:29]"); a("v_pk_add_f32 v[26:27], v[26:27], v[30:31]")
        a("s_nop 1")
        for i in range(2): a(f"v_permlane16_swap_b32 {ACC[i]}, {ACC[i+2]}")
        a("v_pk_add_f32 v[24:25], v[24:25], v[26:27]")
        a(f"ds_write_b64 {vaddr}, v[24:25]")
    def arrive(off):
        a(f"v_mov_b32 v10, 1")
        a("s_waitcnt lgkmcnt(0)")
        a(f"s_mov_b64 exec, 1"); a(f"ds_add_u32 {vF}, v10 offset:{off}"); a(f"s_mov_b64 exec, -1")
    def sum8(base, vaddr):
        for w in range(8): a(f"ds_read_b64 v[{base+2*w}:{base+2*w+1}], {vaddr} offset:{528*w}")
        a(f"s_waitcnt lgkmcnt({0 if TS else 4})")
        pk = lambda d, x: a(f"v_pk_add_f32 v[{base+d}:{base+d+1}], v[{base+d}:{base+d+1}], v[{base+x}:{base+x+1}]")
        pk(0, 4); pk(2, 6); pk(0, 2)
        a("s_waitcnt lgkmcnt(0)")
        pk(8, 12); pk(10, 14); pk(8, 10); pk(0, 8)
        a(f"v_cvt_pk_bf16_f32 v{base}, v{base}, v{base+1}")
    def ctl(tag, FG0=FG0, FP=FP, FS=FS, FSA=FSA, FEND=FEND, BG=BG, B0=B0, WS_MARK=WS_MARK):
        if not FB: return
        a.c("flow control: compare own progress with eight reference workgroups, set the loader's idle-slot rate")
        a(f"s_sub_u32 {sT[1]}, {sG}, {FG0 + 8}")
        a(f"s_cmp_ge_u32 {sT[1]}, {FEND - FG0 - 8}")
        a(f"s_cbranch_scc1 L_nc{tag}")
        a(f"s_and_b32 {sT[2]}, {sT[1]}, {8*FP - 1}", "phase inside the control period")
        a(f"s_lshr_b32 {sT[1]}, {sT[1]}, {(8*FP).bit_length() - 1}", "checkpoint number")
        a(f"s_mul_i32 {sT[3]}, {sT[1]}, {FR * 4352}")
        a(f"s_add_u32 {sT[3]}, {sT[3]}, {hex(WS_MARK)}")
        a(f"s_cmp_ge_u32 s2, 8")
        a(f"s_cbranch_scc1 L_cs{tag}")
        a(f"s_add_u32 {sT[4]}, s2, {sT[1]}")
        a(f"s_and_b32 {sT[4]}, {sT[4]}, 7")
        a(f"s_mul_i32 {sT[4]}, {sT[4]}, {FS}")
        a(f"s_cmp_eq_u32 {sT[2]}, {sT[4]}")
        a(f"s_cbranch_scc0 L_cs{tag}")
        a(f"v_mul_u32_u24 v10, 4352, {vL}")
        a(f"s_lshl_b32 {sT[4]}, s2, 2")
        a(f"s_add_u32 {sT[4]}, {sT[4]}, {sT[3]}")
        a(f"v_add_u32 v10, {sT[4]}, v10")
        a(f"v_mov_b32 v11, {sTg}")
        a(f"s_mov_b64 exec, {hex((1 << FR) - 1)}")
        a(f"global_store_dword v10, v11, s[28:29] sc1", "reference workgroup: leave this launch's mark")
        a(f"s_mov_b64 exec, -1")
        a(f"L_cs{tag}:")
        a(f"s_cmp_eq_u32 {sT[2]}, {FSA}")
        a(f"s_cbranch_scc0 L_nc{tag}")
        a(f"s_bfe_u32 {sT[2]}, s2, {hex(3 | ((FR.bit_length() - 1) << 16))}")
        a(f"s_mul_i32 {sT[2]}, {sT[2]}, 4352")
        a(f"s_add_u32 {sT[3]}, {sT[3]}, {sT[2]}")
        a(f"s_load_dwordx8 s[80:87], s[28:29], {sT[3]} glc")
        a(f"s_mov_b32 {sT[2]}, 4")
        a(f"s_waitcnt lgkmcnt(0)")
        for i in range(8):
            a(f"s_cmp_eq_u32 s{80+i}, {sTg}")
            a(f"s_subb_u32 {sT[2]}, {sT[2]}, 0")
        BI = o.get("bi", 0)
        if BI:
            a(f"s_mul_i32 {sT[3]}, {sT[2]}, {BI}")
        a(f"s_mul_i32 {sT[2]}, {sT[2]}, {BG}")
        a(f"s_add_u32 {sT[2]}, {sT[2]}, {B0}")
        if BI:
            a(f"s_add_u32 {sT[2]}, {sT[2]}, s11")
            a(f"s_add_u32 s11, s11, {sT[3]}")
            a(f"s_max_i32 s11, s11, {-o.get('bim', 70)}")
            a(f"s_min_i32 s11, s11, {o.get('bim', 70)}")
        a(f"s_max_i32 {sT[2]}, {sT[2]}, 0")
        a(f"s_min_i32 {sT[2]}, {sT[2]}, 255")
        a(f"v_mov_b32 v11, {sT[2]}")
        a(f"ds_write_b32 {vF}, v11 offset:{F_RATE}")
        a(f"L_nc{tag}:")

    a(f"{NAME}_kernel:")
    a("s_cmpk_ge_u32 s2, 256")
    a("s_cbranch_scc1 L_end")
    a("s_load_dwordx16 s[4:19], s[0:1], 0")
    a("s_load_dwordx8 s[20:27], s[0:1], 64")
    a("s_load_dwordx2 s[28:29], s[0:1], 96")
    stamp(0)
    HS = o.get("hs", 4)
    js = (D - 1) % 4; jss = (DS - 1) % 4
    if HS:
        assert HS % 2 == 0 and 4 * HS <= DS
        a(f"v_readfirstlane_b32 {sW}, v0")
        a(f"v_and_b32 {vL}, 63, v0")
        a(f"v_lshrrev_b32 {vRow}, 4, {vL}")
        a(f"v_and_b32 {vCol}, 15, {vL}")
        a(f"s_mov_b32 s39, 0x20000")
        a(f"s_lshr_b32 {sW}, {sW}, 6")
        a("s_cbranch_scc1 L_cons")
        a(f"v_xor_b32 v4, {vCol}, {vRow}", "K rows are stored with their 16-byte chunks xor-swizzled by key&15")
        a(f"v_lshlrev_b32 v4, 4, v4")
        a(f"v_lshl_add_u32 v4, {vRow}, 8, v4")
        a(f"v_xor_b32 v5, 64, v4")
        a(f"v_xor_b32 v6, 0x80, v4")
        a(f"v_xor_b32 v7, 64, v6")
        a(f"s_lshl_b32 s38, 1, 20")
        a(f"s_lshl_b32 {sT[0]}, s2, 20")
        if "gx" in o:
            a(f"s_mov_b32 {sX}, 0")
            for x in [y for y in o["gx"].split(",") if y.strip()]:
                ab, wb = x.split("^")
                a(f"s_bfe_u32 s49, s2, {hex(int(wb) | (1 << 16))}"); a(f"s_lshl_b32 s49, s49, {ab}"); a(f"s_xor_b32 {sX}, {sX}, s49")
        elif "gm" in o:
            a(f"s_mul_i32 {sX}, s2, {o['gm']}")
            a(f"s_and_b32 {sX}, {sX}, 0x7000")
        else:
            a(f"s_lshl_b32 {sX}, s2, 10")
            a(f"s_and_b32 {sX}, {sX}, 0x6000")
        a(f"s_mov_b32 {sOff}, 0")
        a(f"s_mov_b32 m0, 0")
        if P13 and o.get("ra", 0): a("s_movk_i32 s41, 0x1000"); a("s_movk_i32 s42, 0x2000")
        elif P13: a("s_movk_i32 s41, 0x2000"); a("s_movk_i32 s42, 0x1000")
        a("s_waitcnt lgkmcnt(0)")
        a(f"s_add_u32 s36, s6, {sT[0]}")
        a(f"s_addc_u32 s37, s7, 0")
        if o.get("ss", 0): stamp(1, True)
        a("L_l0:")
        a(f"s_xor_b32 {sSrc}, {sOff}, {sX}")
        for j in range(4): a(f"buffer_load_dwordx4 v{4+j}, {R}, {sSrc} offen offset:{1024*j} {SP} lds")
        a(f"s_addk_i32 m0, 4096")
        a(f"s_bitset1_b32 {sSrc}, 15")
        for j in range(4): a(f"buffer_load_dwordx4 v{4+j}, {R}, {sSrc} offen offset:{1024*j} {SP} lds")
        a(f"s_addk_i32 m0, 4096")
        if P13:
            a(f"s_xor_b32 {sOff}, {sOff}, s41"); a(f"s_xor_b32 s41, s41, s42")
            a(f"s_cmpk_lg_u32 m0, {HS * 4096}")
        else:
            a(f"s_addk_i32 {sOff}, 4096")
            a(f"s_cmpk_lg_u32 {sOff}, {HS * 2048}")
        a(f"s_cbranch_scc1 L_l0")
        if o.get("ss", 0): stamp(2, True); stamp(3, True)
        a("s_barrier", "the consumers have cleared the flag block")
        a("s_setprio 3")
        a(f"s_xor_b32 {sSrc}, {sOff}, {sX}")
        a(f"v_mov_b32 {vF}, {L_FL}")
        a(f"v_mov_b32 v8, {(4*HS + jss - DS - 3)//4}", "landed-granule counter")
        a(f"v_mov_b32 v10, 0")
        a(f"s_mov_b32 {sW}, -1")
    else:
        a(f"v_lshrrev_b32 v4, 6, v0")
        a(f"v_and_b32 {vL}, 63, v0")
        a(f"v_readfirstlane_b32 {sW}, v4")
        a(f"v_mov_b32 {vF}, {L_FL}")
        a(f"v_lshl_add_u32 v9, {vL}, 2, {vF}")
        a(f"v_mov_b32 v10, 0")
        a(f"ds_write_b32 v9, v10", "every wave clears the flag block before the barrier")
        a(f"v_lshrrev_b32 {vRow}, 4, {vL}")
        a(f"v_and_b32 {vCol}, 15, {vL}")
        a(f"s_mov_b32 s39, 0x20000")
        a(f"s_mov_b32 s38, 0x100000")
        a(f"s_lshl_b32 {sT[0]}, s2, 20")
        a(f"v_xor_b32 v4, {vCol}, {vRow}", "K rows are stored with their 16-byte chunks xor-swizzled by key&15")
        a(f"v_lshlrev_b32 v4, 4, v4")
        a(f"v_lshl_add_u32 v4, {vRow}, 8, v4")
        a(f"v_xor_b32 v5, 64, v4")
        a(f"v_xor_b32 v6, 0x80, v4")
        a(f"v_xor_b32 v7, 64, v6")
        js = (D - 1) % 4; jss = (DS - 1) % 4
        a(f"v_mov_b32 v8, {(jss - DS - 3)//4}", "landed-granule counter")
        a(f"s_mov_b32 {sOff}, 0")
        a(f"s_lshl_b32 {sX}, s2, 10")
        a(f"s_and_b32 {sX}, {sX}, 0x6000")
        a(f"s_mov_b32 {sSrc}, {sX}")
        a(f"s_mov_b32 m0, 0")
        a(f"s_sub_u32 {sW}, {sW}, 1", "consumer index; borrow marks the loader")
        a("s_waitcnt lgkmcnt(0)")
        a("s_barrier")
        a("s_cbranch_scc0 L_cons")

        a("s_setprio 3")
        a(f"s_add_u32 s36, s6, {sT[0]}")
        a(f"s_addc_u32 s37, s7, 0")
    RO = [int(x) for x in str(o.get("ro", "0")).split(",")]
    LOC = o.get("loc", 0)
    def round_base(src, lo):
        if LOC:
            a(f"s_bfe_u32 s49, {src}, {hex(lo | (4 << 16))}")
            a(f"s_lshl_b32 s43, s49, 16")
            a(f"s_bfe_u32 s49, {src}, {hex((lo + 4) | (1 << 16))}")
            a(f"s_lshl_b32 s49, s49, 22")
            a(f"s_or_b32 s43, s43, s49")
            if LOC == 3:
                a(f"s_mov_b32 {sOff}, s43")
                a(f"s_xor_b32 {sSrc}, {sOff}, {sX}")
                return
        first = True; i = 0
        while i < 5:
            j = i
            while j + 1 < 5 and RO[j+1] == RO[j] + 1: j += 1
            a(f"s_bfe_u32 s49, {src}, {hex((lo + i) | ((j - i + 1) << 16))}")
            a(f"s_lshl_b32 {sOff if first else 's49'}, s49, {RO[i]}")
            if not first: a(f"s_or_b32 {sOff}, {sOff}, s49")
            first = False; i = j + 1
        if LOC == 1 and src == sR:
            a(f"s_cmp_ge_u32 {sR}, 32")
            a(f"s_cselect_b32 {sOff}, s43, {sOff}")
        a(f"s_xor_b32 {sSrc}, {sOff}, {sX}")
    def pair_body(Dw, jw, fb, tag):
        for half in range(2):
            for j in range(4):
                if fb and j % 2 == 0:
                    a(f"s_add_u32 {sAcc}, {sAcc}, {sInc}")
                    a(f"s_cbranch_scc0 L_nd{tag}{half}{j}")
                    a(f"buffer_load_dword v12, v4, {R}, s38 offen", "out of range: takes one slot of the window, moves no data")
                    a(f"L_nd{tag}{half}{j}:")
                a(f"s_waitcnt vmcnt({Dw-1})")
                a(f"buffer_load_dwordx4 v{4+j}, {R}, {sSrc} offen offset:{1024*j} {SP} lds")
                if j == jw:
                    a("v_add_u32 v8, 1, v8"); a(f"ds_write_b32 {vF}, v8")
                if half == 0 and j == 0 and RO == [0]: a(f"s_bitset1_b32 {sOff}, 15")
                if half == 0 and j == 1:
                    if P13: a(f"s_xor_b32 {sOff}, {sOff}, s41")
                    else: a(f"s_addk_i32 {sOff}, 4096")
                if half == 0 and j == 2 and P13: a(f"s_xor_b32 s41, s41, s42")
                if half == 0 and j == 2 and RO == [0]: a(f"s_bitset0_b32 {sOff}, 15")
            a(f"s_addk_i32 m0, 4096")
            if half == 0: a(f"s_bitset1_b32 {sSrc}, 15")
            else: a(f"s_xor_b32 {sSrc}, {sOff}, {sX}")
    if o.get("ss", 0) and not HS: stamp(1, True)
    a("L_ls:")
    pair_body(DS, jss, 0, "s")
    if o.get("ss", 0):
        for k, g in ((2, 2), (3, 6), (6, 8), (7, 16)):
            a(f"s_cmp_lg_u32 m0, {g*4096}"); a(f"s_cbranch_scc1 L_ss{k}"); stamp(k, True); a(f"L_ss{k}:")
    if RO != [0]:
        a(f"s_and_b32 s49, m0, 0x7fff")
        a(f"s_cbranch_scc1 L_ls")
        round_base("m0", 15)
    a(f"s_cmp_lg_u32 m0, {RS*32768}")
    a(f"s_cbranch_scc1 L_ls")
    a(f"v_mov_b32 v8, {(32*RS + js - D - 3)//4}")
    a(f"s_mov_b32 {sR}, {RS-1}")
    a(f"s_add_u32 s8, s8, {sT[0]}")
    a(f"s_addc_u32 s9, s9, 0")
    a(f"s_mov_b32 {sSpin}, 0x100000")
    a(f"v_min_u32 v9, 8, {vL}")
    a(f"v_lshl_add_u32 v9, v9, 2, {vF}", "lanes 0-7: done[], other lanes: idle-slot rate")
    a(f"v_mov_b32 v11, {RS - 4}")
    a(f"v_cmp_lt_u32 vcc, 7, {vL}")
    a(f"v_mov_b32 v14, {B0 if FB else 0}")
    a(f"v_mov_b32 v15, -1000")
    a(f"ds_write_b32 {vF}, v14 offset:{F_RATE}")
    a(f"v_cndmask_b32 v11, v11, v15, vcc")
    a(f"v_cndmask_b32 v10, v10, v14, vcc")
    a(f"s_mov_b32 {sAcc}, 0")
    if STAMP == 1: a("s_mov_b32 s79, 0")
    a(f"s_branch L_ld1")
    a("L_ld:")
    pair_body(D, js, FB, "m")
    a(f"s_sub_u32 {sCnt}, {sCnt}, 1")
    a(f"s_cbranch_scc0 L_ld")
    a("L_ld1:")
    a(f"s_bitset0_b32 m0, 17")
    a(f"s_add_u32 {sR}, {sR}, 1")
    a(f"v_add_u32 v11, 1, v11")
    if RO != [0]: round_base(sR, 0)
    if o.get("ra", 0):
        a(f"s_and_b32 s49, {sR}, {32 - o['ra']}")
        a(f"s_cselect_b32 s41, 13, 12")
        a(f"s_lshl_b32 s41, 1, s41")
        a(f"s_xor_b32 s42, s41, 0x3000")
    marks = []
    if STAMP == 1: marks = list(zip((1,2,3,6,7), str(o.get("marks", "4,5,6,8,16")).split(",")))
    if STAMP == 4: marks = [(1, o.get("m0", 99)), (2, o["m1"])]
    for k, rr in marks:
        a(f"s_cmp_lg_u32 {sR}, {rr}"); a(f"s_cbranch_scc1 L_mk{k}"); stamp(k, True); a(f"L_mk{k}:")
    a(f"s_and_b32 {sCnt}, {sR}, 31")
    a(f"s_cbranch_scc0 L_ldsw")
    a("L_ldck:")
    a("s_waitcnt lgkmcnt(0)")
    a(f"v_cmp_lt_i32 vcc, v10, v11", "ring space: every consumer has finished round R-4 (values read one round ago)")
    a(f"s_cbranch_vccnz L_ldslow")
    a(f"s_mov_b32 {sCnt}, 3")
    if FB:
        a(f"v_readlane_b32 {sInc}, v10, 8")
        if STAMP == 1: a(f"s_lshr_b32 s48, {sInc}, 4"); a(f"s_add_u32 s79, s79, s48")
        a(f"s_cmp_lt_u32 {sR}, 63")
        a(f"s_cselect_b32 {sInc}, {sInc}, 0")
        a(f"s_lshl_b32 {sInc}, {sInc}, 24")
    a(f"ds_read_b32 v10, v9 offset:{F_DONE}")
    a(f"s_branch L_ld")
    a("L_ldslow:")
    a(f"ds_read_b32 v10, v9 offset:{F_DONE}")
    if BOUND or STAMP == 1:
        a(f"s_sub_u32 {sSpin}, {sSpin}, 1")
        a(f"s_cbranch_scc1 L_end")
    a("s_branch L_ldck")
    a("L_ldsw:")
    a(f"s_cmp_eq_u32 {sR}, 64")
    a(f"s_cbranch_scc1 L_drain")
    a(f"s_mov_b32 s36, s8", "switch to V (stored unswizzled)")
    a(f"s_mov_b32 s37, s9")
    if LOC:
        a(f"s_and_b32 s49, s2, 4"); a(f"s_lshl_b32 s49, s49, 20")
        a(f"s_sub_u32 s36, s36, s49"); a(f"s_subb_u32 s37, s37, 0")
        a(f"s_mov_b32 s38, 0x800000")
        a(f"s_lshr_b32 {sX}, s2, 1"); a(f"s_xor_b32 {sX}, {sX}, s2"); a(f"s_and_b32 {sX}, {sX}, 2"); a(f"s_lshl_b32 {sX}, {sX}, 12")
        if o.get("cv", 0): a(f"s_xor_b32 {sX}, {sX}, 0x2000")
        a(f"s_or_b32 {sX}, {sX}, s49")
        a("s_movk_i32 s41, 0x1000"); a("s_movk_i32 s42, 0x4000")
    a(f"s_mov_b32 {sOff}, 0")
    a(f"s_mov_b32 {sSrc}, {sX}")
    for j in range(4): a(f"v_lshlrev_b32 v{4+j}, 4, {vL}")
    stamp(4)
    a("s_branch L_ldck")
    a("L_drain:")
    a.c("set up the final stage while the last loads land: lane l owns output column 2*(l&7) + (l>>5)")
    a(f"v_and_b32 v21, 7, {vL}")
    a(f"v_lshrrev_b32 v22, 5, {vL}")
    a(f"v_lshl_add_u32 v21, v21, 1, v22")
    a(f"v_lshl_add_u32 v22, v21, 2, {vF}")
    a(f"ds_read_b32 v17, {vF} offset:{F_TAG}")
    a(f"ds_read_b32 v18, v22 offset:{L_FIN - L_FL}")
    a(f"ds_read_b32 v19, v22 offset:{L_FIN - L_FL + 64}")
    a(f"s_lshl_b32 {sT[0]}, s2, 5")
    a(f"v_lshl_add_u32 v20, v21, 1, {sT[0]}", "byte offset in out")
    IB = o.get("ib", -1); DUP = o.get("dup", 0); WS_IN = 0x400000
    if DUP:
        a(f"ds_read_b32 v23, {vF} offset:16", "votes for the second copy being the nearer one")
        a(f"s_and_b32 {sT[1]}, s2, 0xfe")
        a(f"s_add_u32 {sT[1]}, {sT[1]}, s2")
        a(f"s_lshl_b32 {sT[0]}, {sT[1]}, 12")
        a(f"s_add_u32 {sT[0]}, {sT[0]}, {hex(WS_IN)}")
    elif IB >= 0:
        a(f"s_lshr_b32 {sT[1]}, s2, 1")
        a(f"s_xor_b32 {sT[1]}, {sT[1]}, s2")
        a(f"s_and_b32 {sT[1]}, {sT[1]}, 2")
        a(f"s_mul_i32 {sT[1]}, {sT[1]}, 3")
        a(f"s_xor_b32 {sT[1]}, {sT[1]}, s2")
        if IB: a(f"s_xor_b32 {sT[1]}, {sT[1]}, {IB}")
        a(f"s_lshl_b32 {sT[0]}, {sT[1]}, 12")
        if POL:
            a(f"ds_read_b32 v23, {vF} offset:{F_POL}")
            a(f"s_and_b32 {sT[1]}, {sT[0]}, 0x2000")
            a(f"s_bitset0_b32 {sT[0]}, 13")
            a(f"v_add_u32 v4, {sT[1]}, v4")
    else: a(f"s_lshl_b32 {sT[0]}, s2, 12")
    a(f"s_add_u32 s56, s28, {sT[0]}", "inbox of this workgroup: 32 producers x 128 bytes")
    a(f"s_addc_u32 s57, s29, 0")
    a(f"s_movk_i32 s58, {0x3000 if DUP or POL else 4096}")
    a(f"s_mov_b32 s59, 0x20000")
    if POL:
        a("s_waitcnt lgkmcnt(0)")
        a(f"v_xor_b32 v4, v23, v4")
    if DUP:
        a("s_waitcnt lgkmcnt(0)")
        if DUP == 1:
            a(f"v_cmp_lt_i32 vcc, 0, v23")
            a(f"v_add_u32 v5, 0x2000, v4")
            a(f"s_nop 0")
            a(f"v_cndmask_b32 v4, v4, v5, vcc")
        else:
            a(f"s_lshl_b32 {sT[1]}, s2, 11"); a(f"s_and_b32 {sT[1]}, {sT[1]}, 0x2000")
            if DUP & 1: a(f"s_xor_b32 {sT[1]}, {sT[1]}, 0x2000")
            a(f"v_add_u32 v4, {sT[1]}, v4")
    a(f"s_mov_b32 {sHI}, 0xffff0000")
    a(f"s_mov_b64 s[44:45], -1")
    a(f"s_mov_b64 s[46:47], -1")
    pub = (2044 + js - D - 3)//4 + 1
    while pub < 512:
        pub += 1
        a(f"s_waitcnt vmcnt({2048 - 4*pub})")
        a("v_add_u32 v8, 1, v8"); a(f"ds_write_b32 {vF}, v8")
    stamp(5)
    sets = [(32, "s[44:45]"), (48, "s[46:47]")][:PP]
    def pissue(base):
        for i in range(4): a(f"buffer_load_dwordx4 v[{base+4*i}:{base+4*i+3}], v4, {W2}, 0 offen offset:{1024*i} {o.get('plp', 'sc1')}")
    if DRY == 2: a("s_cbranch_execz L_fin0")
    pissue(32)
    a("s_waitcnt lgkmcnt(0)")
    a("s_barrier", "pairs with the consumers' barrier before the output projection")
    if PP == 2: pissue(48)
    if STAMP == 1: a("s_mov_b32 s88, 0")
    a("L_poll:")
    for k, (base, m) in enumerate(sets):
        if STAMP == 1: a("s_add_u32 s88, s88, 1")
        a(f"s_waitcnt vmcnt({4*(PP-1)})")
        a(f"s_mov_b64 exec, {m}")
        for i in range(8): a(f"v_cmpx_eq_u32 vcc, v17, v{base+1+2*i}")
        a(f"s_andn2_b64 {m}, {m}, exec", "lanes whose four 16-byte pieces are not all this launch's yet")
        a(f"s_cbranch_scc0 L_got{k}")
        a(f"s_mov_b64 exec, {m}")
        if o.get("psl", 0): a(f"s_sleep {o['psl']}")
        pissue(base)
    a(f"s_sub_u32 {sSpin}, {sSpin}, 16")
    a(f"s_cbranch_scc0 L_poll")
    a("s_endpgm")
    for k, (base, m) in reversed(list(enumerate(sets))):
        a(f"L_got{k}:")
        a(f"s_mov_b64 exec, -1")
        if k == 0: a("L_fin0:")
        tstamp(4)
        a(f"v_add_f32 v24, v{base}, v{base+8}"); a(f"v_add_f32 v25, v{base+2}, v{base+10}")
        a(f"v_add_f32 v26, v{base+4}, v{base+12}"); a(f"v_add_f32 v27, v{base+6}, v{base+14}")
        if k: a("s_branch L_fin1")
    a("L_fin1:")
    a("v_add_f32 v24, v24, v26"); a("v_add_f32 v25, v25, v27")
    a("s_nop 1")
    a("v_permlane32_swap_b32 v24, v25")
    a("v_add_f32 v24, v24, v25")
    a("v_mov_b32 v25, v24"); a("s_nop 1")
    a("v_permlane16_swap_b32 v24, v25")
    a("v_add_f32 v24, v24, v25")
    a("s_nop 1")
    a(f"v_add_f32_dpp v24, v24, v24 row_ror:8 {FULL}")
    rbf("v24")
    a("v_add_f32 v24, v18, v24", "x + attention")
    rbf("v24")
    a("v_add_f32 v24, v24, v19", "+ mixer")
    a("v_cvt_pk_bf16_f32 v24, v24, v24")
    if DRY: a("s_cbranch_execz L_dryret")
    a("s_mov_b32 exec_lo, 0xff")
    a("s_mov_b32 exec_hi, 0xff")
    a(f"global_store_short v20, v24, s[24:25]")
    a(f"s_and_b32 {sT[0]}, s2, 31")
    a(f"s_cbranch_scc1 L_fin")
    a(f"s_lshl_b32 {sT[0]}, s2, 3")
    a(f"s_add_u32 {sT[0]}, {sT[0]}, {hex(WS_EPOCH)}")
    a(f"v_mov_b32 v16, {sT[0]}")
    a(f"s_mov_b64 exec, 1")
    a(f"global_store_dword v16, v17, s[28:29]", "next launch's tag differs from this one")
    a("s_branch L_fin")

    a("L_cons:")
    if HS:
        a(f"v_mov_b32 {vF}, {L_FL}")
        a(f"v_lshl_add_u32 v9, {vL}, 2, {vF}")
        a(f"v_mov_b32 v10, 0")
        a(f"ds_write_b32 v9, v10", "every consumer clears the flag block before the barrier")
        a(f"s_sub_u32 {sW}, {sW}, 1")
    a(f"s_lshr_b32 {sB}, s2, 5")
    a(f"s_and_b32 {sH}, s2, 31")
    a(f"s_mov_b32 {sHI}, 0xffff0000")
    a(f"s_mov_b32 s59, 0x20000")
    a(f"s_lshl_b32 {sT[0]}, {sB}, 10")
    a(f"v_lshlrev_b32 v8, 4, {vL}")
    if BOUND: a(f"s_mov_b32 {sSpin}, 0x100000")
    if HS: a("s_waitcnt lgkmcnt(0)")
    a(f"s_add_u32 s4, s4, {sT[0]}")
    a(f"s_addc_u32 s5, s5, 0")
    a(f"global_load_dwordx4 v[4:7], v8, s[4:5]", "x[b][8l..8l+7]")
    npre = 0
    IPF = o.get("ipf", 2)
    if IPF == 1:
        a(f"s_getpc_b64 s[46:47]")
        a("L_pc:")
        a(f"s_lshl_b32 {sT[0]}, {sW}, 10")
        a(f"v_add_u32 v9, {sT[0]}, v8")
        a(f"v_min_u32 v9, L_end-L_pc-12, v9")
        a(f"global_load_dwordx4 v[16:19], v9, s[46:47]")
    if IPF == 2:
        a.c("pull this kernel's code towards L2: one dword per 32 bytes, 2 KiB per wave")
        a(f"s_getpc_b64 s[46:47]")
        a("L_pc:")
        a(f"s_sub_u32 s46, s46, L_pc-L_ld")
        a(f"s_subb_u32 s47, s47, 0")
        a(f"s_lshl_b32 {sT[0]}, {sW}, 11")
        a(f"v_lshl_add_u32 v9, {vL}, 5, {sT[0]}")
        a(f"v_min_u32 v9, L_end-L_ld, v9")
        a(f"global_load_dword v16, v9, s[46:47]")
    a.c("wq rows 64w + 8*((j>>1)^w) + 2r + (j&1), columns 128h + 8c")
    a(f"s_lshl_b32 {sT[0]}, {sW}, 19")
    a(f"s_lshl_b32 {sT[1]}, {sH}, 8")
    a(f"s_add_u32 {sT[0]}, {sT[0]}, {sT[1]}")
    a(f"s_add_u32 s36, s10, {sT[0]}")
    a(f"s_addc_u32 s37, s11, 0")
    a(f"s_sub_u32 s38, 0x400000, {sT[0]}")
    QM = o.get("qm", 1)
    a(f"v_lshlrev_b32 v9, {14 if QM == 1 else 15}, {vRow}")
    a(f"v_lshl_add_u32 v9, {vCol}, 4, v9")
    if QM == 1: a(f"s_lshl_b32 {sT[2]}, {sW}, 16")
    else:
        a(f"s_lshl_b32 {sT[2]}, {sW}, 16")
        a(f"s_and_b32 {sT[2]}, {sT[2]}, 0x60000")
        a(f"s_lshl_b32 {sT[3]}, {sW}, 14")
        a(f"s_and_b32 {sT[3]}, {sT[3]}, 0x4000")
        a(f"s_or_b32 {sT[2]}, {sT[2]}, {sT[3]}")
    def wslot(j): return f"v[{WREG+4*j}:{WREG+4*j+3}]"
    def wqload(j):
        a(f"s_xor_b32 {sT[3]}, {sT[2]}, {((j >> 1) * 8 + (j & 1)) * 8192 if QM == 1 else ((j >> 2) * 16 + (j & 3)) * 8192}")
        a(f"buffer_load_dwordx4 {wslot(j)}, v9, {R}, {sT[3]} offen {o.get('wqpol', 'nt')}")
    if FB:
        a(f"s_mov_b32 {sT[4]}, {hex(WS_EPOCH)}")
        a(f"s_load_dword {sTg}, s[28:29], {sT[4]}")
    a.c("this workgroup's eighth of the head's wo slice -> L2 (the slice itself is read later)")
    if o.get("opf", 1):
        a(f"s_lshl_b32 {sT[5]}, {sH}, 17")
        a(f"s_lshl_b32 {sT[6]}, {sW}, 10")
        a(f"s_add_u32 {sT[5]}, {sT[5]}, {sT[6]}")
        a(f"s_and_b32 {sT[6]}, {sB}, 4")
        a(f"s_add_u32 {sT[6]}, {sT[6]}, {sB}")
        a(f"s_lshl_b32 {sT[6]}, {sT[6]}, 13")
        a(f"s_add_u32 {sT[5]}, {sT[5]}, {sT[6]}")
        a(f"v_add_u32 v11, {sT[5]}, v8")
        if HS: a("s_barrier")
        a(f"global_load_dwordx4 v[160:163], v11, s[12:13]")
        a(f"v_add_u32 v11, 0x8000, v11")
        a(f"global_load_dwordx4 v[164:167], v11, s[12:13]")
    else:
        a(f"s_lshl_b32 {sT[5]}, {sH}, 17")
        a(f"s_lshl_b32 {sT[6]}, {sW}, 14")
        a(f"s_add_u32 {sT[5]}, {sT[5]}, {sT[6]}")
        a(f"s_lshl_b32 {sT[6]}, {sB}, 7")
        a(f"s_add_u32 {sT[5]}, {sT[5]}, {sT[6]}")
        a(f"v_lshrrev_b32 v11, 3, {vL}")
        a(f"v_and_b32 v10, 7, {vL}")
        a(f"v_lshl_add_u32 v10, v10, 4, {sT[5]}")
        a(f"v_lshl_add_u32 v11, v11, 10, v10")
        if HS: a("s_barrier")
        a(f"global_load_dwordx4 v[160:163], v11, s[12:13]")
        a(f"v_add_u32 v11, 0x2000, v11")
        a(f"global_load_dwordx4 v[164:167], v11, s[12:13]")
    QPF = o.get("qpf", 0)
    if QPF:
        a(f"s_lshl_b32 {sT[3]}, {sB}, 16")
        a(f"buffer_load_dwordx4 v[152:155], v9, {R}, {sT[3]} offen")
        a(f"s_add_u32 {sT[3]}, {sT[3]}, 8192")
        a(f"buffer_load_dwordx4 v[156:159], v9, {R}, {sT[3]} offen")
    for j in range(WQS): wqload(j)
    a(f"s_waitcnt vmcnt({WQS + 2 + 2*QPF})")
    stamp(1)
    X = [f"v{16+i}" for i in range(8)]
    def unpack(src4):
        for i in range(4):
            a(f"v_lshlrev_b32 {X[2*i]}, 16, v{src4+i}")
            a(f"v_and_b32 {X[2*i+1]}, {sHI}, v{src4+i}")
    def ln(sM, sD, write):
        a.c("LayerNorm statistics with the reference's bf16 roundings")
        a(f"v_add_f32 v24, {X[0]}, {X[1]}")
        for i in range(2, 8): a(f"v_add_f32 v24, v24, {X[i]}")
        wave_reduce("v_add_f32", "v24", sT[0])
        a("s_nop 1")
        a(f"v_mov_b32 v25, {sT[0]}")
        a(f"v_mul_f32 v25, {hex(f2u(1.0/512))}, v25")
        a(f"v_sub_f32 v26, {X[0]}, v25")
        a(f"v_mul_f32 v24, v26, v26")
        for i in range(1, 8):
            a(f"v_sub_f32 v26, {X[i]}, v25"); a(f"v_fmac_f32 v24, v26, v26")
        wave_reduce("v_add_f32", "v24", sT[0])
        rbf("v25")
        a(f"v_mov_b32 v24, {sT[0]}")
        a(f"v_mul_f32 v24, {hex(f2u(1.0/512))}, v24")
        rbf("v24")
        a(f"v_add_f32 v24, {hex(f2u(1e-5))}, v24")
        rbf("v24")
        a(f"v_sqrt_f32 v24, v24")
        a("s_nop 0")
        rbf("v24")
        a(f"v_rcp_f32 v24, v24")
        a(f"v_readfirstlane_b32 {sM}, v25")
        a(f"v_readfirstlane_b32 {sD}, v24")
        if write:
            for i in range(8): a(f"v_sub_f32 {X[i]}, {X[i]}, v25")
            for i in range(4): a(f"v_cvt_pk_bf16_f32 v{4+i}, {X[2*i]}, {X[2*i+1]}")
            unpack(4)
            for i in range(8): a(f"v_mul_f32 {X[i]}, {X[i]}, v24")
            for i in range(4): a(f"v_cvt_pk_bf16_f32 v{4+i}, {X[2*i]}, {X[2*i+1]}")
    unpack(4)
    ln(sM1, sD1, True)
    a(f"v_add_u32 v8, {L_XN}, v8")
    a(f"ds_write_b128 v8, v[4:7]", "packed xn (every wave writes the same bytes)")
    if QM == 1: a(f"s_mul_i32 {sT[0]}, {sW}, 144")
    else:
        a(f"s_lshr_b32 {sT[0]}, {sT[2]}, 12")
        a(f"s_lshl_b32 {sT[1]}, {sW}, 7")
        a(f"s_add_u32 {sT[0]}, {sT[0]}, {sT[1]}")
    a(f"s_add_u32 {sT[0]}, {sT[0]}, {L_XN}")
    a(f"v_lshl_add_u32 v8, {vRow}, {2 if QM == 1 else 3}, {sT[0]}")
    assert L_XN % 128 == 0
    for i in range(8):
        if i: a(f"v_xor_b32 v10, {16*i if QM == 1 else 32*(i >> 1) + 4*(i & 1)}, v8")
        a(f"ds_read_b32 v{QF+i}, {'v10' if i else 'v8'}")
    for i in range(8): a(f"v_mov_b32 {ACC[i]}, 0")
    nissued = WQS + WQ2
    for j in range(WQS, nissued): wqload(j)
    def preread(n):
        a.c(f"take K granule {n} of this wave out of the ring early: frees a round for the loader")
        if n: a(f"v_add_u32 v12, 0x8000, v12")
        for t in range(1, 4): a(f"v_xor_b32 v{19+t}, {64*t}, v12")
        a(f"s_add_u32 {sT[4]}, {sW}, {8*n}")
        spin(F_LAND, "s_cmp_gt_i32", sT[4], "v14", sT[0])
        a(f"ds_read_b128 v[{ST[n]}:{ST[n]+3}], v12")
        for t in range(1, 4): a(f"ds_read_b128 v[{ST[n]+4*t}:{ST[n]+4*t+3}], v{19+t}")
        a(f"v_mov_b32 v14, {n+1}")
        a("s_waitcnt lgkmcnt(0)")
        a(f"ds_write_b32 v13, v14 offset:{F_DONE}")
    a(f"v_xor_b32 v12, {vRow}, {vCol}")
    a(f"v_lshlrev_b32 v12, 4, v12")
    a(f"v_lshl_add_u32 v12, {vCol}, 8, v12")
    a(f"s_lshl_b32 {sT[0]}, {sW}, 12")
    a(f"v_add_u32 v12, {sT[0]}, v12")
    a(f"s_lshl_b32 {sT[0]}, {sW}, 2")
    a(f"v_add_u32 v13, {sT[0]}, {vF}")
    preread(0)
    a.c("q projection: acc[col] += xn[row] * wq[row][col]")
    for j in range(16):
        for n in range(1, PRE):
            if PJ[n-1] == j: preread(n)
        src = f"v{QF + j//2}"
        if j % 2 == 0: a(f"v_and_b32 v10, 0xffff, {src}"); a(f"v_lshlrev_b32 v11, 16, {src}")
        else: a(f"v_lshrrev_b32 v10, 16, {src}"); a(f"v_and_b32 v11, {sHI}, {src}")
        a(f"s_waitcnt vmcnt({nissued - j - 1})")
        while nissued < 16 and nissued - j - 1 < WQ2:
            wqload(nissued); nissued += 1
        for i in range(4):
            a(f"v_dot2c_f32_bf16 {ACC[2*i]}, v10, v{WREG+4*j+i}")
            a(f"v_dot2c_f32_bf16 {ACC[2*i+1]}, v11, v{WREG+4*j+i}")
    stamp(2)
    vPW, vPR = "v15", "v14"
    a(f"s_mul_i32 {sT[0]}, {sW}, 528")
    a(f"s_add_u32 {sT[0]}, {sT[0]}, {L_QP}")
    a(f"v_lshl_add_u32 {vPW}, {vCol}, 5, {sT[0]}")
    a(f"v_lshl_add_u32 {vPW}, {vRow}, 3, {vPW}")
    rows_reduce8(vPW)
    arrive(F_ARRQ)
    for i in range(4): a(f"v_mov_b32 v{160+i}, v{4+i}", "keep xn for the second LayerNorm" if i == 0 else None)
    a(f"v_lshlrev_b32 {vPR}, 3, {vL}")
    a(f"v_add_u32 {vPR}, {L_QP}, {vPR}")
    spin(F_ARRQ, "s_cmp_ge_u32", 8, "v10", sT[0])
    sum8(WREG, vPR)
    a(f"v_lshlrev_b32 v10, 2, {vL}")
    a(f"v_add_u32 v10, {L_XN}, v10")
    a(f"ds_write_b32 v10, v{WREG}", "packed q (xn is dead: every wave has arrived)")
    a(f"v_lshlrev_b32 v10, 4, {vRow}")
    a(f"v_add_u32 v10, {L_XN}, v10")
    for t in range(4): a(f"ds_read_b128 v[{QF+4*t}:{QF+4*t+3}], v10 offset:{64*t}", "MFMA A fragments of q" if t == 0 else None)
    vH, vMA, vC0, vXr = "v138", "v139", "v140", "v145"
    a(f"s_mov_b32 {sL2E}, {hex(f2u(l2e))}")
    a(f"s_mov_b32 {sK}, {hex(f2u(128 ** -0.5))}")
    vKA, vSA, vDA, vM, vLs, vDn = "v4", "v5", "v6", "v7", "v8", "v9"
    a(f"v_add_u32 {vKA}, 0xffff0000, v12")
    a(f"s_lshl_b32 {sT[0]}, {sW}, 6")
    a(f"s_add_u32 {sT[0]}, {sT[0]}, {L_SC}")
    a(f"v_lshl_add_u32 {vSA}, {vCol}, 2, {sT[0]}")
    a(f"v_mov_b32 {vDA}, v13")
    a(f"v_mov_b32 {vM}, 0xff7fffff")
    a(f"v_mov_b32 {vLs}, 0")
    a(f"v_mov_b32 {vDn}, 0")
    a(f"s_mov_b32 {sG}, {sW}")
    a(f"s_mov_b32 {sR}, 0")
    a.c("wo: rows 128h + 32r + 2j + e, columns 64w + 4c")
    a(f"s_lshl_b32 {sT[0]}, {sH}, 17")
    a(f"s_add_u32 s36, s12, {sT[0]}")
    a(f"s_addc_u32 s37, s13, 0")
    a(f"s_mov_b32 s38, {o.get('won', 0x20000)}")
    vWO = "v164"
    a(f"s_lshl_b32 {sT[0]}, {sW}, 7")
    a(f"v_lshl_add_u32 {vWO}, {vCol}, 3, {sT[0]}")
    a(f"v_lshl_add_u32 {vWO}, {vRow}, 15, {vWO}")
    a(f"s_add_u32 {sOff}, {sW}, {WMR}")
    if FB:
        a(f"s_mul_i32 {sTg}, {sTg}, 1664525")
        a(f"s_add_u32 {sTg}, {sTg}, 1013904223")
    if o.get("bi", 0): a("s_mov_b32 s11, 0")
    stamp(3)
    a("s_waitcnt lgkmcnt(0)")
    a("s_branch L_kmid")
    a("L_kst:")
    for n in range(1, PRE):
        for i in range(16): a(f"v_mov_b32 v{ST[n-1]+i}, v{ST[n]+i}")
    a("s_branch L_kmid")
    a("L_k:")
    a(f"s_cmp_lt_u32 {sR}, {PRE}")
    a(f"s_cbranch_scc1 L_kst")
    for t in range(1, 4): a(f"v_xor_b32 v{10+t}, {64*t}, {vKA}")
    spin(F_LAND, "s_cmp_gt_i32", sG, "v10", sT[0])
    a(f"ds_read_b128 v[{DT}:{DT+3}], {vKA}")
    for t in range(1, 4): a(f"ds_read_b128 v[{DT+4*t}:{DT+4*t+3}], v{10+t}")
    a("L_kmid:")
    a(f"v_add_u32 {vDn}, 1, {vDn}")
    a(f"v_add_u32 {vKA}, 0x8000, {vKA}")
    a(f"v_and_b32 {vKA}, 0x1ffff, {vKA}")
    for t in range(4):
        a(f"s_waitcnt lgkmcnt({3-t})")
        a(f"v_mfma_f32_16x16x32_bf16 v[16:19], v[{QF+4*t}:{QF+4*t+3}], v[{DT+4*t}:{DT+4*t+3}], {'0' if t == 0 else 'v[16:19]'}")
    a(f"v_max_u32 v10, {PRE}, {vDn}")
    a(f"ds_write_b32 {vDA}, v10 offset:{F_DONE}")
    a(f"s_add_u32 {sG}, {sG}, 8")
    a(f"s_nop 4")
    rbf("v16")
    a(f"v_mul_f32 v16, {sK}, v16")
    rbf("v16")
    a(f"ds_write_b32 {vSA}, v16", "score of key l&15 of this granule")
    a(f"v_max_f32 v17, {vM}, v16", "running max / sum per lane")
    a(f"v_sub_f32 v18, {vM}, v17")
    a(f"v_sub_f32 v16, v16, v17")
    a(f"v_mul_f32 v18, {sL2E}, v18")
    a(f"v_mul_f32 v16, {sL2E}, v16")
    a(f"v_exp_f32 v18, v18")
    a(f"v_exp_f32 v16, v16")
    a(f"v_mov_b32 {vM}, v17")
    a(f"v_add_u32 {vSA}, 512, {vSA}")
    a(f"v_fma_f32 {vLs}, {vLs}, v18, v16")
    if FG0 < 256: ctl("k")
    if POL:
        PR0 = o.get("pr0", 18)
        a.c("inbox placement (speed only): head 0 of the batch finds which half of the inbox area answers it faster")
        a(f"s_cmp_lg_u32 {sH}, 0")
        a(f"s_cbranch_scc1 L_npub")
        a(f"s_sub_u32 {sT[1]}, {sG}, {8*PR0 + 8}")
        a(f"s_cmp_ge_u32 {sT[1]}, 32")
        a(f"s_cbranch_scc1 L_nprobe")
        a(f"s_lshl_b32 {sT[1]}, {sT[1]}, 8")
        a(f"s_lshl_b32 {sT[2]}, {sB}, 17")
        a(f"s_add_u32 {sT[2]}, {sT[2]}, {sT[1]}")
        a(f"s_lshl_b32 {sT[1]}, {sT[1]}, 5")
        a(f"s_and_b32 {sT[1]}, {sT[1]}, 0x2000", "odd waves ask the upper half first")
        a(f"s_add_u32 {sT[2]}, {sT[2]}, {sT[1]}")
        a(f"s_xor_b32 {sT[3]}, {sT[2]}, 0x2000")
        a(f"s_load_dword s80, s[28:29], {sT[2]} glc")
        a(f"s_load_dword s81, s[28:29], {sT[3]} glc")
        a(f"s_waitcnt lgkmcnt(0)")
        for k, (r0, off) in enumerate((("s80", sT[2]), ("s81", sT[3]))):
            a(f"s_not_b32 {r0}, {r0}")
            a(f"s_mov_b32 s82, {r0}")
            a(f"s_movk_i32 {sT[4+k]}, 2048")
            a(f"s_load_dword s82, s[28:29], {off} glc")
            a(f"L_pw{k}:")
            a(f"s_sub_u32 {sT[4+k]}, {sT[4+k]}, 1")
            a(f"s_cbranch_scc1 L_pe{k}")
            a(f"s_cmp_eq_u32 s82, {r0}")
            a(f"s_cbranch_scc1 L_pw{k}")
            a(f"L_pe{k}:")
            a(f"s_waitcnt lgkmcnt(0)")
        a(f"s_cmp_gt_i32 {sT[5]}, {sT[4]}")
        a(f"s_cselect_b32 {sT[2]}, {sT[3]}, {sT[2]}")
        a(f"s_bitcmp1_b32 {sT[2]}, 13")
        a(f"s_cselect_b32 {sT[4]}, 1, -1")
        a(f"v_mov_b32 v11, {sT[4]}")
        a(f"s_mov_b64 exec, 1")
        a(f"ds_add_u32 {vF}, v11 offset:{F_PSUM}")
        a(f"s_mov_b64 exec, -1")
        a("L_nprobe:")
        a(f"s_cmp_lg_u32 {sG}, {8*(PR0+6) + 8}")
        a(f"s_cbranch_scc1 L_npub")
        a(f"ds_read_b32 v10, {vF} offset:{F_PSUM}")
        a(f"s_lshl_b32 {sT[1]}, {sB}, 11")
        a(f"s_add_u32 {sT[1]}, {sT[1]}, {hex(WS_POL)}")
        a(f"v_lshl_add_u32 v12, {vL}, 8, {sT[1]}")
        a(f"s_waitcnt lgkmcnt(0)")
        a(f"v_readfirstlane_b32 {sT[2]}, v10")
        a(f"s_cmp_gt_i32 {sT[2]}, 0")
        a(f"s_cselect_b32 {sT[2]}, 1, 0")
        a(f"s_xor_b32 {sT[2]}, {sT[2]}, {sE}")
        a(f"v_mov_b32 v11, {sT[2]}")
        a(f"s_mov_b64 exec, 0xff")
        a(f"global_store_dword v12, v11, s[28:29] sc1", "tag ^ choice, eight copies")
        a(f"s_mov_b64 exec, -1")
        a("L_npub:")
        a(f"s_cmp_lg_u32 {sG}, {8*(PR0+12) + 8}")
        a(f"s_cbranch_scc1 L_nget")
        a(f"s_lshl_b32 {sT[1]}, s2, 6")
        a(f"s_and_b32 {sT[1]}, {sT[1]}, 0x3f00")
        a(f"s_add_u32 {sT[1]}, {sT[1]}, {hex(WS_POL)}")
        a(f"s_mov_b32 {sT[3]}, 0x10000")
        a("L_pget:")
        a(f"s_load_dword {sT[2]}, s[28:29], {sT[1]} glc")
        a(f"s_sub_u32 {sT[3]}, {sT[3]}, 1")
        a(f"s_waitcnt lgkmcnt(0)")
        a(f"s_cbranch_scc1 L_pgot")
        a(f"s_xor_b32 {sT[2]}, {sT[2]}, {sE}")
        a(f"s_cmp_gt_u32 {sT[2]}, 1")
        a(f"s_cbranch_scc1 L_pget")
        a("L_pgot:")
        a(f"s_and_b32 {sT[2]}, {sT[2]}, 1")
        a(f"s_lshl_b32 {sT[2]}, {sT[2]}, 13")
        a(f"v_mov_b32 v11, {sT[2]}")
        a(f"ds_write_b32 {vF}, v11 offset:{F_POL}")
        a("L_nget:")
    a.c("wo slice trickles in, one row pair at a time")
    for j in range(16):
        rr = WOR + j * WOM // WOD
        a(f"s_cmp_lg_u32 {sR}, {rr}")
        a(f"s_cbranch_scc1 L_wo{j}")
        a(f"s_movk_i32 {sT[1]}, {2048*j}")
        a(f"buffer_load_dwordx2 v[{WREG+4*j}:{WREG+4*j+1}], {vWO}, {R}, {sT[1]} offen nt")
        a(f"buffer_load_dwordx2 v[{WREG+4*j+2}:{WREG+4*j+3}], {vWO}, {R}, {sT[1]} offen offset:1024 nt")
        a(f"L_wo{j}:")
    a(f"s_cmp_lg_u32 {sR}, {sOff}")
    a(f"s_cbranch_scc1 L_nomx")
    a.c("mixer operands: lane (r,c) handles d = 16h + c and hidden pairs (4w+r)*28 + {c, 14+c}")
    a(f"s_lshl_b32 {sT[0]}, {sH}, 5")
    a(f"v_lshl_add_u32 v11, {vCol}, 1, {sT[0]}")
    a(f"global_load_ushort {vH}, v11, s[4:5]")
    a(f"s_mul_i32 {sT[0]}, {sW}, 448")
    a(f"v_mul_u32_u24 v11, 112, {vRow}")
    a(f"v_lshl_add_u32 v11, {vCol}, 2, v11")
    a(f"v_add_u32 v11, {sT[0]}, v11")
    a(f"v_cmp_lt_u32 vcc, 13, {vCol}")
    a(f"v_mov_b32 v12, 0x10000")
    a(f"s_movk_i32 s58, 3584")
    a(f"v_cndmask_b32 v11, v11, v12, vcc", "lanes 14,15 read out of range -> 0")
    for k, p in enumerate([16, 18, 20]):
        a(f"s_mov_b32 s56, s{p}"); a(f"s_mov_b32 s57, s{p+1}")
        for s_ in range(2):
            a(f"buffer_load_dword v{MX + 5*s_ + (1,3,4)[k]}, v11, {W2}, 0 offen offset:{56*s_}")
    a(f"v_mov_b32 v12, 0")
    a(f"global_load_ushort v146, v12, s[22:23]", "b2")
    a(f"s_lshl_b32 {sT[0]}, {sB}, 8")
    a(f"s_add_u32 {sT[0]}, {sT[0]}, {hex(WS_EPOCH)}")
    a(f"s_load_dword {sE}, s[28:29], {sT[0]}", "whatever the batch's tag word holds on entry")
    a("L_nomx:")
    a(f"s_cmp_lg_u32 {sR}, 15")
    a(f"s_cbranch_scc1 L_noms")
    unpack(160)
    ln(sM2, sD2, False)
    a("s_waitcnt vmcnt(0)")
    a(f"v_lshlrev_b32 {vH}, 16, {vH}")
    a(f"v_mov_b32 {vXr}, {vH}")
    a(f"v_subrev_f32 {vH}, {sM1}, {vH}"); rbf(vH)
    a(f"v_mul_f32 {vH}, {sD1}, {vH}"); rbf(vH)
    a(f"v_subrev_f32 {vH}, {sM2}, {vH}"); rbf(vH)
    a(f"v_mul_f32 {vH}, {sD2}, {vH}"); rbf(vH)
    for s_ in range(2):
        b = MX + 5*s_
        a(f"v_lshlrev_b32 v{b}, 16, v{b+1}"); a(f"v_and_b32 v{b+1}, {sHI}, v{b+1}")
        a(f"v_lshlrev_b32 v{b+2}, 16, v{b+3}"); a(f"v_and_b32 v{b+3}, {sHI}, v{b+3}")
    kb = math.sqrt(2.0/math.pi)
    a(f"v_mov_b32 {vC0}, {hex(f2u(-2*kb*l2e))}")
    a(f"s_mov_b32 {sC1}, {hex(f2u(-2*kb*l2e*0.044715))}")
    a(f"v_mov_b32 {vMA}, 0")
    a(f"s_mul_i32 {sE}, {sE}, 1664525", "this launch's tag: a full-period step away from the word found on entry")
    a(f"s_add_u32 {sE}, {sE}, 1013904223")
    a("L_noms:")
    a(f"s_cmp_lt_u32 {sR}, 16")
    a(f"s_cbranch_scc1 L_nomix")
    a.c("mixer: gelu_tanh(u) = u / (1 + exp(-2 z)), two hidden pairs per round")
    BC = "row_newbcast:0 " + FULL
    for s_ in range(2):
        b = MX + 5*s_
        a(f"v_mul_f32_dpp v16, v{b}, {vH} {BC}"); a(f"v_mul_f32_dpp v17, v{b+1}, {vH} {BC}")
        a(f"v_cvt_pk_bf16_f32 v17, v16, v17")
        a(f"v_lshlrev_b32 v16, 16, v17"); a(f"v_and_b32 v17, {sHI}, v17")
        a(f"v_add_f32_dpp v16, v{b+2}, v16 {BC}"); a(f"v_add_f32_dpp v17, v{b+3}, v17 {BC}")
        a(f"v_cvt_pk_bf16_f32 v17, v16, v17")
        a(f"v_lshlrev_b32 v16, 16, v17"); a(f"v_and_b32 v17, {sHI}, v17")
        a(f"v_mul_f32 v18, v16, v16"); a(f"v_mul_f32 v19, v17, v17")
        a(f"v_fma_f32 v18, v18, {sC1}, {vC0}"); a(f"v_fma_f32 v19, v19, {sC1}, {vC0}")
        a(f"v_mul_f32 v18, v18, v16"); a(f"v_mul_f32 v19, v19, v17")
        a(f"v_exp_f32 v18, v18"); a(f"v_exp_f32 v19, v19")
        a(f"v_mov_b32_dpp v{b}, v{b} row_ror:15 {FULL}")
        a(f"v_add_f32 v18, 1.0, v18"); a(f"v_add_f32 v19, 1.0, v19")
        a(f"v_rcp_f32 v18, v18"); a(f"v_rcp_f32 v19, v19")
        a(f"v_mov_b32_dpp v{b+1}, v{b+1} row_ror:15 {FULL}")
        a(f"v_mul_f32 v18, v18, v16"); a(f"v_mul_f32 v19, v19, v17")
        a(f"v_cvt_pk_bf16_f32 v18, v18, v19")
        a(f"v_mov_b32_dpp v{b+2}, v{b+2} row_ror:15 {FULL}")
        a(f"v_mov_b32_dpp v{b+3}, v{b+3} row_ror:15 {FULL}")
        a(f"v_dot2c_f32_bf16_dpp {vMA}, v{b+4}, v18 {BC}")
        a(f"v_mov_b32_dpp v{b+4}, v{b+4} row_ror:15 {FULL}")
    a("L_nomix:")
    a(f"s_add_u32 {sR}, {sR}, 1")
    a(f"s_cmp_lt_u32 {sR}, 32")
    a(f"s_cbranch_scc1 L_k")
    a.c("---- softmax statistics: per-wave (max, sum), then over the 8 waves ----")
    a(f"v_mov_b32 v16, {vM}")
    allreduce("v_max_f32", "v16", 4)
    a(f"v_sub_f32 v17, {vM}, v16")
    a(f"v_mul_f32 v17, {sL2E}, v17")
    a(f"v_exp_f32 v17, v17")
    a(f"s_lshl_b32 {sT[0]}, {sW}, 3")
    a(f"v_add_u32 v18, {sT[0]}, {vF}")
    a(f"v_mul_f32 v17, v17, {vLs}")
    allreduce("v_add_f32", "v17", 4)
    a(f"ds_write_b64 v18, v[16:17] offset:{F_ML}")
    rows_sum(vMA, "v19")
    a(f"s_lshl_b32 {sT[0]}, {sW}, 6")
    a(f"s_add_u32 {sT[0]}, {sT[0]}, {L_BP}")
    a(f"v_lshl_add_u32 v19, {vCol}, 2, {sT[0]}")
    a(f"ds_write_b32 v19, {vMA}")
    arrive(F_ARRS)
    a.c("interleave the wo row pairs: (row 2j, row 2j+1) per column")
    a(f"s_mov_b32 {sT[0]}, 0x05040100")
    a(f"s_mov_b32 {sT[1]}, 0x07060302")
    a("s_waitcnt vmcnt(0)")
    for j in range(16):
        for i in range(2):
            r0 = WREG + 4*j + i; r1 = r0 + 2
            a(f"v_perm_b32 v16, v{r1}, v{r0}, {sT[0]}")
            a(f"v_perm_b32 v{r1}, v{r1}, v{r0}, {sT[1]}")
            a(f"v_mov_b32 v{r0}, v16")
    if DRY:
        a.c("walk the end-of-kernel code once with no lane active, so that it is in the instruction cache")
        a(f"s_mov_b64 exec, 0")
        a(f"s_branch L_tailb")
        a("L_dryret:")
        a(f"s_mov_b64 exec, -1")
    a.c("hand-off addresses: lane (r,c) ends with column 64w + 4c + r")
    vYA = "v13"
    if DUP:
        a(f"s_lshl_b32 {sT[0]}, {sB}, 18")
        a(f"s_add_u32 {sT[0]}, {sT[0]}, {hex(WS_IN)}")
        a(f"s_add_u32 s56, s28, {sT[0]}")
        a(f"s_addc_u32 s57, s29, 0")
        a(f"s_mov_b32 s58, 0x40000")
        a(f"s_lshl_b32 {sT[0]}, {sW}, 15")
        a(f"s_lshl_b32 {sT[1]}, {sH}, 7")
        a(f"s_add_u32 {sT[0]}, {sT[0]}, {sT[1]}")
        a(f"v_bfe_u32 v12, {vCol}, 2, 1")
        a(f"v_lshl_add_u32 {vYA}, v12, 12, {sT[0]}")
        a(f"v_lshrrev_b32 v12, 3, {vCol}")
        a(f"v_lshl_add_u32 {vYA}, v12, 14, {vYA}")
        a(f"s_movk_i32 s10, 0x2000")
    else:
        a(f"s_lshl_b32 {sT[0]}, {sB}, 17")
        a(f"s_add_u32 s56, s28, {sT[0]}")
        a(f"s_addc_u32 s57, s29, 0")
        a(f"s_mov_b32 s58, 0x20000")
        a(f"s_lshl_b32 {sT[0]}, {sW}, 14")
        a(f"s_lshl_b32 {sT[1]}, {sH}, 7")
        a(f"s_add_u32 {sT[0]}, {sT[0]}, {sT[1]}")
        a(f"v_lshrrev_b32 v12, 2, {vCol}")
        a(f"v_lshl_add_u32 {vYA}, v12, 12, {sT[0]}")
    a(f"v_and_b32 v12, 3, {vCol}")
    a(f"v_lshl_add_u32 {vYA}, v12, 5, {vYA}")
    a(f"v_lshl_add_u32 {vYA}, {vRow}, 3, {vYA}")
    if IB >= 0:
        a(f"v_lshrrev_b32 v12, 1, {vYA}")
        a(f"v_xor_b32 v12, v12, {vYA}")
        a(f"v_and_b32 v12, 0x2000, v12")
        a(f"v_mul_u32_u24 v12, 3, v12")
        a(f"v_xor_b32 {vYA}, v12, {vYA}")
        if IB: a(f"v_xor_b32 {vYA}, {IB << 12}, {vYA}")
    if o.get("stm", 2) == 4:
        a(f"v_and_b32 v12, 1, {vRow}")
        a(f"v_lshl_add_u32 {vYA}, v12, 17, {vYA}")
    spin(F_ARRS, "s_cmp_ge_u32", 8, "v10", sT[0])
    a(f"v_and_b32 v18, 7, {vL}")
    a(f"v_lshl_add_u32 v18, v18, 3, {vF}")
    a(f"ds_read_b64 v[16:17], v18 offset:{F_ML}")
    a(f"v_lshlrev_b32 v19, 2, {vL}")
    a(f"v_add_u32 v18, {L_BP}, v19")
    a(f"ds_read_b32 v20, v18")
    a(f"ds_read_b32 v21, v18 offset:256")
    if POL: a(f"ds_read_b32 v12, {vF} offset:{F_POL}")
    a("s_waitcnt lgkmcnt(0)")
    if POL: a(f"v_xor_b32 {vYA}, v12, {vYA}")
    a(f"v_mov_b32 {vM}, v16")
    allreduce("v_max_f32", vM, 3)
    a(f"v_sub_f32 v16, v16, {vM}")
    a(f"v_mul_f32 v16, {sL2E}, v16")
    a(f"v_exp_f32 v16, v16")
    a(f"v_add_f32 v20, v20, v21")
    a(f"v_mul_f32 {vLs}, v16, v17")
    allreduce("v_add_f32", vLs, 3)
    a(f"v_rcp_f32 {vLs}, {vLs}")
    rows_sum("v20", "v21")
    rbf("v20")
    a(f"v_lshlrev_b32 v146, 16, v146")
    a(f"v_add_f32 v20, v146, v20")
    rbf("v20")
    a(f"v_lshl_add_u32 v18, {vCol}, 2, {vF}")
    a(f"v_mov_b32 v19, {sE}")
    a(f"ds_write_b32 v18, {vXr} offset:{L_FIN - L_FL}", "operands of the final stage (all waves write the same values)")
    a(f"ds_write_b32 v18, v20 offset:{L_FIN - L_FL + 64}")
    a(f"ds_write_b32 {vF}, v19 offset:{F_TAG}")
    a(f"s_lshl_b32 {sT[0]}, {sW}, 12")
    a(f"v_lshl_add_u32 {vKA}, {vL}, 4, {sT[0]}")
    a(f"v_and_b32 {vSA}, 3, {vL}")
    a(f"v_lshl_add_u32 {vSA}, {vSA}, 2, {vRow}")
    a(f"s_lshl_b32 {sT[0]}, {sW}, 6")
    a(f"s_add_u32 {sT[0]}, {sT[0]}, {L_SC}")
    a(f"v_lshl_add_u32 {vSA}, {vSA}, 2, {sT[0]}")
    for i in range(8): a(f"v_mov_b32 {ACC[i]}, 0")
    Y = ["v48", "v50", "v51", "v52"]
    for y in Y: a(f"v_mov_b32 {y}, 0")
    a(f"v_mov_b32 v49, {sE}")
    if o.get("wrt", 0):
        a(f"s_lshl_b32 {sT[0]}, s2, 13"); a(f"s_lshl_b32 {sT[1]}, {sW}, 10"); a(f"s_add_u32 {sT[0]}, {sT[0]}, {sT[1]}")
        a(f"s_add_u32 {sT[0]}, {sT[0]}, 0x800000")
        a(f"v_lshl_add_u32 v10, {vL}, 4, {sT[0]}")
        if o["wrt"] == 1: a("s_mov_b64 exec, 0xffffffff")
        a(f"global_store_dwordx4 v10, v[24:27], s[28:29] sc1")
        a("s_mov_b64 exec, -1")
    if "b0v" in o:
        a(f"v_mov_b32 v11, {o['b0v']}"); a(f"ds_write_b32 {vF}, v11 offset:{F_RATE}")
    stamp(4)
    a("s_branch L_v")
    a("L_vc:")
    if DUP == 1:
        NR = o.get("nr", 2)
        a.c("which copy of the inbox answers first?  (placement only: either copy carries the same data)")
        a(f"s_sub_u32 {sT[1]}, {sG}, {o.get('rg', 320)}")
        a(f"s_cmp_ge_u32 {sT[1]}, {8 * NR}")
        a(f"s_cbranch_scc1 L_nrace")
        a(f"s_and_b32 {sT[2]}, {sH}, 0x1e")
        a(f"s_add_u32 {sT[2]}, {sT[2]}, {sH}")
        a(f"s_lshl_b32 {sT[2]}, {sT[2]}, 12")
        a(f"s_lshl_b32 {sT[1]}, {sT[1]}, 8")
        a(f"s_add_u32 {sT[2]}, {sT[2]}, {sT[1]}")
        a(f"s_lshl_b32 {sT[1]}, {sW}, 13")
        a(f"s_and_b32 {sT[1]}, {sT[1]}, 0x2000", "odd waves ask the second copy first")
        a(f"s_add_u32 {sT[2]}, {sT[2]}, {sT[1]}")
        a(f"s_xor_b32 {sT[3]}, {sT[2]}, 0x2000")
        a(f"s_load_dword s80, s[56:57], {sT[2]} glc")
        a(f"s_load_dword s81, s[56:57], {sT[3]} glc")
        a(f"s_waitcnt lgkmcnt(0)")
        a(f"s_not_b32 s82, s80")
        a(f"s_load_dword s82, s[56:57], {sT[2]} glc")
        a(f"s_load_dword s83, s[56:57], {sT[3]} glc")
        a(f"s_waitcnt lgkmcnt(1)")
        a(f"s_cmp_eq_u32 s82, s80")
        a(f"s_cselect_b32 {sT[4]}, {sT[2]}, {sT[3]}", "offset of the winner")
        a(f"s_waitcnt lgkmcnt(0)")
        a(f"s_bitcmp1_b32 {sT[4]}, 13")
        a(f"s_cselect_b32 {sT[4]}, 1, -1")
        a(f"v_mov_b32 v11, {sT[4]}")
        a(f"s_mov_b64 exec, 1")
        a(f"ds_add_u32 {vF}, v11 offset:16")
        a(f"s_mov_b64 exec, -1")
        a("L_nrace:")
    ctl("v", B0=o.get("b0v", B0))
    if o.get("fg1", 440):
        fs1 = o.get("fs1", 2)
        ctl("w", FG0=o.get("fg1", 440), FP=o.get("fp1", 4), FS=fs1, FSA=o.get("fsa1", (7 * fs1) // 2 + 1), FEND=o.get("fend1", 490),
            BG=o.get("bg1", 50), B0=o.get("b01", o.get("b0v", B0)), WS_MARK=WS_MARK + 0x100000)
    a("L_v:")
    a(f"ds_read_b32 v16, {vSA}")
    a(f"v_add_u32 {vSA}, 512, {vSA}")
    a(f"v_add_u32 {vDn}, 1, {vDn}")
    a("s_waitcnt lgkmcnt(0)")
    a(f"v_sub_f32 v16, v16, {vM}", "p = bf16(exp(s - max) / sum)")
    a(f"v_mul_f32 v16, {sL2E}, v16")
    a(f"v_exp_f32 v16, v16")
    a(f"s_nop 0")
    a(f"v_mul_f32 v16, v16, {vLs}")
    a(f"v_cvt_pk_bf16_f32 v16, v16, v16")
    a(f"v_lshrrev_b32 v17, 16, v16")
    a(f"v_and_b32 v16, {sHI}, v16")
    spin(F_LAND, "s_cmp_gt_i32", sG, "v10", sT[0])
    for t in range(4): a(f"ds_read_b128 v[{DT+4*t}:{DT+4*t+3}], {vKA} offset:{1024*t}")
    a(f"v_add_u32 {vKA}, 0x8000, {vKA}")
    a(f"v_and_b32 {vKA}, 0x1ffff, {vKA}")
    a(f"s_add_u32 {sG}, {sG}, 8")
    a(f"s_cmpk_lt_u32 {sG}, 512")
    for j in range(4):
        a(f"s_waitcnt lgkmcnt({3-j})")
        if j == 3: a(f"ds_write_b32 {vDA}, {vDn} offset:{F_DONE}")
        for i in range(4):
            a(f"v_dot2c_f32_bf16_dpp {ACC[2*i]}, v17, v{DT+4*j+i} quad_perm:[{j},{j},{j},{j}] {FULL}")
            a(f"v_dot2c_f32_bf16_dpp {ACC[2*i+1]}, v16, v{DT+4*j+i} quad_perm:[{j},{j},{j},{j}] {FULL}")
    a(f"s_cbranch_scc1 L_vc")
    stamp(5)
    a.c("---- o over rows and waves, output projection, hand-off ----")
    a("s_nop 1")
    rows_reduce8(vPW)
    a("s_waitcnt lgkmcnt(0)")
    a("s_barrier")
    a("L_tailb:")
    tstamp(1)
    sum8(DT, vPR)
    a("s_nop 1")
    tstamp(2)
    for j in range(16):
        for c in range(4):
            a(f"v_dot2c_f32_bf16_dpp {Y[c]}, v{DT}, v{WREG+4*j+(0,2,1,3)[c]} row_newbcast:{j} {FULL}")
    a("s_nop 1")
    a(f"v_permlane32_swap_b32 {Y[0]}, {Y[2]}")
    a(f"v_permlane32_swap_b32 {Y[1]}, {Y[3]}")
    a(f"v_add_f32 {Y[0]}, {Y[0]}, {Y[2]}")
    a(f"v_add_f32 {Y[1]}, {Y[1]}, {Y[3]}")
    STM = o.get("stm", 2); STP = o.get("stp", "sc1")
    if STM == 4:
        a(f"v_mov_b32 {Y[2]}, {Y[0]}"); a(f"v_mov_b32 {Y[3]}, {Y[1]}")
        a("s_nop 0")
        a(f"v_permlane16_swap_b32 {Y[0]}, {Y[2]}")
        a(f"v_permlane16_swap_b32 {Y[1]}, {Y[3]}")
        a(f"v_add_f32 {Y[0]}, {Y[0]}, {Y[2]}")
        a(f"v_add_f32 {Y[1]}, {Y[1]}, {Y[3]}")
        a(f"v_mov_b32 v51, v49")
    else:
        a("s_nop 1")
        a(f"v_permlane16_swap_b32 {Y[0]}, {Y[1]}")
        a(f"v_add_f32 {Y[0]}, {Y[0]}, {Y[1]}")
    if DRY: a(f"s_cbranch_execz {'L_drain' if DRY == 2 else 'L_fin0'}")
    if STM == 4: a(f"buffer_store_dwordx4 v[48:51], {vYA}, {W2}, 0 offen {STP}")
    elif STM == 2: a(f"buffer_store_dwordx2 v[48:49], {vYA}, {W2}, 0 offen {STP}", "{partial, tag} to the workgroup that owns the column")
    if DUP: a(f"buffer_store_dwordx2 v[48:49], {vYA}, {W2}, s10 offen {STP}", "second copy, homed on the other half of the memory")
    if STM == 3: a(f"buffer_atomic_swap_x2 v[48:49], {vYA}, {W2}, 0 offen {STP}")
    if o.get("wb", 0): a("buffer_wbl2 sc1")
    tstamp(3)
    stamp(6); stamp(7)
    a("L_fin:")
    if STAMP: a(f"s_mov_b64 exec, -1")
    stamp(8)
    if STAMP in (4, 5):
        a("s_memrealtime s[72:73]")
        a("s_waitcnt lgkmcnt(0)")
        a(f"s_cmp_lg_u32 {sW}, {o.get('lw', -1)}"); a("s_cbranch_scc1 L_end")
        if "swg" in o: a(f"s_cmp_lg_u32 s2, {o['swg']}"); a("s_cbranch_scc1 L_end")
        a(f"s_sub_u32 s74, s{60+2*o['t1']}, s{60+2*o['t0']}")
        if o.get("avg", 0):
            a("L_hold:")
            a("s_memrealtime s[76:77]"); a("s_waitcnt lgkmcnt(0)"); a("s_sub_u32 s76, s76, s60")
            a(f"s_cmp_lt_u32 s76, 8500"); a("s_cbranch_scc1 L_hold")
            a("s_add_u32 s74, s74, 0x1000000")
            a("s_mov_b32 s75, s74")
            a("s_atomic_add s75, s[26:27], 0 glc")
            a("s_waitcnt lgkmcnt(0)")
            a("s_add_u32 s74, s74, s75")
            a("s_cbranch_scc0 L_end")
            a("s_lshr_b32 s74, s74, 8")
        a(f"s_sub_u32 s74, s74, {o.get('sub', 0)}")
        if o.get("neg", 0): a("s_sub_u32 s74, 0, s74")
        a(f"s_mul_i32 s74, s74, {o.get('amp', 10)}")
        a(f"s_add_u32 s74, s74, 10000"); a(f"s_min_u32 s74, s74, 100000")
        a("L_pin3:")
        a("s_memrealtime s[76:77]"); a("s_waitcnt lgkmcnt(0)"); a("s_sub_u32 s76, s76, s60")
        a(f"s_cmp_lt_u32 s76, s74"); a("s_cbranch_scc1 L_pin3")
    if STAMP == 1:
        a("s_waitcnt vmcnt(0) lgkmcnt(0)")
        a(f"s_mul_i32 {sT[0]}, s2, 9"); a(f"s_add_u32 {sT[0]}, {sT[0]}, {sW}"); a(f"s_add_u32 {sT[0]}, {sT[0]}, 1")
        a(f"s_lshl_b32 {sT[0]}, {sT[0]}, 7"); a(f"s_add_u32 {sT[0]}, {sT[0]}, 0x100000")
        a(f"v_mov_b32 v16, 0")
        for i in range(18): a(f"v_writelane_b32 v16, s{60+i}, {i}")
        a(f"s_getreg_b32 {sT[1]}, hwreg(HW_REG_XCC_ID)"); a(f"s_getreg_b32 {sT[2]}, hwreg(HW_REG_HW_ID)")
        a(f"v_writelane_b32 v16, {sT[1]}, 18"); a(f"v_writelane_b32 v16, {sT[2]}, 19")
        a(f"v_writelane_b32 v16, {sSpin}, 20"); a(f"v_writelane_b32 v16, s79, 21"); a(f"v_writelane_b32 v16, s88, 22")
        if POL: a(f"ds_read_b32 v23, {vF} offset:{F_PSUM}"); a("s_waitcnt lgkmcnt(0)")
        if DUP or POL: a("v_readfirstlane_b32 s89, v23"); a("s_nop 3"); a(f"v_writelane_b32 v16, s89, 23")
        a(f"v_lshl_add_u32 v17, {vL}, 2, {sT[0]}")
        a(f"s_mov_b64 exec, 0xffffffff")
        a(f"global_store_dword v17, v16, s[28:29]")
    a("L_end:")
    a("s_endpgm")

    head = open("cdna_kernels/%s.s.ref" % NAME).read().split("; Override launch")[0]
    out = head + f"; @launch grid=(256,1,1) block=(576,1,1) lds={LDS_BYTES}\n"
    out += DOC + '.amdgcn_target "amdgcn-amd-amdhsa--gfx950"\n.text\n'
    out += f".globl {NAME}_kernel\n.p2align 8\n.type {NAME}_kernel,@function\n" + a.text()
    out += f""".section .rodata,"a"
.p2align 6
.amdhsa_kernel {NAME}_kernel
  .amdhsa_next_free_vgpr 168
  .amdhsa_next_free_sgpr 96
  .amdhsa_accum_offset 168
  .amdhsa_group_segment_fixed_size 0
  .amdhsa_kernarg_size 104
  .amdhsa_user_sgpr_count 2
  .amdhsa_user_sgpr_kernarg_segment_ptr 1
  .amdhsa_system_sgpr_workgroup_id_x 1
  .amdhsa_float_denorm_mode_32 3
.end_amdhsa_kernel
"""
    return out
if __name__ == "__main__":
    opts = {}
    for kv in sys.argv[2:]:
        k, v = kv.split("=")
        try: opts[k] = int(v, 0)
        except ValueError: opts[k] = v.replace("+", " ")
    open(sys.argv[1], "w").write(gen(opts))
```

```python
import sys, struct, math
NAME = "parallel_sum__mha_block_cached__mixer_token_mlp__decode"
def f2u(x): return struct.unpack("<I", struct.pack("<f", x))[0]
class Asm:
    def __init__(self): self.lines = []
    def __call__(self, s, c=None):
        s = s.strip()
        l = s if s.endswith(":") else "    " + s
        if c: l = l.ljust(72) + "; " + c
        self.lines.append(l)
    def c(self, s): self.lines.append("    ; " + s)
    def text(self): return "\n".join(self.lines) + "\n"

DOC = """; ---------------------------------------------------------------------------------------------------
; Design.  One workgroup per (batch b, head h) = one per CU (LDS size), 9 waves.
;      Granules 32 KiB apart (same DRAM rows) are fetched back to back.  K and V use the same order.
;      LayerNorm, q = xn @ wq[:, head] (dot2), scores by MFMA with the reference's bf16 roundings, running max/sum,
;      y = bf16(o) @ wo[head rows, :].
;  Sum over heads: every workgroup sends 16 columns of y to each of the 32 workgroups of its batch as
;      {value, tag} pairs in d_ws; wave 0 of the owner waits for its 32 x 16 pairs, adds x and the mixer output.
;  Speed only (never the result): workgroups compare their progress with eight reference workgroups and trim the
; ---------------------------------------------------------------------------------------------------
"""
def gen(o):
    D = o.get("d", 26); DS = o.get("ds", 24); RS = o.get("rs", 4)
    STAMP = o.get("stamp", 0); TS = o.get("ts", 0)
    BOUND = o.get("bound", 0)
    FB = o.get("fb", 1)
    FP = o.get("fp", 8); FS = o.get("fs", 3); FG0 = o.get("fg0", 212); FR = o.get("frep", 8)
    FSA = o.get("fsa", (7 * FS) // 2 + 1); FEND = o.get("fend", 440)
    B0 = o.get("b0", 160); BG = o.get("bg", 42)
    WQS = o.get("wqs", 4); WQ2 = o.get("wq2", 4); PRE = 3
    PJ = [int(x) for x in str(o.get("pj", "6,11")).split(",")]
    WOR = o.get("wor", 6); WOM = o.get("wom", 3); WOD = o.get("wod", 2); WMR = 6
    DRY = o.get("dry", 2); PP = o.get("pp", 1)
    SP = o.get("sp", "nt")
    VD = o.get("vd", 0)
    DLO = o.get("dlo", 17); V0 = o.get("v0", 320); VG = o.get("vg", 20); VG1 = o.get("vg1", 24)
    P13 = o.get("p13", 1)
    if "p13" not in o and "ro" not in o: o.setdefault("go", "15,12,13,16,17,18,19,14")
    if "gm" not in o: o.setdefault("gx", "13^3,14^5")
    if "go" in o:
        g_ = [int(x) for x in o["go"].split(",")]
        assert sorted(g_) == list(range(12, 20))
        PB = g_[0]; IB1, IB2 = g_[1], g_[2]; o["ro"] = ",".join(str(x) for x in g_[3:]); P13 = 1
    else: PB = 15; IB1, IB2 = 13, 12
    if P13 and "ro" not in o: o["ro"] = "14,16,17,18,19"
    POL = o.get("pol", 1); WS_POL = 0x190000; F_PSUM, F_POL = 16, 20
    if POL: o["ib"] = 0
    a = Asm()
    FULL = "row_mask:0xf bank_mask:0xf"
    l2e = 1.0 / math.log(2.0)
    WS_EPOCH = 0x180000; WS_MARK = 0x200000
    sE, sL2E, sC1 = "s3", "s14", "s15"
    sB, sH, sW, sOff, sR, sG = "s30", "s31", "s32", "s33", "s34", "s35"
    R = "s[36:39]"; W2 = "s[56:59]"
    sM1, sD1, sM2, sD2 = "s40", "s41", "s42", "s43"
    sT = [f"s{44+i}" for i in range(8)]
    sHI, sB2, sSpin, sK, sTg = "s52", "s53", "s54", "s55", "s78"
    sCnt, sAcc, sInc, sSrc, sX = "s40", "s46", "s47", "s50", "s51"
    L_SC = 131072; L_QP = L_SC + 16384; L_XN = L_QP + 4352; L_BP = L_XN + 1024; L_FL = L_BP + 512
    F_LAND, F_ARRQ, F_ARRS, F_TAG, F_DONE, F_RATE, F_ML = 0, 4, 8, 12, 32, 64, 192
    L_FIN = L_FL + 256
    LDS_BYTES = L_FIN + 128
    vL, vRow, vCol, vF = "v0", "v1", "v2", "v3"
    WREG, QF, DT, MX = 64, 48, 32, 128
    ACC = [f"v{24+i}" for i in range(8)]
    ST = [DT, 128, 144]
    nlab = [0]
    def lab(p): nlab[0] += 1; return f"L_{p}{nlab[0]}"
    def stamp(i, force=False):
        if STAMP == 1 or (STAMP >= 4 and i in (0, 5)) or force: a(f"s_memrealtime s[{60+2*i}:{61+2*i}]")
    def tstamp(i):
        if TS: a(f"s_memrealtime s[{60+2*i}:{61+2*i}]")
    def wave_reduce(op, v, sdst):
        for ctl in ["quad_perm:[1,0,3,2] "+FULL, "quad_perm:[2,3,0,1] "+FULL, "row_half_mirror "+FULL, "row_mirror "+FULL,
                    "row_bcast:15 row_mask:0xa bank_mask:0xf", "row_bcast:31 row_mask:0xc bank_mask:0xf"]:
            a("s_nop 1"); a(f"{op}_dpp {v}, {v}, {v} {ctl}")
        a("s_nop 1"); a(f"v_readlane_b32 {sdst}, {v}, 63")
    def allreduce(op, v, steps):
        for ctl in ["quad_perm:[1,0,3,2]", "quad_perm:[2,3,0,1]", "row_half_mirror", "row_mirror"][:steps]:
            a("s_nop 1"); a(f"{op}_dpp {v}, {v}, {v} {ctl} {FULL}")
    def rbf(v):
        a(f"v_cvt_pk_bf16_f32 {v}, {v}, {v}"); a(f"v_and_b32 {v}, {sHI}, {v}")
    def spin(off, cmp, val, tmpv, tmps, slp=0, last=False):
        l0, l1 = lab("sp"), lab("go")
        a(f"{l0}:")
        a(f"ds_read_b32 {tmpv}, {vF} offset:{off}")
        a("s_waitcnt lgkmcnt(0)")
        a(f"v_readfirstlane_b32 {tmps}, {tmpv}")
        a(f"{cmp} {tmps}, {val}")
        if BOUND:
            a(f"s_cbranch_scc1 {l1}")
            a(f"s_sub_u32 {sSpin}, {sSpin}, 1"); a(f"s_cbranch_scc1 L_end"); a(f"s_branch {l0}")
            a(f"{l1}:")
        elif slp:
            a(f"s_cbranch_scc1 {l1}")
            if last:
                a(f"s_cmpk_lt_i32 {tmps}, {o.get('tight', 500)}", "poll without back-off once the stream is about to end")
                a(f"s_cbranch_scc0 {l0}")
            a(f"s_sleep {slp}"); a(f"s_branch {l0}"); a(f"{l1}:")
        else: a(f"s_cbranch_scc0 {l0}")
    def rows_sum(v, t):
        a(f"v_mov_b32 {t}, {v}"); a("s_nop 1"); a(f"v_permlane32_swap_b32 {v}, {t}"); a(f"v_add_f32 {v}, {v}, {t}")
        a(f"v_mov_b32 {t}, {v}"); a("s_nop 1"); a(f"v_permlane16_swap_b32 {v}, {t}"); a(f"v_add_f32 {v}, {v}, {t}")
    def rows_reduce8(vaddr):
        for i in range(4): a(f"v_permlane32_swap_b32 {ACC[i]}, {ACC[i+4]}")
        a("v_pk_add_f32 v[24:25], v[24:25], v[28:29]"); a("v_pk_add_f32 v[26:27], v[26:27], v[30:31]")
        a("s_nop 1")
        for i in range(2): a(f"v_permlane16_swap_b32 {ACC[i]}, {ACC[i+2]}")
        a("v_pk_add_f32 v[24:25], v[24:25], v[26:27]")
        a(f"ds_write_b64 {vaddr}, v[24:25]")
    def arrive(off):
        a(f"v_mov_b32 v10, 1")
        a("s_waitcnt lgkmcnt(0)")
        a(f"s_mov_b64 exec, 1"); a(f"ds_add_u32 {vF}, v10 offset:{off}"); a(f"s_mov_b64 exec, -1")
    def sum8(base, vaddr):
        for w in range(8): a(f"ds_read_b64 v[{base+2*w}:{base+2*w+1}], {vaddr} offset:{528*w}")
        a(f"s_waitcnt lgkmcnt({0 if TS else 4})")
        pk = lambda d, x: a(f"v_pk_add_f32 v[{base+d}:{base+d+1}], v[{base+d}:{base+d+1}], v[{base+x}:{base+x+1}]")
        pk(0, 4); pk(2, 6); pk(0, 2)
        a("s_waitcnt lgkmcnt(0)")
        pk(8, 12); pk(10, 14); pk(8, 10); pk(0, 8)
        a(f"v_cvt_pk_bf16_f32 v{base}, v{base}, v{base+1}")
    def ctl(tag, FG0=FG0, FP=FP, FS=FS, FSA=FSA, FEND=FEND, BG=BG, B0=B0, WS_MARK=WS_MARK):
        if not FB: return
        a.c("flow control: compare own progress with eight reference workgroups, set the loader's idle-slot rate")
        a(f"s_sub_u32 {sT[1]}, {sG}, {FG0 + 8}")
        a(f"s_cmp_ge_u32 {sT[1]}, {FEND - FG0 - 8}")
        a(f"s_cbranch_scc1 L_nc{tag}")
        a(f"s_and_b32 {sT[2]}, {sT[1]}, {8*FP - 1}", "phase inside the control period")
        a(f"s_lshr_b32 {sT[1]}, {sT[1]}, {(8*FP).bit_length() - 1}", "checkpoint number")
        a(f"s_mul_i32 {sT[3]}, {sT[1]}, {FR * 4352}")
        a(f"s_add_u32 {sT[3]}, {sT[3]}, {hex(WS_MARK)}")
        a(f"s_cmp_ge_u32 s2, 8")
        a(f"s_cbranch_scc1 L_cs{tag}")
        a(f"s_add_u32 {sT[4]}, s2, {sT[1]}")
        a(f"s_and_b32 {sT[4]}, {sT[4]}, 7")
        a(f"s_mul_i32 {sT[4]}, {sT[4]}, {FS}")
        a(f"s_cmp_eq_u32 {sT[2]}, {sT[4]}")
        a(f"s_cbranch_scc0 L_cs{tag}")
        a(f"v_mul_u32_u24 v10, 4352, {vL}")
        a(f"s_lshl_b32 {sT[4]}, s2, 2")
        a(f"s_add_u32 {sT[4]}, {sT[4]}, {sT[3]}")
        a(f"v_add_u32 v10, {sT[4]}, v10")
        a(f"v_mov_b32 v11, {sTg}")
        a(f"s_mov_b64 exec, {hex((1 << FR) - 1)}")
        a(f"global_store_dword v10, v11, s[28:29] sc1", "reference workgroup: leave this launch's mark")
        a(f"s_mov_b64 exec, -1")
        a(f"L_cs{tag}:")
        a(f"s_cmp_eq_u32 {sT[2]}, {FSA}")
        a(f"s_cbranch_scc0 L_nc{tag}")
        a(f"s_bfe_u32 {sT[2]}, s2, {hex(3 | ((FR.bit_length() - 1) << 16))}")
        a(f"s_mul_i32 {sT[2]}, {sT[2]}, 4352")
        a(f"s_add_u32 {sT[3]}, {sT[3]}, {sT[2]}")
        a(f"s_load_dwordx8 s[80:87], s[28:29], {sT[3]} glc")
        a(f"s_mov_b32 {sT[2]}, 4")
        a(f"s_waitcnt lgkmcnt(0)")
        for i in range(8):
            a(f"s_cmp_eq_u32 s{80+i}, {sTg}")
            a(f"s_subb_u32 {sT[2]}, {sT[2]}, 0")
        BI = o.get("bi", 0)
        if VD:
            a(f"s_mul_i32 {sT[2]}, {sT[2]}, {-(VG1 if tag == 'w' else VG)}")
            a(f"s_add_u32 {sT[2]}, {sT[2]}, {V0}")
            a(f"s_max_i32 {sT[2]}, {sT[2]}, {16*DLO}")
            a(f"s_min_i32 {sT[2]}, {sT[2]}, {16*D}")
            a(f"v_mov_b32 v11, {sT[2]}")
            a(f"ds_write_b32 {vF}, v11 offset:{F_RATE}", "depth of the load window, in sixteenths")
            a(f"L_nc{tag}:")
            return
        if BI:
            a(f"s_mul_i32 {sT[3]}, {sT[2]}, {BI}")
        a(f"s_mul_i32 {sT[2]}, {sT[2]}, {BG}")
        a(f"s_add_u32 {sT[2]}, {sT[2]}, {B0}")
        if BI:
            a(f"s_add_u32 {sT[2]}, {sT[2]}, s11")
            a(f"s_add_u32 s11, s11, {sT[3]}")
            a(f"s_max_i32 s11, s11, {-o.get('bim', 70)}")
            a(f"s_min_i32 s11, s11, {o.get('bim', 70)}")
        a(f"s_max_i32 {sT[2]}, {sT[2]}, 0")
        a(f"s_min_i32 {sT[2]}, {sT[2]}, 255")
        a(f"v_mov_b32 v11, {sT[2]}")
        a(f"ds_write_b32 {vF}, v11 offset:{F_RATE}")
        a(f"L_nc{tag}:")

    a(f"{NAME}_kernel:")
    a("s_cmpk_ge_u32 s2, 256")
    a("s_cbranch_scc1 L_end")
    a("s_load_dwordx16 s[4:19], s[0:1], 0")
    a("s_load_dwordx8 s[20:27], s[0:1], 64")
    a("s_load_dwordx2 s[28:29], s[0:1], 96")
    stamp(0)
    HS = o.get("hs", 4)
    js = (D - 1) % 4; jss = (DS - 1) % 4
    if HS:
        assert HS % 2 == 0 and 4 * HS <= DS
        a(f"v_readfirstlane_b32 {sW}, v0")
        a(f"v_and_b32 {vL}, 63, v0")
        a(f"v_lshrrev_b32 {vRow}, 4, {vL}")
        a(f"v_and_b32 {vCol}, 15, {vL}")
        a(f"s_mov_b32 s39, 0x20000")
        a(f"s_lshr_b32 {sW}, {sW}, 6")
        a("s_cbranch_scc1 L_cons")
        a(f"v_xor_b32 v4, {vCol}, {vRow}", "K rows are stored with their 16-byte chunks xor-swizzled by key&15")
        a(f"v_lshlrev_b32 v4, 4, v4")
        a(f"v_lshl_add_u32 v4, {vRow}, 8, v4")
        a(f"v_xor_b32 v5, 64, v4")
        a(f"v_xor_b32 v6, 0x80, v4")
        a(f"v_xor_b32 v7, 64, v6")
        a(f"s_lshl_b32 s38, 1, 20")
        a(f"s_lshl_b32 {sT[0]}, s2, 20")
        if o.get("gx") == "13^3,14^5":
            a(f"s_and_b32 {sX}, s2, 40")
            a(f"s_mulk_i32 {sX}, 0x600")
            a(f"s_and_b32 {sX}, {sX}, 0x6000", "workgroup bits 3,5 -> address bits 13,14: spreads the streams over the memory stacks")
        elif "gx" in o:
            a(f"s_mov_b32 {sX}, 0")
            for x in [y for y in o["gx"].split(",") if y.strip()]:
                ab, wb = x.split("^")
                a(f"s_bfe_u32 s49, s2, {hex(int(wb) | (1 << 16))}"); a(f"s_lshl_b32 s49, s49, {ab}"); a(f"s_xor_b32 {sX}, {sX}, s49")
        elif "gm" in o:
            a(f"s_mul_i32 {sX}, s2, {o['gm']}")
            a(f"s_and_b32 {sX}, {sX}, 0x7000")
        else:
            a(f"s_lshl_b32 {sX}, s2, 10")
            a(f"s_and_b32 {sX}, {sX}, 0x6000")
        a(f"s_mov_b32 {sOff}, 0")
        a(f"s_mov_b32 m0, 0")
        if P13 and o.get("ra", 0): a("s_movk_i32 s41, 0x1000"); a("s_movk_i32 s42, 0x2000")
        elif P13: a(f"s_lshl_b32 s41, 1, {IB1}"); a(f"s_lshl_b32 s42, 1, {IB2}")
        a("s_waitcnt lgkmcnt(0)")
        a(f"s_add_u32 s36, s6, {sT[0]}")
        a(f"s_addc_u32 s37, s7, 0")
        if o.get("ss", 0): stamp(1, True)
        a("L_l0:")
        a(f"s_xor_b32 {sSrc}, {sOff}, {sX}")
        for j in range(4): a(f"buffer_load_dwordx4 v{4+j}, {R}, {sSrc} offen offset:{1024*j} {SP} lds")
        a(f"s_addk_i32 m0, 4096")
        a(f"s_bitset1_b32 {sSrc}, {PB}")
        for j in range(4): a(f"buffer_load_dwordx4 v{4+j}, {R}, {sSrc} offen offset:{1024*j} {SP} lds")
        a(f"s_addk_i32 m0, 4096")
        if P13:
            a(f"s_xor_b32 {sOff}, {sOff}, s41"); a(f"s_xor_b32 s41, s41, s42")
            a(f"s_cmpk_lg_u32 m0, {HS * 4096}")
        else:
            a(f"s_addk_i32 {sOff}, 4096")
            a(f"s_cmpk_lg_u32 {sOff}, {HS * 2048}")
        a(f"s_cbranch_scc1 L_l0")
        if o.get("ss", 0): stamp(2, True); stamp(3, True)
        a("s_barrier", "the consumers have cleared the flag block")
        a("s_setprio 3")
        a(f"s_xor_b32 {sSrc}, {sOff}, {sX}")
        a(f"v_mov_b32 {vF}, {L_FL}")
        a(f"v_mov_b32 v8, {(4*HS + jss - DS - 3)//4}", "landed-granule counter")
        a(f"v_mov_b32 v10, 0")
        a(f"s_mov_b32 {sW}, -1")
    else:
        a(f"v_lshrrev_b32 v4, 6, v0")
        a(f"v_and_b32 {vL}, 63, v0")
        a(f"v_readfirstlane_b32 {sW}, v4")
        a(f"v_mov_b32 {vF}, {L_FL}")
        a(f"v_lshl_add_u32 v9, {vL}, 2, {vF}")
        a(f"v_mov_b32 v10, 0")
        a(f"ds_write_b32 v9, v10", "every wave clears the flag block before the barrier")
        a(f"v_lshrrev_b32 {vRow}, 4, {vL}")
        a(f"v_and_b32 {vCol}, 15, {vL}")
        a(f"s_mov_b32 s39, 0x20000")
        a(f"s_mov_b32 s38, 0x100000")
        a(f"s_lshl_b32 {sT[0]}, s2, 20")
        a(f"v_xor_b32 v4, {vCol}, {vRow}", "K rows are stored with their 16-byte chunks xor-swizzled by key&15")
        a(f"v_lshlrev_b32 v4, 4, v4")
        a(f"v_lshl_add_u32 v4, {vRow}, 8, v4")
        a(f"v_xor_b32 v5, 64, v4")
        a(f"v_xor_b32 v6, 0x80, v4")
        a(f"v_xor_b32 v7, 64, v6")
        js = (D - 1) % 4; jss = (DS - 1) % 4
        a(f"v_mov_b32 v8, {(jss - DS - 3)//4}", "landed-granule counter")
        a(f"s_mov_b32 {sOff}, 0")
        a(f"s_lshl_b32 {sX}, s2, 10")
        a(f"s_and_b32 {sX}, {sX}, 0x6000")
        a(f"s_mov_b32 {sSrc}, {sX}")
        a(f"s_mov_b32 m0, 0")
        a(f"s_sub_u32 {sW}, {sW}, 1", "consumer index; borrow marks the loader")
        a("s_waitcnt lgkmcnt(0)")
        a("s_barrier")
        a("s_cbranch_scc0 L_cons")

        a("s_setprio 3")
        a(f"s_add_u32 s36, s6, {sT[0]}")
        a(f"s_addc_u32 s37, s7, 0")
    RO = [int(x) for x in str(o.get("ro", "0")).split(",")]
    LOC = o.get("loc", 0)
    def round_base(src, lo):
        if LOC:
            a(f"s_bfe_u32 s49, {src}, {hex(lo | (4 << 16))}")
            a(f"s_lshl_b32 s43, s49, 16")
            a(f"s_bfe_u32 s49, {src}, {hex((lo + 4) | (1 << 16))}")
            a(f"s_lshl_b32 s49, s49, 22")
            a(f"s_or_b32 s43, s43, s49")
            if LOC == 3:
                a(f"s_mov_b32 {sOff}, s43")
                a(f"s_xor_b32 {sSrc}, {sOff}, {sX}")
                return
        first = True; i = 0
        while i < 5:
            j = i
            while j + 1 < 5 and RO[j+1] == RO[j] + 1: j += 1
            a(f"s_bfe_u32 s49, {src}, {hex((lo + i) | ((j - i + 1) << 16))}")
            a(f"s_lshl_b32 {sOff if first else 's49'}, s49, {RO[i]}")
            if not first: a(f"s_or_b32 {sOff}, {sOff}, s49")
            first = False; i = j + 1
        for cp in [x for x in str(o.get("cp", "")).split(",") if x.strip()]:
            sb, db = (int(y) for y in cp.split(">"))
            a(f"s_bfe_u32 s49, {sOff}, {hex(sb | (1 << 16))}"); a(f"s_lshl_b32 s49, s49, {db}"); a(f"s_xor_b32 {sOff}, {sOff}, s49")
        if LOC == 1 and src == sR:
            a(f"s_cmp_ge_u32 {sR}, 32")
            a(f"s_cselect_b32 {sOff}, s43, {sOff}")
        a(f"s_xor_b32 {sSrc}, {sOff}, {sX}")
    def pair_body(Dw, jw, fb, tag):
        for half in range(2):
            for j in range(4):
                if fb and j % 2 == 0:
                    a(f"s_add_u32 {sAcc}, {sAcc}, {sInc}")
                    a(f"s_cbranch_scc0 L_nd{tag}{half}{j}")
                    a(f"buffer_load_dword v12, v4, {R}, s38 offen", "out of range: takes one slot of the window, moves no data")
                    a(f"L_nd{tag}{half}{j}:")
                a(f"s_waitcnt vmcnt({Dw-1})")
                a(f"buffer_load_dwordx4 v{4+j}, {R}, {sSrc} offen offset:{1024*j} {SP} lds")
                if j == jw:
                    a("v_add_u32 v8, 1, v8"); a(f"ds_write_b32 {vF}, v8")
                if half == 0 and j == 0 and RO == [0]: a(f"s_bitset1_b32 {sOff}, 15")
                if half == 0 and j == 1:
                    if P13: a(f"s_xor_b32 {sOff}, {sOff}, s41")
                    else: a(f"s_addk_i32 {sOff}, 4096")
                if half == 0 and j == 2 and P13: a(f"s_xor_b32 s41, s41, s42")
                if half == 1 and j == 0 and tag != "s" and o.get("fr", 1): a(f"ds_read_b32 v10, v9 offset:{F_DONE}")
                if half == 0 and j == 2 and RO == [0]: a(f"s_bitset0_b32 {sOff}, 15")
            a(f"s_addk_i32 m0, 4096")
            if half == 0: a(f"s_bitset1_b32 {sSrc}, {PB}")
            else: a(f"s_xor_b32 {sSrc}, {sOff}, {sX}")
    if o.get("ss", 0) and not HS: stamp(1, True)
    a("L_ls:")
    pair_body(DS, jss, 0, "s")
    if o.get("ss", 0):
        for k, g in ((2, 2), (3, 6), (6, 8), (7, 16)):
            a(f"s_cmp_lg_u32 m0, {g*4096}"); a(f"s_cbranch_scc1 L_ss{k}"); stamp(k, True); a(f"L_ss{k}:")
    if RO != [0]:
        a(f"s_and_b32 s49, m0, 0x7fff")
        a(f"s_cbranch_scc1 L_ls")
        round_base("m0", 15)
    a(f"s_cmp_lg_u32 m0, {RS*32768}")
    a(f"s_cbranch_scc1 L_ls")
    a(f"v_mov_b32 v8, {(32*RS + js - D - 3)//4}")
    a(f"s_mov_b32 {sR}, {RS-1}")
    a(f"s_add_u32 s8, s8, {sT[0]}")
    a(f"s_addc_u32 s9, s9, 0")
    a(f"s_mov_b32 {sSpin}, {hex(0x100000 if STAMP == 1 or BOUND else 0x4000000)}", "bound on the final wait (about a second)")
    a(f"v_min_u32 v9, 8, {vL}")
    a(f"v_lshl_add_u32 v9, v9, 2, {vF}", "lanes 0-7: done[], other lanes: idle-slot rate")
    a(f"v_mov_b32 v11, {RS - 4}")
    a(f"v_cmp_lt_u32 vcc, 7, {vL}")
    a(f"v_mov_b32 v14, {V0 if VD else (B0 if FB else 0)}")
    a(f"v_mov_b32 v15, -1000")
    a(f"ds_write_b32 {vF}, v14 offset:{F_RATE}")
    a(f"v_cndmask_b32 v11, v11, v15, vcc")
    a(f"v_cndmask_b32 v10, v10, v14, vcc")
    a(f"s_mov_b32 {sAcc}, 0")
    if STAMP == 1: a("s_mov_b32 s79, 0")
    a(f"s_branch L_ld1")
    a("L_ld:")
    if VD:
        for dv in range(DLO, D + 1):
            a(f"L_d{dv}:")
            pair_body(dv, js, 0, f"m{dv}")
            a(f"s_sub_u32 {sCnt}, {sCnt}, 1")
            a(f"s_cbranch_scc0 L_d{dv}")
            if dv < D: a(f"s_branch L_ld1")
    else:
        pair_body(D, js, FB, "m")
        a(f"s_sub_u32 {sCnt}, {sCnt}, 1")
        a(f"s_cbranch_scc0 L_ld")
    a("L_ld1:")
    a(f"s_bitset0_b32 m0, 17")
    a(f"s_add_u32 {sR}, {sR}, 1")
    a(f"v_add_u32 v11, 1, v11")
    if RO != [0]: round_base(sR, 0)
    if o.get("ra", 0):
        a(f"s_and_b32 s49, {sR}, {32 - o['ra']}")
        a(f"s_cselect_b32 s41, 13, 12")
        a(f"s_lshl_b32 s41, 1, s41")
        a(f"s_xor_b32 s42, s41, 0x3000")
    marks = []
    if STAMP == 1: marks = list(zip((1,2,3,6,7), str(o.get("marks", "4,5,6,8,16")).split(",")))
    if STAMP == 4: marks = [(1, o.get("m0", 99)), (2, o["m1"])]
    for k, rr in marks:
        a(f"s_cmp_lg_u32 {sR}, {rr}"); a(f"s_cbranch_scc1 L_mk{k}"); stamp(k, True); a(f"L_mk{k}:")
    a(f"s_and_b32 {sCnt}, {sR}, 31")
    a(f"s_cbranch_scc0 L_ldsw")
    a("L_ldck:")
    a("s_waitcnt lgkmcnt(0)")
    a(f"v_cmp_lt_i32 vcc, v10, v11", "ring space: every consumer has finished round R-4 (values read earlier in the round)")
    a(f"s_cbranch_vccnz L_ldslow")
    a(f"s_mov_b32 {sCnt}, 3")
    if VD:
        a(f"v_readlane_b32 {sInc}, v10, 8")
        a(f"ds_read_b32 v10, v9 offset:{F_DONE}")
        if STAMP == 1: a(f"s_lshr_b32 s48, {sInc}, 4"); a(f"s_add_u32 s79, s79, s48")
        a(f"s_add_u32 {sInc}, {sInc}, {sAcc}")
        a(f"s_and_b32 {sAcc}, {sInc}, 15")
        if o.get("vlast", 63) < 64:
            a(f"s_cmp_ge_u32 {sR}, {o.get('vlast', 63)}")
            a(f"s_cbranch_scc1 L_d{D}")
        def tree(lo, hi):
            if lo == hi: a(f"s_branch L_d{lo}"); return
            mid = (lo + hi + 1) // 2
            a(f"s_cmpk_ge_u32 {sInc}, {16*mid}")
            if mid == hi: a(f"s_cbranch_scc1 L_d{hi}"); tree(lo, mid - 1); return
            l = lab("t")
            a(f"s_cbranch_scc1 {l}"); tree(lo, mid - 1); a(f"{l}:"); tree(mid, hi)
        tree(DLO, D)
    elif FB:
        a(f"v_readlane_b32 {sInc}, v10, 8")
        if STAMP == 1: a(f"s_lshr_b32 s48, {sInc}, 4"); a(f"s_add_u32 s79, s79, s48")
        if o.get("vlast", 64) < 64:
            a(f"s_cmp_lt_u32 {sR}, {o.get('vlast', 64)}")
            a(f"s_cselect_b32 {sInc}, {sInc}, 0")
        a(f"s_lshl_b32 {sInc}, {sInc}, 24")
    if not VD:
        if not o.get("fr", 1): a(f"ds_read_b32 v10, v9 offset:{F_DONE}")
        a(f"s_branch L_ld")
    a("L_ldslow:")
    a(f"ds_read_b32 v10, v9 offset:{F_DONE}")
    if BOUND or STAMP == 1:
        a(f"s_sub_u32 {sSpin}, {sSpin}, 1")
        a(f"s_cbranch_scc1 L_end")
    a("s_branch L_ldck")
    a("L_ldsw:")
    a(f"s_cmp_eq_u32 {sR}, 64")
    a(f"s_cbranch_scc1 L_drain")
    a(f"s_mov_b32 s36, s8", "switch to V (stored unswizzled)")
    a(f"s_mov_b32 s37, s9")
    if LOC:
        a(f"s_and_b32 s49, s2, 4"); a(f"s_lshl_b32 s49, s49, 20")
        a(f"s_sub_u32 s36, s36, s49"); a(f"s_subb_u32 s37, s37, 0")
        a(f"s_mov_b32 s38, 0x800000")
        a(f"s_lshr_b32 {sX}, s2, 1"); a(f"s_xor_b32 {sX}, {sX}, s2"); a(f"s_and_b32 {sX}, {sX}, 2"); a(f"s_lshl_b32 {sX}, {sX}, 12")
        if o.get("cv", 0): a(f"s_xor_b32 {sX}, {sX}, 0x2000")
        a(f"s_or_b32 {sX}, {sX}, s49")
        a("s_movk_i32 s41, 0x1000"); a("s_movk_i32 s42, 0x4000")
    a(f"s_mov_b32 {sOff}, 0")
    a(f"s_mov_b32 {sSrc}, {sX}")
    for j in range(4): a(f"v_lshlrev_b32 v{4+j}, 4, {vL}")
    stamp(4)
    a("s_branch L_ldck")
    a("L_drain:")
    a.c("set up the final stage while the last loads land: lane l owns output column 2*(l&7) + (l>>5)")
    a(f"v_and_b32 v21, 7, {vL}")
    a(f"v_lshrrev_b32 v22, 5, {vL}")
    a(f"v_lshl_add_u32 v21, v21, 1, v22")
    a(f"v_lshl_add_u32 v22, v21, 2, {vF}")
    a(f"ds_read_b32 v17, {vF} offset:{F_TAG}")
    a(f"ds_read_b32 v18, v22 offset:{L_FIN - L_FL}")
    a(f"ds_read_b32 v19, v22 offset:{L_FIN - L_FL + 64}")
    a(f"s_lshl_b32 {sT[0]}, s2, 5")
    a(f"v_lshl_add_u32 v20, v21, 1, {sT[0]}", "byte offset in out")
    IB = o.get("ib", -1); DUP = o.get("dup", 0); WS_IN = 0x400000
    if DUP:
        a(f"ds_read_b32 v23, {vF} offset:16", "votes for the second copy being the nearer one")
        a(f"s_and_b32 {sT[1]}, s2, 0xfe")
        a(f"s_add_u32 {sT[1]}, {sT[1]}, s2")
        a(f"s_lshl_b32 {sT[0]}, {sT[1]}, 12")
        a(f"s_add_u32 {sT[0]}, {sT[0]}, {hex(WS_IN)}")
    elif IB >= 0:
        a(f"s_lshr_b32 {sT[1]}, s2, 1")
        a(f"s_xor_b32 {sT[1]}, {sT[1]}, s2")
        a(f"s_and_b32 {sT[1]}, {sT[1]}, 2")
        a(f"s_mul_i32 {sT[1]}, {sT[1]}, 3")
        a(f"s_xor_b32 {sT[1]}, {sT[1]}, s2")
        if IB: a(f"s_xor_b32 {sT[1]}, {sT[1]}, {IB}")
        a(f"s_lshl_b32 {sT[0]}, {sT[1]}, 12")
        if POL:
            a(f"ds_read_b32 v23, {vF} offset:{F_POL}")
            a(f"s_and_b32 {sT[1]}, {sT[0]}, 0x2000")
            a(f"s_bitset0_b32 {sT[0]}, 13")
            a(f"v_add_u32 v4, {sT[1]}, v4")
    else: a(f"s_lshl_b32 {sT[0]}, s2, 12")
    a(f"s_add_u32 s56, s28, {sT[0]}", "inbox of this workgroup: 32 producers x 128 bytes")
    a(f"s_addc_u32 s57, s29, 0")
    a(f"s_movk_i32 s58, {0x3000 if DUP or POL else 4096}")
    a(f"s_mov_b32 s59, 0x20000")
    if POL:
        a("s_waitcnt lgkmcnt(0)")
        a(f"v_xor_b32 v4, v23, v4")
    if DUP:
        a("s_waitcnt lgkmcnt(0)")
        if DUP == 1:
            a(f"v_cmp_lt_i32 vcc, 0, v23")
            a(f"v_add_u32 v5, 0x2000, v4")
            a(f"s_nop 0")
            a(f"v_cndmask_b32 v4, v4, v5, vcc")
        else:
            a(f"s_lshl_b32 {sT[1]}, s2, 11"); a(f"s_and_b32 {sT[1]}, {sT[1]}, 0x2000")
            if DUP & 1: a(f"s_xor_b32 {sT[1]}, {sT[1]}, 0x2000")
            a(f"v_add_u32 v4, {sT[1]}, v4")
    a(f"s_mov_b32 {sHI}, 0xffff0000")
    a(f"s_mov_b64 s[44:45], -1")
    a(f"s_mov_b64 s[46:47], -1")
    pub = (2044 + js - D - 3)//4 + 1
    while pub < 512:
        pub += 1
        a(f"s_waitcnt vmcnt({2048 - 4*pub})")
        a("v_add_u32 v8, 1, v8"); a(f"ds_write_b32 {vF}, v8")
    stamp(5)
    sets = [(32, "s[44:45]"), (48, "s[46:47]")][:PP]
    def pissue(base):
        for i in range(4): a(f"buffer_load_dwordx4 v[{base+4*i}:{base+4*i+3}], v4, {W2}, 0 offen offset:{1024*i} {o.get('plp', 'sc1')}")
    if DRY == 2: a("s_cbranch_execz L_fin0")
    pissue(32)
    a("s_waitcnt lgkmcnt(0)")
    a("s_barrier", "pairs with the consumers' barrier before the output projection")
    if PP == 2: pissue(48)
    if STAMP == 1: a("s_mov_b32 s88, 0")
    a("L_poll:")
    for k, (base, m) in enumerate(sets):
        if STAMP == 1: a("s_add_u32 s88, s88, 1")
        a(f"s_waitcnt vmcnt({4*(PP-1)})")
        a(f"s_mov_b64 exec, {m}")
        for i in range(8): a(f"v_cmpx_eq_u32 vcc, v17, v{base+1+2*i}")
        a(f"s_andn2_b64 {m}, {m}, exec", "lanes whose four 16-byte pieces are not all this launch's yet")
        a(f"s_cbranch_scc0 L_got{k}")
        a(f"s_mov_b64 exec, {m}")
        if o.get("psl", 0): a(f"s_sleep {o['psl']}")
        pissue(base)
    a(f"s_sub_u32 {sSpin}, {sSpin}, 16")
    a(f"s_cbranch_scc0 L_poll")
    a("s_endpgm")
    for k, (base, m) in reversed(list(enumerate(sets))):
        a(f"L_got{k}:")
        a(f"s_mov_b64 exec, -1")
        if k == 0: a("L_fin0:")
        tstamp(4)
        a(f"v_add_f32 v24, v{base}, v{base+8}"); a(f"v_add_f32 v25, v{base+2}, v{base+10}")
        a(f"v_add_f32 v26, v{base+4}, v{base+12}"); a(f"v_add_f32 v27, v{base+6}, v{base+14}")
        if k: a("s_branch L_fin1")
    a("L_fin1:")
    a("v_add_f32 v24, v24, v26"); a("v_add_f32 v25, v25, v27")
    a("s_nop 1")
    a("v_permlane32_swap_b32 v24, v25")
    a("v_add_f32 v24, v24, v25")
    a("v_mov_b32 v25, v24"); a("s_nop 1")
    a("v_permlane16_swap_b32 v24, v25")
    a("v_add_f32 v24, v24, v25")
    a("s_nop 1")
    a(f"v_add_f32_dpp v24, v24, v24 row_ror:8 {FULL}")
    rbf("v24")
    a("v_add_f32 v24, v18, v24", "x + attention")
    rbf("v24")
    a("v_add_f32 v24, v24, v19", "+ mixer")
    a("v_cvt_pk_bf16_f32 v24, v24, v24")
    if DRY: a("s_cbranch_execz L_dryret")
    a("s_mov_b32 exec_lo, 0xff")
    a("s_mov_b32 exec_hi, 0xff")
    a(f"global_store_short v20, v24, s[24:25] {o.get('outp', 'sc1')}")
    a(f"s_and_b32 {sT[0]}, s2, 31")
    a(f"s_cbranch_scc1 L_fin")
    a(f"s_lshl_b32 {sT[0]}, s2, 3")
    a(f"s_add_u32 {sT[0]}, {sT[0]}, {hex(WS_EPOCH)}")
    a(f"v_mov_b32 v16, {sT[0]}")
    a(f"s_mov_b64 exec, 1")
    a(f"global_store_dword v16, v17, s[28:29] {o.get('outp', 'sc1')}", "next launch's tag differs from this one")
    a("s_branch L_fin")

    a("L_cons:")
    if HS:
        a(f"v_mov_b32 {vF}, {L_FL}")
        a(f"v_lshl_add_u32 v9, {vL}, 2, {vF}")
        a(f"v_mov_b32 v10, 0")
        a(f"ds_write_b32 v9, v10", "every consumer clears the flag block before the barrier")
        a(f"s_sub_u32 {sW}, {sW}, 1")
    a(f"s_lshr_b32 {sB}, s2, 5")
    a(f"s_and_b32 {sH}, s2, 31")
    a(f"s_mov_b32 {sHI}, 0xffff0000")
    a(f"s_mov_b32 s59, 0x20000")
    a(f"s_lshl_b32 {sT[0]}, {sB}, 10")
    a(f"v_lshlrev_b32 v8, 4, {vL}")
    if BOUND: a(f"s_mov_b32 {sSpin}, 0x100000")
    if HS: a("s_waitcnt lgkmcnt(0)")
    a(f"s_add_u32 s4, s4, {sT[0]}")
    a(f"s_addc_u32 s5, s5, 0")
    a(f"global_load_dwordx4 v[4:7], v8, s[4:5]", "x[b][8l..8l+7]")
    npre = 0
    IPF = o.get("ipf", 2)
    if IPF == 1:
        a(f"s_getpc_b64 s[46:47]")
        a("L_pc:")
        a(f"s_lshl_b32 {sT[0]}, {sW}, 10")
        a(f"v_add_u32 v9, {sT[0]}, v8")
        a(f"v_min_u32 v9, L_end-L_pc-12, v9")
        a(f"global_load_dwordx4 v[16:19], v9, s[46:47]")
    if IPF == 2:
        a.c("pull this kernel's code towards L2: one dword per 32 bytes, 2 KiB per wave")
        a(f"s_getpc_b64 s[46:47]")
        a("L_pc:")
        a(f"s_sub_u32 s46, s46, L_pc-L_ld")
        a(f"s_subb_u32 s47, s47, 0")
        a(f"s_lshl_b32 {sT[0]}, {sW}, 11")
        a(f"v_lshl_add_u32 v9, {vL}, 5, {sT[0]}")
        a(f"v_min_u32 v9, L_end-L_ld, v9")
        a(f"global_load_dword v16, v9, s[46:47]")
    a.c("wq rows 64w + 8*((j>>1)^w) + 2r + (j&1), columns 128h + 8c")
    a(f"s_lshl_b32 {sT[0]}, {sW}, 19")
    a(f"s_lshl_b32 {sT[1]}, {sH}, 8")
    a(f"s_add_u32 {sT[0]}, {sT[0]}, {sT[1]}")
    a(f"s_add_u32 s36, s10, {sT[0]}")
    a(f"s_addc_u32 s37, s11, 0")
    a(f"s_sub_u32 s38, 0x400000, {sT[0]}")
    QM = o.get("qm", 1)
    a(f"v_lshlrev_b32 v9, {14 if QM == 1 else 15}, {vRow}")
    a(f"v_lshl_add_u32 v9, {vCol}, 4, v9")
    if QM == 1: a(f"s_lshl_b32 {sT[2]}, {sW}, 16")
    else:
        a(f"s_lshl_b32 {sT[2]}, {sW}, 16")
        a(f"s_and_b32 {sT[2]}, {sT[2]}, 0x60000")
        a(f"s_lshl_b32 {sT[3]}, {sW}, 14")
        a(f"s_and_b32 {sT[3]}, {sT[3]}, 0x4000")
        a(f"s_or_b32 {sT[2]}, {sT[2]}, {sT[3]}")
    def wslot(j): return f"v[{WREG+4*j}:{WREG+4*j+3}]"
    def wqload(j):
        a(f"s_xor_b32 {sT[3]}, {sT[2]}, {((j >> 1) * 8 + (j & 1)) * 8192 if QM == 1 else ((j >> 2) * 16 + (j & 3)) * 8192}")
        a(f"buffer_load_dwordx4 {wslot(j)}, v9, {R}, {sT[3]} offen {o.get('wqpol', 'nt')}")
    if FB:
        a(f"s_mov_b32 {sT[4]}, {hex(WS_EPOCH)}")
        a(f"s_load_dword {sTg}, s[28:29], {sT[4]}")
    a.c("this workgroup's eighth of the head's wo slice -> L2 (the slice itself is read later)")
    OPJ = o.get("opj", -1)
    if o.get("opf", 1):
        a(f"s_lshl_b32 {sT[5]}, {sH}, 17")
        a(f"s_lshl_b32 {sT[6]}, {sW}, 10")
        a(f"s_add_u32 {sT[5]}, {sT[5]}, {sT[6]}")
        a(f"s_and_b32 {sT[6]}, {sB}, 4")
        a(f"s_add_u32 {sT[6]}, {sT[6]}, {sB}")
        a(f"s_lshl_b32 {sT[6]}, {sT[6]}, 13")
        a(f"s_add_u32 {sT[5]}, {sT[5]}, {sT[6]}")
        a(f"v_add_u32 v11, {sT[5]}, v8")
        if HS: a("s_barrier")
        if OPJ < 0:
            a(f"global_load_dwordx4 v[160:163], v11, s[12:13]")
            a(f"v_add_u32 v11, 0x8000, v11")
            a(f"global_load_dwordx4 v[164:167], v11, s[12:13]")
        else: a(f"v_mov_b32 v15, v11")
    else:
        a(f"s_lshl_b32 {sT[5]}, {sH}, 17")
        a(f"s_lshl_b32 {sT[6]}, {sW}, 14")
        a(f"s_add_u32 {sT[5]}, {sT[5]}, {sT[6]}")
        a(f"s_lshl_b32 {sT[6]}, {sB}, 7")
        a(f"s_add_u32 {sT[5]}, {sT[5]}, {sT[6]}")
        a(f"v_lshrrev_b32 v11, 3, {vL}")
        a(f"v_and_b32 v10, 7, {vL}")
        a(f"v_lshl_add_u32 v10, v10, 4, {sT[5]}")
        a(f"v_lshl_add_u32 v11, v11, 10, v10")
        if HS: a("s_barrier")
        a(f"global_load_dwordx4 v[160:163], v11, s[12:13]")
        a(f"v_add_u32 v11, 0x2000, v11")
        a(f"global_load_dwordx4 v[164:167], v11, s[12:13]")
    QPF = o.get("qpf", 0)
    if QPF:
        a(f"s_lshl_b32 {sT[3]}, {sB}, 16")
        a(f"buffer_load_dwordx4 v[152:155], v9, {R}, {sT[3]} offen")
        a(f"s_add_u32 {sT[3]}, {sT[3]}, 8192")
        a(f"buffer_load_dwordx4 v[156:159], v9, {R}, {sT[3]} offen")
    for j in range(WQS): wqload(j)
    a(f"s_waitcnt vmcnt({WQS + (2 if OPJ < 0 else 0) + 2*QPF})")
    stamp(1)
    X = [f"v{16+i}" for i in range(8)]
    def unpack(src4):
        for i in range(4):
            a(f"v_lshlrev_b32 {X[2*i]}, 16, v{src4+i}")
            a(f"v_and_b32 {X[2*i+1]}, {sHI}, v{src4+i}")
    def ln(sM, sD, write):
        a.c("LayerNorm statistics with the reference's bf16 roundings")
        a(f"v_add_f32 v24, {X[0]}, {X[1]}")
        for i in range(2, 8): a(f"v_add_f32 v24, v24, {X[i]}")
        wave_reduce("v_add_f32", "v24", sT[0])
        a("s_nop 1")
        a(f"v_mov_b32 v25, {sT[0]}")
        a(f"v_mul_f32 v25, {hex(f2u(1.0/512))}, v25")
        a(f"v_sub_f32 v26, {X[0]}, v25")
        a(f"v_mul_f32 v24, v26, v26")
        for i in range(1, 8):
            a(f"v_sub_f32 v26, {X[i]}, v25"); a(f"v_fmac_f32 v24, v26, v26")
        wave_reduce("v_add_f32", "v24", sT[0])
        rbf("v25")
        a(f"v_mov_b32 v24, {sT[0]}")
        a(f"v_mul_f32 v24, {hex(f2u(1.0/512))}, v24")
        rbf("v24")
        a(f"v_add_f32 v24, {hex(f2u(1e-5))}, v24")
        rbf("v24")
        a(f"v_sqrt_f32 v24, v24")
        a("s_nop 0")
        rbf("v24")
        a(f"v_rcp_f32 v24, v24")
        a(f"v_readfirstlane_b32 {sM}, v25")
        a(f"v_readfirstlane_b32 {sD}, v24")
        if write:
            for i in range(8): a(f"v_sub_f32 {X[i]}, {X[i]}, v25")
            for i in range(4): a(f"v_cvt_pk_bf16_f32 v{4+i}, {X[2*i]}, {X[2*i+1]}")
            unpack(4)
            for i in range(8): a(f"v_mul_f32 {X[i]}, {X[i]}, v24")
            for i in range(4): a(f"v_cvt_pk_bf16_f32 v{4+i}, {X[2*i]}, {X[2*i+1]}")
    unpack(4)
    ln(sM1, sD1, True)
    a(f"v_add_u32 v8, {L_XN}, v8")
    a(f"ds_write_b128 v8, v[4:7]", "packed xn (every wave writes the same bytes)")
    if QM == 1: a(f"s_mul_i32 {sT[0]}, {sW}, 144")
    else:
        a(f"s_lshr_b32 {sT[0]}, {sT[2]}, 12")
        a(f"s_lshl_b32 {sT[1]}, {sW}, 7")
        a(f"s_add_u32 {sT[0]}, {sT[0]}, {sT[1]}")
    a(f"s_add_u32 {sT[0]}, {sT[0]}, {L_XN}")
    a(f"v_lshl_add_u32 v8, {vRow}, {2 if QM == 1 else 3}, {sT[0]}")
    assert L_XN % 128 == 0
    for i in range(8):
        if i: a(f"v_xor_b32 v10, {16*i if QM == 1 else 32*(i >> 1) + 4*(i & 1)}, v8")
        a(f"ds_read_b32 v{QF+i}, {'v10' if i else 'v8'}")
    for i in range(8): a(f"v_mov_b32 {ACC[i]}, 0")
    nissued = WQS + WQ2
    for j in range(WQS, nissued): wqload(j)
    def preread(n):
        a.c(f"take K granule {n} of this wave out of the ring early: frees a round for the loader")
        if n: a(f"v_add_u32 v12, 0x8000, v12")
        for t in range(1, 4): a(f"v_xor_b32 v{19+t}, {64*t}, v12")
        a(f"s_add_u32 {sT[4]}, {sW}, {8*n}")
        spin(F_LAND, "s_cmp_gt_i32", sT[4], "v14", sT[0])
        a(f"ds_read_b128 v[{ST[n]}:{ST[n]+3}], v12")
        for t in range(1, 4): a(f"ds_read_b128 v[{ST[n]+4*t}:{ST[n]+4*t+3}], v{19+t}")
        a(f"v_mov_b32 v14, {n+1}")
        a("s_waitcnt lgkmcnt(0)")
        a(f"ds_write_b32 v13, v14 offset:{F_DONE}")
    a(f"v_xor_b32 v12, {vRow}, {vCol}")
    a(f"v_lshlrev_b32 v12, 4, v12")
    a(f"v_lshl_add_u32 v12, {vCol}, 8, v12")
    a(f"s_lshl_b32 {sT[0]}, {sW}, 12")
    a(f"v_add_u32 v12, {sT[0]}, v12")
    a(f"s_lshl_b32 {sT[0]}, {sW}, 2")
    a(f"v_add_u32 v13, {sT[0]}, {vF}")
    preread(0)
    opn = 0
    a.c("q projection: acc[col] += xn[row] * wq[row][col]")
    for j in range(16):
        for n in range(1, PRE):
            if PJ[n-1] == j: preread(n)
        src = f"v{QF + j//2}"
        if j % 2 == 0: a(f"v_and_b32 v10, 0xffff, {src}"); a(f"v_lshlrev_b32 v11, 16, {src}")
        else: a(f"v_lshrrev_b32 v10, 16, {src}"); a(f"v_and_b32 v11, {sHI}, {src}")
        extra = 2 if OPJ >= 0 and j > OPJ and j < opn else 0
        a(f"s_waitcnt vmcnt({nissued - j - 1 + extra})")
        if j == OPJ:
            opn = nissued
            a(f"global_load_dwordx4 v[160:163], v15, s[12:13]")
            a(f"v_add_u32 v15, 0x8000, v15")
            a(f"global_load_dwordx4 v[164:167], v15, s[12:13]")
        while nissued < 16 and nissued - j - 1 < WQ2:
            wqload(nissued); nissued += 1
        for i in range(4):
            a(f"v_dot2c_f32_bf16 {ACC[2*i]}, v10, v{WREG+4*j+i}")
            a(f"v_dot2c_f32_bf16 {ACC[2*i+1]}, v11, v{WREG+4*j+i}")
    stamp(2)
    vPW, vPR = "v15", "v14"
    a(f"s_mul_i32 {sT[0]}, {sW}, 528")
    a(f"s_add_u32 {sT[0]}, {sT[0]}, {L_QP}")
    a(f"v_lshl_add_u32 {vPW}, {vCol}, 5, {sT[0]}")
    a(f"v_lshl_add_u32 {vPW}, {vRow}, 3, {vPW}")
    rows_reduce8(vPW)
    arrive(F_ARRQ)
    for i in range(4): a(f"v_mov_b32 v{160+i}, v{4+i}", "keep xn for the second LayerNorm" if i == 0 else None)
    a(f"v_lshlrev_b32 {vPR}, 3, {vL}")
    a(f"v_add_u32 {vPR}, {L_QP}, {vPR}")
    spin(F_ARRQ, "s_cmp_ge_u32", 8, "v10", sT[0])
    sum8(WREG, vPR)
    a(f"v_lshlrev_b32 v10, 2, {vL}")
    a(f"v_add_u32 v10, {L_XN}, v10")
    a(f"ds_write_b32 v10, v{WREG}", "packed q (xn is dead: every wave has arrived)")
    a(f"v_lshlrev_b32 v10, 4, {vRow}")
    a(f"v_add_u32 v10, {L_XN}, v10")
    for t in range(4): a(f"ds_read_b128 v[{QF+4*t}:{QF+4*t+3}], v10 offset:{64*t}", "MFMA A fragments of q" if t == 0 else None)
    vH, vMA, vC0, vXr = "v138", "v139", "v140", "v145"
    a(f"s_mov_b32 {sL2E}, {hex(f2u(l2e))}")
    a(f"s_mov_b32 {sK}, {hex(f2u(128 ** -0.5))}")
    vKA, vSA, vDA, vM, vLs, vDn = "v4", "v5", "v6", "v7", "v8", "v9"
    a(f"v_add_u32 {vKA}, 0xffff0000, v12")
    a(f"s_lshl_b32 {sT[0]}, {sW}, 6")
    a(f"s_add_u32 {sT[0]}, {sT[0]}, {L_SC}")
    a(f"v_lshl_add_u32 {vSA}, {vCol}, 2, {sT[0]}")
    a(f"v_mov_b32 {vDA}, v13")
    a(f"v_mov_b32 {vM}, 0xff7fffff")
    a(f"v_mov_b32 {vLs}, 0")
    a(f"v_mov_b32 {vDn}, 0")
    a(f"s_mov_b32 {sG}, {sW}")
    a(f"s_mov_b32 {sR}, 0")
    a.c("wo: rows 128h + 32r + 2j + e, columns 64w + 4c")
    a(f"s_lshl_b32 {sT[0]}, {sH}, 17")
    a(f"s_add_u32 s36, s12, {sT[0]}")
    a(f"s_addc_u32 s37, s13, 0")
    a(f"s_mov_b32 s38, {o.get('won', 0x20000)}")
    vWO = "v164"
    a(f"s_lshl_b32 {sT[0]}, {sW}, 7")
    a(f"v_lshl_add_u32 {vWO}, {vCol}, 3, {sT[0]}")
    a(f"v_lshl_add_u32 {vWO}, {vRow}, 15, {vWO}")
    a(f"s_add_u32 {sOff}, {sW}, {WMR}")
    if FB:
        a(f"s_mul_i32 {sTg}, {sTg}, 1664525")
        a(f"s_add_u32 {sTg}, {sTg}, 1013904223")
    if o.get("bi", 0): a("s_mov_b32 s11, 0")
    stamp(3)
    a("s_waitcnt lgkmcnt(0)")
    a("s_branch L_kmid")
    a("L_kst:")
    for n in range(1, PRE):
        for i in range(16): a(f"v_mov_b32 v{ST[n-1]+i}, v{ST[n]+i}")
    a("s_branch L_kmid")
    a("L_k:")
    a(f"s_cmp_lt_u32 {sR}, {PRE}")
    a(f"s_cbranch_scc1 L_kst")
    for t in range(1, 4): a(f"v_xor_b32 v{10+t}, {64*t}, {vKA}")
    spin(F_LAND, "s_cmp_gt_i32", sG, "v10", sT[0], o.get("sleep", 0))
    a(f"ds_read_b128 v[{DT}:{DT+3}], {vKA}")
    for t in range(1, 4): a(f"ds_read_b128 v[{DT+4*t}:{DT+4*t+3}], v{10+t}")
    a("L_kmid:")
    a(f"v_add_u32 {vDn}, 1, {vDn}")
    a(f"v_add_u32 {vKA}, 0x8000, {vKA}")
    a(f"v_and_b32 {vKA}, 0x1ffff, {vKA}")
    for t in range(4):
        a(f"s_waitcnt lgkmcnt({3-t})")
        a(f"v_mfma_f32_16x16x32_bf16 v[16:19], v[{QF+4*t}:{QF+4*t+3}], v[{DT+4*t}:{DT+4*t+3}], {'0' if t == 0 else 'v[16:19]'}")
    a(f"v_max_u32 v10, {PRE}, {vDn}")
    a(f"ds_write_b32 {vDA}, v10 offset:{F_DONE}")
    a(f"s_add_u32 {sG}, {sG}, 8")
    a(f"s_nop 4")
    rbf("v16")
    a(f"v_mul_f32 v16, {sK}, v16")
    rbf("v16")
    a(f"ds_write_b32 {vSA}, v16", "score of key l&15 of this granule")
    a(f"v_max_f32 v17, {vM}, v16", "running max / sum per lane")
    a(f"v_sub_f32 v18, {vM}, v17")
    a(f"v_sub_f32 v16, v16, v17")
    a(f"v_mul_f32 v18, {sL2E}, v18")
    a(f"v_mul_f32 v16, {sL2E}, v16")
    a(f"v_exp_f32 v18, v18")
    a(f"v_exp_f32 v16, v16")
    a(f"v_mov_b32 {vM}, v17")
    a(f"v_add_u32 {vSA}, 512, {vSA}")
    a(f"v_fma_f32 {vLs}, {vLs}, v18, v16")
    if FG0 < 256: ctl("k")
    if POL:
        PR0 = o.get("pr0", 18)
        a.c("inbox placement (speed only): head 0 of the batch finds which half of the inbox area answers it faster")
        a(f"s_cmp_lg_u32 {sH}, 0")
        a(f"s_cbranch_scc1 L_npub")
        a(f"s_sub_u32 {sT[1]}, {sG}, {8*PR0 + 8}")
        a(f"s_cmp_ge_u32 {sT[1]}, 32")
        a(f"s_cbranch_scc1 L_nprobe")
        a(f"s_lshl_b32 {sT[1]}, {sT[1]}, 8")
        a(f"s_lshl_b32 {sT[2]}, {sB}, 17")
        a(f"s_add_u32 {sT[2]}, {sT[2]}, {sT[1]}")
        a(f"s_lshl_b32 {sT[1]}, {sT[1]}, 5")
        a(f"s_and_b32 {sT[1]}, {sT[1]}, 0x2000", "odd waves ask the upper half first")
        a(f"s_add_u32 {sT[2]}, {sT[2]}, {sT[1]}")
        a(f"s_xor_b32 {sT[3]}, {sT[2]}, 0x2000")
        a(f"s_load_dword s80, s[28:29], {sT[2]} glc")
        a(f"s_load_dword s81, s[28:29], {sT[3]} glc")
        a(f"s_waitcnt lgkmcnt(0)")
        for k, (r0, off) in enumerate((("s80", sT[2]), ("s81", sT[3]))):
            a(f"s_not_b32 {r0}, {r0}")
            a(f"s_mov_b32 s82, {r0}")
            a(f"s_movk_i32 {sT[4+k]}, 2048")
            a(f"s_load_dword s82, s[28:29], {off} glc")
            a(f"L_pw{k}:")
            a(f"s_sub_u32 {sT[4+k]}, {sT[4+k]}, 1")
            a(f"s_cbranch_scc1 L_pe{k}")
            a(f"s_cmp_eq_u32 s82, {r0}")
            a(f"s_cbranch_scc1 L_pw{k}")
            a(f"L_pe{k}:")
            a(f"s_waitcnt lgkmcnt(0)")
        a(f"s_cmp_gt_i32 {sT[5]}, {sT[4]}")
        a(f"s_cselect_b32 {sT[2]}, {sT[3]}, {sT[2]}")
        a(f"s_bitcmp1_b32 {sT[2]}, 13")
        a(f"s_cselect_b32 {sT[4]}, 1, -1")
        a(f"v_mov_b32 v11, {sT[4]}")
        a(f"s_mov_b64 exec, 1")
        a(f"ds_add_u32 {vF}, v11 offset:{F_PSUM}")
        a(f"s_mov_b64 exec, -1")
        a("L_nprobe:")
        a(f"s_cmp_lg_u32 {sG}, {8*(PR0+6) + 8}")
        a(f"s_cbranch_scc1 L_npub")
        a(f"ds_read_b32 v10, {vF} offset:{F_PSUM}")
        a(f"s_lshl_b32 {sT[1]}, {sB}, 11")
        a(f"s_add_u32 {sT[1]}, {sT[1]}, {hex(WS_POL)}")
        a(f"v_lshl_add_u32 v12, {vL}, 8, {sT[1]}")
        a(f"s_waitcnt lgkmcnt(0)")
        a(f"v_readfirstlane_b32 {sT[2]}, v10")
        a(f"s_cmp_gt_i32 {sT[2]}, 0")
        a(f"s_cselect_b32 {sT[2]}, 1, 0")
        a(f"s_xor_b32 {sT[2]}, {sT[2]}, {sE}")
        a(f"v_mov_b32 v11, {sT[2]}")
        a(f"s_mov_b64 exec, 0xff")
        a(f"global_store_dword v12, v11, s[28:29] sc1", "tag ^ choice, eight copies")
        a(f"s_mov_b64 exec, -1")
        a("L_npub:")
        a(f"s_cmp_lg_u32 {sG}, {8*(PR0+12) + 8}")
        a(f"s_cbranch_scc1 L_nget")
        a(f"s_lshl_b32 {sT[1]}, s2, 6")
        a(f"s_and_b32 {sT[1]}, {sT[1]}, 0x3f00")
        a(f"s_add_u32 {sT[1]}, {sT[1]}, {hex(WS_POL)}")
        a(f"s_mov_b32 {sT[3]}, 0x100000")
        a("L_pget:")
        a(f"s_load_dword {sT[2]}, s[28:29], {sT[1]} glc")
        a(f"s_sub_u32 {sT[3]}, {sT[3]}, 1")
        a(f"s_waitcnt lgkmcnt(0)")
        a(f"s_cbranch_scc1 L_pgot")
        a(f"s_xor_b32 {sT[2]}, {sT[2]}, {sE}")
        a(f"s_cmp_gt_u32 {sT[2]}, 1")
        a(f"s_cbranch_scc1 L_pget")
        a("L_pgot:")
        a(f"s_and_b32 {sT[2]}, {sT[2]}, 1")
        a(f"s_lshl_b32 {sT[2]}, {sT[2]}, 13")
        a(f"v_mov_b32 v11, {sT[2]}")
        a(f"ds_write_b32 {vF}, v11 offset:{F_POL}")
        a("L_nget:")
    a.c("wo slice trickles in, one row pair at a time")
    for j in range(16):
        rr = WOR + j * WOM // WOD
        a(f"s_cmp_lg_u32 {sR}, {rr}")
        a(f"s_cbranch_scc1 L_wo{j}")
        a(f"s_movk_i32 {sT[1]}, {2048*j}")
        a(f"buffer_load_dwordx2 v[{WREG+4*j}:{WREG+4*j+1}], {vWO}, {R}, {sT[1]} offen {o.get('wop', 'nt')}")
        a(f"buffer_load_dwordx2 v[{WREG+4*j+2}:{WREG+4*j+3}], {vWO}, {R}, {sT[1]} offen offset:1024 {o.get('wop', 'nt')}")
        a(f"L_wo{j}:")
    a(f"s_cmp_lg_u32 {sR}, {sOff}")
    a(f"s_cbranch_scc1 L_nomx")
    a.c("mixer operands: lane (r,c) handles d = 16h + c and hidden pairs (4w+r)*28 + {c, 14+c}")
    a(f"s_lshl_b32 {sT[0]}, {sH}, 5")
    a(f"v_lshl_add_u32 v11, {vCol}, 1, {sT[0]}")
    a(f"global_load_ushort {vH}, v11, s[4:5]")
    a(f"s_mul_i32 {sT[0]}, {sW}, 448")
    a(f"v_mul_u32_u24 v11, 112, {vRow}")
    a(f"v_lshl_add_u32 v11, {vCol}, 2, v11")
    a(f"v_add_u32 v11, {sT[0]}, v11")
    a(f"v_cmp_lt_u32 vcc, 13, {vCol}")
    a(f"v_mov_b32 v12, 0x10000")
    a(f"s_movk_i32 s58, 3584")
    a(f"v_cndmask_b32 v11, v11, v12, vcc", "lanes 14,15 read out of range -> 0")
    for k, p in enumerate([16, 18, 20]):
        a(f"s_mov_b32 s56, s{p}"); a(f"s_mov_b32 s57, s{p+1}")
        for s_ in range(2):
            a(f"buffer_load_dword v{MX + 5*s_ + (1,3,4)[k]}, v11, {W2}, 0 offen offset:{56*s_}")
    if o.get("tv", 0):
        a(f"s_lshl_b32 {sT[0]}, s2, 20")
        a(f"v_mov_b32 v12, {sT[0]}")
        a(f"global_load_dword v147, v12, s[8:9] nt", "touch the V block: address translation is ready when the stream gets there")
    a(f"v_mov_b32 v12, 0")
    a(f"global_load_ushort v146, v12, s[22:23]", "b2")
    if o.get("to", 0): a(f"global_load_ushort v147, v12, s[24:25]", "value unused: only brings the output page's translation to this CU")
    a(f"s_lshl_b32 {sT[0]}, {sB}, 8")
    a(f"s_add_u32 {sT[0]}, {sT[0]}, {hex(WS_EPOCH)}")
    a(f"s_load_dword {sE}, s[28:29], {sT[0]}", "whatever the batch's tag word holds on entry")
    a("L_nomx:")
    a(f"s_cmp_lg_u32 {sR}, 15")
    a(f"s_cbranch_scc1 L_noms")
    unpack(160)
    ln(sM2, sD2, False)
    a("s_waitcnt vmcnt(0)")
    a(f"v_lshlrev_b32 {vH}, 16, {vH}")
    a(f"v_mov_b32 {vXr}, {vH}")
    a(f"v_subrev_f32 {vH}, {sM1}, {vH}"); rbf(vH)
    a(f"v_mul_f32 {vH}, {sD1}, {vH}"); rbf(vH)
    a(f"v_subrev_f32 {vH}, {sM2}, {vH}"); rbf(vH)
    a(f"v_mul_f32 {vH}, {sD2}, {vH}"); rbf(vH)
    for s_ in range(2):
        b = MX + 5*s_
        a(f"v_lshlrev_b32 v{b}, 16, v{b+1}"); a(f"v_and_b32 v{b+1}, {sHI}, v{b+1}")
        a(f"v_lshlrev_b32 v{b+2}, 16, v{b+3}"); a(f"v_and_b32 v{b+3}, {sHI}, v{b+3}")
    kb = math.sqrt(2.0/math.pi)
    a(f"v_mov_b32 {vC0}, {hex(f2u(-2*kb*l2e))}")
    a(f"s_mov_b32 {sC1}, {hex(f2u(-2*kb*l2e*0.044715))}")
    a(f"v_mov_b32 {vMA}, 0")
    a(f"s_mul_i32 {sE}, {sE}, 1664525", "this launch's tag: a full-period step away from the word found on entry")
    a(f"s_add_u32 {sE}, {sE}, 1013904223")
    a("L_noms:")
    a(f"s_cmp_lt_u32 {sR}, 16")
    a(f"s_cbranch_scc1 L_nomix")
    a.c("mixer: gelu_tanh(u) = u / (1 + exp(-2 z)), two hidden pairs per round")
    BC = "row_newbcast:0 " + FULL
    for s_ in range(2):
        b = MX + 5*s_
        a(f"v_mul_f32_dpp v16, v{b}, {vH} {BC}"); a(f"v_mul_f32_dpp v17, v{b+1}, {vH} {BC}")
        a(f"v_cvt_pk_bf16_f32 v17, v16, v17")
        a(f"v_lshlrev_b32 v16, 16, v17"); a(f"v_and_b32 v17, {sHI}, v17")
        a(f"v_add_f32_dpp v16, v{b+2}, v16 {BC}"); a(f"v_add_f32_dpp v17, v{b+3}, v17 {BC}")
        a(f"v_cvt_pk_bf16_f32 v17, v16, v17")
        a(f"v_lshlrev_b32 v16, 16, v17"); a(f"v_and_b32 v17, {sHI}, v17")
        a(f"v_mul_f32 v18, v16, v16"); a(f"v_mul_f32 v19, v17, v17")
        a(f"v_fma_f32 v18, v18, {sC1}, {vC0}"); a(f"v_fma_f32 v19, v19, {sC1}, {vC0}")
        a(f"v_mul_f32 v18, v18, v16"); a(f"v_mul_f32 v19, v19, v17")
        a(f"v_exp_f32 v18, v18"); a(f"v_exp_f32 v19, v19")
        a(f"v_mov_b32_dpp v{b}, v{b} row_ror:15 {FULL}")
        a(f"v_add_f32 v18, 1.0, v18"); a(f"v_add_f32 v19, 1.0, v19")
        a(f"v_rcp_f32 v18, v18"); a(f"v_rcp_f32 v19, v19")
        a(f"v_mov_b32_dpp v{b+1}, v{b+1} row_ror:15 {FULL}")
        a(f"v_mul_f32 v18, v18, v16"); a(f"v_mul_f32 v19, v19, v17")
        a(f"v_cvt_pk_bf16_f32 v18, v18, v19")
        a(f"v_mov_b32_dpp v{b+2}, v{b+2} row_ror:15 {FULL}")
        a(f"v_mov_b32_dpp v{b+3}, v{b+3} row_ror:15 {FULL}")
        a(f"v_dot2c_f32_bf16_dpp {vMA}, v{b+4}, v18 {BC}")
        a(f"v_mov_b32_dpp v{b+4}, v{b+4} row_ror:15 {FULL}")
    a("L_nomix:")
    a(f"s_add_u32 {sR}, {sR}, 1")
    a(f"s_cmp_lt_u32 {sR}, 32")
    a(f"s_cbranch_scc1 L_k")
    a.c("---- softmax statistics: per-wave (max, sum), then over the 8 waves ----")
    a(f"v_mov_b32 v16, {vM}")
    allreduce("v_max_f32", "v16", 4)
    a(f"v_sub_f32 v17, {vM}, v16")
    a(f"v_mul_f32 v17, {sL2E}, v17")
    a(f"v_exp_f32 v17, v17")
    a(f"s_lshl_b32 {sT[0]}, {sW}, 3")
    a(f"v_add_u32 v18, {sT[0]}, {vF}")
    a(f"v_mul_f32 v17, v17, {vLs}")
    allreduce("v_add_f32", "v17", 4)
    a(f"ds_write_b64 v18, v[16:17] offset:{F_ML}")
    rows_sum(vMA, "v19")
    a(f"s_lshl_b32 {sT[0]}, {sW}, 6")
    a(f"s_add_u32 {sT[0]}, {sT[0]}, {L_BP}")
    a(f"v_lshl_add_u32 v19, {vCol}, 2, {sT[0]}")
    a(f"ds_write_b32 v19, {vMA}")
    arrive(F_ARRS)
    a.c("interleave the wo row pairs: (row 2j, row 2j+1) per column")
    a(f"s_mov_b32 {sT[0]}, 0x05040100")
    a(f"s_mov_b32 {sT[1]}, 0x07060302")
    a("s_waitcnt vmcnt(0)")
    for j in range(16):
        for i in range(2):
            r0 = WREG + 4*j + i; r1 = r0 + 2
            a(f"v_perm_b32 v16, v{r1}, v{r0}, {sT[0]}")
            a(f"v_perm_b32 v{r1}, v{r1}, v{r0}, {sT[1]}")
            a(f"v_mov_b32 v{r0}, v16")
    if DRY:
        a.c("walk the end-of-kernel code once with no lane active, so that it is in the instruction cache")
        a(f"s_mov_b64 exec, 0")
        a(f"s_branch L_tailb")
        a("L_dryret:")
        a(f"s_mov_b64 exec, -1")
    a.c("hand-off addresses: lane (r,c) ends with column 64w + 4c + r")
    vYA = "v13"
    if DUP:
        a(f"s_lshl_b32 {sT[0]}, {sB}, 18")
        a(f"s_add_u32 {sT[0]}, {sT[0]}, {hex(WS_IN)}")
        a(f"s_add_u32 s56, s28, {sT[0]}")
        a(f"s_addc_u32 s57, s29, 0")
        a(f"s_mov_b32 s58, 0x40000")
        a(f"s_lshl_b32 {sT[0]}, {sW}, 15")
        a(f"s_lshl_b32 {sT[1]}, {sH}, 7")
        a(f"s_add_u32 {sT[0]}, {sT[0]}, {sT[1]}")
        a(f"v_bfe_u32 v12, {vCol}, 2, 1")
        a(f"v_lshl_add_u32 {vYA}, v12, 12, {sT[0]}")
        a(f"v_lshrrev_b32 v12, 3, {vCol}")
        a(f"v_lshl_add_u32 {vYA}, v12, 14, {vYA}")
        a(f"s_movk_i32 s10, 0x2000")
    else:
        a(f"s_lshl_b32 {sT[0]}, {sB}, 17")
        a(f"s_add_u32 s56, s28, {sT[0]}")
        a(f"s_addc_u32 s57, s29, 0")
        a(f"s_mov_b32 s58, 0x20000")
        a(f"s_lshl_b32 {sT[0]}, {sW}, 14")
        a(f"s_lshl_b32 {sT[1]}, {sH}, 7")
        a(f"s_add_u32 {sT[0]}, {sT[0]}, {sT[1]}")
        a(f"v_lshrrev_b32 v12, 2, {vCol}")
        a(f"v_lshl_add_u32 {vYA}, v12, 12, {sT[0]}")
    a(f"v_and_b32 v12, 3, {vCol}")
    a(f"v_lshl_add_u32 {vYA}, v12, 5, {vYA}")
    a(f"v_lshl_add_u32 {vYA}, {vRow}, 3, {vYA}")
    if IB >= 0:
        a(f"v_lshrrev_b32 v12, 1, {vYA}")
        a(f"v_xor_b32 v12, v12, {vYA}")
        a(f"v_and_b32 v12, 0x2000, v12")
        a(f"v_mul_u32_u24 v12, 3, v12")
        a(f"v_xor_b32 {vYA}, v12, {vYA}")
        if IB: a(f"v_xor_b32 {vYA}, {IB << 12}, {vYA}")
    if o.get("stm", 2) == 4:
        a(f"v_and_b32 v12, 1, {vRow}")
        a(f"v_lshl_add_u32 {vYA}, v12, 17, {vYA}")
    spin(F_ARRS, "s_cmp_ge_u32", 8, "v10", sT[0])
    a(f"v_and_b32 v18, 7, {vL}")
    a(f"v_lshl_add_u32 v18, v18, 3, {vF}")
    a(f"ds_read_b64 v[16:17], v18 offset:{F_ML}")
    a(f"v_lshlrev_b32 v19, 2, {vL}")
    a(f"v_add_u32 v18, {L_BP}, v19")
    a(f"ds_read_b32 v20, v18")
    a(f"ds_read_b32 v21, v18 offset:256")
    if POL: a(f"ds_read_b32 v12, {vF} offset:{F_POL}")
    a("s_waitcnt lgkmcnt(0)")
    if POL: a(f"v_xor_b32 {vYA}, v12, {vYA}")
    a(f"v_mov_b32 {vM}, v16")
    allreduce("v_max_f32", vM, 3)
    a(f"v_sub_f32 v16, v16, {vM}")
    a(f"v_mul_f32 v16, {sL2E}, v16")
    a(f"v_exp_f32 v16, v16")
    a(f"v_add_f32 v20, v20, v21")
    a(f"v_mul_f32 {vLs}, v16, v17")
    allreduce("v_add_f32", vLs, 3)
    a(f"v_rcp_f32 {vLs}, {vLs}")
    rows_sum("v20", "v21")
    rbf("v20")
    a(f"v_lshlrev_b32 v146, 16, v146")
    a(f"v_add_f32 v20, v146, v20")
    rbf("v20")
    a(f"v_lshl_add_u32 v18, {vCol}, 2, {vF}")
    a(f"v_mov_b32 v19, {sE}")
    a(f"ds_write_b32 v18, {vXr} offset:{L_FIN - L_FL}", "operands of the final stage (all waves write the same values)")
    a(f"ds_write_b32 v18, v20 offset:{L_FIN - L_FL + 64}")
    a(f"ds_write_b32 {vF}, v19 offset:{F_TAG}")
    a(f"s_lshl_b32 {sT[0]}, {sW}, 12")
    a(f"v_lshl_add_u32 {vKA}, {vL}, 4, {sT[0]}")
    a(f"v_and_b32 {vSA}, 3, {vL}")
    a(f"v_lshl_add_u32 {vSA}, {vSA}, 2, {vRow}")
    a(f"s_lshl_b32 {sT[0]}, {sW}, 6")
    a(f"s_add_u32 {sT[0]}, {sT[0]}, {L_SC}")
    a(f"v_lshl_add_u32 {vSA}, {vSA}, 2, {sT[0]}")
    for i in range(8): a(f"v_mov_b32 {ACC[i]}, 0")
    Y = ["v48", "v50", "v51", "v52"]
    for y in Y: a(f"v_mov_b32 {y}, 0")
    a(f"v_mov_b32 v49, {sE}")
    if o.get("wrt", 0):
        a(f"s_lshl_b32 {sT[0]}, s2, 13"); a(f"s_lshl_b32 {sT[1]}, {sW}, 10"); a(f"s_add_u32 {sT[0]}, {sT[0]}, {sT[1]}")
        a(f"s_add_u32 {sT[0]}, {sT[0]}, 0x800000")
        a(f"v_lshl_add_u32 v10, {vL}, 4, {sT[0]}")
        if o["wrt"] == 1: a("s_mov_b64 exec, 0xffffffff")
        a(f"global_store_dwordx4 v10, v[24:27], s[28:29] sc1")
        a("s_mov_b64 exec, -1")
    if "b0v" in o:
        a(f"v_mov_b32 v11, {o['b0v']}"); a(f"ds_write_b32 {vF}, v11 offset:{F_RATE}")
    stamp(4)
    a("s_branch L_v")
    a("L_vc:")
    if DUP == 1:
        NR = o.get("nr", 2)
        a.c("which copy of the inbox answers first?  (placement only: either copy carries the same data)")
        a(f"s_sub_u32 {sT[1]}, {sG}, {o.get('rg', 320)}")
        a(f"s_cmp_ge_u32 {sT[1]}, {8 * NR}")
        a(f"s_cbranch_scc1 L_nrace")
        a(f"s_and_b32 {sT[2]}, {sH}, 0x1e")
        a(f"s_add_u32 {sT[2]}, {sT[2]}, {sH}")
        a(f"s_lshl_b32 {sT[2]}, {sT[2]}, 12")
        a(f"s_lshl_b32 {sT[1]}, {sT[1]}, 8")
        a(f"s_add_u32 {sT[2]}, {sT[2]}, {sT[1]}")
        a(f"s_lshl_b32 {sT[1]}, {sW}, 13")
        a(f"s_and_b32 {sT[1]}, {sT[1]}, 0x2000", "odd waves ask the second copy first")
        a(f"s_add_u32 {sT[2]}, {sT[2]}, {sT[1]}")
        a(f"s_xor_b32 {sT[3]}, {sT[2]}, 0x2000")
        a(f"s_load_dword s80, s[56:57], {sT[2]} glc")
        a(f"s_load_dword s81, s[56:57], {sT[3]} glc")
        a(f"s_waitcnt lgkmcnt(0)")
        a(f"s_not_b32 s82, s80")
        a(f"s_load_dword s82, s[56:57], {sT[2]} glc")
        a(f"s_load_dword s83, s[56:57], {sT[3]} glc")
        a(f"s_waitcnt lgkmcnt(1)")
        a(f"s_cmp_eq_u32 s82, s80")
        a(f"s_cselect_b32 {sT[4]}, {sT[2]}, {sT[3]}", "offset of the winner")
        a(f"s_waitcnt lgkmcnt(0)")
        a(f"s_bitcmp1_b32 {sT[4]}, 13")
        a(f"s_cselect_b32 {sT[4]}, 1, -1")
        a(f"v_mov_b32 v11, {sT[4]}")
        a(f"s_mov_b64 exec, 1")
        a(f"ds_add_u32 {vF}, v11 offset:16")
        a(f"s_mov_b64 exec, -1")
        a("L_nrace:")
    ctl("v", B0=o.get("b0v", B0))
    if o.get("fg1", 440):
        fs1 = o.get("fs1", 2)
        ctl("w", FG0=o.get("fg1", 440), FP=o.get("fp1", 4), FS=fs1, FSA=o.get("fsa1", (7 * fs1) // 2 + 1), FEND=o.get("fend1", 490),
            BG=o.get("bg1", 55), B0=o.get("b01", o.get("b0v", B0)), WS_MARK=WS_MARK + 0x100000)
    a("L_v:")
    a(f"ds_read_b32 v16, {vSA}")
    a(f"v_add_u32 {vSA}, 512, {vSA}")
    a(f"v_add_u32 {vDn}, 1, {vDn}")
    a("s_waitcnt lgkmcnt(0)")
    a(f"v_sub_f32 v16, v16, {vM}", "p = bf16(exp(s - max) / sum)")
    a(f"v_mul_f32 v16, {sL2E}, v16")
    a(f"v_exp_f32 v16, v16")
    a(f"s_nop 0")
    a(f"v_mul_f32 v16, v16, {vLs}")
    a(f"v_cvt_pk_bf16_f32 v16, v16, v16")
    a(f"v_lshrrev_b32 v17, 16, v16")
    a(f"v_and_b32 v16, {sHI}, v16")
    spin(F_LAND, "s_cmp_gt_i32", sG, "v10", sT[0], o.get("sleep", 0), True)
    for t in range(4): a(f"ds_read_b128 v[{DT+4*t}:{DT+4*t+3}], {vKA} offset:{1024*t}")
    a(f"v_add_u32 {vKA}, 0x8000, {vKA}")
    a(f"v_and_b32 {vKA}, 0x1ffff, {vKA}")
    a(f"s_add_u32 {sG}, {sG}, 8")
    a(f"s_cmpk_lt_u32 {sG}, 512")
    for j in range(4):
        a(f"s_waitcnt lgkmcnt({3-j})")
        if j == 3: a(f"ds_write_b32 {vDA}, {vDn} offset:{F_DONE}")
        for i in range(4):
            a(f"v_dot2c_f32_bf16_dpp {ACC[2*i]}, v17, v{DT+4*j+i} quad_perm:[{j},{j},{j},{j}] {FULL}")
            a(f"v_dot2c_f32_bf16_dpp {ACC[2*i+1]}, v16, v{DT+4*j+i} quad_perm:[{j},{j},{j},{j}] {FULL}")
    a(f"s_cbranch_scc1 L_vc")
    stamp(5)
    a.c("---- o over rows and waves, output projection, hand-off ----")
    a("s_nop 1")
    rows_reduce8(vPW)
    a("s_waitcnt lgkmcnt(0)")
    a("s_barrier")
    a("L_tailb:")
    tstamp(1)
    sum8(DT, vPR)
    a("s_nop 1")
    tstamp(2)
    for j in range(16):
        for c in range(4):
            a(f"v_dot2c_f32_bf16_dpp {Y[c]}, v{DT}, v{WREG+4*j+(0,2,1,3)[c]} row_newbcast:{j} {FULL}")
    a("s_nop 1")
    a(f"v_permlane32_swap_b32 {Y[0]}, {Y[2]}")
    a(f"v_permlane32_swap_b32 {Y[1]}, {Y[3]}")
    a(f"v_add_f32 {Y[0]}, {Y[0]}, {Y[2]}")
    a(f"v_add_f32 {Y[1]}, {Y[1]}, {Y[3]}")
    STM = o.get("stm", 2); STP = o.get("stp", "sc1")
    if STM == 4:
        a(f"v_mov_b32 {Y[2]}, {Y[0]}"); a(f"v_mov_b32 {Y[3]}, {Y[1]}")
        a("s_nop 0")
        a(f"v_permlane16_swap_b32 {Y[0]}, {Y[2]}")
        a(f"v_permlane16_swap_b32 {Y[1]}, {Y[3]}")
        a(f"v_add_f32 {Y[0]}, {Y[0]}, {Y[2]}")
        a(f"v_add_f32 {Y[1]}, {Y[1]}, {Y[3]}")
        a(f"v_mov_b32 v51, v49")
    else:
        a("s_nop 1")
        a(f"v_permlane16_swap_b32 {Y[0]}, {Y[1]}")
        a(f"v_add_f32 {Y[0]}, {Y[0]}, {Y[1]}")
    if DRY: a(f"s_cbranch_execz {'L_drain' if DRY == 2 else 'L_fin0'}")
    if STM == 4: a(f"buffer_store_dwordx4 v[48:51], {vYA}, {W2}, 0 offen {STP}")
    elif STM == 2: a(f"buffer_store_dwordx2 v[48:49], {vYA}, {W2}, 0 offen {STP}", "{partial, tag} to the workgroup that owns the column")
    if DUP: a(f"buffer_store_dwordx2 v[48:49], {vYA}, {W2}, s10 offen {STP}", "second copy, homed on the other half of the memory")
    if STM == 3: a(f"buffer_atomic_swap_x2 v[48:49], {vYA}, {W2}, 0 offen {STP}")
    if o.get("wb", 0): a("buffer_wbl2 sc1")
    tstamp(3)
    stamp(6); stamp(7)
    a("L_fin:")
    if STAMP: a(f"s_mov_b64 exec, -1")
    if o.get("wend", 0): a("s_waitcnt vmcnt(0)")
    stamp(8)
    if STAMP in (4, 5):
        a("s_memrealtime s[72:73]")
        a("s_waitcnt lgkmcnt(0)")
        a(f"s_cmp_lg_u32 {sW}, {o.get('lw', -1)}"); a("s_cbranch_scc1 L_end")
        if "swg" in o: a(f"s_cmp_lg_u32 s2, {o['swg']}"); a("s_cbranch_scc1 L_end")
        a(f"s_sub_u32 s74, s{60+2*o['t1']}, s{60+2*o['t0']}")
        if o.get("avg", 0):
            a("L_hold:")
            a("s_memrealtime s[76:77]"); a("s_waitcnt lgkmcnt(0)"); a("s_sub_u32 s76, s76, s60")
            a(f"s_cmp_lt_u32 s76, 8500"); a("s_cbranch_scc1 L_hold")
            a("s_add_u32 s74, s74, 0x1000000")
            a("s_mov_b32 s75, s74")
            a("s_atomic_add s75, s[26:27], 0 glc")
            a("s_waitcnt lgkmcnt(0)")
            a("s_add_u32 s74, s74, s75")
            a("s_cbranch_scc0 L_end")
            a("s_lshr_b32 s74, s74, 8")
        a(f"s_sub_u32 s74, s74, {o.get('sub', 0)}")
        if o.get("neg", 0): a("s_sub_u32 s74, 0, s74")
        a(f"s_mul_i32 s74, s74, {o.get('amp', 10)}")
        a(f"s_add_u32 s74, s74, 10000"); a(f"s_min_u32 s74, s74, 100000")
        a("L_pin3:")
        a("s_memrealtime s[76:77]"); a("s_waitcnt lgkmcnt(0)"); a("s_sub_u32 s76, s76, s60")
        a(f"s_cmp_lt_u32 s76, s74"); a("s_cbranch_scc1 L_pin3")
    if STAMP == 1:
        a("s_waitcnt vmcnt(0) lgkmcnt(0)")
        a(f"s_mul_i32 {sT[0]}, s2, 9"); a(f"s_add_u32 {sT[0]}, {sT[0]}, {sW}"); a(f"s_add_u32 {sT[0]}, {sT[0]}, 1")
        a(f"s_lshl_b32 {sT[0]}, {sT[0]}, 7"); a(f"s_add_u32 {sT[0]}, {sT[0]}, 0x100000")
        a(f"v_mov_b32 v16, 0")
        for i in range(18): a(f"v_writelane_b32 v16, s{60+i}, {i}")
        a(f"s_getreg_b32 {sT[1]}, hwreg(HW_REG_XCC_ID)"); a(f"s_getreg_b32 {sT[2]}, hwreg(HW_REG_HW_ID)")
        a(f"v_writelane_b32 v16, {sT[1]}, 18"); a(f"v_writelane_b32 v16, {sT[2]}, 19")
        a(f"v_writelane_b32 v16, {sSpin}, 20"); a(f"v_writelane_b32 v16, s79, 21"); a(f"v_writelane_b32 v16, s88, 22")
        if POL: a(f"ds_read_b32 v23, {vF} offset:{F_PSUM}"); a("s_waitcnt lgkmcnt(0)")
        if DUP or POL: a("v_readfirstlane_b32 s89, v23"); a("s_nop 3"); a(f"v_writelane_b32 v16, s89, 23")
        a(f"v_lshl_add_u32 v17, {vL}, 2, {sT[0]}")
        a(f"s_mov_b64 exec, 0xffffffff")
        a(f"global_store_dword v17, v16, s[28:29]")
    a("L_end:")
    a("s_endpgm")

    head = open("cdna_kernels/%s.s.ref" % NAME).read().split("; Override launch")[0]
    out = head + f"; @launch grid=(256,1,1) block=(576,1,1) lds={LDS_BYTES}\n"
    out += DOC + '.amdgcn_target "amdgcn-amd-amdhsa--gfx950"\n.text\n'
    out += f".globl {NAME}_kernel\n.p2align 8\n.type {NAME}_kernel,@function\n" + a.text()
    out += f""".section .rodata,"a"
.p2align 6
.amdhsa_kernel {NAME}_kernel
  .amdhsa_next_free_vgpr 168
  .amdhsa_next_free_sgpr 96
  .amdhsa_accum_offset 168
  .amdhsa_group_segment_fixed_size 0
  .amdhsa_kernarg_size 104
  .amdhsa_user_sgpr_count 2
  .amdhsa_user_sgpr_kernarg_segment_ptr 1
  .amdhsa_system_sgpr_workgroup_id_x 1
  .amdhsa_float_denorm_mode_32 3
.end_amdhsa_kernel
"""
    return out
if __name__ == "__main__":
    opts = {}
    for kv in sys.argv[2:]:
        k, v = kv.split("=")
        try: opts[k] = int(v, 0)
        except ValueError: opts[k] = v.replace("+", " ")
    open(sys.argv[1], "w").write(gen(opts))
```
